```python
import torch

def _softmax(x, axis=-1):
    return torch.softmax(x, dim=axis)
def _gelu(x):
    return torch.nn.functional.gelu(x, approximate="tanh")
def _silu(x):
    return torch.nn.functional.silu(x)
def _sigmoid(x):
    return torch.sigmoid(x)
def _layernorm(x, axis=-1, eps=1e-5):
    m = x.mean(dim=axis, keepdim=True)
    v = x.var(dim=axis, keepdim=True, unbiased=False)
    return (x - m) / torch.sqrt(v + eps)
def _scatter_add(tgt, idx, src, axis=0):
    return tgt.clone().index_add_(axis, idx, src)
def _segment_sum(src, seg, n):
    out = torch.zeros((n,) + src.shape[1:], dtype=src.dtype)
    return out.index_add_(0, seg, src)
def _pad(x, pw):
    flat = tuple(v for pair in reversed(pw) for v in pair)
    return torch.nn.functional.pad(x, flat)

kernel_name = 'recurrent_scan__spectral_fnet__dense_activation_silu__prompt'

def setup_inputs():

    _w = (lambda a: (lambda t: t.to(torch.bfloat16) if t.is_floating_point() else t)(torch.as_tensor(a)))
    def _A_setup():
        B, S, D = 1, 2048, 1024
        ns = torch.arange(S)[:, None] * torch.arange(S)[None, :]
        nd = torch.arange(D)[:, None] * torch.arange(D)[None, :]
        Ws_re = torch.cos(-2.0 * torch.pi * ns / S).to(float)
        Ws_im = torch.sin(-2.0 * torch.pi * ns / S).to(float)
        Wd_re = torch.cos(-2.0 * torch.pi * nd / D).to(float)
        Wd_im = torch.sin(-2.0 * torch.pi * nd / D).to(float)
        return {
            "x": _w((lambda *s: torch.randn(*s, dtype=torch.bfloat16) * 0.05)(B, S, D)),
            "dft_seq_re": _w(Ws_re),
            "dft_seq_im": _w(Ws_im),
            "dft_hid_re": _w(Wd_re),
            "dft_hid_im": _w(Wd_im),
        }
    _A_in = _A_setup()

    def _B_setup():
        B, S, D, F = 1, 2048, 1024, 3584
        return {
            "x": _w((lambda *s: torch.randn(*s, dtype=torch.bfloat16) * 0.05)(B, S, D)),
            "w1": _w((lambda *s: torch.randn(*s, dtype=torch.bfloat16) * 0.4)(D, F) * (D ** -0.5)),
            "w2": _w((lambda *s: torch.randn(*s, dtype=torch.bfloat16) * 0.05)(F, D) * (F ** -0.5)),
        }
    _B_in = _B_setup()

    return {
        "A_x": _A_in["x"],
        "A_dft_seq_re": _A_in["dft_seq_re"],
        "A_dft_seq_im": _A_in["dft_seq_im"],
        "A_dft_hid_re": _A_in["dft_hid_re"],
        "A_dft_hid_im": _A_in["dft_hid_im"],
        "B_x": _B_in["x"],
        "B_w1": _B_in["w1"],
        "B_w2": _B_in["w2"],
    }

def reference(A_x, A_dft_seq_re, A_dft_seq_im, A_dft_hid_re, A_dft_hid_im, B_x, B_w1, B_w2):
    def _A_ref(x, dft_seq_re, dft_seq_im, dft_hid_re, dft_hid_im):
        a = torch.einsum("bsd,ed->bse", x, dft_hid_re)
        b = torch.einsum("bsd,ed->bse", x, dft_hid_im)
        y = torch.einsum("ts,bse->bte", dft_seq_re, a) - torch.einsum("ts,bse->bte", dft_seq_im, b)
        return y

    def _B_ref(x, w1, w2):
        h = torch.einsum("bsd,df->bsf", x, w1)
        h = _silu(h)
        out = torch.einsum("bsf,fd->bsd", h, w2)
        return out

    x = A_x
    xn = _layernorm(x, axis=-1)
    s = _A_ref(xn, A_dft_seq_re, A_dft_seq_im, A_dft_hid_re, A_dft_hid_im)
    g = _silu(_B_ref(xn, B_w1, B_w2))
    return x + s * g
```

```python
import math, struct, sys

NAME = "recurrent_scan__spectral_fnet__dense_activation_silu__prompt"

XN_OFF = 0x0000000; XN_SZ = 2048 * 1024 * 2
CB_OFF = 0x0400000; CB_SZ = 72 * 65536
ZT_OFF = 0x0900000; ZT_SZ = 18 * 262144
H_OFF = 0x0E00000; H_SZ = 2048 * 3584 * 2


def f32(x):
    return struct.unpack("<I", struct.pack("<f", x))[0]


def hx(x):
    return "0x%x" % (x & 0xFFFFFFFF)


def v(i, n=1):
    return "v%d" % i if n == 1 else "v[%d:%d]" % (i, i + n - 1)


def s(i, n=1):
    return "s%d" % i if n == 1 else "s[%d:%d]" % (i, i + n - 1)


class Asm:
    def __init__(self):
        self.lines = []

    def __call__(self, txt):
        self.lines.append("    " + txt)

    def label(self, l):
        self.lines.append(l + ":")

    def c(self, txt):
        self.lines.append("    ; " + txt)

    def raw(self, txt):
        self.lines.append(txt)

    def text(self):
        return "\n".join(self.lines) + "\n"


def srd(a, dst, ptr, off, size):
    if off:
        a("s_add_u32 %s, %s, %s" % (s(dst), s(ptr), hx(off)))
        a("s_addc_u32 %s, %s, 0" % (s(dst + 1), s(ptr + 1)))
    else:
        a("s_mov_b32 %s, %s" % (s(dst), s(ptr)))
        a("s_mov_b32 %s, %s" % (s(dst + 1), s(ptr + 1)))
    a("s_mov_b32 %s, %s" % (s(dst + 2), hx(size)))
    a("s_mov_b32 %s, 0x20000" % s(dst + 3))


def kernel_header(a, name):
    a.raw(".globl %s" % name)
    a.raw(".p2align 8")
    a.raw(".type %s,@function" % name)
    a.label(name)


def kernel_desc(name, vgpr, sgpr):
    acc = (vgpr + 3) // 4 * 4
    return "\n".join([
        ".p2align 6",
        ".amdhsa_kernel %s" % name,
        "  .amdhsa_next_free_vgpr %d" % vgpr,
        "  .amdhsa_next_free_sgpr %d" % sgpr,
        "  .amdhsa_accum_offset %d" % acc,
        "  .amdhsa_group_segment_fixed_size 0",
        "  .amdhsa_kernarg_size 88",
        "  .amdhsa_user_sgpr_count 2",
        "  .amdhsa_user_sgpr_kernarg_segment_ptr 1",
        "  .amdhsa_system_sgpr_workgroup_id_x 1",
        ".end_amdhsa_kernel",
    ]) + "\n"


NEG1 = " neg_lo:[0,1] neg_hi:[0,1]"


def wave_sum(a, r, sdst):
    for m in ("quad_perm:[1,0,3,2] row_mask:0xf", "quad_perm:[2,3,0,1] row_mask:0xf",
              "row_half_mirror row_mask:0xf", "row_mirror row_mask:0xf",
              "row_bcast:15 row_mask:0xa", "row_bcast:31 row_mask:0xc"):
        a("s_nop 1")
        a("v_add_f32_dpp %s, %s, %s %s bank_mask:0xf" % (v(r), v(r), v(r), m))
    a("s_nop 1")
    a("v_readlane_b32 %s, %s, 63" % (s(sdst), v(r)))
    a("s_nop 1")


def gen_prep(a):
    name = "fnet_prep_kernel"
    kernel_header(a, name)
    a("s_cmp_ge_u32 s2, 128")
    a("s_cbranch_scc1 L_prep_end")
    a("s_load_dwordx2 s[4:5], s[0:1], 0")
    a("s_load_dwordx2 s[6:7], s[0:1], 80")
    a("v_lshrrev_b32 v1, 6, v0")
    a("v_and_b32 v2, 63, v0")
    a("v_lshlrev_b32 v3, 18, v1")
    a("v_lshl_add_u32 v3, v2, 3, v3")
    a("s_lshl_b32 s3, s2, 11")
    a("v_add_u32 v3, s3, v3")
    a("s_and_b32 s20, s2, 15")
    a("s_lshl_b32 s20, s20, 7")
    a("s_lshr_b32 s21, s2, 4")
    a("s_add_u32 s20, s20, s21")
    a("s_lshl_b32 s20, s20, 11")
    a("v_lshlrev_b32 v4, 14, v1")
    a("v_lshl_add_u32 v4, v2, 3, v4")
    a("v_add_u32 v4, s20, v4")
    a("v_lshlrev_b32 v5, 10, v1")
    a("v_lshl_add_u32 v5, v2, 4, v5")
    a("s_waitcnt lgkmcnt(0)")
    srd(a, 8, 4, 0, 2048 * 1024 * 2)
    srd(a, 12, 6, XN_OFF, XN_SZ)
    srd(a, 16, 6, CB_OFF, CB_SZ)
    for jj in range(4):
        a("buffer_load_dwordx2 %s, v3, s[8:11], 0 offen offset:%d" % (v(10 + 2 * jj, 2), 512 * jj))
    X = 20
    a("s_mov_b32 s22, 0xffff0000")
    for jj in range(4):
        a("s_waitcnt vmcnt(%d)" % (3 - jj))
        for h in range(2):
            src = 10 + 2 * jj + h
            a("v_lshlrev_b32 %s, 16, %s" % (v(X + 4 * jj + 2 * h), v(src)))
            a("v_and_b32 %s, s22, %s" % (v(X + 4 * jj + 2 * h + 1), v(src)))
    T = 36
    a("v_pk_add_f32 %s, %s, %s" % (v(T, 2), v(X, 2), v(X + 2, 2)))
    a("v_pk_add_f32 %s, %s, %s" % (v(T + 2, 2), v(X + 4, 2), v(X + 6, 2)))
    a("v_pk_add_f32 %s, %s, %s" % (v(T + 4, 2), v(X + 8, 2), v(X + 10, 2)))
    a("v_pk_add_f32 %s, %s, %s" % (v(T + 6, 2), v(X + 12, 2), v(X + 14, 2)))
    a("v_pk_add_f32 %s, %s, %s" % (v(T, 2), v(T, 2), v(T + 2, 2)))
    a("v_pk_add_f32 %s, %s, %s" % (v(T + 4, 2), v(T + 4, 2), v(T + 6, 2)))
    a("v_pk_add_f32 %s, %s, %s" % (v(T, 2), v(T, 2), v(T + 4, 2)))
    a("v_add_f32 %s, %s, %s" % (v(T), v(T), v(T + 1)))
    wave_sum(a, T, 24)
    M = 44
    a("v_mov_b32 %s, %s" % (v(M), hx(f32(1.0 / 1024))))
    a("v_mul_f32 %s, s24, %s" % (v(M), v(M)))
    D = 48
    for p in range(8):
        a("v_pk_add_f32 %s, %s, %s op_sel_hi:[1,0]%s" % (v(D + 2 * p, 2), v(X + 2 * p, 2), v(M, 2), NEG1))
    a("v_pk_mul_f32 %s, %s, %s" % (v(T, 2), v(D, 2), v(D, 2)))
    a("v_pk_mul_f32 %s, %s, %s" % (v(T + 2, 2), v(D + 2, 2), v(D + 2, 2)))
    for p in range(2, 8):
        t = T + 2 * (p & 1)
        a("v_pk_fma_f32 %s, %s, %s, %s" % (v(t, 2), v(D + 2 * p, 2), v(D + 2 * p, 2), v(t, 2)))
    a("v_pk_add_f32 %s, %s, %s" % (v(T, 2), v(T, 2), v(T + 2, 2)))
    a("v_add_f32 %s, %s, %s" % (v(T), v(T), v(T + 1)))
    wave_sum(a, T, 25)
    R = 46
    a("v_mov_b32 %s, %s" % (v(R), hx(f32(1.0 / 1024))))
    a("v_mul_f32 %s, s25, %s" % (v(R), v(R)))
    a("v_cvt_pk_bf16_f32 %s, %s, %s" % (v(R), v(R), v(R)))
    a("v_lshlrev_b32 %s, 16, %s" % (v(R), v(R)))
    a("v_add_f32 %s, %s, %s" % (v(R), hx(f32(1e-5)), v(R)))
    a("v_cvt_pk_bf16_f32 %s, %s, %s" % (v(R), v(R), v(R)))
    a("v_lshlrev_b32 %s, 16, %s" % (v(R), v(R)))
    a("v_sqrt_f32 %s, %s" % (v(R), v(R)))
    a("v_cvt_pk_bf16_f32 %s, %s, %s" % (v(M), v(M), v(M)))
    a("v_cvt_pk_bf16_f32 %s, %s, %s" % (v(R), v(R), v(R)))
    a("v_lshlrev_b32 %s, 16, %s" % (v(M), v(M)))
    a("v_lshlrev_b32 %s, 16, %s" % (v(R), v(R)))
    a("v_rcp_f32 %s, %s" % (v(R), v(R)))
    for p in range(8):
        a("v_pk_add_f32 %s, %s, %s op_sel_hi:[1,0]%s" % (v(D + 2 * p, 2), v(X + 2 * p, 2), v(M, 2), NEG1))
    for p in range(8):
        a("v_cvt_pk_bf16_f32 %s, %s, %s" % (v(T + p), v(D + 2 * p), v(D + 2 * p + 1)))
    for p in range(8):
        a("v_lshlrev_b32 %s, 16, %s" % (v(D + 2 * p), v(T + p)))
        a("v_and_b32 %s, s22, %s" % (v(D + 2 * p + 1), v(T + p)))
    for p in range(8):
        a("v_pk_mul_f32 %s, %s, %s op_sel_hi:[1,0]" % (v(D + 2 * p, 2), v(D + 2 * p, 2), v(R, 2)))
    for p in range(8):
        a("v_cvt_pk_bf16_f32 %s, %s, %s" % (v(10 + p), v(D + 2 * p), v(D + 2 * p + 1)))
    for jj in range(4):
        a("buffer_store_dwordx2 %s, v4, s[12:15], 0 offen offset:%d" % (v(10 + 2 * jj, 2), 512 * jj))
    for p in range(8):
        a("v_lshlrev_b32 %s, 16, %s" % (v(X + 2 * p), v(10 + p)))
        a("v_and_b32 %s, s22, %s" % (v(X + 2 * p + 1), v(10 + p)))
    for h in range(2):
        x0, x1, x2, x3 = (X + 4 * jj + 2 * h for jj in range(4))
        a("v_pk_add_f32 %s, %s, %s" % (v(T, 2), v(x0, 2), v(x2, 2)))
        a("v_pk_add_f32 %s, %s, %s" % (v(T + 2, 2), v(x1, 2), v(x3, 2)))
        a("v_pk_add_f32 %s, %s, %s%s" % (v(D + 8 + 2 * h, 2), v(x0, 2), v(x2, 2), NEG1))
        a("v_pk_add_f32 %s, %s, %s%s" % (v(D + 12 + 2 * h, 2), v(x1, 2), v(x3, 2), NEG1))
        a("v_pk_add_f32 %s, %s, %s" % (v(D + 2 * h, 2), v(T, 2), v(T + 2, 2)))
        a("v_pk_add_f32 %s, %s, %s%s" % (v(D + 4 + 2 * h, 2), v(T, 2), v(T + 2, 2), NEG1))
    for arr in range(4):
        a("ds_write_b128 v5, %s offset:%d" % (v(D + 4 * arr, 4), arr * 16384))
    a("v_readfirstlane_b32 s26, v1")
    a("s_waitcnt lgkmcnt(0)")
    a("s_barrier")
    a("s_cmp_ge_u32 s26, 4")
    a("s_cbranch_scc1 L_prep_end")
    a("v_and_b32 v6, 127, v0")
    a("v_lshrrev_b32 v7, 7, v0")
    a("v_lshlrev_b32 v8, 15, v7")
    a("v_lshl_add_u32 v8, v6, 3, v8")
    IN = [12, 44]
    for ab in range(2):
        for j in range(16):
            a("ds_read_b64 %s, v8 offset:%d" % (v(IN[ab] + 2 * j, 2), ab * 16384 + j * 1024))
    a("s_lshl_b32 s3, s2, 9")
    a("v_lshlrev_b32 v9, 17, v7")
    a("v_lshl_add_u32 v9, v6, 2, v9")
    a("v_add_u32 v9, s3, v9")
    C1, C2, C3 = 28, 30, 32
    for r_, val in ((C1, math.cos(math.pi / 8)), (C2, math.cos(math.pi / 4)), (C3, math.cos(3 * math.pi / 8))):
        a("s_mov_b32 %s, %s" % (s(r_), hx(f32(val))))
        a("s_mov_b32 %s, %s" % (s(r_ + 1), hx(f32(val))))
    free = list(range(76, 124, 2))

    def alloc():
        return free.pop(0)

    def rel(*rs):
        for r_ in rs:
            free.append(r_)

    def add(x, y):
        d = alloc(); a("v_pk_add_f32 %s, %s, %s" % (v(d, 2), v(x, 2), v(y, 2))); return d

    def sub(x, y):
        d = alloc(); a("v_pk_add_f32 %s, %s, %s%s" % (v(d, 2), v(x, 2), v(y, 2), NEG1)); return d

    def mul(x, c):
        d = alloc(); a("v_pk_mul_f32 %s, %s, %s" % (v(d, 2), v(x, 2), s(c, 2))); return d

    def fma(x, c, y, nx=False, ny=False):
        d = alloc()
        mod = ""
        if nx or ny:
            mod = " neg_lo:[%d,0,%d] neg_hi:[%d,0,%d]" % (nx, ny, nx, ny)
        a("v_pk_fma_f32 %s, %s, %s, %s%s" % (v(d, 2), v(x, 2), s(c, 2), v(y, 2), mod)); return d

    def dft16(base):
        Xj = [base + 2 * j for j in range(16)]
        u = []; w = []
        for j in range(8):
            u.append(add(Xj[j], Xj[j + 8])); w.append(sub(Xj[j], Xj[j + 8])); rel(Xj[j], Xj[j + 8])
        uu = []; uv = []
        for j in range(4):
            uu.append(add(u[j], u[j + 4])); uv.append(sub(u[j], u[j + 4])); rel(u[j], u[j + 4])
        p = {}; q = {}
        e0 = add(uu[0], uu[2]); e1 = add(uu[1], uu[3])
        p[4] = sub(uu[0], uu[2]); q[4] = sub(uu[1], uu[3]); rel(*uu)
        p[0] = add(e0, e1); p[8] = sub(e0, e1); rel(e0, e1)
        dm = sub(uv[1], uv[3]); dp = add(uv[1], uv[3])
        p[2] = fma(dm, C2, uv[0]); p[6] = fma(dm, C2, uv[0], nx=True)
        q[2] = fma(dp, C2, uv[2]); q[6] = fma(dp, C2, uv[2], ny=True)
        rel(dm, dp, *uv)
        aa = {}; bb = {}
        for j in (1, 2, 3):
            aa[j] = sub(w[j], w[8 - j]); bb[j] = add(w[j], w[8 - j]); rel(w[j], w[8 - j])
        Ap = fma(aa[2], C2, w[0]); Am = fma(aa[2], C2, w[0], nx=True); rel(aa[2], w[0])
        t = mul(aa[1], C1); G1 = fma(aa[3], C3, t); rel(t)
        t = mul(aa[1], C3); G3 = fma(aa[3], C1, t, nx=True); rel(t, aa[1], aa[3])
        p[1] = add(Ap, G1); p[7] = sub(Ap, G1); p[3] = add(Am, G3); p[5] = sub(Am, G3); rel(Ap, Am, G1, G3)
        Bp = fma(bb[2], C2, w[4]); B3 = fma(bb[2], C2, w[4], ny=True); rel(bb[2], w[4])
        t = mul(bb[1], C3); H1 = fma(bb[3], C1, t); rel(t)
        t = mul(bb[1], C1); H3 = fma(bb[3], C3, t, nx=True); rel(t, bb[1], bb[3])
        q[1] = add(H1, Bp); q[7] = sub(H1, Bp); q[3] = add(H3, B3); q[5] = sub(H3, B3); rel(Bp, B3, H1, H3)
        return p, q

    a("s_waitcnt lgkmcnt(0)")
    pa, qa = dft16(IN[0])
    pb, qb = dft16(IN[1])
    a("s_cmp_ge_u32 s26, 2")
    a("s_cbranch_scc1 L_prep_p1")
    tmpd = []
    for _ in range(4):
        r_ = alloc(); tmpd += [r_, r_ + 1]
    t2 = [alloc(), alloc()]
    cnt = [0]

    def store_pair(reg, r_, which, reim, neg=False):
        d = tmpd[cnt[0] % len(tmpd)]; cnt[0] += 1
        if reg is None:
            a("v_mov_b32 %s, 0" % v(d))
        elif neg:
            a("v_cvt_pk_bf16_f32 %s, -%s, -%s" % (v(d), v(reg), v(reg + 1)))
        else:
            a("v_cvt_pk_bf16_f32 %s, %s, %s" % (v(d), v(reg), v(reg + 1)))
        a("s_mov_b32 s34, %s" % hx((r_ * 8 + 4 * which + reim) * 65536))
        a("buffer_store_dword %s, v9, s[16:19], s34 offen" % v(d))

    for r_ in range(9):
        store_pair(pa[r_], r_, 0, 0); store_pair(qa.get(r_), r_, 0, 1)
        store_pair(pb[r_], r_, 1, 0); store_pair(qb.get(r_), r_, 1, 1)
    a("s_endpgm")
    a.label("L_prep_p1")
    for r_ in range(9):
        if r_ in (0, 8):
            store_pair(pa[r_], r_, 0, 0); store_pair(pb[r_], r_, 0, 1)
            store_pair(pa[r_], r_, 1, 0); store_pair(pb[r_], r_, 1, 1, neg=True)
        else:
            a("v_pk_add_f32 %s, %s, %s%s" % (v(t2[0], 2), v(pa[r_], 2), v(qb[r_], 2), NEG1))
            a("v_pk_add_f32 %s, %s, %s" % (v(t2[1], 2), v(qa[r_], 2), v(pb[r_], 2)))
            store_pair(t2[0], r_, 0, 0); store_pair(t2[1], r_, 0, 1)
            a("v_pk_add_f32 %s, %s, %s" % (v(t2[0], 2), v(pa[r_], 2), v(qb[r_], 2)))
            a("v_pk_add_f32 %s, %s, %s%s" % (v(t2[1], 2), v(qa[r_], 2), v(pb[r_], 2), NEG1))
            store_pair(t2[0], r_, 1, 0); store_pair(t2[1], r_, 1, 1)
    a.label("L_prep_end")
    a("s_endpgm")
    return kernel_desc(name, 124, 40)


def interleave(a, main, fill, per=1, start=0):
    fi = 0
    for i, m in enumerate(main):
        a(m)
        if i >= start:
            for _ in range(per):
                if fi < len(fill):
                    a(fill[fi]); fi += 1
    while fi < len(fill):
        a(fill[fi]); fi += 1


def mfma(d, sa, sb, c=None):
    return "v_mfma_f32_16x16x32_bf16 %s, %s, %s, %s" % (v(d, 4), v(sa, 4), v(sb, 4), v(d, 4) if c is None else c)


def load_ptrs(a):
    a("s_load_dwordx16 s[16:31], s[0:1], 0")
    a("s_load_dwordx4 s[32:35], s[0:1], 64")
    a("s_load_dwordx2 s[36:37], s[0:1], 80")


def rowimg_frag_addr(a, dst0, dst1, rowbase_sgpr, lane):
    a("v_and_b32 %s, 15, %s" % (v(dst0), v(lane)))
    a("v_lshlrev_b32 %s, 7, %s" % (v(dst0), v(dst0)))
    a("v_lshrrev_b32 %s, 4, %s" % (v(dst1), v(lane)))
    a("v_bfe_u32 v2, %s, 1, 3" % v(lane))
    a("v_xor_b32 %s, %s, v2" % (v(dst1), v(dst1)))
    a("v_lshl_add_u32 %s, %s, 4, %s" % (v(dst0), v(dst1), v(dst0)))
    a("v_add_u32 %s, %s, %s" % (v(dst0), s(rowbase_sgpr), v(dst0)))
    a("v_xor_b32 %s, 64, %s" % (v(dst1), v(dst0)))


def silu_pk(a, regs, tmp, sNL2E):
    for r_, t in zip(regs, tmp):
        a("v_pk_mul_f32 %s, %s, %s" % (v(t, 2), v(r_, 2), s(sNL2E, 2)))
    for t in tmp:
        a("v_exp_f32 %s, %s" % (v(t), v(t)))
        a("v_exp_f32 %s, %s" % (v(t + 1), v(t + 1)))
    for t in tmp:
        a("v_pk_add_f32 %s, %s, 1.0 op_sel_hi:[1,0]" % (v(t, 2), v(t, 2)))
    for t in tmp:
        a("v_rcp_f32 %s, %s" % (v(t), v(t)))
        a("v_rcp_f32 %s, %s" % (v(t + 1), v(t + 1)))
    for r_, t in zip(regs, tmp):
        a("v_pk_mul_f32 %s, %s, %s" % (v(r_, 2), v(r_, 2), v(t, 2)))


def gen_gemm1(a):
    name = "fnet_gemm1_kernel"
    SLOT = 45056
    NS = 3
    XN, W1, CB, DR, DI, HS, ZT = 40, 44, 48, 52, 56, 60, 64
    kernel_header(a, name)
    a("s_cmp_ge_u32 s2, 256")
    a("s_cbranch_scc1 L_g1_end")
    load_ptrs(a)
    a("v_lshrrev_b32 v1, 6, v0")
    a("v_and_b32 v3, 63, v0")
    a("s_and_b32 s4, s2, 7")
    a("s_lshr_b32 s5, s2, 3")
    a("v_readfirstlane_b32 s3, v1")
    a("s_and_b32 s6, s4, 1")
    a("s_lshl_b32 s6, s6, 3")
    a("s_and_b32 s7, s5, 7")
    a("s_add_u32 s6, s6, s7")
    a("s_lshr_b32 s7, s4, 1")
    a("s_lshl_b32 s7, s7, 2")
    a("s_lshr_b32 s8, s5, 3")
    a("s_add_u32 s7, s7, s8")
    a("s_lshl_b32 s9, s4, 5")
    a("s_add_u32 s9, s9, s5")
    a("s_lshl_b32 s10, s4, 2")
    a("s_add_u32 s10, s10, s5")
    a("s_add_u32 s10, s10, 256")
    a("s_waitcnt lgkmcnt(0)")
    srd(a, XN, 36, XN_OFF, XN_SZ)
    srd(a, W1, 28, 0, 1024 * 3584 * 2)
    srd(a, CB, 36, CB_OFF, CB_SZ)
    srd(a, DR, 22, 0, 1024 * 1024 * 2)
    srd(a, DI, 24, 0, 1024 * 1024 * 2)
    srd(a, HS, 36, H_OFF, H_SZ)
    srd(a, ZT, 36, ZT_OFF, ZT_SZ)
    a("s_cmp_ge_u32 s3, 4")
    a("s_cbranch_scc1 L_g1_loader")

    ACC = 128
    FR = [32, 76]
    vM0, vM1, vNa, vNb = 4, 5, 6, 7
    cM0, cM1, cNa, cNb = 8, 9, 10, 11
    vZ0, vZ1 = 12, 13
    cZ0, cZ1 = 14, 15
    vST = 16
    a("s_lshr_b32 s11, s3, 1")
    a("s_and_b32 s12, s3, 1")
    a("s_lshl_b32 s13, s11, 13")
    rowimg_frag_addr(a, vM0, vM1, 13, 3)
    a("s_lshl_b32 s13, s12, 13")
    a("s_add_u32 s13, s13, 16384")
    rowimg_frag_addr(a, vZ0, vZ1, 13, 3)
    a("v_lshrrev_b32 v17, 4, v3")
    a("v_bfe_u32 v18, v3, 2, 2")
    a("v_lshl_add_u32 v18, v17, 3, v18")
    a("v_mul_u32_u24 v18, 448, v18")
    a("v_and_b32 v19, 3, v3")
    a("v_lshl_add_u32 v18, v19, 3, v18")
    a("s_mul_i32 s13, s12, 224")
    a("s_add_u32 s13, s13, 16384")
    a("v_add_u32 v18, s13, v18")
    a("v_and_b32 v19, 1, v17")
    a("v_lshlrev_b32 v19, 5, v19")
    a("v_add_u32 %s, v18, v19" % v(vNa))
    a("v_sub_u32 %s, v18, v19" % v(vNb))
    a("s_cmp_eq_u32 s12, 0")
    a("s_cbranch_scc1 L_g1_noswap")
    a("v_swap_b32 %s, %s" % (v(vNa), v(vNb)))
    a.label("L_g1_noswap")
    for i in range(112):
        a("v_mov_b32 %s, 0" % v(ACC + i))
    a("s_mov_b32 s14, 0")
    a("s_mov_b32 s68, %s" % hx(f32(-1.4426950408889634)))
    a("s_mov_b32 s69, %s" % hx(f32(-1.4426950408889634)))

    def set_addr(lst):
        return ["v_add_u32 %s, s14, %s" % (v(c), v(b)) for c, b in lst]

    def next_slot():
        return ["s_add_u32 s14, s14, %d" % SLOT, "s_cmp_eq_u32 s14, %d" % (SLOT * NS), "s_cselect_b32 s14, 0, s14"]

    G1A = [(cM0, vM0), (cM1, vM1), (cNa, vNa), (cNb, vNb)]
    S1A = [(cM0, vM0), (cM1, vM1), (cZ0, vZ0), (cZ1, vZ1)]

    def g1_reads(fs, ks):
        r = []
        for nt in range(7):
            for h in range(2):
                r.append("ds_read_b64_tr_b16 %s, %s offset:%d" % (
                    v(FR[fs] + 16 + 4 * nt + 2 * h, 2), v(cNa if nt % 2 == 0 else cNb), ks * 14336 + h * 1792 + nt * 32))
            if nt < 4:
                r.append("ds_read_b128 %s, %s offset:%d" % (v(FR[fs] + 4 * nt, 4), v(cM1 if ks else cM0), nt * 2048))
        return r

    def g1_mfmas(fs):
        return [mfma(ACC + 4 * (nt * 4 + mt), FR[fs] + 16 + 4 * nt, FR[fs] + 4 * mt) for nt in range(7) for mt in range(4)]

    for x in set_addr(G1A):
        a(x)
    a("s_barrier")
    for x in g1_reads(0, 0):
        a(x)
    a("s_mov_b32 s15, 0")
    a("s_waitcnt lgkmcnt(0)")
    a.raw(".p2align 6")
    a.label("L_g1_loop")
    interleave(a, g1_mfmas(0), g1_reads(1, 1) + next_slot() + set_addr(G1A))
    a("s_waitcnt lgkmcnt(0)")
    a("s_barrier")
    interleave(a, g1_mfmas(1), g1_reads(0, 0) + ["s_add_u32 s15, s15, 1", "s_cmp_lt_u32 s15, 15"])
    a("s_waitcnt lgkmcnt(0)")
    a("s_cbranch_scc1 L_g1_loop")
    interleave(a, g1_mfmas(0), g1_reads(1, 1) + next_slot() + set_addr(S1A))
    a("s_waitcnt lgkmcnt(0)")
    a("s_barrier")
    interleave(a, g1_mfmas(1), [])
    a("s_lshl_b32 s13, s6, 7")
    a("s_lshl_b32 s70, s11, 6")
    a("s_add_u32 s13, s13, s70")
    a("v_and_b32 v17, 15, v3")
    a("v_add_u32 v17, s13, v17")
    a("v_mul_u32_u24 v17, 7168, v17")
    a("s_mul_i32 s13, s7, 448")
    a("s_mul_i32 s70, s12, 224")
    a("s_add_u32 s13, s13, s70")
    a("v_add_u32 v17, s13, v17")
    a("v_lshrrev_b32 v18, 4, v3")
    a("v_lshl_add_u32 v20, v18, 3, v17")
    a("v_and_b32 v19, 1, v18")
    a("v_lshl_add_u32 v17, v19, 5, v17")
    a("v_lshrrev_b32 v19, 1, v18")
    a("v_lshl_add_u32 v17, v19, 4, v17")
    TMP = 32
    PK = [56, 60, 64, 68, 72, 76, 80, 84]
    pki = 0
    for mt in range(4):
        a("s_mov_b32 s13, %d" % (mt * 16 * 7168))
        for pr in range(4):
            nts = [2 * pr, 2 * pr + 1] if pr < 3 else [6]
            regs = []
            for nt in nts:
                b = ACC + 4 * (nt * 4 + mt); regs += [b, b + 2]
            silu_pk(a, regs, [TMP + 2 * i for i in range(len(regs))], 68)
            P = PK[pki % len(PK)]; pki += 1
            for i, r_ in enumerate(regs):
                a("v_cvt_pk_bf16_f32 %s, %s, %s" % (v(P + i), v(r_), v(r_ + 1)))
            if pr < 3:
                a("s_nop 1")
                a("v_permlane16_swap_b32 %s, %s" % (v(P), v(P + 2)))
                a("v_permlane16_swap_b32 %s, %s" % (v(P + 1), v(P + 3)))
                a("buffer_store_dwordx4 %s, v17, %s, s13 offen offset:%d" % (v(P, 4), s(HS, 4), pr * 64))
            else:
                a("buffer_store_dwordx2 %s, v20, %s, s13 offen offset:192" % (v(P, 2), s(HS, 4)))

    def s1_reads(fs, ks):
        r = []
        for t in range(4):
            r.append("ds_read_b128 %s, %s offset:%d" % (v(FR[fs] + 4 * t, 4), v(cM1 if ks else cM0), t * 2048))
            r.append("ds_read_b128 %s, %s offset:%d" % (v(FR[fs] + 16 + 4 * t, 4), v(cZ1 if ks else cZ0), t * 2048))
        return r

    def s1_mfmas(fs, first):
        return [mfma(ACC + 4 * (mt * 4 + nt), FR[fs] + 4 * mt, FR[fs] + 16 + 4 * nt, "0" if first else None)
                for mt in range(4) for nt in range(4)]

    a("s_mov_b32 s71, s9")
    a.label("L_g1_s1tile")
    a("s_barrier")
    for x in s1_reads(0, 0):
        a(x)
    a("s_waitcnt lgkmcnt(0)")
    for k in range(4):
        interleave(a, s1_mfmas(0, k == 0), s1_reads(1, 1) + next_slot() + set_addr(S1A))
        a("s_waitcnt lgkmcnt(0)")
        a("s_barrier")
        interleave(a, s1_mfmas(1, False), s1_reads(0, 0) if k < 3 else [])
        if k < 3:
            a("s_waitcnt lgkmcnt(0)")
    a("s_lshr_b32 s72, s71, 5")
    a("s_lshl_b32 s72, s72, 19")
    a("s_bfe_u32 s73, s71, 0x20003")
    a("s_lshl_b32 s73, s73, 8")
    a("s_add_u32 s72, s72, s73")
    a("s_bfe_u32 s73, s71, 0x20001")
    a("s_lshl_b32 s73, s73, 16")
    a("s_add_u32 s72, s72, s73")
    a("s_lshl_b32 s73, s12, 15")
    a("s_add_u32 s72, s72, s73")
    a("s_and_b32 s73, s71, 1")
    a("s_lshl_b32 s73, s73, 7")
    a("s_add_u32 s72, s72, s73")
    a("s_lshl_b32 s73, s11, 6")
    a("s_add_u32 s72, s72, s73")
    a("v_and_b32 v17, 15, v3")
    a("v_lshlrev_b32 v17, 10, v17")
    a("v_lshl_add_u32 v17, v19, 4, v17")
    a("v_and_b32 v21, 1, v18")
    a("v_lshl_add_u32 v17, v21, 5, v17")
    a("v_add_u32 v17, s72, v17")
    a("s_nop 4")
    pki = 0
    for n in range(2):
        for uv in range(2):
            P = PK[pki]; pki += 1
            for m in range(2):
                rr = ACC + 4 * (m * 4 + n); ri = ACC + 4 * (m * 4 + n + 2)
                ir = ACC + 4 * ((m + 2) * 4 + n); ii = ACC + 4 * ((m + 2) * 4 + n + 2)
                for h in range(2):
                    if uv == 0:
                        a("v_pk_add_f32 %s, %s, %s" % (v(TMP + 2 * h, 2), v(rr + 2 * h, 2), v(ii + 2 * h, 2)))
                    else:
                        a("v_pk_add_f32 %s, %s, %s%s" % (v(TMP + 2 * h, 2), v(ir + 2 * h, 2), v(ri + 2 * h, 2), NEG1))
                for h in range(2):
                    a("v_cvt_pk_bf16_f32 %s, %s, %s" % (v(P + 2 * m + h), v(TMP + 2 * h), v(TMP + 2 * h + 1)))
            a("s_mov_b32 s13, %d" % (n * 16384 + uv * 262144))
            a("s_nop 0")
            a("v_permlane16_swap_b32 %s, %s" % (v(P), v(P + 2)))
            a("v_permlane16_swap_b32 %s, %s" % (v(P + 1), v(P + 3)))
            a("buffer_store_dwordx4 %s, v17, %s, s13 offen" % (v(P, 4), s(ZT, 4)))
    a("s_cmp_ge_u32 s71, 256")
    a("s_cbranch_scc1 L_g1_end")
    a("s_cmp_ge_u32 s5, 4")
    a("s_cbranch_scc1 L_g1_end")
    a("s_mov_b32 s71, s10")
    a("s_branch L_g1_s1tile")

    a.label("L_g1_loader")
    a("s_sub_u32 s11, s3, 4")
    VA, VB, VC, VD = 8, 12, 20, 24
    a("s_and_b32 s12, s11, 1")
    a("s_lshl_b32 s12, s12, 2")
    a("v_lshrrev_b32 v4, 4, v3")
    a("v_add_u32 v4, s12, v4")
    a("v_and_b32 v5, 7, v3")
    a("v_xor_b32 v4, v4, v5")
    a("v_lshlrev_b32 v4, 4, v4")
    a("v_lshrrev_b32 v5, 3, v3")
    a("s_lshl_b32 s12, s11, 3")
    a("v_add_u32 v5, s12, v5")
    a("s_lshl_b32 s12, s6, 18")
    a("v_lshl_add_u32 v6, v5, 11, v4")
    a("v_add_u32 v6, s12, v6")
    for i in range(4):
        a("v_add_u32 %s, %s, v6" % (v(VA + i), hx(i * 32 * 2048)))
    a("s_lshl_b32 s12, s11, 6")
    a("v_add_u32 v6, s12, v3")
    a("s_mul_i32 s13, s7, 448")
    for i in range(7):
        a("v_add_u32 v7, %d, v6" % (256 * i))
        a("v_mul_u32_u24 v28, 2341, v7")
        a("v_lshrrev_b32 v28, 16, v28")
        a("v_mul_u32_u24 v29, 28, v28")
        a("v_sub_u32 v29, v7, v29")
        a("v_bfe_u32 v30, v28, 3, 1")
        a("v_lshlrev_b32 v30, 1, v30")
        a("v_xor_b32 v29, v29, v30")
        a("v_mul_u32_u24 v28, 7168, v28")
        a("v_lshl_add_u32 v28, v29, 4, v28")
        a("v_add_u32 %s, s13, v28" % v(VB + i))

    def s1_voffsets(tau):
        a("s_lshr_b32 s72, %s, 3" % s(tau))
        a("s_lshl_b32 s72, s72, 17")
        a("s_and_b32 s73, %s, 1" % s(tau))
        a("s_lshl_b32 s73, s73, 15")
        a("s_add_u32 s72, s72, s73")
        a("v_lshl_add_u32 v6, v5, 9, v4")
        a("v_add_u32 v6, s72, v6")
        for i in range(4):
            a("v_add_u32 %s, %s, v6" % (v(VC + i), hx((i & 1) * 65536 + (i >> 1) * 32 * 512)))
        a("s_bfe_u32 s72, %s, 0x20001" % s(tau))
        a("s_lshl_b32 s72, s72, 19")
        a("s_bfe_u32 s73, %s, 0x20003" % s(tau))
        a("s_lshl_b32 s73, s73, 11")
        a("s_add_u32 s72, s72, s73")
        a("v_lshl_add_u32 v6, v5, 13, v4")
        a("v_add_u32 v6, s72, v6")
        for i in range(4):
            a("v_add_u32 %s, %s, v6" % (v(VD + i), hx((i >> 1) * 32 * 8192)))

    a("s_lshl_b32 s14, s11, 10")
    a("s_lshl_b32 s74, s11, 10")
    a("s_add_u32 s75, s74, %d" % (SLOT * NS))
    a("s_mov_b32 s12, 0")
    a("s_mov_b32 s13, 0")

    def adv_slot():
        a("s_add_u32 s14, s14, %d" % SLOT)
        a("s_cmp_eq_u32 s14, s75")
        a("s_cselect_b32 s14, s74, s14")

    def issue_g1():
        for i in range(4):
            a("s_add_u32 m0, s14, %d" % (i * 4096))
            a("s_nop 0")
            a("buffer_load_dwordx4 %s, %s, s12 offen lds" % (v(VA + i), s(XN, 4)))
        for i in range(7):
            a("s_add_u32 m0, s14, %d" % (16384 + i * 4096))
            a("s_nop 0")
            a("buffer_load_dwordx4 %s, %s, s13 offen lds" % (v(VB + i), s(W1, 4)))
        a("s_add_u32 s12, s12, 128")
        a("s_add_u32 s13, s13, %d" % (64 * 7168))
        adv_slot()

    def issue_s1(k):
        a("s_mov_b32 s12, %d" % (k * 128))
        for i in range(4):
            a("s_add_u32 m0, s14, %d" % (i * 4096))
            a("s_nop 0")
            a("buffer_load_dwordx4 %s, %s, s12 offen lds" % (v(VC + i), s(CB, 4)))
        for i in range(4):
            a("s_add_u32 m0, s14, %d" % (16384 + i * 4096))
            a("s_nop 0")
            a("buffer_load_dwordx4 %s, %s, s12 offen lds" % (v(VD + i), s(DI if i & 1 else DR, 4)))
        adv_slot()

    for _ in range(3):
        issue_g1()
    s1_voffsets(9)
    a("s_waitcnt vmcnt(22)")
    a("s_barrier")
    a("s_mov_b32 s15, 0")
    a.label("L_g1_lloop")
    a("s_waitcnt vmcnt(11)")
    a("s_barrier")
    issue_g1()
    a("s_add_u32 s15, s15, 1")
    a("s_cmp_lt_u32 s15, 13")
    a("s_cbranch_scc1 L_g1_lloop")

    def tail(ntiles):
        sizes = {"g14": 11, "g15": 11}
        outstanding = ["g14", "g15"]
        todo = [(t, k) for t in range(ntiles) for k in range(4)]
        bars = [("g14", True), ("g15", True), (None, True)]
        for t in range(ntiles):
            bars.append((("s", t, 0), False))
            for k in range(4):
                bars.append(((("s", t, k + 1) if k < 3 else None), True))
        for req, frees in bars:
            if req is not None:
                idx = outstanding.index(req)
                n = sum(sizes[x] for x in outstanding[idx + 1:])
                a("s_waitcnt vmcnt(%d)" % n)
                outstanding = outstanding[idx + 1:]
            a("s_barrier")
            if frees and todo:
                t, k = todo.pop(0)
                if t == 1 and k == 0:
                    s1_voffsets(10)
                issue_s1(k)
                sizes[("s", t, k)] = 8
                outstanding.append(("s", t, k))
        a("s_endpgm")

    a("s_cmp_lt_u32 s5, 4")
    a("s_cbranch_scc1 L_g1_ltail2")
    tail(1)
    a.label("L_g1_ltail2")
    tail(2)
    a.label("L_g1_end")
    a("s_endpgm")
    return kernel_desc(name, 240, 80)


def gen_gemm2(a):
    name = "fnet_gemm2_kernel"
    SLOT = 24576
    NS = 6
    NMAIN = 56
    HS, W2, CR, CI, ZT, XS, OUT = 40, 44, 48, 52, 56, 60, 64
    kernel_header(a, name)
    a("s_cmp_ge_u32 s2, 256")
    a("s_cbranch_scc1 L_g2_end")
    load_ptrs(a)
    a("v_lshrrev_b32 v1, 6, v0")
    a("v_and_b32 v3, 63, v0")
    a("s_and_b32 s4, s2, 7")
    a("s_lshr_b32 s5, s2, 3")
    a("v_readfirstlane_b32 s3, v1")
    a("s_and_b32 s6, s4, 3")
    a("s_lshl_b32 s6, s6, 2")
    a("s_and_b32 s7, s5, 3")
    a("s_add_u32 s6, s6, s7")
    a("s_lshr_b32 s7, s4, 2")
    a("s_lshl_b32 s7, s7, 3")
    a("s_lshr_b32 s8, s5, 2")
    a("s_add_u32 s7, s7, s8")
    a("s_waitcnt lgkmcnt(0)")
    srd(a, HS, 36, H_OFF, H_SZ)
    srd(a, W2, 30, 0, 3584 * 1024 * 2)
    srd(a, CR, 18, 0, 2048 * 2048 * 2)
    srd(a, CI, 20, 0, 2048 * 2048 * 2)
    srd(a, ZT, 36, ZT_OFF, ZT_SZ)
    srd(a, XS, 16, 0, 2048 * 1024 * 2)
    srd(a, OUT, 32, 0, 2048 * 1024 * 2)
    a("s_cmp_ge_u32 s3, 4")
    a("s_cbranch_scc1 L_g2_loader")

    ACC = 128; ACY = 160; XR = 192
    FR = [32, 80]
    vM0, vM1, vN0, vN1, vZ0, vZ1 = 4, 5, 6, 7, 8, 9
    cM0, cM1, cN0, cN1 = 10, 11, 12, 13
    a("s_lshr_b32 s11, s3, 1")
    a("s_and_b32 s12, s3, 1")
    a("v_and_b32 v17, 15, v3")
    a("v_lshlrev_b32 v17, 15, v17")
    a("s_lshl_b32 s13, s11, 21")
    a("s_lshl_b32 s70, s6, 11")
    a("s_add_u32 s13, s13, s70")
    a("s_lshl_b32 s70, s7, 7")
    a("s_add_u32 s13, s13, s70")
    a("s_lshl_b32 s70, s12, 6")
    a("s_add_u32 s13, s13, s70")
    a("v_add_u32 v17, s13, v17")
    a("v_lshrrev_b32 v18, 4, v3")
    a("v_lshl_add_u32 v19, v18, 3, v17")
    for mt in range(4):
        a("s_mov_b32 s13, %d" % (mt * 16 * 16 * 2048))
        for nt in range(2):
            a("buffer_load_dwordx2 %s, v19, %s, s13 offen offset:%d" % (v(XR + 4 * mt + 2 * nt, 2), s(XS, 4), nt * 32))
    a("v_and_b32 v19, 1, v18")
    a("v_lshl_add_u32 v17, v19, 5, v17")
    a("v_lshrrev_b32 v19, 1, v18")
    a("v_lshl_add_u32 v17, v19, 4, v17")
    a("s_lshl_b32 s13, s11, 13")
    rowimg_frag_addr(a, vM0, vM1, 13, 3)
    a("s_lshl_b32 s13, s12, 12")
    a("s_add_u32 s13, s13, 16384")
    rowimg_frag_addr(a, vZ0, vZ1, 13, 3)
    a("v_bfe_u32 v20, v3, 2, 2")
    a("v_lshl_add_u32 v20, v18, 3, v20")
    a("v_lshlrev_b32 v20, 7, v20")
    a("v_and_b32 v21, 3, v3")
    a("v_lshl_add_u32 v20, v21, 3, v20")
    a("v_bfe_u32 v21, v3, 3, 1")
    a("v_and_b32 v22, 1, v18")
    a("v_lshl_or_b32 v21, v22, 1, v21")
    a("s_lshl_b32 s13, s12, 1")
    a("v_xor_b32 v21, s13, v21")
    a("v_lshl_add_u32 v20, v21, 5, v20")
    a("v_add_u32 %s, 16384, v20" % v(vN0))
    a("v_xor_b32 %s, 32, %s" % (v(vN1), v(vN0)))
    for i in range(64):
        a("v_mov_b32 %s, 0" % v(ACC + i))
    a("s_mov_b32 s14, 0")
    a("s_mov_b32 s68, %s" % hx(f32(-1.4426950408889634)))
    a("s_mov_b32 s69, %s" % hx(f32(-1.4426950408889634)))

    def set_addr(main):
        lst = [(cM0, vM0), (cM1, vM1)] + ([(cN0, vN0), (cN1, vN1)] if main else [(cN0, vZ0), (cN1, vZ1)])
        return ["v_add_u32 %s, s14, %s" % (v(c), v(b)) for c, b in lst]

    def next_slot():
        return ["s_add_u32 s14, s14, %d" % SLOT, "s_cmp_eq_u32 s14, %d" % (SLOT * NS), "s_cselect_b32 s14, 0, s14"]

    def reads(fs, main):
        r = []
        for ks in range(2):
            for nt in range(2):
                d = FR[fs] + 32 + 8 * ks + 4 * nt
                if main:
                    for h in range(2):
                        r.append("ds_read_b64_tr_b16 %s, %s offset:%d" % (v(d + 2 * h, 2), v(cN1 if nt else cN0), ks * 4096 + h * 512))
                else:
                    r.append("ds_read_b128 %s, %s offset:%d" % (v(d, 4), v(cN1 if ks else cN0), nt * 2048))
            for mt in range(4):
                r.append("ds_read_b128 %s, %s offset:%d" % (v(FR[fs] + 16 * ks + 4 * mt, 4), v(cM1 if ks else cM0), mt * 2048))
        return r

    def mfmas(fs, acc):
        return [mfma(acc + 4 * (mt * 2 + nt), FR[fs] + 32 + 8 * ks + 4 * nt, FR[fs] + 16 * ks + 4 * mt)
                for ks in range(2) for mt in range(4) for nt in range(2)]

    def iteration(fs, acc, rd_main, nxt_main, extra=()):
        a("s_barrier")
        fill = reads(1 - fs, rd_main)
        post = next_slot() + set_addr(nxt_main) + list(extra)
        interleave(a, mfmas(fs, acc), fill + post, per=2)
        a("s_waitcnt lgkmcnt(0)")

    for x in set_addr(True):
        a(x)
    a("s_barrier")
    for x in reads(0, True) + next_slot() + set_addr(True):
        a(x)
    a("s_mov_b32 s15, 0")
    a("s_waitcnt lgkmcnt(0)")
    a.raw(".p2align 6")
    a.label("L_g2_loop")
    iteration(0, ACC, True, True, ["s_add_u32 s15, s15, 1"])
    iteration(1, ACC, True, True, ["s_cmp_lt_u32 s15, %d" % ((NMAIN - 2) // 2)])
    a("s_cbranch_scc1 L_g2_loop")
    iteration(0, ACC, True, False)
    iteration(1, ACC, False, False)
    iteration(0, ACY, False, False)
    iteration(1, ACY, False, False)
    iteration(0, ACY, False, False)
    interleave(a, mfmas(1, ACY), [])
    a("s_mov_b32 s22, 0xffff0000")
    a("s_waitcnt vmcnt(0)")
    a("s_nop 7")
    TMP = 32
    PK = [64, 68, 72, 76]

    def rnd(regs, t):
        for i, r_ in enumerate(regs):
            a("v_cvt_pk_bf16_f32 %s, %s, %s" % (v(t + i), v(r_), v(r_ + 1)))
        for i, r_ in enumerate(regs):
            a("v_lshlrev_b32 %s, 16, %s" % (v(r_), v(t + i)))
            a("v_and_b32 %s, s22, %s" % (v(r_ + 1), v(t + i)))

    for mt in range(4):
        o = [ACC + 8 * mt + 2 * i for i in range(4)]
        y = [ACY + 8 * mt + 2 * i for i in range(4)]
        rnd(o, 48)
        silu_pk(a, o, [TMP + 2 * i for i in range(4)], 68)
        rnd(o, 48)
        rnd(y, 52)
        for i in range(4):
            a("v_pk_mul_f32 %s, %s, %s" % (v(o[i], 2), v(o[i], 2), v(y[i], 2)))
        rnd(o, 48)
        for i in range(4):
            a("v_lshlrev_b32 %s, 16, %s" % (v(y[i]), v(XR + 4 * mt + i)))
            a("v_and_b32 %s, s22, %s" % (v(y[i] + 1), v(XR + 4 * mt + i)))
        for i in range(4):
            a("v_pk_add_f32 %s, %s, %s" % (v(o[i], 2), v(o[i], 2), v(y[i], 2)))
        P = PK[mt]
        for i in range(4):
            a("v_cvt_pk_bf16_f32 %s, %s, %s" % (v(P + i), v(o[i]), v(o[i] + 1)))
        a("s_mov_b32 s13, %d" % (mt * 16 * 16 * 2048))
        a("s_nop 0")
        a("v_permlane16_swap_b32 %s, %s" % (v(P), v(P + 2)))
        a("v_permlane16_swap_b32 %s, %s" % (v(P + 1), v(P + 3)))
        a("buffer_store_dwordx4 %s, v17, %s, s13 offen" % (v(P, 4), s(OUT, 4)))
    a("s_endpgm")

    a.label("L_g2_loader")
    a("s_sub_u32 s11, s3, 4")
    VA, VB, VC, VD = 8, 12, 16, 20
    a("s_and_b32 s12, s11, 1")
    a("s_lshl_b32 s12, s12, 2")
    a("v_lshrrev_b32 v4, 4, v3")
    a("v_add_u32 v4, s12, v4")
    a("v_and_b32 v5, 7, v3")
    a("v_xor_b32 v4, v4, v5")
    a("v_lshlrev_b32 v4, 4, v4")
    a("v_lshrrev_b32 v5, 3, v3")
    a("s_lshl_b32 s12, s11, 3")
    a("v_add_u32 v5, s12, v5")
    a("s_lshl_b32 s12, s6, 7")
    a("v_add_u32 v6, s12, v5")
    a("v_mul_u32_u24 v6, 7168, v6")
    a("v_add_u32 v6, v6, v4")
    for i in range(4):
        a("v_add_u32 %s, %s, v6" % (v(VA + i), hx(i * 32 * 7168)))
    a("v_bfe_u32 v6, v3, 4, 1")
    a("s_and_b32 s12, s11, 1")
    a("s_lshl_b32 s12, s12, 1")
    a("v_or_b32 v6, s12, v6")
    a("v_lshlrev_b32 v6, 1, v6")
    a("v_and_b32 v7, 7, v3")
    a("v_xor_b32 v6, v6, v7")
    a("v_lshlrev_b32 v6, 4, v6")
    a("v_lshl_add_u32 v6, v5, 11, v6")
    a("s_lshl_b32 s12, s7, 7")
    a("v_add_u32 %s, s12, v6" % v(VB))
    a("v_add_u32 %s, %s, %s" % (v(VB + 1), hx(32 * 2048), v(VB)))
    a("s_lshl_b32 s14, s11, 10")
    a("s_lshl_b32 s74, s11, 10")
    a("s_add_u32 s75, s74, %d" % (SLOT * NS))
    a("s_mov_b32 s12, 0")
    a("s_mov_b32 s13, 0")

    def adv_slot():
        a("s_add_u32 s14, s14, %d" % SLOT)
        a("s_cmp_eq_u32 s14, s75")
        a("s_cselect_b32 s14, s74, s14")

    def issue_main():
        for i in range(4):
            a("s_add_u32 m0, s14, %d" % (i * 4096))
            a("s_nop 0")
            a("buffer_load_dwordx4 %s, %s, s12 offen lds" % (v(VA + i), s(HS, 4)))
        for i in range(2):
            a("s_add_u32 m0, s14, %d" % (16384 + i * 4096))
            a("s_nop 0")
            a("buffer_load_dwordx4 %s, %s, s13 offen lds" % (v(VB + i), s(W2, 4)))
        a("s_add_u32 s12, s12, 128")
        a("s_add_u32 s13, s13, %d" % (64 * 2048))
        adv_slot()

    def issue_s2(k):
        a("s_mov_b32 s12, %d" % ((k & 1) * 128))
        a("s_mov_b32 s13, %d" % ((k & 1) * 128 + (k >> 1) * 262144))
        for i in range(4):
            a("s_add_u32 m0, s14, %d" % (i * 4096))
            a("s_nop 0")
            a("buffer_load_dwordx4 %s, %s, s12 offen lds" % (v(VC + i), s(CI if k >= 2 else CR, 4)))
        for i in range(2):
            a("s_add_u32 m0, s14, %d" % (16384 + i * 4096))
            a("s_nop 0")
            a("buffer_load_dwordx4 %s, %s, s13 offen lds" % (v(VD + i), s(ZT, 4)))
        adv_slot()

    for _ in range(NS):
        issue_main()
    a("s_cmp_gt_u32 s6, 8")
    a("s_cselect_b32 s70, -1, 0")
    a("s_sub_u32 s72, 16, s6")
    a("s_cmp_gt_u32 s6, 8")
    a("s_cselect_b32 s71, s72, s6")
    a("s_lshl_b32 s71, s71, 19")
    for i in range(4):
        a("v_add_u32 v6, %d, v5" % (32 * i))
        a("v_lshlrev_b32 v6, 4, v6")
        a("v_add_u32 v6, s6, v6")
        a("v_xor_b32 v6, s70, v6")
        a("v_subrev_u32 v6, s70, v6")
        a("v_and_b32 v6, 2047, v6")
        a("v_lshl_add_u32 %s, v6, 12, v4" % v(VC + i))
    a("s_lshl_b32 s72, s7, 6")
    for i in range(2):
        a("v_add_u32 v6, %d, v5" % (32 * i))
        a("v_add_u32 v6, s72, v6")
        a("v_xor_b32 v6, s70, v6")
        a("v_subrev_u32 v6, s70, v6")
        a("v_and_b32 v6, 1023, v6")
        a("v_lshl_add_u32 v6, v6, 8, v4")
        a("v_add_u32 %s, s71, v6" % v(VD + i))
    a("s_waitcnt vmcnt(%d)" % (6 * (NS - 1)))
    a("s_barrier")
    a("s_mov_b32 s15, 0")
    a.label("L_g2_lloop")
    a("s_waitcnt vmcnt(%d)" % (6 * (NS - 2)))
    a("s_barrier")
    issue_main()
    a("s_add_u32 s15, s15, 1")
    a("s_cmp_lt_u32 s15, %d" % (NMAIN - NS))
    a("s_cbranch_scc1 L_g2_lloop")
    issued = NMAIN - 1
    for k in range(NMAIN - NS, NMAIN + 3):
        a("s_waitcnt vmcnt(%d)" % (6 * (issued - (k + 1))))
        a("s_barrier")
        if issued < NMAIN + 3:
            issued += 1
            issue_s2(issued - NMAIN)
    a.label("L_g2_end")
    a("s_endpgm")
    return kernel_desc(name, 208, 80)


HEADER = """; Kernarg layout (88 bytes, ptrs only, base s[0:1]): 0 A_x, 8 dft_seq_re, 16 dft_seq_im, 24 dft_hid_re,
"""


def main():
    a = Asm()
    a.raw(HEADER.rstrip("\n"))
    a.raw("; @launch kernel=fnet_prep_kernel grid=(128,1,1) block=(1024,1,1) lds=65536")
    a.raw("; @launch kernel=fnet_gemm1_kernel grid=(256,1,1) block=(512,1,1) lds=135168")
    a.raw("; @launch kernel=fnet_gemm2_kernel grid=(256,1,1) block=(512,1,1) lds=147456")
    a.raw('.amdgcn_target "amdgcn-amd-amdhsa--gfx950"')
    a.raw(".text")
    descs = [gen_prep(a), gen_gemm1(a), gen_gemm2(a)]
    a.raw('.section .rodata,"a"')
    for d in descs:
        a.raw(d.rstrip("\n"))
    out = sys.argv[1] if len(sys.argv) > 1 else "cdna_kernels/%s.s" % NAME
    open(out, "w").write(a.text())


if __name__ == "__main__":
    main()
```

```python
import math, struct, sys

NAME = "recurrent_scan__spectral_fnet__dense_activation_silu__prompt"

CS_OFF = 0x0000000
STAT_OFF = 0x0040000
HF_OFF = 0x0050000
CB_OFF = 0x0400000
ZT_OFF = 0x0800000
HR_OFF = 0x0D00000
HL_OFF = 0x1900000
EX_OFF = 0x1C00000
STAMP_OFF = 0x4000000
WS_SZ = 0x10000000

STAMP = False
SC1 = " sc1"
SPIN_MAX = 200000
OPT = {}

G1SLOT = 45056
G2SLOT = 32768
STG = 143360
CSP = 135168
CSB = 161792
STB = 162816
S1SLOTS = [0, 32768, 65536, 98304]

sWAVE, sXCD, sLOC, sRB, sCB, sTAU, sCLS, sCB8, sKH = 3, 4, 5, 6, 7, 8, 9, 10, 11
sWM, sWN, sSLOT, sCNT = 12, 13, 14, 15
sL = 12
T0, T1, T2, T3, T4, T5, T6, T7 = 16, 17, 18, 19, 20, 21, 22, 23
sSP, sHALF, sHF = 26, 27, 28
WS, W1, DR, DI, W2, CR, CI, XS, OUT, DBG = 40, 44, 48, 52, 56, 60, 64, 68, 72, 76
sNL2E, sHI = 80, 82
C1, C2, C3 = 84, 86, 88
sKA, sKB, sWRAP, sSL0, sP3 = 90, 91, 92, 93, 94
NSGPR = 100


def f32(x):
    return struct.unpack("<I", struct.pack("<f", x))[0]


def hx(x):
    return "0x%x" % (x & 0xFFFFFFFF)


def v(i, n=1):
    return "v%d" % i if n == 1 else "v[%d:%d]" % (i, i + n - 1)


def s(i, n=1):
    return "s%d" % i if n == 1 else "s[%d:%d]" % (i, i + n - 1)


class Asm:
    def __init__(self):
        self.lines = []
        self.uid = 0

    def __call__(self, txt):
        self.lines.append("    " + txt)

    def label(self, l):
        self.lines.append(l + ":")

    def newlabel(self, p):
        self.uid += 1
        return "L_%s_%d" % (p, self.uid)

    def c(self, txt):
        self.lines.append("    ; " + txt)

    def raw(self, txt):
        self.lines.append(txt)

    def all(self, lst):
        for x in lst:
            self(x)

    def text(self):
        return "\n".join(self.lines) + "\n"


def srd(a, dst, ptr, off, size):
    if off:
        a("s_add_u32 %s, %s, %s" % (s(dst), s(ptr), hx(off)))
        a("s_addc_u32 %s, %s, 0" % (s(dst + 1), s(ptr + 1)))
    else:
        a("s_mov_b32 %s, %s" % (s(dst), s(ptr)))
        a("s_mov_b32 %s, %s" % (s(dst + 1), s(ptr + 1)))
    a("s_mov_b32 %s, %s" % (s(dst + 2), hx(size)))
    a("s_mov_b32 %s, 0x20000" % s(dst + 3))


def kernel_header(a, name):
    a.raw(".globl %s" % name)
    a.raw(".p2align 8")
    a.raw(".type %s,@function" % name)
    a.label(name)


def kernel_desc(name, vgpr, sgpr):
    acc = (vgpr + 3) // 4 * 4
    return "\n".join([
        ".p2align 6",
        ".amdhsa_kernel %s" % name,
        "  .amdhsa_next_free_vgpr %d" % vgpr,
        "  .amdhsa_next_free_sgpr %d" % sgpr,
        "  .amdhsa_accum_offset %d" % acc,
        "  .amdhsa_group_segment_fixed_size 0",
        "  .amdhsa_kernarg_size 88",
        "  .amdhsa_user_sgpr_count 2",
        "  .amdhsa_user_sgpr_kernarg_segment_ptr 1",
        "  .amdhsa_system_sgpr_workgroup_id_x 1",
        ".end_amdhsa_kernel",
    ]) + "\n"


NEG1 = " neg_lo:[0,1] neg_hi:[0,1]"


def mark(a, idx):
    if not STAMP:
        return
    lab = a.newlabel("nost")
    a("s_and_b32 s96, %s, 3" % s(sWAVE))
    a("s_cmp_lg_u32 s96, 0")
    a("s_cbranch_scc1 %s" % lab)
    a("s_memrealtime s[96:97]")
    a("s_memtime s[98:99]")
    a("s_waitcnt lgkmcnt(0)")
    a("v_mov_b32 v252, s96")
    a("v_mov_b32 v253, s98")
    a("s_lshl_b32 s96, s2, 8")
    a("s_lshl_b32 s97, %s, 5" % s(sWAVE))
    a("s_add_u32 s96, s96, s97")
    a("s_add_u32 s96, s96, %s" % hx(STAMP_OFF + idx * 8))
    a("v_mov_b32 v254, s96")
    a("buffer_store_dwordx2 v[252:253], v254, %s, 0 offen" % s(WS, 4))
    a.label(lab)


def interleave(a, main, fill, per=1, start=0):
    fi = 0
    for i, m in enumerate(main):
        a(m)
        if i >= start:
            for _ in range(per):
                if fi < len(fill):
                    a(fill[fi]); fi += 1
    while fi < len(fill):
        a(fill[fi]); fi += 1


def mfma(d, sa, sb, c=None):
    return "v_mfma_f32_16x16x32_bf16 %s, %s, %s, %s" % (v(d, 4), v(sa, 4), v(sb, 4), v(d, 4) if c is None else c)


def prologue(a, endlab):
    a("s_cmp_ge_u32 s2, 256")
    a("s_cbranch_scc1 %s" % endlab)
    a("s_load_dwordx16 s[16:31], s[0:1], 0")
    a("s_load_dwordx4 s[32:35], s[0:1], 64")
    a("s_load_dwordx2 s[36:37], s[0:1], 80")
    a("v_lshrrev_b32 v1, 6, v0")
    a("v_and_b32 v3, 63, v0")
    a("s_and_b32 %s, s2, 7" % s(sXCD))
    a("s_lshr_b32 %s, s2, 3" % s(sLOC))
    a("v_readfirstlane_b32 %s, v1" % s(sWAVE))
    a("s_and_b32 s6, s4, 1"); a("s_lshl_b32 s6, s6, 3"); a("s_and_b32 s7, s5, 7"); a("s_add_u32 s6, s6, s7")
    a("s_lshr_b32 s7, s4, 1"); a("s_lshl_b32 s7, s7, 2"); a("s_lshr_b32 s8, s5, 3"); a("s_add_u32 s7, s7, s8")
    a("s_lshl_b32 s8, s4, 5"); a("s_add_u32 s8, s8, s5")
    a("s_mov_b32 s9, s6")
    a("s_lshr_b32 s11, s7, 3")
    a("s_and_b32 s10, s7, 7")
    a("s_mov_b32 %s, %s" % (s(sNL2E), hx(f32(-1.4426950408889634))))
    a("s_mov_b32 %s, %s" % (s(sNL2E + 1), hx(f32(-1.4426950408889634))))
    a("s_mov_b32 %s, 0xffff0000" % s(sHI))
    a("s_lshr_b32 s38, %s, 1" % s(sTAU))
    a("s_and_b32 s39, %s, 1" % s(sTAU))
    a("v_lshlrev_b32 v120, 18, v1")
    a("v_and_b32 v121, 31, v3")
    a("v_lshl_add_u32 v120, v121, 3, v120")
    a("v_lshrrev_b32 v121, 5, v3")
    a("v_lshl_add_u32 v120, v121, 9, v120")
    a("s_lshl_b32 s95, s38, 11")
    a("v_add_u32 v120, s95, v120")
    a("s_lshl_b32 s95, s39, 8")
    a("v_add_u32 v120, s95, v120")
    a("v_xor_b32 v121, 0x100, v120")
    a("s_waitcnt lgkmcnt(0)")
    srd(a, XS, 16, 0, 2048 * 1024 * 2)
    a("s_mov_b32 s95, 0x200000")
    for ri, B in enumerate(ROWB):
        for hh in range(2):
            for jj in range(2):
                a("buffer_load_dwordx2 %s, %s, %s, %s offen offset:%d" % (
                    v(B + 4 * hh + 2 * jj, 2), "v121" if hh else "v120", s(XS, 4), "s95" if ri else "0", 1024 * jj))
    srd(a, WS, 36, 0, WS_SZ)
    srd(a, W1, 28, 0, 1024 * 3584 * 2)
    srd(a, DR, 22, 0, 1024 * 1024 * 2)
    srd(a, DI, 24, 0, 1024 * 1024 * 2)
    srd(a, W2, 30, 0, 3584 * 1024 * 2)
    srd(a, CR, 18, 0, 2048 * 2048 * 2)
    srd(a, CI, 20, 0, 2048 * 2048 * 2)
    srd(a, OUT, 32, 0, 2048 * 1024 * 2)
    srd(a, DBG, 34, 0, 256)
    a("s_mov_b32 %s, s38" % s(sSP))
    a("s_mov_b32 %s, s39" % s(sHALF))
    a("s_lshl_b32 %s, %s, 4" % (s(sHF), s(sRB)))
    a("s_add_u32 %s, %s, %s" % (s(sHF), s(sHF), s(sCB)))
    a("s_lshr_b32 s95, %s, 3" % s(sHF))
    a("s_lshl_b32 s95, s95, 7")
    a("s_lshl_b32 %s, %s, 2" % (s(sHF), s(sCB8)))
    a("s_add_u32 %s, %s, s95" % (s(sHF), s(sHF)))
    a("s_add_u32 %s, %s, %s" % (s(sHF), s(sHF), hx(HF_OFF)))


ROWB = [32, 76]


def set_flag(a, val, only_wave, tv):
    lab = a.newlabel("nf")
    a("s_cmp_lg_u32 %s, %d" % (s(sWAVE), only_wave))
    a("s_cbranch_scc1 %s" % lab)
    a("v_mov_b32 %s, %d" % (v(tv), val))
    a("v_mov_b32 %s, s2" % v(tv + 1))
    a("s_mov_b64 exec, 1")
    a("buffer_store_byte %s, %s, %s, 0 offen sc1" % (v(tv), v(tv + 1), s(DBG, 4)))
    a("s_mov_b64 exec, -1")
    a.label(lab)


def flag_lines(a, val):
    lab = a.newlabel("nf")
    a("s_cmp_lg_u32 %s, 0" % s(sWAVE))
    a("s_cbranch_scc1 %s" % lab)
    a("v_mov_b32 v29, %d" % val)
    a("v_mov_b32 v30, s2")
    a("s_mov_b64 exec, 1")
    a("buffer_store_byte v29, v30, %s, 0 offen sc1" % s(DBG, 4))
    a("s_mov_b64 exec, -1")
    a("s_nop 3")
    a.label(lab)


def hflag_lines(a, val):
    lab = a.newlabel("nf")
    a("s_cmp_lg_u32 %s, 0" % s(sWAVE))
    a("s_cbranch_scc1 %s" % lab)
    a("v_mov_b32 v29, %d" % val)
    a("v_mov_b32 v30, %s" % s(sHF))
    a("s_mov_b64 exec, 1")
    a("buffer_store_dword v29, v30, %s, 0 offen sc1" % s(WS, 4))
    a("s_mov_b64 exec, -1")
    a("s_nop 3")
    a.label(lab)


def poll_issue(a, vdst, vaddr, srd_=DBG):
    a("buffer_load_dword %s, %s, %s, 0 offen sc1" % (v(vdst), v(vaddr), s(srd_, 4)))


def poll_check(a, vdst, vaddr, vneed, issued, srd_=DBG):
    top = a.newlabel("poll"); done = a.newlabel("pdone"); chk = a.newlabel("pchk")
    a("s_mov_b32 %s, 0" % s(T7))
    if issued:
        a("s_branch %s" % chk)
    a.label(top)
    poll_issue(a, vdst, vaddr, srd_)
    a("s_waitcnt vmcnt(0)")
    a.label(chk)
    a("v_and_b32 %s, %s, %s" % (v(vdst), v(vdst), v(vneed)))
    a("v_cmp_ne_u32 vcc, %s, %s" % (v(vdst), v(vneed)))
    a("s_add_u32 %s, %s, 1" % (s(T7), s(T7)))
    a("s_nop 3")
    a("s_cbranch_vccz %s" % done)
    a("s_sleep %s" % OPT.get("sleep", "4"))
    a("s_cmp_lt_u32 %s, %d" % (s(T7), SPIN_MAX))
    a("s_cbranch_scc1 %s" % top)
    a.label(done)


def prep_ln(a):
    a("v_lshlrev_b32 v122, 8, v1")
    a("v_and_b32 v123, 31, v3")
    a("v_lshl_add_u32 v122, v123, 3, v122")
    a("v_lshrrev_b32 v123, 5, v3")
    a("v_lshl_add_u32 v122, v123, 12, v122")
    a("v_add_u32 v122, %d, v122" % STG)
    a("s_and_b32 %s, %s, 15" % (s(T0), s(sSP)))
    a("s_lshl_b32 %s, %s, 7" % (s(T0), s(T0)))
    a("s_lshr_b32 %s, %s, 4" % (s(T1), s(sSP)))
    a("s_add_u32 %s, %s, %s" % (s(T0), s(T0), s(T1)))
    a("s_lshl_b32 %s, %s, 3" % (s(T1), s(sWAVE)))
    a("s_add_u32 %s, %s, %s" % (s(T0), s(T0), s(T1)))
    a("s_lshl_b32 %s, %s, 3" % (s(T0), s(T0)))
    a("s_add_u32 %s, %s, %s" % (s(T0), s(T0), hx(STAT_OFF)))
    a("v_mov_b32 v123, %s" % s(T0))
    streams = []
    for ri, B in enumerate(ROWB):
        RAW, X, T, M, R, D = B, B + 8, B + 24, B + 32, B + 34, B + 36
        S1, S2 = (T5, T6) if ri == 0 else (24, 25)
        L = []
        for p in range(8):
            L.append("v_lshlrev_b32 %s, 16, %s" % (v(X + 2 * p), v(RAW + p)))
            L.append("v_and_b32 %s, %s, %s" % (v(X + 2 * p + 1), s(sHI), v(RAW + p)))
        pk = lambda d, x, y, m="": L.append("v_pk_add_f32 %s, %s, %s%s" % (v(d, 2), v(x, 2), v(y, 2), m))

        def wsum(r, sd):
            for m in ("quad_perm:[1,0,3,2] row_mask:0xf", "quad_perm:[2,3,0,1] row_mask:0xf",
                      "row_half_mirror row_mask:0xf", "row_mirror row_mask:0xf",
                      "row_bcast:15 row_mask:0xa", "row_bcast:31 row_mask:0xc"):
                L.append("s_nop 0")
                L.append("v_add_f32_dpp %s, %s, %s %s bank_mask:0xf" % (v(r), v(r), v(r), m))
            L.append("s_nop 0")
            L.append("v_readlane_b32 %s, %s, 63" % (s(sd), v(r)))
            L.append("s_nop 0")
        pk(T, X, X + 2); pk(T + 2, X + 4, X + 6); pk(T + 4, X + 8, X + 10); pk(T + 6, X + 12, X + 14)
        pk(T, T, T + 2); pk(T + 4, T + 4, T + 6); pk(T, T, T + 4)
        L.append("v_add_f32 %s, %s, %s" % (v(T), v(T), v(T + 1)))
        wsum(T, S1)
        L.append("v_mov_b32 %s, %s" % (v(M), hx(f32(1.0 / 1024))))
        L.append("v_mul_f32 %s, %s, %s" % (v(M), s(S1), v(M)))
        for g4 in range(2):
            for p in range(4):
                pk(D + 2 * p, X + 8 * g4 + 2 * p, M, " op_sel_hi:[1,0]" + NEG1)
            for p in range(4):
                t = T + 2 * (p & 1)
                if g4 == 0 and p < 2:
                    L.append("v_pk_mul_f32 %s, %s, %s" % (v(t, 2), v(D + 2 * p, 2), v(D + 2 * p, 2)))
                else:
                    L.append("v_pk_fma_f32 %s, %s, %s, %s" % (v(t, 2), v(D + 2 * p, 2), v(D + 2 * p, 2), v(t, 2)))
        pk(T, T, T + 2)
        L.append("v_add_f32 %s, %s, %s" % (v(T), v(T), v(T + 1)))
        wsum(T, S2)
        L.append("v_mov_b32 %s, %s" % (v(R), hx(f32(1.0 / 1024))))
        L.append("v_mul_f32 %s, %s, %s" % (v(R), s(S2), v(R)))
        L.append("v_cvt_pk_bf16_f32 %s, %s, %s" % (v(R), v(R), v(R)))
        L.append("v_lshlrev_b32 %s, 16, %s" % (v(R), v(R)))
        L.append("v_add_f32 %s, %s, %s" % (v(R), hx(f32(1e-5)), v(R)))
        L.append("v_cvt_pk_bf16_f32 %s, %s, %s" % (v(R), v(R), v(R)))
        L.append("v_lshlrev_b32 %s, 16, %s" % (v(R), v(R)))
        L.append("v_sqrt_f32 %s, %s" % (v(R), v(R)))
        L.append("v_cvt_pk_bf16_f32 %s, %s, %s" % (v(M), v(M), v(M)))
        L.append("v_cvt_pk_bf16_f32 %s, %s, %s" % (v(R), v(R), v(R)))
        L.append("v_lshlrev_b32 %s, 16, %s" % (v(M), v(M)))
        L.append("v_lshlrev_b32 %s, 16, %s" % (v(R), v(R)))
        L.append("v_rcp_f32 %s, %s" % (v(R), v(R)))
        for p in range(4):
            pk(D + 2 * p, X + 2 * p, M, " op_sel_hi:[1,0]" + NEG1)
        L.append("v_mov_b32 %s, %s" % (v(M + 1), v(R)))
        for p in range(4):
            L.append("v_cvt_pk_bf16_f32 %s, %s, %s" % (v(T + p), v(D + 2 * p), v(D + 2 * p + 1)))
        for p in range(4):
            L.append("v_lshlrev_b32 %s, 16, %s" % (v(D + 2 * p), v(T + p)))
            L.append("v_and_b32 %s, %s, %s" % (v(D + 2 * p + 1), s(sHI), v(T + p)))
        for p in range(4):
            L.append("v_pk_mul_f32 %s, %s, %s op_sel_hi:[1,0]" % (v(D + 2 * p, 2), v(D + 2 * p, 2), v(R, 2)))
        for p in range(4):
            L.append("v_cvt_pk_bf16_f32 %s, %s, %s" % (v(T + p), v(D + 2 * p), v(D + 2 * p + 1)))
        for p in range(4):
            L.append("v_lshlrev_b32 %s, 16, %s" % (v(X + 2 * p), v(T + p)))
            L.append("v_and_b32 %s, %s, %s" % (v(X + 2 * p + 1), s(sHI), v(T + p)))
        pk(D, X, X + 4); pk(D + 2, X + 2, X + 6)
        pk(D + 4, X, X + 4, NEG1); pk(D + 6, X + 2, X + 6, NEG1)
        for p in range(4):
            L.append("v_cvt_pk_f16_f32 %s, %s, %s" % (v(T + p), v(D + 2 * p), v(D + 2 * p + 1)))
        for wh in range(2):
            L.append("ds_write_b64 v122, %s offset:%d" % (v(T + 2 * wh, 2), wh * 8192 + ri * 2048))
        streams.append(L)
    for x, y in zip(*streams):
        a(x); a(y)
    lab = a.newlabel("nostat")
    a("s_cmp_lg_u32 %s, 0" % s(sHALF))
    a("s_cbranch_scc1 %s" % lab)
    a("s_mov_b64 exec, 1")
    for ri, B in enumerate(ROWB):
        a("buffer_store_dwordx2 %s, v123, %s, 0 offen offset:%d%s" % (v(B + 32, 2), s(WS, 4), ri * 512, SC1))
    a("s_mov_b64 exec, -1")
    a.label(lab)


def prep_dft(a):
    a("s_lshr_b32 %s, %s, 1" % (s(T0), s(sWAVE)))
    a("s_lshl_b32 %s, %s, 13" % (s(T1), s(T0)))
    a("s_add_u32 %s, %s, %d" % (s(T1), s(T1), STG))
    a("v_lshlrev_b32 v122, 2, v3")
    a("v_add_u32 v122, %s, v122" % s(T1))
    IN = [32, 48]
    for ab in range(2):
        for j in range(8):
            a("ds_read2st64_b32 %s, v122 offset0:%d offset1:%d" % (v(IN[ab] + 2 * j, 2), ab * 16 + j, ab * 16 + j + 8))
    a("s_lshl_b32 %s, %s, 9" % (s(T1), s(sSP)))
    a("s_lshl_b32 %s, %s, 8" % (s(T2), s(sHALF)))
    a("s_add_u32 %s, %s, %s" % (s(T1), s(T1), s(T2)))
    a("s_lshl_b32 %s, %s, 17" % (s(T2), s(T0)))
    a("s_add_u32 %s, %s, %s" % (s(T1), s(T1), s(T2)))
    a("s_add_u32 %s, %s, %s" % (s(T1), s(T1), hx(CB_OFF)))
    a("v_lshlrev_b32 v123, 2, v3")
    a("v_add_u32 v123, %s, v123" % s(T1))
    for r_, val in ((C1, math.cos(math.pi / 8)), (C2, math.cos(math.pi / 4)), (C3, math.cos(3 * math.pi / 8))):
        a("s_mov_b32 %s, %s" % (s(r_), hx(f32(val))))
        a("s_mov_b32 %s, %s" % (s(r_ + 1), hx(f32(val))))
    odd = a.newlabel("dft_odd"); done = a.newlabel("dft_done")
    a("s_bitcmp1_b32 %s, 0" % s(sWAVE))
    a("s_cbranch_scc1 %s" % odd)
    for parity in range(2):
        if parity:
            a.label(odd)
        free = list(range(64, 120, 2))
        alloc = lambda: free.pop(0)

        def rel(*rs):
            free.extend(rs)

        def add(x, y):
            d = alloc(); a("v_pk_add_f32 %s, %s, %s" % (v(d, 2), v(x, 2), v(y, 2))); return d

        def sub(x, y):
            d = alloc(); a("v_pk_add_f32 %s, %s, %s%s" % (v(d, 2), v(x, 2), v(y, 2), NEG1)); return d

        def mul(x, c):
            d = alloc(); a("v_pk_mul_f32 %s, %s, %s" % (v(d, 2), v(x, 2), s(c, 2))); return d

        def fma(x, c, y, nx=False, ny=False):
            d = alloc()
            mod = " neg_lo:[%d,0,%d] neg_hi:[%d,0,%d]" % (nx, ny, nx, ny) if (nx or ny) else ""
            a("v_pk_fma_f32 %s, %s, %s, %s%s" % (v(d, 2), v(x, 2), s(c, 2), v(y, 2), mod)); return d

        def mix(r, neg):
            d = alloc()
            for h in range(2):
                a("v_fma_mix_f32 %s, %s, 1.0, %s%s op_sel:[%d,0,%d] op_sel_hi:[1,0,1]" % (v(d + h), v(r), "-" if neg else "", v(r + 1), h, h))
            rel(r)
            return d

        def dft(base):
            p = {}; q = {}
            if parity == 0:
                u = [mix(base + 2 * j, False) for j in range(8)]
                uu = []; uv = []
                for j in range(4):
                    uu.append(add(u[j], u[j + 4])); uv.append(sub(u[j], u[j + 4])); rel(u[j], u[j + 4])
                e0 = add(uu[0], uu[2]); e1 = add(uu[1], uu[3])
                p[4] = sub(uu[0], uu[2]); q[4] = sub(uu[1], uu[3]); rel(*uu)
                p[0] = add(e0, e1); p[8] = sub(e0, e1); rel(e0, e1)
                dm = sub(uv[1], uv[3]); dp = add(uv[1], uv[3])
                p[2] = fma(dm, C2, uv[0]); p[6] = fma(dm, C2, uv[0], nx=True)
                q[2] = fma(dp, C2, uv[2]); q[6] = fma(dp, C2, uv[2], ny=True)
                rel(dm, dp, *uv)
            else:
                w = [mix(base + 2 * j, True) for j in range(8)]
                aa = {}; bb = {}
                for j in (1, 2, 3):
                    aa[j] = sub(w[j], w[8 - j]); bb[j] = add(w[j], w[8 - j]); rel(w[j], w[8 - j])
                Ap = fma(aa[2], C2, w[0]); Am = fma(aa[2], C2, w[0], nx=True); rel(aa[2], w[0])
                t = mul(aa[1], C1); G1 = fma(aa[3], C3, t); rel(t)
                t = mul(aa[1], C3); G3 = fma(aa[3], C1, t, nx=True); rel(t, aa[1], aa[3])
                p[1] = add(Ap, G1); p[7] = sub(Ap, G1); p[3] = add(Am, G3); p[5] = sub(Am, G3); rel(Ap, Am, G1, G3)
                Bp = fma(bb[2], C2, w[4]); B3 = fma(bb[2], C2, w[4], ny=True); rel(bb[2], w[4])
                t = mul(bb[1], C3); H1 = fma(bb[3], C1, t); rel(t)
                t = mul(bb[1], C1); H3 = fma(bb[3], C3, t, nx=True); rel(t, bb[1], bb[3])
                q[1] = add(H1, Bp); q[7] = sub(H1, Bp); q[3] = add(H3, B3); q[5] = sub(H3, B3); rel(Bp, B3, H1, H3)
            return p, q

        a("s_waitcnt lgkmcnt(0)")
        pa, qa = dft(IN[0])
        pb, qb = dft(IN[1])
        tmpd = []
        for _ in range(4):
            r_ = alloc(); tmpd += [r_, r_ + 1]
        t2 = [alloc(), alloc()]
        cnt = [0]

        def st(reg, arr):
            d = tmpd[cnt[0] % len(tmpd)]; cnt[0] += 1
            a("v_cvt_pk_bf16_f32 %s, %s, %s" % (v(d), v(reg), v(reg + 1)))
            a("s_mov_b32 %s, %s" % (s(T1), hx(arr * 65536)))
            a("buffer_store_dword %s, v123, %s, %s offen%s" % (v(d), s(WS, 4), s(T1), SC1))

        rs = [2, 4, 6] if parity == 0 else [1, 3, 5, 7]
        p1 = a.newlabel("dft_p1")
        a("s_cmp_ge_u32 %s, 2" % s(sWAVE))
        a("s_cbranch_scc1 %s" % p1)
        def comb(x, y, arr1, arr2):
            a("v_pk_add_f32 %s, %s, %s" % (v(t2[0], 2), v(x, 2), v(y, 2)))
            a("v_pk_add_f32 %s, %s, %s%s" % (v(t2[1], 2), v(x, 2), v(y, 2), NEG1))
            st(t2[0], arr1); st(t2[1], arr2)
        if parity == 0:
            comb(pa[0], pb[0], 0, 4); comb(pa[8], pb[8], 1, 5)
        for r_ in rs:
            comb(pa[r_], pb[r_], r_ * 8, r_ * 8 + 4); comb(qa[r_], qb[r_], r_ * 8 + 1, r_ * 8 + 5)
        a("s_branch %s" % done)
        a.label(p1)
        if parity == 0:
            st(pa[0], 0); st(pb[0], 1); st(pa[8], 4); st(pb[8], 5)
        for r_ in rs:
            a("v_pk_add_f32 %s, %s, %s%s" % (v(t2[0], 2), v(pa[r_], 2), v(qb[r_], 2), NEG1))
            a("v_pk_add_f32 %s, %s, %s" % (v(t2[1], 2), v(qa[r_], 2), v(pb[r_], 2)))
            st(t2[0], r_ * 8); st(t2[1], r_ * 8 + 1)
            a("v_pk_add_f32 %s, %s, %s" % (v(t2[0], 2), v(pa[r_], 2), v(qb[r_], 2)))
            a("v_pk_add_f32 %s, %s, %s%s" % (v(t2[1], 2), v(qa[r_], 2), v(pb[r_], 2), NEG1))
            st(t2[0], r_ * 8 + 4); st(t2[1], r_ * 8 + 5)
        if parity == 0:
            a("s_branch %s" % done)
    a.label(done)


def rowimg_frag_addr(a, dst0, dst1, rowbase_sgpr):
    a("v_and_b32 %s, 15, v3" % v(dst0))
    a("v_lshlrev_b32 %s, 7, %s" % (v(dst0), v(dst0)))
    a("v_lshrrev_b32 %s, 4, v3" % v(dst1))
    a("v_bfe_u32 v2, v3, 1, 3")
    a("v_xor_b32 %s, %s, v2" % (v(dst1), v(dst1)))
    a("v_lshl_add_u32 %s, %s, 4, %s" % (v(dst0), v(dst1), v(dst0)))
    a("v_add_u32 %s, %s, %s" % (v(dst0), s(rowbase_sgpr), v(dst0)))
    a("v_xor_b32 %s, 64, %s" % (v(dst1), v(dst0)))


def silu_tail(a, regs, tmp):
    for t in tmp:
        a("v_exp_f32 %s, %s" % (v(t), v(t)))
        a("v_exp_f32 %s, %s" % (v(t + 1), v(t + 1)))
    for t in tmp:
        a("v_pk_add_f32 %s, %s, 1.0 op_sel_hi:[1,0]" % (v(t, 2), v(t, 2)))
    for t in tmp:
        a("v_rcp_f32 %s, %s" % (v(t), v(t)))
        a("v_rcp_f32 %s, %s" % (v(t + 1), v(t + 1)))
    for r_, t in zip(regs, tmp):
        a("v_pk_mul_f32 %s, %s, %s" % (v(r_, 2), v(r_, 2), v(t, 2)))


def silu_pk(a, regs, tmp):
    for r_, t in zip(regs, tmp):
        a("v_pk_mul_f32 %s, %s, %s" % (v(t, 2), v(r_, 2), s(sNL2E, 2)))
    silu_tail(a, regs, tmp)


ACC1 = 128
vM0, vM1, vNa, vNb, vNc = 4, 5, 6, 7, 8
cM0, cM1, cNa, cNb, cNc = 9, 10, 11, 12, 13
vZ0, vZ1 = 14, 15


def compute_setup(a):
    a("s_lshr_b32 %s, %s, 1" % (s(sWM), s(sWAVE)))
    a("s_and_b32 %s, %s, 1" % (s(sWN), s(sWAVE)))
    a("s_lshl_b32 %s, s2, 15" % s(T0))
    a("s_lshl_b32 %s, %s, 13" % (s(T1), s(sWAVE)))
    a("s_add_u32 %s, %s, %s" % (s(T0), s(T0), s(T1)))
    a("s_add_u32 %s, %s, %s" % (s(T0), s(T0), hx(EX_OFF)))
    a("v_lshlrev_b32 v24, 4, v3")
    a("v_add_u32 v24, %s, v24" % s(T0))
    a("v_add_u32 v25, 4096, v24")
    for i in range(4):
        a("v_mov_b32 %s, -1" % v(240 + i))
    a("s_lshl_b32 %s, %s, 13" % (s(T0), s(sWM)))
    rowimg_frag_addr(a, vM0, vM1, T0)
    a("s_lshl_b32 %s, %s, 13" % (s(T0), s(sWN)))
    a("s_add_u32 %s, %s, 16384" % (s(T0), s(T0)))
    rowimg_frag_addr(a, vZ0, vZ1, T0)
    a("v_lshrrev_b32 v18, 4, v3")
    a("v_bfe_u32 v17, v3, 2, 2")
    a("v_lshl_add_u32 v17, v18, 3, v17")
    a("v_mul_u32_u24 v17, 448, v17")
    a("v_and_b32 v19, 3, v3")
    a("v_lshl_add_u32 v17, v19, 3, v17")
    a("v_and_b32 v19, 1, v18")
    a("v_lshlrev_b32 v19, 5, v19")
    a("s_lshl_b32 %s, %s, 6" % (s(T0), s(sWN)))
    a("s_add_u32 %s, %s, 16384" % (s(T0), s(T0)))
    a("v_add_u32 v20, %s, v17" % s(T0))
    a("v_add_u32 %s, v20, v19" % v(vNa))
    a("v_sub_u32 %s, v20, v19" % v(vNb))
    a("s_lshl_b32 %s, %s, 5" % (s(T0), s(sWN)))
    a("v_xor_b32 v20, %s, v19" % s(T0))
    a("v_add_u32 v20, v20, v17")
    a("v_add_u32 %s, %d, v20" % (v(vNc), 16384 + 384))
    a("v_and_b32 v21, 1, v18")
    a("v_lshlrev_b32 v21, 5, v21")
    a("v_lshrrev_b32 v19, 1, v18")
    a("v_lshl_add_u32 v21, v19, 4, v21")
    a("s_lshl_b32 %s, %s, 4" % (s(T0), s(sRB)))
    a("s_add_u32 %s, %s, %s" % (s(T0), s(T0), s(sCB)))
    a("s_mul_i32 %s, %s, 49152" % (s(T1), s(T0)))
    a("s_lshl_b32 %s, %s, 13" % (s(T2), s(sWN)))
    a("s_add_u32 %s, %s, %s" % (s(T1), s(T1), s(T2)))
    a("s_lshl_b32 %s, %s, 12" % (s(T2), s(sWM)))
    a("s_add_u32 %s, %s, %s" % (s(T1), s(T1), s(T2)))
    a("s_add_u32 %s, %s, %s" % (s(T1), s(T1), hx(HR_OFF)))
    a("v_and_b32 v22, 15, v3")
    a("v_lshl_add_u32 v17, v22, 6, v21")
    a("v_add_u32 v17, %s, v17" % s(T1))
    a("s_lshl_b32 %s, %s, 13" % (s(T1), s(T0)))
    a("s_lshl_b32 %s, %s, 12" % (s(T2), s(sWN)))
    a("s_add_u32 %s, %s, %s" % (s(T1), s(T1), s(T2)))
    a("s_lshl_b32 %s, %s, 11" % (s(T2), s(sWM)))
    a("s_add_u32 %s, %s, %s" % (s(T1), s(T1), s(T2)))
    a("s_add_u32 %s, %s, %s" % (s(T1), s(T1), hx(HL_OFF)))
    a("v_and_b32 v20, 1, v18")
    a("v_lshl_add_u32 v20, v20, 4, v22")
    a("v_lshlrev_b32 v20, 5, v20")
    a("v_lshl_add_u32 v20, v19, 4, v20")
    a("v_add_u32 v20, %s, v20" % s(T1))
    a("s_lshl_b32 %s, %s, 7" % (s(T1), s(sWN)))
    a("s_add_u32 %s, %s, %d" % (s(T1), s(T1), CSB))
    a("v_lshlrev_b32 v26, 4, v18")
    a("v_add_u32 v26, %s, v26" % s(T1))
    a("s_lshl_b32 %s, %s, 6" % (s(T1), s(sWN)))
    a("s_add_u32 %s, %s, %d" % (s(T1), s(T1), CSB + 768))
    a("v_lshlrev_b32 v27, 4, v18")
    a("v_add_u32 v27, %s, v27" % s(T1))
    a("s_lshl_b32 %s, %s, 9" % (s(T1), s(sWM)))
    a("s_add_u32 %s, %s, %d" % (s(T1), s(T1), STB))
    a("v_lshlrev_b32 v28, 3, v22")
    a("v_add_u32 v28, %s, v28" % s(T1))
    for i in range(112):
        a("v_mov_b32 %s, 0" % v(ACC1 + i))
    a("s_mov_b32 %s, 0" % s(sSLOT))


def compute_g1_s1(a):
    ACC = ACC1
    FR = [32, 76]
    cZ0, cZ1 = cNa, cNb

    def set_addr(lst):
        return ["v_add_u32 %s, %s, %s" % (v(c), s(sSLOT), v(b)) for c, b in lst]

    def next_slot():
        return ["s_add_u32 s14, s14, %d" % G1SLOT, "s_cmp_eq_u32 s14, %d" % (G1SLOT * 3), "s_cselect_b32 s14, 0, s14"]

    G1A = [(cM0, vM0), (cM1, vM1), (cNa, vNa), (cNb, vNb), (cNc, vNc)]

    def s1_addr(k):
        return ["v_add_u32 %s, %s, %s" % (v(c), hx(S1SLOTS[k]), v(b)) for c, b in
                [(cM0, vM0), (cM1, vM1), (cZ0, vZ0), (cZ1, vZ1)]]

    def g1_reads(fs, ks):
        r = []
        for nt in range(7):
            ad = cNc if nt == 6 else (cNb if nt & 1 else cNa)
            off = 0 if nt == 6 else 128 * (nt >> 1) + 32 * (nt & 1)
            for h in range(2):
                r.append("ds_read_b64_tr_b16 %s, %s offset:%d" % (
                    v(FR[fs] + 16 + 4 * nt + 2 * h, 2), v(ad), ks * 14336 + h * 1792 + off))
            if nt < 4:
                r.append("ds_read_b128 %s, %s offset:%d" % (v(FR[fs] + 4 * nt, 4), v(cM1 if ks else cM0), nt * 2048))
        return r

    def g1_mfmas(fs):
        return [mfma(ACC + 4 * (nt * 4 + mt), FR[fs] + 16 + 4 * nt, FR[fs] + 4 * mt) for nt in range(7) for mt in range(4)]

    def g1_iter(extra_b=(), pre_bar=(), tail=(), flag=None):
        interleave(a, g1_mfmas(0), g1_reads(1, 1) + next_slot() + set_addr(G1A))
        a("s_waitcnt lgkmcnt(0)")
        a.all(pre_bar)
        a("s_barrier")
        if flag is not None:
            flag_lines(a, flag)
        interleave(a, g1_mfmas(1), g1_reads(0, 0) + list(extra_b))
        a("s_waitcnt lgkmcnt(0)")
        a.all(tail)

    def g1_loop(n):
        a("s_mov_b32 %s, 0" % s(sCNT))
        loop = a.newlabel("g1_loop")
        a.raw(".p2align 6")
        a.label(loop)
        g1_iter(["s_add_u32 s15, s15, 1", "s_cmp_lt_u32 s15, %d" % n], tail=["s_cbranch_scc1 %s" % loop])

    a.all(set_addr(G1A))
    mark(a, 3)
    a("s_barrier")
    mark(a, 4)
    a.all(g1_reads(0, 0))
    a("s_waitcnt lgkmcnt(0)")
    if STAMP:
        g1_loop(3)
        mark(a, 15)
        g1_loop(2)
    else:
        g1_loop(5)
    g1_iter(pre_bar=["s_waitcnt vmcnt(0)"], flag=1)
    if STAMP:
        mark(a, 2)
        g1_loop(3)
        mark(a, 1)
        g1_loop(3)
        mark(a, 0)
        g1_loop(3)
    else:
        g1_loop(9)
    interleave(a, g1_mfmas(0), g1_reads(1, 1) + s1_addr(0))
    a("s_waitcnt lgkmcnt(0)")
    a("s_barrier")
    CSR, STR = 32, 60
    rd = ["ds_read_b128 %s, v26 offset:%d" % (v(CSR + 4 * nt, 4), 256 * (nt >> 1) + 64 * (nt & 1)) for nt in range(6)]
    rd.append("ds_read_b128 %s, v27" % v(CSR + 24, 4))
    rd += ["ds_read_b64 %s, v28 offset:%d" % (v(STR + 2 * mt, 2), 128 * mt) for mt in range(4)]
    interleave(a, g1_mfmas(1), rd)
    mark(a, 5)
    a("s_waitcnt lgkmcnt(0)")
    RL = 68
    for mt in range(4):
        a("v_mul_f32 %s, %s, %s" % (v(RL + 2 * mt), s(sNL2E), v(STR + 2 * mt + 1)))
    TMP = 76
    PK = [88, 92, 96, 100, 104, 108, 112, 116]
    for pr in range(3):
        a("s_mov_b32 %s, %d" % (s(T0 + pr), pr * 16384))
    pki = 0
    groups = [[(mt, 2 * pr), (mt, 2 * pr + 1)] for mt in range(4) for pr in range(3)]
    groups.insert(6, [(0, 6), (1, 6)]); groups.append([(2, 6), (3, 6)])
    for gr in groups:
        regs = []; cs = []; mts = []
        for mt, nt in gr:
            b = ACC + 4 * (nt * 4 + mt)
            regs += [b, b + 2]; cs += [CSR + 4 * nt, CSR + 4 * nt + 2]; mts += [mt, mt]
        tmp = [TMP + 2 * i for i in range(4)]
        for r_, c_, mt in zip(regs, cs, mts):
            a("v_pk_fma_f32 %s, %s, %s, %s op_sel_hi:[1,0,1] neg_lo:[0,1,0] neg_hi:[0,1,0]" % (v(r_, 2), v(c_, 2), v(STR + 2 * mt, 2), v(r_, 2)))
        for r_, t, mt in zip(regs, tmp, mts):
            a("v_pk_mul_f32 %s, %s, %s op_sel_hi:[1,0]" % (v(t, 2), v(r_, 2), v(RL + 2 * mt, 2)))
        for r_, mt in zip(regs, mts):
            a("v_pk_mul_f32 %s, %s, %s op_sel:[0,1]" % (v(r_, 2), v(r_, 2), v(STR + 2 * mt, 2)))
        silu_tail(a, regs, tmp)
        P = PK[pki % len(PK)]; pki += 1
        for i, r_ in enumerate(regs):
            a("v_cvt_pk_bf16_f32 %s, %s, %s" % (v(P + i), v(r_), v(r_ + 1)))
        a("s_nop 1")
        a("v_permlane16_swap_b32 %s, %s" % (v(P), v(P + 2)))
        a("v_permlane16_swap_b32 %s, %s" % (v(P + 1), v(P + 3)))
        mt, nt = gr[0]
        if nt < 6:
            a("buffer_store_dwordx4 %s, v17, %s, %s offen offset:%d%s" % (v(P, 4), s(WS, 4), s(T0 + nt // 2), mt * 1024, SC1))
        else:
            a("buffer_store_dwordx4 %s, v20, %s, 0 offen offset:%d%s" % (v(P, 4), s(WS, 4), (mt // 2) * 1024, SC1))
    mark(a, 6)

    def s1_reads(fs, ks):
        r = []
        for t in range(4):
            r.append("ds_read_b128 %s, %s offset:%d" % (v(FR[fs] + 4 * t, 4), v(cM1 if ks else cM0), t * 2048))
            r.append("ds_read_b128 %s, %s offset:%d" % (v(FR[fs] + 16 + 4 * t, 4), v(cZ1 if ks else cZ0), t * 2048))
        return r

    def s1_mfmas(fs, first):
        return [mfma(ACC + 4 * (mt * 4 + nt), FR[fs] + 4 * mt, FR[fs] + 16 + 4 * nt, "0" if first else None)
                for mt in range(4) for nt in range(4)]

    HF = int(OPT.get("hf", "-1"))
    if HF == -1:
        a("s_waitcnt vmcnt(0)")
    a("s_barrier")
    if HF == -1:
        hflag_lines(a, 1)
    a.all(s1_reads(0, 0))
    a("s_lshr_b32 %s, %s, 3" % (s(T0), s(sTAU)))
    a("s_and_b32 %s, %s, 3" % (s(T1), s(T0)))
    a("s_cmp_eq_u32 %s, 3" % s(T0))
    a("s_cselect_b32 %s, 1, %s" % (s(T1), s(T1)))
    a("s_lshr_b32 %s, %s, 2" % (s(T2), s(T0)))
    a("s_cmp_eq_u32 %s, 3" % s(T0))
    a("s_cselect_b32 %s, 8, %s" % (s(T2), s(T2)))
    a("s_lshl_b32 %s, %s, 19" % (s(T2), s(T2)))
    a("s_bfe_u32 %s, %s, 0x20001" % (s(T3), s(sTAU)))
    a("s_lshl_b32 %s, %s, 6" % (s(T3), s(T3)))
    a("s_lshl_b32 %s, %s, 5" % (s(T4), s(sWN)))
    a("s_add_u32 %s, %s, %s" % (s(T3), s(T3), s(T4)))
    a("v_and_b32 v17, 15, v3")
    a("v_add_u32 v17, %s, v17" % s(T3))
    a("v_sub_u32 v22, %d, v17" % (3 * 256 + 239))
    a("s_lshl_b32 %s, %s, 8" % (s(T1), s(T1)))
    a("v_add_u32 v17, %s, v17" % s(T1))
    a("s_and_b32 %s, %s, 1" % (s(T3), s(sTAU)))
    a("s_lshl_b32 %s, %s, 1" % (s(T3), s(T3)))
    a("s_add_u32 %s, %s, %s" % (s(T3), s(T3), s(sWM)))
    a("s_lshl_b32 %s, %s, 16" % (s(T3), s(T3)))
    a("s_add_u32 %s, %s, %s" % (s(T3), s(T3), hx(ZT_OFF)))
    a("v_add_u32 v23, %s, v21" % s(T3))
    a("v_lshl_add_u32 v17, v17, 6, v23")
    a("v_lshl_add_u32 v22, v22, 6, v23")
    a("s_waitcnt lgkmcnt(0)")
    for k in range(4):
        interleave(a, s1_mfmas(0, k == 0), s1_reads(1, 1) + (s1_addr(k + 1) if k < 3 else []))
        a("s_waitcnt lgkmcnt(0)")
        sent = ["buffer_store_dwordx4 v[240:243], %s, %s, 0 offen offset:%d%s" % ("v25" if k else "v24", s(WS, 4), i * 1024, SC1)
                for i in range(4)] if k < 2 else []
        interleave(a, s1_mfmas(1, False), (s1_reads(0, 0) if k < 3 else []) + sent)
        if k < 3:
            a("s_waitcnt lgkmcnt(0)")
        if k == HF:
            a("s_waitcnt vmcnt(0)")
            a("s_barrier")
            hflag_lines(a, 1)
    mark(a, 7)
    a("s_barrier")
    mark(a, 8)
    a("s_nop 7")
    TMP = 32
    PK = [56, 60, 64, 68, 72, 76, 80, 84]
    typeB = a.newlabel("s1_typeB"); done = a.newlabel("s1_done")
    a("s_and_b32 %s, %s, 29" % (s(T3), s(T0)))
    a("s_cmp_eq_u32 %s, 0" % s(T3))
    a("s_cbranch_scc1 %s" % typeB)
    tile = lambda m, n: ACC + 4 * (m * 4 + n)
    pki = 0
    for n in range(2):
        for uv in range(2):
            P = PK[pki]; pki += 1
            for m in range(2):
                for h in range(2):
                    if uv == 0:
                        a("v_pk_add_f32 %s, %s, %s" % (v(TMP + 2 * h, 2), v(tile(m, n) + 2 * h, 2), v(tile(m + 2, n + 2) + 2 * h, 2)))
                    else:
                        a("v_pk_add_f32 %s, %s, %s%s" % (v(TMP + 2 * h, 2), v(tile(m + 2, n) + 2 * h, 2), v(tile(m, n + 2) + 2 * h, 2), NEG1))
                for h in range(2):
                    a("v_cvt_pk_bf16_f32 %s, %s, %s" % (v(P + 2 * m + h), v(TMP + 2 * h), v(TMP + 2 * h + 1)))
            a("s_add_u32 %s, %s, %d" % (s(T3), s(T2), n * 1024 + uv * 262144))
            a("s_nop 0")
            a("v_permlane16_swap_b32 %s, %s" % (v(P), v(P + 2)))
            a("v_permlane16_swap_b32 %s, %s" % (v(P + 1), v(P + 3)))
            a("buffer_store_dwordx4 %s, v17, %s, %s offen%s" % (v(P, 4), s(WS, 4), s(T3), SC1))
    a("s_cmp_ge_u32 %s, 4" % s(T0))
    a("s_cbranch_scc1 %s" % done)
    a("s_mov_b32 %s, 0x80008000" % s(T4))
    pki = 0
    for n in range(2):
        for uv in range(2):
            P = PK[pki]; pki += 1
            a("s_add_u32 %s, %s, %d" % (s(T3), s(T2), (1 - n) * 1024 + uv * 262144))
            if uv:
                Q = PK[4 + n]
                for i in range(4):
                    a("v_xor_b32 %s, %s, %s" % (v(Q + i), s(T4), v(P + i)))
                P = Q
            a("buffer_store_dwordx4 %s, v22, %s, %s offen%s" % (v(P, 4), s(WS, 4), s(T3), SC1))
    a("s_branch %s" % done)
    a.label(typeB)
    pki = 0
    for n in range(2):
        for half in range(2):
            for uv in range(2):
                P = PK[pki]; pki += 1
                sg = "-" if uv else ""
                for m in range(2):
                    t = tile(m + 2 * half, n + 2 * uv)
                    for h in range(2):
                        a("v_cvt_pk_bf16_f32 %s, %s%s, %s%s" % (v(P + 2 * m + h), sg, v(t + 2 * h), sg, v(t + 2 * h + 1)))
                a("s_mov_b32 %s, %d" % (s(T3), half * 8 * 524288 + n * 1024 + uv * 262144))
                a("s_nop 0")
                a("v_permlane16_swap_b32 %s, %s" % (v(P), v(P + 2)))
                a("v_permlane16_swap_b32 %s, %s" % (v(P + 1), v(P + 3)))
                a("buffer_store_dwordx4 %s, v17, %s, %s offen%s" % (v(P, 4), s(WS, 4), s(T3), SC1))
    a.label(done)
    mark(a, 9)


def dma(a, ldsoff, vaddr, srd_, soff, coh=False):
    a("s_add_u32 m0, %s, %d" % (s(sSLOT), ldsoff))
    a("s_nop 0")
    a("buffer_load_dwordx4 %s, %s, %s offen%s lds" % (v(vaddr), s(srd_, 4), s(soff), SC1 if coh else ""))


LVA, LVB, LVC, LVD = 8, 12, 20, 24
CSD = 128


def g1_issue(a):
    for i in range(4):
        dma(a, i * 4096, LVA + i, XS, sKA)
    for i in range(7):
        dma(a, 16384 + i * 4096, LVB + i, W1, sKB)
    a("s_add_u32 %s, %s, 128" % (s(sKA), s(sKA)))
    a("s_add_u32 %s, %s, %d" % (s(sKB), s(sKB), 64 * 7168))
    a("s_add_u32 s14, s14, %d" % G1SLOT)
    a("s_cmp_eq_u32 s14, %s" % s(sWRAP))
    a("s_cselect_b32 s14, %s, s14" % s(sSL0))


def loader_setup(a):
    a("s_sub_u32 %s, %s, 4" % (s(sL), s(sWAVE)))
    a("s_and_b32 %s, %s, 1" % (s(T0), s(sL)))
    a("s_lshl_b32 %s, %s, 2" % (s(T0), s(T0)))
    a("v_lshrrev_b32 v4, 4, v3")
    a("v_add_u32 v4, %s, v4" % s(T0))
    a("v_and_b32 v5, 7, v3")
    a("v_xor_b32 v4, v4, v5")
    a("v_lshlrev_b32 v4, 4, v4")
    a("v_lshrrev_b32 v5, 3, v3")
    a("s_lshl_b32 %s, %s, 3" % (s(T0), s(sL)))
    a("v_add_u32 v5, %s, v5" % s(T0))
    a("v_lshlrev_b32 v30, 2, v3")
    a("s_lshl_b32 %s, %s, 10" % (s(sSL0), s(sL)))
    a("s_lshl_b32 %s, %s, 11" % (s(T0), s(sRB)))
    a("v_lshl_add_u32 v6, v5, 15, v4")
    a("v_add_u32 v6, %s, v6" % s(T0))
    for i in range(4):
        a("v_add_u32 %s, %s, v6" % (v(LVA + i), hx(i * 32 * 32768)))
    a("s_lshl_b32 %s, %s, 6" % (s(T0), s(sL)))
    a("v_add_u32 v6, %s, v3" % s(T0))
    a("s_mul_i32 %s, %s, 448" % (s(T1), s(sCB)))
    for i in range(7):
        a("v_add_u32 v7, %d, v6" % (256 * i))
        a("v_mul_u32_u24 v28, 2341, v7")
        a("v_lshrrev_b32 v28, 16, v28")
        a("v_mul_u32_u24 v29, 28, v28")
        a("v_sub_u32 v29, v7, v29")
        a("v_bfe_u32 v31, v28, 3, 1")
        a("v_lshlrev_b32 v31, 1, v31")
        a("v_xor_b32 v29, v29, v31")
        a("v_mul_u32_u24 v28, 7168, v28")
        a("v_lshl_add_u32 v28, v29, 4, v28")
        a("v_add_u32 %s, %s, v28" % (v(LVB + i), s(T1)))
    a("s_mov_b32 %s, %s" % (s(sSLOT), s(sSL0)))
    a("s_add_u32 %s, %s, %d" % (s(sWRAP), s(sSL0), G1SLOT * 3))
    a("s_mov_b32 %s, 0" % s(sKA))
    a("s_mov_b32 %s, 0" % s(sKB))
    a("v_and_b32 v6, 31, v3")
    a("v_lshrrev_b32 v7, 5, v3")
    a("v_mul_u32_u24 v7, 7168, v7")
    a("v_lshl_add_u32 v7, v6, 4, v7")
    a("s_lshl_b32 %s, %s, 6" % (s(T0), s(sRB)))
    a("s_lshl_b32 %s, %s, 4" % (s(T2), s(sL)))
    a("s_add_u32 %s, %s, %s" % (s(T0), s(T0), s(T2)))
    a("s_mul_i32 %s, %s, 7168" % (s(T0), s(T0)))
    a("s_add_u32 %s, %s, %s" % (s(T0), s(T0), s(T1)))
    a("v_add_u32 v7, %s, v7" % s(T0))
    a("v_cmp_gt_u32 vcc, 28, v6")
    a("v_mov_b32 v28, 0x7f000000")
    a("s_nop 0")
    a("v_cndmask_b32 v7, v28, v7, vcc")
    g1_issue(a)
    for i in range(8):
        a("s_mov_b32 %s, %d" % (s(T0), i * 2 * 7168))
        a("buffer_load_dwordx4 %s, v7, %s, %s offen" % (v(CSD + 4 * i, 4), s(W1, 4), s(T0)))
    for _ in range(int(OPT.get("early", "1")) - 1):
        g1_issue(a)
    pf_addr(a)


def pf_addr(a):
    a("s_lshl_b32 %s, s2, 2" % s(T0))
    a("s_add_u32 %s, %s, %s" % (s(T0), s(T0), s(sL)))
    a("s_mul_i32 %s, %s, 7168" % (s(T1), s(T0)))
    a("v_lshlrev_b32 v124, 4, v3")
    a("v_add_u32 v124, %s, v124" % s(T1))
    a("v_add_u32 v125, 4096, v124")
    a("s_lshr_b32 %s, %s, 1" % (s(T2), s(T0)))
    a("v_lshrrev_b32 v126, 5, v3"); a("v_lshlrev_b32 v126, 11, v126"); a("v_and_b32 v127, 31, v3"); a("v_lshl_add_u32 v126, v127, 4, v126")
    a("s_lshl_b32 %s, %s, 12" % (s(T3), s(T2))); a("v_add_u32 v126, %s, v126" % s(T3))
    a("v_lshrrev_b32 v127, 4, v3"); a("v_lshlrev_b32 v127, 12, v127"); a("v_and_b32 v2, 15, v3"); a("v_lshl_add_u32 v127, v2, 4, v127")
    a("s_lshl_b32 %s, %s, 14" % (s(T3), s(T2))); a("v_add_u32 v127, %s, v127" % s(T3))


def pf_pair(a, vaddr, sre, sim):
    l2 = a.newlabel("pf2"); l3 = a.newlabel("pf3")
    a("s_bitcmp1_b32 %s, 0" % s(sWAVE))
    a("s_cbranch_scc1 %s" % l2)
    a("buffer_load_dwordx4 v[244:247], %s, %s, 0 offen" % (v(vaddr), s(sre, 4)))
    a("s_branch %s" % l3)
    a.label(l2)
    a("buffer_load_dwordx4 v[244:247], %s, %s, 0 offen" % (v(vaddr), s(sim, 4)))
    a.label(l3)


def loader_g1_s1(a):
    AC = CSD + 32
    PFS = OPT.get("pf", "-1") == "s"
    PFK = 99 if PFS else int(OPT.get("pf", "-1"))
    EARLY = int(OPT.get("early", "1"))
    q = ["g0"] * 11 + ["csl"] * 8 + [x for i in range(1, EARLY) for x in ["g%d" % i] * 11]

    def issue(st):
        g1_issue(a); q.extend(["g%d" % st] * 11)

    def need(*tags):
        idx = max(i for i, x in enumerate(q) if x in tags)
        n = len(q) - idx - 1
        del q[:idx + 1]
        return n

    def bar(*tags, lg=False):
        n = need(*tags)
        a("s_waitcnt vmcnt(%d)%s" % (n, " lgkmcnt(0)" if lg else ""))
        a("s_barrier")

    def prefetch():
        a.c("warm the memory-side cache with this wave's share of w2 and of the C slices")
        for i in range(7):
            a("buffer_load_dwordx4 v[244:247], %s, %s, 0 offen offset:%d" % ("v125" if i >= 4 else "v124", s(W2, 4), (i & 3) * 1024))
        pf_pair(a, 127, CR, CI)
        q.extend(["pf"] * 8)

    def cs_chunk(rng):
        for i in rng:
            for d in range(4):
                src = CSD + 4 * i + d
                t_ = AC + 2 * d if i == 0 else AC + 8 + 2 * d
                a("v_lshlrev_b32 %s, 16, %s" % (v(t_), v(src)))
                a("v_and_b32 %s, %s, %s" % (v(t_ + 1), s(sHI), v(src)))
            if i:
                for d in range(4):
                    a("v_pk_add_f32 %s, %s, %s" % (v(AC + 2 * d, 2), v(AC + 2 * d, 2), v(AC + 8 + 2 * d, 2)))

    def after0():
        cs_chunk(range(0, 4))

    def after1():
        cs_chunk(range(4, 8))
        a("v_lshrrev_b32 v28, 5, v3")
        a("s_lshl_b32 %s, %s, 1" % (s(T0), s(sL)))
        a("v_add_u32 v28, %s, v28" % s(T0))
        a("v_lshlrev_b32 v28, 10, v28")
        a("v_lshl_add_u32 v28, v6, 5, v28")
        a("v_add_u32 v28, %d, v28" % CSP)
        a("ds_write_b128 v28, %s" % v(AC, 4))
        a("ds_write_b128 v28, %s offset:16" % v(AC + 4, 4))
        a("s_waitcnt lgkmcnt(0)")

    def after2():
        a("s_lshl_b32 %s, %s, 8" % (s(T0), s(sL)))
        a("v_add_u32 v19, %s, v30" % s(T0))
        a("v_add_u32 v28, %d, v19" % CSP)
        for i in range(8):
            a("ds_read_b32 %s, v28 offset:%d" % (v(CSD + i), i * 1024))
        a("s_lshl_b32 %s, %s, 14" % (s(T0), s(sCB)))
        a("s_lshl_b32 %s, %s, 10" % (s(T1), s(sRB)))
        a("s_add_u32 %s, %s, %s" % (s(T1), s(T1), s(T0)))
        a("s_add_u32 %s, %s, %s" % (s(T1), s(T1), hx(CS_OFF)))
        a("v_mov_b32 v31, 0x01010101")
        a("s_waitcnt lgkmcnt(0)")
        for st in (4, 2, 1):
            for i in range(st):
                a("v_add_f32 %s, %s, %s" % (v(CSD + i), v(CSD + i), v(CSD + i + st)))
        a("buffer_store_dword %s, v19, %s, %s offen%s" % (v(CSD), s(WS, 4), s(T1), SC1))
        q.append("cs_store")

    def after3():
        a("s_lshr_b32 %s, %s, 3" % (s(T0), s(sTAU)))
        a("s_lshl_b32 %s, %s, 17" % (s(T1), s(T0)))
        a("s_and_b32 %s, %s, 1" % (s(T2), s(sTAU)))
        a("s_lshl_b32 %s, %s, 15" % (s(T3), s(T2)))
        a("s_add_u32 %s, %s, %s" % (s(T1), s(T1), s(T3)))
        a("s_add_u32 %s, %s, %s" % (s(T1), s(T1), hx(CB_OFF)))
        a("v_lshl_add_u32 v6, v5, 9, v4")
        a("v_add_u32 v6, %s, v6" % s(T1))
        for i in range(4):
            a("v_add_u32 %s, %s, v6" % (v(LVC + i), hx((i & 1) * 65536 + (i >> 1) * 32 * 512)))
        a("s_and_b32 %s, %s, 3" % (s(T1), s(T0)))
        a("s_cmp_eq_u32 %s, 3" % s(T0))
        a("s_cselect_b32 %s, 1, %s" % (s(T1), s(T1)))
        a("s_lshl_b32 %s, %s, 11" % (s(T1), s(T1)))
        a("s_bfe_u32 %s, %s, 0x20001" % (s(T3), s(sTAU)))
        a("s_lshl_b32 %s, %s, 19" % (s(T3), s(T3)))
        a("s_add_u32 %s, %s, %s" % (s(T1), s(T1), s(T3)))
        a("v_lshl_add_u32 v6, v5, 13, v4")
        a("v_add_u32 v6, %s, v6" % s(T1))
        for i in range(4):
            a("v_add_u32 %s, %s, v6" % (v(LVD + i), hx((i >> 1) * 32 * 8192)))

    def after9():
        poll_issue(a, 29, 30); q.append("poll")

    def after11():
        a.c("fetch the 16 partial column sums of this column block and this class's row stats")
        a("s_lshl_b32 %s, %s, 14" % (s(T0), s(sCB)))
        a("s_add_u32 %s, %s, %s" % (s(T0), s(T0), hx(CS_OFF)))
        for i in range(16):
            if i and i % 4 == 0:
                a("s_add_u32 %s, %s, 4096" % (s(T0), s(T0)))
            a("buffer_load_dword %s, v19, %s, %s offen offset:%d%s" % (v(CSD + i), s(WS, 4), s(T0), (i & 3) * 1024, SC1))
        a("s_lshl_b32 %s, %s, 10" % (s(T0), s(sRB)))
        a("s_add_u32 %s, %s, %s" % (s(T0), s(T0), hx(STAT_OFF)))
        a("buffer_load_dword %s, v19, %s, %s offen%s" % (v(CSD + 16), s(WS, 4), s(T0), SC1))
        q.extend(["fetch"] * 17)

    def after13():
        a("s_waitcnt vmcnt(%d)" % need("fetch"))
        for st in (8, 4, 2, 1):
            for i in range(st):
                a("v_add_f32 %s, %s, %s" % (v(CSD + i), v(CSD + i), v(CSD + i + st)))
        a("v_add_u32 v28, %d, v19" % CSB)
        a("ds_write_b32 v28, %s" % v(CSD))
        a("ds_write_b32 v28, %s offset:%d" % (v(CSD + 16), STB - CSB))
        a("s_waitcnt lgkmcnt(0)")

    hooks = {0: after0, 1: after1, 2: after2, 3: after3, 9: after9, 11: after11, 13: after13}
    a("s_waitcnt lgkmcnt(0)")
    a("s_barrier")
    for st in range(EARLY, 3):
        issue(st)
    pf_pair(a, 126, DR, DI); q.append("pf")
    if PFK == -1:
        prefetch()
    if PFS:
        pf_pair(a, 127, CR, CI); q.append("pf")
        a("s_lshl_b32 %s, s2, 2" % s(T0))
        a("s_add_u32 %s, %s, %s" % (s(T0), s(T0), s(sL)))
        a("s_mul_i32 %s, %s, 7168" % (s(T0), s(T0)))
        a("s_add_u32 s30, %s, %s" % (s(W2), s(T0)))
        a("s_addc_u32 s31, %s, 0" % s(W2 + 1))
    bar("g0")
    for k in range(15):
        tags = ["g%d" % (k + 1)]
        if k == 5:
            tags.append("cs_store")
        if k == 11:
            a("s_waitcnt vmcnt(%d)" % need("g12", "poll"))
            poll_check(a, 29, 30, 31, True)
            a("s_barrier")
        else:
            bar(*tags)
        if k + 3 <= 15:
            issue(k + 3)
        if k in hooks:
            hooks[k]()
        if k == PFK:
            prefetch()
        if PFS and 2 <= k <= 11:
            for i in range(12 * (k - 2), min(112, 12 * (k - 1))):
                a("s_load_dword s29, s[30:31], %d" % (i * 64))

    def issue_s1(k):
        a("s_add_u32 %s, %s, %d" % (s(sSLOT), s(sSL0), S1SLOTS[k]))
        a("s_mov_b32 %s, %d" % (s(sKA), k * 128))
        for i in range(4):
            dma(a, i * 4096, LVC + i, WS, sKA, coh=True)
        for i in range(4):
            dma(a, 16384 + i * 4096, LVD + i, DI if i & 1 else DR, sKA)

    issue_s1(2)
    a("s_barrier")
    for k in (0, 1, 3):
        issue_s1(k)
    g2_loader_setup(a)
    a("s_waitcnt vmcnt(0)")
    a("s_barrier")


NJ = 28
NREG = 24
NSOLO = 4


def compute_g2(a):
    ACC = 128; ACY = 192; XR = 224; RX = 96
    FR = [32, 64]
    gN0, gZ0, gZ1 = 6, 7, 8
    cN = 11
    a("v_and_b32 v17, 15, v3")
    a("v_lshlrev_b32 v17, 15, v17")
    a("s_lshl_b32 %s, %s, 21" % (s(T0), s(sWM)))
    a("s_lshl_b32 %s, %s, 11" % (s(T1), s(sCLS)))
    a("s_add_u32 %s, %s, %s" % (s(T0), s(T0), s(T1)))
    a("s_lshl_b32 %s, %s, 8" % (s(T1), s(sCB8)))
    a("s_add_u32 %s, %s, %s" % (s(T0), s(T0), s(T1)))
    a("s_lshl_b32 %s, %s, 7" % (s(T1), s(sKH)))
    a("s_add_u32 %s, %s, %s" % (s(T0), s(T0), s(T1)))
    a("s_lshl_b32 %s, %s, 6" % (s(T1), s(sWN)))
    a("s_add_u32 %s, %s, %s" % (s(T0), s(T0), s(T1)))
    a("v_add_u32 v17, %s, v17" % s(T0))
    a("v_lshl_add_u32 v19, v18, 3, v17")
    for mt in range(4):
        a("s_mov_b32 %s, %d" % (s(T3 + mt), mt * 16 * 16 * 2048))
    a("v_add_u32 v17, v17, v21")
    a("s_lshl_b32 %s, %s, 12" % (s(T0), s(sWN)))
    a("s_add_u32 %s, %s, 16384" % (s(T0), s(T0)))
    rowimg_frag_addr(a, gZ0, gZ1, T0)
    a("v_bfe_u32 v20, v3, 2, 2")
    a("v_lshl_add_u32 v23, v18, 3, v20")
    a("v_lshlrev_b32 v23, 8, v23")
    a("v_and_b32 v22, 3, v3")
    a("v_lshl_add_u32 v23, v22, 3, v23")
    a("v_and_b32 v22, 1, v18")
    a("v_lshl_or_b32 v20, v22, 2, v20")
    a("s_lshl_b32 %s, %s, 1" % (s(T0), s(sWN)))
    a("s_lshl_b32 %s, %s, 2" % (s(T1), s(sKH)))
    a("s_add_u32 %s, %s, %s" % (s(T0), s(T0), s(T1)))
    a("v_xor_b32 v20, %s, v20" % s(T0))
    a("v_lshl_add_u32 v23, v20, 5, v23")
    a("v_add_u32 %s, 16384, v23" % v(gN0))
    a("v_xor_b32 v15, 0x20000, v24")
    a("v_xor_b32 v16, 0x20000, v25")
    for i in range(96):
        a("v_mov_b32 %s, 0" % v(ACC + i))
    a("s_mov_b32 %s, %d" % (s(sSLOT), 4 * G2SLOT))

    def set_addr(joint):
        r = ["v_add_u32 %s, s14, %s" % (v(cM0), v(vM0)), "v_add_u32 %s, s14, %s" % (v(cM1), v(vM1))]
        if joint:
            r.append("v_add_u32 %s, s14, %s" % (v(cN), v(gN0)))
            for nt, x in ((1, 32), (2, 128), (3, 160)):
                r.append("v_xor_b32 %s, %d, %s" % (v(cN + nt), x, v(cN)))
        else:
            r += ["v_add_u32 %s, s14, %s" % (v(cN), v(gZ0)), "v_add_u32 %s, s14, %s" % (v(cN + 1), v(gZ1))]
        return r

    def next_slot():
        return ["s_add_u32 s14, s14, %d" % G2SLOT, "s_cmp_eq_u32 s14, %d" % (G2SLOT * 5), "s_cselect_b32 s14, 0, s14"]

    def reads(fs, ks, joint):
        r = []
        for t in range(4):
            if joint:
                for h in range(2):
                    r.append("ds_read_b64_tr_b16 %s, %s offset:%d" % (v(FR[fs] + 16 + 4 * t + 2 * h, 2), v(cN + t), ks * 8192 + h * 1024))
            elif t < 2:
                r.append("ds_read_b128 %s, %s offset:%d" % (v(FR[fs] + 16 + 4 * t, 4), v(cN + ks), t * 2048))
            r.append("ds_read_b128 %s, %s offset:%d" % (v(FR[fs] + 4 * t, 4), v(cM1 if ks else cM0), t * 2048))
        return r

    ot = lambda mt, nt: ACC + 4 * (nt * 4 + mt)

    def jm(fs, order=(0, 1, 2, 3)):
        return [mfma(ot(mt, nt), FR[fs] + 16 + 4 * nt, FR[fs] + 4 * mt) for nt in order for mt in range(4)]

    def sm(fs):
        return [mfma(ACY + 4 * (nt * 4 + mt), FR[fs] + 16 + 4 * nt, FR[fs] + 4 * mt) for nt in range(2) for mt in range(4)]

    a.all(set_addr(True))
    a("s_barrier")
    mark(a, 10)
    a.all(reads(0, 0, True))
    a("s_mov_b32 %s, 0" % s(sCNT))
    a("s_waitcnt lgkmcnt(0)")

    def joint_iter(nxt_joint, extra=(), pre_bar=(), flag=None, bar=True):
        interleave(a, jm(0), reads(1, 1, True) + next_slot() + set_addr(nxt_joint), per=2)
        a("s_waitcnt lgkmcnt(0)")
        a.all(pre_bar)
        if bar:
            a("s_barrier")
        if flag is not None:
            flag_lines(a, flag)
        interleave(a, jm(1), reads(0, 0, True) + list(extra), per=1)
        a("s_waitcnt lgkmcnt(0)")

    ZK = int(OPT.get("zk", "6"))

    def g2_loop(n):
        a("s_mov_b32 %s, 0" % s(sCNT))
        loop = a.newlabel("g2_loop")
        a.raw(".p2align 6")
        a.label(loop)
        joint_iter(True, ["s_add_u32 s15, s15, 1", "s_cmp_lt_u32 s15, %d" % n])
        a("s_cbranch_scc1 %s" % loop)

    g2_loop(ZK)
    joint_iter(True, pre_bar=["s_waitcnt vmcnt(0)"], flag=7)
    g2_loop(NJ - 2 - ZK)
    interleave(a, jm(0), reads(1, 1, True) + next_slot() + set_addr(False), per=2)
    a("s_waitcnt lgkmcnt(0)")
    a("s_barrier")
    m = jm(1, (2, 3, 0, 1))
    interleave(a, m[:8], reads(0, 0, False))
    for i in range(8):
        a(m[8 + i])
        b = ACC + 32 + 4 * i
        for j in range(4):
            a("v_min_u32 %s, -2, %s" % (v(b + j), v(b + j)))
        a("buffer_store_dwordx4 %s, %s, %s, 0 offen offset:%d sc1" % (v(b, 4), "v16" if i >= 4 else "v15", s(WS, 4), (i & 3) * 1024))
    a("s_waitcnt lgkmcnt(0)")
    mark(a, 11)

    def recv_loads():
        return ["buffer_load_dwordx4 %s, %s, %s, 0 offen offset:%d sc1" % (v(RX + 4 * i, 4), "v25" if i >= 4 else "v24", s(WS, 4), (i & 3) * 1024)
                for i in range(8)]

    xl = ["buffer_load_dwordx2 %s, v19, %s, %s offen offset:%d" % (v(XR + 4 * mt + 2 * nt, 2), s(XS, 4), s(T3 + mt), nt * 32)
          for mt in range(4) for nt in range(2)]
    for k in range(NSOLO):
        last = k == NSOLO - 1
        interleave(a, sm(0), reads(1, 1, False) + ([] if last else next_slot() + set_addr(False)), per=2)
        a("s_waitcnt lgkmcnt(0)")
        if not last:
            a("s_barrier")
            interleave(a, sm(1), reads(0, 0, False) + (xl[4 * k:4 * k + 4] if k < 2 else []), per=2)
            a("s_waitcnt lgkmcnt(0)")
        else:
            interleave(a, sm(1), recv_loads())
    mark(a, 12)
    top = a.newlabel("rx"); chk = a.newlabel("rxchk"); ok = a.newlabel("rxok")
    a("s_mov_b32 %s, 0" % s(T7))
    a("s_branch %s" % chk)
    a.label(top)
    a.all(recv_loads())
    a.label(chk)
    a("s_waitcnt vmcnt(0)")
    a("v_max3_u32 v26, %s, %s, %s" % (v(RX), v(RX + 1), v(RX + 2)))
    a("v_max3_u32 v27, %s, %s, %s" % (v(RX + 3), v(RX + 4), v(RX + 5)))
    for i in range(6, 30, 4):
        a("v_max3_u32 v26, v26, %s, %s" % (v(RX + i), v(RX + i + 1)))
        a("v_max3_u32 v27, v27, %s, %s" % (v(RX + i + 2), v(RX + i + 3)))
    a("v_max3_u32 v26, v26, %s, %s" % (v(RX + 30), v(RX + 31)))
    a("v_max_u32 v26, v26, v27")
    a("v_cmp_eq_u32 vcc, -1, v26")
    a("s_add_u32 %s, %s, 1" % (s(T7), s(T7)))
    a("s_nop 3")
    a("s_cbranch_vccz %s" % ok)
    a("s_sleep 1")
    a("s_cmp_lt_u32 %s, %d" % (s(T7), SPIN_MAX))
    a("s_cbranch_scc1 %s" % top)
    a.label(ok)
    mark(a, 13)
    TMP = 32
    PK = [64, 68, 72, 76]

    def rnd(regs, t):
        for i, r_ in enumerate(regs):
            a("v_cvt_pk_bf16_f32 %s, %s, %s" % (v(t + i), v(r_), v(r_ + 1)))
        for i, r_ in enumerate(regs):
            a("v_lshlrev_b32 %s, 16, %s" % (v(r_), v(t + i)))
            a("v_and_b32 %s, %s, %s" % (v(r_ + 1), s(sHI), v(t + i)))

    for mt in range(4):
        offs = [4 * mt, 4 * mt + 2, 16 + 4 * mt, 16 + 4 * mt + 2]
        o = [ACC + x for x in offs]
        y = [ACY + x for x in offs]
        for i in range(4):
            a("v_pk_add_f32 %s, %s, %s" % (v(o[i], 2), v(o[i], 2), v(RX + offs[i], 2)))
        rnd(o, 48)
        silu_pk(a, o, [TMP + 2 * i for i in range(4)])
        rnd(o, 48)
        rnd(y, 52)
        for i in range(4):
            a("v_pk_mul_f32 %s, %s, %s" % (v(o[i], 2), v(o[i], 2), v(y[i], 2)))
        rnd(o, 48)
        for i in range(4):
            a("v_lshlrev_b32 %s, 16, %s" % (v(y[i]), v(XR + 4 * mt + i)))
            a("v_and_b32 %s, %s, %s" % (v(y[i] + 1), s(sHI), v(XR + 4 * mt + i)))
        for i in range(4):
            a("v_pk_add_f32 %s, %s, %s" % (v(o[i], 2), v(o[i], 2), v(y[i], 2)))
        P = PK[mt]
        for i in range(4):
            a("v_cvt_pk_bf16_f32 %s, %s, %s" % (v(P + i), v(o[i]), v(o[i] + 1)))
        a("s_nop 1")
        a("v_permlane16_swap_b32 %s, %s" % (v(P), v(P + 2)))
        a("v_permlane16_swap_b32 %s, %s" % (v(P + 1), v(P + 3)))
        a("buffer_store_dwordx4 %s, v17, %s, %s offen" % (v(P, 4), s(OUT, 4), s(T3 + mt)))
    mark(a, 14)
    a("s_endpgm")


GVA, GVB, GVA2, GVB2, GVC, GVD = 32, 36, 40, 44, 48, 52
GNH, GNZ, GNH2, GHA = 56, 57, 58, 59


def g2_loader_setup(a):
    a("v_lshrrev_b32 v6, 4, v3")
    a("s_lshr_b32 %s, %s, 1" % (s(T0), s(sL)))
    a("s_lshl_b32 %s, %s, 2" % (s(T0), s(T0)))
    a("v_or_b32 v7, %s, v6" % s(T0))
    a("v_lshlrev_b32 v7, 1, v7")
    a("v_and_b32 v28, 15, v3")
    a("v_xor_b32 v7, v7, v28")
    a("v_lshlrev_b32 v7, 4, v7")
    a("v_lshl_add_u32 v6, v6, 11, v7")
    a("s_mul_i32 %s, %s, %d" % (s(T0), s(sKH), 1792 * 2048))
    a("s_lshl_b32 %s, %s, 13" % (s(T1), s(sL)))
    a("s_add_u32 %s, %s, %s" % (s(T0), s(T0), s(T1)))
    a("s_lshl_b32 %s, %s, 8" % (s(T1), s(sCB8)))
    a("s_add_u32 %s, %s, %s" % (s(T0), s(T0), s(T1)))
    a("v_add_u32 v6, %s, v6" % s(T0))
    for i in range(4):
        a("v_add_u32 %s, %s, v6" % (v(GVB + i), hx(i * 16 * 2048)))
    for i in range(2):
        a("v_add_u32 %s, %s, v6" % (v(GVB2 + i), hx(((i + 2) * 16 + 192) * 2048)))
    a("s_lshl_b32 %s, %s, 4" % (s(T0), s(sCLS)))
    a("s_lshl_b32 %s, %s, 3" % (s(T1), s(sKH)))
    a("s_add_u32 %s, %s, %s" % (s(T0), s(T0), s(T1)))
    a("s_mul_i32 %s, %s, 49152" % (s(T1), s(T0)))
    a("s_add_u32 %s, %s, %s" % (s(T1), s(T1), hx(HR_OFF)))
    a("s_lshl_b32 %s, %s, 13" % (s(T2), s(T0)))
    a("s_add_u32 %s, %s, %s" % (s(T2), s(T2), hx(HL_OFF)))
    a("v_and_b32 v6, 64, v4")
    a("v_lshlrev_b32 v6, 7, v6")
    a("v_and_b32 v7, 48, v4")
    a("v_add_u32 v7, v7, v6")
    a("v_lshl_add_u32 v7, v5, 6, v7")
    a("v_add_u32 v7, %s, v7" % s(T1))
    for i in range(4):
        a("v_add_u32 %s, %d, v7" % (v(GVA + i), i * 32 * 64))
    a("v_and_b32 v7, 32, v4")
    a("v_lshl_add_u32 v6, v7, 7, v6")
    a("v_and_b32 v7, 16, v4")
    a("v_add_u32 v6, v6, v7")
    a("v_lshl_add_u32 v6, v5, 5, v6")
    a("v_add_u32 v6, %s, v6" % s(T2))
    for i in range(4):
        a("v_add_u32 %s, %d, v6" % (v(GVA2 + i), i * 32 * 32))
    a("s_cmp_gt_u32 %s, 8" % s(sCLS))
    a("s_cselect_b32 %s, -1, 0" % s(T0))
    a("s_sub_u32 %s, 16, %s" % (s(T2), s(sCLS)))
    a("s_cmp_gt_u32 %s, 8" % s(sCLS))
    a("s_cselect_b32 %s, %s, %s" % (s(T1), s(T2), s(sCLS)))
    a("s_lshl_b32 %s, %s, 19" % (s(T2), s(T1)))
    a("s_add_u32 %s, %s, %s" % (s(T2), s(T2), hx(ZT_OFF)))
    for i in range(4):
        a("v_add_u32 v6, %d, v5" % (32 * i))
        a("v_lshlrev_b32 v6, 4, v6")
        a("v_add_u32 v6, %s, v6" % s(sCLS))
        a("v_xor_b32 v6, %s, v6" % s(T0))
        a("v_subrev_u32 v6, %s, v6" % s(T0))
        a("v_and_b32 v6, 2047, v6")
        a("v_lshl_add_u32 %s, v6, 12, v4" % v(GVC + i))
    a("s_lshl_b32 %s, %s, 7" % (s(T3), s(sCB8)))
    a("s_lshl_b32 %s, %s, 6" % (s(T4), s(sKH)))
    a("s_add_u32 %s, %s, %s" % (s(T3), s(T3), s(T4)))
    for i in range(2):
        a("v_add_u32 v6, %d, v5" % (32 * i))
        a("v_add_u32 v6, %s, v6" % s(T3))
        a("v_xor_b32 v6, %s, v6" % s(T0))
        a("v_subrev_u32 v6, %s, v6" % s(T0))
        a("v_and_b32 v7, 3, v6")
        a("v_bfe_u32 v6, v6, 2, 8")
        a("v_lshl_add_u32 v6, v7, 8, v6")
        a("v_and_b32 v7, 48, v4")
        a("v_lshl_add_u32 v6, v6, 6, v7")
        a("v_and_b32 v7, 64, v4")
        a("v_lshl_add_u32 v6, v7, 10, v6")
        a("v_add_u32 %s, %s, v6" % (v(GVD + i), s(T2)))
    a("s_bfe_u32 %s, %s, 0x10002" % (s(T3), s(T1)))
    a("v_and_b32 v6, 1, v3")
    a("v_cmp_eq_u32 vcc, %s, v6" % s(T3))
    a("s_and_b32 %s, %s, 3" % (s(T3), s(T1)))
    a("s_lshl_b32 %s, %s, 3" % (s(T3), s(T3)))
    a("s_lshl_b32 %s, 4, %s" % (s(T3), s(T3)))
    a("v_mov_b32 v7, %s" % s(T3))
    a("v_cndmask_b32 %s, 0, v7, vcc" % v(GNZ))
    a("s_andn2_b32 %s, %s, 127" % (s(T2), s(sHF)))
    a("v_and_b32 v6, 7, v3")
    a("v_lshlrev_b32 v6, 2, v6")
    a("v_add_u32 %s, %s, v6" % (v(GHA), s(T2)))
    a("v_lshrrev_b32 v6, 2, v3")
    a("s_lshr_b32 %s, %s, 2" % (s(T2), s(sCB8)))
    a("v_cmp_eq_u32 vcc, %s, v6" % s(T2))
    a("s_xor_b32 %s, %s, 1" % (s(T2), s(T2)))
    a("s_nop 0")
    a("v_cndmask_b32 %s, 0, 1, vcc" % v(GNH))
    a("v_cmp_eq_u32 vcc, %s, v6" % s(T2))
    a("s_lshr_b32 %s, s2, 2" % s(T0))
    a("s_nop 0")
    a("v_cndmask_b32 %s, 0, 1, vcc" % v(GNH2))
    a("v_cmp_ne_u32 vcc, %s, v3" % s(sCB8))
    a("s_xor_b32 %s, %s, 1" % (s(T0), s(T0)))
    a("s_nop 0")
    a("v_cndmask_b32 %s, 0, %s, vcc" % (v(GNH), v(GNH)))
    a("v_cmp_eq_u32 vcc, %s, v3" % s(T0))
    a("s_and_b32 %s, s2, 3" % s(T1))
    a("s_lshl_b32 %s, %s, 3" % (s(T1), s(T1)))
    a("s_lshl_b32 %s, 4, %s" % (s(T1), s(T1)))
    a("v_mov_b32 v7, %s" % s(T1))
    a("v_cndmask_b32 v7, 0, v7, vcc")
    a("v_or_b32 %s, %s, v7" % (v(GNZ), v(GNZ)))


def loader_g2(a):
    a("s_add_u32 %s, %s, %d" % (s(sWRAP), s(sSL0), G2SLOT * 5))
    NT = NJ + NSOLO
    q = []

    def slot_of(st):
        a("s_add_u32 %s, %s, %d" % (s(sSLOT), s(sSL0), ((st + 4) % 5) * G2SLOT))

    def koff(st, want_a, want_b):
        j, p_ = divmod(st, 3)
        a("s_xor_b32 %s, %s, %d" % (s(T0), s(sP3), j))
        if want_a:
            a("s_mul_i32 %s, %s, 49152" % (s(sKA), s(T0)))
            if p_:
                a("s_add_u32 %s, %s, %d" % (s(sKA), s(sKA), p_ * 16384))
        if want_b:
            a("s_mul_i32 %s, %s, %d" % (s(sKB), s(T0), 224 * 2048))
            if p_:
                a("s_add_u32 %s, %s, %d" % (s(sKB), s(sKB), p_ * 64 * 2048))

    def issue(st, want_a=True, want_b=True):
        slot_of(st)
        if st < NREG:
            koff(st, want_a, want_b)
            if want_a:
                for i in range(4):
                    dma(a, i * 4096, GVA + i, WS, sKA, coh=True)
            if want_b:
                for i in range(4):
                    dma(a, 16384 + i * 4096, GVB + i, W2, sKB)
            q.extend([st] * (4 * want_a + 4 * want_b))
        elif st < NJ:
            lam = st - NREG
            a("s_mov_b32 %s, %d" % (s(sKA), lam * 16384))
            a("s_mov_b32 %s, %d" % (s(sKB), (448 * lam + 192) * 2048))
            for i in range(4):
                dma(a, i * 4096, GVA2 + i, WS, sKA, coh=True)
            for i in range(2):
                dma(a, 16384 + i * 4096, GVB + i, W2, sKB)
            for i in range(2):
                dma(a, 16384 + (i + 2) * 4096, GVB2 + i, W2, sKB)
            q.extend([st] * 8)
        else:
            k = st - NJ
            a("s_mov_b32 %s, %d" % (s(sKA), (k & 1) * 128))
            a("s_mov_b32 %s, %d" % (s(sKB), (k & 1) * 131072 + (k >> 1) * 262144))
            for i in range(4):
                dma(a, i * 4096, GVC + i, CI if k >= 2 else CR, sKA)
            for i in range(2):
                dma(a, 16384 + i * 4096, GVD + i, WS, sKB, coh=True)
            q.extend([st] * 6)

    def wait(*tags):
        idx = max(i for i, x in enumerate(q) if x in tags)
        a("s_waitcnt vmcnt(%d)" % (len(q) - idx - 1))
        del q[:idx + 1]

    a("s_and_b32 %s, %s, 4" % (s(sP3), s(sCB8)))
    issue(0, want_a=False)
    top = a.newlabel("pre"); got = a.newlabel("got"); nogot = a.newlabel("nogot")
    a("s_mov_b32 %s, 0" % s(T6))
    a("s_mov_b32 %s, 0" % s(T7))
    a.label(top)
    poll_issue(a, 29, GHA, WS)
    a("s_waitcnt vmcnt(0)")
    a("v_and_b32 v29, v29, %s" % v(GNH))
    a("v_cmp_ne_u32 vcc, v29, %s" % v(GNH))
    a("s_add_u32 %s, %s, 1" % (s(T7), s(T7)))
    a("s_nop 3")
    a("s_cbranch_vccz %s" % got)
    a("s_sleep 2")
    a("s_cmp_lt_u32 %s, %s" % (s(T7), OPT.get("np", "3")))
    a("s_cbranch_scc1 %s" % top)
    a("s_branch %s" % nogot)
    a.label(got)
    mark(a, 9)
    issue(0, want_b=False)
    a("s_mov_b32 %s, 1" % s(T6))
    a.label(nogot)
    a("s_barrier")
    late = a.newlabel("late"); go = a.newlabel("go")
    a("s_cmp_eq_u32 %s, 0" % s(T6))
    a("s_cbranch_scc1 %s" % late)
    issue(1)
    a("s_waitcnt vmcnt(8)")
    a("s_barrier")
    for st in range(2, 5):
        issue(st)
    a("s_waitcnt vmcnt(24)")
    a("s_branch %s" % go)
    a.label(late)
    for st in range(1, 5):
        issue(st, want_a=False)
    poll_check(a, 29, GHA, GNH, False, WS)
    mark(a, 8)
    issue(0, want_b=False)
    issue(1, want_b=False)
    a("s_waitcnt vmcnt(4)")
    a("s_barrier")
    for st in range(2, 5):
        issue(st, want_b=False)
    a("s_waitcnt vmcnt(12)")
    a.label(go)
    del q[:]
    q.extend([1] + [2] * 4 + [3] * 4 + [4] * 4)
    nxt = 5
    for k in range(0, NT - 1):
        last_issue = min(k + 5, NT - 1)
        tags = [k + 1]
        chk = None
        if nxt <= 12 <= last_issue:
            tags.append("p2"); chk = GNH2
        if nxt <= NJ <= last_issue:
            tags.append("p3"); chk = GNZ
        if k > 0:
            wait(*tags)
        else:
            q.remove(1)
        if chk == GNH2:
            poll_check(a, 29, GHA, chk, True, WS)
        elif chk is not None:
            poll_check(a, 29, 30, chk, True)
        a("s_barrier")
        while nxt <= last_issue:
            issue(nxt); nxt += 1
        if k == 3:
            poll_issue(a, 29, GHA, WS); q.append("p2")
        if k == NJ - 9:
            poll_issue(a, 29, 30); q.append("p3")
    a("s_endpgm")


HEADER = """; Kernarg layout (88 bytes, ptrs only, base s[0:1]): 0 A_x, 8 dft_seq_re, 16 dft_seq_im, 24 dft_hid_re,
"""


def main():
    global STAMP
    args = sys.argv[1:]
    if "--stamp" in args:
        STAMP = True; args.remove("--stamp")
    for x in list(args):
        if x.startswith("--") and "=" in x:
            k, val = x[2:].split("="); OPT[k] = val; args.remove(x)
    a = Asm()
    a.raw(HEADER.rstrip("\n"))
    nv = 256 if STAMP else 248
    a.raw("; @launch grid=(256,1,1) block=(512,1,1) lds=163840")
    a.raw('.amdgcn_target "amdgcn-amd-amdhsa--gfx950"')
    a.raw(".text")
    name = NAME + "_kernel"
    kernel_header(a, name)
    prologue(a, "L_end")
    mark(a, 0)
    a("s_cmp_ge_u32 %s, 4" % s(sWAVE))
    a("s_cbranch_scc1 L_loader")
    compute_setup(a)
    a("s_waitcnt vmcnt(0)")
    hflag_lines(a, 0)
    prep_ln(a)
    a("s_waitcnt lgkmcnt(0)")
    a("s_barrier")
    prep_dft(a)
    compute_g1_s1(a)
    compute_g2(a)
    a.label("L_loader")
    loader_setup(a)
    a("s_waitcnt vmcnt(%d)" % (8 + 11 * int(OPT.get("early", "1"))))
    mark(a, 1)
    prep_ln(a)
    loader_g1_s1(a)
    loader_g2(a)
    a.label("L_end")
    a("s_endpgm")
    a.raw('.section .rodata,"a"')
    a.raw(kernel_desc(name, nv, NSGPR).rstrip("\n"))
    out = args[0] if args else "cdna_kernels/%s.s" % NAME
    open(out, "w").write(a.text())


if __name__ == "__main__":
    main()
```

```python
import math, struct, sys

NAME = "recurrent_scan__spectral_fnet__dense_activation_silu__prompt"

CS_OFF = 0x0000000
STAT_OFF = 0x0040000
HF_OFF = 0x0050000
CB_OFF = 0x0400000
ZT_OFF = 0x0800000
HR_OFF = 0x0D00000
HL_OFF = 0x1900000
EX_OFF = 0x1C00000
STAMP_OFF = 0x4000000
WS_SZ = 0x10000000

STAMP = False
SC1 = " sc1"
SPIN_MAX = 200000
OPT = {}

G1SLOT = 45056
G2SLOT = 32768
STG = 143360
CSP = 135168
CSB = 161792
STB = 162816
S1SLOTS = [0, 32768, 65536, 98304]

sWAVE, sXCD, sLOC, sRB, sCB, sTAU, sCLS, sCB8, sKH = 3, 4, 5, 6, 7, 8, 9, 10, 11
sWM, sWN, sSLOT, sCNT = 12, 13, 14, 15
sL = 12
T0, T1, T2, T3, T4, T5, T6, T7 = 16, 17, 18, 19, 20, 21, 22, 23
sSP, sHALF, sHF = 26, 27, 28
WS, W1, DR, DI, W2, CR, CI, XS, OUT, DBG = 40, 44, 48, 52, 56, 60, 64, 68, 72, 76
sNL2E, sHI = 80, 82
C1, C2, C3 = 84, 86, 88
sKA, sKB, sWRAP, sSL0, sP3 = 90, 91, 92, 93, 94
NSGPR = 100


def f32(x):
    return struct.unpack("<I", struct.pack("<f", x))[0]


def hx(x):
    return "0x%x" % (x & 0xFFFFFFFF)


def v(i, n=1):
    return "v%d" % i if n == 1 else "v[%d:%d]" % (i, i + n - 1)


def s(i, n=1):
    return "s%d" % i if n == 1 else "s[%d:%d]" % (i, i + n - 1)


class Asm:
    def __init__(self):
        self.lines = []
        self.uid = 0

    def __call__(self, txt):
        self.lines.append("    " + txt)

    def label(self, l):
        self.lines.append(l + ":")

    def newlabel(self, p):
        self.uid += 1
        return "L_%s_%d" % (p, self.uid)

    def c(self, txt):
        self.lines.append("    ; " + txt)

    def raw(self, txt):
        self.lines.append(txt)

    def all(self, lst):
        for x in lst:
            self(x)

    def text(self):
        return "\n".join(self.lines) + "\n"


def srd(a, dst, ptr, off, size):
    if off:
        a("s_add_u32 %s, %s, %s" % (s(dst), s(ptr), hx(off)))
        a("s_addc_u32 %s, %s, 0" % (s(dst + 1), s(ptr + 1)))
    else:
        a("s_mov_b32 %s, %s" % (s(dst), s(ptr)))
        a("s_mov_b32 %s, %s" % (s(dst + 1), s(ptr + 1)))
    a("s_mov_b32 %s, %s" % (s(dst + 2), hx(size)))
    a("s_mov_b32 %s, 0x20000" % s(dst + 3))


def kernel_header(a, name):
    a.raw(".globl %s" % name)
    a.raw(".p2align 8")
    a.raw(".type %s,@function" % name)
    a.label(name)


def kernel_desc(name, vgpr, sgpr):
    acc = (vgpr + 3) // 4 * 4
    return "\n".join([
        ".p2align 6",
        ".amdhsa_kernel %s" % name,
        "  .amdhsa_next_free_vgpr %d" % vgpr,
        "  .amdhsa_next_free_sgpr %d" % sgpr,
        "  .amdhsa_accum_offset %d" % acc,
        "  .amdhsa_group_segment_fixed_size 0",
        "  .amdhsa_kernarg_size 88",
        "  .amdhsa_user_sgpr_count 2",
        "  .amdhsa_user_sgpr_kernarg_segment_ptr 1",
        "  .amdhsa_system_sgpr_workgroup_id_x 1",
        ".end_amdhsa_kernel",
    ]) + "\n"


NEG1 = " neg_lo:[0,1] neg_hi:[0,1]"


def mark(a, idx):
    if not STAMP:
        return
    lab = a.newlabel("nost")
    a("s_and_b32 s96, %s, 3" % s(sWAVE))
    a("s_cmp_lg_u32 s96, 0")
    a("s_cbranch_scc1 %s" % lab)
    a("s_memrealtime s[96:97]")
    a("s_memtime s[98:99]")
    a("s_waitcnt lgkmcnt(0)")
    a("v_mov_b32 v252, s96")
    a("v_mov_b32 v253, s98")
    a("s_lshl_b32 s96, s2, 8")
    a("s_lshl_b32 s97, %s, 5" % s(sWAVE))
    a("s_add_u32 s96, s96, s97")
    a("s_add_u32 s96, s96, %s" % hx(STAMP_OFF + idx * 8))
    a("v_mov_b32 v254, s96")
    a("buffer_store_dwordx2 v[252:253], v254, %s, 0 offen" % s(WS, 4))
    a.label(lab)


def interleave(a, main, fill, per=1, start=0):
    fi = 0
    for i, m in enumerate(main):
        a(m)
        if i >= start:
            for _ in range(per):
                if fi < len(fill):
                    a(fill[fi]); fi += 1
    while fi < len(fill):
        a(fill[fi]); fi += 1


def mfma(d, sa, sb, c=None):
    return "v_mfma_f32_16x16x32_bf16 %s, %s, %s, %s" % (v(d, 4), v(sa, 4), v(sb, 4), v(d, 4) if c is None else c)


def prologue(a, endlab):
    a("s_cmp_ge_u32 s2, 256")
    a("s_cbranch_scc1 %s" % endlab)
    if OPT.get("cpf", "1") == "1":
        a("s_getpc_b64 s[96:97]")
        a.label("L_pc")
        a("s_lshr_b32 s98, s2, 3")
        a("s_lshl_b32 s98, s98, 13")
        a("v_lshl_add_u32 v2, v0, 4, s98")
        a("v_cmp_gt_u32 vcc, L_end-L_pc, v2")
        a("s_and_saveexec_b64 s[98:99], vcc")
        a("s_cbranch_execz L_nocpf")
        a("global_load_dwordx4 v[244:247], v2, s[96:97]")
        a.label("L_nocpf")
        a("s_mov_b64 exec, -1")
    a("s_load_dwordx16 s[16:31], s[0:1], 0")
    a("s_load_dwordx4 s[32:35], s[0:1], 64")
    a("s_load_dwordx2 s[36:37], s[0:1], 80")
    a("v_lshrrev_b32 v1, 6, v0")
    a("v_and_b32 v3, 63, v0")
    a("s_and_b32 %s, s2, 7" % s(sXCD))
    a("s_lshr_b32 %s, s2, 3" % s(sLOC))
    a("v_readfirstlane_b32 %s, v1" % s(sWAVE))
    a("s_and_b32 s6, s4, 1"); a("s_lshl_b32 s6, s6, 3"); a("s_and_b32 s7, s5, 7"); a("s_add_u32 s6, s6, s7")
    a("s_lshr_b32 s7, s4, 1"); a("s_lshl_b32 s7, s7, 2"); a("s_lshr_b32 s8, s5, 3"); a("s_add_u32 s7, s7, s8")
    a("s_lshl_b32 s8, s4, 5"); a("s_add_u32 s8, s8, s5")
    a("s_mov_b32 s9, s6")
    a("s_lshr_b32 s11, s7, 3")
    a("s_and_b32 s10, s7, 7")
    a("s_mov_b32 %s, %s" % (s(sNL2E), hx(f32(-1.4426950408889634))))
    a("s_mov_b32 %s, %s" % (s(sNL2E + 1), hx(f32(-1.4426950408889634))))
    a("s_mov_b32 %s, 0xffff0000" % s(sHI))
    a("s_lshr_b32 s38, %s, 1" % s(sTAU))
    a("s_and_b32 s39, %s, 1" % s(sTAU))
    a("v_lshlrev_b32 v120, 18, v1")
    a("v_and_b32 v121, 31, v3")
    a("v_lshl_add_u32 v120, v121, 3, v120")
    a("v_lshrrev_b32 v121, 5, v3")
    a("v_lshl_add_u32 v120, v121, 9, v120")
    a("s_lshl_b32 s95, s38, 11")
    a("v_add_u32 v120, s95, v120")
    a("s_lshl_b32 s95, s39, 8")
    a("v_add_u32 v120, s95, v120")
    a("v_xor_b32 v121, 0x100, v120")
    a("s_waitcnt lgkmcnt(0)")
    srd(a, XS, 16, 0, 2048 * 1024 * 2)
    a("s_mov_b32 s95, 0x200000")
    for ri, B in enumerate(ROWB):
        for hh in range(2):
            for jj in range(2):
                a("buffer_load_dwordx2 %s, %s, %s, %s offen offset:%d" % (
                    v(B + 4 * hh + 2 * jj, 2), "v121" if hh else "v120", s(XS, 4), "s95" if ri else "0", 1024 * jj))
    srd(a, WS, 36, 0, WS_SZ)
    srd(a, W1, 28, 0, 1024 * 3584 * 2)
    srd(a, DR, 22, 0, 1024 * 1024 * 2)
    srd(a, DI, 24, 0, 1024 * 1024 * 2)
    srd(a, W2, 30, 0, 3584 * 1024 * 2)
    srd(a, CR, 18, 0, 2048 * 2048 * 2)
    srd(a, CI, 20, 0, 2048 * 2048 * 2)
    srd(a, OUT, 32, 0, 2048 * 1024 * 2)
    srd(a, DBG, 34, 0, 256)
    a("s_mov_b32 %s, s38" % s(sSP))
    a("s_mov_b32 %s, s39" % s(sHALF))
    a("s_lshl_b32 %s, %s, 4" % (s(sHF), s(sRB)))
    a("s_add_u32 %s, %s, %s" % (s(sHF), s(sHF), s(sCB)))
    a("s_lshr_b32 s95, %s, 3" % s(sHF))
    a("s_lshl_b32 s95, s95, 7")
    a("s_lshl_b32 %s, %s, 2" % (s(sHF), s(sCB8)))
    a("s_add_u32 %s, %s, s95" % (s(sHF), s(sHF)))
    a("s_add_u32 %s, %s, %s" % (s(sHF), s(sHF), hx(HF_OFF)))


ROWB = [32, 76]


def set_flag(a, val, only_wave, tv):
    lab = a.newlabel("nf")
    a("s_cmp_lg_u32 %s, %d" % (s(sWAVE), only_wave))
    a("s_cbranch_scc1 %s" % lab)
    a("v_mov_b32 %s, %d" % (v(tv), val))
    a("v_mov_b32 %s, s2" % v(tv + 1))
    a("s_mov_b64 exec, 1")
    a("buffer_store_byte %s, %s, %s, 0 offen sc1" % (v(tv), v(tv + 1), s(DBG, 4)))
    a("s_mov_b64 exec, -1")
    a.label(lab)


def flag_lines(a, val):
    lab = a.newlabel("nf")
    a("s_cmp_lg_u32 %s, 0" % s(sWAVE))
    a("s_cbranch_scc1 %s" % lab)
    a("v_mov_b32 v29, %d" % val)
    a("v_mov_b32 v30, s2")
    a("s_mov_b64 exec, 1")
    a("buffer_store_byte v29, v30, %s, 0 offen sc1" % s(DBG, 4))
    a("s_mov_b64 exec, -1")
    a("s_nop 3")
    a.label(lab)


def hflag_lines(a, val):
    lab = a.newlabel("nf")
    a("s_cmp_lg_u32 %s, 0" % s(sWAVE))
    a("s_cbranch_scc1 %s" % lab)
    a("v_mov_b32 v29, %d" % val)
    a("v_mov_b32 v30, %s" % s(sHF))
    a("s_mov_b64 exec, 1")
    a("buffer_store_dword v29, v30, %s, 0 offen sc1" % s(WS, 4))
    a("s_mov_b64 exec, -1")
    a("s_nop 3")
    a.label(lab)


def poll_issue(a, vdst, vaddr, srd_=DBG):
    a("buffer_load_dword %s, %s, %s, 0 offen sc1" % (v(vdst), v(vaddr), s(srd_, 4)))


def poll_check(a, vdst, vaddr, vneed, issued, srd_=DBG):
    top = a.newlabel("poll"); done = a.newlabel("pdone"); chk = a.newlabel("pchk")
    a("s_mov_b32 %s, 0" % s(T7))
    if issued:
        a("s_branch %s" % chk)
    a.label(top)
    poll_issue(a, vdst, vaddr, srd_)
    a("s_waitcnt vmcnt(0)")
    a.label(chk)
    a("v_and_b32 %s, %s, %s" % (v(vdst), v(vdst), v(vneed)))
    a("v_cmp_ne_u32 vcc, %s, %s" % (v(vdst), v(vneed)))
    a("s_add_u32 %s, %s, 1" % (s(T7), s(T7)))
    a("s_nop 3")
    a("s_cbranch_vccz %s" % done)
    a("s_sleep %s" % OPT.get("sleep", "4"))
    a("s_cmp_lt_u32 %s, %d" % (s(T7), SPIN_MAX))
    a("s_cbranch_scc1 %s" % top)
    a.label(done)


def prep_ln(a):
    a("v_lshlrev_b32 v122, 8, v1")
    a("v_and_b32 v123, 31, v3")
    a("v_lshl_add_u32 v122, v123, 3, v122")
    a("v_lshrrev_b32 v123, 5, v3")
    a("v_lshl_add_u32 v122, v123, 12, v122")
    a("v_add_u32 v122, %d, v122" % STG)
    a("s_and_b32 %s, %s, 15" % (s(T0), s(sSP)))
    a("s_lshl_b32 %s, %s, 7" % (s(T0), s(T0)))
    a("s_lshr_b32 %s, %s, 4" % (s(T1), s(sSP)))
    a("s_add_u32 %s, %s, %s" % (s(T0), s(T0), s(T1)))
    a("s_lshl_b32 %s, %s, 3" % (s(T1), s(sWAVE)))
    a("s_add_u32 %s, %s, %s" % (s(T0), s(T0), s(T1)))
    a("s_lshl_b32 %s, %s, 3" % (s(T0), s(T0)))
    a("s_add_u32 %s, %s, %s" % (s(T0), s(T0), hx(STAT_OFF)))
    a("v_mov_b32 v123, %s" % s(T0))
    streams = []
    for ri, B in enumerate(ROWB):
        RAW, X, T, M, R, D = B, B + 8, B + 24, B + 32, B + 34, B + 36
        S1, S2 = (T5, T6) if ri == 0 else (24, 25)
        L = []
        for p in range(8):
            L.append("v_lshlrev_b32 %s, 16, %s" % (v(X + 2 * p), v(RAW + p)))
            L.append("v_and_b32 %s, %s, %s" % (v(X + 2 * p + 1), s(sHI), v(RAW + p)))
        pk = lambda d, x, y, m="": L.append("v_pk_add_f32 %s, %s, %s%s" % (v(d, 2), v(x, 2), v(y, 2), m))

        def wsum(r, sd):
            for m in ("quad_perm:[1,0,3,2] row_mask:0xf", "quad_perm:[2,3,0,1] row_mask:0xf",
                      "row_half_mirror row_mask:0xf", "row_mirror row_mask:0xf",
                      "row_bcast:15 row_mask:0xa", "row_bcast:31 row_mask:0xc"):
                L.append("s_nop 0")
                L.append("v_add_f32_dpp %s, %s, %s %s bank_mask:0xf" % (v(r), v(r), v(r), m))
            L.append("s_nop 0")
            L.append("v_readlane_b32 %s, %s, 63" % (s(sd), v(r)))
            L.append("s_nop 0")
        pk(T, X, X + 2); pk(T + 2, X + 4, X + 6); pk(T + 4, X + 8, X + 10); pk(T + 6, X + 12, X + 14)
        pk(T, T, T + 2); pk(T + 4, T + 4, T + 6); pk(T, T, T + 4)
        L.append("v_add_f32 %s, %s, %s" % (v(T), v(T), v(T + 1)))
        wsum(T, S1)
        L.append("v_mov_b32 %s, %s" % (v(M), hx(f32(1.0 / 1024))))
        L.append("v_mul_f32 %s, %s, %s" % (v(M), s(S1), v(M)))
        for g4 in range(2):
            for p in range(4):
                pk(D + 2 * p, X + 8 * g4 + 2 * p, M, " op_sel_hi:[1,0]" + NEG1)
            for p in range(4):
                t = T + 2 * (p & 1)
                if g4 == 0 and p < 2:
                    L.append("v_pk_mul_f32 %s, %s, %s" % (v(t, 2), v(D + 2 * p, 2), v(D + 2 * p, 2)))
                else:
                    L.append("v_pk_fma_f32 %s, %s, %s, %s" % (v(t, 2), v(D + 2 * p, 2), v(D + 2 * p, 2), v(t, 2)))
        pk(T, T, T + 2)
        L.append("v_add_f32 %s, %s, %s" % (v(T), v(T), v(T + 1)))
        wsum(T, S2)
        L.append("v_mov_b32 %s, %s" % (v(R), hx(f32(1.0 / 1024))))
        L.append("v_mul_f32 %s, %s, %s" % (v(R), s(S2), v(R)))
        L.append("v_cvt_pk_bf16_f32 %s, %s, %s" % (v(R), v(R), v(R)))
        L.append("v_lshlrev_b32 %s, 16, %s" % (v(R), v(R)))
        L.append("v_add_f32 %s, %s, %s" % (v(R), hx(f32(1e-5)), v(R)))
        L.append("v_cvt_pk_bf16_f32 %s, %s, %s" % (v(R), v(R), v(R)))
        L.append("v_lshlrev_b32 %s, 16, %s" % (v(R), v(R)))
        L.append("v_sqrt_f32 %s, %s" % (v(R), v(R)))
        L.append("v_cvt_pk_bf16_f32 %s, %s, %s" % (v(M), v(M), v(M)))
        L.append("v_cvt_pk_bf16_f32 %s, %s, %s" % (v(R), v(R), v(R)))
        L.append("v_lshlrev_b32 %s, 16, %s" % (v(M), v(M)))
        L.append("v_lshlrev_b32 %s, 16, %s" % (v(R), v(R)))
        L.append("v_rcp_f32 %s, %s" % (v(R), v(R)))
        for p in range(4):
            pk(D + 2 * p, X + 2 * p, M, " op_sel_hi:[1,0]" + NEG1)
        L.append("v_mov_b32 %s, %s" % (v(M + 1), v(R)))
        for p in range(4):
            L.append("v_cvt_pk_bf16_f32 %s, %s, %s" % (v(T + p), v(D + 2 * p), v(D + 2 * p + 1)))
        for p in range(4):
            L.append("v_lshlrev_b32 %s, 16, %s" % (v(D + 2 * p), v(T + p)))
            L.append("v_and_b32 %s, %s, %s" % (v(D + 2 * p + 1), s(sHI), v(T + p)))
        for p in range(4):
            L.append("v_pk_mul_f32 %s, %s, %s op_sel_hi:[1,0]" % (v(D + 2 * p, 2), v(D + 2 * p, 2), v(R, 2)))
        for p in range(4):
            L.append("v_cvt_pk_bf16_f32 %s, %s, %s" % (v(T + p), v(D + 2 * p), v(D + 2 * p + 1)))
        for p in range(4):
            L.append("v_lshlrev_b32 %s, 16, %s" % (v(X + 2 * p), v(T + p)))
            L.append("v_and_b32 %s, %s, %s" % (v(X + 2 * p + 1), s(sHI), v(T + p)))
        pk(D, X, X + 4); pk(D + 2, X + 2, X + 6)
        pk(D + 4, X, X + 4, NEG1); pk(D + 6, X + 2, X + 6, NEG1)
        for p in range(4):
            L.append("v_cvt_pk_f16_f32 %s, %s, %s" % (v(T + p), v(D + 2 * p), v(D + 2 * p + 1)))
        for wh in range(2):
            L.append("ds_write_b64 v122, %s offset:%d" % (v(T + 2 * wh, 2), wh * 8192 + ri * 2048))
        streams.append(L)
    for x, y in zip(*streams):
        a(x); a(y)
    lab = a.newlabel("nostat")
    a("s_cmp_lg_u32 %s, 0" % s(sHALF))
    a("s_cbranch_scc1 %s" % lab)
    a("s_mov_b64 exec, 1")
    for ri, B in enumerate(ROWB):
        a("buffer_store_dwordx2 %s, v123, %s, 0 offen offset:%d%s" % (v(B + 32, 2), s(WS, 4), ri * 512, SC1))
    a("s_mov_b64 exec, -1")
    a.label(lab)


def prep_dft(a):
    a("s_lshr_b32 %s, %s, 1" % (s(T0), s(sWAVE)))
    a("s_lshl_b32 %s, %s, 13" % (s(T1), s(T0)))
    a("s_add_u32 %s, %s, %d" % (s(T1), s(T1), STG))
    a("v_lshlrev_b32 v122, 2, v3")
    a("v_add_u32 v122, %s, v122" % s(T1))
    IN = [32, 48]
    for ab in range(2):
        for j in range(8):
            a("ds_read2st64_b32 %s, v122 offset0:%d offset1:%d" % (v(IN[ab] + 2 * j, 2), ab * 16 + j, ab * 16 + j + 8))
    a("s_lshl_b32 %s, %s, 9" % (s(T1), s(sSP)))
    a("s_lshl_b32 %s, %s, 8" % (s(T2), s(sHALF)))
    a("s_add_u32 %s, %s, %s" % (s(T1), s(T1), s(T2)))
    a("s_lshl_b32 %s, %s, 17" % (s(T2), s(T0)))
    a("s_add_u32 %s, %s, %s" % (s(T1), s(T1), s(T2)))
    a("s_add_u32 %s, %s, %s" % (s(T1), s(T1), hx(CB_OFF)))
    a("v_lshlrev_b32 v123, 2, v3")
    a("v_add_u32 v123, %s, v123" % s(T1))
    for r_, val in ((C1, math.cos(math.pi / 8)), (C2, math.cos(math.pi / 4)), (C3, math.cos(3 * math.pi / 8))):
        a("s_mov_b32 %s, %s" % (s(r_), hx(f32(val))))
        a("s_mov_b32 %s, %s" % (s(r_ + 1), hx(f32(val))))
    odd = a.newlabel("dft_odd"); done = a.newlabel("dft_done")
    a("s_bitcmp1_b32 %s, 0" % s(sWAVE))
    a("s_cbranch_scc1 %s" % odd)
    for parity in range(2):
        if parity:
            a.label(odd)
        free = list(range(64, 120, 2))
        alloc = lambda: free.pop(0)

        def rel(*rs):
            free.extend(rs)

        def add(x, y):
            d = alloc(); a("v_pk_add_f32 %s, %s, %s" % (v(d, 2), v(x, 2), v(y, 2))); return d

        def sub(x, y):
            d = alloc(); a("v_pk_add_f32 %s, %s, %s%s" % (v(d, 2), v(x, 2), v(y, 2), NEG1)); return d

        def mul(x, c):
            d = alloc(); a("v_pk_mul_f32 %s, %s, %s" % (v(d, 2), v(x, 2), s(c, 2))); return d

        def fma(x, c, y, nx=False, ny=False):
            d = alloc()
            mod = " neg_lo:[%d,0,%d] neg_hi:[%d,0,%d]" % (nx, ny, nx, ny) if (nx or ny) else ""
            a("v_pk_fma_f32 %s, %s, %s, %s%s" % (v(d, 2), v(x, 2), s(c, 2), v(y, 2), mod)); return d

        def mix(r, neg):
            d = alloc()
            for h in range(2):
                a("v_fma_mix_f32 %s, %s, 1.0, %s%s op_sel:[%d,0,%d] op_sel_hi:[1,0,1]" % (v(d + h), v(r), "-" if neg else "", v(r + 1), h, h))
            rel(r)
            return d

        def dft(base):
            p = {}; q = {}
            if parity == 0:
                u = [mix(base + 2 * j, False) for j in range(8)]
                uu = []; uv = []
                for j in range(4):
                    uu.append(add(u[j], u[j + 4])); uv.append(sub(u[j], u[j + 4])); rel(u[j], u[j + 4])
                e0 = add(uu[0], uu[2]); e1 = add(uu[1], uu[3])
                p[4] = sub(uu[0], uu[2]); q[4] = sub(uu[1], uu[3]); rel(*uu)
                p[0] = add(e0, e1); p[8] = sub(e0, e1); rel(e0, e1)
                dm = sub(uv[1], uv[3]); dp = add(uv[1], uv[3])
                p[2] = fma(dm, C2, uv[0]); p[6] = fma(dm, C2, uv[0], nx=True)
                q[2] = fma(dp, C2, uv[2]); q[6] = fma(dp, C2, uv[2], ny=True)
                rel(dm, dp, *uv)
            else:
                w = [mix(base + 2 * j, True) for j in range(8)]
                aa = {}; bb = {}
                for j in (1, 2, 3):
                    aa[j] = sub(w[j], w[8 - j]); bb[j] = add(w[j], w[8 - j]); rel(w[j], w[8 - j])
                Ap = fma(aa[2], C2, w[0]); Am = fma(aa[2], C2, w[0], nx=True); rel(aa[2], w[0])
                t = mul(aa[1], C1); G1 = fma(aa[3], C3, t); rel(t)
                t = mul(aa[1], C3); G3 = fma(aa[3], C1, t, nx=True); rel(t, aa[1], aa[3])
                p[1] = add(Ap, G1); p[7] = sub(Ap, G1); p[3] = add(Am, G3); p[5] = sub(Am, G3); rel(Ap, Am, G1, G3)
                Bp = fma(bb[2], C2, w[4]); B3 = fma(bb[2], C2, w[4], ny=True); rel(bb[2], w[4])
                t = mul(bb[1], C3); H1 = fma(bb[3], C1, t); rel(t)
                t = mul(bb[1], C1); H3 = fma(bb[3], C3, t, nx=True); rel(t, bb[1], bb[3])
                q[1] = add(H1, Bp); q[7] = sub(H1, Bp); q[3] = add(H3, B3); q[5] = sub(H3, B3); rel(Bp, B3, H1, H3)
            return p, q

        a("s_waitcnt lgkmcnt(0)")
        pa, qa = dft(IN[0])
        pb, qb = dft(IN[1])
        tmpd = []
        for _ in range(4):
            r_ = alloc(); tmpd += [r_, r_ + 1]
        t2 = [alloc(), alloc()]
        cnt = [0]

        def st(reg, arr):
            d = tmpd[cnt[0] % len(tmpd)]; cnt[0] += 1
            a("v_cvt_pk_bf16_f32 %s, %s, %s" % (v(d), v(reg), v(reg + 1)))
            a("s_mov_b32 %s, %s" % (s(T1), hx(arr * 65536)))
            a("buffer_store_dword %s, v123, %s, %s offen%s" % (v(d), s(WS, 4), s(T1), SC1))

        rs = [2, 4, 6] if parity == 0 else [1, 3, 5, 7]
        p1 = a.newlabel("dft_p1")
        a("s_cmp_ge_u32 %s, 2" % s(sWAVE))
        a("s_cbranch_scc1 %s" % p1)
        def comb(x, y, arr1, arr2):
            a("v_pk_add_f32 %s, %s, %s" % (v(t2[0], 2), v(x, 2), v(y, 2)))
            a("v_pk_add_f32 %s, %s, %s%s" % (v(t2[1], 2), v(x, 2), v(y, 2), NEG1))
            st(t2[0], arr1); st(t2[1], arr2)
        if parity == 0:
            comb(pa[0], pb[0], 0, 4); comb(pa[8], pb[8], 1, 5)
        for r_ in rs:
            comb(pa[r_], pb[r_], r_ * 8, r_ * 8 + 4); comb(qa[r_], qb[r_], r_ * 8 + 1, r_ * 8 + 5)
        a("s_branch %s" % done)
        a.label(p1)
        if parity == 0:
            st(pa[0], 0); st(pb[0], 1); st(pa[8], 4); st(pb[8], 5)
        for r_ in rs:
            a("v_pk_add_f32 %s, %s, %s%s" % (v(t2[0], 2), v(pa[r_], 2), v(qb[r_], 2), NEG1))
            a("v_pk_add_f32 %s, %s, %s" % (v(t2[1], 2), v(qa[r_], 2), v(pb[r_], 2)))
            st(t2[0], r_ * 8); st(t2[1], r_ * 8 + 1)
            a("v_pk_add_f32 %s, %s, %s" % (v(t2[0], 2), v(pa[r_], 2), v(qb[r_], 2)))
            a("v_pk_add_f32 %s, %s, %s%s" % (v(t2[1], 2), v(qa[r_], 2), v(pb[r_], 2), NEG1))
            st(t2[0], r_ * 8 + 4); st(t2[1], r_ * 8 + 5)
        if parity == 0:
            a("s_branch %s" % done)
    a.label(done)


def rowimg_frag_addr(a, dst0, dst1, rowbase_sgpr):
    a("v_and_b32 %s, 15, v3" % v(dst0))
    a("v_lshlrev_b32 %s, 7, %s" % (v(dst0), v(dst0)))
    a("v_lshrrev_b32 %s, 4, v3" % v(dst1))
    a("v_bfe_u32 v2, v3, 1, 3")
    a("v_xor_b32 %s, %s, v2" % (v(dst1), v(dst1)))
    a("v_lshl_add_u32 %s, %s, 4, %s" % (v(dst0), v(dst1), v(dst0)))
    a("v_add_u32 %s, %s, %s" % (v(dst0), s(rowbase_sgpr), v(dst0)))
    a("v_xor_b32 %s, 64, %s" % (v(dst1), v(dst0)))


def silu_tail(a, regs, tmp):
    for t in tmp:
        a("v_exp_f32 %s, %s" % (v(t), v(t)))
        a("v_exp_f32 %s, %s" % (v(t + 1), v(t + 1)))
    for t in tmp:
        a("v_pk_add_f32 %s, %s, 1.0 op_sel_hi:[1,0]" % (v(t, 2), v(t, 2)))
    for t in tmp:
        a("v_rcp_f32 %s, %s" % (v(t), v(t)))
        a("v_rcp_f32 %s, %s" % (v(t + 1), v(t + 1)))
    for r_, t in zip(regs, tmp):
        a("v_pk_mul_f32 %s, %s, %s" % (v(r_, 2), v(r_, 2), v(t, 2)))


def silu_pk(a, regs, tmp):
    for r_, t in zip(regs, tmp):
        a("v_pk_mul_f32 %s, %s, %s" % (v(t, 2), v(r_, 2), s(sNL2E, 2)))
    silu_tail(a, regs, tmp)


ACC1 = 128
vM0, vM1, vNa, vNb, vNc = 4, 5, 6, 7, 8
cM0, cM1, cNa, cNb, cNc = 9, 10, 11, 12, 13
vZ0, vZ1 = 14, 15


def compute_setup(a):
    a("s_lshr_b32 %s, %s, 1" % (s(sWM), s(sWAVE)))
    a("s_and_b32 %s, %s, 1" % (s(sWN), s(sWAVE)))
    a("s_lshl_b32 %s, s2, 15" % s(T0))
    a("s_lshl_b32 %s, %s, 13" % (s(T1), s(sWAVE)))
    a("s_add_u32 %s, %s, %s" % (s(T0), s(T0), s(T1)))
    a("s_add_u32 %s, %s, %s" % (s(T0), s(T0), hx(EX_OFF)))
    a("v_lshlrev_b32 v24, 4, v3")
    a("v_add_u32 v24, %s, v24" % s(T0))
    a("v_add_u32 v25, 4096, v24")
    a("s_lshl_b32 %s, %s, 13" % (s(T0), s(sWM)))
    rowimg_frag_addr(a, vM0, vM1, T0)
    a("s_lshl_b32 %s, %s, 13" % (s(T0), s(sWN)))
    a("s_add_u32 %s, %s, 16384" % (s(T0), s(T0)))
    rowimg_frag_addr(a, vZ0, vZ1, T0)
    a("v_lshrrev_b32 v18, 4, v3")
    a("v_bfe_u32 v17, v3, 2, 2")
    a("v_lshl_add_u32 v17, v18, 3, v17")
    a("v_mul_u32_u24 v17, 448, v17")
    a("v_and_b32 v19, 3, v3")
    a("v_lshl_add_u32 v17, v19, 3, v17")
    a("v_and_b32 v19, 1, v18")
    a("v_lshlrev_b32 v19, 5, v19")
    a("s_lshl_b32 %s, %s, 6" % (s(T0), s(sWN)))
    a("s_add_u32 %s, %s, 16384" % (s(T0), s(T0)))
    a("v_add_u32 v20, %s, v17" % s(T0))
    a("v_add_u32 %s, v20, v19" % v(vNa))
    a("v_sub_u32 %s, v20, v19" % v(vNb))
    a("s_lshl_b32 %s, %s, 5" % (s(T0), s(sWN)))
    a("v_xor_b32 v20, %s, v19" % s(T0))
    a("v_add_u32 v20, v20, v17")
    a("v_add_u32 %s, %d, v20" % (v(vNc), 16384 + 384))
    a("v_and_b32 v21, 1, v18")
    a("v_lshlrev_b32 v21, 5, v21")
    a("v_lshrrev_b32 v19, 1, v18")
    a("v_lshl_add_u32 v21, v19, 4, v21")
    a("s_lshl_b32 %s, %s, 4" % (s(T0), s(sRB)))
    a("s_add_u32 %s, %s, %s" % (s(T0), s(T0), s(sCB)))
    a("s_mul_i32 %s, %s, 49152" % (s(T1), s(T0)))
    a("s_lshl_b32 %s, %s, 13" % (s(T2), s(sWN)))
    a("s_add_u32 %s, %s, %s" % (s(T1), s(T1), s(T2)))
    a("s_lshl_b32 %s, %s, 12" % (s(T2), s(sWM)))
    a("s_add_u32 %s, %s, %s" % (s(T1), s(T1), s(T2)))
    a("s_add_u32 %s, %s, %s" % (s(T1), s(T1), hx(HR_OFF)))
    a("v_and_b32 v22, 15, v3")
    a("v_lshl_add_u32 v17, v22, 6, v21")
    a("v_add_u32 v17, %s, v17" % s(T1))
    a("s_lshl_b32 %s, %s, 13" % (s(T1), s(T0)))
    a("s_lshl_b32 %s, %s, 12" % (s(T2), s(sWN)))
    a("s_add_u32 %s, %s, %s" % (s(T1), s(T1), s(T2)))
    a("s_lshl_b32 %s, %s, 11" % (s(T2), s(sWM)))
    a("s_add_u32 %s, %s, %s" % (s(T1), s(T1), s(T2)))
    a("s_add_u32 %s, %s, %s" % (s(T1), s(T1), hx(HL_OFF)))
    a("v_and_b32 v20, 1, v18")
    a("v_lshl_add_u32 v20, v20, 4, v22")
    a("v_lshlrev_b32 v20, 5, v20")
    a("v_lshl_add_u32 v20, v19, 4, v20")
    a("v_add_u32 v20, %s, v20" % s(T1))
    a("s_lshl_b32 %s, %s, 7" % (s(T1), s(sWN)))
    a("s_add_u32 %s, %s, %d" % (s(T1), s(T1), CSB))
    a("v_lshlrev_b32 v26, 4, v18")
    a("v_add_u32 v26, %s, v26" % s(T1))
    a("s_lshl_b32 %s, %s, 6" % (s(T1), s(sWN)))
    a("s_add_u32 %s, %s, %d" % (s(T1), s(T1), CSB + 768))
    a("v_lshlrev_b32 v27, 4, v18")
    a("v_add_u32 v27, %s, v27" % s(T1))
    a("s_lshl_b32 %s, %s, 9" % (s(T1), s(sWM)))
    a("s_add_u32 %s, %s, %d" % (s(T1), s(T1), STB))
    a("v_lshlrev_b32 v28, 3, v22")
    a("v_add_u32 v28, %s, v28" % s(T1))
    for i in range(112):
        a("v_mov_b32 %s, 0" % v(ACC1 + i))
    a("s_mov_b32 %s, 0" % s(sSLOT))


def compute_g1_s1(a):
    ACC = ACC1
    FR = [32, 76]
    cZ0, cZ1 = cNa, cNb

    def set_addr(lst):
        return ["v_add_u32 %s, %s, %s" % (v(c), s(sSLOT), v(b)) for c, b in lst]

    def next_slot():
        return ["s_add_u32 s14, s14, %d" % G1SLOT, "s_cmp_eq_u32 s14, %d" % (G1SLOT * 3), "s_cselect_b32 s14, 0, s14"]

    G1A = [(cM0, vM0), (cM1, vM1), (cNa, vNa), (cNb, vNb), (cNc, vNc)]

    def s1_addr(k):
        return ["v_add_u32 %s, %s, %s" % (v(c), hx(S1SLOTS[k]), v(b)) for c, b in
                [(cM0, vM0), (cM1, vM1), (cZ0, vZ0), (cZ1, vZ1)]]

    def g1_reads(fs, ks):
        r = []
        for nt in range(7):
            ad = cNc if nt == 6 else (cNb if nt & 1 else cNa)
            off = 0 if nt == 6 else 128 * (nt >> 1) + 32 * (nt & 1)
            for h in range(2):
                r.append("ds_read_b64_tr_b16 %s, %s offset:%d" % (
                    v(FR[fs] + 16 + 4 * nt + 2 * h, 2), v(ad), ks * 14336 + h * 1792 + off))
            if nt < 4:
                r.append("ds_read_b128 %s, %s offset:%d" % (v(FR[fs] + 4 * nt, 4), v(cM1 if ks else cM0), nt * 2048))
        return r

    def g1_mfmas(fs):
        return [mfma(ACC + 4 * (nt * 4 + mt), FR[fs] + 16 + 4 * nt, FR[fs] + 4 * mt) for nt in range(7) for mt in range(4)]

    def g1_iter(extra_b=(), pre_bar=(), tail=(), flag=None):
        interleave(a, g1_mfmas(0), g1_reads(1, 1) + next_slot() + set_addr(G1A))
        a("s_waitcnt lgkmcnt(0)")
        a.all(pre_bar)
        a("s_barrier")
        if flag is not None:
            flag_lines(a, flag)
        interleave(a, g1_mfmas(1), g1_reads(0, 0) + list(extra_b))
        a("s_waitcnt lgkmcnt(0)")
        a.all(tail)

    def g1_loop(n):
        a("s_mov_b32 %s, 0" % s(sCNT))
        loop = a.newlabel("g1_loop")
        a.raw(".p2align 6")
        a.label(loop)
        g1_iter(["s_add_u32 s15, s15, 1", "s_cmp_lt_u32 s15, %d" % n], tail=["s_cbranch_scc1 %s" % loop])

    a.all(set_addr(G1A))
    mark(a, 3)
    a("s_barrier")
    mark(a, 4)
    a.all(g1_reads(0, 0))
    a("s_waitcnt lgkmcnt(0)")
    if STAMP:
        g1_loop(3)
        mark(a, 15)
        g1_loop(2)
    else:
        g1_loop(5)
    g1_iter(pre_bar=["s_waitcnt vmcnt(0)"], flag=1)
    if STAMP:
        mark(a, 2)
        g1_loop(3)
        mark(a, 1)
        g1_loop(3)
        mark(a, 0)
        g1_loop(3)
    else:
        g1_loop(9)
    interleave(a, g1_mfmas(0), g1_reads(1, 1) + s1_addr(0))
    a("s_waitcnt lgkmcnt(0)")
    a("s_barrier")
    CSR, STR = 32, 60
    rd = ["ds_read_b128 %s, v26 offset:%d" % (v(CSR + 4 * nt, 4), 256 * (nt >> 1) + 64 * (nt & 1)) for nt in range(6)]
    rd.append("ds_read_b128 %s, v27" % v(CSR + 24, 4))
    rd += ["ds_read_b64 %s, v28 offset:%d" % (v(STR + 2 * mt, 2), 128 * mt) for mt in range(4)]
    interleave(a, g1_mfmas(1), rd)
    mark(a, 5)
    a("s_waitcnt lgkmcnt(0)")
    RL = 68
    for mt in range(4):
        a("v_rcp_f32 %s, %s" % (v(RL + 2 * mt + 1), v(STR + 2 * mt + 1)))
        a("v_mul_f32 %s, %s, %s" % (v(RL + 2 * mt), s(sNL2E), v(STR + 2 * mt + 1)))
    TMP = 76
    PK = [88, 92, 96, 100, 104, 108, 112, 116]
    for pr in range(3):
        a("s_mov_b32 %s, %d" % (s(T0 + pr), pr * 16384))
    pki = 0
    groups = [[(mt, 2 * pr), (mt, 2 * pr + 1)] for mt in range(4) for pr in range(3)]
    groups.insert(6, [(0, 6), (1, 6)]); groups.append([(2, 6), (3, 6)])
    for gr in groups:
        regs = []; cs = []; mts = []
        for mt, nt in gr:
            b = ACC + 4 * (nt * 4 + mt)
            regs += [b, b + 2]; cs += [CSR + 4 * nt, CSR + 4 * nt + 2]; mts += [mt, mt]
        tmp = [TMP + 2 * i for i in range(4)]
        for r_, c_, mt in zip(regs, cs, mts):
            a("v_pk_fma_f32 %s, %s, %s, %s op_sel_hi:[1,0,1] neg_lo:[0,1,0] neg_hi:[0,1,0]" % (v(r_, 2), v(c_, 2), v(STR + 2 * mt, 2), v(r_, 2)))
        for r_, t, mt in zip(regs, tmp, mts):
            a("v_pk_mul_f32 %s, %s, %s op_sel_hi:[1,0]" % (v(t, 2), v(r_, 2), v(RL + 2 * mt, 2)))
        for t_ in tmp:
            a("v_exp_f32 %s, %s" % (v(t_), v(t_)))
            a("v_exp_f32 %s, %s" % (v(t_ + 1), v(t_ + 1)))
        for t_, mt in zip(tmp, mts):
            a("v_pk_fma_f32 %s, %s, %s, %s op_sel:[0,1,1]" % (v(t_, 2), v(t_, 2), v(RL + 2 * mt, 2), v(RL + 2 * mt, 2)))
        for t_ in tmp:
            a("v_rcp_f32 %s, %s" % (v(t_), v(t_)))
            a("v_rcp_f32 %s, %s" % (v(t_ + 1), v(t_ + 1)))
        for r_, t_ in zip(regs, tmp):
            a("v_pk_mul_f32 %s, %s, %s" % (v(r_, 2), v(r_, 2), v(t_, 2)))
        P = PK[pki % len(PK)]; pki += 1
        for i, r_ in enumerate(regs):
            a("v_cvt_pk_bf16_f32 %s, %s, %s" % (v(P + i), v(r_), v(r_ + 1)))
        a("s_nop 1")
        a("v_permlane16_swap_b32 %s, %s" % (v(P), v(P + 2)))
        a("v_permlane16_swap_b32 %s, %s" % (v(P + 1), v(P + 3)))
        mt, nt = gr[0]
        if nt < 6:
            a("buffer_store_dwordx4 %s, v17, %s, %s offen offset:%d%s" % (v(P, 4), s(WS, 4), s(T0 + nt // 2), mt * 1024, SC1))
        else:
            a("buffer_store_dwordx4 %s, v20, %s, 0 offen offset:%d%s" % (v(P, 4), s(WS, 4), (mt // 2) * 1024, SC1))
    mark(a, 6)

    def s1_reads(fs, ks):
        r = []
        for t in range(4):
            r.append("ds_read_b128 %s, %s offset:%d" % (v(FR[fs] + 4 * t, 4), v(cM1 if ks else cM0), t * 2048))
            r.append("ds_read_b128 %s, %s offset:%d" % (v(FR[fs] + 16 + 4 * t, 4), v(cZ1 if ks else cZ0), t * 2048))
        return r

    def s1_mfmas(fs, first):
        return [mfma(ACC + 4 * (mt * 4 + nt), FR[fs] + 4 * mt, FR[fs] + 16 + 4 * nt, "0" if first else None)
                for mt in range(4) for nt in range(4)]

    HF = int(OPT.get("hf", "-1"))
    if HF == -1:
        a("s_waitcnt vmcnt(0)")
    a("s_barrier")
    if HF == -1:
        hflag_lines(a, 1)
    a.all(s1_reads(0, 0))
    a("s_lshr_b32 %s, %s, 3" % (s(T0), s(sTAU)))
    a("s_and_b32 %s, %s, 3" % (s(T1), s(T0)))
    a("s_cmp_eq_u32 %s, 3" % s(T0))
    a("s_cselect_b32 %s, 1, %s" % (s(T1), s(T1)))
    a("s_lshr_b32 %s, %s, 2" % (s(T2), s(T0)))
    a("s_cmp_eq_u32 %s, 3" % s(T0))
    a("s_cselect_b32 %s, 8, %s" % (s(T2), s(T2)))
    a("s_lshl_b32 %s, %s, 19" % (s(T2), s(T2)))
    a("s_bfe_u32 %s, %s, 0x20001" % (s(T3), s(sTAU)))
    a("s_lshl_b32 %s, %s, 6" % (s(T3), s(T3)))
    a("s_lshl_b32 %s, %s, 5" % (s(T4), s(sWN)))
    a("s_add_u32 %s, %s, %s" % (s(T3), s(T3), s(T4)))
    a("v_and_b32 v17, 15, v3")
    a("v_add_u32 v17, %s, v17" % s(T3))
    a("v_sub_u32 v22, %d, v17" % (3 * 256 + 239))
    a("s_lshl_b32 %s, %s, 8" % (s(T1), s(T1)))
    a("v_add_u32 v17, %s, v17" % s(T1))
    a("s_and_b32 %s, %s, 1" % (s(T3), s(sTAU)))
    a("s_lshl_b32 %s, %s, 1" % (s(T3), s(T3)))
    a("s_add_u32 %s, %s, %s" % (s(T3), s(T3), s(sWM)))
    a("s_lshl_b32 %s, %s, 16" % (s(T3), s(T3)))
    a("s_add_u32 %s, %s, %s" % (s(T3), s(T3), hx(ZT_OFF)))
    a("v_add_u32 v23, %s, v21" % s(T3))
    a("v_lshl_add_u32 v17, v17, 6, v23")
    a("v_lshl_add_u32 v22, v22, 6, v23")
    a("s_waitcnt lgkmcnt(0)")
    for k in range(4):
        interleave(a, s1_mfmas(0, k == 0), s1_reads(1, 1) + (s1_addr(k + 1) if k < 3 else []))
        a("s_waitcnt lgkmcnt(0)")
        interleave(a, s1_mfmas(1, False), s1_reads(0, 0) if k < 3 else [])
        if k < 3:
            a("s_waitcnt lgkmcnt(0)")
        if k == HF:
            a("s_waitcnt vmcnt(0)")
            a("s_barrier")
            hflag_lines(a, 1)
    mark(a, 7)
    a("s_barrier")
    mark(a, 8)
    a("s_nop 7")
    TMP = 32
    PK = [56, 60, 64, 68, 72, 76, 80, 84]
    typeB = a.newlabel("s1_typeB"); done = a.newlabel("s1_done")
    a("s_and_b32 %s, %s, 29" % (s(T3), s(T0)))
    a("s_cmp_eq_u32 %s, 0" % s(T3))
    a("s_cbranch_scc1 %s" % typeB)
    tile = lambda m, n: ACC + 4 * (m * 4 + n)
    pki = 0
    for n in range(2):
        for uv in range(2):
            P = PK[pki]; pki += 1
            for m in range(2):
                for h in range(2):
                    if uv == 0:
                        a("v_pk_add_f32 %s, %s, %s" % (v(TMP + 2 * h, 2), v(tile(m, n) + 2 * h, 2), v(tile(m + 2, n + 2) + 2 * h, 2)))
                    else:
                        a("v_pk_add_f32 %s, %s, %s%s" % (v(TMP + 2 * h, 2), v(tile(m + 2, n) + 2 * h, 2), v(tile(m, n + 2) + 2 * h, 2), NEG1))
                for h in range(2):
                    a("v_cvt_pk_bf16_f32 %s, %s, %s" % (v(P + 2 * m + h), v(TMP + 2 * h), v(TMP + 2 * h + 1)))
            a("s_add_u32 %s, %s, %d" % (s(T3), s(T2), n * 1024 + uv * 262144))
            a("s_nop 0")
            a("v_permlane16_swap_b32 %s, %s" % (v(P), v(P + 2)))
            a("v_permlane16_swap_b32 %s, %s" % (v(P + 1), v(P + 3)))
            a("buffer_store_dwordx4 %s, v17, %s, %s offen%s" % (v(P, 4), s(WS, 4), s(T3), SC1))
    a("s_cmp_ge_u32 %s, 4" % s(T0))
    a("s_cbranch_scc1 %s" % done)
    a("s_mov_b32 %s, 0x80008000" % s(T4))
    pki = 0
    for n in range(2):
        for uv in range(2):
            P = PK[pki]; pki += 1
            a("s_add_u32 %s, %s, %d" % (s(T3), s(T2), (1 - n) * 1024 + uv * 262144))
            if uv:
                Q = PK[4 + n]
                for i in range(4):
                    a("v_xor_b32 %s, %s, %s" % (v(Q + i), s(T4), v(P + i)))
                P = Q
            a("buffer_store_dwordx4 %s, v22, %s, %s offen%s" % (v(P, 4), s(WS, 4), s(T3), SC1))
    a("s_branch %s" % done)
    a.label(typeB)
    pki = 0
    for n in range(2):
        for half in range(2):
            for uv in range(2):
                P = PK[pki]; pki += 1
                sg = "-" if uv else ""
                for m in range(2):
                    t = tile(m + 2 * half, n + 2 * uv)
                    for h in range(2):
                        a("v_cvt_pk_bf16_f32 %s, %s%s, %s%s" % (v(P + 2 * m + h), sg, v(t + 2 * h), sg, v(t + 2 * h + 1)))
                a("s_mov_b32 %s, %d" % (s(T3), half * 8 * 524288 + n * 1024 + uv * 262144))
                a("s_nop 0")
                a("v_permlane16_swap_b32 %s, %s" % (v(P), v(P + 2)))
                a("v_permlane16_swap_b32 %s, %s" % (v(P + 1), v(P + 3)))
                a("buffer_store_dwordx4 %s, v17, %s, %s offen%s" % (v(P, 4), s(WS, 4), s(T3), SC1))
    a.label(done)
    mark(a, 9)


def dma(a, ldsoff, vaddr, srd_, soff, coh=False):
    a("s_add_u32 m0, %s, %d" % (s(sSLOT), ldsoff))
    a("s_nop 0")
    a("buffer_load_dwordx4 %s, %s, %s offen%s lds" % (v(vaddr), s(srd_, 4), s(soff), SC1 if coh else ""))


LVA, LVB, LVC, LVD = 8, 12, 20, 24
CSD = 128


def g1_issue(a):
    for i in range(4):
        dma(a, i * 4096, LVA + i, XS, sKA)
    for i in range(7):
        dma(a, 16384 + i * 4096, LVB + i, W1, sKB)
    a("s_add_u32 %s, %s, 128" % (s(sKA), s(sKA)))
    a("s_add_u32 %s, %s, %d" % (s(sKB), s(sKB), 64 * 7168))
    a("s_add_u32 s14, s14, %d" % G1SLOT)
    a("s_cmp_eq_u32 s14, %s" % s(sWRAP))
    a("s_cselect_b32 s14, %s, s14" % s(sSL0))


def loader_setup(a):
    a("s_sub_u32 %s, %s, 4" % (s(sL), s(sWAVE)))
    a("s_and_b32 %s, %s, 1" % (s(T0), s(sL)))
    a("s_lshl_b32 %s, %s, 2" % (s(T0), s(T0)))
    a("v_lshrrev_b32 v4, 4, v3")
    a("v_add_u32 v4, %s, v4" % s(T0))
    a("v_and_b32 v5, 7, v3")
    a("v_xor_b32 v4, v4, v5")
    a("v_lshlrev_b32 v4, 4, v4")
    a("v_lshrrev_b32 v5, 3, v3")
    a("s_lshl_b32 %s, %s, 3" % (s(T0), s(sL)))
    a("v_add_u32 v5, %s, v5" % s(T0))
    a("v_lshlrev_b32 v30, 2, v3")
    a("s_lshl_b32 %s, %s, 10" % (s(sSL0), s(sL)))
    a("s_lshl_b32 %s, %s, 11" % (s(T0), s(sRB)))
    a("v_lshl_add_u32 v6, v5, 15, v4")
    a("v_add_u32 v6, %s, v6" % s(T0))
    for i in range(4):
        a("v_add_u32 %s, %s, v6" % (v(LVA + i), hx(i * 32 * 32768)))
    a("s_lshl_b32 %s, %s, 6" % (s(T0), s(sL)))
    a("v_add_u32 v6, %s, v3" % s(T0))
    a("s_mul_i32 %s, %s, 448" % (s(T1), s(sCB)))
    for i in range(7):
        a("v_add_u32 v7, %d, v6" % (256 * i))
        a("v_mul_u32_u24 v28, 2341, v7")
        a("v_lshrrev_b32 v28, 16, v28")
        a("v_mul_u32_u24 v29, 28, v28")
        a("v_sub_u32 v29, v7, v29")
        a("v_bfe_u32 v31, v28, 3, 1")
        a("v_lshlrev_b32 v31, 1, v31")
        a("v_xor_b32 v29, v29, v31")
        a("v_mul_u32_u24 v28, 7168, v28")
        a("v_lshl_add_u32 v28, v29, 4, v28")
        a("v_add_u32 %s, %s, v28" % (v(LVB + i), s(T1)))
    a("s_mov_b32 %s, %s" % (s(sSLOT), s(sSL0)))
    a("s_add_u32 %s, %s, %d" % (s(sWRAP), s(sSL0), G1SLOT * 3))
    a("s_mov_b32 %s, 0" % s(sKA))
    a("s_mov_b32 %s, 0" % s(sKB))
    a("v_and_b32 v6, 31, v3")
    a("v_lshrrev_b32 v7, 5, v3")
    a("v_mul_u32_u24 v7, 7168, v7")
    a("v_lshl_add_u32 v7, v6, 4, v7")
    a("s_xor_b32 %s, %s, %s" % (s(T0), s(sRB), OPT.get("csx", "0")))
    a("s_lshl_b32 %s, %s, 6" % (s(T0), s(T0)))
    a("s_lshl_b32 %s, %s, 4" % (s(T2), s(sL)))
    a("s_add_u32 %s, %s, %s" % (s(T0), s(T0), s(T2)))
    a("s_mul_i32 %s, %s, 7168" % (s(T0), s(T0)))
    a("s_add_u32 %s, %s, %s" % (s(T0), s(T0), s(T1)))
    a("v_add_u32 v7, %s, v7" % s(T0))
    a("v_cmp_gt_u32 vcc, 28, v6")
    a("v_mov_b32 v28, 0x7f000000")
    a("s_nop 0")
    a("v_cndmask_b32 v7, v28, v7, vcc")
    g1_issue(a)
    for i in range(8):
        a("s_mov_b32 %s, %d" % (s(T0), i * 2 * 7168))
        a("buffer_load_dwordx4 %s, v7, %s, %s offen" % (v(CSD + 4 * i, 4), s(W1, 4), s(T0)))
    for _ in range(int(OPT.get("early", "1")) - 1):
        g1_issue(a)
    pf_addr(a)


def pf_addr(a):
    a("s_lshl_b32 %s, s2, 2" % s(T0))
    a("s_add_u32 %s, %s, %s" % (s(T0), s(T0), s(sL)))
    a("s_mul_i32 %s, %s, 7168" % (s(T1), s(T0)))
    a("v_lshlrev_b32 v124, 4, v3")
    a("v_add_u32 v124, %s, v124" % s(T1))
    a("v_add_u32 v125, 4096, v124")
    a("s_lshr_b32 %s, %s, 1" % (s(T2), s(T0)))
    a("v_lshrrev_b32 v126, 5, v3"); a("v_lshlrev_b32 v126, 11, v126"); a("v_and_b32 v127, 31, v3"); a("v_lshl_add_u32 v126, v127, 4, v126")
    a("s_lshl_b32 %s, %s, 12" % (s(T3), s(T2))); a("v_add_u32 v126, %s, v126" % s(T3))
    a("v_lshrrev_b32 v127, 4, v3"); a("v_lshlrev_b32 v127, 12, v127"); a("v_and_b32 v2, 15, v3"); a("v_lshl_add_u32 v127, v2, 4, v127")
    a("s_lshl_b32 %s, %s, 14" % (s(T3), s(T2))); a("v_add_u32 v127, %s, v127" % s(T3))


def pf_pair(a, vaddr, sre, sim):
    l2 = a.newlabel("pf2"); l3 = a.newlabel("pf3")
    a("s_bitcmp1_b32 %s, 0" % s(sWAVE))
    a("s_cbranch_scc1 %s" % l2)
    a("buffer_load_dwordx4 v[244:247], %s, %s, 0 offen" % (v(vaddr), s(sre, 4)))
    a("s_branch %s" % l3)
    a.label(l2)
    a("buffer_load_dwordx4 v[244:247], %s, %s, 0 offen" % (v(vaddr), s(sim, 4)))
    a.label(l3)


def loader_g1_s1(a):
    AC = CSD + 32
    PFS = OPT.get("pf", "s") == "s"
    PFK = 99 if PFS else int(OPT.get("pf", "-1"))
    EARLY = int(OPT.get("early", "1"))
    q = ["g0"] * 11 + ["csl"] * 8 + [x for i in range(1, EARLY) for x in ["g%d" % i] * 11]

    def issue(st):
        g1_issue(a); q.extend(["g%d" % st] * 11)

    def need(*tags):
        idx = max(i for i, x in enumerate(q) if x in tags)
        n = len(q) - idx - 1
        del q[:idx + 1]
        return n

    def bar(*tags, lg=False):
        n = need(*tags)
        a("s_waitcnt vmcnt(%d)%s" % (n, " lgkmcnt(0)" if lg else ""))
        a("s_barrier")

    def prefetch():
        a.c("warm the memory-side cache with this wave's share of w2 and of the C slices")
        for i in range(7):
            a("buffer_load_dwordx4 v[244:247], %s, %s, 0 offen offset:%d" % ("v125" if i >= 4 else "v124", s(W2, 4), (i & 3) * 1024))
        pf_pair(a, 127, CR, CI)
        q.extend(["pf"] * 8)

    def cs_chunk(rng):
        for i in rng:
            for d in range(4):
                src = CSD + 4 * i + d
                t_ = AC + 2 * d if i == 0 else AC + 8 + 2 * d
                a("v_lshlrev_b32 %s, 16, %s" % (v(t_), v(src)))
                a("v_and_b32 %s, %s, %s" % (v(t_ + 1), s(sHI), v(src)))
            if i:
                for d in range(4):
                    a("v_pk_add_f32 %s, %s, %s" % (v(AC + 2 * d, 2), v(AC + 2 * d, 2), v(AC + 8 + 2 * d, 2)))

    def after0():
        cs_chunk(range(0, 4))

    def after1():
        cs_chunk(range(4, 8))
        a("v_lshrrev_b32 v28, 5, v3")
        a("s_lshl_b32 %s, %s, 1" % (s(T0), s(sL)))
        a("v_add_u32 v28, %s, v28" % s(T0))
        a("v_lshlrev_b32 v28, 10, v28")
        a("v_lshl_add_u32 v28, v6, 5, v28")
        a("v_add_u32 v28, %d, v28" % CSP)
        a("ds_write_b128 v28, %s" % v(AC, 4))
        a("ds_write_b128 v28, %s offset:16" % v(AC + 4, 4))
        a("s_waitcnt lgkmcnt(0)")

    def after2():
        a("s_lshl_b32 %s, %s, 8" % (s(T0), s(sL)))
        a("v_add_u32 v19, %s, v30" % s(T0))
        a("v_add_u32 v28, %d, v19" % CSP)
        for i in range(8):
            a("ds_read_b32 %s, v28 offset:%d" % (v(CSD + i), i * 1024))
        a("s_lshl_b32 %s, %s, 14" % (s(T0), s(sCB)))
        a("s_lshl_b32 %s, %s, 10" % (s(T1), s(sRB)))
        a("s_add_u32 %s, %s, %s" % (s(T1), s(T1), s(T0)))
        a("s_add_u32 %s, %s, %s" % (s(T1), s(T1), hx(CS_OFF)))
        a("v_mov_b32 v31, 0x01010101")
        a("s_waitcnt lgkmcnt(0)")
        for st in (4, 2, 1):
            for i in range(st):
                a("v_add_f32 %s, %s, %s" % (v(CSD + i), v(CSD + i), v(CSD + i + st)))
        a("buffer_store_dword %s, v19, %s, %s offen%s" % (v(CSD), s(WS, 4), s(T1), SC1))
        q.append("cs_store")

    def after3():
        a("s_lshr_b32 %s, %s, 3" % (s(T0), s(sTAU)))
        a("s_lshl_b32 %s, %s, 17" % (s(T1), s(T0)))
        a("s_and_b32 %s, %s, 1" % (s(T2), s(sTAU)))
        a("s_lshl_b32 %s, %s, 15" % (s(T3), s(T2)))
        a("s_add_u32 %s, %s, %s" % (s(T1), s(T1), s(T3)))
        a("s_add_u32 %s, %s, %s" % (s(T1), s(T1), hx(CB_OFF)))
        a("v_lshl_add_u32 v6, v5, 9, v4")
        a("v_add_u32 v6, %s, v6" % s(T1))
        for i in range(4):
            a("v_add_u32 %s, %s, v6" % (v(LVC + i), hx((i & 1) * 65536 + (i >> 1) * 32 * 512)))
        a("s_and_b32 %s, %s, 3" % (s(T1), s(T0)))
        a("s_cmp_eq_u32 %s, 3" % s(T0))
        a("s_cselect_b32 %s, 1, %s" % (s(T1), s(T1)))
        a("s_lshl_b32 %s, %s, 11" % (s(T1), s(T1)))
        a("s_bfe_u32 %s, %s, 0x20001" % (s(T3), s(sTAU)))
        a("s_lshl_b32 %s, %s, 19" % (s(T3), s(T3)))
        a("s_add_u32 %s, %s, %s" % (s(T1), s(T1), s(T3)))
        a("v_lshl_add_u32 v6, v5, 13, v4")
        a("v_add_u32 v6, %s, v6" % s(T1))
        for i in range(4):
            a("v_add_u32 %s, %s, v6" % (v(LVD + i), hx((i >> 1) * 32 * 8192)))
        a("s_lshl_b32 %s, s2, 15" % s(T0))
        a("s_lshl_b32 %s, %s, 13" % (s(T1), s(sL)))
        a("s_add_u32 %s, %s, %s" % (s(T0), s(T0), s(T1)))
        a("s_add_u32 %s, %s, %s" % (s(T0), s(T0), hx(EX_OFF)))
        a("v_lshlrev_b32 v6, 4, v3")
        a("v_add_u32 v6, %s, v6" % s(T0))
        a("v_add_u32 v7, 4096, v6")
        for i in range(4):
            a("v_mov_b32 %s, -1" % v(240 + i))

    def sentinel(i):
        a("buffer_store_dwordx4 v[240:243], %s, %s, 0 offen offset:%d%s" % ("v7" if i >= 4 else "v6", s(WS, 4), (i & 3) * 1024, SC1))
        q.append("sent")

    def after9():
        poll_issue(a, 29, 30); q.append("poll")

    def after11():
        a.c("fetch the 16 partial column sums of this column block and this class's row stats")
        a("s_lshl_b32 %s, %s, 14" % (s(T0), s(sCB)))
        a("s_add_u32 %s, %s, %s" % (s(T0), s(T0), hx(CS_OFF)))
        for i in range(16):
            if i and i % 4 == 0:
                a("s_add_u32 %s, %s, 4096" % (s(T0), s(T0)))
            a("buffer_load_dword %s, v19, %s, %s offen offset:%d%s" % (v(CSD + i), s(WS, 4), s(T0), (i & 3) * 1024, SC1))
        a("s_lshl_b32 %s, %s, 10" % (s(T0), s(sRB)))
        a("s_add_u32 %s, %s, %s" % (s(T0), s(T0), hx(STAT_OFF)))
        a("buffer_load_dword %s, v19, %s, %s offen%s" % (v(CSD + 16), s(WS, 4), s(T0), SC1))
        q.extend(["fetch"] * 17)

    def after13():
        a("s_waitcnt vmcnt(%d)" % need("fetch"))
        for st in (8, 4, 2, 1):
            for i in range(st):
                a("v_add_f32 %s, %s, %s" % (v(CSD + i), v(CSD + i), v(CSD + i + st)))
        a("v_add_u32 v28, %d, v19" % CSB)
        a("ds_write_b32 v28, %s" % v(CSD))
        a("ds_write_b32 v28, %s offset:%d" % (v(CSD + 16), STB - CSB))
        a("s_waitcnt lgkmcnt(0)")

    hooks = {0: after0, 1: after1, 2: after2, 3: after3, 9: after9, 11: after11, 13: after13}
    a("s_waitcnt lgkmcnt(0)")
    a("s_barrier")
    for st in range(EARLY, 3):
        issue(st)
    if OPT.get("cov", "0") == "1":
        a("s_cmp_lt_u32 %s, 8" % s(sRB))
        a("s_mov_b32 %s, %d" % (s(T1), 512 * 7168))
        a("s_cselect_b32 %s, %s, %s" % (s(T1), s(T1), hx(-512 * 7168)))
        a("v_add_u32 v2, %s, v7" % s(T1))
        for i in range(8):
            a("s_mov_b32 %s, %d" % (s(T0), i * 2 * 7168))
            a("buffer_load_dwordx4 v[244:247], v2, %s, %s offen" % (s(W1, 4), s(T0)))
        q.extend(["pf"] * 8)
    pf_pair(a, 126, DR, DI); q.append("pf")
    if PFK == -1:
        prefetch()
    if PFS:
        pf_pair(a, 127, CR, CI); q.append("pf")
        a("s_lshl_b32 %s, s2, 2" % s(T0))
        a("s_add_u32 %s, %s, %s" % (s(T0), s(T0), s(sL)))
        a("s_mul_i32 %s, %s, 7168" % (s(T0), s(T0)))
        a("s_add_u32 s30, %s, %s" % (s(W2), s(T0)))
        a("s_addc_u32 s31, %s, 0" % s(W2 + 1))
    bar("g0")
    for k in range(15):
        tags = ["g%d" % (k + 1)]
        if k == 5:
            tags.append("cs_store")
        if k == 11:
            a("s_waitcnt vmcnt(%d)" % need("g12", "poll"))
            poll_check(a, 29, 30, 31, True)
            a("s_barrier")
        else:
            bar(*tags)
        if k + 3 <= 15:
            issue(k + 3)
        if k in hooks:
            hooks[k]()
        if 4 <= k <= 11:
            sentinel(k - 4)
        if k == PFK:
            prefetch()
        if PFS and 2 <= k <= 11:
            for i in range(12 * (k - 2), min(112, 12 * (k - 1))):
                a("s_load_dword s29, s[30:31], %d" % (i * 64))

    def issue_s1(k):
        a("s_add_u32 %s, %s, %d" % (s(sSLOT), s(sSL0), S1SLOTS[k]))
        a("s_mov_b32 %s, %d" % (s(sKA), k * 128))
        for i in range(4):
            dma(a, i * 4096, LVC + i, WS, sKA, coh=True)
        for i in range(4):
            dma(a, 16384 + i * 4096, LVD + i, DI if i & 1 else DR, sKA)

    issue_s1(2)
    a("s_barrier")
    for k in (0, 1, 3):
        issue_s1(k)
    g2_loader_setup(a)
    a("s_and_b32 %s, %s, 4" % (s(sP3), s(sCB8)))
    for st in range(NRB()):
        g2_koff(a, st, False, True)
        for i in range(4):
            a("buffer_load_dwordx4 %s, %s, %s, %s offen" % (v(RBB + 16 * st + 4 * i, 4), v(GVB + i), s(W2, 4), s(sKB)))
    a("v_lshlrev_b32 %s, 4, v3" % v(GWA))
    a("v_add_u32 %s, %s, %s" % (v(GWA), s(sSL0), v(GWA)))
    a("s_waitcnt vmcnt(%d)" % (4 * NRB()))
    a("s_barrier")


RBB = 64
GWA = 60


def NRB():
    return int(OPT.get("nrb", "0"))


def g2_koff(a, st, want_a, want_b):
    j, p_ = divmod(st, 3)
    a("s_xor_b32 %s, %s, %d" % (s(T0), s(sP3), j))
    if want_a:
        a("s_mul_i32 %s, %s, 49152" % (s(sKA), s(T0)))
        if p_:
            a("s_add_u32 %s, %s, %d" % (s(sKA), s(sKA), p_ * 16384))
    if want_b:
        a("s_mul_i32 %s, %s, %d" % (s(sKB), s(T0), 224 * 2048))
        if p_:
            a("s_add_u32 %s, %s, %d" % (s(sKB), s(sKB), p_ * 64 * 2048))


NJ = 28
NREG = 24
NSOLO = 4


def compute_g2(a):
    ACC = 128; ACY = 192; XR = 224; RX = 96
    FR = [32, 64]
    gN0, gZ0, gZ1 = 6, 7, 8
    cN = 11
    a("v_and_b32 v17, 15, v3")
    a("v_lshlrev_b32 v17, 15, v17")
    a("s_lshl_b32 %s, %s, 21" % (s(T0), s(sWM)))
    a("s_lshl_b32 %s, %s, 11" % (s(T1), s(sCLS)))
    a("s_add_u32 %s, %s, %s" % (s(T0), s(T0), s(T1)))
    a("s_lshl_b32 %s, %s, 8" % (s(T1), s(sCB8)))
    a("s_add_u32 %s, %s, %s" % (s(T0), s(T0), s(T1)))
    a("s_lshl_b32 %s, %s, 7" % (s(T1), s(sKH)))
    a("s_add_u32 %s, %s, %s" % (s(T0), s(T0), s(T1)))
    a("s_lshl_b32 %s, %s, 6" % (s(T1), s(sWN)))
    a("s_add_u32 %s, %s, %s" % (s(T0), s(T0), s(T1)))
    a("v_add_u32 v17, %s, v17" % s(T0))
    a("v_lshl_add_u32 v19, v18, 3, v17")
    for mt in range(4):
        a("s_mov_b32 %s, %d" % (s(T3 + mt), mt * 16 * 16 * 2048))
    a("v_add_u32 v17, v17, v21")
    a("s_lshl_b32 %s, %s, 12" % (s(T0), s(sWN)))
    a("s_add_u32 %s, %s, 16384" % (s(T0), s(T0)))
    rowimg_frag_addr(a, gZ0, gZ1, T0)
    a("v_bfe_u32 v20, v3, 2, 2")
    a("v_lshl_add_u32 v23, v18, 3, v20")
    a("v_lshlrev_b32 v23, 8, v23")
    a("v_and_b32 v22, 3, v3")
    a("v_lshl_add_u32 v23, v22, 3, v23")
    a("v_and_b32 v22, 1, v18")
    a("v_lshl_or_b32 v20, v22, 2, v20")
    a("s_lshl_b32 %s, %s, 1" % (s(T0), s(sWN)))
    a("s_lshl_b32 %s, %s, 2" % (s(T1), s(sKH)))
    a("s_add_u32 %s, %s, %s" % (s(T0), s(T0), s(T1)))
    a("v_xor_b32 v20, %s, v20" % s(T0))
    a("v_lshl_add_u32 v23, v20, 5, v23")
    a("v_add_u32 %s, 16384, v23" % v(gN0))
    a("v_xor_b32 v15, 0x20000, v24")
    a("v_xor_b32 v16, 0x20000, v25")
    for i in range(96):
        a("v_mov_b32 %s, 0" % v(ACC + i))
    a("s_mov_b32 %s, %d" % (s(sSLOT), 4 * G2SLOT))

    def set_addr(joint):
        r = ["v_add_u32 %s, s14, %s" % (v(cM0), v(vM0)), "v_add_u32 %s, s14, %s" % (v(cM1), v(vM1))]
        if joint:
            r.append("v_add_u32 %s, s14, %s" % (v(cN), v(gN0)))
            for nt, x in ((1, 32), (2, 128), (3, 160)):
                r.append("v_xor_b32 %s, %d, %s" % (v(cN + nt), x, v(cN)))
        else:
            r += ["v_add_u32 %s, s14, %s" % (v(cN), v(gZ0)), "v_add_u32 %s, s14, %s" % (v(cN + 1), v(gZ1))]
        return r

    def next_slot():
        return ["s_add_u32 s14, s14, %d" % G2SLOT, "s_cmp_eq_u32 s14, %d" % (G2SLOT * 5), "s_cselect_b32 s14, 0, s14"]

    def reads(fs, ks, joint):
        r = []
        for t in range(4):
            if joint:
                for h in range(2):
                    r.append("ds_read_b64_tr_b16 %s, %s offset:%d" % (v(FR[fs] + 16 + 4 * t + 2 * h, 2), v(cN + t), ks * 8192 + h * 1024))
            elif t < 2:
                r.append("ds_read_b128 %s, %s offset:%d" % (v(FR[fs] + 16 + 4 * t, 4), v(cN + ks), t * 2048))
            r.append("ds_read_b128 %s, %s offset:%d" % (v(FR[fs] + 4 * t, 4), v(cM1 if ks else cM0), t * 2048))
        return r

    ot = lambda mt, nt: ACC + 4 * (nt * 4 + mt)

    def jm(fs, order=(0, 1, 2, 3)):
        return [mfma(ot(mt, nt), FR[fs] + 16 + 4 * nt, FR[fs] + 4 * mt) for nt in order for mt in range(4)]

    def sm(fs):
        return [mfma(ACY + 4 * (nt * 4 + mt), FR[fs] + 16 + 4 * nt, FR[fs] + 4 * mt) for nt in range(2) for mt in range(4)]

    a.all(set_addr(True))
    a("s_barrier")
    mark(a, 10)
    a.all(reads(0, 0, True))
    a("s_mov_b32 %s, 0" % s(sCNT))
    a("s_waitcnt lgkmcnt(0)")

    def joint_iter(nxt_joint, extra=(), pre_bar=(), flag=None, bar=True):
        interleave(a, jm(0), reads(1, 1, True) + next_slot() + set_addr(nxt_joint), per=2)
        a("s_waitcnt lgkmcnt(0)")
        a.all(pre_bar)
        if bar:
            a("s_barrier")
        if flag is not None:
            flag_lines(a, flag)
        interleave(a, jm(1), reads(0, 0, True) + list(extra), per=1)
        a("s_waitcnt lgkmcnt(0)")

    ZK = int(OPT.get("zk", "6"))

    def g2_loop(n):
        a("s_mov_b32 %s, 0" % s(sCNT))
        loop = a.newlabel("g2_loop")
        a.raw(".p2align 6")
        a.label(loop)
        joint_iter(True, ["s_add_u32 s15, s15, 1", "s_cmp_lt_u32 s15, %d" % n])
        a("s_cbranch_scc1 %s" % loop)

    g2_loop(ZK)
    joint_iter(True, pre_bar=["s_waitcnt vmcnt(0)"], flag=7)
    mark(a, 26)
    g2_loop(NJ - 2 - ZK)
    interleave(a, jm(0), reads(1, 1, True) + next_slot() + set_addr(False), per=2)
    a("s_waitcnt lgkmcnt(0)")
    a("s_barrier")
    m = jm(1, (2, 3, 0, 1))
    interleave(a, m[:8], reads(0, 0, False))
    for i in range(8):
        a(m[8 + i])
        b = ACC + 32 + 4 * i
        for j in range(4):
            a("v_min_u32 %s, -2, %s" % (v(b + j), v(b + j)))
        a("buffer_store_dwordx4 %s, %s, %s, 0 offen offset:%d sc1" % (v(b, 4), "v16" if i >= 4 else "v15", s(WS, 4), (i & 3) * 1024))
    a("s_waitcnt lgkmcnt(0)")
    mark(a, 11)

    def recv_loads():
        return ["buffer_load_dwordx4 %s, %s, %s, 0 offen offset:%d sc1" % (v(RX + 4 * i, 4), "v25" if i >= 4 else "v24", s(WS, 4), (i & 3) * 1024)
                for i in range(8)]

    xl = ["buffer_load_dwordx2 %s, v19, %s, %s offen offset:%d" % (v(XR + 4 * mt + 2 * nt, 2), s(XS, 4), s(T3 + mt), nt * 32)
          for mt in range(4) for nt in range(2)]
    for k in range(NSOLO):
        last = k == NSOLO - 1
        interleave(a, sm(0), reads(1, 1, False) + ([] if last else next_slot() + set_addr(False)), per=2)
        a("s_waitcnt lgkmcnt(0)")
        if not last:
            a("s_barrier")
            interleave(a, sm(1), reads(0, 0, False) + (xl[4 * k:4 * k + 4] if k < 2 else []), per=2)
            a("s_waitcnt lgkmcnt(0)")
        else:
            interleave(a, sm(1), recv_loads())
    mark(a, 12)
    top = a.newlabel("rx"); chk = a.newlabel("rxchk"); ok = a.newlabel("rxok")
    a("s_mov_b32 %s, 0" % s(T7))
    a("s_branch %s" % chk)
    a.label(top)
    a.all(recv_loads())
    a.label(chk)
    a("s_waitcnt vmcnt(0)")
    a("v_max3_u32 v26, %s, %s, %s" % (v(RX), v(RX + 1), v(RX + 2)))
    a("v_max3_u32 v27, %s, %s, %s" % (v(RX + 3), v(RX + 4), v(RX + 5)))
    for i in range(6, 30, 4):
        a("v_max3_u32 v26, v26, %s, %s" % (v(RX + i), v(RX + i + 1)))
        a("v_max3_u32 v27, v27, %s, %s" % (v(RX + i + 2), v(RX + i + 3)))
    a("v_max3_u32 v26, v26, %s, %s" % (v(RX + 30), v(RX + 31)))
    a("v_max_u32 v26, v26, v27")
    a("v_cmp_eq_u32 vcc, -1, v26")
    a("s_add_u32 %s, %s, 1" % (s(T7), s(T7)))
    a("s_nop 3")
    a("s_cbranch_vccz %s" % ok)
    a("s_sleep 1")
    a("s_cmp_lt_u32 %s, %d" % (s(T7), SPIN_MAX))
    a("s_cbranch_scc1 %s" % top)
    a.label(ok)
    mark(a, 13)
    TMP = 32
    PK = [64, 68, 72, 76]
    MIMIC = OPT.get("mimic", "0") == "1"

    def rnd(regs, t):
        for i, r_ in enumerate(regs):
            a("v_cvt_pk_bf16_f32 %s, %s, %s" % (v(t + i), v(r_), v(r_ + 1)))
        for i, r_ in enumerate(regs):
            a("v_lshlrev_b32 %s, 16, %s" % (v(r_), v(t + i)))
            a("v_and_b32 %s, %s, %s" % (v(r_ + 1), s(sHI), v(t + i)))

    for mt in range(4):
        offs = [4 * mt, 4 * mt + 2, 16 + 4 * mt, 16 + 4 * mt + 2]
        o = [ACC + x for x in offs]
        y = [ACY + x for x in offs]
        xf = [40 + 2 * i for i in range(4)]
        for i in range(4):
            a("v_pk_add_f32 %s, %s, %s" % (v(o[i], 2), v(o[i], 2), v(RX + offs[i], 2)))
        if MIMIC:
            rnd(o, 48)
        silu_pk(a, o, [TMP + 2 * i for i in range(4)])
        if MIMIC:
            rnd(o, 48)
            rnd(y, 52)
        for i in range(4):
            a("v_lshlrev_b32 %s, 16, %s" % (v(xf[i]), v(XR + 4 * mt + i)))
            a("v_and_b32 %s, %s, %s" % (v(xf[i] + 1), s(sHI), v(XR + 4 * mt + i)))
        if MIMIC:
            for i in range(4):
                a("v_pk_mul_f32 %s, %s, %s" % (v(o[i], 2), v(o[i], 2), v(y[i], 2)))
            rnd(o, 48)
            for i in range(4):
                a("v_pk_add_f32 %s, %s, %s" % (v(o[i], 2), v(o[i], 2), v(xf[i], 2)))
        else:
            for i in range(4):
                a("v_pk_fma_f32 %s, %s, %s, %s" % (v(o[i], 2), v(o[i], 2), v(y[i], 2), v(xf[i], 2)))
        P = PK[mt]
        for i in range(4):
            a("v_cvt_pk_bf16_f32 %s, %s, %s" % (v(P + i), v(o[i]), v(o[i] + 1)))
        a("s_nop 1")
        a("v_permlane16_swap_b32 %s, %s" % (v(P), v(P + 2)))
        a("v_permlane16_swap_b32 %s, %s" % (v(P + 1), v(P + 3)))
        a("buffer_store_dwordx4 %s, v17, %s, %s offen%s" % (v(P, 4), s(OUT, 4), s(T3 + mt), OPT.get("outmod", "").replace("_", " ")))
    mark(a, 14)
    a("s_endpgm")


GVA, GVB, GVA2, GVB2, GVC, GVD = 32, 36, 40, 44, 48, 52
GNH, GNZ, GNH2, GHA = 56, 57, 58, 59


def g2_loader_setup(a):
    a("v_lshrrev_b32 v6, 4, v3")
    a("s_lshr_b32 %s, %s, 1" % (s(T0), s(sL)))
    a("s_lshl_b32 %s, %s, 2" % (s(T0), s(T0)))
    a("v_or_b32 v7, %s, v6" % s(T0))
    a("v_lshlrev_b32 v7, 1, v7")
    a("v_and_b32 v28, 15, v3")
    a("v_xor_b32 v7, v7, v28")
    a("v_lshlrev_b32 v7, 4, v7")
    a("v_lshl_add_u32 v6, v6, 11, v7")
    a("s_mul_i32 %s, %s, %d" % (s(T0), s(sKH), 1792 * 2048))
    a("s_lshl_b32 %s, %s, 13" % (s(T1), s(sL)))
    a("s_add_u32 %s, %s, %s" % (s(T0), s(T0), s(T1)))
    a("s_lshl_b32 %s, %s, 8" % (s(T1), s(sCB8)))
    a("s_add_u32 %s, %s, %s" % (s(T0), s(T0), s(T1)))
    a("v_add_u32 v6, %s, v6" % s(T0))
    for i in range(4):
        a("v_add_u32 %s, %s, v6" % (v(GVB + i), hx(i * 16 * 2048)))
    for i in range(2):
        a("v_add_u32 %s, %s, v6" % (v(GVB2 + i), hx(((i + 2) * 16 + 192) * 2048)))
    a("s_lshl_b32 %s, %s, 4" % (s(T0), s(sCLS)))
    a("s_lshl_b32 %s, %s, 3" % (s(T1), s(sKH)))
    a("s_add_u32 %s, %s, %s" % (s(T0), s(T0), s(T1)))
    a("s_mul_i32 %s, %s, 49152" % (s(T1), s(T0)))
    a("s_add_u32 %s, %s, %s" % (s(T1), s(T1), hx(HR_OFF)))
    a("s_lshl_b32 %s, %s, 13" % (s(T2), s(T0)))
    a("s_add_u32 %s, %s, %s" % (s(T2), s(T2), hx(HL_OFF)))
    a("v_and_b32 v6, 64, v4")
    a("v_lshlrev_b32 v6, 7, v6")
    a("v_and_b32 v7, 48, v4")
    a("v_add_u32 v7, v7, v6")
    a("v_lshl_add_u32 v7, v5, 6, v7")
    a("v_add_u32 v7, %s, v7" % s(T1))
    for i in range(4):
        a("v_add_u32 %s, %d, v7" % (v(GVA + i), i * 32 * 64))
    a("v_and_b32 v7, 32, v4")
    a("v_lshl_add_u32 v6, v7, 7, v6")
    a("v_and_b32 v7, 16, v4")
    a("v_add_u32 v6, v6, v7")
    a("v_lshl_add_u32 v6, v5, 5, v6")
    a("v_add_u32 v6, %s, v6" % s(T2))
    for i in range(4):
        a("v_add_u32 %s, %d, v6" % (v(GVA2 + i), i * 32 * 32))
    a("s_cmp_gt_u32 %s, 8" % s(sCLS))
    a("s_cselect_b32 %s, -1, 0" % s(T0))
    a("s_sub_u32 %s, 16, %s" % (s(T2), s(sCLS)))
    a("s_cmp_gt_u32 %s, 8" % s(sCLS))
    a("s_cselect_b32 %s, %s, %s" % (s(T1), s(T2), s(sCLS)))
    a("s_lshl_b32 %s, %s, 19" % (s(T2), s(T1)))
    a("s_add_u32 %s, %s, %s" % (s(T2), s(T2), hx(ZT_OFF)))
    for i in range(4):
        a("v_add_u32 v6, %d, v5" % (32 * i))
        a("v_lshlrev_b32 v6, 4, v6")
        a("v_add_u32 v6, %s, v6" % s(sCLS))
        a("v_xor_b32 v6, %s, v6" % s(T0))
        a("v_subrev_u32 v6, %s, v6" % s(T0))
        a("v_and_b32 v6, 2047, v6")
        a("v_lshl_add_u32 %s, v6, 12, v4" % v(GVC + i))
    a("s_lshl_b32 %s, %s, 7" % (s(T3), s(sCB8)))
    a("s_lshl_b32 %s, %s, 6" % (s(T4), s(sKH)))
    a("s_add_u32 %s, %s, %s" % (s(T3), s(T3), s(T4)))
    for i in range(2):
        a("v_add_u32 v6, %d, v5" % (32 * i))
        a("v_add_u32 v6, %s, v6" % s(T3))
        a("v_xor_b32 v6, %s, v6" % s(T0))
        a("v_subrev_u32 v6, %s, v6" % s(T0))
        a("v_and_b32 v7, 3, v6")
        a("v_bfe_u32 v6, v6, 2, 8")
        a("v_lshl_add_u32 v6, v7, 8, v6")
        a("v_and_b32 v7, 48, v4")
        a("v_lshl_add_u32 v6, v6, 6, v7")
        a("v_and_b32 v7, 64, v4")
        a("v_lshl_add_u32 v6, v7, 10, v6")
        a("v_add_u32 %s, %s, v6" % (v(GVD + i), s(T2)))
    a("s_bfe_u32 %s, %s, 0x10002" % (s(T3), s(T1)))
    a("v_and_b32 v6, 1, v3")
    a("v_cmp_eq_u32 vcc, %s, v6" % s(T3))
    a("s_and_b32 %s, %s, 3" % (s(T3), s(T1)))
    a("s_lshl_b32 %s, %s, 3" % (s(T3), s(T3)))
    a("s_lshl_b32 %s, 4, %s" % (s(T3), s(T3)))
    a("v_mov_b32 v7, %s" % s(T3))
    a("v_cndmask_b32 %s, 0, v7, vcc" % v(GNZ))
    a("s_andn2_b32 %s, %s, 127" % (s(T2), s(sHF)))
    a("v_and_b32 v6, 7, v3")
    a("v_lshlrev_b32 v6, 2, v6")
    a("v_add_u32 %s, %s, v6" % (v(GHA), s(T2)))
    a("v_lshrrev_b32 v6, 2, v3")
    a("s_lshr_b32 %s, %s, 2" % (s(T2), s(sCB8)))
    a("v_cmp_eq_u32 vcc, %s, v6" % s(T2))
    a("s_xor_b32 %s, %s, 1" % (s(T2), s(T2)))
    a("s_nop 0")
    a("v_cndmask_b32 %s, 0, 1, vcc" % v(GNH))
    a("v_cmp_eq_u32 vcc, %s, v6" % s(T2))
    a("s_lshr_b32 %s, s2, 2" % s(T0))
    a("s_nop 0")
    a("v_cndmask_b32 %s, 0, 1, vcc" % v(GNH2))
    a("v_cmp_ne_u32 vcc, %s, v3" % s(sCB8))
    a("s_xor_b32 %s, %s, 1" % (s(T0), s(T0)))
    a("s_nop 0")
    a("v_cndmask_b32 %s, 0, %s, vcc" % (v(GNH), v(GNH)))
    a("v_cmp_eq_u32 vcc, %s, v3" % s(T0))
    a("s_and_b32 %s, s2, 3" % s(T1))
    a("s_lshl_b32 %s, %s, 3" % (s(T1), s(T1)))
    a("s_lshl_b32 %s, 4, %s" % (s(T1), s(T1)))
    a("v_mov_b32 v7, %s" % s(T1))
    a("v_cndmask_b32 v7, 0, v7, vcc")
    a("v_or_b32 %s, %s, v7" % (v(GNZ), v(GNZ)))


def loader_g2(a):
    a("s_add_u32 %s, %s, %d" % (s(sWRAP), s(sSL0), G2SLOT * 5))
    NT = NJ + NSOLO
    q = []

    def slot_of(st):
        a("s_add_u32 %s, %s, %d" % (s(sSLOT), s(sSL0), ((st + 4) % 5) * G2SLOT))

    def issue(st, want_a=True, want_b=True):
        slot_of(st)
        if st < NREG:
            breg = want_b and st < NRB()
            want_b = want_b and not breg
            if want_a or want_b:
                g2_koff(a, st, want_a, want_b)
            if want_a:
                for i in range(4):
                    dma(a, i * 4096, GVA + i, WS, sKA, coh=True)
            if want_b:
                for i in range(4):
                    dma(a, 16384 + i * 4096, GVB + i, W2, sKB)
            if breg:
                a("v_add_u32 v6, %s, %s" % (hx(((st + 4) % 5) * G2SLOT + 16384), v(GWA)))
                for i in range(4):
                    a("ds_write_b128 v6, %s offset:%d" % (v(RBB + 16 * st + 4 * i, 4), i * 4096))
            q.extend([st] * (4 * want_a + 4 * want_b))
        elif st < NJ:
            lam = st - NREG
            a("s_mov_b32 %s, %d" % (s(sKA), lam * 16384))
            a("s_mov_b32 %s, %d" % (s(sKB), (448 * lam + 192) * 2048))
            for i in range(4):
                dma(a, i * 4096, GVA2 + i, WS, sKA, coh=True)
            for i in range(2):
                dma(a, 16384 + i * 4096, GVB + i, W2, sKB)
            for i in range(2):
                dma(a, 16384 + (i + 2) * 4096, GVB2 + i, W2, sKB)
            q.extend([st] * 8)
        else:
            k = st - NJ
            a("s_mov_b32 %s, %d" % (s(sKA), (k & 1) * 128))
            a("s_mov_b32 %s, %d" % (s(sKB), (k & 1) * 131072 + (k >> 1) * 262144))
            for i in range(4):
                dma(a, i * 4096, GVC + i, CI if k >= 2 else CR, sKA)
            for i in range(2):
                dma(a, 16384 + i * 4096, GVD + i, WS, sKB, coh=True)
            q.extend([st] * 6)

    def wait(*tags):
        idx = max(i for i, x in enumerate(q) if x in tags)
        a("s_waitcnt vmcnt(%d)" % (len(q) - idx - 1))
        del q[:idx + 1]

    assert NRB() == 0
    issue(0, want_a=False)
    top = a.newlabel("pre"); got = a.newlabel("got"); nogot = a.newlabel("nogot")
    a("s_mov_b32 %s, 0" % s(T6))
    a("s_mov_b32 %s, 0" % s(T7))
    a.label(top)
    poll_issue(a, 29, GHA, WS)
    a("s_waitcnt vmcnt(0)")
    a("v_and_b32 v29, v29, %s" % v(GNH))
    a("v_cmp_ne_u32 vcc, v29, %s" % v(GNH))
    a("s_add_u32 %s, %s, 1" % (s(T7), s(T7)))
    a("s_nop 3")
    a("s_cbranch_vccz %s" % got)
    a("s_sleep 2")
    a("s_cmp_lt_u32 %s, %s" % (s(T7), OPT.get("np", "3")))
    a("s_cbranch_scc1 %s" % top)
    a("s_branch %s" % nogot)
    a.label(got)
    mark(a, 9)
    issue(0, want_b=False)
    a("s_mov_b32 %s, 1" % s(T6))
    a.label(nogot)
    a("s_barrier")
    late = a.newlabel("late"); go = a.newlabel("go")
    a("s_cmp_eq_u32 %s, 0" % s(T6))
    a("s_cbranch_scc1 %s" % late)
    issue(1)
    a("s_waitcnt vmcnt(8)")
    a("s_barrier")
    for st in range(2, 5):
        issue(st)
    a("s_waitcnt vmcnt(24)")
    a("s_branch %s" % go)
    a.label(late)
    for st in range(1, 5):
        issue(st, want_a=False)
    poll_check(a, 29, GHA, GNH, False, WS)
    mark(a, 8)
    issue(0, want_b=False)
    issue(1, want_b=False)
    a("s_waitcnt vmcnt(4)")
    a("s_barrier")
    for st in range(2, 5):
        issue(st, want_b=False)
    a("s_waitcnt vmcnt(12)")
    a.label(go)
    del q[:]
    q.extend([1] + [2] * 4 + [3] * 4 + [4] * 4)
    nxt = 5
    for k in range(0, NT - 1):
        last_issue = min(k + 5, NT - 1)
        tags = [k + 1]
        chk = None
        if nxt <= 12 <= last_issue:
            tags.append("p2"); chk = GNH2
        if nxt <= NJ <= last_issue:
            tags.append("p3"); chk = GNZ
        if k > 0:
            wait(*tags)
        else:
            q.remove(1)
        if chk == GNH2:
            poll_check(a, 29, GHA, chk, True, WS)
        elif chk is not None:
            poll_check(a, 29, 30, chk, True)
        a("s_barrier")
        while nxt <= last_issue:
            issue(nxt); nxt += 1
        if k == 3:
            poll_issue(a, 29, GHA, WS); q.append("p2")
        if k == NJ - 9:
            poll_issue(a, 29, 30); q.append("p3")
    a("s_endpgm")


HEADER = """; Kernarg layout (88 bytes, ptrs only, base s[0:1]): 0 A_x, 8 dft_seq_re, 16 dft_seq_im, 24 dft_hid_re,
"""


def main():
    global STAMP
    args = sys.argv[1:]
    if "--stamp" in args:
        STAMP = True; args.remove("--stamp")
    for x in list(args):
        if x.startswith("--") and "=" in x:
            k, val = x[2:].split("="); OPT[k] = val; args.remove(x)
    a = Asm()
    a.raw(HEADER.rstrip("\n"))
    nv = 256 if STAMP else 248
    a.raw("; @launch grid=(256,1,1) block=(512,1,1) lds=163840")
    a.raw('.amdgcn_target "amdgcn-amd-amdhsa--gfx950"')
    a.raw(".text")
    name = NAME + "_kernel"
    kernel_header(a, name)
    prologue(a, "L_end")
    mark(a, 0)
    a("s_cmp_ge_u32 %s, 4" % s(sWAVE))
    a("s_cbranch_scc1 L_loader")
    compute_setup(a)
    a("s_waitcnt vmcnt(0)")
    hflag_lines(a, 0)
    prep_ln(a)
    a("s_waitcnt lgkmcnt(0)")
    a("s_barrier")
    prep_dft(a)
    compute_g1_s1(a)
    compute_g2(a)
    a.label("L_loader")
    loader_setup(a)
    a("s_waitcnt vmcnt(%d)" % (8 + 11 * int(OPT.get("early", "1"))))
    mark(a, 1)
    prep_ln(a)
    loader_g1_s1(a)
    loader_g2(a)
    a.label("L_end")
    a("s_endpgm")
    a.raw('.section .rodata,"a"')
    a.raw(kernel_desc(name, nv, NSGPR).rstrip("\n"))
    out = args[0] if args else "cdna_kernels/%s.s" % NAME
    open(out, "w").write(a.text())


if __name__ == "__main__":
    main()
```

```python
import math, struct, sys

NAME = "recurrent_scan__spectral_fnet__dense_activation_silu__prompt"

CS_OFF = 0x0000000
STAT_OFF = 0x0040000
HF_OFF = 0x0050000
CB_OFF = 0x0400000
ZT_OFF = 0x0800000
HR_OFF = 0x0D00000
HL_OFF = 0x1900000
EX_OFF = 0x1C00000
STAMP_OFF = 0x4000000
WS_SZ = 0x10000000

STAMP = False
SC1 = " sc1"
SPIN_MAX = 200000
OPT = {}

G1SLOT = 45056
G2SLOT = 32768
STG = 143360
CSP = 135168
CSB = 161792
STB = 162816
S1SLOTS = [0, 32768, 65536, 98304]

sWAVE, sXCD, sLOC, sRB, sCB, sTAU, sCLS, sCB8, sKH = 3, 4, 5, 6, 7, 8, 9, 10, 11
sWM, sWN, sSLOT, sCNT = 12, 13, 14, 15
sL = 12
T0, T1, T2, T3, T4, T5, T6, T7 = 16, 17, 18, 19, 20, 21, 22, 23
sSP, sHALF, sHF = 26, 27, 28
WS, W1, DR, DI, W2, CR, CI, XS, OUT, DBG = 40, 44, 48, 52, 56, 60, 64, 68, 72, 76
sNL2E, sHI = 80, 82
C1, C2, C3 = 84, 86, 88
sKA, sKB, sWRAP, sSL0, sP3 = 90, 91, 92, 93, 94
NSGPR = 100


def f32(x):
    return struct.unpack("<I", struct.pack("<f", x))[0]


def hx(x):
    return "0x%x" % (x & 0xFFFFFFFF)


def v(i, n=1):
    return "v%d" % i if n == 1 else "v[%d:%d]" % (i, i + n - 1)


def s(i, n=1):
    return "s%d" % i if n == 1 else "s[%d:%d]" % (i, i + n - 1)


class Asm:
    def __init__(self):
        self.lines = []
        self.uid = 0

    def __call__(self, txt):
        self.lines.append("    " + txt)

    def label(self, l):
        self.lines.append(l + ":")

    def newlabel(self, p):
        self.uid += 1
        return "L_%s_%d" % (p, self.uid)

    def c(self, txt):
        self.lines.append("    ; " + txt)

    def raw(self, txt):
        self.lines.append(txt)

    def all(self, lst):
        for x in lst:
            self(x)

    def text(self):
        return "\n".join(self.lines) + "\n"


def srd(a, dst, ptr, off, size):
    if off:
        a("s_add_u32 %s, %s, %s" % (s(dst), s(ptr), hx(off)))
        a("s_addc_u32 %s, %s, 0" % (s(dst + 1), s(ptr + 1)))
    else:
        a("s_mov_b32 %s, %s" % (s(dst), s(ptr)))
        a("s_mov_b32 %s, %s" % (s(dst + 1), s(ptr + 1)))
    a("s_mov_b32 %s, %s" % (s(dst + 2), hx(size)))
    a("s_mov_b32 %s, 0x20000" % s(dst + 3))


def kernel_header(a, name):
    a.raw(".globl %s" % name)
    a.raw(".p2align 8")
    a.raw(".type %s,@function" % name)
    a.label(name)


def kernel_desc(name, vgpr, sgpr):
    acc = (vgpr + 3) // 4 * 4
    return "\n".join([
        ".p2align 6",
        ".amdhsa_kernel %s" % name,
        "  .amdhsa_next_free_vgpr %d" % vgpr,
        "  .amdhsa_next_free_sgpr %d" % sgpr,
        "  .amdhsa_accum_offset %d" % acc,
        "  .amdhsa_group_segment_fixed_size 0",
        "  .amdhsa_kernarg_size 88",
        "  .amdhsa_user_sgpr_count 2",
        "  .amdhsa_user_sgpr_kernarg_segment_ptr 1",
        "  .amdhsa_system_sgpr_workgroup_id_x 1",
        ".end_amdhsa_kernel",
    ]) + "\n"


NEG1 = " neg_lo:[0,1] neg_hi:[0,1]"


def mark(a, idx):
    if not STAMP:
        return
    lab = a.newlabel("nost")
    a("s_and_b32 s96, %s, 3" % s(sWAVE))
    a("s_cmp_lg_u32 s96, 0")
    a("s_cbranch_scc1 %s" % lab)
    a("s_memrealtime s[96:97]")
    a("s_memtime s[98:99]")
    a("s_waitcnt lgkmcnt(0)")
    a("v_mov_b32 v252, s96")
    a("v_mov_b32 v253, s98")
    a("s_lshl_b32 s96, s2, 8")
    a("s_lshl_b32 s97, %s, 5" % s(sWAVE))
    a("s_add_u32 s96, s96, s97")
    a("s_add_u32 s96, s96, %s" % hx(STAMP_OFF + idx * 8))
    a("v_mov_b32 v254, s96")
    a("buffer_store_dwordx2 v[252:253], v254, %s, 0 offen" % s(WS, 4))
    a.label(lab)


def interleave(a, main, fill, per=1, start=0):
    fi = 0
    for i, m in enumerate(main):
        a(m)
        if i >= start:
            for _ in range(per):
                if fi < len(fill):
                    a(fill[fi]); fi += 1
    while fi < len(fill):
        a(fill[fi]); fi += 1


def mfma(d, sa, sb, c=None):
    return "v_mfma_f32_16x16x32_bf16 %s, %s, %s, %s" % (v(d, 4), v(sa, 4), v(sb, 4), v(d, 4) if c is None else c)


def prologue(a, endlab):
    a("s_cmp_ge_u32 s2, 256")
    a("s_cbranch_scc1 %s" % endlab)
    if OPT.get("cpf", "1") == "1":
        a("s_getpc_b64 s[96:97]")
        a.label("L_pc")
        a("s_lshr_b32 s98, s2, 3")
        a("s_lshl_b32 s98, s98, 13")
        a("v_lshl_add_u32 v2, v0, 4, s98")
        a("v_cmp_gt_u32 vcc, L_end-L_pc, v2")
        a("s_and_saveexec_b64 s[98:99], vcc")
        a("s_cbranch_execz L_nocpf")
        a("global_load_dwordx4 v[244:247], v2, s[96:97]")
        a.label("L_nocpf")
        a("s_mov_b64 exec, -1")
    a("s_load_dwordx16 s[16:31], s[0:1], 0")
    a("s_load_dwordx4 s[32:35], s[0:1], 64")
    a("s_load_dwordx2 s[36:37], s[0:1], 80")
    a("v_lshrrev_b32 v1, 6, v0")
    a("v_and_b32 v3, 63, v0")
    a("s_and_b32 %s, s2, 7" % s(sXCD))
    a("s_lshr_b32 %s, s2, 3" % s(sLOC))
    a("v_readfirstlane_b32 %s, v1" % s(sWAVE))
    a("s_and_b32 s6, s4, 1"); a("s_lshl_b32 s6, s6, 3"); a("s_and_b32 s7, s5, 7"); a("s_add_u32 s6, s6, s7")
    a("s_lshr_b32 s7, s4, 1"); a("s_lshl_b32 s7, s7, 2"); a("s_lshr_b32 s8, s5, 3"); a("s_add_u32 s7, s7, s8")
    a("s_lshl_b32 s8, s4, 5"); a("s_add_u32 s8, s8, s5")
    a("s_mov_b32 s9, s6")
    a("s_lshr_b32 s11, s7, 3")
    a("s_and_b32 s10, s7, 7")
    a("s_mov_b32 %s, %s" % (s(sNL2E), hx(f32(-1.4426950408889634))))
    a("s_mov_b32 %s, %s" % (s(sNL2E + 1), hx(f32(-1.4426950408889634))))
    a("s_mov_b32 %s, 0xffff0000" % s(sHI))
    a("s_lshr_b32 s38, %s, 1" % s(sTAU))
    a("s_and_b32 s39, %s, 1" % s(sTAU))
    a("v_lshlrev_b32 v120, 18, v1")
    a("v_and_b32 v121, 31, v3")
    a("v_lshl_add_u32 v120, v121, 3, v120")
    a("v_lshrrev_b32 v121, 5, v3")
    a("v_lshl_add_u32 v120, v121, 9, v120")
    a("s_lshl_b32 s95, s38, 11")
    a("v_add_u32 v120, s95, v120")
    a("s_lshl_b32 s95, s39, 8")
    a("v_add_u32 v120, s95, v120")
    a("v_xor_b32 v121, 0x100, v120")
    a("s_waitcnt lgkmcnt(0)")
    srd(a, XS, 16, 0, 2048 * 1024 * 2)
    a("s_mov_b32 s95, 0x200000")
    for ri, B in enumerate(ROWB):
        for hh in range(2):
            for jj in range(2):
                a("buffer_load_dwordx2 %s, %s, %s, %s offen offset:%d" % (
                    v(B + 4 * hh + 2 * jj, 2), "v121" if hh else "v120", s(XS, 4), "s95" if ri else "0", 1024 * jj))
    srd(a, WS, 36, 0, WS_SZ)
    srd(a, W1, 28, 0, 1024 * 3584 * 2)
    srd(a, DR, 22, 0, 1024 * 1024 * 2)
    srd(a, DI, 24, 0, 1024 * 1024 * 2)
    srd(a, W2, 30, 0, 3584 * 1024 * 2)
    srd(a, CR, 18, 0, 2048 * 2048 * 2)
    srd(a, CI, 20, 0, 2048 * 2048 * 2)
    srd(a, OUT, 32, 0, 2048 * 1024 * 2)
    srd(a, DBG, 34, 0, 256)
    a("s_mov_b32 %s, s38" % s(sSP))
    a("s_mov_b32 %s, s39" % s(sHALF))
    a("s_lshl_b32 %s, %s, 4" % (s(sHF), s(sRB)))
    a("s_add_u32 %s, %s, %s" % (s(sHF), s(sHF), s(sCB)))
    a("s_lshr_b32 s95, %s, 3" % s(sHF))
    a("s_lshl_b32 s95, s95, 7")
    a("s_lshl_b32 %s, %s, 2" % (s(sHF), s(sCB8)))
    a("s_add_u32 %s, %s, s95" % (s(sHF), s(sHF)))
    a("s_add_u32 %s, %s, %s" % (s(sHF), s(sHF), hx(HF_OFF)))


ROWB = [32, 76]


def set_flag(a, val, only_wave, tv):
    lab = a.newlabel("nf")
    a("s_cmp_lg_u32 %s, %d" % (s(sWAVE), only_wave))
    a("s_cbranch_scc1 %s" % lab)
    a("v_mov_b32 %s, %d" % (v(tv), val))
    a("v_mov_b32 %s, s2" % v(tv + 1))
    a("s_mov_b64 exec, 1")
    a("buffer_store_byte %s, %s, %s, 0 offen sc1" % (v(tv), v(tv + 1), s(DBG, 4)))
    a("s_mov_b64 exec, -1")
    a.label(lab)


def flag_lines(a, val):
    lab = a.newlabel("nf")
    a("s_cmp_lg_u32 %s, 0" % s(sWAVE))
    a("s_cbranch_scc1 %s" % lab)
    a("v_mov_b32 v29, %d" % val)
    a("v_mov_b32 v30, s2")
    a("s_mov_b64 exec, 1")
    a("buffer_store_byte v29, v30, %s, 0 offen sc1" % s(DBG, 4))
    a("s_mov_b64 exec, -1")
    a("s_nop 3")
    a.label(lab)


def hflag_lines(a, val):
    lab = a.newlabel("nf")
    a("s_cmp_lg_u32 %s, 0" % s(sWAVE))
    a("s_cbranch_scc1 %s" % lab)
    a("v_mov_b32 v29, %d" % val)
    a("v_mov_b32 v30, %s" % s(sHF))
    a("s_mov_b64 exec, 1")
    a("buffer_store_dword v29, v30, %s, 0 offen sc1" % s(WS, 4))
    a("s_mov_b64 exec, -1")
    a("s_nop 3")
    a.label(lab)


def poll_issue(a, vdst, vaddr, srd_=DBG):
    a("buffer_load_dword %s, %s, %s, 0 offen sc1" % (v(vdst), v(vaddr), s(srd_, 4)))


def poll_check(a, vdst, vaddr, vneed, issued, srd_=DBG):
    top = a.newlabel("poll"); done = a.newlabel("pdone"); chk = a.newlabel("pchk")
    a("s_mov_b32 %s, 0" % s(T7))
    if issued:
        a("s_branch %s" % chk)
    a.label(top)
    poll_issue(a, vdst, vaddr, srd_)
    a("s_waitcnt vmcnt(0)")
    a.label(chk)
    a("v_and_b32 %s, %s, %s" % (v(vdst), v(vdst), v(vneed)))
    a("v_cmp_ne_u32 vcc, %s, %s" % (v(vdst), v(vneed)))
    a("s_add_u32 %s, %s, 1" % (s(T7), s(T7)))
    a("s_nop 3")
    a("s_cbranch_vccz %s" % done)
    a("s_sleep %s" % OPT.get("sleep", "4"))
    a("s_cmp_lt_u32 %s, %d" % (s(T7), SPIN_MAX))
    a("s_cbranch_scc1 %s" % top)
    a.label(done)


def prep_ln(a):
    a("v_lshlrev_b32 v122, 8, v1")
    a("v_and_b32 v123, 31, v3")
    a("v_lshl_add_u32 v122, v123, 3, v122")
    a("v_lshrrev_b32 v123, 5, v3")
    a("v_lshl_add_u32 v122, v123, 12, v122")
    a("v_add_u32 v122, %d, v122" % STG)
    a("s_and_b32 %s, %s, 15" % (s(T0), s(sSP)))
    a("s_lshl_b32 %s, %s, 7" % (s(T0), s(T0)))
    a("s_lshr_b32 %s, %s, 4" % (s(T1), s(sSP)))
    a("s_add_u32 %s, %s, %s" % (s(T0), s(T0), s(T1)))
    a("s_lshl_b32 %s, %s, 3" % (s(T1), s(sWAVE)))
    a("s_add_u32 %s, %s, %s" % (s(T0), s(T0), s(T1)))
    a("s_lshl_b32 %s, %s, 3" % (s(T0), s(T0)))
    a("s_add_u32 %s, %s, %s" % (s(T0), s(T0), hx(STAT_OFF)))
    a("v_mov_b32 v123, %s" % s(T0))
    streams = []
    for ri, B in enumerate(ROWB):
        RAW, X, T, M, R, D = B, B + 8, B + 24, B + 32, B + 34, B + 36
        S1, S2 = (T5, T6) if ri == 0 else (24, 25)
        L = []
        for p in range(8):
            L.append("v_lshlrev_b32 %s, 16, %s" % (v(X + 2 * p), v(RAW + p)))
            L.append("v_and_b32 %s, %s, %s" % (v(X + 2 * p + 1), s(sHI), v(RAW + p)))
        pk = lambda d, x, y, m="": L.append("v_pk_add_f32 %s, %s, %s%s" % (v(d, 2), v(x, 2), v(y, 2), m))

        def wsum(r, sd):
            for m in ("quad_perm:[1,0,3,2] row_mask:0xf", "quad_perm:[2,3,0,1] row_mask:0xf",
                      "row_half_mirror row_mask:0xf", "row_mirror row_mask:0xf",
                      "row_bcast:15 row_mask:0xa", "row_bcast:31 row_mask:0xc"):
                L.append("s_nop 0")
                L.append("v_add_f32_dpp %s, %s, %s %s bank_mask:0xf" % (v(r), v(r), v(r), m))
            L.append("s_nop 0")
            L.append("v_readlane_b32 %s, %s, 63" % (s(sd), v(r)))
            L.append("s_nop 0")
        pk(T, X, X + 2); pk(T + 2, X + 4, X + 6); pk(T + 4, X + 8, X + 10); pk(T + 6, X + 12, X + 14)
        pk(T, T, T + 2); pk(T + 4, T + 4, T + 6); pk(T, T, T + 4)
        L.append("v_add_f32 %s, %s, %s" % (v(T), v(T), v(T + 1)))
        wsum(T, S1)
        L.append("v_mov_b32 %s, %s" % (v(M), hx(f32(1.0 / 1024))))
        L.append("v_mul_f32 %s, %s, %s" % (v(M), s(S1), v(M)))
        for g4 in range(2):
            for p in range(4):
                pk(D + 2 * p, X + 8 * g4 + 2 * p, M, " op_sel_hi:[1,0]" + NEG1)
            for p in range(4):
                t = T + 2 * (p & 1)
                if g4 == 0 and p < 2:
                    L.append("v_pk_mul_f32 %s, %s, %s" % (v(t, 2), v(D + 2 * p, 2), v(D + 2 * p, 2)))
                else:
                    L.append("v_pk_fma_f32 %s, %s, %s, %s" % (v(t, 2), v(D + 2 * p, 2), v(D + 2 * p, 2), v(t, 2)))
        pk(T, T, T + 2)
        L.append("v_add_f32 %s, %s, %s" % (v(T), v(T), v(T + 1)))
        wsum(T, S2)
        L.append("v_mov_b32 %s, %s" % (v(R), hx(f32(1.0 / 1024))))
        L.append("v_mul_f32 %s, %s, %s" % (v(R), s(S2), v(R)))
        L.append("v_cvt_pk_bf16_f32 %s, %s, %s" % (v(R), v(R), v(R)))
        L.append("v_lshlrev_b32 %s, 16, %s" % (v(R), v(R)))
        L.append("v_add_f32 %s, %s, %s" % (v(R), hx(f32(1e-5)), v(R)))
        L.append("v_cvt_pk_bf16_f32 %s, %s, %s" % (v(R), v(R), v(R)))
        L.append("v_lshlrev_b32 %s, 16, %s" % (v(R), v(R)))
        L.append("v_sqrt_f32 %s, %s" % (v(R), v(R)))
        L.append("v_cvt_pk_bf16_f32 %s, %s, %s" % (v(M), v(M), v(M)))
        L.append("v_cvt_pk_bf16_f32 %s, %s, %s" % (v(R), v(R), v(R)))
        L.append("v_lshlrev_b32 %s, 16, %s" % (v(M), v(M)))
        L.append("v_lshlrev_b32 %s, 16, %s" % (v(R), v(R)))
        L.append("v_rcp_f32 %s, %s" % (v(R), v(R)))
        for p in range(4):
            pk(D + 2 * p, X + 2 * p, M, " op_sel_hi:[1,0]" + NEG1)
        L.append("v_mov_b32 %s, %s" % (v(M + 1), v(R)))
        for p in range(4):
            L.append("v_cvt_pk_bf16_f32 %s, %s, %s" % (v(T + p), v(D + 2 * p), v(D + 2 * p + 1)))
        for p in range(4):
            L.append("v_lshlrev_b32 %s, 16, %s" % (v(D + 2 * p), v(T + p)))
            L.append("v_and_b32 %s, %s, %s" % (v(D + 2 * p + 1), s(sHI), v(T + p)))
        for p in range(4):
            L.append("v_pk_mul_f32 %s, %s, %s op_sel_hi:[1,0]" % (v(D + 2 * p, 2), v(D + 2 * p, 2), v(R, 2)))
        for p in range(4):
            L.append("v_cvt_pk_bf16_f32 %s, %s, %s" % (v(T + p), v(D + 2 * p), v(D + 2 * p + 1)))
        for p in range(4):
            L.append("v_lshlrev_b32 %s, 16, %s" % (v(X + 2 * p), v(T + p)))
            L.append("v_and_b32 %s, %s, %s" % (v(X + 2 * p + 1), s(sHI), v(T + p)))
        pk(D, X, X + 4); pk(D + 2, X + 2, X + 6)
        pk(D + 4, X, X + 4, NEG1); pk(D + 6, X + 2, X + 6, NEG1)
        for p in range(4):
            L.append("v_cvt_pk_f16_f32 %s, %s, %s" % (v(T + p), v(D + 2 * p), v(D + 2 * p + 1)))
        for wh in range(2):
            L.append("ds_write_b64 v122, %s offset:%d" % (v(T + 2 * wh, 2), wh * 8192 + ri * 2048))
        streams.append(L)
    for x, y in zip(*streams):
        a(x); a(y)
    lab = a.newlabel("nostat")
    a("s_cmp_lg_u32 %s, 0" % s(sHALF))
    a("s_cbranch_scc1 %s" % lab)
    a("s_mov_b64 exec, 1")
    for ri, B in enumerate(ROWB):
        a("buffer_store_dwordx2 %s, v123, %s, 0 offen offset:%d%s" % (v(B + 32, 2), s(WS, 4), ri * 512, SC1))
    a("s_mov_b64 exec, -1")
    a.label(lab)


def prep_dft(a):
    a("s_lshr_b32 %s, %s, 1" % (s(T0), s(sWAVE)))
    a("s_lshl_b32 %s, %s, 13" % (s(T1), s(T0)))
    a("s_add_u32 %s, %s, %d" % (s(T1), s(T1), STG))
    a("v_lshlrev_b32 v122, 2, v3")
    a("v_add_u32 v122, %s, v122" % s(T1))
    IN = [32, 48]
    for ab in range(2):
        for j in range(8):
            a("ds_read2st64_b32 %s, v122 offset0:%d offset1:%d" % (v(IN[ab] + 2 * j, 2), ab * 16 + j, ab * 16 + j + 8))
    a("s_lshl_b32 %s, %s, 9" % (s(T1), s(sSP)))
    a("s_lshl_b32 %s, %s, 8" % (s(T2), s(sHALF)))
    a("s_add_u32 %s, %s, %s" % (s(T1), s(T1), s(T2)))
    a("s_lshl_b32 %s, %s, 17" % (s(T2), s(T0)))
    a("s_add_u32 %s, %s, %s" % (s(T1), s(T1), s(T2)))
    a("s_add_u32 %s, %s, %s" % (s(T1), s(T1), hx(CB_OFF)))
    a("v_lshlrev_b32 v123, 2, v3")
    a("v_add_u32 v123, %s, v123" % s(T1))
    for r_, val in ((C1, math.cos(math.pi / 8)), (C2, math.cos(math.pi / 4)), (C3, math.cos(3 * math.pi / 8))):
        a("s_mov_b32 %s, %s" % (s(r_), hx(f32(val))))
        a("s_mov_b32 %s, %s" % (s(r_ + 1), hx(f32(val))))
    odd = a.newlabel("dft_odd"); done = a.newlabel("dft_done")
    a("s_bitcmp1_b32 %s, 0" % s(sWAVE))
    a("s_cbranch_scc1 %s" % odd)
    for parity in range(2):
        if parity:
            a.label(odd)
        free = list(range(64, 120, 2))
        alloc = lambda: free.pop(0)

        def rel(*rs):
            free.extend(rs)

        def add(x, y):
            d = alloc(); a("v_pk_add_f32 %s, %s, %s" % (v(d, 2), v(x, 2), v(y, 2))); return d

        def sub(x, y):
            d = alloc(); a("v_pk_add_f32 %s, %s, %s%s" % (v(d, 2), v(x, 2), v(y, 2), NEG1)); return d

        def mul(x, c):
            d = alloc(); a("v_pk_mul_f32 %s, %s, %s" % (v(d, 2), v(x, 2), s(c, 2))); return d

        def fma(x, c, y, nx=False, ny=False):
            d = alloc()
            mod = " neg_lo:[%d,0,%d] neg_hi:[%d,0,%d]" % (nx, ny, nx, ny) if (nx or ny) else ""
            a("v_pk_fma_f32 %s, %s, %s, %s%s" % (v(d, 2), v(x, 2), s(c, 2), v(y, 2), mod)); return d

        def mix(r, neg):
            d = alloc()
            for h in range(2):
                a("v_fma_mix_f32 %s, %s, 1.0, %s%s op_sel:[%d,0,%d] op_sel_hi:[1,0,1]" % (v(d + h), v(r), "-" if neg else "", v(r + 1), h, h))
            rel(r)
            return d

        def dft(base):
            p = {}; q = {}
            if parity == 0:
                u = [mix(base + 2 * j, False) for j in range(8)]
                uu = []; uv = []
                for j in range(4):
                    uu.append(add(u[j], u[j + 4])); uv.append(sub(u[j], u[j + 4])); rel(u[j], u[j + 4])
                e0 = add(uu[0], uu[2]); e1 = add(uu[1], uu[3])
                p[4] = sub(uu[0], uu[2]); q[4] = sub(uu[1], uu[3]); rel(*uu)
                p[0] = add(e0, e1); p[8] = sub(e0, e1); rel(e0, e1)
                dm = sub(uv[1], uv[3]); dp = add(uv[1], uv[3])
                p[2] = fma(dm, C2, uv[0]); p[6] = fma(dm, C2, uv[0], nx=True)
                q[2] = fma(dp, C2, uv[2]); q[6] = fma(dp, C2, uv[2], ny=True)
                rel(dm, dp, *uv)
            else:
                w = [mix(base + 2 * j, True) for j in range(8)]
                aa = {}; bb = {}
                for j in (1, 2, 3):
                    aa[j] = sub(w[j], w[8 - j]); bb[j] = add(w[j], w[8 - j]); rel(w[j], w[8 - j])
                Ap = fma(aa[2], C2, w[0]); Am = fma(aa[2], C2, w[0], nx=True); rel(aa[2], w[0])
                t = mul(aa[1], C1); G1 = fma(aa[3], C3, t); rel(t)
                t = mul(aa[1], C3); G3 = fma(aa[3], C1, t, nx=True); rel(t, aa[1], aa[3])
                p[1] = add(Ap, G1); p[7] = sub(Ap, G1); p[3] = add(Am, G3); p[5] = sub(Am, G3); rel(Ap, Am, G1, G3)
                Bp = fma(bb[2], C2, w[4]); B3 = fma(bb[2], C2, w[4], ny=True); rel(bb[2], w[4])
                t = mul(bb[1], C3); H1 = fma(bb[3], C1, t); rel(t)
                t = mul(bb[1], C1); H3 = fma(bb[3], C3, t, nx=True); rel(t, bb[1], bb[3])
                q[1] = add(H1, Bp); q[7] = sub(H1, Bp); q[3] = add(H3, B3); q[5] = sub(H3, B3); rel(Bp, B3, H1, H3)
            return p, q

        a("s_waitcnt lgkmcnt(0)")
        pa, qa = dft(IN[0])
        pb, qb = dft(IN[1])
        tmpd = []
        for _ in range(4):
            r_ = alloc(); tmpd += [r_, r_ + 1]
        t2 = [alloc(), alloc()]
        cnt = [0]

        def st(reg, arr):
            d = tmpd[cnt[0] % len(tmpd)]; cnt[0] += 1
            a("v_cvt_pk_bf16_f32 %s, %s, %s" % (v(d), v(reg), v(reg + 1)))
            a("s_mov_b32 %s, %s" % (s(T1), hx(arr * 65536)))
            a("buffer_store_dword %s, v123, %s, %s offen%s" % (v(d), s(WS, 4), s(T1), SC1))

        rs = [2, 4, 6] if parity == 0 else [1, 3, 5, 7]
        p1 = a.newlabel("dft_p1")
        a("s_cmp_ge_u32 %s, 2" % s(sWAVE))
        a("s_cbranch_scc1 %s" % p1)
        def comb(x, y, arr1, arr2):
            a("v_pk_add_f32 %s, %s, %s" % (v(t2[0], 2), v(x, 2), v(y, 2)))
            a("v_pk_add_f32 %s, %s, %s%s" % (v(t2[1], 2), v(x, 2), v(y, 2), NEG1))
            st(t2[0], arr1); st(t2[1], arr2)
        if parity == 0:
            comb(pa[0], pb[0], 0, 4); comb(pa[8], pb[8], 1, 5)
        for r_ in rs:
            comb(pa[r_], pb[r_], r_ * 8, r_ * 8 + 4); comb(qa[r_], qb[r_], r_ * 8 + 1, r_ * 8 + 5)
        a("s_branch %s" % done)
        a.label(p1)
        if parity == 0:
            st(pa[0], 0); st(pb[0], 1); st(pa[8], 4); st(pb[8], 5)
        for r_ in rs:
            a("v_pk_add_f32 %s, %s, %s%s" % (v(t2[0], 2), v(pa[r_], 2), v(qb[r_], 2), NEG1))
            a("v_pk_add_f32 %s, %s, %s" % (v(t2[1], 2), v(qa[r_], 2), v(pb[r_], 2)))
            st(t2[0], r_ * 8); st(t2[1], r_ * 8 + 1)
            a("v_pk_add_f32 %s, %s, %s" % (v(t2[0], 2), v(pa[r_], 2), v(qb[r_], 2)))
            a("v_pk_add_f32 %s, %s, %s%s" % (v(t2[1], 2), v(qa[r_], 2), v(pb[r_], 2), NEG1))
            st(t2[0], r_ * 8 + 4); st(t2[1], r_ * 8 + 5)
        if parity == 0:
            a("s_branch %s" % done)
    a.label(done)


def rowimg_frag_addr(a, dst0, dst1, rowbase_sgpr):
    a("v_and_b32 %s, 15, v3" % v(dst0))
    a("v_lshlrev_b32 %s, 7, %s" % (v(dst0), v(dst0)))
    a("v_lshrrev_b32 %s, 4, v3" % v(dst1))
    a("v_bfe_u32 v2, v3, 1, 3")
    a("v_xor_b32 %s, %s, v2" % (v(dst1), v(dst1)))
    a("v_lshl_add_u32 %s, %s, 4, %s" % (v(dst0), v(dst1), v(dst0)))
    a("v_add_u32 %s, %s, %s" % (v(dst0), s(rowbase_sgpr), v(dst0)))
    a("v_xor_b32 %s, 64, %s" % (v(dst1), v(dst0)))


def silu_tail(a, regs, tmp):
    for t in tmp:
        a("v_exp_f32 %s, %s" % (v(t), v(t)))
        a("v_exp_f32 %s, %s" % (v(t + 1), v(t + 1)))
    for t in tmp:
        a("v_pk_add_f32 %s, %s, 1.0 op_sel_hi:[1,0]" % (v(t, 2), v(t, 2)))
    for t in tmp:
        a("v_rcp_f32 %s, %s" % (v(t), v(t)))
        a("v_rcp_f32 %s, %s" % (v(t + 1), v(t + 1)))
    for r_, t in zip(regs, tmp):
        a("v_pk_mul_f32 %s, %s, %s" % (v(r_, 2), v(r_, 2), v(t, 2)))


def silu_pk(a, regs, tmp):
    for r_, t in zip(regs, tmp):
        a("v_pk_mul_f32 %s, %s, %s" % (v(t, 2), v(r_, 2), s(sNL2E, 2)))
    silu_tail(a, regs, tmp)


ACC1 = 128
vM0, vM1, vNa, vNb, vNc = 4, 5, 6, 7, 8
cM0, cM1, cNa, cNb, cNc = 9, 10, 11, 12, 13
vZ0, vZ1 = 14, 15


def compute_setup(a):
    a("s_lshr_b32 %s, %s, 1" % (s(sWM), s(sWAVE)))
    a("s_and_b32 %s, %s, 1" % (s(sWN), s(sWAVE)))
    a("s_lshl_b32 %s, s2, 15" % s(T0))
    a("s_lshl_b32 %s, %s, 13" % (s(T1), s(sWAVE)))
    a("s_add_u32 %s, %s, %s" % (s(T0), s(T0), s(T1)))
    a("s_add_u32 %s, %s, %s" % (s(T0), s(T0), hx(EX_OFF)))
    a("v_lshlrev_b32 v24, 4, v3")
    a("v_add_u32 v24, %s, v24" % s(T0))
    a("v_add_u32 v25, 4096, v24")
    a("s_lshl_b32 %s, %s, 13" % (s(T0), s(sWM)))
    rowimg_frag_addr(a, vM0, vM1, T0)
    a("s_lshl_b32 %s, %s, 13" % (s(T0), s(sWN)))
    a("s_add_u32 %s, %s, 16384" % (s(T0), s(T0)))
    rowimg_frag_addr(a, vZ0, vZ1, T0)
    a("v_lshrrev_b32 v18, 4, v3")
    a("v_bfe_u32 v17, v3, 2, 2")
    a("v_lshl_add_u32 v17, v18, 3, v17")
    a("v_mul_u32_u24 v17, 448, v17")
    a("v_and_b32 v19, 3, v3")
    a("v_lshl_add_u32 v17, v19, 3, v17")
    a("v_and_b32 v19, 1, v18")
    a("v_lshlrev_b32 v19, 5, v19")
    a("s_lshl_b32 %s, %s, 6" % (s(T0), s(sWN)))
    a("s_add_u32 %s, %s, 16384" % (s(T0), s(T0)))
    a("v_add_u32 v20, %s, v17" % s(T0))
    a("v_add_u32 %s, v20, v19" % v(vNa))
    a("v_sub_u32 %s, v20, v19" % v(vNb))
    a("s_lshl_b32 %s, %s, 5" % (s(T0), s(sWN)))
    a("v_xor_b32 v20, %s, v19" % s(T0))
    a("v_add_u32 v20, v20, v17")
    a("v_add_u32 %s, %d, v20" % (v(vNc), 16384 + 384))
    a("v_and_b32 v21, 1, v18")
    a("v_lshlrev_b32 v21, 5, v21")
    a("v_lshrrev_b32 v19, 1, v18")
    a("v_lshl_add_u32 v21, v19, 4, v21")
    a("s_lshl_b32 %s, %s, 4" % (s(T0), s(sRB)))
    a("s_add_u32 %s, %s, %s" % (s(T0), s(T0), s(sCB)))
    a("s_mul_i32 %s, %s, 49152" % (s(T1), s(T0)))
    a("s_lshl_b32 %s, %s, 13" % (s(T2), s(sWN)))
    a("s_add_u32 %s, %s, %s" % (s(T1), s(T1), s(T2)))
    a("s_lshl_b32 %s, %s, 12" % (s(T2), s(sWM)))
    a("s_add_u32 %s, %s, %s" % (s(T1), s(T1), s(T2)))
    a("s_add_u32 %s, %s, %s" % (s(T1), s(T1), hx(HR_OFF)))
    a("v_and_b32 v22, 15, v3")
    a("v_lshl_add_u32 v17, v22, 6, v21")
    a("v_add_u32 v17, %s, v17" % s(T1))
    a("s_lshl_b32 %s, %s, 13" % (s(T1), s(T0)))
    a("s_lshl_b32 %s, %s, 12" % (s(T2), s(sWN)))
    a("s_add_u32 %s, %s, %s" % (s(T1), s(T1), s(T2)))
    a("s_lshl_b32 %s, %s, 11" % (s(T2), s(sWM)))
    a("s_add_u32 %s, %s, %s" % (s(T1), s(T1), s(T2)))
    a("s_add_u32 %s, %s, %s" % (s(T1), s(T1), hx(HL_OFF)))
    a("v_and_b32 v20, 1, v18")
    a("v_lshl_add_u32 v20, v20, 4, v22")
    a("v_lshlrev_b32 v20, 5, v20")
    a("v_lshl_add_u32 v20, v19, 4, v20")
    a("v_add_u32 v20, %s, v20" % s(T1))
    a("s_lshl_b32 %s, %s, 7" % (s(T1), s(sWN)))
    a("s_add_u32 %s, %s, %d" % (s(T1), s(T1), CSB))
    a("v_lshlrev_b32 v26, 4, v18")
    a("v_add_u32 v26, %s, v26" % s(T1))
    a("s_lshl_b32 %s, %s, 6" % (s(T1), s(sWN)))
    a("s_add_u32 %s, %s, %d" % (s(T1), s(T1), CSB + 768))
    a("v_lshlrev_b32 v27, 4, v18")
    a("v_add_u32 v27, %s, v27" % s(T1))
    a("s_lshl_b32 %s, %s, 9" % (s(T1), s(sWM)))
    a("s_add_u32 %s, %s, %d" % (s(T1), s(T1), STB))
    a("v_lshlrev_b32 v28, 3, v22")
    a("v_add_u32 v28, %s, v28" % s(T1))
    for i in range(112):
        a("v_mov_b32 %s, 0" % v(ACC1 + i))
    a("s_mov_b32 %s, 0" % s(sSLOT))


def compute_g1_s1(a):
    ACC = ACC1
    FR = [32, 76]
    cZ0, cZ1 = cNa, cNb

    def set_addr(lst):
        return ["v_add_u32 %s, %s, %s" % (v(c), s(sSLOT), v(b)) for c, b in lst]

    def next_slot():
        return ["s_add_u32 s14, s14, %d" % G1SLOT, "s_cmp_eq_u32 s14, %d" % (G1SLOT * 3), "s_cselect_b32 s14, 0, s14"]

    G1A = [(cM0, vM0), (cM1, vM1), (cNa, vNa), (cNb, vNb), (cNc, vNc)]

    def s1_addr(k):
        return ["v_add_u32 %s, %s, %s" % (v(c), hx(S1SLOTS[k]), v(b)) for c, b in
                [(cM0, vM0), (cM1, vM1), (cZ0, vZ0), (cZ1, vZ1)]]

    def g1_reads(fs, ks):
        r = []
        for nt in range(7):
            ad = cNc if nt == 6 else (cNb if nt & 1 else cNa)
            off = 0 if nt == 6 else 128 * (nt >> 1) + 32 * (nt & 1)
            for h in range(2):
                r.append("ds_read_b64_tr_b16 %s, %s offset:%d" % (
                    v(FR[fs] + 16 + 4 * nt + 2 * h, 2), v(ad), ks * 14336 + h * 1792 + off))
            if nt < 4:
                r.append("ds_read_b128 %s, %s offset:%d" % (v(FR[fs] + 4 * nt, 4), v(cM1 if ks else cM0), nt * 2048))
        return r

    def g1_mfmas(fs):
        return [mfma(ACC + 4 * (nt * 4 + mt), FR[fs] + 16 + 4 * nt, FR[fs] + 4 * mt) for nt in range(7) for mt in range(4)]

    def g1_iter(extra_b=(), pre_bar=(), tail=(), flag=None):
        interleave(a, g1_mfmas(0), g1_reads(1, 1) + next_slot() + set_addr(G1A))
        a("s_waitcnt lgkmcnt(0)")
        a.all(pre_bar)
        a("s_barrier")
        if flag is not None:
            flag_lines(a, flag)
        interleave(a, g1_mfmas(1), g1_reads(0, 0) + list(extra_b))
        a("s_waitcnt lgkmcnt(0)")
        a.all(tail)

    def g1_loop(n):
        a("s_mov_b32 %s, 0" % s(sCNT))
        loop = a.newlabel("g1_loop")
        a.raw(".p2align 6")
        a.label(loop)
        g1_iter(["s_add_u32 s15, s15, 1", "s_cmp_lt_u32 s15, %d" % n], tail=["s_cbranch_scc1 %s" % loop])

    if OPT.get("sent", "g1") == "pre":
        for i in range(4):
            a("v_mov_b32 %s, -1" % v(240 + i))
        for i in range(8):
            a("buffer_store_dwordx4 v[240:243], %s, %s, 0 offen offset:%d%s" % ("v25" if i >= 4 else "v24", s(WS, 4), (i & 3) * 1024, SC1))
    a.all(set_addr(G1A))
    mark(a, 3)
    a("s_barrier")
    mark(a, 4)
    a.all(g1_reads(0, 0))
    a("s_waitcnt lgkmcnt(0)")
    if STAMP:
        g1_loop(3)
        mark(a, 15)
        g1_loop(2)
    else:
        g1_loop(5)
    g1_iter(pre_bar=["s_waitcnt vmcnt(0)"], flag=1)
    if STAMP:
        mark(a, 2)
        g1_loop(3)
        mark(a, 1)
        g1_loop(3)
        mark(a, 0)
        g1_loop(3)
    else:
        g1_loop(9)
    interleave(a, g1_mfmas(0), g1_reads(1, 1) + s1_addr(0))
    a("s_waitcnt lgkmcnt(0)")
    a("s_barrier")
    CSR, STR = 32, 60
    rd = ["ds_read_b128 %s, v26 offset:%d" % (v(CSR + 4 * nt, 4), 256 * (nt >> 1) + 64 * (nt & 1)) for nt in range(6)]
    rd.append("ds_read_b128 %s, v27" % v(CSR + 24, 4))
    rd += ["ds_read_b64 %s, v28 offset:%d" % (v(STR + 2 * mt, 2), 128 * mt) for mt in range(4)]
    interleave(a, g1_mfmas(1), rd)
    mark(a, 5)
    a("s_waitcnt lgkmcnt(0)")
    RL = 68
    for mt in range(4):
        a("v_rcp_f32 %s, %s" % (v(RL + 2 * mt + 1), v(STR + 2 * mt + 1)))
        a("v_mul_f32 %s, %s, %s" % (v(RL + 2 * mt), s(sNL2E), v(STR + 2 * mt + 1)))
    TMP = 76
    PK = [88, 92, 96, 100, 104, 108, 112, 116]
    for pr in range(3):
        a("s_mov_b32 %s, %d" % (s(T0 + pr), pr * 16384))
    pki = 0
    groups = [[(mt, 2 * pr), (mt, 2 * pr + 1)] for mt in range(4) for pr in range(3)]
    groups.insert(6, [(0, 6), (1, 6)]); groups.append([(2, 6), (3, 6)])
    for gr in groups:
        regs = []; cs = []; mts = []
        for mt, nt in gr:
            b = ACC + 4 * (nt * 4 + mt)
            regs += [b, b + 2]; cs += [CSR + 4 * nt, CSR + 4 * nt + 2]; mts += [mt, mt]
        tmp = [TMP + 2 * i for i in range(4)]
        for r_, c_, mt in zip(regs, cs, mts):
            a("v_pk_fma_f32 %s, %s, %s, %s op_sel_hi:[1,0,1] neg_lo:[0,1,0] neg_hi:[0,1,0]" % (v(r_, 2), v(c_, 2), v(STR + 2 * mt, 2), v(r_, 2)))
        for r_, t, mt in zip(regs, tmp, mts):
            a("v_pk_mul_f32 %s, %s, %s op_sel_hi:[1,0]" % (v(t, 2), v(r_, 2), v(RL + 2 * mt, 2)))
        for t_ in tmp:
            a("v_exp_f32 %s, %s" % (v(t_), v(t_)))
            a("v_exp_f32 %s, %s" % (v(t_ + 1), v(t_ + 1)))
        for t_, mt in zip(tmp, mts):
            a("v_pk_fma_f32 %s, %s, %s, %s op_sel:[0,1,1]" % (v(t_, 2), v(t_, 2), v(RL + 2 * mt, 2), v(RL + 2 * mt, 2)))
        for t_ in tmp:
            a("v_rcp_f32 %s, %s" % (v(t_), v(t_)))
            a("v_rcp_f32 %s, %s" % (v(t_ + 1), v(t_ + 1)))
        for r_, t_ in zip(regs, tmp):
            a("v_pk_mul_f32 %s, %s, %s" % (v(r_, 2), v(r_, 2), v(t_, 2)))
        P = PK[pki % len(PK)]; pki += 1
        for i, r_ in enumerate(regs):
            a("v_cvt_pk_bf16_f32 %s, %s, %s" % (v(P + i), v(r_), v(r_ + 1)))
        a("s_nop 1")
        a("v_permlane16_swap_b32 %s, %s" % (v(P), v(P + 2)))
        a("v_permlane16_swap_b32 %s, %s" % (v(P + 1), v(P + 3)))
        mt, nt = gr[0]
        if nt < 6:
            a("buffer_store_dwordx4 %s, v17, %s, %s offen offset:%d%s" % (v(P, 4), s(WS, 4), s(T0 + nt // 2), mt * 1024, SC1))
        else:
            a("buffer_store_dwordx4 %s, v20, %s, 0 offen offset:%d%s" % (v(P, 4), s(WS, 4), (mt // 2) * 1024, SC1))
    mark(a, 6)

    def s1_reads(fs, ks):
        r = []
        for t in range(4):
            r.append("ds_read_b128 %s, %s offset:%d" % (v(FR[fs] + 4 * t, 4), v(cM1 if ks else cM0), t * 2048))
            r.append("ds_read_b128 %s, %s offset:%d" % (v(FR[fs] + 16 + 4 * t, 4), v(cZ1 if ks else cZ0), t * 2048))
        return r

    def s1_mfmas(fs, first):
        return [mfma(ACC + 4 * (mt * 4 + nt), FR[fs] + 4 * mt, FR[fs] + 16 + 4 * nt, "0" if first else None)
                for mt in range(4) for nt in range(4)]

    HF = int(OPT.get("hf", "-1"))
    if HF == -1:
        a("s_waitcnt vmcnt(0)")
    a("s_barrier")
    if HF == -1:
        hflag_lines(a, 1)
    a.all(s1_reads(0, 0))
    a("s_lshr_b32 %s, %s, 3" % (s(T0), s(sTAU)))
    a("s_and_b32 %s, %s, 3" % (s(T1), s(T0)))
    a("s_cmp_eq_u32 %s, 3" % s(T0))
    a("s_cselect_b32 %s, 1, %s" % (s(T1), s(T1)))
    a("s_lshr_b32 %s, %s, 2" % (s(T2), s(T0)))
    a("s_cmp_eq_u32 %s, 3" % s(T0))
    a("s_cselect_b32 %s, 8, %s" % (s(T2), s(T2)))
    a("s_lshl_b32 %s, %s, 19" % (s(T2), s(T2)))
    a("s_bfe_u32 %s, %s, 0x20001" % (s(T3), s(sTAU)))
    a("s_lshl_b32 %s, %s, 6" % (s(T3), s(T3)))
    a("s_lshl_b32 %s, %s, 5" % (s(T4), s(sWN)))
    a("s_add_u32 %s, %s, %s" % (s(T3), s(T3), s(T4)))
    a("v_and_b32 v17, 15, v3")
    a("v_add_u32 v17, %s, v17" % s(T3))
    a("v_sub_u32 v22, %d, v17" % (3 * 256 + 239))
    a("s_lshl_b32 %s, %s, 8" % (s(T1), s(T1)))
    a("v_add_u32 v17, %s, v17" % s(T1))
    a("s_and_b32 %s, %s, 1" % (s(T3), s(sTAU)))
    a("s_lshl_b32 %s, %s, 1" % (s(T3), s(T3)))
    a("s_add_u32 %s, %s, %s" % (s(T3), s(T3), s(sWM)))
    a("s_lshl_b32 %s, %s, 16" % (s(T3), s(T3)))
    a("s_add_u32 %s, %s, %s" % (s(T3), s(T3), hx(ZT_OFF)))
    a("v_add_u32 v23, %s, v21" % s(T3))
    a("v_lshl_add_u32 v17, v17, 6, v23")
    a("v_lshl_add_u32 v22, v22, 6, v23")
    a("s_waitcnt lgkmcnt(0)")
    for k in range(4):
        interleave(a, s1_mfmas(0, k == 0), s1_reads(1, 1) + (s1_addr(k + 1) if k < 3 else []))
        a("s_waitcnt lgkmcnt(0)")
        interleave(a, s1_mfmas(1, False), s1_reads(0, 0) if k < 3 else [])
        if k < 3:
            a("s_waitcnt lgkmcnt(0)")
        if k == HF:
            a("s_waitcnt vmcnt(0)")
            a("s_barrier")
            hflag_lines(a, 1)
    mark(a, 7)
    a("s_barrier")
    mark(a, 8)
    a("s_nop 7")
    TMP = 32
    PK = [56, 60, 64, 68, 72, 76, 80, 84]
    typeB = a.newlabel("s1_typeB"); done = a.newlabel("s1_done")
    a("s_and_b32 %s, %s, 29" % (s(T3), s(T0)))
    a("s_cmp_eq_u32 %s, 0" % s(T3))
    a("s_cbranch_scc1 %s" % typeB)
    tile = lambda m, n: ACC + 4 * (m * 4 + n)
    pki = 0
    for n in range(2):
        for uv in range(2):
            P = PK[pki]; pki += 1
            for m in range(2):
                for h in range(2):
                    if uv == 0:
                        a("v_pk_add_f32 %s, %s, %s" % (v(TMP + 2 * h, 2), v(tile(m, n) + 2 * h, 2), v(tile(m + 2, n + 2) + 2 * h, 2)))
                    else:
                        a("v_pk_add_f32 %s, %s, %s%s" % (v(TMP + 2 * h, 2), v(tile(m + 2, n) + 2 * h, 2), v(tile(m, n + 2) + 2 * h, 2), NEG1))
                for h in range(2):
                    a("v_cvt_pk_bf16_f32 %s, %s, %s" % (v(P + 2 * m + h), v(TMP + 2 * h), v(TMP + 2 * h + 1)))
            a("s_add_u32 %s, %s, %d" % (s(T3), s(T2), n * 1024 + uv * 262144))
            a("s_nop 0")
            a("v_permlane16_swap_b32 %s, %s" % (v(P), v(P + 2)))
            a("v_permlane16_swap_b32 %s, %s" % (v(P + 1), v(P + 3)))
            a("buffer_store_dwordx4 %s, v17, %s, %s offen%s" % (v(P, 4), s(WS, 4), s(T3), SC1))
    a("s_cmp_ge_u32 %s, 4" % s(T0))
    a("s_cbranch_scc1 %s" % done)
    a("s_mov_b32 %s, 0x80008000" % s(T4))
    pki = 0
    for n in range(2):
        for uv in range(2):
            P = PK[pki]; pki += 1
            a("s_add_u32 %s, %s, %d" % (s(T3), s(T2), (1 - n) * 1024 + uv * 262144))
            if uv:
                Q = PK[4 + n]
                for i in range(4):
                    a("v_xor_b32 %s, %s, %s" % (v(Q + i), s(T4), v(P + i)))
                P = Q
            a("buffer_store_dwordx4 %s, v22, %s, %s offen%s" % (v(P, 4), s(WS, 4), s(T3), SC1))
    a("s_branch %s" % done)
    a.label(typeB)
    pki = 0
    for n in range(2):
        for half in range(2):
            for uv in range(2):
                P = PK[pki]; pki += 1
                sg = "-" if uv else ""
                for m in range(2):
                    t = tile(m + 2 * half, n + 2 * uv)
                    for h in range(2):
                        a("v_cvt_pk_bf16_f32 %s, %s%s, %s%s" % (v(P + 2 * m + h), sg, v(t + 2 * h), sg, v(t + 2 * h + 1)))
                a("s_mov_b32 %s, %d" % (s(T3), half * 8 * 524288 + n * 1024 + uv * 262144))
                a("s_nop 0")
                a("v_permlane16_swap_b32 %s, %s" % (v(P), v(P + 2)))
                a("v_permlane16_swap_b32 %s, %s" % (v(P + 1), v(P + 3)))
                a("buffer_store_dwordx4 %s, v17, %s, %s offen%s" % (v(P, 4), s(WS, 4), s(T3), SC1))
    a.label(done)
    mark(a, 9)


def dma(a, ldsoff, vaddr, srd_, soff, coh=False):
    a("s_add_u32 m0, %s, %d" % (s(sSLOT), ldsoff))
    a("s_nop 0")
    a("buffer_load_dwordx4 %s, %s, %s offen%s lds" % (v(vaddr), s(srd_, 4), s(soff), SC1 if coh else ""))


LVA, LVB, LVC, LVD = 8, 12, 20, 24
CSD = 128


def g1_issue(a):
    for i in range(4):
        dma(a, i * 4096, LVA + i, XS, sKA)
    for i in range(7):
        dma(a, 16384 + i * 4096, LVB + i, W1, sKB)
    a("s_add_u32 %s, %s, 128" % (s(sKA), s(sKA)))
    a("s_add_u32 %s, %s, %d" % (s(sKB), s(sKB), 64 * 7168))
    a("s_add_u32 s14, s14, %d" % G1SLOT)
    a("s_cmp_eq_u32 s14, %s" % s(sWRAP))
    a("s_cselect_b32 s14, %s, s14" % s(sSL0))


def loader_setup(a):
    a("s_sub_u32 %s, %s, 4" % (s(sL), s(sWAVE)))
    a("s_and_b32 %s, %s, 1" % (s(T0), s(sL)))
    a("s_lshl_b32 %s, %s, 2" % (s(T0), s(T0)))
    a("v_lshrrev_b32 v4, 4, v3")
    a("v_add_u32 v4, %s, v4" % s(T0))
    a("v_and_b32 v5, 7, v3")
    a("v_xor_b32 v4, v4, v5")
    a("v_lshlrev_b32 v4, 4, v4")
    a("v_lshrrev_b32 v5, 3, v3")
    a("s_lshl_b32 %s, %s, 3" % (s(T0), s(sL)))
    a("v_add_u32 v5, %s, v5" % s(T0))
    a("v_lshlrev_b32 v30, 2, v3")
    a("s_lshl_b32 %s, %s, 10" % (s(sSL0), s(sL)))
    a("s_lshl_b32 %s, %s, 11" % (s(T0), s(sRB)))
    a("v_lshl_add_u32 v6, v5, 15, v4")
    a("v_add_u32 v6, %s, v6" % s(T0))
    for i in range(4):
        a("v_add_u32 %s, %s, v6" % (v(LVA + i), hx(i * 32 * 32768)))
    a("s_lshl_b32 %s, %s, 6" % (s(T0), s(sL)))
    a("v_add_u32 v6, %s, v3" % s(T0))
    a("s_mul_i32 %s, %s, 448" % (s(T1), s(sCB)))
    for i in range(7):
        a("v_add_u32 v7, %d, v6" % (256 * i))
        a("v_mul_u32_u24 v28, 2341, v7")
        a("v_lshrrev_b32 v28, 16, v28")
        a("v_mul_u32_u24 v29, 28, v28")
        a("v_sub_u32 v29, v7, v29")
        a("v_bfe_u32 v31, v28, 3, 1")
        a("v_lshlrev_b32 v31, 1, v31")
        a("v_xor_b32 v29, v29, v31")
        a("v_mul_u32_u24 v28, 7168, v28")
        a("v_lshl_add_u32 v28, v29, 4, v28")
        a("v_add_u32 %s, %s, v28" % (v(LVB + i), s(T1)))
    a("s_mov_b32 %s, %s" % (s(sSLOT), s(sSL0)))
    a("s_add_u32 %s, %s, %d" % (s(sWRAP), s(sSL0), G1SLOT * 3))
    a("s_mov_b32 %s, 0" % s(sKA))
    a("s_mov_b32 %s, 0" % s(sKB))
    a("v_and_b32 v6, 31, v3")
    a("v_lshrrev_b32 v7, 5, v3")
    a("v_mul_u32_u24 v7, 7168, v7")
    a("v_lshl_add_u32 v7, v6, 4, v7")
    a("s_xor_b32 %s, %s, %s" % (s(T0), s(sRB), OPT.get("csx", "0")))
    a("s_lshl_b32 %s, %s, 6" % (s(T0), s(T0)))
    a("s_lshl_b32 %s, %s, 4" % (s(T2), s(sL)))
    a("s_add_u32 %s, %s, %s" % (s(T0), s(T0), s(T2)))
    a("s_mul_i32 %s, %s, 7168" % (s(T0), s(T0)))
    a("s_add_u32 %s, %s, %s" % (s(T0), s(T0), s(T1)))
    a("v_add_u32 v7, %s, v7" % s(T0))
    a("v_cmp_gt_u32 vcc, 28, v6")
    a("v_mov_b32 v28, 0x7f000000")
    a("s_nop 0")
    a("v_cndmask_b32 v7, v28, v7, vcc")
    g1_issue(a)
    for i in range(8):
        a("s_mov_b32 %s, %d" % (s(T0), i * 2 * 7168))
        a("buffer_load_dwordx4 %s, v7, %s, %s offen" % (v(CSD + 4 * i, 4), s(W1, 4), s(T0)))
    for _ in range(int(OPT.get("early", "1")) - 1):
        g1_issue(a)
    pf_addr(a)


def pf_addr(a):
    a("s_lshl_b32 %s, s2, 2" % s(T0))
    a("s_add_u32 %s, %s, %s" % (s(T0), s(T0), s(sL)))
    a("s_mul_i32 %s, %s, 7168" % (s(T1), s(T0)))
    a("v_lshlrev_b32 v124, 4, v3")
    a("v_add_u32 v124, %s, v124" % s(T1))
    a("v_add_u32 v125, 4096, v124")
    a("s_lshr_b32 %s, %s, 1" % (s(T2), s(T0)))
    a("v_lshrrev_b32 v126, 5, v3"); a("v_lshlrev_b32 v126, 11, v126"); a("v_and_b32 v127, 31, v3"); a("v_lshl_add_u32 v126, v127, 4, v126")
    a("s_lshl_b32 %s, %s, 12" % (s(T3), s(T2))); a("v_add_u32 v126, %s, v126" % s(T3))
    a("v_lshrrev_b32 v127, 4, v3"); a("v_lshlrev_b32 v127, 12, v127"); a("v_and_b32 v2, 15, v3"); a("v_lshl_add_u32 v127, v2, 4, v127")
    a("s_lshl_b32 %s, %s, 14" % (s(T3), s(T2))); a("v_add_u32 v127, %s, v127" % s(T3))


def pf_pair(a, vaddr, sre, sim):
    l2 = a.newlabel("pf2"); l3 = a.newlabel("pf3")
    a("s_bitcmp1_b32 %s, 0" % s(sWAVE))
    a("s_cbranch_scc1 %s" % l2)
    a("buffer_load_dwordx4 v[244:247], %s, %s, 0 offen" % (v(vaddr), s(sre, 4)))
    a("s_branch %s" % l3)
    a.label(l2)
    a("buffer_load_dwordx4 v[244:247], %s, %s, 0 offen" % (v(vaddr), s(sim, 4)))
    a.label(l3)


def loader_g1_s1(a):
    AC = CSD + 32
    PFS = OPT.get("pf", "s") == "s"
    PFK = 99 if PFS else int(OPT.get("pf", "-1"))
    EARLY = int(OPT.get("early", "1"))
    q = ["g0"] * 11 + ["csl"] * 8 + [x for i in range(1, EARLY) for x in ["g%d" % i] * 11]

    def issue(st):
        g1_issue(a); q.extend(["g%d" % st] * 11)

    def need(*tags):
        idx = max(i for i, x in enumerate(q) if x in tags)
        n = len(q) - idx - 1
        del q[:idx + 1]
        return n

    def bar(*tags, lg=False):
        n = need(*tags)
        a("s_waitcnt vmcnt(%d)%s" % (n, " lgkmcnt(0)" if lg else ""))
        a("s_barrier")

    def prefetch():
        a.c("warm the memory-side cache with this wave's share of w2 and of the C slices")
        for i in range(7):
            a("buffer_load_dwordx4 v[244:247], %s, %s, 0 offen offset:%d" % ("v125" if i >= 4 else "v124", s(W2, 4), (i & 3) * 1024))
        pf_pair(a, 127, CR, CI)
        q.extend(["pf"] * 8)

    def cs_chunk(rng):
        for i in rng:
            for d in range(4):
                src = CSD + 4 * i + d
                t_ = AC + 2 * d if i == 0 else AC + 8 + 2 * d
                a("v_lshlrev_b32 %s, 16, %s" % (v(t_), v(src)))
                a("v_and_b32 %s, %s, %s" % (v(t_ + 1), s(sHI), v(src)))
            if i:
                for d in range(4):
                    a("v_pk_add_f32 %s, %s, %s" % (v(AC + 2 * d, 2), v(AC + 2 * d, 2), v(AC + 8 + 2 * d, 2)))

    def after0():
        cs_chunk(range(0, 4))

    def after1():
        cs_chunk(range(4, 8))
        a("v_lshrrev_b32 v28, 5, v3")
        a("s_lshl_b32 %s, %s, 1" % (s(T0), s(sL)))
        a("v_add_u32 v28, %s, v28" % s(T0))
        a("v_lshlrev_b32 v28, 10, v28")
        a("v_lshl_add_u32 v28, v6, 5, v28")
        a("v_add_u32 v28, %d, v28" % CSP)
        a("ds_write_b128 v28, %s" % v(AC, 4))
        a("ds_write_b128 v28, %s offset:16" % v(AC + 4, 4))
        a("s_waitcnt lgkmcnt(0)")

    def after2():
        a("s_lshl_b32 %s, %s, 8" % (s(T0), s(sL)))
        a("v_add_u32 v19, %s, v30" % s(T0))
        a("v_add_u32 v28, %d, v19" % CSP)
        for i in range(8):
            a("ds_read_b32 %s, v28 offset:%d" % (v(CSD + i), i * 1024))
        a("s_lshl_b32 %s, %s, 14" % (s(T0), s(sCB)))
        a("s_lshl_b32 %s, %s, 10" % (s(T1), s(sRB)))
        a("s_add_u32 %s, %s, %s" % (s(T1), s(T1), s(T0)))
        a("s_add_u32 %s, %s, %s" % (s(T1), s(T1), hx(CS_OFF)))
        a("v_mov_b32 v31, 0x01010101")
        a("s_waitcnt lgkmcnt(0)")
        for st in (4, 2, 1):
            for i in range(st):
                a("v_add_f32 %s, %s, %s" % (v(CSD + i), v(CSD + i), v(CSD + i + st)))
        a("buffer_store_dword %s, v19, %s, %s offen%s" % (v(CSD), s(WS, 4), s(T1), SC1))
        q.append("cs_store")

    def after3():
        a("s_lshr_b32 %s, %s, 3" % (s(T0), s(sTAU)))
        a("s_lshl_b32 %s, %s, 17" % (s(T1), s(T0)))
        a("s_and_b32 %s, %s, 1" % (s(T2), s(sTAU)))
        a("s_lshl_b32 %s, %s, 15" % (s(T3), s(T2)))
        a("s_add_u32 %s, %s, %s" % (s(T1), s(T1), s(T3)))
        a("s_add_u32 %s, %s, %s" % (s(T1), s(T1), hx(CB_OFF)))
        a("v_lshl_add_u32 v6, v5, 9, v4")
        a("v_add_u32 v6, %s, v6" % s(T1))
        for i in range(4):
            a("v_add_u32 %s, %s, v6" % (v(LVC + i), hx((i & 1) * 65536 + (i >> 1) * 32 * 512)))
        a("s_and_b32 %s, %s, 3" % (s(T1), s(T0)))
        a("s_cmp_eq_u32 %s, 3" % s(T0))
        a("s_cselect_b32 %s, 1, %s" % (s(T1), s(T1)))
        a("s_lshl_b32 %s, %s, 11" % (s(T1), s(T1)))
        a("s_bfe_u32 %s, %s, 0x20001" % (s(T3), s(sTAU)))
        a("s_lshl_b32 %s, %s, 19" % (s(T3), s(T3)))
        a("s_add_u32 %s, %s, %s" % (s(T1), s(T1), s(T3)))
        a("v_lshl_add_u32 v6, v5, 13, v4")
        a("v_add_u32 v6, %s, v6" % s(T1))
        for i in range(4):
            a("v_add_u32 %s, %s, v6" % (v(LVD + i), hx((i >> 1) * 32 * 8192)))
        a("s_lshl_b32 %s, s2, 15" % s(T0))
        a("s_lshl_b32 %s, %s, 13" % (s(T1), s(sL)))
        a("s_add_u32 %s, %s, %s" % (s(T0), s(T0), s(T1)))
        a("s_add_u32 %s, %s, %s" % (s(T0), s(T0), hx(EX_OFF)))
        a("v_lshlrev_b32 v6, 4, v3")
        a("v_add_u32 v6, %s, v6" % s(T0))
        a("v_add_u32 v7, 4096, v6")
        for i in range(4):
            a("v_mov_b32 %s, -1" % v(240 + i))

    def sentinel(i):
        a("buffer_store_dwordx4 v[240:243], %s, %s, 0 offen offset:%d%s" % ("v7" if i >= 4 else "v6", s(WS, 4), (i & 3) * 1024, SC1))
        q.append("sent")

    def after9():
        poll_issue(a, 29, 30); q.append("poll")

    def after11():
        a.c("fetch the 16 partial column sums of this column block and this class's row stats")
        a("s_lshl_b32 %s, %s, 14" % (s(T0), s(sCB)))
        a("s_add_u32 %s, %s, %s" % (s(T0), s(T0), hx(CS_OFF)))
        for i in range(16):
            if i and i % 4 == 0:
                a("s_add_u32 %s, %s, 4096" % (s(T0), s(T0)))
            a("buffer_load_dword %s, v19, %s, %s offen offset:%d%s" % (v(CSD + i), s(WS, 4), s(T0), (i & 3) * 1024, SC1))
        a("s_lshl_b32 %s, %s, 10" % (s(T0), s(sRB)))
        a("s_add_u32 %s, %s, %s" % (s(T0), s(T0), hx(STAT_OFF)))
        a("buffer_load_dword %s, v19, %s, %s offen%s" % (v(CSD + 16), s(WS, 4), s(T0), SC1))
        q.extend(["fetch"] * 17)

    def after13():
        a("s_waitcnt vmcnt(%d)" % need("fetch"))
        for st in (8, 4, 2, 1):
            for i in range(st):
                a("v_add_f32 %s, %s, %s" % (v(CSD + i), v(CSD + i), v(CSD + i + st)))
        a("v_add_u32 v28, %d, v19" % CSB)
        a("ds_write_b32 v28, %s" % v(CSD))
        a("ds_write_b32 v28, %s offset:%d" % (v(CSD + 16), STB - CSB))
        a("s_waitcnt lgkmcnt(0)")

    hooks = {0: after0, 1: after1, 2: after2, 3: after3, 9: after9, 11: after11, 13: after13}
    a("s_waitcnt lgkmcnt(0)")
    a("s_barrier")
    for st in range(EARLY, 3):
        issue(st)
    if OPT.get("cov", "0") == "1":
        a("s_cmp_lt_u32 %s, 8" % s(sRB))
        a("s_mov_b32 %s, %d" % (s(T1), 512 * 7168))
        a("s_cselect_b32 %s, %s, %s" % (s(T1), s(T1), hx(-512 * 7168)))
        a("v_add_u32 v2, %s, v7" % s(T1))
        for i in range(8):
            a("s_mov_b32 %s, %d" % (s(T0), i * 2 * 7168))
            a("buffer_load_dwordx4 v[244:247], v2, %s, %s offen" % (s(W1, 4), s(T0)))
        q.extend(["pf"] * 8)
    pf_pair(a, 126, DR, DI); q.append("pf")
    if PFK == -1:
        prefetch()
    if PFS:
        pf_pair(a, 127, CR, CI); q.append("pf")
        a("s_lshl_b32 %s, s2, 2" % s(T0))
        a("s_add_u32 %s, %s, %s" % (s(T0), s(T0), s(sL)))
        a("s_mul_i32 %s, %s, 7168" % (s(T0), s(T0)))
        a("s_add_u32 s30, %s, %s" % (s(W2), s(T0)))
        a("s_addc_u32 s31, %s, 0" % s(W2 + 1))
    bar("g0")
    for k in range(15):
        tags = ["g%d" % (k + 1)]
        if k == 5:
            tags.append("cs_store")
        if k == 11:
            a("s_waitcnt vmcnt(%d)" % need("g12", "poll"))
            poll_check(a, 29, 30, 31, True)
            a("s_barrier")
        else:
            bar(*tags)
        if k + 3 <= 15:
            issue(k + 3)
        if k in hooks:
            hooks[k]()
        if 4 <= k <= 11 and OPT.get("sent", "g1") == "g1":
            sentinel(k - 4)
        if k == 4 and OPT.get("sent", "g1") == "g1b":
            for i in range(8):
                sentinel(i)
        if k == PFK:
            prefetch()
        if PFS and 2 <= k <= 11:
            for i in range(12 * (k - 2), min(112, 12 * (k - 1))):
                a("s_load_dword s29, s[30:31], %d" % (i * 64))

    def issue_s1(k):
        a("s_add_u32 %s, %s, %d" % (s(sSLOT), s(sSL0), S1SLOTS[k]))
        a("s_mov_b32 %s, %d" % (s(sKA), k * 128))
        for i in range(4):
            dma(a, i * 4096, LVC + i, WS, sKA, coh=True)
        for i in range(4):
            dma(a, 16384 + i * 4096, LVD + i, DI if i & 1 else DR, sKA)

    issue_s1(2)
    a("s_barrier")
    for k in (0, 1, 3):
        issue_s1(k)
    g2_loader_setup(a)
    a("s_and_b32 %s, %s, 4" % (s(sP3), s(sCB8)))
    for st in range(NRB()):
        g2_koff(a, st, False, True)
        for i in range(4):
            a("buffer_load_dwordx4 %s, %s, %s, %s offen" % (v(RBB + 16 * st + 4 * i, 4), v(GVB + i), s(W2, 4), s(sKB)))
    a("v_lshlrev_b32 %s, 4, v3" % v(GWA))
    a("v_add_u32 %s, %s, %s" % (v(GWA), s(sSL0), v(GWA)))
    a("s_waitcnt vmcnt(%d)" % (4 * NRB()))
    a("s_barrier")


RBB = 64
GWA = 60


def NRB():
    return int(OPT.get("nrb", "0"))


def g2_koff(a, st, want_a, want_b):
    j, p_ = divmod(st, 3)
    a("s_xor_b32 %s, %s, %d" % (s(T0), s(sP3), j))
    if want_a:
        a("s_mul_i32 %s, %s, 49152" % (s(sKA), s(T0)))
        if p_:
            a("s_add_u32 %s, %s, %d" % (s(sKA), s(sKA), p_ * 16384))
    if want_b:
        a("s_mul_i32 %s, %s, %d" % (s(sKB), s(T0), 224 * 2048))
        if p_:
            a("s_add_u32 %s, %s, %d" % (s(sKB), s(sKB), p_ * 64 * 2048))


NJ = 28
NREG = 24
NSOLO = 4


def compute_g2(a):
    ACC = 128; ACY = 192; XR = 224; RX = 96
    FR = [32, 64]
    gN0, gZ0, gZ1 = 6, 7, 8
    cN = 11
    a("v_and_b32 v17, 15, v3")
    a("v_lshlrev_b32 v17, 15, v17")
    a("s_lshl_b32 %s, %s, 21" % (s(T0), s(sWM)))
    a("s_lshl_b32 %s, %s, 11" % (s(T1), s(sCLS)))
    a("s_add_u32 %s, %s, %s" % (s(T0), s(T0), s(T1)))
    a("s_lshl_b32 %s, %s, 8" % (s(T1), s(sCB8)))
    a("s_add_u32 %s, %s, %s" % (s(T0), s(T0), s(T1)))
    a("s_lshl_b32 %s, %s, 7" % (s(T1), s(sKH)))
    a("s_add_u32 %s, %s, %s" % (s(T0), s(T0), s(T1)))
    a("s_lshl_b32 %s, %s, 6" % (s(T1), s(sWN)))
    a("s_add_u32 %s, %s, %s" % (s(T0), s(T0), s(T1)))
    a("v_add_u32 v17, %s, v17" % s(T0))
    a("v_lshl_add_u32 v19, v18, 3, v17")
    for mt in range(4):
        a("s_mov_b32 %s, %d" % (s(T3 + mt), mt * 16 * 16 * 2048))
    a("v_add_u32 v17, v17, v21")
    a("s_lshl_b32 %s, %s, 12" % (s(T0), s(sWN)))
    a("s_add_u32 %s, %s, 16384" % (s(T0), s(T0)))
    rowimg_frag_addr(a, gZ0, gZ1, T0)
    a("v_bfe_u32 v20, v3, 2, 2")
    a("v_lshl_add_u32 v23, v18, 3, v20")
    a("v_lshlrev_b32 v23, 8, v23")
    a("v_and_b32 v22, 3, v3")
    a("v_lshl_add_u32 v23, v22, 3, v23")
    a("v_and_b32 v22, 1, v18")
    a("v_lshl_or_b32 v20, v22, 2, v20")
    a("s_lshl_b32 %s, %s, 1" % (s(T0), s(sWN)))
    a("s_lshl_b32 %s, %s, 2" % (s(T1), s(sKH)))
    a("s_add_u32 %s, %s, %s" % (s(T0), s(T0), s(T1)))
    a("v_xor_b32 v20, %s, v20" % s(T0))
    a("v_lshl_add_u32 v23, v20, 5, v23")
    a("v_add_u32 %s, 16384, v23" % v(gN0))
    a("v_xor_b32 v15, 0x20000, v24")
    a("v_xor_b32 v16, 0x20000, v25")
    for i in range(96):
        a("v_mov_b32 %s, 0" % v(ACC + i))
    a("s_mov_b32 %s, %d" % (s(sSLOT), 4 * G2SLOT))

    def set_addr(joint):
        r = ["v_add_u32 %s, s14, %s" % (v(cM0), v(vM0)), "v_add_u32 %s, s14, %s" % (v(cM1), v(vM1))]
        if joint:
            r.append("v_add_u32 %s, s14, %s" % (v(cN), v(gN0)))
            for nt, x in ((1, 32), (2, 128), (3, 160)):
                r.append("v_xor_b32 %s, %d, %s" % (v(cN + nt), x, v(cN)))
        else:
            r += ["v_add_u32 %s, s14, %s" % (v(cN), v(gZ0)), "v_add_u32 %s, s14, %s" % (v(cN + 1), v(gZ1))]
        return r

    def next_slot():
        return ["s_add_u32 s14, s14, %d" % G2SLOT, "s_cmp_eq_u32 s14, %d" % (G2SLOT * 5), "s_cselect_b32 s14, 0, s14"]

    def reads(fs, ks, joint):
        r = []
        for t in range(4):
            if joint:
                for h in range(2):
                    r.append("ds_read_b64_tr_b16 %s, %s offset:%d" % (v(FR[fs] + 16 + 4 * t + 2 * h, 2), v(cN + t), ks * 8192 + h * 1024))
            elif t < 2:
                r.append("ds_read_b128 %s, %s offset:%d" % (v(FR[fs] + 16 + 4 * t, 4), v(cN + ks), t * 2048))
            r.append("ds_read_b128 %s, %s offset:%d" % (v(FR[fs] + 4 * t, 4), v(cM1 if ks else cM0), t * 2048))
        return r

    ot = lambda mt, nt: ACC + 4 * (nt * 4 + mt)

    def jm(fs, order=(0, 1, 2, 3)):
        return [mfma(ot(mt, nt), FR[fs] + 16 + 4 * nt, FR[fs] + 4 * mt) for nt in order for mt in range(4)]

    def sm(fs):
        return [mfma(ACY + 4 * (nt * 4 + mt), FR[fs] + 16 + 4 * nt, FR[fs] + 4 * mt) for nt in range(2) for mt in range(4)]

    a.all(set_addr(True))
    a("s_barrier")
    mark(a, 10)
    a.all(reads(0, 0, True))
    a("s_mov_b32 %s, 0" % s(sCNT))
    a("s_waitcnt lgkmcnt(0)")

    def joint_iter(nxt_joint, extra=(), pre_bar=(), flag=None, bar=True):
        interleave(a, jm(0), reads(1, 1, True) + next_slot() + set_addr(nxt_joint), per=2)
        a("s_waitcnt lgkmcnt(0)")
        a.all(pre_bar)
        if bar:
            a("s_barrier")
        if flag is not None:
            flag_lines(a, flag)
        interleave(a, jm(1), reads(0, 0, True) + list(extra), per=1)
        a("s_waitcnt lgkmcnt(0)")

    ZK = int(OPT.get("zk", "6"))

    def g2_loop(n):
        a("s_mov_b32 %s, 0" % s(sCNT))
        loop = a.newlabel("g2_loop")
        a.raw(".p2align 6")
        a.label(loop)
        joint_iter(True, ["s_add_u32 s15, s15, 1", "s_cmp_lt_u32 s15, %d" % n])
        a("s_cbranch_scc1 %s" % loop)

    g2_loop(ZK)
    joint_iter(True, pre_bar=["s_waitcnt vmcnt(0)"], flag=7)
    mark(a, 26)
    g2_loop(NJ - 2 - ZK)
    interleave(a, jm(0), reads(1, 1, True) + next_slot() + set_addr(False), per=2)
    a("s_waitcnt lgkmcnt(0)")
    a("s_barrier")
    m = jm(1, (2, 3, 0, 1))
    interleave(a, m[:8], reads(0, 0, False))
    for i in range(8):
        a(m[8 + i])
        b = ACC + 32 + 4 * i
        for j in range(4):
            a("v_min_u32 %s, -2, %s" % (v(b + j), v(b + j)))
        a("buffer_store_dwordx4 %s, %s, %s, 0 offen offset:%d sc1" % (v(b, 4), "v16" if i >= 4 else "v15", s(WS, 4), (i & 3) * 1024))
    a("s_waitcnt lgkmcnt(0)")
    mark(a, 11)

    def recv_loads():
        return ["buffer_load_dwordx4 %s, %s, %s, 0 offen offset:%d sc1" % (v(RX + 4 * i, 4), "v25" if i >= 4 else "v24", s(WS, 4), (i & 3) * 1024)
                for i in range(8)]

    xl = ["buffer_load_dwordx2 %s, v19, %s, %s offen offset:%d" % (v(XR + 4 * mt + 2 * nt, 2), s(XS, 4), s(T3 + mt), nt * 32)
          for mt in range(4) for nt in range(2)]
    for k in range(NSOLO):
        last = k == NSOLO - 1
        interleave(a, sm(0), reads(1, 1, False) + ([] if last else next_slot() + set_addr(False)), per=2)
        a("s_waitcnt lgkmcnt(0)")
        if not last:
            a("s_barrier")
            interleave(a, sm(1), reads(0, 0, False) + (xl[4 * k:4 * k + 4] if k < 2 else []), per=2)
            a("s_waitcnt lgkmcnt(0)")
        else:
            interleave(a, sm(1), recv_loads())
    mark(a, 12)
    top = a.newlabel("rx"); chk = a.newlabel("rxchk"); ok = a.newlabel("rxok")
    a("s_mov_b32 %s, 0" % s(T7))
    a("s_branch %s" % chk)
    a.label(top)
    a.all(recv_loads())
    a.label(chk)
    a("s_waitcnt vmcnt(0)")
    a("v_max3_u32 v26, %s, %s, %s" % (v(RX), v(RX + 1), v(RX + 2)))
    a("v_max3_u32 v27, %s, %s, %s" % (v(RX + 3), v(RX + 4), v(RX + 5)))
    for i in range(6, 30, 4):
        a("v_max3_u32 v26, v26, %s, %s" % (v(RX + i), v(RX + i + 1)))
        a("v_max3_u32 v27, v27, %s, %s" % (v(RX + i + 2), v(RX + i + 3)))
    a("v_max3_u32 v26, v26, %s, %s" % (v(RX + 30), v(RX + 31)))
    a("v_max_u32 v26, v26, v27")
    a("v_cmp_eq_u32 vcc, -1, v26")
    a("s_add_u32 %s, %s, 1" % (s(T7), s(T7)))
    a("s_nop 3")
    a("s_cbranch_vccz %s" % ok)
    a("s_sleep 1")
    a("s_cmp_lt_u32 %s, %d" % (s(T7), SPIN_MAX))
    a("s_cbranch_scc1 %s" % top)
    a.label(ok)
    mark(a, 13)
    TMP = 32
    PK = [64, 68, 72, 76]
    MIMIC = OPT.get("mimic", "0") == "1"

    def rnd(regs, t):
        for i, r_ in enumerate(regs):
            a("v_cvt_pk_bf16_f32 %s, %s, %s" % (v(t + i), v(r_), v(r_ + 1)))
        for i, r_ in enumerate(regs):
            a("v_lshlrev_b32 %s, 16, %s" % (v(r_), v(t + i)))
            a("v_and_b32 %s, %s, %s" % (v(r_ + 1), s(sHI), v(t + i)))

    for mt in range(4):
        offs = [4 * mt, 4 * mt + 2, 16 + 4 * mt, 16 + 4 * mt + 2]
        o = [ACC + x for x in offs]
        y = [ACY + x for x in offs]
        xf = [40 + 2 * i for i in range(4)]
        for i in range(4):
            a("v_pk_add_f32 %s, %s, %s" % (v(o[i], 2), v(o[i], 2), v(RX + offs[i], 2)))
        if MIMIC:
            rnd(o, 48)
        silu_pk(a, o, [TMP + 2 * i for i in range(4)])
        if MIMIC:
            rnd(o, 48)
            rnd(y, 52)
        for i in range(4):
            a("v_lshlrev_b32 %s, 16, %s" % (v(xf[i]), v(XR + 4 * mt + i)))
            a("v_and_b32 %s, %s, %s" % (v(xf[i] + 1), s(sHI), v(XR + 4 * mt + i)))
        if MIMIC:
            for i in range(4):
                a("v_pk_mul_f32 %s, %s, %s" % (v(o[i], 2), v(o[i], 2), v(y[i], 2)))
            rnd(o, 48)
            for i in range(4):
                a("v_pk_add_f32 %s, %s, %s" % (v(o[i], 2), v(o[i], 2), v(xf[i], 2)))
        else:
            for i in range(4):
                a("v_pk_fma_f32 %s, %s, %s, %s" % (v(o[i], 2), v(o[i], 2), v(y[i], 2), v(xf[i], 2)))
        P = PK[mt]
        for i in range(4):
            a("v_cvt_pk_bf16_f32 %s, %s, %s" % (v(P + i), v(o[i]), v(o[i] + 1)))
        a("s_nop 1")
        a("v_permlane16_swap_b32 %s, %s" % (v(P), v(P + 2)))
        a("v_permlane16_swap_b32 %s, %s" % (v(P + 1), v(P + 3)))
        a("buffer_store_dwordx4 %s, v17, %s, %s offen%s" % (v(P, 4), s(OUT, 4), s(T3 + mt), OPT.get("outmod", "").replace("_", " ")))
    mark(a, 14)
    a("s_endpgm")


GVA, GVB, GVA2, GVB2, GVC, GVD = 32, 36, 40, 44, 48, 52
GNH, GNZ, GNH2, GHA = 56, 57, 58, 59


def g2_loader_setup(a):
    a("v_lshrrev_b32 v6, 4, v3")
    a("s_lshr_b32 %s, %s, 1" % (s(T0), s(sL)))
    a("s_lshl_b32 %s, %s, 2" % (s(T0), s(T0)))
    a("v_or_b32 v7, %s, v6" % s(T0))
    a("v_lshlrev_b32 v7, 1, v7")
    a("v_and_b32 v28, 15, v3")
    a("v_xor_b32 v7, v7, v28")
    a("v_lshlrev_b32 v7, 4, v7")
    a("v_lshl_add_u32 v6, v6, 11, v7")
    a("s_mul_i32 %s, %s, %d" % (s(T0), s(sKH), 1792 * 2048))
    a("s_lshl_b32 %s, %s, 13" % (s(T1), s(sL)))
    a("s_add_u32 %s, %s, %s" % (s(T0), s(T0), s(T1)))
    a("s_lshl_b32 %s, %s, 8" % (s(T1), s(sCB8)))
    a("s_add_u32 %s, %s, %s" % (s(T0), s(T0), s(T1)))
    a("v_add_u32 v6, %s, v6" % s(T0))
    for i in range(4):
        a("v_add_u32 %s, %s, v6" % (v(GVB + i), hx(i * 16 * 2048)))
    for i in range(2):
        a("v_add_u32 %s, %s, v6" % (v(GVB2 + i), hx(((i + 2) * 16 + 192) * 2048)))
    a("s_lshl_b32 %s, %s, 4" % (s(T0), s(sCLS)))
    a("s_lshl_b32 %s, %s, 3" % (s(T1), s(sKH)))
    a("s_add_u32 %s, %s, %s" % (s(T0), s(T0), s(T1)))
    a("s_mul_i32 %s, %s, 49152" % (s(T1), s(T0)))
    a("s_add_u32 %s, %s, %s" % (s(T1), s(T1), hx(HR_OFF)))
    a("s_lshl_b32 %s, %s, 13" % (s(T2), s(T0)))
    a("s_add_u32 %s, %s, %s" % (s(T2), s(T2), hx(HL_OFF)))
    a("v_and_b32 v6, 64, v4")
    a("v_lshlrev_b32 v6, 7, v6")
    a("v_and_b32 v7, 48, v4")
    a("v_add_u32 v7, v7, v6")
    a("v_lshl_add_u32 v7, v5, 6, v7")
    a("v_add_u32 v7, %s, v7" % s(T1))
    for i in range(4):
        a("v_add_u32 %s, %d, v7" % (v(GVA + i), i * 32 * 64))
    a("v_and_b32 v7, 32, v4")
    a("v_lshl_add_u32 v6, v7, 7, v6")
    a("v_and_b32 v7, 16, v4")
    a("v_add_u32 v6, v6, v7")
    a("v_lshl_add_u32 v6, v5, 5, v6")
    a("v_add_u32 v6, %s, v6" % s(T2))
    for i in range(4):
        a("v_add_u32 %s, %d, v6" % (v(GVA2 + i), i * 32 * 32))
    a("s_cmp_gt_u32 %s, 8" % s(sCLS))
    a("s_cselect_b32 %s, -1, 0" % s(T0))
    a("s_sub_u32 %s, 16, %s" % (s(T2), s(sCLS)))
    a("s_cmp_gt_u32 %s, 8" % s(sCLS))
    a("s_cselect_b32 %s, %s, %s" % (s(T1), s(T2), s(sCLS)))
    a("s_lshl_b32 %s, %s, 19" % (s(T2), s(T1)))
    a("s_add_u32 %s, %s, %s" % (s(T2), s(T2), hx(ZT_OFF)))
    for i in range(4):
        a("v_add_u32 v6, %d, v5" % (32 * i))
        a("v_lshlrev_b32 v6, 4, v6")
        a("v_add_u32 v6, %s, v6" % s(sCLS))
        a("v_xor_b32 v6, %s, v6" % s(T0))
        a("v_subrev_u32 v6, %s, v6" % s(T0))
        a("v_and_b32 v6, 2047, v6")
        a("v_lshl_add_u32 %s, v6, 12, v4" % v(GVC + i))
    a("s_lshl_b32 %s, %s, 7" % (s(T3), s(sCB8)))
    a("s_lshl_b32 %s, %s, 6" % (s(T4), s(sKH)))
    a("s_add_u32 %s, %s, %s" % (s(T3), s(T3), s(T4)))
    for i in range(2):
        a("v_add_u32 v6, %d, v5" % (32 * i))
        a("v_add_u32 v6, %s, v6" % s(T3))
        a("v_xor_b32 v6, %s, v6" % s(T0))
        a("v_subrev_u32 v6, %s, v6" % s(T0))
        a("v_and_b32 v7, 3, v6")
        a("v_bfe_u32 v6, v6, 2, 8")
        a("v_lshl_add_u32 v6, v7, 8, v6")
        a("v_and_b32 v7, 48, v4")
        a("v_lshl_add_u32 v6, v6, 6, v7")
        a("v_and_b32 v7, 64, v4")
        a("v_lshl_add_u32 v6, v7, 10, v6")
        a("v_add_u32 %s, %s, v6" % (v(GVD + i), s(T2)))
    a("s_bfe_u32 %s, %s, 0x10002" % (s(T3), s(T1)))
    a("v_and_b32 v6, 1, v3")
    a("v_cmp_eq_u32 vcc, %s, v6" % s(T3))
    a("s_and_b32 %s, %s, 3" % (s(T3), s(T1)))
    a("s_lshl_b32 %s, %s, 3" % (s(T3), s(T3)))
    a("s_lshl_b32 %s, 4, %s" % (s(T3), s(T3)))
    a("v_mov_b32 v7, %s" % s(T3))
    a("v_cndmask_b32 %s, 0, v7, vcc" % v(GNZ))
    a("s_andn2_b32 %s, %s, 127" % (s(T2), s(sHF)))
    a("v_and_b32 v6, 7, v3")
    a("v_lshlrev_b32 v6, 2, v6")
    a("v_add_u32 %s, %s, v6" % (v(GHA), s(T2)))
    a("v_lshrrev_b32 v6, 2, v3")
    a("s_lshr_b32 %s, %s, 2" % (s(T2), s(sCB8)))
    a("v_cmp_eq_u32 vcc, %s, v6" % s(T2))
    a("s_xor_b32 %s, %s, 1" % (s(T2), s(T2)))
    a("s_nop 0")
    a("v_cndmask_b32 %s, 0, 1, vcc" % v(GNH))
    a("v_cmp_eq_u32 vcc, %s, v6" % s(T2))
    a("s_lshr_b32 %s, s2, 2" % s(T0))
    a("s_nop 0")
    a("v_cndmask_b32 %s, 0, 1, vcc" % v(GNH2))
    a("v_cmp_ne_u32 vcc, %s, v3" % s(sCB8))
    a("s_xor_b32 %s, %s, 1" % (s(T0), s(T0)))
    a("s_nop 0")
    a("v_cndmask_b32 %s, 0, %s, vcc" % (v(GNH), v(GNH)))
    a("v_cmp_eq_u32 vcc, %s, v3" % s(T0))
    a("s_and_b32 %s, s2, 3" % s(T1))
    a("s_lshl_b32 %s, %s, 3" % (s(T1), s(T1)))
    a("s_lshl_b32 %s, 4, %s" % (s(T1), s(T1)))
    a("v_mov_b32 v7, %s" % s(T1))
    a("v_cndmask_b32 v7, 0, v7, vcc")
    a("v_or_b32 %s, %s, v7" % (v(GNZ), v(GNZ)))


def loader_g2(a):
    a("s_add_u32 %s, %s, %d" % (s(sWRAP), s(sSL0), G2SLOT * 5))
    NT = NJ + NSOLO
    q = []

    def slot_of(st):
        a("s_add_u32 %s, %s, %d" % (s(sSLOT), s(sSL0), ((st + 4) % 5) * G2SLOT))

    def issue(st, want_a=True, want_b=True):
        slot_of(st)
        if st < NREG:
            breg = want_b and st < NRB()
            want_b = want_b and not breg
            if want_a or want_b:
                g2_koff(a, st, want_a, want_b)
            if want_a:
                for i in range(4):
                    dma(a, i * 4096, GVA + i, WS, sKA, coh=True)
            if want_b:
                for i in range(4):
                    dma(a, 16384 + i * 4096, GVB + i, W2, sKB)
            if breg:
                a("v_add_u32 v6, %s, %s" % (hx(((st + 4) % 5) * G2SLOT + 16384), v(GWA)))
                for i in range(4):
                    a("ds_write_b128 v6, %s offset:%d" % (v(RBB + 16 * st + 4 * i, 4), i * 4096))
            q.extend([st] * (4 * want_a + 4 * want_b))
        elif st < NJ:
            lam = st - NREG
            a("s_mov_b32 %s, %d" % (s(sKA), lam * 16384))
            a("s_mov_b32 %s, %d" % (s(sKB), (448 * lam + 192) * 2048))
            for i in range(4):
                dma(a, i * 4096, GVA2 + i, WS, sKA, coh=True)
            for i in range(2):
                dma(a, 16384 + i * 4096, GVB + i, W2, sKB)
            for i in range(2):
                dma(a, 16384 + (i + 2) * 4096, GVB2 + i, W2, sKB)
            q.extend([st] * 8)
        else:
            k = st - NJ
            a("s_mov_b32 %s, %d" % (s(sKA), (k & 1) * 128))
            a("s_mov_b32 %s, %d" % (s(sKB), (k & 1) * 131072 + (k >> 1) * 262144))
            for i in range(4):
                dma(a, i * 4096, GVC + i, CI if k >= 2 else CR, sKA)
            for i in range(2):
                dma(a, 16384 + i * 4096, GVD + i, WS, sKB, coh=True)
            q.extend([st] * 6)

    def wait(*tags):
        idx = max(i for i, x in enumerate(q) if x in tags)
        a("s_waitcnt vmcnt(%d)" % (len(q) - idx - 1))
        del q[:idx + 1]

    assert NRB() == 0
    issue(0, want_a=False)
    top = a.newlabel("pre"); got = a.newlabel("got"); nogot = a.newlabel("nogot")
    a("s_mov_b32 %s, 0" % s(T6))
    a("s_mov_b32 %s, 0" % s(T7))
    a.label(top)
    poll_issue(a, 29, GHA, WS)
    a("s_waitcnt vmcnt(0)")
    a("v_and_b32 v29, v29, %s" % v(GNH))
    a("v_cmp_ne_u32 vcc, v29, %s" % v(GNH))
    a("s_add_u32 %s, %s, 1" % (s(T7), s(T7)))
    a("s_nop 3")
    a("s_cbranch_vccz %s" % got)
    a("s_sleep 2")
    a("s_cmp_lt_u32 %s, %s" % (s(T7), OPT.get("np", "3")))
    a("s_cbranch_scc1 %s" % top)
    a("s_branch %s" % nogot)
    a.label(got)
    mark(a, 9)
    issue(0, want_b=False)
    a("s_mov_b32 %s, 1" % s(T6))
    a.label(nogot)
    a("s_barrier")
    late = a.newlabel("late"); go = a.newlabel("go")
    a("s_cmp_eq_u32 %s, 0" % s(T6))
    a("s_cbranch_scc1 %s" % late)
    issue(1)
    a("s_waitcnt vmcnt(8)")
    a("s_barrier")
    for st in range(2, 5):
        issue(st)
    a("s_waitcnt vmcnt(24)")
    a("s_branch %s" % go)
    a.label(late)
    for st in range(1, 5):
        issue(st, want_a=False)
    poll_check(a, 29, GHA, GNH, False, WS)
    mark(a, 8)
    issue(0, want_b=False)
    issue(1, want_b=False)
    a("s_waitcnt vmcnt(4)")
    a("s_barrier")
    for st in range(2, 5):
        issue(st, want_b=False)
    a("s_waitcnt vmcnt(12)")
    a.label(go)
    del q[:]
    q.extend([1] + [2] * 4 + [3] * 4 + [4] * 4)
    nxt = 5
    for k in range(0, NT - 1):
        last_issue = min(k + 5, NT - 1)
        tags = [k + 1]
        chk = None
        if nxt <= 12 <= last_issue:
            tags.append("p2"); chk = GNH2
        if nxt <= NJ <= last_issue:
            tags.append("p3"); chk = GNZ
        if k > 0:
            wait(*tags)
        else:
            q.remove(1)
        if chk == GNH2:
            poll_check(a, 29, GHA, chk, True, WS)
        elif chk is not None:
            poll_check(a, 29, 30, chk, True)
        a("s_barrier")
        while nxt <= last_issue:
            issue(nxt); nxt += 1
        if k == 3:
            poll_issue(a, 29, GHA, WS); q.append("p2")
        if k == NJ - 9:
            poll_issue(a, 29, 30); q.append("p3")
    a("s_endpgm")


HEADER = """; Kernarg layout (88 bytes, ptrs only, base s[0:1]): 0 A_x, 8 dft_seq_re, 16 dft_seq_im, 24 dft_hid_re,
"""


def main():
    global STAMP
    args = sys.argv[1:]
    if "--stamp" in args:
        STAMP = True; args.remove("--stamp")
    for x in list(args):
        if x.startswith("--") and "=" in x:
            k, val = x[2:].split("="); OPT[k] = val; args.remove(x)
    a = Asm()
    a.raw(HEADER.rstrip("\n"))
    nv = 256 if STAMP else 248
    a.raw("; @launch grid=(256,1,1) block=(512,1,1) lds=163840")
    a.raw('.amdgcn_target "amdgcn-amd-amdhsa--gfx950"')
    a.raw(".text")
    name = NAME + "_kernel"
    kernel_header(a, name)
    prologue(a, "L_end")
    mark(a, 0)
    a("s_cmp_ge_u32 %s, 4" % s(sWAVE))
    a("s_cbranch_scc1 L_loader")
    compute_setup(a)
    if OPT.get("sent", "g1") == "start":
        for i in range(4):
            a("v_mov_b32 %s, -1" % v(240 + i))
        for i in range(8):
            a("buffer_store_dwordx4 v[240:243], %s, %s, 0 offen offset:%d%s" % ("v25" if i >= 4 else "v24", s(WS, 4), (i & 3) * 1024, SC1))
        a("s_waitcnt vmcnt(8)")
    else:
        a("s_waitcnt vmcnt(0)")
    hflag_lines(a, 0)
    prep_ln(a)
    a("s_waitcnt lgkmcnt(0)")
    a("s_barrier")
    prep_dft(a)
    compute_g1_s1(a)
    compute_g2(a)
    a.label("L_loader")
    loader_setup(a)
    a("s_waitcnt vmcnt(%d)" % (8 + 11 * int(OPT.get("early", "1"))))
    mark(a, 1)
    prep_ln(a)
    loader_g1_s1(a)
    loader_g2(a)
    a.label("L_end")
    a("s_endpgm")
    a.raw('.section .rodata,"a"')
    a.raw(kernel_desc(name, nv, NSGPR).rstrip("\n"))
    out = args[0] if args else "cdna_kernels/%s.s" % NAME
    open(out, "w").write(a.text())


if __name__ == "__main__":
    main()
```

```python
import math, struct, sys

NAME = "recurrent_scan__spectral_fnet__dense_activation_silu__prompt"

CS_OFF = 0x0000000
STAT_OFF = 0x0040000
HF_OFF = 0x0050000
SF_OFF = 0x0052000
ZF_OFF = 0x0054000
EP_OFF = 0x0058000
CB_OFF = 0x0400000
ZT_OFF = 0x0800000
HR_OFF = 0x0D00000
HL_OFF = 0x1900000
EX_OFF = 0x1C00000
STAMP_OFF = 0x4000000
WS_SZ = 0x10000000

STAMP = False
SC1 = " sc1"
SPIN_MAX = 200000
OPT = {}

G1SLOT = 45056
G2SLOT = 32768
STG = 143360
CSP = 135168
CSB = 161792
STB = 162816
S1SLOTS = [0, 32768, 65536, 98304]

sWAVE, sXCD, sLOC, sRB, sCB, sTAU, sCLS, sCB8, sKH = 3, 4, 5, 6, 7, 8, 9, 10, 11
sWM, sWN, sSLOT, sCNT = 12, 13, 14, 15
sL = 12
T0, T1, T2, T3, T4, T5, T6, T7 = 16, 17, 18, 19, 20, 21, 22, 23
sTAG, sMK = 38, 76
sSP, sHALF, sHF = 26, 27, 28
WS, W1, DR, DI, W2, CR, CI, XS, OUT, DBG = 40, 44, 48, 52, 56, 60, 64, 68, 72, 76
sNL2E, sHI = 80, 82
C1, C2, C3 = 84, 86, 88
sKA, sKB, sWRAP, sSL0, sP3 = 90, 91, 92, 93, 94
NSGPR = 100


def f32(x):
    return struct.unpack("<I", struct.pack("<f", x))[0]


def hx(x):
    return "0x%x" % (x & 0xFFFFFFFF)


def v(i, n=1):
    return "v%d" % i if n == 1 else "v[%d:%d]" % (i, i + n - 1)


def s(i, n=1):
    return "s%d" % i if n == 1 else "s[%d:%d]" % (i, i + n - 1)


class Asm:
    def __init__(self):
        self.lines = []
        self.uid = 0

    def __call__(self, txt):
        self.lines.append("    " + txt)

    def label(self, l):
        self.lines.append(l + ":")

    def newlabel(self, p):
        self.uid += 1
        return "L_%s_%d" % (p, self.uid)

    def c(self, txt):
        self.lines.append("    ; " + txt)

    def raw(self, txt):
        self.lines.append(txt)

    def all(self, lst):
        for x in lst:
            self(x)

    def text(self):
        return "\n".join(self.lines) + "\n"


def srd(a, dst, ptr, off, size):
    if off:
        a("s_add_u32 %s, %s, %s" % (s(dst), s(ptr), hx(off)))
        a("s_addc_u32 %s, %s, 0" % (s(dst + 1), s(ptr + 1)))
    else:
        a("s_mov_b32 %s, %s" % (s(dst), s(ptr)))
        a("s_mov_b32 %s, %s" % (s(dst + 1), s(ptr + 1)))
    a("s_mov_b32 %s, %s" % (s(dst + 2), hx(size)))
    a("s_mov_b32 %s, 0x20000" % s(dst + 3))


def kernel_header(a, name):
    a.raw(".globl %s" % name)
    a.raw(".p2align 8")
    a.raw(".type %s,@function" % name)
    a.label(name)


def kernel_desc(name, vgpr, sgpr):
    acc = (vgpr + 3) // 4 * 4
    return "\n".join([
        ".p2align 6",
        ".amdhsa_kernel %s" % name,
        "  .amdhsa_next_free_vgpr %d" % vgpr,
        "  .amdhsa_next_free_sgpr %d" % sgpr,
        "  .amdhsa_accum_offset %d" % acc,
        "  .amdhsa_group_segment_fixed_size 0",
        "  .amdhsa_kernarg_size 88",
        "  .amdhsa_user_sgpr_count 2",
        "  .amdhsa_user_sgpr_kernarg_segment_ptr 1",
        "  .amdhsa_system_sgpr_workgroup_id_x 1",
        ".end_amdhsa_kernel",
    ]) + "\n"


NEG1 = " neg_lo:[0,1] neg_hi:[0,1]"


def mark(a, idx):
    if not STAMP:
        return
    lab = a.newlabel("nost")
    a("s_and_b32 s96, %s, 3" % s(sWAVE))
    a("s_cmp_lg_u32 s96, 0")
    a("s_cbranch_scc1 %s" % lab)
    a("s_memrealtime s[96:97]")
    a("s_memtime s[98:99]")
    a("s_waitcnt lgkmcnt(0)")
    a("v_mov_b32 v252, s96")
    a("v_mov_b32 v253, s98")
    a("s_lshl_b32 s96, s2, 8")
    a("s_lshl_b32 s97, %s, 5" % s(sWAVE))
    a("s_add_u32 s96, s96, s97")
    a("s_add_u32 s96, s96, %s" % hx(STAMP_OFF + idx * 8))
    a("v_mov_b32 v254, s96")
    a("buffer_store_dwordx2 v[252:253], v254, %s, 0 offen" % s(WS, 4))
    a.label(lab)


FINE = False


def fine(a):
    if not FINE:
        return
    a("s_memtime s[98:99]")
    a("s_waitcnt lgkmcnt(0)")
    a("s_mov_b32 m0, s100")
    a("s_nop 0")
    a("v_writelane_b32 v250, s98, m0")
    a("s_add_u32 s100, s100, 1")


def fine_dump(a, slot):
    if not FINE:
        return
    a("s_lshl_b32 s96, s2, 11")
    a("s_lshl_b32 s97, %s, 8" % s(sWAVE))
    a("s_add_u32 s96, s96, s97")
    a("s_add_u32 s96, s96, %s" % hx(STAMP_OFF + 0x100000 * (1 + slot)))
    a("v_lshlrev_b32 v251, 2, v3")
    a("buffer_store_dword v250, v251, %s, s96 offen" % s(WS, 4))
    a("s_mov_b32 s100, 0")
    a("s_nop 1")
    a("v_mov_b32 v250, 0")


def interleave(a, main, fill, per=1, start=0):
    fi = 0
    for i, m in enumerate(main):
        a(m)
        if i >= start:
            for _ in range(per):
                if fi < len(fill):
                    a(fill[fi]); fi += 1
    while fi < len(fill):
        a(fill[fi]); fi += 1


def mfma(d, sa, sb, c=None):
    return "v_mfma_f32_16x16x32_bf16 %s, %s, %s, %s" % (v(d, 4), v(sa, 4), v(sb, 4), v(d, 4) if c is None else c)


def prologue(a, endlab):
    a("s_cmp_ge_u32 s2, 256")
    a("s_cbranch_scc1 %s" % endlab)
    if OPT.get("cpf", "1") == "1":
        a("s_getpc_b64 s[96:97]")
        a.label("L_pc")
        a("s_lshr_b32 s98, s2, 3")
        a("s_lshl_b32 s98, s98, 13")
        a("v_lshl_add_u32 v2, v0, 4, s98")
        a("v_cmp_gt_u32 vcc, L_end-L_pc, v2")
        a("s_and_saveexec_b64 s[98:99], vcc")
        a("s_cbranch_execz L_nocpf")
        a("global_load_dwordx4 v[244:247], v2, s[96:97]")
        a.label("L_nocpf")
        a("s_mov_b64 exec, -1")
    a("s_load_dwordx16 s[16:31], s[0:1], 0")
    a("s_load_dwordx4 s[32:35], s[0:1], 64")
    a("s_load_dwordx2 s[36:37], s[0:1], 80")
    a("v_lshrrev_b32 v1, 6, v0")
    a("v_and_b32 v3, 63, v0")
    a("s_and_b32 %s, s2, 7" % s(sXCD))
    a("s_lshr_b32 %s, s2, 3" % s(sLOC))
    a("v_readfirstlane_b32 %s, v1" % s(sWAVE))
    a("s_and_b32 s6, s4, 1"); a("s_lshl_b32 s6, s6, 3"); a("s_and_b32 s7, s5, 7"); a("s_add_u32 s6, s6, s7")
    a("s_lshr_b32 s7, s4, 1"); a("s_lshl_b32 s7, s7, 2"); a("s_lshr_b32 s8, s5, 3"); a("s_add_u32 s7, s7, s8")
    a("s_lshl_b32 s8, s4, 5"); a("s_add_u32 s8, s8, s5")
    a("s_mov_b32 s9, s6")
    a("s_lshr_b32 s11, s7, 3")
    a("s_and_b32 s10, s7, 7")
    a("s_mov_b32 %s, %s" % (s(sNL2E), hx(f32(-1.4426950408889634))))
    a("s_mov_b32 %s, %s" % (s(sNL2E + 1), hx(f32(-1.4426950408889634))))
    a("s_mov_b32 %s, 0xffff0000" % s(sHI))
    a("s_lshr_b32 s38, %s, 1" % s(sTAU))
    a("s_and_b32 s39, %s, 1" % s(sTAU))
    a("v_lshlrev_b32 v26, 18, v1")
    a("v_and_b32 v27, 31, v3")
    a("v_lshl_add_u32 v26, v27, 3, v26")
    a("v_lshrrev_b32 v27, 5, v3")
    a("v_lshl_add_u32 v26, v27, 9, v26")
    a("s_lshl_b32 s95, s38, 11")
    a("v_add_u32 v26, s95, v26")
    a("s_lshl_b32 s95, s39, 8")
    a("v_add_u32 v26, s95, v26")
    a("v_xor_b32 v27, 0x100, v26")
    a("v_mov_b32 v28, %d" % SYNC)
    a("v_mov_b32 v29, 0")
    a("ds_write_b32 v28, v29")
    a("s_waitcnt lgkmcnt(0)")
    srd(a, XS, 16, 0, 2048 * 1024 * 2)
    a("s_cmp_ge_u32 %s, 4" % s(sWAVE))
    a("s_cbranch_scc1 L_nox")
    for ri, B in enumerate(RAWB):
        a("s_mov_b32 s95, %s" % hx(ri * 0x100000))
        for hh in range(2):
            for jj in range(2):
                a("buffer_load_dwordx2 %s, %s, %s, s95 offen offset:%d" % (
                    v(B + 4 * hh + 2 * jj, 2), "v27" if hh else "v26", s(XS, 4), 1024 * jj))
    a.label("L_nox")
    srd(a, WS, 36, 0, WS_SZ)
    srd(a, W1, 28, 0, 1024 * 3584 * 2)
    srd(a, DR, 22, 0, 1024 * 1024 * 2)
    srd(a, DI, 24, 0, 1024 * 1024 * 2)
    srd(a, W2, 30, 0, 3584 * 1024 * 2)
    srd(a, CR, 18, 0, 2048 * 2048 * 2)
    srd(a, CI, 20, 0, 2048 * 2048 * 2)
    srd(a, OUT, 32, 0, 2048 * 1024 * 2)
    a("s_mov_b32 %s, s38" % s(sSP))
    a("s_mov_b32 %s, s39" % s(sHALF))
    a("s_lshl_b32 %s, %s, 4" % (s(sHF), s(sRB)))
    a("s_add_u32 %s, %s, %s" % (s(sHF), s(sHF), s(sCB)))
    a("s_lshr_b32 s95, %s, 3" % s(sHF))
    a("s_lshl_b32 s95, s95, 7")
    a("s_lshl_b32 %s, %s, 2" % (s(sHF), s(sCB8)))
    a("s_add_u32 %s, %s, s95" % (s(sHF), s(sHF)))
    a("s_add_u32 %s, %s, %s" % (s(sHF), s(sHF), hx(HF_OFF)))
    a("s_load_dword %s, s[36:37], %s" % (s(sTAG), hx(EP_OFF)))


ROWB = [32, 76]
RAWB = [32, 76, 240, 120]


def tag_ready(a):
    a("s_add_u32 %s, %s, 0x9e3779b9" % (s(sTAG), s(sTAG)))


def flag_store(a, kind, wave=4):
    lab = a.newlabel("nf")
    a("s_cmp_lg_u32 %s, %d" % (s(sWAVE), wave))
    a("s_cbranch_scc1 %s" % lab)
    if kind == "h":
        a("v_mov_b32 v2, %s" % s(sHF))
    elif kind == "epoch":
        a("s_cmp_lg_u32 s2, 0")
        a("s_cbranch_scc1 %s" % lab)
        a("v_mov_b32 v2, %s" % hx(EP_OFF))
    else:
        idx = "s2" if kind == "s" else s(sTAU)
        a("s_lshr_b32 s96, %s, 3" % idx)
        a("s_lshl_b32 s96, s96, 7")
        a("s_and_b32 s97, %s, 7" % idx)
        a("s_lshl_b32 s97, s97, 2")
        a("s_add_u32 s96, s96, s97")
        a("s_add_u32 s96, s96, %s" % hx(SF_OFF if kind == "s" else ZF_OFF))
        a("v_mov_b32 v2, s96")
    a("v_mov_b32 v1, %s" % s(sTAG))
    a("s_mov_b64 exec, 1")
    a("buffer_store_dword v1, v2, %s, 0 offen sc1" % s(WS, 4))
    a("s_mov_b64 exec, -1")
    a("s_nop 3")
    a.label(lab)


def poll_issue(a, vdst, vaddr, n=1):
    for i in range(n):
        a("buffer_load_dword %s, %s, %s, 0 offen offset:%d sc1" % (v(vdst + i), v(vaddr), s(WS, 4), i * 1024))


def poll_test(a, vdst, mask, n=1):
    a("v_cmp_ne_u32 vcc, %s, %s" % (s(sTAG), v(vdst)))
    for i in range(1, n):
        a("v_cmp_ne_u32 s[96:97], %s, %s" % (s(sTAG), v(vdst + i)))
        a("s_or_b64 vcc, vcc, s[96:97]")
    a("s_nop 0")
    a("s_and_b64 vcc, vcc, %s" % mask)


def poll_check(a, vdst, vaddr, mask, issued, n=1):
    top = a.newlabel("poll"); done = a.newlabel("pdone"); chk = a.newlabel("pchk")
    a("s_mov_b32 %s, 0" % s(T7))
    if issued:
        a("s_branch %s" % chk)
    a.label(top)
    poll_issue(a, vdst, vaddr, n)
    a("s_waitcnt vmcnt(0)")
    a.label(chk)
    a("s_add_u32 %s, %s, 1" % (s(T7), s(T7)))
    poll_test(a, vdst, mask, n)
    a("s_cbranch_scc0 %s" % done)
    a("s_sleep %s" % OPT.get("sleep", "4"))
    a("s_cmp_lt_u32 %s, %d" % (s(T7), SPIN_MAX))
    a("s_cbranch_scc1 %s" % top)
    a.label(done)


def prep_ln(a):
    a("v_lshlrev_b32 v31, 8, v1")
    a("v_and_b32 v2, 31, v3")
    a("v_lshl_add_u32 v31, v2, 3, v31")
    a("v_lshrrev_b32 v2, 5, v3")
    a("v_lshl_add_u32 v31, v2, 12, v31")
    a("v_add_u32 v31, %d, v31" % STG)
    a("s_and_b32 %s, %s, 15" % (s(T0), s(sSP)))
    a("s_lshl_b32 %s, %s, 7" % (s(T0), s(T0)))
    a("s_lshr_b32 %s, %s, 4" % (s(T1), s(sSP)))
    a("s_add_u32 %s, %s, %s" % (s(T0), s(T0), s(T1)))
    a("s_lshl_b32 %s, %s, 3" % (s(T1), s(sWAVE)))
    a("s_add_u32 %s, %s, %s" % (s(T0), s(T0), s(T1)))
    a("s_lshl_b32 %s, %s, 3" % (s(T0), s(T0)))
    a("s_add_u32 %s, %s, %s" % (s(T0), s(T0), hx(STAT_OFF)))
    a("v_mov_b32 v2, %s" % s(T0))
    for ps in range(2):
        a("s_waitcnt vmcnt(%d)" % (8 if ps == 0 else 0))
        prep_ln_pass(a, ps)
    lab = a.newlabel("nostat")
    a("s_cmp_lg_u32 %s, 0" % s(sHALF))
    a("s_cbranch_scc1 %s" % lab)
    a("s_mov_b64 exec, 1")
    for ri in range(4):
        a("buffer_store_dwordx2 %s, v2, %s, 0 offen offset:%d%s" % (v(ROWB[ri & 1] + 32 * (ri >> 1), 2), s(WS, 4), ri * 256, SC1))
    a("s_mov_b64 exec, -1")
    a.label(lab)


def prep_ln_pass(a, ps):
    streams = []
    for rj, B in enumerate(ROWB):
        ri = 2 * ps + rj
        RAW, X, T, M, R, D = RAWB[ri], B + 8, B + 24, B + 32, B + 34, B + 36
        S1, S2 = (T5, T6) if rj == 0 else (24, 25)
        L = []
        for p in range(8):
            L.append("v_lshlrev_b32 %s, 16, %s" % (v(X + 2 * p), v(RAW + p)))
            L.append("v_and_b32 %s, %s, %s" % (v(X + 2 * p + 1), s(sHI), v(RAW + p)))
        pk = lambda d, x, y, m="": L.append("v_pk_add_f32 %s, %s, %s%s" % (v(d, 2), v(x, 2), v(y, 2), m))

        def wsum(r, sd):
            for m in ("quad_perm:[1,0,3,2] row_mask:0xf", "quad_perm:[2,3,0,1] row_mask:0xf",
                      "row_half_mirror row_mask:0xf", "row_mirror row_mask:0xf",
                      "row_bcast:15 row_mask:0xa", "row_bcast:31 row_mask:0xc"):
                L.append("s_nop 0")
                L.append("v_add_f32_dpp %s, %s, %s %s bank_mask:0xf" % (v(r), v(r), v(r), m))
            L.append("s_nop 0")
            L.append("v_readlane_b32 %s, %s, 63" % (s(sd), v(r)))
            L.append("s_nop 0")
        pk(T, X, X + 2); pk(T + 2, X + 4, X + 6); pk(T + 4, X + 8, X + 10); pk(T + 6, X + 12, X + 14)
        pk(T, T, T + 2); pk(T + 4, T + 4, T + 6); pk(T, T, T + 4)
        L.append("v_add_f32 %s, %s, %s" % (v(T), v(T), v(T + 1)))
        wsum(T, S1)
        L.append("v_mov_b32 %s, %s" % (v(M), hx(f32(1.0 / 1024))))
        L.append("v_mul_f32 %s, %s, %s" % (v(M), s(S1), v(M)))
        for g4 in range(2):
            for p in range(4):
                pk(D + 2 * p, X + 8 * g4 + 2 * p, M, " op_sel_hi:[1,0]" + NEG1)
            for p in range(4):
                t = T + 2 * (p & 1)
                if g4 == 0 and p < 2:
                    L.append("v_pk_mul_f32 %s, %s, %s" % (v(t, 2), v(D + 2 * p, 2), v(D + 2 * p, 2)))
                else:
                    L.append("v_pk_fma_f32 %s, %s, %s, %s" % (v(t, 2), v(D + 2 * p, 2), v(D + 2 * p, 2), v(t, 2)))
        pk(T, T, T + 2)
        L.append("v_add_f32 %s, %s, %s" % (v(T), v(T), v(T + 1)))
        wsum(T, S2)
        L.append("v_mov_b32 %s, %s" % (v(R), hx(f32(1.0 / 1024))))
        L.append("v_mul_f32 %s, %s, %s" % (v(R), s(S2), v(R)))
        L.append("v_cvt_pk_bf16_f32 %s, %s, %s" % (v(R), v(R), v(R)))
        L.append("v_lshlrev_b32 %s, 16, %s" % (v(R), v(R)))
        L.append("v_add_f32 %s, %s, %s" % (v(R), hx(f32(1e-5)), v(R)))
        L.append("v_cvt_pk_bf16_f32 %s, %s, %s" % (v(R), v(R), v(R)))
        L.append("v_lshlrev_b32 %s, 16, %s" % (v(R), v(R)))
        L.append("v_sqrt_f32 %s, %s" % (v(R), v(R)))
        L.append("v_cvt_pk_bf16_f32 %s, %s, %s" % (v(M), v(M), v(M)))
        L.append("v_cvt_pk_bf16_f32 %s, %s, %s" % (v(R), v(R), v(R)))
        L.append("v_lshlrev_b32 %s, 16, %s" % (v(M), v(M)))
        L.append("v_lshlrev_b32 %s, 16, %s" % (v(R), v(R)))
        L.append("v_rcp_f32 %s, %s" % (v(R), v(R)))
        for p in range(4):
            pk(D + 2 * p, X + 2 * p, M, " op_sel_hi:[1,0]" + NEG1)
        if ps == 0:
            L.append("v_mov_b32 %s, %s" % (v(B), v(M)))
            L.append("v_mov_b32 %s, %s" % (v(B + 1), v(R)))
        else:
            L.append("v_mov_b32 %s, %s" % (v(M + 1), v(R)))
        for p in range(4):
            L.append("v_cvt_pk_bf16_f32 %s, %s, %s" % (v(T + p), v(D + 2 * p), v(D + 2 * p + 1)))
        for p in range(4):
            L.append("v_lshlrev_b32 %s, 16, %s" % (v(D + 2 * p), v(T + p)))
            L.append("v_and_b32 %s, %s, %s" % (v(D + 2 * p + 1), s(sHI), v(T + p)))
        for p in range(4):
            L.append("v_pk_mul_f32 %s, %s, %s op_sel_hi:[1,0]" % (v(D + 2 * p, 2), v(D + 2 * p, 2), v(R, 2)))
        for p in range(4):
            L.append("v_cvt_pk_bf16_f32 %s, %s, %s" % (v(T + p), v(D + 2 * p), v(D + 2 * p + 1)))
        for p in range(4):
            L.append("v_lshlrev_b32 %s, 16, %s" % (v(X + 2 * p), v(T + p)))
            L.append("v_and_b32 %s, %s, %s" % (v(X + 2 * p + 1), s(sHI), v(T + p)))
        pk(D, X, X + 4); pk(D + 2, X + 2, X + 6)
        pk(D + 4, X, X + 4, NEG1); pk(D + 6, X + 2, X + 6, NEG1)
        for p in range(4):
            L.append("v_cvt_pk_f16_f32 %s, %s, %s" % (v(T + p), v(D + 2 * p), v(D + 2 * p + 1)))
        for wh in range(2):
            L.append("ds_write_b64 v31, %s offset:%d" % (v(T + 2 * wh, 2), wh * 8192 + ri * 1024))
        streams.append(L)
    for x, y in zip(*streams):
        a(x); a(y)


def prep_dft(a0):
    a = Asm()
    a("s_lshr_b32 %s, %s, 1" % (s(T0), s(sWAVE)))
    a("s_lshl_b32 %s, %s, 13" % (s(T1), s(T0)))
    a("s_add_u32 %s, %s, %d" % (s(T1), s(T1), STG))
    a("v_lshlrev_b32 v122, 2, v3")
    a("v_add_u32 v122, %s, v122" % s(T1))
    IN = [32, 48]
    for ab in range(2):
        for j in range(8):
            a("ds_read2st64_b32 %s, v122 offset0:%d offset1:%d" % (v(IN[ab] + 2 * j, 2), ab * 16 + j, ab * 16 + j + 8))
    a("s_lshl_b32 %s, %s, 9" % (s(T1), s(sSP)))
    a("s_lshl_b32 %s, %s, 8" % (s(T2), s(sHALF)))
    a("s_add_u32 %s, %s, %s" % (s(T1), s(T1), s(T2)))
    a("s_lshl_b32 %s, %s, 17" % (s(T2), s(T0)))
    a("s_add_u32 %s, %s, %s" % (s(T1), s(T1), s(T2)))
    a("s_add_u32 %s, %s, %s" % (s(T1), s(T1), hx(CB_OFF)))
    a("v_lshlrev_b32 v123, 2, v3")
    a("v_add_u32 v123, %s, v123" % s(T1))
    for r_, val in ((C1, math.cos(math.pi / 8)), (C2, math.cos(math.pi / 4)), (C3, math.cos(3 * math.pi / 8))):
        a("s_mov_b32 %s, %s" % (s(r_), hx(f32(val))))
        a("s_mov_b32 %s, %s" % (s(r_ + 1), hx(f32(val))))
    head = a.lines
    var = {}
    for parity in range(2):
        free = list(range(64, 120, 2))
        alloc = lambda: free.pop(0)

        def rel(*rs):
            free.extend(rs)

        def add(x, y):
            d = alloc(); a("v_pk_add_f32 %s, %s, %s" % (v(d, 2), v(x, 2), v(y, 2))); return d

        def sub(x, y):
            d = alloc(); a("v_pk_add_f32 %s, %s, %s%s" % (v(d, 2), v(x, 2), v(y, 2), NEG1)); return d

        def mul(x, c):
            d = alloc(); a("v_pk_mul_f32 %s, %s, %s" % (v(d, 2), v(x, 2), s(c, 2))); return d

        def fma(x, c, y, nx=False, ny=False):
            d = alloc()
            mod = " neg_lo:[%d,0,%d] neg_hi:[%d,0,%d]" % (nx, ny, nx, ny) if (nx or ny) else ""
            a("v_pk_fma_f32 %s, %s, %s, %s%s" % (v(d, 2), v(x, 2), s(c, 2), v(y, 2), mod)); return d

        def mix(r, neg):
            d = alloc()
            for h in range(2):
                a("v_fma_mix_f32 %s, %s, 1.0, %s%s op_sel:[%d,0,%d] op_sel_hi:[1,0,1]" % (v(d + h), v(r), "-" if neg else "", v(r + 1), h, h))
            rel(r)
            return d

        def dft(base):
            p = {}; q = {}
            if parity == 0:
                u = [mix(base + 2 * j, False) for j in range(8)]
                uu = []; uv = []
                for j in range(4):
                    uu.append(add(u[j], u[j + 4])); uv.append(sub(u[j], u[j + 4])); rel(u[j], u[j + 4])
                e0 = add(uu[0], uu[2]); e1 = add(uu[1], uu[3])
                p[4] = sub(uu[0], uu[2]); q[4] = sub(uu[1], uu[3]); rel(*uu)
                p[0] = add(e0, e1); p[8] = sub(e0, e1); rel(e0, e1)
                dm = sub(uv[1], uv[3]); dp = add(uv[1], uv[3])
                p[2] = fma(dm, C2, uv[0]); p[6] = fma(dm, C2, uv[0], nx=True)
                q[2] = fma(dp, C2, uv[2]); q[6] = fma(dp, C2, uv[2], ny=True)
                rel(dm, dp, *uv)
            else:
                w = [mix(base + 2 * j, True) for j in range(8)]
                aa = {}; bb = {}
                for j in (1, 2, 3):
                    aa[j] = sub(w[j], w[8 - j]); bb[j] = add(w[j], w[8 - j]); rel(w[j], w[8 - j])
                Ap = fma(aa[2], C2, w[0]); Am = fma(aa[2], C2, w[0], nx=True); rel(aa[2], w[0])
                t = mul(aa[1], C1); G1 = fma(aa[3], C3, t); rel(t)
                t = mul(aa[1], C3); G3 = fma(aa[3], C1, t, nx=True); rel(t, aa[1], aa[3])
                p[1] = add(Ap, G1); p[7] = sub(Ap, G1); p[3] = add(Am, G3); p[5] = sub(Am, G3); rel(Ap, Am, G1, G3)
                Bp = fma(bb[2], C2, w[4]); B3 = fma(bb[2], C2, w[4], ny=True); rel(bb[2], w[4])
                t = mul(bb[1], C3); H1 = fma(bb[3], C1, t); rel(t)
                t = mul(bb[1], C1); H3 = fma(bb[3], C3, t, nx=True); rel(t, bb[1], bb[3])
                q[1] = add(H1, Bp); q[7] = sub(H1, Bp); q[3] = add(H3, B3); q[5] = sub(H3, B3); rel(Bp, B3, H1, H3)
            return p, q

        a.lines = var[(1, parity)] = []
        pa, qa = dft(IN[0])
        a.lines = var[(2, parity)] = []
        pb, qb = dft(IN[1])
        tmpd = []
        for _ in range(4):
            r_ = alloc(); tmpd += [r_, r_ + 1]
        t2 = [alloc(), alloc()]
        cnt = [0]

        def st(reg, arr):
            d = tmpd[cnt[0] % len(tmpd)]; cnt[0] += 1
            a("v_cvt_pk_bf16_f32 %s, %s, %s" % (v(d), v(reg), v(reg + 1)))
            a("s_mov_b32 %s, %s" % (s(T1), hx(arr * 65536)))
            a("buffer_store_dword %s, v123, %s, %s offen%s" % (v(d), s(WS, 4), s(T1), SC1))

        rs = [2, 4, 6] if parity == 0 else [1, 3, 5, 7]
        a.lines = var[(3, parity, 0)] = []
        def comb(x, y, arr1, arr2):
            a("v_pk_add_f32 %s, %s, %s" % (v(t2[0], 2), v(x, 2), v(y, 2)))
            a("v_pk_add_f32 %s, %s, %s%s" % (v(t2[1], 2), v(x, 2), v(y, 2), NEG1))
            st(t2[0], arr1); st(t2[1], arr2)
        if parity == 0:
            comb(pa[0], pb[0], 0, 4); comb(pa[8], pb[8], 1, 5)
        for r_ in rs:
            comb(pa[r_], pb[r_], r_ * 8, r_ * 8 + 4); comb(qa[r_], qb[r_], r_ * 8 + 1, r_ * 8 + 5)
        a.lines = var[(3, parity, 1)] = []
        if parity == 0:
            st(pa[0], 0); st(pb[0], 1); st(pa[8], 4); st(pb[8], 5)
        for r_ in rs:
            a("v_pk_add_f32 %s, %s, %s%s" % (v(t2[0], 2), v(pa[r_], 2), v(qb[r_], 2), NEG1))
            a("v_pk_add_f32 %s, %s, %s" % (v(t2[1], 2), v(qa[r_], 2), v(pb[r_], 2)))
            st(t2[0], r_ * 8); st(t2[1], r_ * 8 + 1)
            a("v_pk_add_f32 %s, %s, %s" % (v(t2[0], 2), v(pa[r_], 2), v(qb[r_], 2)))
            a("v_pk_add_f32 %s, %s, %s%s" % (v(t2[1], 2), v(qa[r_], 2), v(pb[r_], 2), NEG1))
            st(t2[0], r_ * 8 + 4); st(t2[1], r_ * 8 + 5)

    def split(lines):
        idx = [i for i, x in enumerate(lines) if "buffer_store" in x]
        assert len(idx) == 16
        return lines[:idx[7] + 1], lines[idx[7] + 1:]

    def emit(cases):
        done = a0.newlabel("dd")
        labs = [a0.newlabel("dc") for _ in cases]
        uniq = []
        for l_, c in enumerate(cases):
            if c not in uniq:
                uniq.append(c)
        if len(uniq) == 2:
            a0("s_bitcmp1_b32 %s, 0" % s(sWAVE))
            a0("s_cbranch_scc1 %s" % labs[1])
            a0.lines += cases[0]; a0("s_branch %s" % done)
            a0.label(labs[1]); a0.lines += cases[1]
        else:
            for l_ in range(1, 4):
                a0("s_cmp_eq_u32 %s, %d" % (s(sWAVE), l_))
                a0("s_cbranch_scc1 %s" % labs[l_])
            for l_ in range(4):
                if l_:
                    a0.label(labs[l_])
                a0.lines += cases[l_]
                if l_ < 3:
                    a0("s_branch %s" % done)
        a0.label(done)

    def piece(n):
        if n == 0:
            a0.lines += head
        elif n == 1:
            emit([var[(1, l_ & 1)] + var[(2, l_ & 1)] for l_ in range(4)])
        else:
            emit([var[(3, l_ & 1, l_ >> 1)] for l_ in range(4)])
    return piece


def rowimg_frag_addr(a, dst0, dst1, rowbase_sgpr):
    a("v_and_b32 %s, 15, v3" % v(dst0))
    a("v_lshlrev_b32 %s, 7, %s" % (v(dst0), v(dst0)))
    a("v_lshrrev_b32 %s, 4, v3" % v(dst1))
    a("v_bfe_u32 v2, v3, 1, 3")
    a("v_xor_b32 %s, %s, v2" % (v(dst1), v(dst1)))
    a("v_lshl_add_u32 %s, %s, 4, %s" % (v(dst0), v(dst1), v(dst0)))
    a("v_add_u32 %s, %s, %s" % (v(dst0), s(rowbase_sgpr), v(dst0)))
    a("v_xor_b32 %s, 64, %s" % (v(dst1), v(dst0)))


def silu_tail(a, regs, tmp):
    for t in tmp:
        a("v_exp_f32 %s, %s" % (v(t), v(t)))
        a("v_exp_f32 %s, %s" % (v(t + 1), v(t + 1)))
    for t in tmp:
        a("v_pk_add_f32 %s, %s, 1.0 op_sel_hi:[1,0]" % (v(t, 2), v(t, 2)))
    for t in tmp:
        a("v_rcp_f32 %s, %s" % (v(t), v(t)))
        a("v_rcp_f32 %s, %s" % (v(t + 1), v(t + 1)))
    for r_, t in zip(regs, tmp):
        a("v_pk_mul_f32 %s, %s, %s" % (v(r_, 2), v(r_, 2), v(t, 2)))


def silu_pk(a, regs, tmp):
    for r_, t in zip(regs, tmp):
        a("v_pk_mul_f32 %s, %s, %s" % (v(t, 2), v(r_, 2), s(sNL2E, 2)))
    silu_tail(a, regs, tmp)


ACC1 = 128
vM0, vM1, vNa, vNb, vNc = 4, 5, 6, 7, 8
cM0, cM1, cNa, cNb, cNc = 9, 10, 11, 12, 13
vZ0, vZ1 = 14, 15


def compute_setup(a):
    a("s_lshr_b32 %s, %s, 1" % (s(sWM), s(sWAVE)))
    a("s_and_b32 %s, %s, 1" % (s(sWN), s(sWAVE)))
    a("s_lshl_b32 %s, s2, 15" % s(T0))
    a("s_lshl_b32 %s, %s, 13" % (s(T1), s(sWAVE)))
    a("s_add_u32 %s, %s, %s" % (s(T0), s(T0), s(T1)))
    a("s_add_u32 %s, %s, %s" % (s(T0), s(T0), hx(EX_OFF)))
    a("v_lshlrev_b32 v24, 4, v3")
    a("v_add_u32 v24, %s, v24" % s(T0))
    a("v_add_u32 v25, 4096, v24")
    a("s_lshl_b32 %s, %s, 13" % (s(T0), s(sWM)))
    rowimg_frag_addr(a, vM0, vM1, T0)
    a("s_lshl_b32 %s, %s, 13" % (s(T0), s(sWN)))
    a("s_add_u32 %s, %s, 16384" % (s(T0), s(T0)))
    rowimg_frag_addr(a, vZ0, vZ1, T0)
    a("v_lshrrev_b32 v18, 4, v3")
    a("v_bfe_u32 v17, v3, 2, 2")
    a("v_lshl_add_u32 v17, v18, 3, v17")
    a("v_mul_u32_u24 v17, 448, v17")
    a("v_and_b32 v19, 3, v3")
    a("v_lshl_add_u32 v17, v19, 3, v17")
    a("v_and_b32 v19, 1, v18")
    a("v_lshlrev_b32 v19, 5, v19")
    a("s_lshl_b32 %s, %s, 6" % (s(T0), s(sWN)))
    a("s_add_u32 %s, %s, 16384" % (s(T0), s(T0)))
    a("v_add_u32 v20, %s, v17" % s(T0))
    a("v_add_u32 %s, v20, v19" % v(vNa))
    a("v_sub_u32 %s, v20, v19" % v(vNb))
    a("s_lshl_b32 %s, %s, 5" % (s(T0), s(sWN)))
    a("v_xor_b32 v20, %s, v19" % s(T0))
    a("v_add_u32 v20, v20, v17")
    a("v_add_u32 %s, %d, v20" % (v(vNc), 16384 + 384))
    a("v_and_b32 v21, 1, v18")
    a("v_lshlrev_b32 v21, 5, v21")
    a("v_lshrrev_b32 v19, 1, v18")
    a("v_lshl_add_u32 v21, v19, 4, v21")
    a("s_lshl_b32 %s, %s, 4" % (s(T0), s(sRB)))
    a("s_add_u32 %s, %s, %s" % (s(T0), s(T0), s(sCB)))
    a("s_mul_i32 %s, %s, 49152" % (s(T1), s(T0)))
    a("s_lshl_b32 %s, %s, 13" % (s(T2), s(sWN)))
    a("s_add_u32 %s, %s, %s" % (s(T1), s(T1), s(T2)))
    a("s_lshl_b32 %s, %s, 12" % (s(T2), s(sWM)))
    a("s_add_u32 %s, %s, %s" % (s(T1), s(T1), s(T2)))
    a("s_add_u32 %s, %s, %s" % (s(T1), s(T1), hx(HR_OFF)))
    a("v_and_b32 v22, 15, v3")
    a("v_lshl_add_u32 v17, v22, 6, v21")
    a("v_add_u32 v17, %s, v17" % s(T1))
    a("s_lshl_b32 %s, %s, 13" % (s(T1), s(T0)))
    a("s_lshl_b32 %s, %s, 12" % (s(T2), s(sWN)))
    a("s_add_u32 %s, %s, %s" % (s(T1), s(T1), s(T2)))
    a("s_lshl_b32 %s, %s, 11" % (s(T2), s(sWM)))
    a("s_add_u32 %s, %s, %s" % (s(T1), s(T1), s(T2)))
    a("s_add_u32 %s, %s, %s" % (s(T1), s(T1), hx(HL_OFF)))
    a("v_and_b32 v20, 1, v18")
    a("v_lshl_add_u32 v20, v20, 4, v22")
    a("v_lshlrev_b32 v20, 5, v20")
    a("v_lshl_add_u32 v20, v19, 4, v20")
    a("v_add_u32 v20, %s, v20" % s(T1))
    a("s_lshl_b32 %s, %s, 7" % (s(T1), s(sWN)))
    a("s_add_u32 %s, %s, %d" % (s(T1), s(T1), CSB))
    a("v_lshlrev_b32 v26, 4, v18")
    a("v_add_u32 v26, %s, v26" % s(T1))
    a("s_lshl_b32 %s, %s, 6" % (s(T1), s(sWN)))
    a("s_add_u32 %s, %s, %d" % (s(T1), s(T1), CSB + 768))
    a("v_lshlrev_b32 v27, 4, v18")
    a("v_add_u32 v27, %s, v27" % s(T1))
    a("s_lshl_b32 %s, %s, 9" % (s(T1), s(sWM)))
    a("s_add_u32 %s, %s, %d" % (s(T1), s(T1), STB))
    a("v_lshlrev_b32 v28, 3, v22")
    a("v_add_u32 v28, %s, v28" % s(T1))
    for i in range(112):
        a("v_mov_b32 %s, 0" % v(ACC1 + i))
    a("s_mov_b32 %s, 0" % s(sSLOT))


def compute_g1_s1(a):
    ACC = ACC1
    FR = [32, 76]
    cZ0, cZ1 = cNa, cNb

    def set_addr(lst):
        return ["v_add_u32 %s, %s, %s" % (v(c), s(sSLOT), v(b)) for c, b in lst]

    def next_slot():
        return ["s_add_u32 s14, s14, %d" % G1SLOT, "s_cmp_eq_u32 s14, %d" % (G1SLOT * 3), "s_cselect_b32 s14, 0, s14"]

    G1A = [(cM0, vM0), (cM1, vM1), (cNa, vNa), (cNb, vNb), (cNc, vNc)]

    def s1_addr(k):
        return ["v_add_u32 %s, %s, %s" % (v(c), hx(S1SLOTS[k]), v(b)) for c, b in
                [(cM0, vM0), (cM1, vM1), (cZ0, vZ0), (cZ1, vZ1)]]

    def g1_reads(fs, ks):
        r = []
        for nt in range(7):
            ad = cNc if nt == 6 else (cNb if nt & 1 else cNa)
            off = 0 if nt == 6 else 128 * (nt >> 1) + 32 * (nt & 1)
            for h in range(2):
                r.append("ds_read_b64_tr_b16 %s, %s offset:%d" % (
                    v(FR[fs] + 16 + 4 * nt + 2 * h, 2), v(ad), ks * 14336 + h * 1792 + off))
            if nt < 4:
                r.append("ds_read_b128 %s, %s offset:%d" % (v(FR[fs] + 4 * nt, 4), v(cM1 if ks else cM0), nt * 2048))
        return r

    def g1_mfmas(fs):
        return [mfma(ACC + 4 * (nt * 4 + mt), FR[fs] + 16 + 4 * nt, FR[fs] + 4 * mt) for nt in range(7) for mt in range(4)]

    def g1_iter(extra_b=(), pre_bar=(), tail=(), flag=None):
        interleave(a, g1_mfmas(0), g1_reads(1, 1) + next_slot() + set_addr(G1A))
        a("s_waitcnt lgkmcnt(0)")
        a.all(pre_bar)
        fine(a)
        a("s_barrier")
        fine(a)
        interleave(a, g1_mfmas(1), g1_reads(0, 0) + list(extra_b))
        a("s_waitcnt lgkmcnt(0)")
        a.all(tail)

    def g1_loop(n):
        a("s_mov_b32 %s, 0" % s(sCNT))
        loop = a.newlabel("g1_loop")
        a.raw(".p2align 6")
        a.label(loop)
        g1_iter(["s_add_u32 s15, s15, 1", "s_cmp_lt_u32 s15, %d" % n], tail=["s_cbranch_scc1 %s" % loop])

    if OPT.get("sent", "none") == "pre":
        for i in range(4):
            a("v_mov_b32 %s, -1" % v(240 + i))
        for i in range(8):
            a("buffer_store_dwordx4 v[240:243], %s, %s, 0 offen offset:%d%s" % ("v25" if i >= 4 else "v24", s(WS, 4), (i & 3) * 1024, SC1))
    a.all(set_addr(G1A))
    mark(a, 3)
    a("s_barrier")
    mark(a, 4)
    a.all(g1_reads(0, 0))
    a("s_waitcnt lgkmcnt(0)")
    if STAMP:
        g1_loop(3)
        mark(a, 15)
        g1_loop(FLAGK - 3)
    else:
        g1_loop(FLAGK)
    g1_iter(pre_bar=["s_waitcnt vmcnt(0)"], flag="s")
    if STAMP:
        mark(a, 2)
        g1_loop(3)
        mark(a, 1)
        g1_loop(14 - FLAGK - 3)
    else:
        g1_loop(14 - FLAGK)
    interleave(a, g1_mfmas(0), g1_reads(1, 1) + s1_addr(0))
    a("s_waitcnt lgkmcnt(0)")
    a("s_barrier")
    CSR, STR = 32, 60
    rd = ["ds_read_b128 %s, v26 offset:%d" % (v(CSR + 4 * nt, 4), 256 * (nt >> 1) + 64 * (nt & 1)) for nt in range(6)]
    rd.append("ds_read_b128 %s, v27" % v(CSR + 24, 4))
    rd += ["ds_read_b64 %s, v28 offset:%d" % (v(STR + 2 * mt, 2), 128 * mt) for mt in range(4)]
    interleave(a, g1_mfmas(1), rd)
    mark(a, 5)
    a("s_waitcnt lgkmcnt(0)")
    RL = 68
    for mt in range(4):
        a("v_rcp_f32 %s, %s" % (v(RL + 2 * mt + 1), v(STR + 2 * mt + 1)))
        a("v_mul_f32 %s, %s, %s" % (v(RL + 2 * mt), s(sNL2E), v(STR + 2 * mt + 1)))
    TMP = 76
    PK = [88, 92, 96, 100, 104, 108, 112, 116]
    for pr in range(3):
        a("s_mov_b32 %s, %d" % (s(T0 + pr), pr * 16384))
    pki = 0
    groups = [[(mt, 2 * pr), (mt, 2 * pr + 1)] for mt in range(4) for pr in range(3)]
    groups.insert(6, [(0, 6), (1, 6)]); groups.append([(2, 6), (3, 6)])
    for gr in groups:
        regs = []; cs = []; mts = []
        for mt, nt in gr:
            b = ACC + 4 * (nt * 4 + mt)
            regs += [b, b + 2]; cs += [CSR + 4 * nt, CSR + 4 * nt + 2]; mts += [mt, mt]
        tmp = [TMP + 2 * i for i in range(4)]
        for r_, c_, mt in zip(regs, cs, mts):
            a("v_pk_fma_f32 %s, %s, %s, %s op_sel_hi:[1,0,1] neg_lo:[0,1,0] neg_hi:[0,1,0]" % (v(r_, 2), v(c_, 2), v(STR + 2 * mt, 2), v(r_, 2)))
        for r_, t, mt in zip(regs, tmp, mts):
            a("v_pk_mul_f32 %s, %s, %s op_sel_hi:[1,0]" % (v(t, 2), v(r_, 2), v(RL + 2 * mt, 2)))
        for t_ in tmp:
            a("v_exp_f32 %s, %s" % (v(t_), v(t_)))
            a("v_exp_f32 %s, %s" % (v(t_ + 1), v(t_ + 1)))
        for t_, mt in zip(tmp, mts):
            a("v_pk_fma_f32 %s, %s, %s, %s op_sel:[0,1,1]" % (v(t_, 2), v(t_, 2), v(RL + 2 * mt, 2), v(RL + 2 * mt, 2)))
        for t_ in tmp:
            a("v_rcp_f32 %s, %s" % (v(t_), v(t_)))
            a("v_rcp_f32 %s, %s" % (v(t_ + 1), v(t_ + 1)))
        for r_, t_ in zip(regs, tmp):
            a("v_pk_mul_f32 %s, %s, %s" % (v(r_, 2), v(r_, 2), v(t_, 2)))
        P = PK[pki % len(PK)]; pki += 1
        for i, r_ in enumerate(regs):
            a("v_cvt_pk_bf16_f32 %s, %s, %s" % (v(P + i), v(r_), v(r_ + 1)))
        a("s_nop 1")
        a("v_permlane16_swap_b32 %s, %s" % (v(P), v(P + 2)))
        a("v_permlane16_swap_b32 %s, %s" % (v(P + 1), v(P + 3)))
        mt, nt = gr[0]
        if nt < 6:
            a("buffer_store_dwordx4 %s, v17, %s, %s offen offset:%d%s" % (v(P, 4), s(WS, 4), s(T0 + nt // 2), mt * 1024, SC1))
        else:
            a("buffer_store_dwordx4 %s, v20, %s, 0 offen offset:%d%s" % (v(P, 4), s(WS, 4), (mt // 2) * 1024, SC1))
    mark(a, 6)
    fine_dump(a, 0)

    def s1_reads(fs, ks):
        r = []
        for t in range(4):
            r.append("ds_read_b128 %s, %s offset:%d" % (v(FR[fs] + 4 * t, 4), v(cM1 if ks else cM0), t * 2048))
            r.append("ds_read_b128 %s, %s offset:%d" % (v(FR[fs] + 16 + 4 * t, 4), v(cZ1 if ks else cZ0), t * 2048))
        return r

    def s1_mfmas(fs, first):
        return [mfma(ACC + 4 * (mt * 4 + nt), FR[fs] + 4 * mt, FR[fs] + 16 + 4 * nt, "0" if first else None)
                for mt in range(4) for nt in range(4)]

    HF = int(OPT.get("hf", "-1"))
    if HF == -1:
        a("s_waitcnt vmcnt(0)")
    a("s_barrier")
    a.all(s1_reads(0, 0))
    a("s_lshr_b32 %s, %s, 3" % (s(T0), s(sTAU)))
    a("s_and_b32 %s, %s, 3" % (s(T1), s(T0)))
    a("s_cmp_eq_u32 %s, 3" % s(T0))
    a("s_cselect_b32 %s, 1, %s" % (s(T1), s(T1)))
    a("s_lshr_b32 %s, %s, 2" % (s(T2), s(T0)))
    a("s_cmp_eq_u32 %s, 3" % s(T0))
    a("s_cselect_b32 %s, 8, %s" % (s(T2), s(T2)))
    a("s_lshl_b32 %s, %s, 19" % (s(T2), s(T2)))
    a("s_bfe_u32 %s, %s, 0x20001" % (s(T3), s(sTAU)))
    a("s_lshl_b32 %s, %s, 6" % (s(T3), s(T3)))
    a("s_lshl_b32 %s, %s, 5" % (s(T4), s(sWN)))
    a("s_add_u32 %s, %s, %s" % (s(T3), s(T3), s(T4)))
    a("v_and_b32 v17, 15, v3")
    a("v_add_u32 v17, %s, v17" % s(T3))
    a("v_sub_u32 v22, %d, v17" % (3 * 256 + 239))
    a("s_lshl_b32 %s, %s, 8" % (s(T1), s(T1)))
    a("v_add_u32 v17, %s, v17" % s(T1))
    a("s_and_b32 %s, %s, 1" % (s(T3), s(sTAU)))
    a("s_lshl_b32 %s, %s, 1" % (s(T3), s(T3)))
    a("s_add_u32 %s, %s, %s" % (s(T3), s(T3), s(sWM)))
    a("s_lshl_b32 %s, %s, 16" % (s(T3), s(T3)))
    a("s_add_u32 %s, %s, %s" % (s(T3), s(T3), hx(ZT_OFF)))
    a("v_add_u32 v23, %s, v21" % s(T3))
    a("v_lshl_add_u32 v17, v17, 6, v23")
    a("v_lshl_add_u32 v22, v22, 6, v23")
    a("s_waitcnt lgkmcnt(0)")
    for k in range(4):
        interleave(a, s1_mfmas(0, k == 0), s1_reads(1, 1) + (s1_addr(k + 1) if k < 3 else []))
        a("s_waitcnt lgkmcnt(0)")
        interleave(a, s1_mfmas(1, False), s1_reads(0, 0) if k < 3 else [])
        if k < 3:
            a("s_waitcnt lgkmcnt(0)")
        if k == 1:
            a("s_barrier")
        if k == HF:
            a("s_waitcnt vmcnt(0)")
            a("s_barrier")
            flag_store(a, "h")
    mark(a, 7)
    a("s_barrier")
    mark(a, 8)
    a("s_nop 7")
    TMP = 32
    PK = [56, 60, 64, 68, 72, 76, 80, 84]
    typeB = a.newlabel("s1_typeB"); done = a.newlabel("s1_done")
    a("s_and_b32 %s, %s, 29" % (s(T3), s(T0)))
    a("s_cmp_eq_u32 %s, 0" % s(T3))
    a("s_cbranch_scc1 %s" % typeB)
    tile = lambda m, n: ACC + 4 * (m * 4 + n)
    pki = 0
    for n in range(2):
        for uv in range(2):
            P = PK[pki]; pki += 1
            for m in range(2):
                for h in range(2):
                    if uv == 0:
                        a("v_pk_add_f32 %s, %s, %s" % (v(TMP + 2 * h, 2), v(tile(m, n) + 2 * h, 2), v(tile(m + 2, n + 2) + 2 * h, 2)))
                    else:
                        a("v_pk_add_f32 %s, %s, %s%s" % (v(TMP + 2 * h, 2), v(tile(m + 2, n) + 2 * h, 2), v(tile(m, n + 2) + 2 * h, 2), NEG1))
                for h in range(2):
                    a("v_cvt_pk_bf16_f32 %s, %s, %s" % (v(P + 2 * m + h), v(TMP + 2 * h), v(TMP + 2 * h + 1)))
            a("s_add_u32 %s, %s, %d" % (s(T3), s(T2), n * 1024 + uv * 262144))
            a("s_nop 0")
            a("v_permlane16_swap_b32 %s, %s" % (v(P), v(P + 2)))
            a("v_permlane16_swap_b32 %s, %s" % (v(P + 1), v(P + 3)))
            a("buffer_store_dwordx4 %s, v17, %s, %s offen%s" % (v(P, 4), s(WS, 4), s(T3), SC1))
    a("s_cmp_ge_u32 %s, 4" % s(T0))
    a("s_cbranch_scc1 %s" % done)
    a("s_mov_b32 %s, 0x80008000" % s(T4))
    pki = 0
    for n in range(2):
        for uv in range(2):
            P = PK[pki]; pki += 1
            a("s_add_u32 %s, %s, %d" % (s(T3), s(T2), (1 - n) * 1024 + uv * 262144))
            if uv:
                Q = PK[4 + n]
                for i in range(4):
                    a("v_xor_b32 %s, %s, %s" % (v(Q + i), s(T4), v(P + i)))
                P = Q
            a("buffer_store_dwordx4 %s, v22, %s, %s offen%s" % (v(P, 4), s(WS, 4), s(T3), SC1))
    a("s_branch %s" % done)
    a.label(typeB)
    pki = 0
    for n in range(2):
        for half in range(2):
            for uv in range(2):
                P = PK[pki]; pki += 1
                sg = "-" if uv else ""
                for m in range(2):
                    t = tile(m + 2 * half, n + 2 * uv)
                    for h in range(2):
                        a("v_cvt_pk_bf16_f32 %s, %s%s, %s%s" % (v(P + 2 * m + h), sg, v(t + 2 * h), sg, v(t + 2 * h + 1)))
                a("s_mov_b32 %s, %d" % (s(T3), half * 8 * 524288 + n * 1024 + uv * 262144))
                a("s_nop 0")
                a("v_permlane16_swap_b32 %s, %s" % (v(P), v(P + 2)))
                a("v_permlane16_swap_b32 %s, %s" % (v(P + 1), v(P + 3)))
                a("buffer_store_dwordx4 %s, v17, %s, %s offen%s" % (v(P, 4), s(WS, 4), s(T3), SC1))
    a.label(done)
    mark(a, 9)


def dma(a, ldsoff, vaddr, srd_, soff, coh=False):
    if OPT.get("nodma") == "1" and getattr(a, "skipdma", False):
        return
    a("s_add_u32 m0, %s, %d" % (s(sSLOT), ldsoff))
    a("s_nop 0")
    a("buffer_load_dwordx4 %s, %s, %s offen%s lds" % (v(vaddr), s(srd_, 4), s(soff), SC1 if coh else ""))


LVA, LVB, LVC, LVD = 8, 12, 20, 24
CSD = 128


def g1_issue(a):
    for i in range(4):
        dma(a, i * 4096, LVA + i, XS, sKA)
    for i in range(7):
        dma(a, 16384 + i * 4096, LVB + i, W1, sKB)
    a("s_add_u32 %s, %s, 128" % (s(sKA), s(sKA)))
    a("s_add_u32 %s, %s, %d" % (s(sKB), s(sKB), 64 * 7168))
    a("s_add_u32 s14, s14, %d" % G1SLOT)
    a("s_cmp_eq_u32 s14, %s" % s(sWRAP))
    a("s_cselect_b32 s14, %s, s14" % s(sSL0))


def loader_setup(a):
    a("s_sub_u32 %s, %s, 4" % (s(sL), s(sWAVE)))
    a("s_and_b32 %s, %s, 1" % (s(T0), s(sL)))
    a("s_lshl_b32 %s, %s, 2" % (s(T0), s(T0)))
    a("v_lshrrev_b32 v4, 4, v3")
    a("v_add_u32 v4, %s, v4" % s(T0))
    a("v_and_b32 v5, 7, v3")
    a("v_xor_b32 v4, v4, v5")
    a("v_lshlrev_b32 v4, 4, v4")
    a("v_lshrrev_b32 v5, 3, v3")
    a("s_lshl_b32 %s, %s, 3" % (s(T0), s(sL)))
    a("v_add_u32 v5, %s, v5" % s(T0))
    a("v_lshlrev_b32 v30, 2, v3")
    a("s_lshl_b32 %s, %s, 10" % (s(sSL0), s(sL)))
    a("s_lshl_b32 %s, %s, 11" % (s(T0), s(sRB)))
    a("v_lshl_add_u32 v6, v5, 15, v4")
    a("v_add_u32 v6, %s, v6" % s(T0))
    for i in range(4):
        a("v_add_u32 %s, %s, v6" % (v(LVA + i), hx(i * 32 * 32768)))
    a("s_lshl_b32 %s, %s, 6" % (s(T0), s(sL)))
    a("v_add_u32 v6, %s, v3" % s(T0))
    a("s_mul_i32 %s, %s, 448" % (s(T1), s(sCB)))
    for i in range(7):
        a("v_add_u32 v7, %d, v6" % (256 * i))
        a("v_mul_u32_u24 v28, 2341, v7")
        a("v_lshrrev_b32 v28, 16, v28")
        a("v_mul_u32_u24 v29, 28, v28")
        a("v_sub_u32 v29, v7, v29")
        a("v_bfe_u32 v31, v28, 3, 1")
        a("v_lshlrev_b32 v31, 1, v31")
        a("v_xor_b32 v29, v29, v31")
        a("v_mul_u32_u24 v28, 7168, v28")
        a("v_lshl_add_u32 v28, v29, 4, v28")
        a("v_add_u32 %s, %s, v28" % (v(LVB + i), s(T1)))
    a("s_mov_b32 %s, %s" % (s(sSLOT), s(sSL0)))
    a("s_add_u32 %s, %s, %d" % (s(sWRAP), s(sSL0), G1SLOT * 3))
    a("s_mov_b32 %s, 0" % s(sKA))
    a("s_mov_b32 %s, 0" % s(sKB))
    a("v_and_b32 v6, 31, v3")
    a("v_lshrrev_b32 v7, 5, v3")
    a("v_mul_u32_u24 v7, 7168, v7")
    a("v_lshl_add_u32 v7, v6, 4, v7")
    a("s_xor_b32 %s, %s, %s" % (s(T0), s(sRB), OPT.get("csx", "0")))
    a("s_lshl_b32 %s, %s, 6" % (s(T0), s(T0)))
    a("s_lshl_b32 %s, %s, 4" % (s(T2), s(sL)))
    a("s_add_u32 %s, %s, %s" % (s(T0), s(T0), s(T2)))
    a("s_mul_i32 %s, %s, 7168" % (s(T0), s(T0)))
    a("s_add_u32 %s, %s, %s" % (s(T0), s(T0), s(T1)))
    a("v_add_u32 v7, %s, v7" % s(T0))
    a("v_cmp_gt_u32 vcc, 28, v6")
    a("v_mov_b32 v28, 0x7f000000")
    a("s_nop 0")
    a("v_cndmask_b32 v7, v28, v7, vcc")
    g1_issue(a)
    a("s_barrier")
    for i in range(8):
        a("s_mov_b32 %s, %d" % (s(T0), i * 2 * 7168))
        a("buffer_load_dwordx4 %s, v7, %s, %s offen" % (v(CSD + 4 * i, 4), s(W1, 4), s(T0)))
    for _ in range(int(OPT.get("early", "3")) - 1):
        g1_issue(a)
    pf_addr(a)


def pf_addr(a):
    a("s_lshl_b32 %s, s2, 2" % s(T0))
    a("s_add_u32 %s, %s, %s" % (s(T0), s(T0), s(sL)))
    a("s_mul_i32 %s, %s, 7168" % (s(T1), s(T0)))
    a("v_lshlrev_b32 v124, 4, v3")
    a("v_add_u32 v124, %s, v124" % s(T1))
    a("v_add_u32 v125, 4096, v124")
    a("s_lshr_b32 %s, %s, 1" % (s(T2), s(T0)))
    a("v_lshrrev_b32 v126, 5, v3"); a("v_lshlrev_b32 v126, 11, v126"); a("v_and_b32 v127, 31, v3"); a("v_lshl_add_u32 v126, v127, 4, v126")
    a("s_lshl_b32 %s, %s, 12" % (s(T3), s(T2))); a("v_add_u32 v126, %s, v126" % s(T3))
    a("v_lshrrev_b32 v127, 4, v3"); a("v_lshlrev_b32 v127, 12, v127"); a("v_and_b32 v2, 15, v3"); a("v_lshl_add_u32 v127, v2, 4, v127")
    a("s_lshl_b32 %s, %s, 14" % (s(T3), s(T2))); a("v_add_u32 v127, %s, v127" % s(T3))


def pf_pair(a, vaddr, sre, sim):
    l2 = a.newlabel("pf2"); l3 = a.newlabel("pf3")
    a("s_bitcmp1_b32 %s, 0" % s(sWAVE))
    a("s_cbranch_scc1 %s" % l2)
    a("buffer_load_dwordx4 v[244:247], %s, %s, 0 offen" % (v(vaddr), s(sre, 4)))
    a("s_branch %s" % l3)
    a.label(l2)
    a("buffer_load_dwordx4 v[244:247], %s, %s, 0 offen" % (v(vaddr), s(sim, 4)))
    a.label(l3)


def loader_g1_s1(a):
    AC = CSD + 32
    PFS = OPT.get("pf", "s") == "s"
    PFT = OPT.get("pf", "s").startswith("t")
    PFK = 99 if PFS else int(OPT.get("pf", "99").lstrip("t"))
    EARLY = int(OPT.get("early", "3"))
    q = ["g0"] * 11 + ["csl"] * 8 + [x for i in range(1, EARLY) for x in ["g%d" % i] * 11]

    def issue(st):
        g1_issue(a); q.extend(["g%d" % st] * 11)

    def need(*tags):
        idx = max(i for i, x in enumerate(q) if x in tags)
        n = len(q) - idx - 1
        del q[:idx + 1]
        return n

    def bar(*tags, lg=False):
        n = need(*tags)
        fine(a)
        a("s_waitcnt vmcnt(%d)%s" % (n, " lgkmcnt(0)" if lg else ""))
        fine(a)
        a("s_barrier")

    def prefetch():
        a.c("warm the memory-side cache with this wave's share of w2 and of the C slices")
        if PFT:
            a("v_mul_u32_u24 v2, 48, v3")
            a("v_add_u32 v124, v124, v2")
            a("v_add_u32 v125, v125, v2")
            a("buffer_load_dword v244, v124, %s, 0 offen" % s(W2, 4))
            a("buffer_load_dword v244, v125, %s, 0 offen" % s(W2, 4))
            q.extend(["pf"] * 2)
        else:
            for i in range(7):
                a("buffer_load_dwordx4 v[244:247], %s, %s, 0 offen offset:%d" % ("v125" if i >= 4 else "v124", s(W2, 4), (i & 3) * 1024))
            q.extend(["pf"] * 7)
        pf_pair(a, 127, CR, CI)
        q.append("pf")

    def cs_chunk(rng):
        for i in rng:
            for d in range(4):
                src = CSD + 4 * i + d
                t_ = AC + 2 * d if i == 0 else AC + 8 + 2 * d
                a("v_lshlrev_b32 %s, 16, %s" % (v(t_), v(src)))
                a("v_and_b32 %s, %s, %s" % (v(t_ + 1), s(sHI), v(src)))
            if i:
                for d in range(4):
                    a("v_pk_add_f32 %s, %s, %s" % (v(AC + 2 * d, 2), v(AC + 2 * d, 2), v(AC + 8 + 2 * d, 2)))

    def after0():
        cs_chunk(range(0, 4))

    def after1():
        cs_chunk(range(4, 8))
        a("v_lshrrev_b32 v28, 5, v3")
        a("s_lshl_b32 %s, %s, 1" % (s(T0), s(sL)))
        a("v_add_u32 v28, %s, v28" % s(T0))
        a("v_lshlrev_b32 v28, 10, v28")
        a("v_and_b32 v29, 31, v3")
        a("v_lshl_add_u32 v28, v29, 5, v28")
        a("v_add_u32 v28, %d, v28" % CSP)
        a("ds_write_b128 v28, %s" % v(AC, 4))
        a("ds_write_b128 v28, %s offset:16" % v(AC + 4, 4))
        a("s_waitcnt lgkmcnt(0)")

    def after2():
        a("s_lshl_b32 %s, %s, 8" % (s(T0), s(sL)))
        a("v_add_u32 v19, %s, v30" % s(T0))
        a("v_add_u32 v29, %d, v19" % CSP)
        for i in range(8):
            a("ds_read_b32 %s, v29 offset:%d" % (v(CSD + i), i * 1024))
        a("s_lshl_b32 %s, %s, 14" % (s(T0), s(sCB)))
        a("s_lshl_b32 %s, %s, 10" % (s(T1), s(sRB)))
        a("s_add_u32 %s, %s, %s" % (s(T1), s(T1), s(T0)))
        a("s_add_u32 %s, %s, %s" % (s(T1), s(T1), hx(CS_OFF)))
        tag_ready(a)
        a("v_lshrrev_b32 v31, 3, v3")
        a("v_lshlrev_b32 v31, 7, v31")
        a("v_and_b32 v28, 7, v3")
        a("v_lshl_add_u32 v31, v28, 2, v31")
        a("v_add_u32 v31, %s, v31" % hx(SF_OFF))
        a("s_waitcnt lgkmcnt(0)")
        for st in (4, 2, 1):
            for i in range(st):
                a("v_add_f32 %s, %s, %s" % (v(CSD + i), v(CSD + i), v(CSD + i + st)))
        a("buffer_store_dword %s, v19, %s, %s offen%s" % (v(CSD), s(WS, 4), s(T1), SC1))
        q.append("cs_store")

    def after3():
        a("s_lshr_b32 %s, %s, 3" % (s(T0), s(sTAU)))
        a("s_lshl_b32 %s, %s, 17" % (s(T1), s(T0)))
        a("s_and_b32 %s, %s, 1" % (s(T2), s(sTAU)))
        a("s_lshl_b32 %s, %s, 15" % (s(T3), s(T2)))
        a("s_add_u32 %s, %s, %s" % (s(T1), s(T1), s(T3)))
        a("s_add_u32 %s, %s, %s" % (s(T1), s(T1), hx(CB_OFF)))
        a("v_lshl_add_u32 v6, v5, 9, v4")
        a("v_add_u32 v6, %s, v6" % s(T1))
        for i in range(4):
            a("v_add_u32 %s, %s, v6" % (v(LVC + i), hx((i & 1) * 65536 + (i >> 1) * 32 * 512)))
        a("s_and_b32 %s, %s, 3" % (s(T1), s(T0)))
        a("s_cmp_eq_u32 %s, 3" % s(T0))
        a("s_cselect_b32 %s, 1, %s" % (s(T1), s(T1)))
        a("s_lshl_b32 %s, %s, 11" % (s(T1), s(T1)))
        a("s_bfe_u32 %s, %s, 0x20001" % (s(T3), s(sTAU)))
        a("s_lshl_b32 %s, %s, 19" % (s(T3), s(T3)))
        a("s_add_u32 %s, %s, %s" % (s(T1), s(T1), s(T3)))
        a("v_lshl_add_u32 v6, v5, 13, v4")
        a("v_add_u32 v6, %s, v6" % s(T1))
        for i in range(4):
            a("v_add_u32 %s, %s, v6" % (v(LVD + i), hx((i >> 1) * 32 * 8192)))
        a("s_lshl_b32 %s, s2, 15" % s(T0))
        a("s_lshl_b32 %s, %s, 13" % (s(T1), s(sL)))
        a("s_add_u32 %s, %s, %s" % (s(T0), s(T0), s(T1)))
        a("s_add_u32 %s, %s, %s" % (s(T0), s(T0), hx(EX_OFF)))
        a("v_lshlrev_b32 v6, 4, v3")
        a("v_add_u32 v6, %s, v6" % s(T0))
        a("v_add_u32 v7, 4096, v6")
        for i in range(4):
            a("v_mov_b32 %s, -1" % v(240 + i))

    def sentinel(i):
        a("buffer_store_dwordx4 v[240:243], %s, %s, 0 offen offset:%d%s" % ("v7" if i >= 4 else "v6", s(WS, 4), (i & 3) * 1024, SC1))
        q.append("sent")

    def after9():
        poll_issue(a, CSD + 20, 31, 4); q.extend(["poll"] * 4)

    def after11():
        a.c("fetch 4 of the 16 partial column sums of this column block per wave, and this class's row stats")
        a("s_lshl_b32 %s, %s, 14" % (s(T0), s(sCB)))
        a("s_lshl_b32 %s, %s, 12" % (s(T1), s(sL)))
        a("s_add_u32 %s, %s, %s" % (s(T0), s(T0), s(T1)))
        a("s_add_u32 %s, %s, %s" % (s(T0), s(T0), hx(CS_OFF)))
        a("v_lshlrev_b32 v28, 4, v3")
        for i in range(4):
            a("buffer_load_dwordx4 %s, v28, %s, %s offen offset:%d%s" % (v(CSD + 4 * i, 4), s(WS, 4), s(T0), i * 1024, SC1))
        a("s_lshl_b32 %s, %s, 10" % (s(T0), s(sRB)))
        a("s_add_u32 %s, %s, %s" % (s(T0), s(T0), hx(STAT_OFF)))
        a("buffer_load_dword %s, v19, %s, %s offen%s" % (v(CSD + 16), s(WS, 4), s(T0), SC1))
        q.extend(["fetch"] * 5)

    def after13():
        a("s_waitcnt vmcnt(%d)" % need("fetch"))
        for d, x in ((0, 4), (2, 6), (8, 12), (10, 14), (0, 8), (2, 10)):
            a("v_pk_add_f32 %s, %s, %s" % (v(CSD + d, 2), v(CSD + d, 2), v(CSD + x, 2)))
        a("s_lshl_b32 %s, %s, 10" % (s(T0), s(sL)))
        a("s_add_u32 %s, %s, %d" % (s(T0), s(T0), CSP))
        a("v_add_u32 v28, %s, v28" % s(T0))
        a("ds_write_b128 v28, %s" % v(CSD, 4))
        a("v_add_u32 v28, %d, v19" % STB)
        a("ds_write_b32 v28, %s" % v(CSD + 16))
        a("s_waitcnt lgkmcnt(0)")

    def after14():
        a("v_add_u32 v28, %d, v19" % CSP)
        for i in range(4):
            a("ds_read_b32 %s, v28 offset:%d" % (v(CSD + i), i * 1024))
        a("v_add_u32 v28, %d, v19" % CSB)
        a("s_waitcnt lgkmcnt(0)")
        a("v_add_f32 %s, %s, %s" % (v(CSD), v(CSD), v(CSD + 1)))
        a("v_add_f32 %s, %s, %s" % (v(CSD + 2), v(CSD + 2), v(CSD + 3)))
        a("v_add_f32 %s, %s, %s" % (v(CSD), v(CSD), v(CSD + 2)))
        a("ds_write_b32 v28, %s" % v(CSD))

    hooks = {0: after0, 1: after1, 2: after2, 9: after9, 11: after11, 13: after13, 14: after14}
    after3()
    for st in range(EARLY, 3):
        issue(st)
    if OPT.get("cov", "0") == "1":
        a("s_cmp_lt_u32 %s, 8" % s(sRB))
        a("s_mov_b32 %s, %d" % (s(T1), 512 * 7168))
        a("s_cselect_b32 %s, %s, %s" % (s(T1), s(T1), hx(-512 * 7168)))
        a("v_add_u32 v2, %s, v7" % s(T1))
        for i in range(8):
            a("s_mov_b32 %s, %d" % (s(T0), i * 2 * 7168))
            a("buffer_load_dwordx4 v[244:247], v2, %s, %s offen" % (s(W1, 4), s(T0)))
        q.extend(["pf"] * 8)
    pf_pair(a, 126, DR, DI); q.append("pf")
    if PFK == -1:
        prefetch()
    if PFS:
        pf_pair(a, 127, CR, CI); q.append("pf")
        a("s_lshl_b32 %s, s2, 2" % s(T0))
        a("s_add_u32 %s, %s, %s" % (s(T0), s(T0), s(sL)))
        a("s_mul_i32 %s, %s, 7168" % (s(T0), s(T0)))
        a("s_add_u32 s30, %s, %s" % (s(W2), s(T0)))
        a("s_addc_u32 s31, %s, 0" % s(W2 + 1))
    bar("g0")
    for k in range(15):
        tags = ["g%d" % (k + 1)]
        if k == FLAGK:
            tags.append("cs_store")
        if k == 11:
            fine(a)
            a("s_waitcnt vmcnt(%d)" % need("g12", "poll"))
            poll_check(a, CSD + 20, 31, "exec", True, 4)
            fine(a)
            a("s_barrier")
        else:
            bar(*tags)
        if k + 3 <= 15:
            issue(k + 3)
        if k == FLAGK:
            flag_store(a, "s")
        if k in hooks:
            hooks[k]()
        if 4 <= k <= 11 and OPT.get("sent", "none") == "g1":
            sentinel(k - 4)
        if k == 4 and OPT.get("sent", "none") == "g1b":
            for i in range(8):
                sentinel(i)
        if k == PFK:
            prefetch()
        if PFS and 3 <= k <= 11:
            for i in range(13 * (k - 3), min(112, 13 * (k - 2))):
                a("s_load_dword s29, s[30:31], %d" % (i * 64))

    def issue_s1(k):
        a("s_add_u32 %s, %s, %d" % (s(sSLOT), s(sSL0), S1SLOTS[k]))
        a("s_mov_b32 %s, %d" % (s(sKA), k * 128))
        for i in range(4):
            dma(a, i * 4096, LVC + i, WS, sKA, coh=True)
        for i in range(4):
            dma(a, 16384 + i * 4096, LVD + i, DI if i & 1 else DR, sKA)

    issue_s1(2)
    fine_dump(a, 0)
    a("s_waitcnt lgkmcnt(0)")
    a("s_barrier")
    for k in (0, 1, 3):
        issue_s1(k)
    g2_loader_setup(a)
    a("s_and_b32 %s, %s, 4" % (s(sP3), s(sCB8)))
    for st in range(NRB()):
        g2_koff(a, st, False, True)
        for i in range(4):
            a("buffer_load_dwordx4 %s, %s, %s, %s offen" % (v(RBB + 16 * st + 4 * i, 4), v(GVB + i), s(W2, 4), s(sKB)))
    a("v_lshlrev_b32 %s, 4, v3" % v(GWA))
    a("v_add_u32 %s, %s, %s" % (v(GWA), s(sSL0), v(GWA)))
    a("s_waitcnt vmcnt(%d)" % (4 * NRB()))
    a("s_barrier")
    flag_store(a, "h")


RBB = 64
FLAGK = 5
SYNC = 159744
GWA = 60


def NRB():
    return int(OPT.get("nrb", "0"))


def g2_koff(a, st, want_a, want_b):
    j, p_ = divmod(st, 3)
    a("s_xor_b32 %s, %s, %d" % (s(T0), s(sP3), j))
    if want_a:
        a("s_mul_i32 %s, %s, 49152" % (s(sKA), s(T0)))
        if p_:
            a("s_add_u32 %s, %s, %d" % (s(sKA), s(sKA), p_ * 16384))
    if want_b:
        a("s_mul_i32 %s, %s, %d" % (s(sKB), s(T0), 224 * 2048))
        if p_:
            a("s_add_u32 %s, %s, %d" % (s(sKB), s(sKB), p_ * 64 * 2048))


NJ = 28
NREG = 24
NSOLO = 4


def compute_g2(a):
    ACC = 128; ACY = 192; XR = 224; RX = 96
    FR = [32, 64]
    gN0, gZ0, gZ1 = 6, 7, 8
    cN = 11
    a("v_and_b32 v17, 15, v3")
    a("v_lshlrev_b32 v17, 15, v17")
    a("s_lshl_b32 %s, %s, 21" % (s(T0), s(sWM)))
    a("s_lshl_b32 %s, %s, 11" % (s(T1), s(sCLS)))
    a("s_add_u32 %s, %s, %s" % (s(T0), s(T0), s(T1)))
    a("s_lshl_b32 %s, %s, 8" % (s(T1), s(sCB8)))
    a("s_add_u32 %s, %s, %s" % (s(T0), s(T0), s(T1)))
    a("s_lshl_b32 %s, %s, 7" % (s(T1), s(sKH)))
    a("s_add_u32 %s, %s, %s" % (s(T0), s(T0), s(T1)))
    a("s_lshl_b32 %s, %s, 6" % (s(T1), s(sWN)))
    a("s_add_u32 %s, %s, %s" % (s(T0), s(T0), s(T1)))
    a("v_add_u32 v17, %s, v17" % s(T0))
    a("v_lshl_add_u32 v19, v18, 3, v17")
    for mt in range(4):
        a("s_mov_b32 %s, %d" % (s(T3 + mt), mt * 16 * 16 * 2048))
    a("v_add_u32 v17, v17, v21")
    a("s_lshl_b32 %s, %s, 12" % (s(T0), s(sWN)))
    a("s_add_u32 %s, %s, 16384" % (s(T0), s(T0)))
    rowimg_frag_addr(a, gZ0, gZ1, T0)
    a("v_bfe_u32 v20, v3, 2, 2")
    a("v_lshl_add_u32 v23, v18, 3, v20")
    a("v_lshlrev_b32 v23, 8, v23")
    a("v_and_b32 v22, 3, v3")
    a("v_lshl_add_u32 v23, v22, 3, v23")
    a("v_and_b32 v22, 1, v18")
    a("v_lshl_or_b32 v20, v22, 2, v20")
    a("s_lshl_b32 %s, %s, 1" % (s(T0), s(sWN)))
    a("s_lshl_b32 %s, %s, 2" % (s(T1), s(sKH)))
    a("s_add_u32 %s, %s, %s" % (s(T0), s(T0), s(T1)))
    a("v_xor_b32 v20, %s, v20" % s(T0))
    a("v_lshl_add_u32 v23, v20, 5, v23")
    a("v_add_u32 %s, 16384, v23" % v(gN0))
    a("v_mov_b32 v28, 0xff")
    a("v_mov_b32 v31, %s" % s(sTAG))
    a("v_xor_b32 v15, 0x20000, v24")
    a("v_xor_b32 v16, 0x20000, v25")
    for i in range(96):
        a("v_mov_b32 %s, 0" % v(ACC + i))
    a("s_mov_b32 %s, %d" % (s(sSLOT), 4 * G2SLOT))

    def set_addr(joint):
        r = ["v_add_u32 %s, s14, %s" % (v(cM0), v(vM0)), "v_add_u32 %s, s14, %s" % (v(cM1), v(vM1))]
        if joint:
            r.append("v_add_u32 %s, s14, %s" % (v(cN), v(gN0)))
            for nt, x in ((1, 32), (2, 128), (3, 160)):
                r.append("v_xor_b32 %s, %d, %s" % (v(cN + nt), x, v(cN)))
        else:
            r += ["v_add_u32 %s, s14, %s" % (v(cN), v(gZ0)), "v_add_u32 %s, s14, %s" % (v(cN + 1), v(gZ1))]
        return r

    def next_slot():
        return ["s_add_u32 s14, s14, %d" % G2SLOT, "s_cmp_eq_u32 s14, %d" % (G2SLOT * 5), "s_cselect_b32 s14, 0, s14"]

    def reads(fs, ks, joint):
        r = []
        for t in range(4):
            if joint:
                for h in range(2):
                    r.append("ds_read_b64_tr_b16 %s, %s offset:%d" % (v(FR[fs] + 16 + 4 * t + 2 * h, 2), v(cN + t), ks * 8192 + h * 1024))
            elif t < 2:
                r.append("ds_read_b128 %s, %s offset:%d" % (v(FR[fs] + 16 + 4 * t, 4), v(cN + ks), t * 2048))
            r.append("ds_read_b128 %s, %s offset:%d" % (v(FR[fs] + 4 * t, 4), v(cM1 if ks else cM0), t * 2048))
        return r

    ot = lambda mt, nt: ACC + 4 * (nt * 4 + mt)

    def jm(fs, order=(0, 1, 2, 3)):
        return [mfma(ot(mt, nt), FR[fs] + 16 + 4 * nt, FR[fs] + 4 * mt) for nt in order for mt in range(4)]

    def sm(fs):
        return [mfma(ACY + 4 * (nt * 4 + mt), FR[fs] + 16 + 4 * nt, FR[fs] + 4 * mt) for nt in range(2) for mt in range(4)]

    a.all(set_addr(True))
    a("s_barrier")
    mark(a, 10)
    a.all(reads(0, 0, True))
    a("s_mov_b32 %s, 0" % s(sCNT))
    a("s_waitcnt lgkmcnt(0)")

    def joint_iter(nxt_joint, extra=(), pre_bar=(), flag=None, bar=True):
        nr = OPT.get("noread") == "1"
        interleave(a, jm(0), ([] if nr else reads(1, 1, True)) + next_slot() + set_addr(nxt_joint), per=int(OPT.get("g2per", "2")))
        a("s_waitcnt lgkmcnt(0)")
        a.all(pre_bar)
        fine(a)
        if bar:
            a("s_barrier")
        fine(a)
        interleave(a, jm(1), ([] if nr else reads(0, 0, True)) + list(extra), per=1)
        a("s_waitcnt lgkmcnt(0)")

    ZK = int(OPT.get("zk", "6"))

    def g2_loop(n):
        a("s_mov_b32 %s, 0" % s(sCNT))
        loop = a.newlabel("g2_loop")
        a.raw(".p2align 6")
        a.label(loop)
        joint_iter(True, ["s_add_u32 s15, s15, 1", "s_cmp_lt_u32 s15, %d" % n])
        a("s_cbranch_scc1 %s" % loop)

    g2_loop(ZK)
    joint_iter(True, pre_bar=["s_waitcnt vmcnt(0)"], flag="z")
    mark(a, 26)
    g2_loop(NJ - 2 - ZK)
    interleave(a, jm(0), reads(1, 1, True) + next_slot() + set_addr(False), per=2)
    a("s_waitcnt lgkmcnt(0)")
    a("s_barrier")
    m = jm(1, (2, 3, 0, 1))
    interleave(a, m[:8], reads(0, 0, False))
    for i in range(8):
        a(m[8 + i])
        b = ACC + 32 + 4 * i
        for j in range(4):
            a("v_bfi_b32 %s, v28, v31, %s" % (v(b + j), v(b + j)))
        a("buffer_store_dwordx4 %s, %s, %s, 0 offen offset:%d sc1" % (v(b, 4), "v16" if i >= 4 else "v15", s(WS, 4), (i & 3) * 1024))
    a("s_waitcnt lgkmcnt(0)")
    mark(a, 11)

    def recv_loads():
        return ["buffer_load_dwordx4 %s, %s, %s, 0 offen offset:%d sc1" % (v(RX + 4 * i, 4), "v25" if i >= 4 else "v24", s(WS, 4), (i & 3) * 1024)
                for i in range(8)]

    xl = ["buffer_load_dwordx2 %s, v19, %s, %s offen offset:%d" % (v(XR + 4 * mt + 2 * nt, 2), s(XS, 4), s(T3 + mt), nt * 32)
          for mt in range(4) for nt in range(2)]
    for k in range(NSOLO):
        last = k == NSOLO - 1
        interleave(a, sm(0), reads(1, 1, False) + ([] if last else next_slot() + set_addr(False)), per=2)
        a("s_waitcnt lgkmcnt(0)")
        if not last:
            a("s_barrier")
            interleave(a, sm(1), reads(0, 0, False) + (xl[4 * k:4 * k + 4] if k < 2 else []), per=2)
            a("s_waitcnt lgkmcnt(0)")
        else:
            interleave(a, sm(1), recv_loads())
    mark(a, 12)
    top = a.newlabel("rx"); chk = a.newlabel("rxchk"); ok = a.newlabel("rxok")
    a("s_mov_b32 %s, 0" % s(T7))
    a("s_branch %s" % chk)
    a.label(top)
    a.all(recv_loads())
    a.label(chk)
    a("s_waitcnt vmcnt(0)")
    a("v_or3_b32 v26, %s, %s, %s" % (v(RX), v(RX + 1), v(RX + 2)))
    a("v_bitop3_b32 v27, %s, %s, %s bitop3:0x80" % (v(RX), v(RX + 1), v(RX + 2)))
    for i in range(3, 31, 2):
        a("v_or3_b32 v26, v26, %s, %s" % (v(RX + i), v(RX + i + 1)))
        a("v_bitop3_b32 v27, v27, %s, %s bitop3:0x80" % (v(RX + i), v(RX + i + 1)))
    a("v_or_b32 v26, v26, %s" % v(RX + 31))
    a("v_and_b32 v27, v27, %s" % v(RX + 31))
    a("v_xor_b32 v26, v26, v31")
    a("v_xor_b32 v27, v27, v31")
    a("v_or_b32 v26, v26, v27")
    a("v_and_b32 v26, v26, v28")
    a("v_cmp_ne_u32 vcc, 0, v26")
    a("s_add_u32 %s, %s, 1" % (s(T7), s(T7)))
    a("s_nop 3")
    a("s_cbranch_vccz %s" % ok)
    a("s_sleep 1")
    a("s_cmp_lt_u32 %s, %d" % (s(T7), SPIN_MAX))
    a("s_cbranch_scc1 %s" % top)
    a.label(ok)
    mark(a, 13)
    TMP = 32
    PK = [64, 68, 72, 76]
    MIMIC = OPT.get("mimic", "0") == "1"

    def rnd(regs, t):
        for i, r_ in enumerate(regs):
            a("v_cvt_pk_bf16_f32 %s, %s, %s" % (v(t + i), v(r_), v(r_ + 1)))
        for i, r_ in enumerate(regs):
            a("v_lshlrev_b32 %s, 16, %s" % (v(r_), v(t + i)))
            a("v_and_b32 %s, %s, %s" % (v(r_ + 1), s(sHI), v(t + i)))

    for mt in range(4):
        offs = [4 * mt, 4 * mt + 2, 16 + 4 * mt, 16 + 4 * mt + 2]
        o = [ACC + x for x in offs]
        y = [ACY + x for x in offs]
        xf = [40 + 2 * i for i in range(4)]
        for i in range(4):
            for h in range(2):
                a("v_bfi_b32 %s, v28, 0, %s" % (v(RX + offs[i] + h), v(RX + offs[i] + h)))
        for i in range(4):
            a("v_pk_add_f32 %s, %s, %s" % (v(o[i], 2), v(o[i], 2), v(RX + offs[i], 2)))
        if MIMIC:
            rnd(o, 48)
        silu_pk(a, o, [TMP + 2 * i for i in range(4)])
        if MIMIC:
            rnd(o, 48)
            rnd(y, 52)
        for i in range(4):
            a("v_lshlrev_b32 %s, 16, %s" % (v(xf[i]), v(XR + 4 * mt + i)))
            a("v_and_b32 %s, %s, %s" % (v(xf[i] + 1), s(sHI), v(XR + 4 * mt + i)))
        if MIMIC:
            for i in range(4):
                a("v_pk_mul_f32 %s, %s, %s" % (v(o[i], 2), v(o[i], 2), v(y[i], 2)))
            rnd(o, 48)
            for i in range(4):
                a("v_pk_add_f32 %s, %s, %s" % (v(o[i], 2), v(o[i], 2), v(xf[i], 2)))
        else:
            for i in range(4):
                a("v_pk_fma_f32 %s, %s, %s, %s" % (v(o[i], 2), v(o[i], 2), v(y[i], 2), v(xf[i], 2)))
        P = PK[mt]
        for i in range(4):
            a("v_cvt_pk_bf16_f32 %s, %s, %s" % (v(P + i), v(o[i]), v(o[i] + 1)))
        a("s_nop 1")
        a("v_permlane16_swap_b32 %s, %s" % (v(P), v(P + 2)))
        a("v_permlane16_swap_b32 %s, %s" % (v(P + 1), v(P + 3)))
        a("buffer_store_dwordx4 %s, v17, %s, %s offen%s" % (v(P, 4), s(OUT, 4), s(T3 + mt), OPT.get("outmod", "_sc0_sc1").replace("_", " ")))
    flag_store(a, "epoch", 0)
    mark(a, 14)
    fine_dump(a, 1)
    a("s_endpgm")


GVA, GVB, GVA2, GVB2, GVC, GVD = 32, 36, 40, 44, 48, 52
GZA, GHA = 58, 59


def g2_loader_setup(a):
    a("v_lshrrev_b32 v6, 4, v3")
    a("s_lshr_b32 %s, %s, 1" % (s(T0), s(sL)))
    a("s_lshl_b32 %s, %s, 2" % (s(T0), s(T0)))
    a("v_or_b32 v7, %s, v6" % s(T0))
    a("v_lshlrev_b32 v7, 1, v7")
    a("v_and_b32 v28, 15, v3")
    a("v_xor_b32 v7, v7, v28")
    a("v_lshlrev_b32 v7, 4, v7")
    a("v_lshl_add_u32 v6, v6, 11, v7")
    a("s_mul_i32 %s, %s, %d" % (s(T0), s(sKH), 1792 * 2048))
    a("s_lshl_b32 %s, %s, 13" % (s(T1), s(sL)))
    a("s_add_u32 %s, %s, %s" % (s(T0), s(T0), s(T1)))
    a("s_lshl_b32 %s, %s, 8" % (s(T1), s(sCB8)))
    a("s_add_u32 %s, %s, %s" % (s(T0), s(T0), s(T1)))
    a("v_add_u32 v6, %s, v6" % s(T0))
    for i in range(4):
        a("v_add_u32 %s, %s, v6" % (v(GVB + i), hx(i * 16 * 2048)))
    for i in range(2):
        a("v_add_u32 %s, %s, v6" % (v(GVB2 + i), hx(((i + 2) * 16 + 192) * 2048)))
    a("s_lshl_b32 %s, %s, 4" % (s(T0), s(sCLS)))
    a("s_lshl_b32 %s, %s, 3" % (s(T1), s(sKH)))
    a("s_add_u32 %s, %s, %s" % (s(T0), s(T0), s(T1)))
    a("s_mul_i32 %s, %s, 49152" % (s(T1), s(T0)))
    a("s_add_u32 %s, %s, %s" % (s(T1), s(T1), hx(HR_OFF)))
    a("s_lshl_b32 %s, %s, 13" % (s(T2), s(T0)))
    a("s_add_u32 %s, %s, %s" % (s(T2), s(T2), hx(HL_OFF)))
    a("v_and_b32 v6, 64, v4")
    a("v_lshlrev_b32 v6, 7, v6")
    a("v_and_b32 v7, 48, v4")
    a("v_add_u32 v7, v7, v6")
    a("v_lshl_add_u32 v7, v5, 6, v7")
    a("v_add_u32 v7, %s, v7" % s(T1))
    for i in range(4):
        a("v_add_u32 %s, %d, v7" % (v(GVA + i), i * 32 * 64))
    a("v_and_b32 v7, 32, v4")
    a("v_lshl_add_u32 v6, v7, 7, v6")
    a("v_and_b32 v7, 16, v4")
    a("v_add_u32 v6, v6, v7")
    a("v_lshl_add_u32 v6, v5, 5, v6")
    a("v_add_u32 v6, %s, v6" % s(T2))
    for i in range(4):
        a("v_add_u32 %s, %d, v6" % (v(GVA2 + i), i * 32 * 32))
    a("s_cmp_gt_u32 %s, 8" % s(sCLS))
    a("s_cselect_b32 %s, -1, 0" % s(T0))
    a("s_sub_u32 %s, 16, %s" % (s(T2), s(sCLS)))
    a("s_cmp_gt_u32 %s, 8" % s(sCLS))
    a("s_cselect_b32 %s, %s, %s" % (s(T1), s(T2), s(sCLS)))
    a("s_lshl_b32 %s, %s, 19" % (s(T2), s(T1)))
    a("s_add_u32 %s, %s, %s" % (s(T2), s(T2), hx(ZT_OFF)))
    for i in range(4):
        a("v_add_u32 v6, %d, v5" % (32 * i))
        a("v_lshlrev_b32 v6, 4, v6")
        a("v_add_u32 v6, %s, v6" % s(sCLS))
        a("v_xor_b32 v6, %s, v6" % s(T0))
        a("v_subrev_u32 v6, %s, v6" % s(T0))
        a("v_and_b32 v6, 2047, v6")
        a("v_lshl_add_u32 %s, v6, 12, v4" % v(GVC + i))
    a("s_lshl_b32 %s, %s, 7" % (s(T3), s(sCB8)))
    a("s_lshl_b32 %s, %s, 6" % (s(T4), s(sKH)))
    a("s_add_u32 %s, %s, %s" % (s(T3), s(T3), s(T4)))
    for i in range(2):
        a("v_add_u32 v6, %d, v5" % (32 * i))
        a("v_add_u32 v6, %s, v6" % s(T3))
        a("v_xor_b32 v6, %s, v6" % s(T0))
        a("v_subrev_u32 v6, %s, v6" % s(T0))
        a("v_and_b32 v7, 3, v6")
        a("v_bfe_u32 v6, v6, 2, 8")
        a("v_lshl_add_u32 v6, v7, 8, v6")
        a("v_and_b32 v7, 48, v4")
        a("v_lshl_add_u32 v6, v6, 6, v7")
        a("v_and_b32 v7, 64, v4")
        a("v_lshl_add_u32 v6, v7, 10, v6")
        a("v_add_u32 %s, %s, v6" % (v(GVD + i), s(T2)))
    a("s_and_b32 %s, %s, 7" % (s(T3), s(T1)))
    a("s_lshl_b32 %s, %s, 9" % (s(T3), s(T3)))
    a("s_add_u32 %s, %s, %s" % (s(T3), s(T3), hx(ZF_OFF - SF_OFF)))
    a("v_add_u32 %s, %s, v31" % (v(GZA), s(T3)))
    a("s_andn2_b32 %s, %s, 127" % (s(T2), s(sHF)))
    a("v_and_b32 v6, 7, v3")
    a("v_lshlrev_b32 v6, 2, v6")
    a("v_add_u32 %s, %s, v6" % (v(GHA), s(T2)))
    a("s_and_b32 %s, %s, 4" % (s(T2), s(sCB8)))
    a("s_lshl_b32 %s, 15, %s" % (s(sMK), s(T2)))
    a("s_xor_b32 %s, %s, 255" % (s(sMK + 2), s(sMK)))
    a("s_bitset0_b32 %s, %s" % (s(sMK), s(sCB8)))
    a("s_mov_b32 %s, 0" % s(sMK + 1))
    a("s_mov_b32 %s, 0" % s(sMK + 3))


def loader_g2(a):
    a("s_add_u32 %s, %s, %d" % (s(sWRAP), s(sSL0), G2SLOT * 5))
    NT = NJ + NSOLO
    q = []

    def slot_of(st):
        a("s_add_u32 %s, %s, %d" % (s(sSLOT), s(sSL0), ((st + 4) % 5) * G2SLOT))

    def issue(st, want_a=True, want_b=True):
        slot_of(st)
        if st < NREG:
            breg = want_b and st < NRB()
            want_b = want_b and not breg
            if want_a or want_b:
                g2_koff(a, st, want_a, want_b)
            if want_a:
                for i in range(4):
                    dma(a, i * 4096, GVA + i, WS, sKA, coh=True)
            if want_b:
                for i in range(4):
                    dma(a, 16384 + i * 4096, GVB + i, W2, sKB)
            if breg:
                a("v_add_u32 v6, %s, %s" % (hx(((st + 4) % 5) * G2SLOT + 16384), v(GWA)))
                for i in range(4):
                    a("ds_write_b128 v6, %s offset:%d" % (v(RBB + 16 * st + 4 * i, 4), i * 4096))
            q.extend([st] * (4 * want_a + 4 * want_b))
        elif st < NJ:
            lam = st - NREG
            a("s_mov_b32 %s, %d" % (s(sKA), lam * 16384))
            a("s_mov_b32 %s, %d" % (s(sKB), (448 * lam + 192) * 2048))
            for i in range(4):
                dma(a, i * 4096, GVA2 + i, WS, sKA, coh=True)
            for i in range(2):
                dma(a, 16384 + i * 4096, GVB + i, W2, sKB)
            for i in range(2):
                dma(a, 16384 + (i + 2) * 4096, GVB2 + i, W2, sKB)
            q.extend([st] * 8)
        else:
            k = st - NJ
            a("s_mov_b32 %s, %d" % (s(sKA), (k & 1) * 128))
            a("s_mov_b32 %s, %d" % (s(sKB), (k & 1) * 131072 + (k >> 1) * 262144))
            for i in range(4):
                dma(a, i * 4096, GVC + i, CI if k >= 2 else CR, sKA)
            for i in range(2):
                dma(a, 16384 + i * 4096, GVD + i, WS, sKB, coh=True)
            q.extend([st] * 6)

    def wait(*tags):
        idx = max(i for i, x in enumerate(q) if x in tags)
        a("s_waitcnt vmcnt(%d)" % (len(q) - idx - 1))
        del q[:idx + 1]

    assert NRB() == 0
    issue(0, want_a=False)
    a("s_barrier")
    issue(1, want_a=False)
    issue(2, want_a=False)
    top = a.newlabel("pre"); got = a.newlabel("got"); nogot = a.newlabel("nogot")
    a("s_mov_b32 %s, 0" % s(T6))
    a("s_mov_b32 %s, 0" % s(T7))
    a.label(top)
    poll_issue(a, 29, GHA)
    a("s_waitcnt vmcnt(0)")
    a("s_add_u32 %s, %s, 1" % (s(T7), s(T7)))
    poll_test(a, 29, s(sMK, 2))
    a("s_cbranch_scc0 %s" % got)
    a("s_sleep 2")
    a("s_cmp_lt_u32 %s, %s" % (s(T7), OPT.get("np", "2")))
    a("s_cbranch_scc1 %s" % top)
    a("s_branch %s" % nogot)
    a.label(got)
    mark(a, 9)
    for st in range(3):
        issue(st, want_b=False)
    a("s_mov_b32 %s, 1" % s(T6))
    a.label(nogot)
    a("s_barrier")
    late = a.newlabel("late"); go = a.newlabel("go")
    a("s_cmp_eq_u32 %s, 0" % s(T6))
    a("s_cbranch_scc1 %s" % late)
    issue(3)
    a("s_waitcnt vmcnt(16)")
    a("s_barrier")
    issue(4)
    a("s_waitcnt vmcnt(20)")
    a("s_branch %s" % go)
    a.label(late)
    for st in range(3, 5):
        issue(st, want_a=False)
    poll_check(a, 29, GHA, s(sMK, 2), False)
    mark(a, 8)
    issue(0, want_b=False)
    issue(1, want_b=False)
    a("s_waitcnt vmcnt(4)")
    a("s_barrier")
    for st in range(2, 5):
        issue(st, want_b=False)
    a("s_waitcnt vmcnt(12)")
    a.label(go)
    del q[:]
    q.extend([1] + [2] * 4 + [3] * 4 + [4] * 4)
    nxt = 5
    a.skipdma = True
    for k in range(0, NT - 1):
        last_issue = min(k + 5, NT - 1)
        tags = [k + 1]
        chk = None
        if nxt <= 12 <= last_issue:
            tags.append("p2"); chk = "h2"
        if nxt <= NJ <= last_issue:
            tags.append("p3"); chk = "z"
        fine(a)
        if k > 0:
            wait(*tags)
        else:
            q.remove(1)
        if chk == "h2":
            poll_check(a, 29, GHA, s(sMK + 2, 2), True)
        elif chk is not None:
            a("s_mov_b32 %s, -1" % s(sMK))
            poll_check(a, 29, GZA, s(sMK, 2), True)
        fine(a)
        a("s_barrier")
        while nxt <= last_issue:
            issue(nxt); nxt += 1
        if k == int(OPT.get("zk", "6")):
            flag_store(a, "z")
        if k == 3:
            poll_issue(a, 29, GHA); q.append("p2")
        if k == NJ - 9:
            poll_issue(a, 29, GZA); q.append("p3")
    fine_dump(a, 1)
    a("s_endpgm")


HEADER = """; Kernarg layout (88 bytes, ptrs only, base s[0:1]): 0 A_x, 8 dft_seq_re, 16 dft_seq_im, 24 dft_hid_re,
"""


def main():
    global STAMP
    args = sys.argv[1:]
    global FINE, NSGPR
    if "--fine" in args:
        FINE = True; NSGPR = 102; args.remove("--fine")
    if "--stamp" in args:
        STAMP = True; args.remove("--stamp")
    for x in list(args):
        if x.startswith("--") and "=" in x:
            k, val = x[2:].split("="); OPT[k] = val; args.remove(x)
    a = Asm()
    a.raw(HEADER.rstrip("\n"))
    nv = 256 if (STAMP or FINE) else 248
    a.raw("; @launch grid=(256,1,1) block=(512,1,1) lds=163840")
    a.raw('.amdgcn_target "amdgcn-amd-amdhsa--gfx950"')
    a.raw(".text")
    name = NAME + "_kernel"
    kernel_header(a, name)
    prologue(a, "L_end")
    if FINE:
        a("s_mov_b32 s100, 0")
        a("v_mov_b32 v250, 0")
    mark(a, 0)
    a("s_cmp_ge_u32 %s, 4" % s(sWAVE))
    a("s_cbranch_scc1 L_loader")
    compute_setup(a)
    a("s_barrier")
    prep_ln(a)
    a("s_waitcnt lgkmcnt(0)")
    tag_ready(a)
    a("v_mov_b32 v29, %d" % SYNC)
    a("v_mov_b32 v30, 1")
    a("s_mov_b64 exec, 1")
    a("ds_add_u32 v29, v30")
    a("s_mov_b64 exec, -1")
    a("s_mov_b32 %s, 0" % s(T7))
    a.label("L_sync")
    a("ds_read_b32 v30, v29")
    a("s_add_u32 %s, %s, 1" % (s(T7), s(T7)))
    a("s_waitcnt lgkmcnt(0)")
    a("v_readfirstlane_b32 %s, v30" % s(T6))
    a("s_cmp_ge_u32 %s, %d" % (s(T7), SPIN_MAX))
    a("s_cbranch_scc1 L_synced")
    a("s_cmp_lt_u32 %s, 4" % s(T6))
    a("s_cbranch_scc1 L_sync")
    a.label("L_synced")
    dft = prep_dft(a)
    dft(0)
    a("s_waitcnt lgkmcnt(0)")
    dft(1)
    dft(3)
    compute_g1_s1(a)
    compute_g2(a)
    a.label("L_loader")
    if OPT.get("lprio", "0") != "0":
        a("s_setprio %s" % OPT.get("lprio", "0"))
    loader_setup(a)
    loader_g1_s1(a)
    loader_g2(a)
    a.label("L_end")
    a("s_endpgm")
    a.raw('.section .rodata,"a"')
    a.raw(kernel_desc(name, nv, NSGPR).rstrip("\n"))
    out = args[0] if args else "cdna_kernels/%s.s" % NAME
    open(out, "w").write(a.text())


if __name__ == "__main__":
    main()
```

```python
import math, struct, sys

NAME = "recurrent_scan__spectral_fnet__dense_activation_silu__prompt"

CS_OFF = 0x0000000
STAT_OFF = 0x0040000
HF_OFF = 0x0050000
SF_OFF = 0x0052000
ZF_OFF = 0x0054000
EP_OFF = 0x0058000
CB_OFF = 0x0400000
ZT_OFF = 0x0800000
HR_OFF = 0x0D00000
HL_OFF = 0x1900000
EX_OFF = 0x1C00000
STAMP_OFF = 0x4000000
WS_SZ = 0x10000000

STAMP = False
SC1 = " sc1"
SPIN_MAX = 200000
OPT = {}

G1SLOT = 45056
G2SLOT = 32768
STG = 143360
CSP = 135168
CSB = 161792
STB = 162816
S1SLOTS = [0, 32768, 65536, 98304]

sWAVE, sXCD, sLOC, sRB, sCB, sTAU, sCLS, sCB8, sKH = 3, 4, 5, 6, 7, 8, 9, 10, 11
sWM, sWN, sSLOT, sCNT = 12, 13, 14, 15
sL = 12
T0, T1, T2, T3, T4, T5, T6, T7 = 16, 17, 18, 19, 20, 21, 22, 23
sNB8 = 39
sTAG, sMK = 38, 76
sSP, sHALF, sHF = 26, 27, 28
WS, W1, DR, DI, W2, CR, CI, XS, OUT, DBG = 40, 44, 48, 52, 56, 60, 64, 68, 72, 76
sNL2E, sHI = 80, 82
C1, C2, C3 = 84, 86, 88
sKA, sKB, sWRAP, sSL0, sP3 = 90, 91, 92, 93, 94
NSGPR = 100


def f32(x):
    return struct.unpack("<I", struct.pack("<f", x))[0]


def hx(x):
    return "0x%x" % (x & 0xFFFFFFFF)


def v(i, n=1):
    return "v%d" % i if n == 1 else "v[%d:%d]" % (i, i + n - 1)


def s(i, n=1):
    return "s%d" % i if n == 1 else "s[%d:%d]" % (i, i + n - 1)


class Asm:
    def __init__(self):
        self.lines = []
        self.uid = 0

    def __call__(self, txt):
        self.lines.append("    " + txt)

    def label(self, l):
        self.lines.append(l + ":")

    def newlabel(self, p):
        self.uid += 1
        return "L_%s_%d" % (p, self.uid)

    def c(self, txt):
        self.lines.append("    ; " + txt)

    def raw(self, txt):
        self.lines.append(txt)

    def all(self, lst):
        for x in lst:
            self(x)

    def text(self):
        return "\n".join(self.lines) + "\n"


def srd(a, dst, ptr, off, size):
    if off:
        a("s_add_u32 %s, %s, %s" % (s(dst), s(ptr), hx(off)))
        a("s_addc_u32 %s, %s, 0" % (s(dst + 1), s(ptr + 1)))
    else:
        a("s_mov_b32 %s, %s" % (s(dst), s(ptr)))
        a("s_mov_b32 %s, %s" % (s(dst + 1), s(ptr + 1)))
    a("s_mov_b32 %s, %s" % (s(dst + 2), hx(size)))
    a("s_mov_b32 %s, 0x20000" % s(dst + 3))


def kernel_header(a, name):
    a.raw(".globl %s" % name)
    a.raw(".p2align 8")
    a.raw(".type %s,@function" % name)
    a.label(name)


def kernel_desc(name, vgpr, sgpr):
    acc = (vgpr + 3) // 4 * 4
    return "\n".join([
        ".p2align 6",
        ".amdhsa_kernel %s" % name,
        "  .amdhsa_next_free_vgpr %d" % vgpr,
        "  .amdhsa_next_free_sgpr %d" % sgpr,
        "  .amdhsa_accum_offset %d" % acc,
        "  .amdhsa_group_segment_fixed_size 0",
        "  .amdhsa_kernarg_size 88",
        "  .amdhsa_user_sgpr_count 2",
        "  .amdhsa_user_sgpr_kernarg_segment_ptr 1",
        "  .amdhsa_system_sgpr_workgroup_id_x 1",
        ".end_amdhsa_kernel",
    ]) + "\n"


NEG1 = " neg_lo:[0,1] neg_hi:[0,1]"


def mark(a, idx):
    if not STAMP:
        return
    lab = a.newlabel("nost")
    a("s_and_b32 s96, %s, 3" % s(sWAVE))
    a("s_cmp_lg_u32 s96, 0")
    a("s_cbranch_scc1 %s" % lab)
    a("s_memrealtime s[96:97]")
    a("s_memtime s[98:99]")
    a("s_waitcnt lgkmcnt(0)")
    a("v_mov_b32 v252, s96")
    a("v_mov_b32 v253, s98")
    a("s_lshl_b32 s96, s2, 8")
    a("s_lshl_b32 s97, %s, 5" % s(sWAVE))
    a("s_add_u32 s96, s96, s97")
    a("s_add_u32 s96, s96, %s" % hx(STAMP_OFF + idx * 8))
    a("v_mov_b32 v254, s96")
    a("buffer_store_dwordx2 v[252:253], v254, %s, 0 offen" % s(WS, 4))
    a.label(lab)


FINE = False


def fine(a):
    if not FINE:
        return
    a("s_memtime s[98:99]")
    a("s_waitcnt lgkmcnt(0)")
    a("s_mov_b32 m0, s100")
    a("s_nop 0")
    a("v_writelane_b32 v250, s98, m0")
    a("s_add_u32 s100, s100, 1")


def fine_dump(a, slot):
    if not FINE:
        return
    a("s_lshl_b32 s96, s2, 11")
    a("s_lshl_b32 s97, %s, 8" % s(sWAVE))
    a("s_add_u32 s96, s96, s97")
    a("s_add_u32 s96, s96, %s" % hx(STAMP_OFF + 0x100000 * (1 + slot)))
    a("v_lshlrev_b32 v251, 2, v3")
    a("buffer_store_dword v250, v251, %s, s96 offen" % s(WS, 4))
    a("s_mov_b32 s100, 0")
    a("s_nop 1")
    a("v_mov_b32 v250, 0")


def interleave(a, main, fill, per=1, start=0):
    fi = 0
    for i, m in enumerate(main):
        a(m)
        if i >= start:
            for _ in range(per):
                if fi < len(fill):
                    a(fill[fi]); fi += 1
    while fi < len(fill):
        a(fill[fi]); fi += 1


def mfma(d, sa, sb, c=None):
    return "v_mfma_f32_16x16x32_bf16 %s, %s, %s, %s" % (v(d, 4), v(sa, 4), v(sb, 4), v(d, 4) if c is None else c)


def prologue(a, endlab):
    a("s_cmp_ge_u32 s2, 256")
    a("s_cbranch_scc1 %s" % endlab)
    if OPT.get("cpf", "1") == "1":
        a("s_getpc_b64 s[96:97]")
        a.label("L_pc")
        a("s_lshr_b32 s98, s2, 3")
        a("s_lshl_b32 s98, s98, 13")
        a("v_lshl_add_u32 v2, v0, 4, s98")
        a("v_cmp_gt_u32 vcc, L_end-L_pc, v2")
        a("s_and_saveexec_b64 s[98:99], vcc")
        a("s_cbranch_execz L_nocpf")
        a("global_load_dwordx4 v[244:247], v2, s[96:97]")
        a.label("L_nocpf")
        a("s_mov_b64 exec, -1")
    a("s_load_dwordx16 s[16:31], s[0:1], 0")
    a("s_load_dwordx4 s[32:35], s[0:1], 64")
    a("s_load_dwordx2 s[36:37], s[0:1], 80")
    a("v_lshrrev_b32 v1, 6, v0")
    a("v_and_b32 v3, 63, v0")
    a("s_and_b32 %s, s2, 7" % s(sXCD))
    a("s_lshr_b32 %s, s2, 3" % s(sLOC))
    a("v_readfirstlane_b32 %s, v1" % s(sWAVE))
    a("s_and_b32 s6, s4, 1"); a("s_lshl_b32 s6, s6, 3"); a("s_and_b32 s7, s5, 7"); a("s_add_u32 s6, s6, s7")
    a("s_lshr_b32 s7, s4, 1"); a("s_lshl_b32 s7, s7, 2"); a("s_lshr_b32 s8, s5, 3"); a("s_add_u32 s7, s7, s8")
    a("s_lshl_b32 s8, s4, 5"); a("s_add_u32 s8, s8, s5")
    a("s_mov_b32 s9, s6")
    a("s_lshr_b32 s11, s7, 3")
    a("s_and_b32 s10, s7, 7")
    a("s_mov_b32 %s, %s" % (s(sNL2E), hx(f32(-1.4426950408889634))))
    a("s_mov_b32 %s, %s" % (s(sNL2E + 1), hx(f32(-1.4426950408889634))))
    a("s_mov_b32 %s, 0xffff0000" % s(sHI))
    a("s_lshr_b32 s38, %s, 1" % s(sTAU))
    a("s_and_b32 s39, %s, 1" % s(sTAU))
    a("v_lshlrev_b32 v26, 18, v1")
    a("v_and_b32 v27, 31, v3")
    a("v_lshl_add_u32 v26, v27, 3, v26")
    a("v_lshrrev_b32 v27, 5, v3")
    a("v_lshl_add_u32 v26, v27, 9, v26")
    a("s_lshl_b32 s95, s38, 11")
    a("v_add_u32 v26, s95, v26")
    a("s_lshl_b32 s95, s39, 8")
    a("v_add_u32 v26, s95, v26")
    a("v_xor_b32 v27, 0x100, v26")
    a("v_mov_b32 v28, %d" % SYNC)
    a("v_mov_b32 v29, 0")
    a("ds_write_b32 v28, v29")
    a("s_waitcnt lgkmcnt(0)")
    srd(a, XS, 16, 0, 2048 * 1024 * 2)
    a("s_cmp_ge_u32 %s, 4" % s(sWAVE))
    a("s_cbranch_scc1 L_nox")
    for ri, B in enumerate(RAWB):
        a("s_mov_b32 s95, %s" % hx(ri * 0x100000))
        for hh in range(2):
            for jj in range(2):
                a("buffer_load_dwordx2 %s, %s, %s, s95 offen offset:%d" % (
                    v(B + 4 * hh + 2 * jj, 2), "v27" if hh else "v26", s(XS, 4), 1024 * jj))
    a.label("L_nox")
    srd(a, WS, 36, 0, WS_SZ)
    srd(a, W1, 28, 0, 1024 * 3584 * 2)
    srd(a, DR, 22, 0, 1024 * 1024 * 2)
    srd(a, DI, 24, 0, 1024 * 1024 * 2)
    srd(a, W2, 30, 0, 3584 * 1024 * 2)
    srd(a, CR, 18, 0, 2048 * 2048 * 2)
    srd(a, CI, 20, 0, 2048 * 2048 * 2)
    srd(a, OUT, 32, 0, 2048 * 1024 * 2)
    a("s_mov_b32 %s, s38" % s(sSP))
    a("s_mov_b32 %s, s39" % s(sHALF))
    a("s_lshl_b32 %s, %s, 4" % (s(sHF), s(sRB)))
    a("s_add_u32 %s, %s, %s" % (s(sHF), s(sHF), s(sCB)))
    a("s_lshr_b32 s95, %s, 3" % s(sHF))
    a("s_lshl_b32 s95, s95, 7")
    a("s_lshl_b32 %s, %s, 2" % (s(sHF), s(sCB8)))
    a("s_add_u32 %s, %s, s95" % (s(sHF), s(sHF)))
    a("s_add_u32 %s, %s, %s" % (s(sHF), s(sHF), hx(HF_OFF)))
    if US() == 1:
        a("s_lshl_b32 %s, %s, 1" % (s(sNB8), s(sCB8)))
    elif US() == 2:
        a("s_and_b32 s95, %s, 1" % s(sCB8))
        a("s_lshr_b32 %s, %s, 1" % (s(sNB8), s(sCB8)))
        a("s_lshl_b32 %s, %s, 2" % (s(sNB8), s(sNB8)))
        a("s_add_u32 %s, %s, s95" % (s(sNB8), s(sNB8)))
    else:
        a("s_and_b32 s95, %s, 3" % s(sCB8))
        a("s_lshr_b32 %s, %s, 2" % (s(sNB8), s(sCB8)))
        a("s_lshl_b32 %s, %s, 3" % (s(sNB8), s(sNB8)))
        a("s_add_u32 %s, %s, s95" % (s(sNB8), s(sNB8)))
    a("s_load_dword %s, s[36:37], %s" % (s(sTAG), hx(EP_OFF)))


def US():
    return int(OPT.get("us", "1"))


ROWB = [32, 76]
RAWB = [32, 76, 240, 120]


def tag_ready(a):
    a("s_add_u32 %s, %s, 0x9e3779b9" % (s(sTAG), s(sTAG)))


def flag_store(a, kind, wave=4):
    lab = a.newlabel("nf")
    a("s_cmp_lg_u32 %s, %d" % (s(sWAVE), wave))
    a("s_cbranch_scc1 %s" % lab)
    if kind == "h":
        a("v_mov_b32 v2, %s" % s(sHF))
    elif kind == "epoch":
        a("s_cmp_lg_u32 s2, 0")
        a("s_cbranch_scc1 %s" % lab)
        a("v_mov_b32 v2, %s" % hx(EP_OFF))
    else:
        idx = "s2" if kind == "s" else s(sTAU)
        a("s_lshr_b32 s96, %s, 3" % idx)
        a("s_lshl_b32 s96, s96, 7")
        a("s_and_b32 s97, %s, 7" % idx)
        a("s_lshl_b32 s97, s97, 2")
        a("s_add_u32 s96, s96, s97")
        a("s_add_u32 s96, s96, %s" % hx(SF_OFF if kind == "s" else ZF_OFF))
        a("v_mov_b32 v2, s96")
    a("v_mov_b32 v1, %s" % s(sTAG))
    a("s_mov_b64 exec, 1")
    a("buffer_store_dword v1, v2, %s, 0 offen sc1" % s(WS, 4))
    a("s_mov_b64 exec, -1")
    a("s_nop 3")
    a.label(lab)


def poll_issue(a, vdst, vaddr, n=1):
    for i in range(n):
        a("buffer_load_dword %s, %s, %s, 0 offen offset:%d sc1" % (v(vdst + i), v(vaddr), s(WS, 4), i * 1024))


def poll_test(a, vdst, mask, n=1):
    a("v_cmp_ne_u32 vcc, %s, %s" % (s(sTAG), v(vdst)))
    for i in range(1, n):
        a("v_cmp_ne_u32 s[96:97], %s, %s" % (s(sTAG), v(vdst + i)))
        a("s_or_b64 vcc, vcc, s[96:97]")
    a("s_nop 0")
    a("s_and_b64 vcc, vcc, %s" % mask)


def poll_check(a, vdst, vaddr, mask, issued, n=1):
    top = a.newlabel("poll"); done = a.newlabel("pdone"); chk = a.newlabel("pchk")
    a("s_mov_b32 %s, 0" % s(T7))
    if issued:
        a("s_branch %s" % chk)
    a.label(top)
    poll_issue(a, vdst, vaddr, n)
    a("s_waitcnt vmcnt(0)")
    a.label(chk)
    a("s_add_u32 %s, %s, 1" % (s(T7), s(T7)))
    poll_test(a, vdst, mask, n)
    a("s_cbranch_scc0 %s" % done)
    a("s_sleep %s" % OPT.get("sleep", "4"))
    a("s_cmp_lt_u32 %s, %d" % (s(T7), SPIN_MAX))
    a("s_cbranch_scc1 %s" % top)
    a.label(done)


def prep_ln(a):
    a("v_lshlrev_b32 v31, 8, v1")
    a("v_and_b32 v2, 31, v3")
    a("v_lshl_add_u32 v31, v2, 3, v31")
    a("v_lshrrev_b32 v2, 5, v3")
    a("v_lshl_add_u32 v31, v2, 12, v31")
    a("v_add_u32 v31, %d, v31" % STG)
    a("s_and_b32 %s, %s, 15" % (s(T0), s(sSP)))
    a("s_lshl_b32 %s, %s, 7" % (s(T0), s(T0)))
    a("s_lshr_b32 %s, %s, 4" % (s(T1), s(sSP)))
    a("s_add_u32 %s, %s, %s" % (s(T0), s(T0), s(T1)))
    a("s_lshl_b32 %s, %s, 3" % (s(T1), s(sWAVE)))
    a("s_add_u32 %s, %s, %s" % (s(T0), s(T0), s(T1)))
    a("s_lshl_b32 %s, %s, 3" % (s(T0), s(T0)))
    a("s_add_u32 %s, %s, %s" % (s(T0), s(T0), hx(STAT_OFF)))
    a("v_mov_b32 v2, %s" % s(T0))
    for ps in range(2):
        a("s_waitcnt vmcnt(%d)" % (8 if ps == 0 else 0))
        prep_ln_pass(a, ps)
    lab = a.newlabel("nostat")
    a("s_cmp_lg_u32 %s, 0" % s(sHALF))
    a("s_cbranch_scc1 %s" % lab)
    a("s_mov_b64 exec, 1")
    for ri in range(4):
        a("buffer_store_dwordx2 %s, v2, %s, 0 offen offset:%d%s" % (v(ROWB[ri & 1] + 32 * (ri >> 1), 2), s(WS, 4), ri * 256, SC1))
    a("s_mov_b64 exec, -1")
    a.label(lab)


def prep_ln_pass(a, ps):
    streams = []
    for rj, B in enumerate(ROWB):
        ri = 2 * ps + rj
        RAW, X, T, M, R, D = RAWB[ri], B + 8, B + 24, B + 32, B + 34, B + 36
        S1, S2 = (T5, T6) if rj == 0 else (24, 25)
        L = []
        for p in range(8):
            L.append("v_lshlrev_b32 %s, 16, %s" % (v(X + 2 * p), v(RAW + p)))
            L.append("v_and_b32 %s, %s, %s" % (v(X + 2 * p + 1), s(sHI), v(RAW + p)))
        pk = lambda d, x, y, m="": L.append("v_pk_add_f32 %s, %s, %s%s" % (v(d, 2), v(x, 2), v(y, 2), m))

        def wsum(r, sd):
            for m in ("quad_perm:[1,0,3,2] row_mask:0xf", "quad_perm:[2,3,0,1] row_mask:0xf",
                      "row_half_mirror row_mask:0xf", "row_mirror row_mask:0xf",
                      "row_bcast:15 row_mask:0xa", "row_bcast:31 row_mask:0xc"):
                L.append("s_nop 0")
                L.append("v_add_f32_dpp %s, %s, %s %s bank_mask:0xf" % (v(r), v(r), v(r), m))
            L.append("s_nop 0")
            L.append("v_readlane_b32 %s, %s, 63" % (s(sd), v(r)))
            L.append("s_nop 0")
        pk(T, X, X + 2); pk(T + 2, X + 4, X + 6); pk(T + 4, X + 8, X + 10); pk(T + 6, X + 12, X + 14)
        pk(T, T, T + 2); pk(T + 4, T + 4, T + 6); pk(T, T, T + 4)
        L.append("v_add_f32 %s, %s, %s" % (v(T), v(T), v(T + 1)))
        wsum(T, S1)
        L.append("v_mov_b32 %s, %s" % (v(M), hx(f32(1.0 / 1024))))
        L.append("v_mul_f32 %s, %s, %s" % (v(M), s(S1), v(M)))
        for g4 in range(2):
            for p in range(4):
                pk(D + 2 * p, X + 8 * g4 + 2 * p, M, " op_sel_hi:[1,0]" + NEG1)
            for p in range(4):
                t = T + 2 * (p & 1)
                if g4 == 0 and p < 2:
                    L.append("v_pk_mul_f32 %s, %s, %s" % (v(t, 2), v(D + 2 * p, 2), v(D + 2 * p, 2)))
                else:
                    L.append("v_pk_fma_f32 %s, %s, %s, %s" % (v(t, 2), v(D + 2 * p, 2), v(D + 2 * p, 2), v(t, 2)))
        pk(T, T, T + 2)
        L.append("v_add_f32 %s, %s, %s" % (v(T), v(T), v(T + 1)))
        wsum(T, S2)
        L.append("v_mov_b32 %s, %s" % (v(R), hx(f32(1.0 / 1024))))
        L.append("v_mul_f32 %s, %s, %s" % (v(R), s(S2), v(R)))
        L.append("v_cvt_pk_bf16_f32 %s, %s, %s" % (v(R), v(R), v(R)))
        L.append("v_lshlrev_b32 %s, 16, %s" % (v(R), v(R)))
        L.append("v_add_f32 %s, %s, %s" % (v(R), hx(f32(1e-5)), v(R)))
        L.append("v_cvt_pk_bf16_f32 %s, %s, %s" % (v(R), v(R), v(R)))
        L.append("v_lshlrev_b32 %s, 16, %s" % (v(R), v(R)))
        L.append("v_sqrt_f32 %s, %s" % (v(R), v(R)))
        L.append("v_cvt_pk_bf16_f32 %s, %s, %s" % (v(M), v(M), v(M)))
        L.append("v_cvt_pk_bf16_f32 %s, %s, %s" % (v(R), v(R), v(R)))
        L.append("v_lshlrev_b32 %s, 16, %s" % (v(M), v(M)))
        L.append("v_lshlrev_b32 %s, 16, %s" % (v(R), v(R)))
        L.append("v_rcp_f32 %s, %s" % (v(R), v(R)))
        for p in range(4):
            pk(D + 2 * p, X + 2 * p, M, " op_sel_hi:[1,0]" + NEG1)
        if ps == 0:
            L.append("v_mov_b32 %s, %s" % (v(B), v(M)))
            L.append("v_mov_b32 %s, %s" % (v(B + 1), v(R)))
        else:
            L.append("v_mov_b32 %s, %s" % (v(M + 1), v(R)))
        for p in range(4):
            L.append("v_cvt_pk_bf16_f32 %s, %s, %s" % (v(T + p), v(D + 2 * p), v(D + 2 * p + 1)))
        for p in range(4):
            L.append("v_lshlrev_b32 %s, 16, %s" % (v(D + 2 * p), v(T + p)))
            L.append("v_and_b32 %s, %s, %s" % (v(D + 2 * p + 1), s(sHI), v(T + p)))
        for p in range(4):
            L.append("v_pk_mul_f32 %s, %s, %s op_sel_hi:[1,0]" % (v(D + 2 * p, 2), v(D + 2 * p, 2), v(R, 2)))
        for p in range(4):
            L.append("v_cvt_pk_bf16_f32 %s, %s, %s" % (v(T + p), v(D + 2 * p), v(D + 2 * p + 1)))
        for p in range(4):
            L.append("v_lshlrev_b32 %s, 16, %s" % (v(X + 2 * p), v(T + p)))
            L.append("v_and_b32 %s, %s, %s" % (v(X + 2 * p + 1), s(sHI), v(T + p)))
        pk(D, X, X + 4); pk(D + 2, X + 2, X + 6)
        pk(D + 4, X, X + 4, NEG1); pk(D + 6, X + 2, X + 6, NEG1)
        for p in range(4):
            L.append("v_cvt_pk_f16_f32 %s, %s, %s" % (v(T + p), v(D + 2 * p), v(D + 2 * p + 1)))
        for wh in range(2):
            L.append("ds_write_b64 v31, %s offset:%d" % (v(T + 2 * wh, 2), wh * 8192 + ri * 1024))
        streams.append(L)
    for x, y in zip(*streams):
        a(x); a(y)


def prep_dft(a0):
    a = Asm()
    a("s_lshr_b32 %s, %s, 1" % (s(T0), s(sWAVE)))
    a("s_lshl_b32 %s, %s, 13" % (s(T1), s(T0)))
    a("s_add_u32 %s, %s, %d" % (s(T1), s(T1), STG))
    a("v_lshlrev_b32 v122, 2, v3")
    a("v_add_u32 v122, %s, v122" % s(T1))
    IN = [32, 48]
    for ab in range(2):
        for j in range(8):
            a("ds_read2st64_b32 %s, v122 offset0:%d offset1:%d" % (v(IN[ab] + 2 * j, 2), ab * 16 + j, ab * 16 + j + 8))
    a("s_lshl_b32 %s, %s, 9" % (s(T1), s(sSP)))
    a("s_lshl_b32 %s, %s, 8" % (s(T2), s(sHALF)))
    a("s_add_u32 %s, %s, %s" % (s(T1), s(T1), s(T2)))
    a("s_lshl_b32 %s, %s, 17" % (s(T2), s(T0)))
    a("s_add_u32 %s, %s, %s" % (s(T1), s(T1), s(T2)))
    a("s_add_u32 %s, %s, %s" % (s(T1), s(T1), hx(CB_OFF)))
    a("v_lshlrev_b32 v123, 2, v3")
    a("v_add_u32 v123, %s, v123" % s(T1))
    for r_, val in ((C1, math.cos(math.pi / 8)), (C2, math.cos(math.pi / 4)), (C3, math.cos(3 * math.pi / 8))):
        a("s_mov_b32 %s, %s" % (s(r_), hx(f32(val))))
        a("s_mov_b32 %s, %s" % (s(r_ + 1), hx(f32(val))))
    head = a.lines
    var = {}
    for parity in range(2):
        free = list(range(64, 120, 2))
        alloc = lambda: free.pop(0)

        def rel(*rs):
            free.extend(rs)

        def add(x, y):
            d = alloc(); a("v_pk_add_f32 %s, %s, %s" % (v(d, 2), v(x, 2), v(y, 2))); return d

        def sub(x, y):
            d = alloc(); a("v_pk_add_f32 %s, %s, %s%s" % (v(d, 2), v(x, 2), v(y, 2), NEG1)); return d

        def mul(x, c):
            d = alloc(); a("v_pk_mul_f32 %s, %s, %s" % (v(d, 2), v(x, 2), s(c, 2))); return d

        def fma(x, c, y, nx=False, ny=False):
            d = alloc()
            mod = " neg_lo:[%d,0,%d] neg_hi:[%d,0,%d]" % (nx, ny, nx, ny) if (nx or ny) else ""
            a("v_pk_fma_f32 %s, %s, %s, %s%s" % (v(d, 2), v(x, 2), s(c, 2), v(y, 2), mod)); return d

        def mix(r, neg):
            d = alloc()
            for h in range(2):
                a("v_fma_mix_f32 %s, %s, 1.0, %s%s op_sel:[%d,0,%d] op_sel_hi:[1,0,1]" % (v(d + h), v(r), "-" if neg else "", v(r + 1), h, h))
            rel(r)
            return d

        def dft(base):
            p = {}; q = {}
            if parity == 0:
                u = [mix(base + 2 * j, False) for j in range(8)]
                uu = []; uv = []
                for j in range(4):
                    uu.append(add(u[j], u[j + 4])); uv.append(sub(u[j], u[j + 4])); rel(u[j], u[j + 4])
                e0 = add(uu[0], uu[2]); e1 = add(uu[1], uu[3])
                p[4] = sub(uu[0], uu[2]); q[4] = sub(uu[1], uu[3]); rel(*uu)
                p[0] = add(e0, e1); p[8] = sub(e0, e1); rel(e0, e1)
                dm = sub(uv[1], uv[3]); dp = add(uv[1], uv[3])
                p[2] = fma(dm, C2, uv[0]); p[6] = fma(dm, C2, uv[0], nx=True)
                q[2] = fma(dp, C2, uv[2]); q[6] = fma(dp, C2, uv[2], ny=True)
                rel(dm, dp, *uv)
            else:
                w = [mix(base + 2 * j, True) for j in range(8)]
                aa = {}; bb = {}
                for j in (1, 2, 3):
                    aa[j] = sub(w[j], w[8 - j]); bb[j] = add(w[j], w[8 - j]); rel(w[j], w[8 - j])
                Ap = fma(aa[2], C2, w[0]); Am = fma(aa[2], C2, w[0], nx=True); rel(aa[2], w[0])
                t = mul(aa[1], C1); G1 = fma(aa[3], C3, t); rel(t)
                t = mul(aa[1], C3); G3 = fma(aa[3], C1, t, nx=True); rel(t, aa[1], aa[3])
                p[1] = add(Ap, G1); p[7] = sub(Ap, G1); p[3] = add(Am, G3); p[5] = sub(Am, G3); rel(Ap, Am, G1, G3)
                Bp = fma(bb[2], C2, w[4]); B3 = fma(bb[2], C2, w[4], ny=True); rel(bb[2], w[4])
                t = mul(bb[1], C3); H1 = fma(bb[3], C1, t); rel(t)
                t = mul(bb[1], C1); H3 = fma(bb[3], C3, t, nx=True); rel(t, bb[1], bb[3])
                q[1] = add(H1, Bp); q[7] = sub(H1, Bp); q[3] = add(H3, B3); q[5] = sub(H3, B3); rel(Bp, B3, H1, H3)
            return p, q

        a.lines = var[(1, parity)] = []
        pa, qa = dft(IN[0])
        a.lines = var[(2, parity)] = []
        pb, qb = dft(IN[1])
        tmpd = []
        for _ in range(4):
            r_ = alloc(); tmpd += [r_, r_ + 1]
        t2 = [alloc(), alloc()]
        cnt = [0]

        def st(reg, arr):
            d = tmpd[cnt[0] % len(tmpd)]; cnt[0] += 1
            a("v_cvt_pk_bf16_f32 %s, %s, %s" % (v(d), v(reg), v(reg + 1)))
            a("s_mov_b32 %s, %s" % (s(T1), hx(arr * 65536)))
            a("buffer_store_dword %s, v123, %s, %s offen%s" % (v(d), s(WS, 4), s(T1), SC1))

        rs = [2, 4, 6] if parity == 0 else [1, 3, 5, 7]
        a.lines = var[(3, parity, 0)] = []
        def comb(x, y, arr1, arr2):
            a("v_pk_add_f32 %s, %s, %s" % (v(t2[0], 2), v(x, 2), v(y, 2)))
            a("v_pk_add_f32 %s, %s, %s%s" % (v(t2[1], 2), v(x, 2), v(y, 2), NEG1))
            st(t2[0], arr1); st(t2[1], arr2)
        if parity == 0:
            comb(pa[0], pb[0], 0, 4); comb(pa[8], pb[8], 1, 5)
        for r_ in rs:
            comb(pa[r_], pb[r_], r_ * 8, r_ * 8 + 4); comb(qa[r_], qb[r_], r_ * 8 + 1, r_ * 8 + 5)
        a.lines = var[(3, parity, 1)] = []
        if parity == 0:
            st(pa[0], 0); st(pb[0], 1); st(pa[8], 4); st(pb[8], 5)
        for r_ in rs:
            a("v_pk_add_f32 %s, %s, %s%s" % (v(t2[0], 2), v(pa[r_], 2), v(qb[r_], 2), NEG1))
            a("v_pk_add_f32 %s, %s, %s" % (v(t2[1], 2), v(qa[r_], 2), v(pb[r_], 2)))
            st(t2[0], r_ * 8); st(t2[1], r_ * 8 + 1)
            a("v_pk_add_f32 %s, %s, %s" % (v(t2[0], 2), v(pa[r_], 2), v(qb[r_], 2)))
            a("v_pk_add_f32 %s, %s, %s%s" % (v(t2[1], 2), v(qa[r_], 2), v(pb[r_], 2), NEG1))
            st(t2[0], r_ * 8 + 4); st(t2[1], r_ * 8 + 5)

    def split(lines):
        idx = [i for i, x in enumerate(lines) if "buffer_store" in x]
        assert len(idx) == 16
        return lines[:idx[7] + 1], lines[idx[7] + 1:]

    def emit(cases):
        done = a0.newlabel("dd")
        labs = [a0.newlabel("dc") for _ in cases]
        uniq = []
        for l_, c in enumerate(cases):
            if c not in uniq:
                uniq.append(c)
        if len(uniq) == 2:
            a0("s_bitcmp1_b32 %s, 0" % s(sWAVE))
            a0("s_cbranch_scc1 %s" % labs[1])
            a0.lines += cases[0]; a0("s_branch %s" % done)
            a0.label(labs[1]); a0.lines += cases[1]
        else:
            for l_ in range(1, 4):
                a0("s_cmp_eq_u32 %s, %d" % (s(sWAVE), l_))
                a0("s_cbranch_scc1 %s" % labs[l_])
            for l_ in range(4):
                if l_:
                    a0.label(labs[l_])
                a0.lines += cases[l_]
                if l_ < 3:
                    a0("s_branch %s" % done)
        a0.label(done)

    def piece(n):
        if n == 0:
            a0.lines += head
        elif n == 1:
            emit([var[(1, l_ & 1)] + var[(2, l_ & 1)] for l_ in range(4)])
        else:
            emit([var[(3, l_ & 1, l_ >> 1)] for l_ in range(4)])
    return piece


def rowimg_frag_addr(a, dst0, dst1, rowbase_sgpr):
    a("v_and_b32 %s, 15, v3" % v(dst0))
    a("v_lshlrev_b32 %s, 7, %s" % (v(dst0), v(dst0)))
    a("v_lshrrev_b32 %s, 4, v3" % v(dst1))
    a("v_bfe_u32 v2, v3, 1, 3")
    a("v_xor_b32 %s, %s, v2" % (v(dst1), v(dst1)))
    a("v_lshl_add_u32 %s, %s, 4, %s" % (v(dst0), v(dst1), v(dst0)))
    a("v_add_u32 %s, %s, %s" % (v(dst0), s(rowbase_sgpr), v(dst0)))
    a("v_xor_b32 %s, 64, %s" % (v(dst1), v(dst0)))


def silu_tail(a, regs, tmp):
    for t in tmp:
        a("v_exp_f32 %s, %s" % (v(t), v(t)))
        a("v_exp_f32 %s, %s" % (v(t + 1), v(t + 1)))
    for t in tmp:
        a("v_pk_add_f32 %s, %s, 1.0 op_sel_hi:[1,0]" % (v(t, 2), v(t, 2)))
    for t in tmp:
        a("v_rcp_f32 %s, %s" % (v(t), v(t)))
        a("v_rcp_f32 %s, %s" % (v(t + 1), v(t + 1)))
    for r_, t in zip(regs, tmp):
        a("v_pk_mul_f32 %s, %s, %s" % (v(r_, 2), v(r_, 2), v(t, 2)))


def silu_pk(a, regs, tmp):
    for r_, t in zip(regs, tmp):
        a("v_pk_mul_f32 %s, %s, %s" % (v(t, 2), v(r_, 2), s(sNL2E, 2)))
    silu_tail(a, regs, tmp)


ACC1 = 128
vM0, vM1, vNa, vNb, vNc = 4, 5, 6, 7, 8
cM0, cM1, cNa, cNb, cNc = 9, 10, 11, 12, 13
vZ0, vZ1 = 14, 15


def compute_setup(a):
    a("s_lshr_b32 %s, %s, 1" % (s(sWM), s(sWAVE)))
    a("s_and_b32 %s, %s, 1" % (s(sWN), s(sWAVE)))
    a("s_lshl_b32 %s, s2, 15" % s(T0))
    a("s_lshl_b32 %s, %s, 13" % (s(T1), s(sWAVE)))
    a("s_add_u32 %s, %s, %s" % (s(T0), s(T0), s(T1)))
    a("s_add_u32 %s, %s, %s" % (s(T0), s(T0), hx(EX_OFF)))
    a("v_lshlrev_b32 v24, 4, v3")
    a("v_add_u32 v24, %s, v24" % s(T0))
    a("v_add_u32 v25, 4096, v24")
    a("s_lshl_b32 %s, %s, 13" % (s(T0), s(sWM)))
    rowimg_frag_addr(a, vM0, vM1, T0)
    a("s_lshl_b32 %s, %s, 13" % (s(T0), s(sWN)))
    a("s_add_u32 %s, %s, 16384" % (s(T0), s(T0)))
    rowimg_frag_addr(a, vZ0, vZ1, T0)
    a("v_lshrrev_b32 v18, 4, v3")
    a("v_bfe_u32 v17, v3, 2, 2")
    a("v_lshl_add_u32 v17, v18, 3, v17")
    a("v_mul_u32_u24 v17, 448, v17")
    a("v_and_b32 v19, 3, v3")
    a("v_lshl_add_u32 v17, v19, 3, v17")
    a("v_and_b32 v19, 1, v18")
    a("v_lshlrev_b32 v19, 5, v19")
    a("s_lshl_b32 %s, %s, 6" % (s(T0), s(sWN)))
    a("s_add_u32 %s, %s, 16384" % (s(T0), s(T0)))
    a("v_add_u32 v20, %s, v17" % s(T0))
    a("v_add_u32 %s, v20, v19" % v(vNa))
    a("v_sub_u32 %s, v20, v19" % v(vNb))
    a("s_lshl_b32 %s, %s, 5" % (s(T0), s(sWN)))
    a("v_xor_b32 v20, %s, v19" % s(T0))
    a("v_add_u32 v20, v20, v17")
    a("v_add_u32 %s, %d, v20" % (v(vNc), 16384 + 384))
    a("v_and_b32 v21, 1, v18")
    a("v_lshlrev_b32 v21, 5, v21")
    a("v_lshrrev_b32 v19, 1, v18")
    a("v_lshl_add_u32 v21, v19, 4, v21")
    a("s_lshl_b32 %s, %s, 4" % (s(T0), s(sRB)))
    a("s_add_u32 %s, %s, %s" % (s(T0), s(T0), s(sCB)))
    a("s_mul_i32 %s, %s, 49152" % (s(T1), s(T0)))
    a("s_lshl_b32 %s, %s, 13" % (s(T2), s(sWN)))
    a("s_add_u32 %s, %s, %s" % (s(T1), s(T1), s(T2)))
    a("s_lshl_b32 %s, %s, 12" % (s(T2), s(sWM)))
    a("s_add_u32 %s, %s, %s" % (s(T1), s(T1), s(T2)))
    a("s_add_u32 %s, %s, %s" % (s(T1), s(T1), hx(HR_OFF)))
    a("v_and_b32 v22, 15, v3")
    a("v_lshl_add_u32 v17, v22, 6, v21")
    a("v_add_u32 v17, %s, v17" % s(T1))
    a("s_lshl_b32 %s, %s, 13" % (s(T1), s(T0)))
    a("s_lshl_b32 %s, %s, 12" % (s(T2), s(sWN)))
    a("s_add_u32 %s, %s, %s" % (s(T1), s(T1), s(T2)))
    a("s_lshl_b32 %s, %s, 11" % (s(T2), s(sWM)))
    a("s_add_u32 %s, %s, %s" % (s(T1), s(T1), s(T2)))
    a("s_add_u32 %s, %s, %s" % (s(T1), s(T1), hx(HL_OFF)))
    a("v_and_b32 v20, 1, v18")
    a("v_lshl_add_u32 v20, v20, 4, v22")
    a("v_lshlrev_b32 v20, 5, v20")
    a("v_lshl_add_u32 v20, v19, 4, v20")
    a("v_add_u32 v20, %s, v20" % s(T1))
    a("s_lshl_b32 %s, %s, 7" % (s(T1), s(sWN)))
    a("s_add_u32 %s, %s, %d" % (s(T1), s(T1), CSB))
    a("v_lshlrev_b32 v26, 4, v18")
    a("v_add_u32 v26, %s, v26" % s(T1))
    a("s_lshl_b32 %s, %s, 6" % (s(T1), s(sWN)))
    a("s_add_u32 %s, %s, %d" % (s(T1), s(T1), CSB + 768))
    a("v_lshlrev_b32 v27, 4, v18")
    a("v_add_u32 v27, %s, v27" % s(T1))
    a("s_lshl_b32 %s, %s, 9" % (s(T1), s(sWM)))
    a("s_add_u32 %s, %s, %d" % (s(T1), s(T1), STB))
    a("v_lshlrev_b32 v28, 3, v22")
    a("v_add_u32 v28, %s, v28" % s(T1))
    for i in range(112):
        a("v_mov_b32 %s, 0" % v(ACC1 + i))
    a("s_mov_b32 %s, 0" % s(sSLOT))


def compute_g1_s1(a):
    ACC = ACC1
    FR = [32, 76]
    cZ0, cZ1 = cNa, cNb

    def set_addr(lst):
        return ["v_add_u32 %s, %s, %s" % (v(c), s(sSLOT), v(b)) for c, b in lst]

    def next_slot():
        return ["s_add_u32 s14, s14, %d" % G1SLOT, "s_cmp_eq_u32 s14, %d" % (G1SLOT * 3), "s_cselect_b32 s14, 0, s14"]

    G1A = [(cM0, vM0), (cM1, vM1), (cNa, vNa), (cNb, vNb), (cNc, vNc)]

    def s1_addr(k):
        return ["v_add_u32 %s, %s, %s" % (v(c), hx(S1SLOTS[k]), v(b)) for c, b in
                [(cM0, vM0), (cM1, vM1), (cZ0, vZ0), (cZ1, vZ1)]]

    def g1_reads(fs, ks):
        r = []
        for nt in range(7):
            ad = cNc if nt == 6 else (cNb if nt & 1 else cNa)
            off = 0 if nt == 6 else 128 * (nt >> 1) + 32 * (nt & 1)
            for h in range(2):
                r.append("ds_read_b64_tr_b16 %s, %s offset:%d" % (
                    v(FR[fs] + 16 + 4 * nt + 2 * h, 2), v(ad), ks * 14336 + h * 1792 + off))
            if nt < 4:
                r.append("ds_read_b128 %s, %s offset:%d" % (v(FR[fs] + 4 * nt, 4), v(cM1 if ks else cM0), nt * 2048))
        return r

    def g1_mfmas(fs):
        return [mfma(ACC + 4 * (nt * 4 + mt), FR[fs] + 16 + 4 * nt, FR[fs] + 4 * mt) for nt in range(7) for mt in range(4)]

    def g1_iter(extra_b=(), pre_bar=(), tail=(), flag=None):
        interleave(a, g1_mfmas(0), g1_reads(1, 1) + next_slot() + set_addr(G1A))
        a("s_waitcnt lgkmcnt(0)")
        a.all(pre_bar)
        fine(a)
        a("s_barrier")
        fine(a)
        interleave(a, g1_mfmas(1), g1_reads(0, 0) + list(extra_b))
        a("s_waitcnt lgkmcnt(0)")
        a.all(tail)

    def g1_loop(n):
        a("s_mov_b32 %s, 0" % s(sCNT))
        loop = a.newlabel("g1_loop")
        a.raw(".p2align 6")
        a.label(loop)
        g1_iter(["s_add_u32 s15, s15, 1", "s_cmp_lt_u32 s15, %d" % n], tail=["s_cbranch_scc1 %s" % loop])

    if OPT.get("sent", "none") == "pre":
        for i in range(4):
            a("v_mov_b32 %s, -1" % v(240 + i))
        for i in range(8):
            a("buffer_store_dwordx4 v[240:243], %s, %s, 0 offen offset:%d%s" % ("v25" if i >= 4 else "v24", s(WS, 4), (i & 3) * 1024, SC1))
    a.all(set_addr(G1A))
    mark(a, 3)
    a("s_barrier")
    mark(a, 4)
    a.all(g1_reads(0, 0))
    a("s_waitcnt lgkmcnt(0)")
    if STAMP:
        g1_loop(3)
        mark(a, 15)
        g1_loop(FLAGK - 3)
    else:
        g1_loop(FLAGK)
    g1_iter(pre_bar=["s_waitcnt vmcnt(0)"], flag="s")
    if STAMP:
        mark(a, 2)
        g1_loop(3)
        mark(a, 1)
        g1_loop(14 - FLAGK - 3)
    else:
        g1_loop(14 - FLAGK)
    interleave(a, g1_mfmas(0), g1_reads(1, 1) + s1_addr(0))
    a("s_waitcnt lgkmcnt(0)")
    a("s_barrier")
    CSR, STR = 32, 60
    rd = ["ds_read_b128 %s, v26 offset:%d" % (v(CSR + 4 * nt, 4), 256 * (nt >> 1) + 64 * (nt & 1)) for nt in range(6)]
    rd.append("ds_read_b128 %s, v27" % v(CSR + 24, 4))
    rd += ["ds_read_b64 %s, v28 offset:%d" % (v(STR + 2 * mt, 2), 128 * mt) for mt in range(4)]
    interleave(a, g1_mfmas(1), rd)
    mark(a, 5)
    a("s_waitcnt lgkmcnt(0)")
    RL = 68
    for mt in range(4):
        a("v_rcp_f32 %s, %s" % (v(RL + 2 * mt + 1), v(STR + 2 * mt + 1)))
        a("v_mul_f32 %s, %s, %s" % (v(RL + 2 * mt), s(sNL2E), v(STR + 2 * mt + 1)))
    TMP = 76
    PK = [88, 92, 96, 100, 104, 108, 112, 116]
    for pr in range(3):
        a("s_mov_b32 %s, %d" % (s(T0 + pr), pr * 16384))
    pki = 0
    groups = [[(mt, 2 * pr), (mt, 2 * pr + 1)] for mt in range(4) for pr in range(3)]
    groups.insert(6, [(0, 6), (1, 6)]); groups.append([(2, 6), (3, 6)])
    for gr in groups:
        regs = []; cs = []; mts = []
        for mt, nt in gr:
            b = ACC + 4 * (nt * 4 + mt)
            regs += [b, b + 2]; cs += [CSR + 4 * nt, CSR + 4 * nt + 2]; mts += [mt, mt]
        tmp = [TMP + 2 * i for i in range(4)]
        for r_, c_, mt in zip(regs, cs, mts):
            a("v_pk_fma_f32 %s, %s, %s, %s op_sel_hi:[1,0,1] neg_lo:[0,1,0] neg_hi:[0,1,0]" % (v(r_, 2), v(c_, 2), v(STR + 2 * mt, 2), v(r_, 2)))
        for r_, t, mt in zip(regs, tmp, mts):
            a("v_pk_mul_f32 %s, %s, %s op_sel_hi:[1,0]" % (v(t, 2), v(r_, 2), v(RL + 2 * mt, 2)))
        for t_ in tmp:
            a("v_exp_f32 %s, %s" % (v(t_), v(t_)))
            a("v_exp_f32 %s, %s" % (v(t_ + 1), v(t_ + 1)))
        for t_, mt in zip(tmp, mts):
            a("v_pk_fma_f32 %s, %s, %s, %s op_sel:[0,1,1]" % (v(t_, 2), v(t_, 2), v(RL + 2 * mt, 2), v(RL + 2 * mt, 2)))
        for t_ in tmp:
            a("v_rcp_f32 %s, %s" % (v(t_), v(t_)))
            a("v_rcp_f32 %s, %s" % (v(t_ + 1), v(t_ + 1)))
        for r_, t_ in zip(regs, tmp):
            a("v_pk_mul_f32 %s, %s, %s" % (v(r_, 2), v(r_, 2), v(t_, 2)))
        P = PK[pki % len(PK)]; pki += 1
        for i, r_ in enumerate(regs):
            a("v_cvt_pk_bf16_f32 %s, %s, %s" % (v(P + i), v(r_), v(r_ + 1)))
        a("s_nop 1")
        a("v_permlane16_swap_b32 %s, %s" % (v(P), v(P + 2)))
        a("v_permlane16_swap_b32 %s, %s" % (v(P + 1), v(P + 3)))
        mt, nt = gr[0]
        if nt < 6:
            a("buffer_store_dwordx4 %s, v17, %s, %s offen offset:%d%s" % (v(P, 4), s(WS, 4), s(T0 + nt // 2), mt * 1024, SC1))
        else:
            a("buffer_store_dwordx4 %s, v20, %s, 0 offen offset:%d%s" % (v(P, 4), s(WS, 4), (mt // 2) * 1024, SC1))
    mark(a, 6)
    fine_dump(a, 0)

    def s1_reads(fs, ks):
        r = []
        for t in range(4):
            r.append("ds_read_b128 %s, %s offset:%d" % (v(FR[fs] + 4 * t, 4), v(cM1 if ks else cM0), t * 2048))
            r.append("ds_read_b128 %s, %s offset:%d" % (v(FR[fs] + 16 + 4 * t, 4), v(cZ1 if ks else cZ0), t * 2048))
        return r

    def s1_mfmas(fs, first):
        return [mfma(ACC + 4 * (mt * 4 + nt), FR[fs] + 4 * mt, FR[fs] + 16 + 4 * nt, "0" if first else None)
                for mt in range(4) for nt in range(4)]

    HF = int(OPT.get("hf", "-1"))
    if HF == -1:
        a("s_waitcnt vmcnt(0)")
    a("s_barrier")
    a.all(s1_reads(0, 0))
    a("s_lshr_b32 %s, %s, 3" % (s(T0), s(sTAU)))
    a("s_and_b32 %s, %s, 3" % (s(T1), s(T0)))
    a("s_cmp_eq_u32 %s, 3" % s(T0))
    a("s_cselect_b32 %s, 1, %s" % (s(T1), s(T1)))
    a("s_lshr_b32 %s, %s, 2" % (s(T2), s(T0)))
    a("s_cmp_eq_u32 %s, 3" % s(T0))
    a("s_cselect_b32 %s, 8, %s" % (s(T2), s(T2)))
    a("s_lshl_b32 %s, %s, 19" % (s(T2), s(T2)))
    a("s_bfe_u32 %s, %s, 0x20001" % (s(T3), s(sTAU)))
    a("s_lshl_b32 %s, %s, 6" % (s(T3), s(T3)))
    a("s_lshl_b32 %s, %s, 5" % (s(T4), s(sWN)))
    a("s_add_u32 %s, %s, %s" % (s(T3), s(T3), s(T4)))
    a("v_and_b32 v17, 15, v3")
    a("v_add_u32 v17, %s, v17" % s(T3))
    a("v_sub_u32 v22, %d, v17" % (3 * 256 + 239))
    a("s_lshl_b32 %s, %s, 8" % (s(T1), s(T1)))
    a("v_add_u32 v17, %s, v17" % s(T1))
    a("s_and_b32 %s, %s, 1" % (s(T3), s(sTAU)))
    a("s_lshl_b32 %s, %s, 1" % (s(T3), s(T3)))
    a("s_add_u32 %s, %s, %s" % (s(T3), s(T3), s(sWM)))
    a("s_lshl_b32 %s, %s, 16" % (s(T3), s(T3)))
    a("s_add_u32 %s, %s, %s" % (s(T3), s(T3), hx(ZT_OFF)))
    a("v_add_u32 v23, %s, v21" % s(T3))
    a("v_lshl_add_u32 v17, v17, 6, v23")
    a("v_lshl_add_u32 v22, v22, 6, v23")
    a("s_waitcnt lgkmcnt(0)")
    for k in range(4):
        interleave(a, s1_mfmas(0, k == 0), s1_reads(1, 1) + (s1_addr(k + 1) if k < 3 else []))
        a("s_waitcnt lgkmcnt(0)")
        interleave(a, s1_mfmas(1, False), s1_reads(0, 0) if k < 3 else [])
        if k < 3:
            a("s_waitcnt lgkmcnt(0)")
        if k == 1:
            a("s_barrier")
        if k == HF:
            a("s_waitcnt vmcnt(0)")
            a("s_barrier")
            flag_store(a, "h")
    mark(a, 7)
    a("s_barrier")
    mark(a, 8)
    a("s_nop 7")
    TMP = 32
    PK = [56, 60, 64, 68, 72, 76, 80, 84]
    typeB = a.newlabel("s1_typeB"); done = a.newlabel("s1_done")
    a("s_and_b32 %s, %s, 29" % (s(T3), s(T0)))
    a("s_cmp_eq_u32 %s, 0" % s(T3))
    a("s_cbranch_scc1 %s" % typeB)
    tile = lambda m, n: ACC + 4 * (m * 4 + n)
    pki = 0
    for n in range(2):
        for uv in range(2):
            P = PK[pki]; pki += 1
            for m in range(2):
                for h in range(2):
                    if uv == 0:
                        a("v_pk_add_f32 %s, %s, %s" % (v(TMP + 2 * h, 2), v(tile(m, n) + 2 * h, 2), v(tile(m + 2, n + 2) + 2 * h, 2)))
                    else:
                        a("v_pk_add_f32 %s, %s, %s%s" % (v(TMP + 2 * h, 2), v(tile(m + 2, n) + 2 * h, 2), v(tile(m, n + 2) + 2 * h, 2), NEG1))
                for h in range(2):
                    a("v_cvt_pk_bf16_f32 %s, %s, %s" % (v(P + 2 * m + h), v(TMP + 2 * h), v(TMP + 2 * h + 1)))
            a("s_add_u32 %s, %s, %d" % (s(T3), s(T2), n * 1024 + uv * 262144))
            a("s_nop 0")
            a("v_permlane16_swap_b32 %s, %s" % (v(P), v(P + 2)))
            a("v_permlane16_swap_b32 %s, %s" % (v(P + 1), v(P + 3)))
            a("buffer_store_dwordx4 %s, v17, %s, %s offen%s" % (v(P, 4), s(WS, 4), s(T3), SC1))
    a("s_cmp_ge_u32 %s, 4" % s(T0))
    a("s_cbranch_scc1 %s" % done)
    a("s_mov_b32 %s, 0x80008000" % s(T4))
    pki = 0
    for n in range(2):
        for uv in range(2):
            P = PK[pki]; pki += 1
            a("s_add_u32 %s, %s, %d" % (s(T3), s(T2), (1 - n) * 1024 + uv * 262144))
            if uv:
                Q = PK[4 + n]
                for i in range(4):
                    a("v_xor_b32 %s, %s, %s" % (v(Q + i), s(T4), v(P + i)))
                P = Q
            a("buffer_store_dwordx4 %s, v22, %s, %s offen%s" % (v(P, 4), s(WS, 4), s(T3), SC1))
    a("s_branch %s" % done)
    a.label(typeB)
    pki = 0
    for n in range(2):
        for half in range(2):
            for uv in range(2):
                P = PK[pki]; pki += 1
                sg = "-" if uv else ""
                for m in range(2):
                    t = tile(m + 2 * half, n + 2 * uv)
                    for h in range(2):
                        a("v_cvt_pk_bf16_f32 %s, %s%s, %s%s" % (v(P + 2 * m + h), sg, v(t + 2 * h), sg, v(t + 2 * h + 1)))
                a("s_mov_b32 %s, %d" % (s(T3), half * 8 * 524288 + n * 1024 + uv * 262144))
                a("s_nop 0")
                a("v_permlane16_swap_b32 %s, %s" % (v(P), v(P + 2)))
                a("v_permlane16_swap_b32 %s, %s" % (v(P + 1), v(P + 3)))
                a("buffer_store_dwordx4 %s, v17, %s, %s offen%s" % (v(P, 4), s(WS, 4), s(T3), SC1))
    a.label(done)
    mark(a, 9)


def dma(a, ldsoff, vaddr, srd_, soff, coh=False):
    if OPT.get("nodma") == "1" and getattr(a, "skipdma", False):
        return
    a("s_add_u32 m0, %s, %d" % (s(sSLOT), ldsoff))
    a("s_nop 0")
    a("buffer_load_dwordx4 %s, %s, %s offen%s lds" % (v(vaddr), s(srd_, 4), s(soff), OPT.get("cohmod", "_sc1").replace("_", " ") if coh else ""))


LVA, LVB, LVC, LVD = 8, 12, 20, 24
CSD = 128


def g1_issue(a):
    for i in range(4):
        dma(a, i * 4096, LVA + i, XS, sKA)
    for i in range(7):
        dma(a, 16384 + i * 4096, LVB + i, W1, sKB)
    a("s_add_u32 %s, %s, 128" % (s(sKA), s(sKA)))
    a("s_add_u32 %s, %s, %d" % (s(sKB), s(sKB), 64 * 7168))
    a("s_add_u32 s14, s14, %d" % G1SLOT)
    a("s_cmp_eq_u32 s14, %s" % s(sWRAP))
    a("s_cselect_b32 s14, %s, s14" % s(sSL0))


def loader_setup(a):
    a("s_sub_u32 %s, %s, 4" % (s(sL), s(sWAVE)))
    a("s_and_b32 %s, %s, 1" % (s(T0), s(sL)))
    a("s_lshl_b32 %s, %s, 2" % (s(T0), s(T0)))
    a("v_lshrrev_b32 v4, 4, v3")
    a("v_add_u32 v4, %s, v4" % s(T0))
    a("v_and_b32 v5, 7, v3")
    a("v_xor_b32 v4, v4, v5")
    a("v_lshlrev_b32 v4, 4, v4")
    a("v_lshrrev_b32 v5, 3, v3")
    a("s_lshl_b32 %s, %s, 3" % (s(T0), s(sL)))
    a("v_add_u32 v5, %s, v5" % s(T0))
    a("v_lshlrev_b32 v30, 2, v3")
    a("s_lshl_b32 %s, %s, 10" % (s(sSL0), s(sL)))
    a("s_lshl_b32 %s, %s, 11" % (s(T0), s(sRB)))
    a("v_lshl_add_u32 v6, v5, 15, v4")
    a("v_add_u32 v6, %s, v6" % s(T0))
    for i in range(4):
        a("v_add_u32 %s, %s, v6" % (v(LVA + i), hx(i * 32 * 32768)))
    a("s_lshl_b32 %s, %s, 6" % (s(T0), s(sL)))
    a("v_add_u32 v6, %s, v3" % s(T0))
    a("s_mul_i32 %s, %s, 448" % (s(T1), s(sCB)))
    for i in range(7):
        a("v_add_u32 v7, %d, v6" % (256 * i))
        a("v_mul_u32_u24 v28, 2341, v7")
        a("v_lshrrev_b32 v28, 16, v28")
        a("v_mul_u32_u24 v29, 28, v28")
        a("v_sub_u32 v29, v7, v29")
        a("v_bfe_u32 v31, v28, 3, 1")
        a("v_lshlrev_b32 v31, 1, v31")
        a("v_xor_b32 v29, v29, v31")
        a("v_mul_u32_u24 v28, 7168, v28")
        a("v_lshl_add_u32 v28, v29, 4, v28")
        a("v_add_u32 %s, %s, v28" % (v(LVB + i), s(T1)))
    a("s_mov_b32 %s, %s" % (s(sSLOT), s(sSL0)))
    a("s_add_u32 %s, %s, %d" % (s(sWRAP), s(sSL0), G1SLOT * 3))
    a("s_mov_b32 %s, 0" % s(sKA))
    a("s_mov_b32 %s, 0" % s(sKB))
    a("v_and_b32 v6, 31, v3")
    a("v_lshrrev_b32 v7, 5, v3")
    a("v_mul_u32_u24 v7, 7168, v7")
    a("v_lshl_add_u32 v7, v6, 4, v7")
    a("s_xor_b32 %s, %s, %s" % (s(T0), s(sRB), OPT.get("csx", "0")))
    a("s_lshl_b32 %s, %s, 6" % (s(T0), s(T0)))
    a("s_lshl_b32 %s, %s, 4" % (s(T2), s(sL)))
    a("s_add_u32 %s, %s, %s" % (s(T0), s(T0), s(T2)))
    a("s_mul_i32 %s, %s, 7168" % (s(T0), s(T0)))
    a("s_add_u32 %s, %s, %s" % (s(T0), s(T0), s(T1)))
    a("v_add_u32 v7, %s, v7" % s(T0))
    a("v_cmp_gt_u32 vcc, 28, v6")
    a("v_mov_b32 v28, 0x7f000000")
    a("s_nop 0")
    a("v_cndmask_b32 v7, v28, v7, vcc")
    g1_issue(a)
    a("s_barrier")
    for i in range(8):
        a("s_mov_b32 %s, %d" % (s(T0), i * 2 * 7168))
        a("buffer_load_dwordx4 %s, v7, %s, %s offen" % (v(CSD + 4 * i, 4), s(W1, 4), s(T0)))
    for _ in range(int(OPT.get("early", "3")) - 1):
        g1_issue(a)
    pf_addr(a)


def pf_addr(a):
    a("s_lshl_b32 %s, s2, 2" % s(T0))
    a("s_add_u32 %s, %s, %s" % (s(T0), s(T0), s(sL)))
    a("s_mul_i32 %s, %s, 7168" % (s(T1), s(T0)))
    a("v_lshlrev_b32 v124, 4, v3")
    a("v_add_u32 v124, %s, v124" % s(T1))
    a("v_add_u32 v125, 4096, v124")
    a("s_lshr_b32 %s, %s, 1" % (s(T2), s(T0)))
    a("v_lshrrev_b32 v126, 5, v3"); a("v_lshlrev_b32 v126, 11, v126"); a("v_and_b32 v127, 31, v3"); a("v_lshl_add_u32 v126, v127, 4, v126")
    a("s_lshl_b32 %s, %s, 12" % (s(T3), s(T2))); a("v_add_u32 v126, %s, v126" % s(T3))
    a("v_lshrrev_b32 v127, 4, v3"); a("v_lshlrev_b32 v127, 12, v127"); a("v_and_b32 v2, 15, v3"); a("v_lshl_add_u32 v127, v2, 4, v127")
    a("s_lshl_b32 %s, %s, 14" % (s(T3), s(T2))); a("v_add_u32 v127, %s, v127" % s(T3))


def pf_pair(a, vaddr, sre, sim):
    l2 = a.newlabel("pf2"); l3 = a.newlabel("pf3")
    a("s_bitcmp1_b32 %s, 0" % s(sWAVE))
    a("s_cbranch_scc1 %s" % l2)
    a("buffer_load_dwordx4 v[244:247], %s, %s, 0 offen" % (v(vaddr), s(sre, 4)))
    a("s_branch %s" % l3)
    a.label(l2)
    a("buffer_load_dwordx4 v[244:247], %s, %s, 0 offen" % (v(vaddr), s(sim, 4)))
    a.label(l3)


def loader_g1_s1(a):
    AC = CSD + 32
    PFS = OPT.get("pf", "s") == "s"
    PFT = OPT.get("pf", "s").startswith("t")
    PFK = 99 if PFS else int(OPT.get("pf", "99").lstrip("t"))
    EARLY = int(OPT.get("early", "3"))
    q = ["g0"] * 11 + ["csl"] * 8 + [x for i in range(1, EARLY) for x in ["g%d" % i] * 11]

    def issue(st):
        g1_issue(a); q.extend(["g%d" % st] * 11)

    def need(*tags):
        idx = max(i for i, x in enumerate(q) if x in tags)
        n = len(q) - idx - 1
        del q[:idx + 1]
        return n

    def bar(*tags, lg=False):
        n = need(*tags)
        fine(a)
        a("s_waitcnt vmcnt(%d)%s" % (n, " lgkmcnt(0)" if lg else ""))
        fine(a)
        a("s_barrier")

    def prefetch():
        a.c("warm the memory-side cache with this wave's share of w2 and of the C slices")
        if PFT:
            a("v_mul_u32_u24 v2, 48, v3")
            a("v_add_u32 v124, v124, v2")
            a("v_add_u32 v125, v125, v2")
            a("buffer_load_dword v244, v124, %s, 0 offen" % s(W2, 4))
            a("buffer_load_dword v244, v125, %s, 0 offen" % s(W2, 4))
            q.extend(["pf"] * 2)
        else:
            for i in range(7):
                a("buffer_load_dwordx4 v[244:247], %s, %s, 0 offen offset:%d" % ("v125" if i >= 4 else "v124", s(W2, 4), (i & 3) * 1024))
            q.extend(["pf"] * 7)
        pf_pair(a, 127, CR, CI)
        q.append("pf")

    def cs_chunk(rng):
        for i in rng:
            for d in range(4):
                src = CSD + 4 * i + d
                t_ = AC + 2 * d if i == 0 else AC + 8 + 2 * d
                a("v_lshlrev_b32 %s, 16, %s" % (v(t_), v(src)))
                a("v_and_b32 %s, %s, %s" % (v(t_ + 1), s(sHI), v(src)))
            if i:
                for d in range(4):
                    a("v_pk_add_f32 %s, %s, %s" % (v(AC + 2 * d, 2), v(AC + 2 * d, 2), v(AC + 8 + 2 * d, 2)))

    def after0():
        cs_chunk(range(0, 4))

    def after1():
        cs_chunk(range(4, 8))
        a("v_lshrrev_b32 v28, 5, v3")
        a("s_lshl_b32 %s, %s, 1" % (s(T0), s(sL)))
        a("v_add_u32 v28, %s, v28" % s(T0))
        a("v_lshlrev_b32 v28, 10, v28")
        a("v_and_b32 v29, 31, v3")
        a("v_lshl_add_u32 v28, v29, 5, v28")
        a("v_add_u32 v28, %d, v28" % CSP)
        a("ds_write_b128 v28, %s" % v(AC, 4))
        a("ds_write_b128 v28, %s offset:16" % v(AC + 4, 4))
        a("s_waitcnt lgkmcnt(0)")

    def after2():
        a("s_lshl_b32 %s, %s, 8" % (s(T0), s(sL)))
        a("v_add_u32 v19, %s, v30" % s(T0))
        a("v_add_u32 v29, %d, v19" % CSP)
        for i in range(8):
            a("ds_read_b32 %s, v29 offset:%d" % (v(CSD + i), i * 1024))
        a("s_lshl_b32 %s, %s, 14" % (s(T0), s(sCB)))
        a("s_lshl_b32 %s, %s, 10" % (s(T1), s(sRB)))
        a("s_add_u32 %s, %s, %s" % (s(T1), s(T1), s(T0)))
        a("s_add_u32 %s, %s, %s" % (s(T1), s(T1), hx(CS_OFF)))
        tag_ready(a)
        a("v_lshrrev_b32 v31, 3, v3")
        a("v_lshlrev_b32 v31, 7, v31")
        a("v_and_b32 v28, 7, v3")
        a("v_lshl_add_u32 v31, v28, 2, v31")
        a("v_add_u32 v31, %s, v31" % hx(SF_OFF))
        a("s_waitcnt lgkmcnt(0)")
        for st in (4, 2, 1):
            for i in range(st):
                a("v_add_f32 %s, %s, %s" % (v(CSD + i), v(CSD + i), v(CSD + i + st)))
        a("buffer_store_dword %s, v19, %s, %s offen%s" % (v(CSD), s(WS, 4), s(T1), SC1))
        q.append("cs_store")

    def after3():
        a("s_lshr_b32 %s, %s, 3" % (s(T0), s(sTAU)))
        a("s_lshl_b32 %s, %s, 17" % (s(T1), s(T0)))
        a("s_and_b32 %s, %s, 1" % (s(T2), s(sTAU)))
        a("s_lshl_b32 %s, %s, 15" % (s(T3), s(T2)))
        a("s_add_u32 %s, %s, %s" % (s(T1), s(T1), s(T3)))
        a("s_add_u32 %s, %s, %s" % (s(T1), s(T1), hx(CB_OFF)))
        a("v_lshl_add_u32 v6, v5, 9, v4")
        a("v_add_u32 v6, %s, v6" % s(T1))
        for i in range(4):
            a("v_add_u32 %s, %s, v6" % (v(LVC + i), hx((i & 1) * 65536 + (i >> 1) * 32 * 512)))
        a("s_and_b32 %s, %s, 3" % (s(T1), s(T0)))
        a("s_cmp_eq_u32 %s, 3" % s(T0))
        a("s_cselect_b32 %s, 1, %s" % (s(T1), s(T1)))
        a("s_lshl_b32 %s, %s, 11" % (s(T1), s(T1)))
        a("s_bfe_u32 %s, %s, 0x20001" % (s(T3), s(sTAU)))
        a("s_lshl_b32 %s, %s, 19" % (s(T3), s(T3)))
        a("s_add_u32 %s, %s, %s" % (s(T1), s(T1), s(T3)))
        a("v_lshl_add_u32 v6, v5, 13, v4")
        a("v_add_u32 v6, %s, v6" % s(T1))
        for i in range(4):
            a("v_add_u32 %s, %s, v6" % (v(LVD + i), hx((i >> 1) * 32 * 8192)))
        a("s_lshl_b32 %s, s2, 15" % s(T0))
        a("s_lshl_b32 %s, %s, 13" % (s(T1), s(sL)))
        a("s_add_u32 %s, %s, %s" % (s(T0), s(T0), s(T1)))
        a("s_add_u32 %s, %s, %s" % (s(T0), s(T0), hx(EX_OFF)))
        a("v_lshlrev_b32 v6, 4, v3")
        a("v_add_u32 v6, %s, v6" % s(T0))
        a("v_add_u32 v7, 4096, v6")
        for i in range(4):
            a("v_mov_b32 %s, -1" % v(240 + i))

    def sentinel(i):
        a("buffer_store_dwordx4 v[240:243], %s, %s, 0 offen offset:%d%s" % ("v7" if i >= 4 else "v6", s(WS, 4), (i & 3) * 1024, SC1))
        q.append("sent")

    def after9():
        poll_issue(a, CSD + 20, 31, 4); q.extend(["poll"] * 4)

    def after11():
        a.c("fetch 4 of the 16 partial column sums of this column block per wave, and this class's row stats")
        a("s_lshl_b32 %s, %s, 14" % (s(T0), s(sCB)))
        a("s_lshl_b32 %s, %s, 12" % (s(T1), s(sL)))
        a("s_add_u32 %s, %s, %s" % (s(T0), s(T0), s(T1)))
        a("s_add_u32 %s, %s, %s" % (s(T0), s(T0), hx(CS_OFF)))
        a("v_lshlrev_b32 v28, 4, v3")
        for i in range(4):
            a("buffer_load_dwordx4 %s, v28, %s, %s offen offset:%d%s" % (v(CSD + 4 * i, 4), s(WS, 4), s(T0), i * 1024, SC1))
        a("s_lshl_b32 %s, %s, 10" % (s(T0), s(sRB)))
        a("s_add_u32 %s, %s, %s" % (s(T0), s(T0), hx(STAT_OFF)))
        a("buffer_load_dword %s, v19, %s, %s offen%s" % (v(CSD + 16), s(WS, 4), s(T0), SC1))
        q.extend(["fetch"] * 5)

    def after13():
        a("s_waitcnt vmcnt(%d)" % need("fetch"))
        for d, x in ((0, 4), (2, 6), (8, 12), (10, 14), (0, 8), (2, 10)):
            a("v_pk_add_f32 %s, %s, %s" % (v(CSD + d, 2), v(CSD + d, 2), v(CSD + x, 2)))
        a("s_lshl_b32 %s, %s, 10" % (s(T0), s(sL)))
        a("s_add_u32 %s, %s, %d" % (s(T0), s(T0), CSP))
        a("v_add_u32 v28, %s, v28" % s(T0))
        a("ds_write_b128 v28, %s" % v(CSD, 4))
        a("v_add_u32 v28, %d, v19" % STB)
        a("ds_write_b32 v28, %s" % v(CSD + 16))
        a("s_waitcnt lgkmcnt(0)")

    def after14():
        a("v_add_u32 v28, %d, v19" % CSP)
        for i in range(4):
            a("ds_read_b32 %s, v28 offset:%d" % (v(CSD + i), i * 1024))
        a("v_add_u32 v28, %d, v19" % CSB)
        a("s_waitcnt lgkmcnt(0)")
        a("v_add_f32 %s, %s, %s" % (v(CSD), v(CSD), v(CSD + 1)))
        a("v_add_f32 %s, %s, %s" % (v(CSD + 2), v(CSD + 2), v(CSD + 3)))
        a("v_add_f32 %s, %s, %s" % (v(CSD), v(CSD), v(CSD + 2)))
        a("ds_write_b32 v28, %s" % v(CSD))

    hooks = {0: after0, 1: after1, 2: after2, 9: after9, 11: after11, 13: after13, 14: after14}
    after3()
    for st in range(EARLY, 3):
        issue(st)
    if OPT.get("cov", "0") == "1":
        a("s_cmp_lt_u32 %s, 8" % s(sRB))
        a("s_mov_b32 %s, %d" % (s(T1), 512 * 7168))
        a("s_cselect_b32 %s, %s, %s" % (s(T1), s(T1), hx(-512 * 7168)))
        a("v_add_u32 v2, %s, v7" % s(T1))
        for i in range(8):
            a("s_mov_b32 %s, %d" % (s(T0), i * 2 * 7168))
            a("buffer_load_dwordx4 v[244:247], v2, %s, %s offen" % (s(W1, 4), s(T0)))
        q.extend(["pf"] * 8)
    pf_pair(a, 126, DR, DI); q.append("pf")
    if PFK == -1:
        prefetch()
    if PFS:
        pf_pair(a, 127, CR, CI); q.append("pf")
        a("s_lshl_b32 %s, s2, 2" % s(T0))
        a("s_add_u32 %s, %s, %s" % (s(T0), s(T0), s(sL)))
        a("s_mul_i32 %s, %s, 7168" % (s(T0), s(T0)))
        a("s_add_u32 s30, %s, %s" % (s(W2), s(T0)))
        a("s_addc_u32 s31, %s, 0" % s(W2 + 1))
    bar("g0")
    for k in range(15):
        tags = ["g%d" % (k + 1)]
        if k == FLAGK:
            tags.append("cs_store")
        if k == 11:
            fine(a)
            a("s_waitcnt vmcnt(%d)" % need("g12", "poll"))
            poll_check(a, CSD + 20, 31, "exec", True, 4)
            fine(a)
            a("s_barrier")
        else:
            bar(*tags)
        if k + 3 <= 15:
            issue(k + 3)
        if k == FLAGK:
            flag_store(a, "s")
        if k in hooks:
            hooks[k]()
        if 4 <= k <= 11 and OPT.get("sent", "none") == "g1":
            sentinel(k - 4)
        if k == 4 and OPT.get("sent", "none") == "g1b":
            for i in range(8):
                sentinel(i)
        if k == PFK:
            prefetch()
        if PFS and 3 <= k <= 11:
            for i in range(13 * (k - 3), min(112, 13 * (k - 2))):
                a("s_load_dword s29, s[30:31], %d" % (i * 64))

    def issue_s1(k):
        a("s_add_u32 %s, %s, %d" % (s(sSLOT), s(sSL0), S1SLOTS[k]))
        a("s_mov_b32 %s, %d" % (s(sKA), k * 128))
        for i in range(4):
            dma(a, i * 4096, LVC + i, WS, sKA, coh=True)
        for i in range(4):
            dma(a, 16384 + i * 4096, LVD + i, DI if i & 1 else DR, sKA)

    issue_s1(2)
    fine_dump(a, 0)
    a("s_waitcnt lgkmcnt(0)")
    a("s_barrier")
    for k in (0, 1, 3):
        issue_s1(k)
    g2_loader_setup(a)
    a("s_mul_i32 %s, %s, %d" % (s(T0), s(sKH), 1792 * 2048))
    a("s_lshl_b32 %s, %s, 7" % (s(T1), s(sNB8)))
    a("s_add_u32 %s, %s, %s" % (s(T0), s(T0), s(T1)))
    a("s_and_b32 %s, %s, 7" % (s(T1), s(sLOC)))
    a("s_cmp_ge_u32 %s, 4" % s(T1))
    a("s_cselect_b32 %s, %d, 0" % (s(sADJ), 192 * 2048))
    a("s_lshl_b32 %s, %s, 2" % (s(T1), s(T1)))
    a("s_add_u32 %s, %s, %s" % (s(T1), s(T1), s(sL)))
    a("s_lshl_b32 %s, %s, 12" % (s(T1), s(T1)))
    a("s_add_u32 %s, %s, %s" % (s(T0), s(T0), s(T1)))
    a("s_add_u32 s30, %s, %s" % (s(W2), s(T0)))
    a("s_addc_u32 s31, %s, 0" % s(W2 + 1))
    a("s_and_b32 %s, %s, 4" % (s(sP3), s(sCB8)))
    a("s_and_b32 %s, %s, 4" % (s(sP3), s(sCB8)))
    for st in range(NRB()):
        g2_koff(a, st, False, True)
        for i in range(4):
            a("buffer_load_dwordx4 %s, %s, %s, %s offen" % (v(RBB + 16 * st + 4 * i, 4), v(GVB + i), s(W2, 4), s(sKB)))
    a("v_lshlrev_b32 %s, 4, v3" % v(GWA))
    a("v_add_u32 %s, %s, %s" % (v(GWA), s(sSL0), v(GWA)))
    a("s_waitcnt vmcnt(%d)" % (4 * NRB()))
    a("s_barrier")
    flag_store(a, "h")


RBB = 64
FLAGK = 5
SYNC = 159744
GWA = 60


def NRB():
    return int(OPT.get("nrb", "0"))


PF_G1 = 28
sADJ = 95


def w2_prefetch(a, halves):
    last = None
    for hs in halves:
        st, r = divmod(hs, 2)
        if st != last:
            if st < NREG:
                j, p_ = divmod(st, 3)
                a("s_xor_b32 s96, %s, %d" % (s(sP3), j))
                a("s_mul_i32 s96, s96, %d" % (224 * 2048))
                if p_:
                    a("s_add_u32 s96, s96, %d" % (p_ * 64 * 2048))
            else:
                a("s_add_u32 s96, %s, %d" % (s(sADJ), (448 * (st - NREG) + 192) * 2048))
            last = st
        for c in (0, 64, 128 * US(), 128 * US() + 64):
            a("s_load_dword s29, s[30:31], s96 offset:%d" % (r * 2048 + c))


def g2_koff(a, st, want_a, want_b):
    j, p_ = divmod(st, 3)
    a("s_xor_b32 %s, %s, %d" % (s(T0), s(sP3), j))
    if want_a:
        a("s_mul_i32 %s, %s, 49152" % (s(sKA), s(T0)))
        if p_:
            a("s_add_u32 %s, %s, %d" % (s(sKA), s(sKA), p_ * 16384))
    if want_b:
        a("s_mul_i32 %s, %s, %d" % (s(sKB), s(T0), 224 * 2048))
        if p_:
            a("s_add_u32 %s, %s, %d" % (s(sKB), s(sKB), p_ * 64 * 2048))


NJ = 28
NREG = 24
NSOLO = 4


def compute_g2(a):
    ACC = 128; ACY = 192; XR = 224; RX = 96
    FR = [32, 64]
    gN0, gZ0, gZ1 = 6, 7, 8
    cN = 11
    a("v_and_b32 v17, 15, v3")
    a("v_lshlrev_b32 v17, 15, v17")
    a("s_lshl_b32 %s, %s, 21" % (s(T0), s(sWM)))
    a("s_lshl_b32 %s, %s, 11" % (s(T1), s(sCLS)))
    a("s_add_u32 %s, %s, %s" % (s(T0), s(T0), s(T1)))
    a("s_lshl_b32 %s, %s, 7" % (s(T1), s(sNB8)))
    a("s_add_u32 %s, %s, %s" % (s(T0), s(T0), s(T1)))
    a("s_mul_i32 %s, %s, %d" % (s(T1), s(sKH), 128 * US()))
    a("s_add_u32 %s, %s, %s" % (s(T0), s(T0), s(T1)))
    a("s_lshl_b32 %s, %s, 6" % (s(T1), s(sWN)))
    a("s_add_u32 %s, %s, %s" % (s(T0), s(T0), s(T1)))
    a("v_add_u32 v17, %s, v17" % s(T0))
    a("v_lshl_add_u32 v19, v18, 3, v17")
    for mt in range(4):
        a("s_mov_b32 %s, %d" % (s(T3 + mt), mt * 16 * 16 * 2048))
    a("v_add_u32 v17, v17, v21")
    a("s_lshl_b32 %s, %s, 12" % (s(T0), s(sWN)))
    a("s_add_u32 %s, %s, 16384" % (s(T0), s(T0)))
    rowimg_frag_addr(a, gZ0, gZ1, T0)
    a("v_bfe_u32 v20, v3, 2, 2")
    a("v_lshl_add_u32 v23, v18, 3, v20")
    a("v_lshlrev_b32 v23, 8, v23")
    a("v_and_b32 v22, 3, v3")
    a("v_lshl_add_u32 v23, v22, 3, v23")
    a("v_and_b32 v22, 1, v18")
    a("v_lshl_or_b32 v20, v22, 2, v20")
    a("s_lshl_b32 %s, %s, 1" % (s(T0), s(sWN)))
    a("s_lshl_b32 %s, %s, 2" % (s(T1), s(sKH)))
    a("s_add_u32 %s, %s, %s" % (s(T0), s(T0), s(T1)))
    a("v_xor_b32 v20, %s, v20" % s(T0))
    a("v_lshl_add_u32 v23, v20, 5, v23")
    a("v_add_u32 %s, 16384, v23" % v(gN0))
    a("v_mov_b32 v28, 0xff")
    a("v_mov_b32 v31, %s" % s(sTAG))
    a("v_xor_b32 v15, 0x20000, v24")
    a("v_xor_b32 v16, 0x20000, v25")
    for i in range(96):
        a("v_mov_b32 %s, 0" % v(ACC + i))
    a("s_mov_b32 %s, %d" % (s(sSLOT), 4 * G2SLOT))

    def set_addr(joint):
        r = ["v_add_u32 %s, s14, %s" % (v(cM0), v(vM0)), "v_add_u32 %s, s14, %s" % (v(cM1), v(vM1))]
        if joint:
            r.append("v_add_u32 %s, s14, %s" % (v(cN), v(gN0)))
            for nt, x in ((1, 32), (2, 128), (3, 160)):
                r.append("v_xor_b32 %s, %d, %s" % (v(cN + nt), x, v(cN)))
        else:
            r += ["v_add_u32 %s, s14, %s" % (v(cN), v(gZ0)), "v_add_u32 %s, s14, %s" % (v(cN + 1), v(gZ1))]
        return r

    def next_slot():
        return ["s_add_u32 s14, s14, %d" % G2SLOT, "s_cmp_eq_u32 s14, %d" % (G2SLOT * 5), "s_cselect_b32 s14, 0, s14"]

    def reads(fs, ks, joint):
        r = []
        for t in range(4):
            if joint:
                for h in range(2):
                    r.append("ds_read_b64_tr_b16 %s, %s offset:%d" % (v(FR[fs] + 16 + 4 * t + 2 * h, 2), v(cN + t), ks * 8192 + h * 1024))
            elif t < 2:
                r.append("ds_read_b128 %s, %s offset:%d" % (v(FR[fs] + 16 + 4 * t, 4), v(cN + ks), t * 2048))
            r.append("ds_read_b128 %s, %s offset:%d" % (v(FR[fs] + 4 * t, 4), v(cM1 if ks else cM0), t * 2048))
        return r

    ot = lambda mt, nt: ACC + 4 * (nt * 4 + mt)

    def jm(fs, order=(0, 1, 2, 3)):
        return [mfma(ot(mt, nt), FR[fs] + 16 + 4 * nt, FR[fs] + 4 * mt) for nt in order for mt in range(4)]

    def sm(fs):
        return [mfma(ACY + 4 * (nt * 4 + mt), FR[fs] + 16 + 4 * nt, FR[fs] + 4 * mt) for nt in range(2) for mt in range(4)]

    a.all(set_addr(True))
    a("s_barrier")
    mark(a, 10)
    a.all(reads(0, 0, True))
    a("s_mov_b32 %s, 0" % s(sCNT))
    a("s_waitcnt lgkmcnt(0)")

    def joint_iter(nxt_joint, extra=(), pre_bar=(), flag=None, bar=True):
        nr = OPT.get("noread") == "1"
        interleave(a, jm(0), ([] if nr else reads(1, 1, True)) + next_slot() + set_addr(nxt_joint), per=int(OPT.get("g2per", "2")))
        a("s_waitcnt lgkmcnt(0)")
        a.all(pre_bar)
        fine(a)
        if bar:
            a("s_barrier")
        fine(a)
        interleave(a, jm(1), ([] if nr else reads(0, 0, True)) + list(extra), per=1)
        a("s_waitcnt lgkmcnt(0)")

    ZK = int(OPT.get("zk", "6"))

    def g2_loop(n):
        a("s_mov_b32 %s, 0" % s(sCNT))
        loop = a.newlabel("g2_loop")
        a.raw(".p2align 6")
        a.label(loop)
        joint_iter(True, ["s_add_u32 s15, s15, 1", "s_cmp_lt_u32 s15, %d" % n])
        a("s_cbranch_scc1 %s" % loop)

    g2_loop(ZK)
    joint_iter(True, pre_bar=["s_waitcnt vmcnt(0)"], flag="z")
    mark(a, 26)
    g2_loop(NJ - 2 - ZK)
    interleave(a, jm(0), reads(1, 1, True) + next_slot() + set_addr(False), per=2)
    a("s_waitcnt lgkmcnt(0)")
    a("s_barrier")
    m = jm(1, (2, 3, 0, 1))
    interleave(a, m[:8], reads(0, 0, False))
    for i in range(8):
        a(m[8 + i])
        b = ACC + 32 + 4 * i
        for j in range(4):
            a("v_bfi_b32 %s, v28, v31, %s" % (v(b + j), v(b + j)))
        a("buffer_store_dwordx4 %s, %s, %s, 0 offen offset:%d sc1" % (v(b, 4), "v16" if i >= 4 else "v15", s(WS, 4), (i & 3) * 1024))
    a("s_waitcnt lgkmcnt(0)")
    mark(a, 11)

    def recv_loads():
        return ["buffer_load_dwordx4 %s, %s, %s, 0 offen offset:%d sc1" % (v(RX + 4 * i, 4), "v25" if i >= 4 else "v24", s(WS, 4), (i & 3) * 1024)
                for i in range(8)]

    xl = ["buffer_load_dwordx2 %s, v19, %s, %s offen offset:%d" % (v(XR + 4 * mt + 2 * nt, 2), s(XS, 4), s(T3 + mt), nt * 32)
          for mt in range(4) for nt in range(2)]
    for k in range(NSOLO):
        last = k == NSOLO - 1
        interleave(a, sm(0), reads(1, 1, False) + ([] if last else next_slot() + set_addr(False)), per=2)
        a("s_waitcnt lgkmcnt(0)")
        if not last:
            a("s_barrier")
            interleave(a, sm(1), reads(0, 0, False) + (xl[4 * k:4 * k + 4] if k < 2 else []), per=2)
            a("s_waitcnt lgkmcnt(0)")
        else:
            interleave(a, sm(1), recv_loads())
    mark(a, 12)
    top = a.newlabel("rx"); chk = a.newlabel("rxchk"); ok = a.newlabel("rxok")
    a("s_mov_b32 %s, 0" % s(T7))
    a("s_branch %s" % chk)
    a.label(top)
    a.all(recv_loads())
    a.label(chk)
    a("s_waitcnt vmcnt(0)")
    a("v_or3_b32 v26, %s, %s, %s" % (v(RX), v(RX + 1), v(RX + 2)))
    a("v_bitop3_b32 v27, %s, %s, %s bitop3:0x80" % (v(RX), v(RX + 1), v(RX + 2)))
    for i in range(3, 31, 2):
        a("v_or3_b32 v26, v26, %s, %s" % (v(RX + i), v(RX + i + 1)))
        a("v_bitop3_b32 v27, v27, %s, %s bitop3:0x80" % (v(RX + i), v(RX + i + 1)))
    a("v_or_b32 v26, v26, %s" % v(RX + 31))
    a("v_and_b32 v27, v27, %s" % v(RX + 31))
    a("v_xor_b32 v26, v26, v31")
    a("v_xor_b32 v27, v27, v31")
    a("v_or_b32 v26, v26, v27")
    a("v_and_b32 v26, v26, v28")
    a("v_cmp_ne_u32 vcc, 0, v26")
    a("s_add_u32 %s, %s, 1" % (s(T7), s(T7)))
    a("s_nop 3")
    a("s_cbranch_vccz %s" % ok)
    a("s_sleep 1")
    a("s_cmp_lt_u32 %s, %d" % (s(T7), SPIN_MAX))
    a("s_cbranch_scc1 %s" % top)
    a.label(ok)
    mark(a, 13)
    TMP = 32
    PK = [64, 68, 72, 76]
    MIMIC = OPT.get("mimic", "0") == "1"

    def rnd(regs, t):
        for i, r_ in enumerate(regs):
            a("v_cvt_pk_bf16_f32 %s, %s, %s" % (v(t + i), v(r_), v(r_ + 1)))
        for i, r_ in enumerate(regs):
            a("v_lshlrev_b32 %s, 16, %s" % (v(r_), v(t + i)))
            a("v_and_b32 %s, %s, %s" % (v(r_ + 1), s(sHI), v(t + i)))

    for mt in range(4):
        offs = [4 * mt, 4 * mt + 2, 16 + 4 * mt, 16 + 4 * mt + 2]
        o = [ACC + x for x in offs]
        y = [ACY + x for x in offs]
        xf = [40 + 2 * i for i in range(4)]
        for i in range(4):
            for h in range(2):
                a("v_bfi_b32 %s, v28, 0, %s" % (v(RX + offs[i] + h), v(RX + offs[i] + h)))
        for i in range(4):
            a("v_pk_add_f32 %s, %s, %s" % (v(o[i], 2), v(o[i], 2), v(RX + offs[i], 2)))
        if MIMIC:
            rnd(o, 48)
        silu_pk(a, o, [TMP + 2 * i for i in range(4)])
        if MIMIC:
            rnd(o, 48)
            rnd(y, 52)
        for i in range(4):
            a("v_lshlrev_b32 %s, 16, %s" % (v(xf[i]), v(XR + 4 * mt + i)))
            a("v_and_b32 %s, %s, %s" % (v(xf[i] + 1), s(sHI), v(XR + 4 * mt + i)))
        if MIMIC:
            for i in range(4):
                a("v_pk_mul_f32 %s, %s, %s" % (v(o[i], 2), v(o[i], 2), v(y[i], 2)))
            rnd(o, 48)
            for i in range(4):
                a("v_pk_add_f32 %s, %s, %s" % (v(o[i], 2), v(o[i], 2), v(xf[i], 2)))
        else:
            for i in range(4):
                a("v_pk_fma_f32 %s, %s, %s, %s" % (v(o[i], 2), v(o[i], 2), v(y[i], 2), v(xf[i], 2)))
        P = PK[mt]
        for i in range(4):
            a("v_cvt_pk_bf16_f32 %s, %s, %s" % (v(P + i), v(o[i]), v(o[i] + 1)))
        a("s_nop 1")
        a("v_permlane16_swap_b32 %s, %s" % (v(P), v(P + 2)))
        a("v_permlane16_swap_b32 %s, %s" % (v(P + 1), v(P + 3)))
        a("buffer_store_dwordx4 %s, v17, %s, %s offen%s" % (v(P, 4), s(OUT, 4), s(T3 + mt), OPT.get("outmod", "_sc0_sc1").replace("_", " ")))
    flag_store(a, "epoch", 0)
    mark(a, 14)
    fine_dump(a, 1)
    a("s_endpgm")


GVA, GVB, GVA2, GVB2, GVC, GVD = 32, 36, 40, 44, 48, 52
GZA, GHA = 58, 59


def g2_loader_setup(a):
    a("v_lshrrev_b32 v6, 4, v3")
    a("s_lshr_b32 %s, %s, 1" % (s(T0), s(sL)))
    a("s_lshl_b32 %s, %s, 2" % (s(T0), s(T0)))
    a("v_or_b32 v7, %s, v6" % s(T0))
    a("v_lshlrev_b32 v7, 1, v7")
    a("v_and_b32 v28, 15, v3")
    a("v_xor_b32 v7, v7, v28")
    a("v_lshlrev_b32 v7, 4, v7")
    a("v_lshl_add_u32 v6, v6, 11, v7")
    a("s_mul_i32 %s, %s, %d" % (s(T0), s(sKH), 1792 * 2048))
    a("s_lshl_b32 %s, %s, 13" % (s(T1), s(sL)))
    a("s_add_u32 %s, %s, %s" % (s(T0), s(T0), s(T1)))
    a("s_lshl_b32 %s, %s, 7" % (s(T1), s(sNB8)))
    a("s_add_u32 %s, %s, %s" % (s(T0), s(T0), s(T1)))
    a("v_add_u32 v6, %s, v6" % s(T0))
    a("v_and_b32 v7, 128, v7")
    a("v_mul_u32_u24 v7, %d, v7" % (US() - 1))
    a("v_add_u32 v6, v6, v7")
    for i in range(4):
        a("v_add_u32 %s, %s, v6" % (v(GVB + i), hx(i * 16 * 2048)))
    for i in range(2):
        a("v_add_u32 %s, %s, v6" % (v(GVB2 + i), hx(((i + 2) * 16 + 192) * 2048)))
    a("s_lshl_b32 %s, %s, 4" % (s(T0), s(sCLS)))
    a("s_lshl_b32 %s, %s, 3" % (s(T1), s(sKH)))
    a("s_add_u32 %s, %s, %s" % (s(T0), s(T0), s(T1)))
    a("s_mul_i32 %s, %s, 49152" % (s(T1), s(T0)))
    a("s_add_u32 %s, %s, %s" % (s(T1), s(T1), hx(HR_OFF)))
    a("s_lshl_b32 %s, %s, 13" % (s(T2), s(T0)))
    a("s_add_u32 %s, %s, %s" % (s(T2), s(T2), hx(HL_OFF)))
    a("v_and_b32 v6, 64, v4")
    a("v_lshlrev_b32 v6, 7, v6")
    a("v_and_b32 v7, 48, v4")
    a("v_add_u32 v7, v7, v6")
    a("v_lshl_add_u32 v7, v5, 6, v7")
    a("v_add_u32 v7, %s, v7" % s(T1))
    for i in range(4):
        a("v_add_u32 %s, %d, v7" % (v(GVA + i), i * 32 * 64))
    a("v_and_b32 v7, 32, v4")
    a("v_lshl_add_u32 v6, v7, 7, v6")
    a("v_and_b32 v7, 16, v4")
    a("v_add_u32 v6, v6, v7")
    a("v_lshl_add_u32 v6, v5, 5, v6")
    a("v_add_u32 v6, %s, v6" % s(T2))
    for i in range(4):
        a("v_add_u32 %s, %d, v6" % (v(GVA2 + i), i * 32 * 32))
    a("s_cmp_gt_u32 %s, 8" % s(sCLS))
    a("s_cselect_b32 %s, -1, 0" % s(T0))
    a("s_sub_u32 %s, 16, %s" % (s(T2), s(sCLS)))
    a("s_cmp_gt_u32 %s, 8" % s(sCLS))
    a("s_cselect_b32 %s, %s, %s" % (s(T1), s(T2), s(sCLS)))
    a("s_lshl_b32 %s, %s, 19" % (s(T2), s(T1)))
    a("s_add_u32 %s, %s, %s" % (s(T2), s(T2), hx(ZT_OFF)))
    for i in range(4):
        a("v_add_u32 v6, %d, v5" % (32 * i))
        a("v_lshlrev_b32 v6, 4, v6")
        a("v_add_u32 v6, %s, v6" % s(sCLS))
        a("v_xor_b32 v6, %s, v6" % s(T0))
        a("v_subrev_u32 v6, %s, v6" % s(T0))
        a("v_and_b32 v6, 2047, v6")
        a("v_lshl_add_u32 %s, v6, 12, v4" % v(GVC + i))
    a("s_lshl_b32 %s, %s, 6" % (s(T3), s(sNB8)))
    a("s_mul_i32 %s, %s, %d" % (s(T4), s(sKH), 64 * US()))
    a("s_add_u32 %s, %s, %s" % (s(T3), s(T3), s(T4)))
    for i in range(2):
        a("v_add_u32 v6, %d, v5" % (32 * i))
        a("v_add_u32 v6, %s, v6" % s(T3))
        a("v_xor_b32 v6, %s, v6" % s(T0))
        a("v_subrev_u32 v6, %s, v6" % s(T0))
        a("v_and_b32 v7, 3, v6")
        a("v_bfe_u32 v6, v6, 2, 8")
        a("v_lshl_add_u32 v6, v7, 8, v6")
        a("v_and_b32 v7, 48, v4")
        a("v_lshl_add_u32 v6, v6, 6, v7")
        a("v_and_b32 v7, 64, v4")
        a("v_lshl_add_u32 v6, v7, 10, v6")
        a("v_add_u32 %s, %s, v6" % (v(GVD + i), s(T2)))
    a("s_and_b32 %s, %s, 7" % (s(T3), s(T1)))
    a("s_lshl_b32 %s, %s, 9" % (s(T3), s(T3)))
    a("s_add_u32 %s, %s, %s" % (s(T3), s(T3), hx(ZF_OFF - SF_OFF)))
    a("v_add_u32 %s, %s, v31" % (v(GZA), s(T3)))
    a("s_andn2_b32 %s, %s, 127" % (s(T2), s(sHF)))
    a("v_and_b32 v6, 7, v3")
    a("v_lshlrev_b32 v6, 2, v6")
    a("v_add_u32 %s, %s, v6" % (v(GHA), s(T2)))
    a("s_and_b32 %s, %s, 4" % (s(T2), s(sCB8)))
    a("s_lshl_b32 %s, 15, %s" % (s(sMK), s(T2)))
    a("s_xor_b32 %s, %s, 255" % (s(sMK + 2), s(sMK)))
    a("s_bitset0_b32 %s, %s" % (s(sMK), s(sCB8)))
    a("s_mov_b32 %s, 0" % s(sMK + 1))
    a("s_mov_b32 %s, 0" % s(sMK + 3))


def loader_g2(a):
    a("s_add_u32 %s, %s, %d" % (s(sWRAP), s(sSL0), G2SLOT * 5))
    NT = NJ + NSOLO
    q = []

    def slot_of(st):
        a("s_add_u32 %s, %s, %d" % (s(sSLOT), s(sSL0), ((st + 4) % 5) * G2SLOT))

    def issue(st, want_a=True, want_b=True):
        slot_of(st)
        if st < NREG:
            breg = want_b and st < NRB()
            want_b = want_b and not breg
            if want_a or want_b:
                g2_koff(a, st, want_a, want_b)
            if want_a:
                for i in range(4):
                    dma(a, i * 4096, GVA + i, WS, sKA, coh=True)
            if want_b:
                for i in range(4):
                    dma(a, 16384 + i * 4096, GVB + i, W2, sKB)
            if breg:
                a("v_add_u32 v6, %s, %s" % (hx(((st + 4) % 5) * G2SLOT + 16384), v(GWA)))
                for i in range(4):
                    a("ds_write_b128 v6, %s offset:%d" % (v(RBB + 16 * st + 4 * i, 4), i * 4096))
            q.extend([st] * (4 * want_a + 4 * want_b))
        elif st < NJ:
            lam = st - NREG
            a("s_mov_b32 %s, %d" % (s(sKA), lam * 16384))
            a("s_mov_b32 %s, %d" % (s(sKB), (448 * lam + 192) * 2048))
            for i in range(4):
                dma(a, i * 4096, GVA2 + i, WS, sKA, coh=True)
            for i in range(2):
                dma(a, 16384 + i * 4096, GVB + i, W2, sKB)
            for i in range(2):
                dma(a, 16384 + (i + 2) * 4096, GVB2 + i, W2, sKB)
            q.extend([st] * 8)
        else:
            k = st - NJ
            a("s_mov_b32 %s, %d" % (s(sKA), (k & 1) * 128))
            a("s_mov_b32 %s, %d" % (s(sKB), (k & 1) * 131072 + (k >> 1) * 262144))
            for i in range(4):
                dma(a, i * 4096, GVC + i, CI if k >= 2 else CR, sKA)
            for i in range(2):
                dma(a, 16384 + i * 4096, GVD + i, WS, sKB, coh=True)
            q.extend([st] * 6)

    def wait(*tags):
        idx = max(i for i, x in enumerate(q) if x in tags)
        a("s_waitcnt vmcnt(%d)" % (len(q) - idx - 1))
        del q[:idx + 1]

    assert NRB() == 0
    issue(0, want_a=False)
    if int(OPT.get("pw", "0")):
        w2_prefetch(a, range(10, 10 + int(OPT.get("pw", "0"))))
    a("s_barrier")
    issue(1, want_a=False)
    issue(2, want_a=False)
    top = a.newlabel("pre"); got = a.newlabel("got"); nogot = a.newlabel("nogot")
    a("s_mov_b32 %s, 0" % s(T6))
    a("s_mov_b32 %s, 0" % s(T7))
    a.label(top)
    poll_issue(a, 29, GHA)
    a("s_waitcnt vmcnt(0)")
    a("s_add_u32 %s, %s, 1" % (s(T7), s(T7)))
    poll_test(a, 29, s(sMK, 2))
    a("s_cbranch_scc0 %s" % got)
    a("s_sleep 2")
    a("s_cmp_lt_u32 %s, %s" % (s(T7), OPT.get("np", "2")))
    a("s_cbranch_scc1 %s" % top)
    a("s_branch %s" % nogot)
    a.label(got)
    mark(a, 9)
    for st in range(3):
        issue(st, want_b=False)
    a("s_mov_b32 %s, 1" % s(T6))
    a.label(nogot)
    a("s_barrier")
    late = a.newlabel("late"); go = a.newlabel("go")
    a("s_cmp_eq_u32 %s, 0" % s(T6))
    a("s_cbranch_scc1 %s" % late)
    issue(3)
    a("s_waitcnt vmcnt(16)")
    a("s_barrier")
    issue(4)
    a("s_waitcnt vmcnt(20)")
    a("s_branch %s" % go)
    a.label(late)
    for st in range(3, 5):
        issue(st, want_a=False)
    poll_check(a, 29, GHA, s(sMK, 2), False)
    mark(a, 8)
    issue(0, want_b=False)
    issue(1, want_b=False)
    a("s_waitcnt vmcnt(4)")
    a("s_barrier")
    for st in range(2, 5):
        issue(st, want_b=False)
    a("s_waitcnt vmcnt(12)")
    a.label(go)
    del q[:]
    q.extend([1] + [2] * 4 + [3] * 4 + [4] * 4)
    nxt = 5
    a.skipdma = True
    for k in range(0, NT - 1):
        last_issue = min(k + 5, NT - 1)
        tags = [k + 1]
        chk = None
        if nxt <= 12 <= last_issue:
            tags.append("p2"); chk = "h2"
        if nxt <= NJ <= last_issue:
            tags.append("p3"); chk = "z"
        fine(a)
        if k > 0:
            wait(*tags)
        else:
            q.remove(1)
        if chk == "h2":
            poll_check(a, 29, GHA, s(sMK + 2, 2), True)
        elif chk is not None:
            a("s_mov_b32 %s, -1" % s(sMK))
            poll_check(a, 29, GZA, s(sMK, 2), True)
        fine(a)
        a("s_barrier")
        while nxt <= last_issue:
            issue(nxt); nxt += 1
        PD = int(OPT.get("pd", "9"))
        if PD and k + 5 + PD < NJ:
            w2_prefetch(a, [2 * (k + 5 + PD), 2 * (k + 5 + PD) + 1])
        if k == int(OPT.get("zk", "6")):
            flag_store(a, "z")
        if k == 3:
            poll_issue(a, 29, GHA); q.append("p2")
        if k == NJ - 9:
            poll_issue(a, 29, GZA); q.append("p3")
    fine_dump(a, 1)
    a("s_endpgm")


HEADER = """; Kernarg layout (88 bytes, ptrs only, base s[0:1]): 0 A_x, 8 dft_seq_re, 16 dft_seq_im, 24 dft_hid_re,
"""


def main():
    global STAMP
    args = sys.argv[1:]
    global FINE, NSGPR
    if "--fine" in args:
        FINE = True; NSGPR = 102; args.remove("--fine")
    if "--stamp" in args:
        STAMP = True; args.remove("--stamp")
    for x in list(args):
        if x.startswith("--") and "=" in x:
            k, val = x[2:].split("="); OPT[k] = val; args.remove(x)
    a = Asm()
    a.raw(HEADER.rstrip("\n"))
    nv = 256 if (STAMP or FINE) else 248
    a.raw("; @launch grid=(256,1,1) block=(512,1,1) lds=163840")
    a.raw('.amdgcn_target "amdgcn-amd-amdhsa--gfx950"')
    a.raw(".text")
    name = NAME + "_kernel"
    kernel_header(a, name)
    prologue(a, "L_end")
    if FINE:
        a("s_mov_b32 s100, 0")
        a("v_mov_b32 v250, 0")
    mark(a, 0)
    a("s_cmp_ge_u32 %s, 4" % s(sWAVE))
    a("s_cbranch_scc1 L_loader")
    compute_setup(a)
    a("s_barrier")
    prep_ln(a)
    a("s_waitcnt lgkmcnt(0)")
    tag_ready(a)
    a("v_mov_b32 v29, %d" % SYNC)
    a("v_mov_b32 v30, 1")
    a("s_mov_b64 exec, 1")
    a("ds_add_u32 v29, v30")
    a("s_mov_b64 exec, -1")
    a("s_mov_b32 %s, 0" % s(T7))
    a.label("L_sync")
    a("ds_read_b32 v30, v29")
    a("s_add_u32 %s, %s, 1" % (s(T7), s(T7)))
    a("s_waitcnt lgkmcnt(0)")
    a("v_readfirstlane_b32 %s, v30" % s(T6))
    a("s_cmp_ge_u32 %s, %d" % (s(T7), SPIN_MAX))
    a("s_cbranch_scc1 L_synced")
    a("s_cmp_lt_u32 %s, 4" % s(T6))
    a("s_cbranch_scc1 L_sync")
    a.label("L_synced")
    dft = prep_dft(a)
    dft(0)
    a("s_waitcnt lgkmcnt(0)")
    dft(1)
    dft(3)
    compute_g1_s1(a)
    compute_g2(a)
    a.label("L_loader")
    if OPT.get("lprio", "0") != "0":
        a("s_setprio %s" % OPT.get("lprio", "0"))
    loader_setup(a)
    loader_g1_s1(a)
    loader_g2(a)
    a.label("L_end")
    a("s_endpgm")
    a.raw('.section .rodata,"a"')
    a.raw(kernel_desc(name, nv, NSGPR).rstrip("\n"))
    out = args[0] if args else "cdna_kernels/%s.s" % NAME
    open(out, "w").write(a.text())


if __name__ == "__main__":
    main()
```

```python
import math, struct, sys

NAME = "recurrent_scan__spectral_fnet__dense_activation_silu__prompt"

CS_OFF = 0x0000000
STAT_OFF = 0x0040000
HF_OFF = 0x0050000
SF_OFF = 0x0052000
ZF_OFF = 0x0054000
EP_OFF = 0x0058000
CB_OFF = 0x0400000
ZT_OFF = 0x0800000
HR_OFF = 0x0D00000
HL_OFF = 0x1900000
EX_OFF = 0x1C00000
STAMP_OFF = 0x4000000
WS_SZ = 0x10000000

STAMP = False
SC1 = " sc1"
SPIN_MAX = 200000
OPT = {}

G1SLOT = 45056
G2SLOT = 32768
STG = 143360
CSP = 135168
CSB = 161792
STB = 162816
S1SLOTS = [0, 32768, 65536, 98304]

sWAVE, sXCD, sLOC, sRB, sCB, sTAU, sCLS, sCB8, sKH = 3, 4, 5, 6, 7, 8, 9, 10, 11
sWM, sWN, sSLOT, sCNT = 12, 13, 14, 15
sL = 12
T0, T1, T2, T3, T4, T5, T6, T7 = 16, 17, 18, 19, 20, 21, 22, 23
sNB8 = 39
sTAG, sMK = 38, 76
sSP, sHALF, sHF = 26, 27, 28
WS, W1, DR, DI, W2, CR, CI, XS, OUT, DBG = 40, 44, 48, 52, 56, 60, 64, 68, 72, 76
sNL2E, sHI = 80, 82
C1, C2, C3 = 84, 86, 88
sKA, sKB, sWRAP, sSL0, sP3 = 90, 91, 92, 93, 94
NSGPR = 100


def f32(x):
    return struct.unpack("<I", struct.pack("<f", x))[0]


def hx(x):
    return "0x%x" % (x & 0xFFFFFFFF)


def v(i, n=1):
    return "v%d" % i if n == 1 else "v[%d:%d]" % (i, i + n - 1)


def s(i, n=1):
    return "s%d" % i if n == 1 else "s[%d:%d]" % (i, i + n - 1)


class Asm:
    def __init__(self):
        self.lines = []
        self.uid = 0

    def __call__(self, txt):
        self.lines.append("    " + txt)

    def label(self, l):
        self.lines.append(l + ":")

    def newlabel(self, p):
        self.uid += 1
        return "L_%s_%d" % (p, self.uid)

    def c(self, txt):
        self.lines.append("    ; " + txt)

    def raw(self, txt):
        self.lines.append(txt)

    def all(self, lst):
        for x in lst:
            self(x)

    def text(self):
        return "\n".join(self.lines) + "\n"


def srd(a, dst, ptr, off, size):
    if off:
        a("s_add_u32 %s, %s, %s" % (s(dst), s(ptr), hx(off)))
        a("s_addc_u32 %s, %s, 0" % (s(dst + 1), s(ptr + 1)))
    else:
        a("s_mov_b32 %s, %s" % (s(dst), s(ptr)))
        a("s_mov_b32 %s, %s" % (s(dst + 1), s(ptr + 1)))
    a("s_mov_b32 %s, %s" % (s(dst + 2), hx(size)))
    a("s_mov_b32 %s, 0x20000" % s(dst + 3))


def kernel_header(a, name):
    a.raw(".globl %s" % name)
    a.raw(".p2align 8")
    a.raw(".type %s,@function" % name)
    a.label(name)


def kernel_desc(name, vgpr, sgpr):
    acc = (vgpr + 3) // 4 * 4
    return "\n".join([
        ".p2align 6",
        ".amdhsa_kernel %s" % name,
        "  .amdhsa_next_free_vgpr %d" % vgpr,
        "  .amdhsa_next_free_sgpr %d" % sgpr,
        "  .amdhsa_accum_offset %d" % acc,
        "  .amdhsa_group_segment_fixed_size 0",
        "  .amdhsa_kernarg_size 88",
        "  .amdhsa_user_sgpr_count 2",
        "  .amdhsa_user_sgpr_kernarg_segment_ptr 1",
        "  .amdhsa_system_sgpr_workgroup_id_x 1",
        ".end_amdhsa_kernel",
    ]) + "\n"


NEG1 = " neg_lo:[0,1] neg_hi:[0,1]"


def mark(a, idx, extra=None):
    if idx == 0 and not getattr(a, "dt0", False):
        a.dt0 = True
        dbgt(a, 15, neg=True)
        dbgt(a, 0)
    elif idx in (3, 4, 5, 6, 7, 10, 11, 13) and extra is None:
        dbgt(a, idx)
    elif idx == 14:
        dbgt(a, 14, few=False)
    if not STAMP:
        return
    lab = a.newlabel("nost")
    a("s_and_b32 s96, %s, 3" % s(sWAVE))
    a("s_cmp_lg_u32 s96, 0")
    a("s_cbranch_scc1 %s" % lab)
    a("s_memrealtime s[96:97]")
    a("s_memtime s[98:99]")
    a("s_waitcnt lgkmcnt(0)")
    a("v_mov_b32 v252, s96")
    a("v_mov_b32 v253, %s" % ("s98" if extra is None else s(extra)))
    a("s_lshl_b32 s96, s2, 8")
    a("s_lshl_b32 s97, %s, 5" % s(sWAVE))
    a("s_add_u32 s96, s96, s97")
    a("s_add_u32 s96, s96, %s" % hx(STAMP_OFF + idx * 8))
    a("v_mov_b32 v254, s96")
    a("buffer_store_dwordx2 v[252:253], v254, %s, 0 offen" % s(WS, 4))
    a.label(lab)


FINE = False


def dbgt(a, idx, neg=False, few=True):
    if OPT.get("dbgt") != "1":
        return
    lab = a.newlabel("nodt")
    a("s_cmp_lg_u32 %s, 0" % s(sWAVE))
    a("s_cbranch_scc1 %s" % lab)
    if few:
        a("s_cmp_ge_u32 s2, 8")
        a("s_cbranch_scc1 %s" % lab)
    a("s_memrealtime s[96:97]")
    a("s_waitcnt lgkmcnt(0)")
    if neg:
        a("s_not_b32 s96, s96")
    a("v_mov_b32 v252, s96")
    a("v_mov_b32 v253, %d" % (4 * idx))
    a("s_mov_b64 exec, 1")
    a("global_atomic_umax v253, v252, s[34:35] sc1")
    a("s_mov_b64 exec, -1")
    a.label(lab)


def fine(a):
    if not FINE:
        return
    a("s_memtime s[98:99]")
    a("s_waitcnt lgkmcnt(0)")
    a("s_mov_b32 m0, s100")
    a("s_nop 0")
    a("v_writelane_b32 v250, s98, m0")
    a("s_add_u32 s100, s100, 1")


def fine_dump(a, slot):
    if not FINE:
        return
    a("s_lshl_b32 s96, s2, 11")
    a("s_lshl_b32 s97, %s, 8" % s(sWAVE))
    a("s_add_u32 s96, s96, s97")
    a("s_add_u32 s96, s96, %s" % hx(STAMP_OFF + 0x100000 * (1 + slot)))
    a("v_lshlrev_b32 v251, 2, v3")
    a("buffer_store_dword v250, v251, %s, s96 offen" % s(WS, 4))
    a("s_mov_b32 s100, 0")
    a("s_nop 1")
    a("v_mov_b32 v250, 0")


def interleave(a, main, fill, per=1, start=0):
    fi = 0
    for i, m in enumerate(main):
        a(m)
        if i >= start:
            for _ in range(per):
                if fi < len(fill):
                    a(fill[fi]); fi += 1
    while fi < len(fill):
        a(fill[fi]); fi += 1


def mfma(d, sa, sb, c=None):
    return "v_mfma_f32_16x16x32_bf16 %s, %s, %s, %s" % (v(d, 4), v(sa, 4), v(sb, 4), v(d, 4) if c is None else c)


def prologue(a, endlab):
    a("s_cmp_ge_u32 s2, 256")
    a("s_cbranch_scc1 %s" % endlab)
    if OPT.get("cpf", "1") == "1":
        a("s_getpc_b64 s[96:97]")
        a.label("L_pc")
        a("s_lshr_b32 s98, s2, 3")
        a("s_lshl_b32 s98, s98, 13")
        a("v_lshl_add_u32 v2, v0, 4, s98")
        a("v_cmp_gt_u32 vcc, L_end-L_pc, v2")
        a("s_and_saveexec_b64 s[98:99], vcc")
        a("s_cbranch_execz L_nocpf")
        a("global_load_dwordx4 v[244:247], v2, s[96:97]")
        a.label("L_nocpf")
        a("s_mov_b64 exec, -1")
    a("s_load_dwordx16 s[16:31], s[0:1], 0")
    a("s_load_dwordx4 s[32:35], s[0:1], 64")
    a("s_load_dwordx2 s[36:37], s[0:1], 80")
    a("v_lshrrev_b32 v1, 6, v0")
    a("v_and_b32 v3, 63, v0")
    a("s_and_b32 %s, s2, 7" % s(sXCD))
    a("s_lshr_b32 %s, s2, 3" % s(sLOC))
    a("v_readfirstlane_b32 %s, v1" % s(sWAVE))
    a("s_and_b32 s6, s4, 1"); a("s_lshl_b32 s6, s6, 3"); a("s_and_b32 s7, s5, 7"); a("s_add_u32 s6, s6, s7")
    a("s_lshr_b32 s7, s4, 1"); a("s_lshl_b32 s7, s7, 2"); a("s_lshr_b32 s8, s5, 3"); a("s_add_u32 s7, s7, s8")
    a("s_lshl_b32 s8, s4, 5"); a("s_add_u32 s8, s8, s5")
    a("s_mov_b32 s9, s6")
    a("s_lshr_b32 s11, s7, 3")
    a("s_and_b32 s10, s7, 7")
    a("s_mov_b32 %s, %s" % (s(sNL2E), hx(f32(-1.4426950408889634))))
    a("s_mov_b32 %s, %s" % (s(sNL2E + 1), hx(f32(-1.4426950408889634))))
    a("s_mov_b32 %s, 0xffff0000" % s(sHI))
    a("s_lshr_b32 s38, %s, 1" % s(sTAU))
    a("s_and_b32 s39, %s, 1" % s(sTAU))
    a("v_lshlrev_b32 v26, 18, v1")
    a("v_and_b32 v27, 31, v3")
    a("v_lshl_add_u32 v26, v27, 3, v26")
    a("v_lshrrev_b32 v27, 5, v3")
    a("v_lshl_add_u32 v26, v27, 9, v26")
    a("s_lshl_b32 s95, s38, 11")
    a("v_add_u32 v26, s95, v26")
    a("s_lshl_b32 s95, s39, 8")
    a("v_add_u32 v26, s95, v26")
    a("v_xor_b32 v27, 0x100, v26")
    a("v_mov_b32 v28, %d" % SYNC)
    a("v_mov_b32 v29, 0")
    a("ds_write_b32 v28, v29")
    a("s_waitcnt lgkmcnt(0)")
    srd(a, XS, 16, 0, 2048 * 1024 * 2)
    a("s_cmp_ge_u32 %s, 4" % s(sWAVE))
    a("s_cbranch_scc1 L_nox")
    for ri, B in enumerate(RAWB):
        a("s_mov_b32 s95, %s" % hx(ri * 0x100000))
        for hh in range(2):
            for jj in range(2):
                a("buffer_load_dwordx2 %s, %s, %s, s95 offen offset:%d" % (
                    v(B + 4 * hh + 2 * jj, 2), "v27" if hh else "v26", s(XS, 4), 1024 * jj))
    a.label("L_nox")
    srd(a, WS, 36, 0, WS_SZ)
    srd(a, W1, 28, 0, 1024 * 3584 * 2)
    srd(a, DR, 22, 0, 1024 * 1024 * 2)
    srd(a, DI, 24, 0, 1024 * 1024 * 2)
    srd(a, W2, 30, 0, 3584 * 1024 * 2)
    srd(a, CR, 18, 0, 2048 * 2048 * 2)
    srd(a, CI, 20, 0, 2048 * 2048 * 2)
    srd(a, OUT, 32, 0, 2048 * 1024 * 2)
    a("s_mov_b32 %s, s38" % s(sSP))
    a("s_mov_b32 %s, s39" % s(sHALF))
    a("s_lshl_b32 %s, %s, 4" % (s(sHF), s(sRB)))
    a("s_add_u32 %s, %s, %s" % (s(sHF), s(sHF), s(sCB)))
    a("s_lshr_b32 s95, %s, 3" % s(sHF))
    a("s_lshl_b32 s95, s95, 7")
    a("s_lshl_b32 %s, %s, 2" % (s(sHF), s(sCB8)))
    a("s_add_u32 %s, %s, s95" % (s(sHF), s(sHF)))
    a("s_add_u32 %s, %s, %s" % (s(sHF), s(sHF), hx(HF_OFF)))
    if US() == 1:
        a("s_lshl_b32 %s, %s, 1" % (s(sNB8), s(sCB8)))
    elif US() == 2:
        a("s_and_b32 s95, %s, 1" % s(sCB8))
        a("s_lshr_b32 %s, %s, 1" % (s(sNB8), s(sCB8)))
        a("s_lshl_b32 %s, %s, 2" % (s(sNB8), s(sNB8)))
        a("s_add_u32 %s, %s, s95" % (s(sNB8), s(sNB8)))
    else:
        a("s_and_b32 s95, %s, 3" % s(sCB8))
        a("s_lshr_b32 %s, %s, 2" % (s(sNB8), s(sCB8)))
        a("s_lshl_b32 %s, %s, 3" % (s(sNB8), s(sNB8)))
        a("s_add_u32 %s, %s, s95" % (s(sNB8), s(sNB8)))
    a("s_load_dword %s, s[36:37], %s" % (s(sTAG), hx(EP_OFF)))


def US():
    return int(OPT.get("us", "1"))


ROWB = [32, 76]
RAWB = [32, 76, 240, 120]


def tag_ready(a):
    a("s_add_u32 %s, %s, 0x9e3779b9" % (s(sTAG), s(sTAG)))


def flag_store(a, kind, wave=4):
    lab = a.newlabel("nf")
    a("s_cmp_lg_u32 %s, %d" % (s(sWAVE), wave))
    a("s_cbranch_scc1 %s" % lab)
    if kind == "h":
        a("v_mov_b32 v2, %s" % s(sHF))
    elif kind == "epoch":
        a("s_cmp_lg_u32 s2, 0")
        a("s_cbranch_scc1 %s" % lab)
        a("v_mov_b32 v2, %s" % hx(EP_OFF))
    else:
        idx = "s2" if kind == "s" else s(sTAU)
        a("s_lshr_b32 s96, %s, 3" % idx)
        a("s_lshl_b32 s96, s96, 7")
        a("s_and_b32 s97, %s, 7" % idx)
        a("s_lshl_b32 s97, s97, 2")
        a("s_add_u32 s96, s96, s97")
        a("s_add_u32 s96, s96, %s" % hx(SF_OFF if kind == "s" else ZF_OFF))
        a("v_mov_b32 v2, s96")
    a("v_mov_b32 v1, %s" % s(sTAG))
    a("s_mov_b64 exec, 1")
    a("buffer_store_dword v1, v2, %s, 0 offen sc1" % s(WS, 4))
    a("s_mov_b64 exec, -1")
    a("s_nop 3")
    a.label(lab)


def poll_issue(a, vdst, vaddr, n=1):
    for i in range(n):
        a("buffer_load_dword %s, %s, %s, 0 offen offset:%d sc1" % (v(vdst + i), v(vaddr), s(WS, 4), i * 1024))


def poll_test(a, vdst, mask, n=1):
    a("v_cmp_ne_u32 vcc, %s, %s" % (s(sTAG), v(vdst)))
    for i in range(1, n):
        a("v_cmp_ne_u32 s[96:97], %s, %s" % (s(sTAG), v(vdst + i)))
        a("s_or_b64 vcc, vcc, s[96:97]")
    a("s_nop 0")
    a("s_and_b64 vcc, vcc, %s" % mask)


def poll_check(a, vdst, vaddr, mask, issued, n=1):
    top = a.newlabel("poll"); done = a.newlabel("pdone"); chk = a.newlabel("pchk")
    a("s_mov_b32 %s, 0" % s(T7))
    if issued:
        a("s_branch %s" % chk)
    a.label(top)
    poll_issue(a, vdst, vaddr, n)
    a("s_waitcnt vmcnt(0)")
    a.label(chk)
    a("s_add_u32 %s, %s, 1" % (s(T7), s(T7)))
    poll_test(a, vdst, mask, n)
    a("s_cbranch_scc0 %s" % done)
    a("s_sleep %s" % OPT.get("sleep", "4"))
    a("s_cmp_lt_u32 %s, %d" % (s(T7), SPIN_MAX))
    a("s_cbranch_scc1 %s" % top)
    a.label(done)


def prep_ln(a):
    a("v_lshlrev_b32 v31, 8, v1")
    a("v_and_b32 v2, 31, v3")
    a("v_lshl_add_u32 v31, v2, 3, v31")
    a("v_lshrrev_b32 v2, 5, v3")
    a("v_lshl_add_u32 v31, v2, 12, v31")
    a("v_add_u32 v31, %d, v31" % STG)
    a("s_and_b32 %s, %s, 15" % (s(T0), s(sSP)))
    a("s_lshl_b32 %s, %s, 7" % (s(T0), s(T0)))
    a("s_lshr_b32 %s, %s, 4" % (s(T1), s(sSP)))
    a("s_add_u32 %s, %s, %s" % (s(T0), s(T0), s(T1)))
    a("s_lshl_b32 %s, %s, 3" % (s(T1), s(sWAVE)))
    a("s_add_u32 %s, %s, %s" % (s(T0), s(T0), s(T1)))
    a("s_lshl_b32 %s, %s, 3" % (s(T0), s(T0)))
    a("s_add_u32 %s, %s, %s" % (s(T0), s(T0), hx(STAT_OFF)))
    a("v_mov_b32 v2, %s" % s(T0))
    for ps in range(2):
        a("s_waitcnt vmcnt(%d)" % (8 if ps == 0 else 0))
        prep_ln_pass(a, ps)
    lab = a.newlabel("nostat")
    a("s_cmp_lg_u32 %s, 0" % s(sHALF))
    a("s_cbranch_scc1 %s" % lab)
    a("s_mov_b64 exec, 1")
    for ri in range(4):
        a("buffer_store_dwordx2 %s, v2, %s, 0 offen offset:%d%s" % (v(ROWB[ri & 1] + 32 * (ri >> 1), 2), s(WS, 4), ri * 256, SC1))
    a("s_mov_b64 exec, -1")
    a.label(lab)


def prep_ln_pass(a, ps):
    streams = []
    for rj, B in enumerate(ROWB):
        ri = 2 * ps + rj
        RAW, X, T, M, R, D = RAWB[ri], B + 8, B + 24, B + 32, B + 34, B + 36
        S1, S2 = (T5, T6) if rj == 0 else (24, 25)
        L = []
        for p in range(8):
            L.append("v_lshlrev_b32 %s, 16, %s" % (v(X + 2 * p), v(RAW + p)))
            L.append("v_and_b32 %s, %s, %s" % (v(X + 2 * p + 1), s(sHI), v(RAW + p)))
        pk = lambda d, x, y, m="": L.append("v_pk_add_f32 %s, %s, %s%s" % (v(d, 2), v(x, 2), v(y, 2), m))

        def wsum(r, sd):
            for m in ("quad_perm:[1,0,3,2] row_mask:0xf", "quad_perm:[2,3,0,1] row_mask:0xf",
                      "row_half_mirror row_mask:0xf", "row_mirror row_mask:0xf",
                      "row_bcast:15 row_mask:0xa", "row_bcast:31 row_mask:0xc"):
                L.append("s_nop 0")
                L.append("v_add_f32_dpp %s, %s, %s %s bank_mask:0xf" % (v(r), v(r), v(r), m))
            L.append("s_nop 0")
            L.append("v_readlane_b32 %s, %s, 63" % (s(sd), v(r)))
            L.append("s_nop 0")
        pk(T, X, X + 2); pk(T + 2, X + 4, X + 6); pk(T + 4, X + 8, X + 10); pk(T + 6, X + 12, X + 14)
        pk(T, T, T + 2); pk(T + 4, T + 4, T + 6); pk(T, T, T + 4)
        L.append("v_add_f32 %s, %s, %s" % (v(T), v(T), v(T + 1)))
        wsum(T, S1)
        L.append("v_mov_b32 %s, %s" % (v(M), hx(f32(1.0 / 1024))))
        L.append("v_mul_f32 %s, %s, %s" % (v(M), s(S1), v(M)))
        for g4 in range(2):
            for p in range(4):
                pk(D + 2 * p, X + 8 * g4 + 2 * p, M, " op_sel_hi:[1,0]" + NEG1)
            for p in range(4):
                t = T + 2 * (p & 1)
                if g4 == 0 and p < 2:
                    L.append("v_pk_mul_f32 %s, %s, %s" % (v(t, 2), v(D + 2 * p, 2), v(D + 2 * p, 2)))
                else:
                    L.append("v_pk_fma_f32 %s, %s, %s, %s" % (v(t, 2), v(D + 2 * p, 2), v(D + 2 * p, 2), v(t, 2)))
        pk(T, T, T + 2)
        L.append("v_add_f32 %s, %s, %s" % (v(T), v(T), v(T + 1)))
        wsum(T, S2)
        L.append("v_mov_b32 %s, %s" % (v(R), hx(f32(1.0 / 1024))))
        L.append("v_mul_f32 %s, %s, %s" % (v(R), s(S2), v(R)))
        L.append("v_cvt_pk_bf16_f32 %s, %s, %s" % (v(R), v(R), v(R)))
        L.append("v_lshlrev_b32 %s, 16, %s" % (v(R), v(R)))
        L.append("v_add_f32 %s, %s, %s" % (v(R), hx(f32(1e-5)), v(R)))
        L.append("v_cvt_pk_bf16_f32 %s, %s, %s" % (v(R), v(R), v(R)))
        L.append("v_lshlrev_b32 %s, 16, %s" % (v(R), v(R)))
        L.append("v_sqrt_f32 %s, %s" % (v(R), v(R)))
        L.append("v_cvt_pk_bf16_f32 %s, %s, %s" % (v(M), v(M), v(M)))
        L.append("v_cvt_pk_bf16_f32 %s, %s, %s" % (v(R), v(R), v(R)))
        L.append("v_lshlrev_b32 %s, 16, %s" % (v(M), v(M)))
        L.append("v_lshlrev_b32 %s, 16, %s" % (v(R), v(R)))
        L.append("v_rcp_f32 %s, %s" % (v(R), v(R)))
        for p in range(4):
            pk(D + 2 * p, X + 2 * p, M, " op_sel_hi:[1,0]" + NEG1)
        if ps == 0:
            L.append("v_mov_b32 %s, %s" % (v(B), v(M)))
            L.append("v_mov_b32 %s, %s" % (v(B + 1), v(R)))
        else:
            L.append("v_mov_b32 %s, %s" % (v(M + 1), v(R)))
        for p in range(4):
            L.append("v_cvt_pk_bf16_f32 %s, %s, %s" % (v(T + p), v(D + 2 * p), v(D + 2 * p + 1)))
        for p in range(4):
            L.append("v_lshlrev_b32 %s, 16, %s" % (v(D + 2 * p), v(T + p)))
            L.append("v_and_b32 %s, %s, %s" % (v(D + 2 * p + 1), s(sHI), v(T + p)))
        for p in range(4):
            L.append("v_pk_mul_f32 %s, %s, %s op_sel_hi:[1,0]" % (v(D + 2 * p, 2), v(D + 2 * p, 2), v(R, 2)))
        for p in range(4):
            L.append("v_cvt_pk_bf16_f32 %s, %s, %s" % (v(T + p), v(D + 2 * p), v(D + 2 * p + 1)))
        for p in range(4):
            L.append("v_lshlrev_b32 %s, 16, %s" % (v(X + 2 * p), v(T + p)))
            L.append("v_and_b32 %s, %s, %s" % (v(X + 2 * p + 1), s(sHI), v(T + p)))
        pk(D, X, X + 4); pk(D + 2, X + 2, X + 6)
        pk(D + 4, X, X + 4, NEG1); pk(D + 6, X + 2, X + 6, NEG1)
        for p in range(4):
            L.append("v_cvt_pk_f16_f32 %s, %s, %s" % (v(T + p), v(D + 2 * p), v(D + 2 * p + 1)))
        for wh in range(2):
            L.append("ds_write_b64 v31, %s offset:%d" % (v(T + 2 * wh, 2), wh * 8192 + ri * 1024))
        streams.append(L)
    for x, y in zip(*streams):
        a(x); a(y)


def prep_dft(a0):
    a = Asm()
    a("s_lshr_b32 %s, %s, 1" % (s(T0), s(sWAVE)))
    a("s_lshl_b32 %s, %s, 13" % (s(T1), s(T0)))
    a("s_add_u32 %s, %s, %d" % (s(T1), s(T1), STG))
    a("v_lshlrev_b32 v122, 2, v3")
    a("v_add_u32 v122, %s, v122" % s(T1))
    IN = [32, 48]
    for ab in range(2):
        for j in range(8):
            a("ds_read2st64_b32 %s, v122 offset0:%d offset1:%d" % (v(IN[ab] + 2 * j, 2), ab * 16 + j, ab * 16 + j + 8))
    a("s_lshl_b32 %s, %s, 9" % (s(T1), s(sSP)))
    a("s_lshl_b32 %s, %s, 8" % (s(T2), s(sHALF)))
    a("s_add_u32 %s, %s, %s" % (s(T1), s(T1), s(T2)))
    a("s_lshl_b32 %s, %s, 17" % (s(T2), s(T0)))
    a("s_add_u32 %s, %s, %s" % (s(T1), s(T1), s(T2)))
    a("s_add_u32 %s, %s, %s" % (s(T1), s(T1), hx(CB_OFF)))
    a("v_lshlrev_b32 v123, 2, v3")
    a("v_add_u32 v123, %s, v123" % s(T1))
    for r_, val in ((C1, math.cos(math.pi / 8)), (C2, math.cos(math.pi / 4)), (C3, math.cos(3 * math.pi / 8))):
        a("s_mov_b32 %s, %s" % (s(r_), hx(f32(val))))
        a("s_mov_b32 %s, %s" % (s(r_ + 1), hx(f32(val))))
    head = a.lines
    var = {}
    for parity in range(2):
        free = list(range(64, 120, 2))
        alloc = lambda: free.pop(0)

        def rel(*rs):
            free.extend(rs)

        def add(x, y):
            d = alloc(); a("v_pk_add_f32 %s, %s, %s" % (v(d, 2), v(x, 2), v(y, 2))); return d

        def sub(x, y):
            d = alloc(); a("v_pk_add_f32 %s, %s, %s%s" % (v(d, 2), v(x, 2), v(y, 2), NEG1)); return d

        def mul(x, c):
            d = alloc(); a("v_pk_mul_f32 %s, %s, %s" % (v(d, 2), v(x, 2), s(c, 2))); return d

        def fma(x, c, y, nx=False, ny=False):
            d = alloc()
            mod = " neg_lo:[%d,0,%d] neg_hi:[%d,0,%d]" % (nx, ny, nx, ny) if (nx or ny) else ""
            a("v_pk_fma_f32 %s, %s, %s, %s%s" % (v(d, 2), v(x, 2), s(c, 2), v(y, 2), mod)); return d

        def mix(r, neg):
            d = alloc()
            for h in range(2):
                a("v_fma_mix_f32 %s, %s, 1.0, %s%s op_sel:[%d,0,%d] op_sel_hi:[1,0,1]" % (v(d + h), v(r), "-" if neg else "", v(r + 1), h, h))
            rel(r)
            return d

        def dft(base):
            p = {}; q = {}
            if parity == 0:
                u = [mix(base + 2 * j, False) for j in range(8)]
                uu = []; uv = []
                for j in range(4):
                    uu.append(add(u[j], u[j + 4])); uv.append(sub(u[j], u[j + 4])); rel(u[j], u[j + 4])
                e0 = add(uu[0], uu[2]); e1 = add(uu[1], uu[3])
                p[4] = sub(uu[0], uu[2]); q[4] = sub(uu[1], uu[3]); rel(*uu)
                p[0] = add(e0, e1); p[8] = sub(e0, e1); rel(e0, e1)
                dm = sub(uv[1], uv[3]); dp = add(uv[1], uv[3])
                p[2] = fma(dm, C2, uv[0]); p[6] = fma(dm, C2, uv[0], nx=True)
                q[2] = fma(dp, C2, uv[2]); q[6] = fma(dp, C2, uv[2], ny=True)
                rel(dm, dp, *uv)
            else:
                w = [mix(base + 2 * j, True) for j in range(8)]
                aa = {}; bb = {}
                for j in (1, 2, 3):
                    aa[j] = sub(w[j], w[8 - j]); bb[j] = add(w[j], w[8 - j]); rel(w[j], w[8 - j])
                Ap = fma(aa[2], C2, w[0]); Am = fma(aa[2], C2, w[0], nx=True); rel(aa[2], w[0])
                t = mul(aa[1], C1); G1 = fma(aa[3], C3, t); rel(t)
                t = mul(aa[1], C3); G3 = fma(aa[3], C1, t, nx=True); rel(t, aa[1], aa[3])
                p[1] = add(Ap, G1); p[7] = sub(Ap, G1); p[3] = add(Am, G3); p[5] = sub(Am, G3); rel(Ap, Am, G1, G3)
                Bp = fma(bb[2], C2, w[4]); B3 = fma(bb[2], C2, w[4], ny=True); rel(bb[2], w[4])
                t = mul(bb[1], C3); H1 = fma(bb[3], C1, t); rel(t)
                t = mul(bb[1], C1); H3 = fma(bb[3], C3, t, nx=True); rel(t, bb[1], bb[3])
                q[1] = add(H1, Bp); q[7] = sub(H1, Bp); q[3] = add(H3, B3); q[5] = sub(H3, B3); rel(Bp, B3, H1, H3)
            return p, q

        a.lines = var[(1, parity)] = []
        pa, qa = dft(IN[0])
        a.lines = var[(2, parity)] = []
        pb, qb = dft(IN[1])
        tmpd = []
        for _ in range(4):
            r_ = alloc(); tmpd += [r_, r_ + 1]
        t2 = [alloc(), alloc()]
        cnt = [0]

        def st(reg, arr):
            d = tmpd[cnt[0] % len(tmpd)]; cnt[0] += 1
            a("v_cvt_pk_bf16_f32 %s, %s, %s" % (v(d), v(reg), v(reg + 1)))
            a("s_mov_b32 %s, %s" % (s(T1), hx(arr * 65536)))
            a("buffer_store_dword %s, v123, %s, %s offen%s" % (v(d), s(WS, 4), s(T1), SC1))

        rs = [2, 4, 6] if parity == 0 else [1, 3, 5, 7]
        a.lines = var[(3, parity, 0)] = []
        def comb(x, y, arr1, arr2):
            a("v_pk_add_f32 %s, %s, %s" % (v(t2[0], 2), v(x, 2), v(y, 2)))
            a("v_pk_add_f32 %s, %s, %s%s" % (v(t2[1], 2), v(x, 2), v(y, 2), NEG1))
            st(t2[0], arr1); st(t2[1], arr2)
        if parity == 0:
            comb(pa[0], pb[0], 0, 4); comb(pa[8], pb[8], 1, 5)
        for r_ in rs:
            comb(pa[r_], pb[r_], r_ * 8, r_ * 8 + 4); comb(qa[r_], qb[r_], r_ * 8 + 1, r_ * 8 + 5)
        a.lines = var[(3, parity, 1)] = []
        if parity == 0:
            st(pa[0], 0); st(pb[0], 1); st(pa[8], 4); st(pb[8], 5)
        for r_ in rs:
            a("v_pk_add_f32 %s, %s, %s%s" % (v(t2[0], 2), v(pa[r_], 2), v(qb[r_], 2), NEG1))
            a("v_pk_add_f32 %s, %s, %s" % (v(t2[1], 2), v(qa[r_], 2), v(pb[r_], 2)))
            st(t2[0], r_ * 8); st(t2[1], r_ * 8 + 1)
            a("v_pk_add_f32 %s, %s, %s" % (v(t2[0], 2), v(pa[r_], 2), v(qb[r_], 2)))
            a("v_pk_add_f32 %s, %s, %s%s" % (v(t2[1], 2), v(qa[r_], 2), v(pb[r_], 2), NEG1))
            st(t2[0], r_ * 8 + 4); st(t2[1], r_ * 8 + 5)

    def split(lines):
        idx = [i for i, x in enumerate(lines) if "buffer_store" in x]
        assert len(idx) == 16
        return lines[:idx[7] + 1], lines[idx[7] + 1:]

    def emit(cases):
        done = a0.newlabel("dd")
        labs = [a0.newlabel("dc") for _ in cases]
        uniq = []
        for l_, c in enumerate(cases):
            if c not in uniq:
                uniq.append(c)
        if len(uniq) == 2:
            a0("s_bitcmp1_b32 %s, 0" % s(sWAVE))
            a0("s_cbranch_scc1 %s" % labs[1])
            a0.lines += cases[0]; a0("s_branch %s" % done)
            a0.label(labs[1]); a0.lines += cases[1]
        else:
            for l_ in range(1, 4):
                a0("s_cmp_eq_u32 %s, %d" % (s(sWAVE), l_))
                a0("s_cbranch_scc1 %s" % labs[l_])
            for l_ in range(4):
                if l_:
                    a0.label(labs[l_])
                a0.lines += cases[l_]
                if l_ < 3:
                    a0("s_branch %s" % done)
        a0.label(done)

    def piece(n):
        if n == 0:
            a0.lines += head
        elif n == 1:
            emit([var[(1, l_ & 1)] + var[(2, l_ & 1)] for l_ in range(4)])
        else:
            emit([var[(3, l_ & 1, l_ >> 1)] for l_ in range(4)])
    return piece


def rowimg_frag_addr(a, dst0, dst1, rowbase_sgpr):
    a("v_and_b32 %s, 15, v3" % v(dst0))
    a("v_lshlrev_b32 %s, 7, %s" % (v(dst0), v(dst0)))
    a("v_lshrrev_b32 %s, 4, v3" % v(dst1))
    a("v_bfe_u32 v2, v3, 1, 3")
    a("v_xor_b32 %s, %s, v2" % (v(dst1), v(dst1)))
    a("v_lshl_add_u32 %s, %s, 4, %s" % (v(dst0), v(dst1), v(dst0)))
    a("v_add_u32 %s, %s, %s" % (v(dst0), s(rowbase_sgpr), v(dst0)))
    a("v_xor_b32 %s, 64, %s" % (v(dst1), v(dst0)))


def silu_tail(a, regs, tmp):
    for t in tmp:
        a("v_exp_f32 %s, %s" % (v(t), v(t)))
        a("v_exp_f32 %s, %s" % (v(t + 1), v(t + 1)))
    for t in tmp:
        a("v_pk_add_f32 %s, %s, 1.0 op_sel_hi:[1,0]" % (v(t, 2), v(t, 2)))
    for t in tmp:
        a("v_rcp_f32 %s, %s" % (v(t), v(t)))
        a("v_rcp_f32 %s, %s" % (v(t + 1), v(t + 1)))
    for r_, t in zip(regs, tmp):
        a("v_pk_mul_f32 %s, %s, %s" % (v(r_, 2), v(r_, 2), v(t, 2)))


def silu_pk(a, regs, tmp):
    for r_, t in zip(regs, tmp):
        a("v_pk_mul_f32 %s, %s, %s" % (v(t, 2), v(r_, 2), s(sNL2E, 2)))
    silu_tail(a, regs, tmp)


ACC1 = 128
vM0, vM1, vNa, vNb, vNc = 4, 5, 6, 7, 8
cM0, cM1, cNa, cNb, cNc = 9, 10, 11, 12, 13
vZ0, vZ1 = 14, 15


def compute_setup(a):
    a("s_lshr_b32 %s, %s, 1" % (s(sWM), s(sWAVE)))
    a("s_and_b32 %s, %s, 1" % (s(sWN), s(sWAVE)))
    a("s_lshl_b32 %s, s2, 15" % s(T0))
    a("s_lshl_b32 %s, %s, 13" % (s(T1), s(sWAVE)))
    a("s_add_u32 %s, %s, %s" % (s(T0), s(T0), s(T1)))
    a("s_add_u32 %s, %s, %s" % (s(T0), s(T0), hx(EX_OFF)))
    a("v_lshlrev_b32 v24, 4, v3")
    a("v_add_u32 v24, %s, v24" % s(T0))
    a("v_add_u32 v25, 4096, v24")
    a("s_lshl_b32 %s, %s, 13" % (s(T0), s(sWM)))
    rowimg_frag_addr(a, vM0, vM1, T0)
    a("s_lshl_b32 %s, %s, 13" % (s(T0), s(sWN)))
    a("s_add_u32 %s, %s, 16384" % (s(T0), s(T0)))
    rowimg_frag_addr(a, vZ0, vZ1, T0)
    a("v_lshrrev_b32 v18, 4, v3")
    a("v_bfe_u32 v17, v3, 2, 2")
    a("v_lshl_add_u32 v17, v18, 3, v17")
    a("v_mul_u32_u24 v17, 448, v17")
    a("v_and_b32 v19, 3, v3")
    a("v_lshl_add_u32 v17, v19, 3, v17")
    a("v_and_b32 v19, 1, v18")
    a("v_lshlrev_b32 v19, 5, v19")
    a("s_lshl_b32 %s, %s, 6" % (s(T0), s(sWN)))
    a("s_add_u32 %s, %s, 16384" % (s(T0), s(T0)))
    a("v_add_u32 v20, %s, v17" % s(T0))
    a("v_add_u32 %s, v20, v19" % v(vNa))
    a("v_sub_u32 %s, v20, v19" % v(vNb))
    a("s_lshl_b32 %s, %s, 5" % (s(T0), s(sWN)))
    a("v_xor_b32 v20, %s, v19" % s(T0))
    a("v_add_u32 v20, v20, v17")
    a("v_add_u32 %s, %d, v20" % (v(vNc), 16384 + 384))
    a("v_and_b32 v21, 1, v18")
    a("v_lshlrev_b32 v21, 5, v21")
    a("v_lshrrev_b32 v19, 1, v18")
    a("v_lshl_add_u32 v21, v19, 4, v21")
    a("s_lshl_b32 %s, %s, 4" % (s(T0), s(sRB)))
    a("s_add_u32 %s, %s, %s" % (s(T0), s(T0), s(sCB)))
    a("s_mul_i32 %s, %s, 49152" % (s(T1), s(T0)))
    a("s_lshl_b32 %s, %s, 13" % (s(T2), s(sWN)))
    a("s_add_u32 %s, %s, %s" % (s(T1), s(T1), s(T2)))
    a("s_lshl_b32 %s, %s, 12" % (s(T2), s(sWM)))
    a("s_add_u32 %s, %s, %s" % (s(T1), s(T1), s(T2)))
    a("s_add_u32 %s, %s, %s" % (s(T1), s(T1), hx(HR_OFF)))
    a("v_and_b32 v22, 15, v3")
    a("v_lshl_add_u32 v17, v22, 6, v21")
    a("v_add_u32 v17, %s, v17" % s(T1))
    a("s_lshl_b32 %s, %s, 13" % (s(T1), s(T0)))
    a("s_lshl_b32 %s, %s, 12" % (s(T2), s(sWN)))
    a("s_add_u32 %s, %s, %s" % (s(T1), s(T1), s(T2)))
    a("s_lshl_b32 %s, %s, 11" % (s(T2), s(sWM)))
    a("s_add_u32 %s, %s, %s" % (s(T1), s(T1), s(T2)))
    a("s_add_u32 %s, %s, %s" % (s(T1), s(T1), hx(HL_OFF)))
    a("v_and_b32 v20, 1, v18")
    a("v_lshl_add_u32 v20, v20, 4, v22")
    a("v_lshlrev_b32 v20, 5, v20")
    a("v_lshl_add_u32 v20, v19, 4, v20")
    a("v_add_u32 v20, %s, v20" % s(T1))
    a("s_lshl_b32 %s, %s, 7" % (s(T1), s(sWN)))
    a("s_add_u32 %s, %s, %d" % (s(T1), s(T1), CSB))
    a("v_lshlrev_b32 v26, 4, v18")
    a("v_add_u32 v26, %s, v26" % s(T1))
    a("s_lshl_b32 %s, %s, 6" % (s(T1), s(sWN)))
    a("s_add_u32 %s, %s, %d" % (s(T1), s(T1), CSB + 768))
    a("v_lshlrev_b32 v27, 4, v18")
    a("v_add_u32 v27, %s, v27" % s(T1))
    a("s_lshl_b32 %s, %s, 9" % (s(T1), s(sWM)))
    a("s_add_u32 %s, %s, %d" % (s(T1), s(T1), STB))
    a("v_lshlrev_b32 v28, 3, v22")
    a("v_add_u32 v28, %s, v28" % s(T1))
    for i in range(112):
        a("v_mov_b32 %s, 0" % v(ACC1 + i))
    a("s_mov_b32 %s, 0" % s(sSLOT))


def compute_g1_s1(a):
    ACC = ACC1
    FR = [32, 76]
    cZ0, cZ1 = cNa, cNb

    def set_addr(lst):
        return ["v_add_u32 %s, %s, %s" % (v(c), s(sSLOT), v(b)) for c, b in lst]

    def next_slot():
        return ["s_add_u32 s14, s14, %d" % G1SLOT, "s_cmp_eq_u32 s14, %d" % (G1SLOT * 3), "s_cselect_b32 s14, 0, s14"]

    G1A = [(cM0, vM0), (cM1, vM1), (cNa, vNa), (cNb, vNb), (cNc, vNc)]

    def s1_addr(k):
        return ["v_add_u32 %s, %s, %s" % (v(c), hx(S1SLOTS[k]), v(b)) for c, b in
                [(cM0, vM0), (cM1, vM1), (cZ0, vZ0), (cZ1, vZ1)]]

    def g1_reads(fs, ks):
        r = []
        for nt in range(7):
            ad = cNc if nt == 6 else (cNb if nt & 1 else cNa)
            off = 0 if nt == 6 else 128 * (nt >> 1) + 32 * (nt & 1)
            for h in range(2):
                r.append("ds_read_b64_tr_b16 %s, %s offset:%d" % (
                    v(FR[fs] + 16 + 4 * nt + 2 * h, 2), v(ad), ks * 14336 + h * 1792 + off))
            if nt < 4:
                r.append("ds_read_b128 %s, %s offset:%d" % (v(FR[fs] + 4 * nt, 4), v(cM1 if ks else cM0), nt * 2048))
        return r

    def g1_mfmas(fs):
        o = OPT.get("ord", "n")
        if o == "m":
            order = [(nt, mt) for mt in range(4) for nt in range(7)]
        elif o == "z":
            order = [(nt, mt if nt % 2 == 0 else 3 - mt) for nt in range(7) for mt in range(4)]
        else:
            order = [(nt, mt) for nt in range(7) for mt in range(4)]
        return [mfma(ACC + 4 * (nt * 4 + mt), FR[fs] + 16 + 4 * nt, FR[fs] + 4 * mt) for nt, mt in order]

    def g1_iter(extra_b=(), pre_bar=(), tail=(), flag=None):
        interleave(a, g1_mfmas(0), g1_reads(1, 1) + next_slot() + set_addr(G1A))
        a("s_waitcnt lgkmcnt(0)")
        a.all(pre_bar)
        fine(a)
        a("s_barrier")
        fine(a)
        interleave(a, g1_mfmas(1), g1_reads(0, 0) + list(extra_b))
        a("s_waitcnt lgkmcnt(0)")
        a.all(tail)

    def g1_loop(n):
        a("s_mov_b32 %s, 0" % s(sCNT))
        loop = a.newlabel("g1_loop")
        a.raw(".p2align 6")
        a.label(loop)
        g1_iter(["s_add_u32 s15, s15, 1", "s_cmp_lt_u32 s15, %d" % n], tail=["s_cbranch_scc1 %s" % loop])

    if OPT.get("sent", "none") == "pre":
        for i in range(4):
            a("v_mov_b32 %s, -1" % v(240 + i))
        for i in range(8):
            a("buffer_store_dwordx4 v[240:243], %s, %s, 0 offen offset:%d%s" % ("v25" if i >= 4 else "v24", s(WS, 4), (i & 3) * 1024, SC1))
    a.all(set_addr(G1A))
    mark(a, 3)
    a("s_barrier")
    mark(a, 4)
    a.all(g1_reads(0, 0))
    a("s_waitcnt lgkmcnt(0)")
    if STAMP:
        g1_loop(3)
        mark(a, 15)
        g1_loop(FLAGK - 3)
    else:
        g1_loop(FLAGK)
    g1_iter(pre_bar=["s_waitcnt vmcnt(0)"], flag="s")
    if STAMP:
        mark(a, 2)
        g1_loop(3)
        mark(a, 1)
        g1_loop(14 - FLAGK - 3)
    else:
        g1_loop(14 - FLAGK)
    interleave(a, g1_mfmas(0), g1_reads(1, 1) + s1_addr(0))
    a("s_waitcnt lgkmcnt(0)")
    a("s_barrier")
    CSR, STR = 32, 60
    rd = ["ds_read_b128 %s, v26 offset:%d" % (v(CSR + 4 * nt, 4), 256 * (nt >> 1) + 64 * (nt & 1)) for nt in range(6)]
    rd.append("ds_read_b128 %s, v27" % v(CSR + 24, 4))
    rd += ["ds_read_b64 %s, v28 offset:%d" % (v(STR + 2 * mt, 2), 128 * mt) for mt in range(4)]
    interleave(a, g1_mfmas(1), rd)
    mark(a, 5)
    a("s_waitcnt lgkmcnt(0)")
    RL = 68
    for mt in range(4):
        a("v_rcp_f32 %s, %s" % (v(RL + 2 * mt + 1), v(STR + 2 * mt + 1)))
        a("v_mul_f32 %s, %s, %s" % (v(RL + 2 * mt), s(sNL2E), v(STR + 2 * mt + 1)))
    TMP = 76
    PK = [88, 92, 96, 100, 104, 108, 112, 116]
    for pr in range(3):
        a("s_mov_b32 %s, %d" % (s(T0 + pr), pr * 16384))
    pki = 0
    groups = [[(mt, 2 * pr), (mt, 2 * pr + 1)] for mt in range(4) for pr in range(3)]
    groups.insert(6, [(0, 6), (1, 6)]); groups.append([(2, 6), (3, 6)])
    for gr in groups:
        regs = []; cs = []; mts = []
        for mt, nt in gr:
            b = ACC + 4 * (nt * 4 + mt)
            regs += [b, b + 2]; cs += [CSR + 4 * nt, CSR + 4 * nt + 2]; mts += [mt, mt]
        tmp = [TMP + 2 * i for i in range(4)]
        for r_, c_, mt in zip(regs, cs, mts):
            a("v_pk_fma_f32 %s, %s, %s, %s op_sel_hi:[1,0,1] neg_lo:[0,1,0] neg_hi:[0,1,0]" % (v(r_, 2), v(c_, 2), v(STR + 2 * mt, 2), v(r_, 2)))
        for r_, t, mt in zip(regs, tmp, mts):
            a("v_pk_mul_f32 %s, %s, %s op_sel_hi:[1,0]" % (v(t, 2), v(r_, 2), v(RL + 2 * mt, 2)))
        for t_ in tmp:
            a("v_exp_f32 %s, %s" % (v(t_), v(t_)))
            a("v_exp_f32 %s, %s" % (v(t_ + 1), v(t_ + 1)))
        for t_, mt in zip(tmp, mts):
            a("v_pk_fma_f32 %s, %s, %s, %s op_sel:[0,1,1]" % (v(t_, 2), v(t_, 2), v(RL + 2 * mt, 2), v(RL + 2 * mt, 2)))
        for t_ in tmp:
            a("v_rcp_f32 %s, %s" % (v(t_), v(t_)))
            a("v_rcp_f32 %s, %s" % (v(t_ + 1), v(t_ + 1)))
        for r_, t_ in zip(regs, tmp):
            a("v_pk_mul_f32 %s, %s, %s" % (v(r_, 2), v(r_, 2), v(t_, 2)))
        P = PK[pki % len(PK)]; pki += 1
        for i, r_ in enumerate(regs):
            a("v_cvt_pk_bf16_f32 %s, %s, %s" % (v(P + i), v(r_), v(r_ + 1)))
        a("s_nop 1")
        a("v_permlane16_swap_b32 %s, %s" % (v(P), v(P + 2)))
        a("v_permlane16_swap_b32 %s, %s" % (v(P + 1), v(P + 3)))
        mt, nt = gr[0]
        if nt < 6:
            a("buffer_store_dwordx4 %s, v17, %s, %s offen offset:%d%s" % (v(P, 4), s(WS, 4), s(T0 + nt // 2), mt * 1024, SC1))
        else:
            a("buffer_store_dwordx4 %s, v20, %s, 0 offen offset:%d%s" % (v(P, 4), s(WS, 4), (mt // 2) * 1024, SC1))
    mark(a, 6)
    fine_dump(a, 0)

    def s1_reads(fs, ks):
        r = []
        for t in range(4):
            r.append("ds_read_b128 %s, %s offset:%d" % (v(FR[fs] + 4 * t, 4), v(cM1 if ks else cM0), t * 2048))
            r.append("ds_read_b128 %s, %s offset:%d" % (v(FR[fs] + 16 + 4 * t, 4), v(cZ1 if ks else cZ0), t * 2048))
        return r

    def s1_mfmas(fs, first):
        return [mfma(ACC + 4 * (mt * 4 + nt), FR[fs] + 4 * mt, FR[fs] + 16 + 4 * nt, "0" if first else None)
                for mt in range(4) for nt in range(4)]

    HF = int(OPT.get("hf", "-1"))
    if HF == -1:
        a("s_waitcnt vmcnt(0)")
    a("s_barrier")
    a.all(s1_reads(0, 0))
    a("s_lshr_b32 %s, %s, 3" % (s(T0), s(sTAU)))
    a("s_and_b32 %s, %s, 3" % (s(T1), s(T0)))
    a("s_cmp_eq_u32 %s, 3" % s(T0))
    a("s_cselect_b32 %s, 1, %s" % (s(T1), s(T1)))
    a("s_lshr_b32 %s, %s, 2" % (s(T2), s(T0)))
    a("s_cmp_eq_u32 %s, 3" % s(T0))
    a("s_cselect_b32 %s, 8, %s" % (s(T2), s(T2)))
    a("s_lshl_b32 %s, %s, 19" % (s(T2), s(T2)))
    a("s_bfe_u32 %s, %s, 0x20001" % (s(T3), s(sTAU)))
    a("s_lshl_b32 %s, %s, 6" % (s(T3), s(T3)))
    a("s_lshl_b32 %s, %s, 5" % (s(T4), s(sWN)))
    a("s_add_u32 %s, %s, %s" % (s(T3), s(T3), s(T4)))
    a("v_and_b32 v17, 15, v3")
    a("v_add_u32 v17, %s, v17" % s(T3))
    a("v_sub_u32 v22, %d, v17" % (3 * 256 + 239))
    a("s_lshl_b32 %s, %s, 8" % (s(T1), s(T1)))
    a("v_add_u32 v17, %s, v17" % s(T1))
    a("s_and_b32 %s, %s, 1" % (s(T3), s(sTAU)))
    a("s_lshl_b32 %s, %s, 1" % (s(T3), s(T3)))
    a("s_add_u32 %s, %s, %s" % (s(T3), s(T3), s(sWM)))
    a("s_lshl_b32 %s, %s, 16" % (s(T3), s(T3)))
    a("s_add_u32 %s, %s, %s" % (s(T3), s(T3), hx(ZT_OFF)))
    a("v_add_u32 v23, %s, v21" % s(T3))
    a("v_lshl_add_u32 v17, v17, 6, v23")
    a("v_lshl_add_u32 v22, v22, 6, v23")
    a("s_waitcnt lgkmcnt(0)")
    for k in range(4):
        interleave(a, s1_mfmas(0, k == 0), s1_reads(1, 1) + (s1_addr(k + 1) if k < 3 else []))
        a("s_waitcnt lgkmcnt(0)")
        interleave(a, s1_mfmas(1, False), s1_reads(0, 0) if k < 3 else [])
        if k < 3:
            a("s_waitcnt lgkmcnt(0)")
        if k == 1:
            a("s_barrier")
        if k == HF:
            a("s_waitcnt vmcnt(0)")
            a("s_barrier")
            flag_store(a, "h")
    mark(a, 7)
    a("s_barrier")
    mark(a, 8)
    a("s_nop 7")
    TMP = 32
    PK = [56, 60, 64, 68, 72, 76, 80, 84]
    typeB = a.newlabel("s1_typeB"); done = a.newlabel("s1_done")
    a("s_and_b32 %s, %s, 29" % (s(T3), s(T0)))
    a("s_cmp_eq_u32 %s, 0" % s(T3))
    a("s_cbranch_scc1 %s" % typeB)
    tile = lambda m, n: ACC + 4 * (m * 4 + n)
    pki = 0
    for n in range(2):
        for uv in range(2):
            P = PK[pki]; pki += 1
            for m in range(2):
                for h in range(2):
                    if uv == 0:
                        a("v_pk_add_f32 %s, %s, %s" % (v(TMP + 2 * h, 2), v(tile(m, n) + 2 * h, 2), v(tile(m + 2, n + 2) + 2 * h, 2)))
                    else:
                        a("v_pk_add_f32 %s, %s, %s%s" % (v(TMP + 2 * h, 2), v(tile(m + 2, n) + 2 * h, 2), v(tile(m, n + 2) + 2 * h, 2), NEG1))
                for h in range(2):
                    a("v_cvt_pk_bf16_f32 %s, %s, %s" % (v(P + 2 * m + h), v(TMP + 2 * h), v(TMP + 2 * h + 1)))
            a("s_add_u32 %s, %s, %d" % (s(T3), s(T2), n * 1024 + uv * 262144))
            a("s_nop 0")
            a("v_permlane16_swap_b32 %s, %s" % (v(P), v(P + 2)))
            a("v_permlane16_swap_b32 %s, %s" % (v(P + 1), v(P + 3)))
            a("buffer_store_dwordx4 %s, v17, %s, %s offen%s" % (v(P, 4), s(WS, 4), s(T3), SC1))
    a("s_cmp_ge_u32 %s, 4" % s(T0))
    a("s_cbranch_scc1 %s" % done)
    a("s_mov_b32 %s, 0x80008000" % s(T4))
    pki = 0
    for n in range(2):
        for uv in range(2):
            P = PK[pki]; pki += 1
            a("s_add_u32 %s, %s, %d" % (s(T3), s(T2), (1 - n) * 1024 + uv * 262144))
            if uv:
                Q = PK[4 + n]
                for i in range(4):
                    a("v_xor_b32 %s, %s, %s" % (v(Q + i), s(T4), v(P + i)))
                P = Q
            a("buffer_store_dwordx4 %s, v22, %s, %s offen%s" % (v(P, 4), s(WS, 4), s(T3), SC1))
    a("s_branch %s" % done)
    a.label(typeB)
    pki = 0
    for n in range(2):
        for half in range(2):
            for uv in range(2):
                P = PK[pki]; pki += 1
                sg = "-" if uv else ""
                for m in range(2):
                    t = tile(m + 2 * half, n + 2 * uv)
                    for h in range(2):
                        a("v_cvt_pk_bf16_f32 %s, %s%s, %s%s" % (v(P + 2 * m + h), sg, v(t + 2 * h), sg, v(t + 2 * h + 1)))
                a("s_mov_b32 %s, %d" % (s(T3), half * 8 * 524288 + n * 1024 + uv * 262144))
                a("s_nop 0")
                a("v_permlane16_swap_b32 %s, %s" % (v(P), v(P + 2)))
                a("v_permlane16_swap_b32 %s, %s" % (v(P + 1), v(P + 3)))
                a("buffer_store_dwordx4 %s, v17, %s, %s offen%s" % (v(P, 4), s(WS, 4), s(T3), SC1))
    a.label(done)
    mark(a, 9)


def dma(a, ldsoff, vaddr, srd_, soff, coh=False):
    if OPT.get("nodma") == "1" and getattr(a, "skipdma", False):
        return
    a("s_add_u32 m0, %s, %d" % (s(sSLOT), ldsoff))
    a("s_nop 0")
    a("buffer_load_dwordx4 %s, %s, %s offen%s lds" % (v(vaddr), s(srd_, 4), s(soff), OPT.get("cohmod", "_sc1").replace("_", " ") if coh else ""))


LVA, LVB, LVC, LVD = 8, 12, 20, 24
CSD = 128


def g1_issue(a):
    for i in range(4):
        dma(a, i * 4096, LVA + i, XS, sKA)
    for i in range(7):
        dma(a, 16384 + i * 4096, LVB + i, W1, sKB)
    a("s_add_u32 %s, %s, 128" % (s(sKA), s(sKA)))
    a("s_add_u32 %s, %s, %d" % (s(sKB), s(sKB), 64 * 7168))
    a("s_add_u32 s14, s14, %d" % G1SLOT)
    a("s_cmp_eq_u32 s14, %s" % s(sWRAP))
    a("s_cselect_b32 s14, %s, s14" % s(sSL0))


def loader_setup(a):
    a("s_sub_u32 %s, %s, 4" % (s(sL), s(sWAVE)))
    a("s_and_b32 %s, %s, 1" % (s(T0), s(sL)))
    a("s_lshl_b32 %s, %s, 2" % (s(T0), s(T0)))
    a("v_lshrrev_b32 v4, 4, v3")
    a("v_add_u32 v4, %s, v4" % s(T0))
    a("v_and_b32 v5, 7, v3")
    a("v_xor_b32 v4, v4, v5")
    a("v_lshlrev_b32 v4, 4, v4")
    a("v_lshrrev_b32 v5, 3, v3")
    a("s_lshl_b32 %s, %s, 3" % (s(T0), s(sL)))
    a("v_add_u32 v5, %s, v5" % s(T0))
    a("v_lshlrev_b32 v30, 2, v3")
    a("s_lshl_b32 %s, %s, 10" % (s(sSL0), s(sL)))
    a("s_lshl_b32 %s, %s, 11" % (s(T0), s(sRB)))
    a("v_lshl_add_u32 v6, v5, 15, v4")
    a("v_add_u32 v6, %s, v6" % s(T0))
    for i in range(4):
        a("v_add_u32 %s, %s, v6" % (v(LVA + i), hx(i * 32 * 32768)))
    a("s_lshl_b32 %s, %s, 6" % (s(T0), s(sL)))
    a("v_add_u32 v6, %s, v3" % s(T0))
    a("s_mul_i32 %s, %s, 448" % (s(T1), s(sCB)))
    for i in range(7):
        a("v_add_u32 v7, %d, v6" % (256 * i))
        a("v_mul_u32_u24 v28, 2341, v7")
        a("v_lshrrev_b32 v28, 16, v28")
        a("v_mul_u32_u24 v29, 28, v28")
        a("v_sub_u32 v29, v7, v29")
        a("v_bfe_u32 v31, v28, 3, 1")
        a("v_lshlrev_b32 v31, 1, v31")
        a("v_xor_b32 v29, v29, v31")
        a("v_mul_u32_u24 v28, 7168, v28")
        a("v_lshl_add_u32 v28, v29, 4, v28")
        a("v_add_u32 %s, %s, v28" % (v(LVB + i), s(T1)))
    a("s_mov_b32 %s, %s" % (s(sSLOT), s(sSL0)))
    a("s_add_u32 %s, %s, %d" % (s(sWRAP), s(sSL0), G1SLOT * 3))
    a("s_mov_b32 %s, 0" % s(sKA))
    a("s_mov_b32 %s, 0" % s(sKB))
    a("v_and_b32 v6, 31, v3")
    a("v_lshrrev_b32 v7, 5, v3")
    a("v_mul_u32_u24 v7, 7168, v7")
    a("v_lshl_add_u32 v7, v6, 4, v7")
    a("s_xor_b32 %s, %s, %s" % (s(T0), s(sRB), OPT.get("csx", "0")))
    a("s_lshl_b32 %s, %s, 6" % (s(T0), s(T0)))
    a("s_lshl_b32 %s, %s, 4" % (s(T2), s(sL)))
    a("s_add_u32 %s, %s, %s" % (s(T0), s(T0), s(T2)))
    a("s_mul_i32 %s, %s, 7168" % (s(T0), s(T0)))
    a("s_add_u32 %s, %s, %s" % (s(T0), s(T0), s(T1)))
    a("v_add_u32 v7, %s, v7" % s(T0))
    a("v_cmp_gt_u32 vcc, 28, v6")
    a("v_mov_b32 v28, 0x7f000000")
    a("s_nop 0")
    a("v_cndmask_b32 v7, v28, v7, vcc")
    g1_issue(a)
    a("s_barrier")
    for i in range(8):
        a("s_mov_b32 %s, %d" % (s(T0), i * 2 * 7168))
        a("buffer_load_dwordx4 %s, v7, %s, %s offen" % (v(CSD + 4 * i, 4), s(W1, 4), s(T0)))
    for _ in range(int(OPT.get("early", "3")) - 1):
        g1_issue(a)
    pf_addr(a)


def pf_addr(a):
    a("s_lshl_b32 %s, s2, 2" % s(T0))
    a("s_add_u32 %s, %s, %s" % (s(T0), s(T0), s(sL)))
    a("s_mul_i32 %s, %s, 7168" % (s(T1), s(T0)))
    a("v_lshlrev_b32 v124, 4, v3")
    a("v_add_u32 v124, %s, v124" % s(T1))
    a("v_add_u32 v125, 4096, v124")
    a("s_lshr_b32 %s, %s, 1" % (s(T2), s(T0)))
    a("v_lshrrev_b32 v126, 5, v3"); a("v_lshlrev_b32 v126, 11, v126"); a("v_and_b32 v127, 31, v3"); a("v_lshl_add_u32 v126, v127, 4, v126")
    a("s_lshl_b32 %s, %s, 12" % (s(T3), s(T2))); a("v_add_u32 v126, %s, v126" % s(T3))
    a("v_lshrrev_b32 v127, 4, v3"); a("v_lshlrev_b32 v127, 12, v127"); a("v_and_b32 v2, 15, v3"); a("v_lshl_add_u32 v127, v2, 4, v127")
    a("s_lshl_b32 %s, %s, 14" % (s(T3), s(T2))); a("v_add_u32 v127, %s, v127" % s(T3))


def pf_pair(a, vaddr, sre, sim):
    l2 = a.newlabel("pf2"); l3 = a.newlabel("pf3")
    a("s_bitcmp1_b32 %s, 0" % s(sWAVE))
    a("s_cbranch_scc1 %s" % l2)
    a("buffer_load_dwordx4 v[244:247], %s, %s, 0 offen" % (v(vaddr), s(sre, 4)))
    a("s_branch %s" % l3)
    a.label(l2)
    a("buffer_load_dwordx4 v[244:247], %s, %s, 0 offen" % (v(vaddr), s(sim, 4)))
    a.label(l3)


def loader_g1_s1(a):
    AC = CSD + 32
    PFS = OPT.get("pf", "s") == "s"
    PFT = OPT.get("pf", "s").startswith("t")
    PFK = 99 if PFS else int(OPT.get("pf", "99").lstrip("t"))
    EARLY = int(OPT.get("early", "3"))
    q = ["g0"] * 11 + ["csl"] * 8 + [x for i in range(1, EARLY) for x in ["g%d" % i] * 11]

    def issue(st):
        g1_issue(a); q.extend(["g%d" % st] * 11)

    def need(*tags):
        idx = max(i for i, x in enumerate(q) if x in tags)
        n = len(q) - idx - 1
        del q[:idx + 1]
        return n

    def bar(*tags, lg=False):
        n = need(*tags)
        fine(a)
        a("s_waitcnt vmcnt(%d)%s" % (n, " lgkmcnt(0)" if lg else ""))
        fine(a)
        a("s_barrier")

    def prefetch():
        a.c("warm the memory-side cache with this wave's share of w2 and of the C slices")
        if PFT:
            a("v_mul_u32_u24 v2, 48, v3")
            a("v_add_u32 v124, v124, v2")
            a("v_add_u32 v125, v125, v2")
            a("buffer_load_dword v244, v124, %s, 0 offen" % s(W2, 4))
            a("buffer_load_dword v244, v125, %s, 0 offen" % s(W2, 4))
            q.extend(["pf"] * 2)
        else:
            for i in range(7):
                a("buffer_load_dwordx4 v[244:247], %s, %s, 0 offen offset:%d" % ("v125" if i >= 4 else "v124", s(W2, 4), (i & 3) * 1024))
            q.extend(["pf"] * 7)
        pf_pair(a, 127, CR, CI)
        q.append("pf")

    def cs_chunk(rng):
        for i in rng:
            for d in range(4):
                src = CSD + 4 * i + d
                t_ = AC + 2 * d if i == 0 else AC + 8 + 2 * d
                a("v_lshlrev_b32 %s, 16, %s" % (v(t_), v(src)))
                a("v_and_b32 %s, %s, %s" % (v(t_ + 1), s(sHI), v(src)))
            if i:
                for d in range(4):
                    a("v_pk_add_f32 %s, %s, %s" % (v(AC + 2 * d, 2), v(AC + 2 * d, 2), v(AC + 8 + 2 * d, 2)))

    def after0():
        cs_chunk(range(0, 4))

    def after1():
        cs_chunk(range(4, 8))
        a("v_lshrrev_b32 v28, 5, v3")
        a("s_lshl_b32 %s, %s, 1" % (s(T0), s(sL)))
        a("v_add_u32 v28, %s, v28" % s(T0))
        a("v_lshlrev_b32 v28, 10, v28")
        a("v_and_b32 v29, 31, v3")
        a("v_lshl_add_u32 v28, v29, 5, v28")
        a("v_add_u32 v28, %d, v28" % CSP)
        a("ds_write_b128 v28, %s" % v(AC, 4))
        a("ds_write_b128 v28, %s offset:16" % v(AC + 4, 4))
        a("s_waitcnt lgkmcnt(0)")

    def after2():
        a("s_lshl_b32 %s, %s, 8" % (s(T0), s(sL)))
        a("v_add_u32 v19, %s, v30" % s(T0))
        a("v_add_u32 v29, %d, v19" % CSP)
        for i in range(8):
            a("ds_read_b32 %s, v29 offset:%d" % (v(CSD + i), i * 1024))
        a("s_lshl_b32 %s, %s, 14" % (s(T0), s(sCB)))
        a("s_lshl_b32 %s, %s, 10" % (s(T1), s(sRB)))
        a("s_add_u32 %s, %s, %s" % (s(T1), s(T1), s(T0)))
        a("s_add_u32 %s, %s, %s" % (s(T1), s(T1), hx(CS_OFF)))
        tag_ready(a)
        a("v_lshrrev_b32 v31, 3, v3")
        a("v_lshlrev_b32 v31, 7, v31")
        a("v_and_b32 v28, 7, v3")
        a("v_lshl_add_u32 v31, v28, 2, v31")
        a("v_add_u32 v31, %s, v31" % hx(SF_OFF))
        a("s_waitcnt lgkmcnt(0)")
        for st in (4, 2, 1):
            for i in range(st):
                a("v_add_f32 %s, %s, %s" % (v(CSD + i), v(CSD + i), v(CSD + i + st)))
        a("buffer_store_dword %s, v19, %s, %s offen%s" % (v(CSD), s(WS, 4), s(T1), SC1))
        q.append("cs_store")

    def after3():
        a("s_lshr_b32 %s, %s, 3" % (s(T0), s(sTAU)))
        a("s_lshl_b32 %s, %s, 17" % (s(T1), s(T0)))
        a("s_and_b32 %s, %s, 1" % (s(T2), s(sTAU)))
        a("s_lshl_b32 %s, %s, 15" % (s(T3), s(T2)))
        a("s_add_u32 %s, %s, %s" % (s(T1), s(T1), s(T3)))
        a("s_add_u32 %s, %s, %s" % (s(T1), s(T1), hx(CB_OFF)))
        a("v_lshl_add_u32 v6, v5, 9, v4")
        a("v_add_u32 v6, %s, v6" % s(T1))
        for i in range(4):
            a("v_add_u32 %s, %s, v6" % (v(LVC + i), hx((i & 1) * 65536 + (i >> 1) * 32 * 512)))
        a("s_and_b32 %s, %s, 3" % (s(T1), s(T0)))
        a("s_cmp_eq_u32 %s, 3" % s(T0))
        a("s_cselect_b32 %s, 1, %s" % (s(T1), s(T1)))
        a("s_lshl_b32 %s, %s, 11" % (s(T1), s(T1)))
        a("s_bfe_u32 %s, %s, 0x20001" % (s(T3), s(sTAU)))
        a("s_lshl_b32 %s, %s, 19" % (s(T3), s(T3)))
        a("s_add_u32 %s, %s, %s" % (s(T1), s(T1), s(T3)))
        a("v_lshl_add_u32 v6, v5, 13, v4")
        a("v_add_u32 v6, %s, v6" % s(T1))
        for i in range(4):
            a("v_add_u32 %s, %s, v6" % (v(LVD + i), hx((i >> 1) * 32 * 8192)))
        a("s_lshl_b32 %s, s2, 15" % s(T0))
        a("s_lshl_b32 %s, %s, 13" % (s(T1), s(sL)))
        a("s_add_u32 %s, %s, %s" % (s(T0), s(T0), s(T1)))
        a("s_add_u32 %s, %s, %s" % (s(T0), s(T0), hx(EX_OFF)))
        a("v_lshlrev_b32 v6, 4, v3")
        a("v_add_u32 v6, %s, v6" % s(T0))
        a("v_add_u32 v7, 4096, v6")
        for i in range(4):
            a("v_mov_b32 %s, -1" % v(240 + i))

    def sentinel(i):
        a("buffer_store_dwordx4 v[240:243], %s, %s, 0 offen offset:%d%s" % ("v7" if i >= 4 else "v6", s(WS, 4), (i & 3) * 1024, SC1))
        q.append("sent")

    def after9():
        poll_issue(a, CSD + 20, 31, 4); q.extend(["poll"] * 4)

    def after11():
        a.c("fetch 4 of the 16 partial column sums of this column block per wave, and this class's row stats")
        a("s_lshl_b32 %s, %s, 14" % (s(T0), s(sCB)))
        a("s_lshl_b32 %s, %s, 12" % (s(T1), s(sL)))
        a("s_add_u32 %s, %s, %s" % (s(T0), s(T0), s(T1)))
        a("s_add_u32 %s, %s, %s" % (s(T0), s(T0), hx(CS_OFF)))
        a("v_lshlrev_b32 v28, 4, v3")
        for i in range(4):
            a("buffer_load_dwordx4 %s, v28, %s, %s offen offset:%d%s" % (v(CSD + 4 * i, 4), s(WS, 4), s(T0), i * 1024, SC1))
        a("s_lshl_b32 %s, %s, 10" % (s(T0), s(sRB)))
        a("s_add_u32 %s, %s, %s" % (s(T0), s(T0), hx(STAT_OFF)))
        a("buffer_load_dword %s, v19, %s, %s offen%s" % (v(CSD + 16), s(WS, 4), s(T0), SC1))
        q.extend(["fetch"] * 5)

    def after13():
        a("s_waitcnt vmcnt(%d)" % need("fetch"))
        for d, x in ((0, 4), (2, 6), (8, 12), (10, 14), (0, 8), (2, 10)):
            a("v_pk_add_f32 %s, %s, %s" % (v(CSD + d, 2), v(CSD + d, 2), v(CSD + x, 2)))
        a("s_lshl_b32 %s, %s, 10" % (s(T0), s(sL)))
        a("s_add_u32 %s, %s, %d" % (s(T0), s(T0), CSP))
        a("v_add_u32 v28, %s, v28" % s(T0))
        a("ds_write_b128 v28, %s" % v(CSD, 4))
        a("v_add_u32 v28, %d, v19" % STB)
        a("ds_write_b32 v28, %s" % v(CSD + 16))
        a("s_waitcnt lgkmcnt(0)")

    def after14():
        a("v_add_u32 v28, %d, v19" % CSP)
        for i in range(4):
            a("ds_read_b32 %s, v28 offset:%d" % (v(CSD + i), i * 1024))
        a("v_add_u32 v28, %d, v19" % CSB)
        a("s_waitcnt lgkmcnt(0)")
        a("v_add_f32 %s, %s, %s" % (v(CSD), v(CSD), v(CSD + 1)))
        a("v_add_f32 %s, %s, %s" % (v(CSD + 2), v(CSD + 2), v(CSD + 3)))
        a("v_add_f32 %s, %s, %s" % (v(CSD), v(CSD), v(CSD + 2)))
        a("ds_write_b32 v28, %s" % v(CSD))

    hooks = {0: after0, 1: after1, 2: after2, 9: after9, 11: after11, 13: after13, 14: after14}
    after3()
    for st in range(EARLY, 3):
        issue(st)
    if OPT.get("cov", "0") == "1":
        a("s_cmp_lt_u32 %s, 8" % s(sRB))
        a("s_mov_b32 %s, %d" % (s(T1), 512 * 7168))
        a("s_cselect_b32 %s, %s, %s" % (s(T1), s(T1), hx(-512 * 7168)))
        a("v_add_u32 v2, %s, v7" % s(T1))
        for i in range(8):
            a("s_mov_b32 %s, %d" % (s(T0), i * 2 * 7168))
            a("buffer_load_dwordx4 v[244:247], v2, %s, %s offen" % (s(W1, 4), s(T0)))
        q.extend(["pf"] * 8)
    pf_pair(a, 126, DR, DI); q.append("pf")
    if PFK == -1:
        prefetch()
    if PFS:
        pf_pair(a, 127, CR, CI); q.append("pf")
        a("s_lshl_b32 %s, s2, 2" % s(T0))
        a("s_add_u32 %s, %s, %s" % (s(T0), s(T0), s(sL)))
        a("s_mul_i32 %s, %s, 7168" % (s(T0), s(T0)))
        a("s_add_u32 s30, %s, %s" % (s(W2), s(T0)))
        a("s_addc_u32 s31, %s, 0" % s(W2 + 1))
    bar("g0")
    for k in range(15):
        tags = ["g%d" % (k + 1)]
        if k == FLAGK:
            tags.append("cs_store")
        if k == 11:
            fine(a)
            a("s_waitcnt vmcnt(%d)" % need("g12", "poll"))
            poll_check(a, CSD + 20, 31, "exec", True, 4)
            fine(a)
            a("s_barrier")
        else:
            bar(*tags)
        if k + 3 <= 15:
            issue(k + 3)
        if k == FLAGK:
            flag_store(a, "s")
        if k in hooks:
            hooks[k]()
        if 4 <= k <= 11 and OPT.get("sent", "none") == "g1":
            sentinel(k - 4)
        if k == 4 and OPT.get("sent", "none") == "g1b":
            for i in range(8):
                sentinel(i)
        if k == PFK:
            prefetch()
        if PFS and 3 <= k <= 11:
            for i in range(13 * (k - 3), min(112, 13 * (k - 2))):
                a("s_load_dword s29, s[30:31], %d" % (i * 64))

    def issue_s1(k):
        a("s_add_u32 %s, %s, %d" % (s(sSLOT), s(sSL0), S1SLOTS[k]))
        a("s_mov_b32 %s, %d" % (s(sKA), k * 128))
        for i in range(4):
            dma(a, i * 4096, LVC + i, WS, sKA, coh=True)
        for i in range(4):
            dma(a, 16384 + i * 4096, LVD + i, DI if i & 1 else DR, sKA)

    issue_s1(2)
    fine_dump(a, 0)
    a("s_waitcnt lgkmcnt(0)")
    a("s_barrier")
    for k in (0, 1, 3):
        issue_s1(k)
    g2_loader_setup(a)
    a("s_mul_i32 %s, %s, %d" % (s(T0), s(sKH), 1792 * 2048))
    a("s_lshl_b32 %s, %s, 7" % (s(T1), s(sNB8)))
    a("s_add_u32 %s, %s, %s" % (s(T0), s(T0), s(T1)))
    a("s_and_b32 %s, %s, 7" % (s(T1), s(sLOC)))
    a("s_cmp_ge_u32 %s, 4" % s(T1))
    a("s_cselect_b32 %s, %d, 0" % (s(sADJ), 192 * 2048))
    a("s_lshl_b32 %s, %s, 2" % (s(T1), s(T1)))
    a("s_add_u32 %s, %s, %s" % (s(T1), s(T1), s(sL)))
    a("s_lshl_b32 %s, %s, 12" % (s(T1), s(T1)))
    a("s_add_u32 %s, %s, %s" % (s(T0), s(T0), s(T1)))
    a("s_add_u32 s30, %s, %s" % (s(W2), s(T0)))
    a("s_addc_u32 s31, %s, 0" % s(W2 + 1))
    a("s_and_b32 %s, %s, 4" % (s(sP3), s(sCB8)))
    a("s_and_b32 %s, %s, 4" % (s(sP3), s(sCB8)))
    for st in range(NRB()):
        g2_koff(a, st, False, True)
        for i in range(4):
            a("buffer_load_dwordx4 %s, %s, %s, %s offen" % (v(RBB + 16 * st + 4 * i, 4), v(GVB + i), s(W2, 4), s(sKB)))
    a("v_lshlrev_b32 %s, 4, v3" % v(GWA))
    a("v_add_u32 %s, %s, %s" % (v(GWA), s(sSL0), v(GWA)))
    a("s_waitcnt vmcnt(%d)" % (4 * NRB()))
    a("s_barrier")
    flag_store(a, "h")


RBB = 64
XL = 0
GVX = 62
SOLOB = 65536
RXL = 32768
FLAGK = 5
SYNC = 159744
GWA = 60


def NRB():
    return int(OPT.get("nrb", "0"))


PF_G1 = 28
sADJ = 95


def w2_prefetch(a, halves):
    last = None
    for hs in halves:
        st, r = divmod(hs, 2)
        if st != last:
            if st < NREG:
                j, p_ = divmod(st, 3)
                a("s_xor_b32 s96, %s, %d" % (s(sP3), j))
                a("s_mul_i32 s96, s96, %d" % (224 * 2048))
                if p_:
                    a("s_add_u32 s96, s96, %d" % (p_ * 64 * 2048))
            else:
                a("s_add_u32 s96, %s, %d" % (s(sADJ), (448 * (st - NREG) + 192) * 2048))
            last = st
        for c in (0, 64, 128 * US(), 128 * US() + 64):
            a("s_load_dword s29, s[30:31], s96 offset:%d" % (r * 2048 + c))


def g2_koff(a, st, want_a, want_b):
    j, p_ = divmod(st, 3)
    a("s_xor_b32 %s, %s, %d" % (s(T0), s(sP3), j))
    if want_a:
        a("s_mul_i32 %s, %s, 49152" % (s(sKA), s(T0)))
        if p_:
            a("s_add_u32 %s, %s, %d" % (s(sKA), s(sKA), p_ * 16384))
    if want_b:
        a("s_mul_i32 %s, %s, %d" % (s(sKB), s(T0), 224 * 2048))
        if p_:
            a("s_add_u32 %s, %s, %d" % (s(sKB), s(sKB), p_ * 64 * 2048))


NJ = 28
NREG = 24
NSOLO = 4


def compute_g2(a):
    ACC = 128; ACY = 192; XR = 224; RX = 96
    FR = [32, 64]
    gN0, gZ0, gZ1 = 6, 7, 8
    cN = 11
    a("v_and_b32 v17, 15, v3")
    a("v_lshlrev_b32 v17, 15, v17")
    a("s_lshl_b32 %s, %s, 21" % (s(T0), s(sWM)))
    a("s_lshl_b32 %s, %s, 11" % (s(T1), s(sCLS)))
    a("s_add_u32 %s, %s, %s" % (s(T0), s(T0), s(T1)))
    a("s_lshl_b32 %s, %s, 7" % (s(T1), s(sNB8)))
    a("s_add_u32 %s, %s, %s" % (s(T0), s(T0), s(T1)))
    a("s_mul_i32 %s, %s, %d" % (s(T1), s(sKH), 128 * US()))
    a("s_add_u32 %s, %s, %s" % (s(T0), s(T0), s(T1)))
    a("s_lshl_b32 %s, %s, 6" % (s(T1), s(sWN)))
    a("s_add_u32 %s, %s, %s" % (s(T0), s(T0), s(T1)))
    a("v_add_u32 v17, %s, v17" % s(T0))
    a("v_lshrrev_b32 v19, 1, v18")
    a("s_lshl_b32 %s, %s, 2" % (s(T1), s(sWN)))
    a("v_add_u32 v19, %s, v19" % s(T1))
    a("v_bfe_u32 v20, v3, 1, 3")
    a("v_xor_b32 v19, v19, v20")
    a("v_lshlrev_b32 v19, 4, v19")
    a("v_and_b32 v20, 1, v18")
    a("v_lshl_add_u32 v19, v20, 3, v19")
    a("v_and_b32 v20, 15, v3")
    a("v_lshl_add_u32 v19, v20, 7, v19")
    a("s_lshl_b32 %s, %s, 13" % (s(T1), s(sWM)))
    a("s_add_u32 %s, %s, %d" % (s(T1), s(T1), XL))
    a("v_add_u32 v19, %s, v19" % s(T1))
    a("v_xor_b32 v27, 32, v19")
    for mt in range(4):
        a("s_mov_b32 %s, %d" % (s(T3 + mt), mt * 16 * 16 * 2048))
    a("v_add_u32 v17, v17, v21")
    a("s_lshl_b32 %s, %s, 12" % (s(T0), s(sWN)))
    a("s_add_u32 %s, %s, 16384" % (s(T0), s(T0)))
    rowimg_frag_addr(a, gZ0, gZ1, T0)
    a("v_bfe_u32 v20, v3, 2, 2")
    a("v_lshl_add_u32 v23, v18, 3, v20")
    a("v_lshlrev_b32 v23, 8, v23")
    a("v_and_b32 v22, 3, v3")
    a("v_lshl_add_u32 v23, v22, 3, v23")
    a("v_and_b32 v22, 1, v18")
    a("v_lshl_or_b32 v20, v22, 2, v20")
    a("s_lshl_b32 %s, %s, 1" % (s(T0), s(sWN)))
    a("s_lshl_b32 %s, %s, 2" % (s(T1), s(sKH)))
    a("s_add_u32 %s, %s, %s" % (s(T0), s(T0), s(T1)))
    a("v_xor_b32 v20, %s, v20" % s(T0))
    a("v_lshl_add_u32 v23, v20, 5, v23")
    a("v_add_u32 %s, 16384, v23" % v(gN0))
    a("v_mov_b32 v28, 0xff")
    a("v_mov_b32 v31, %s" % s(sTAG))
    a("v_xor_b32 v15, 0x20000, v24")
    a("v_xor_b32 v16, 0x20000, v25")
    for i in range(96):
        a("v_mov_b32 %s, 0" % v(ACC + i))
    a("s_mov_b32 %s, %d" % (s(sSLOT), 4 * G2SLOT))

    def set_addr(joint):
        r = ["v_add_u32 %s, s14, %s" % (v(cM0), v(vM0)), "v_add_u32 %s, s14, %s" % (v(cM1), v(vM1))]
        if joint:
            r.append("v_add_u32 %s, s14, %s" % (v(cN), v(gN0)))
            for nt, x in ((1, 32), (2, 128), (3, 160)):
                r.append("v_xor_b32 %s, %d, %s" % (v(cN + nt), x, v(cN)))
        else:
            r += ["v_add_u32 %s, s14, %s" % (v(cN), v(gZ0)), "v_add_u32 %s, s14, %s" % (v(cN + 1), v(gZ1))]
        return r

    def next_slot():
        return ["s_add_u32 s14, s14, %d" % G2SLOT, "s_cmp_eq_u32 s14, %d" % (G2SLOT * 5), "s_cselect_b32 s14, 0, s14"]

    def reads(fs, ks, joint):
        r = []
        for t in range(4):
            if joint:
                for h in range(2):
                    r.append("ds_read_b64_tr_b16 %s, %s offset:%d" % (v(FR[fs] + 16 + 4 * t + 2 * h, 2), v(cN + t), ks * 8192 + h * 1024))
            elif t < 2:
                r.append("ds_read_b128 %s, %s offset:%d" % (v(FR[fs] + 16 + 4 * t, 4), v(cN + ks), t * 2048))
            r.append("ds_read_b128 %s, %s offset:%d" % (v(FR[fs] + 4 * t, 4), v(cM1 if ks else cM0), t * 2048))
        return r

    ot = lambda mt, nt: ACC + 4 * (nt * 4 + mt)

    def jm(fs, order=(0, 1, 2, 3)):
        o = OPT.get("ord", "n")
        if o == "m" and order == (0, 1, 2, 3):
            od = [(nt, mt) for mt in range(4) for nt in order]
        elif o == "z" and order == (0, 1, 2, 3):
            od = [(nt, mt if nt % 2 == 0 else 3 - mt) for nt in order for mt in range(4)]
        else:
            od = [(nt, mt) for nt in order for mt in range(4)]
        return [mfma(ot(mt, nt), FR[fs] + 16 + 4 * nt, FR[fs] + 4 * mt) for nt, mt in od]

    def sm(fs):
        return [mfma(ACY + 4 * (nt * 4 + mt), FR[fs] + 16 + 4 * nt, FR[fs] + 4 * mt) for nt in range(2) for mt in range(4)]

    a.all(set_addr(True))
    a("s_barrier")
    mark(a, 10)
    a.all(reads(0, 0, True))
    a("s_mov_b32 %s, 0" % s(sCNT))
    a("s_waitcnt lgkmcnt(0)")

    def joint_iter(nxt_joint, extra=(), pre_bar=(), flag=None, bar=True):
        nr = OPT.get("noread") == "1"
        interleave(a, jm(0), ([] if nr else reads(1, 1, True)) + next_slot() + set_addr(nxt_joint), per=int(OPT.get("g2per", "2")))
        a("s_waitcnt lgkmcnt(0)")
        a.all(pre_bar)
        fine(a)
        if bar:
            a("s_barrier")
        fine(a)
        interleave(a, jm(1), ([] if nr else reads(0, 0, True)) + list(extra), per=1)
        a("s_waitcnt lgkmcnt(0)")

    ZK = int(OPT.get("zk", "6"))

    def g2_loop(n):
        a("s_mov_b32 %s, 0" % s(sCNT))
        loop = a.newlabel("g2_loop")
        a.raw(".p2align 6")
        a.label(loop)
        joint_iter(True, ["s_add_u32 s15, s15, 1", "s_cmp_lt_u32 s15, %d" % n])
        a("s_cbranch_scc1 %s" % loop)

    g2_loop(ZK)
    joint_iter(True, pre_bar=["s_waitcnt vmcnt(0)"], flag="z")
    mark(a, 26)
    g2_loop(NJ - 2 - ZK)
    SM = [[32 + 4 * i for i in range(8)], [64 + 4 * i for i in range(8)]]
    SN = [[96 + 4 * i for i in range(4)], [112 + 4 * i for i in range(4)]]

    def sreads(fs):
        r = []
        for ks in range(2):
            for nt in range(2):
                r.append("ds_read_b128 %s, %s offset:%d" % (v(SN[fs][2 * ks + nt], 4), v(cN + ks), nt * 2048))
            for mt in range(4):
                r.append("ds_read_b128 %s, %s offset:%d" % (v(SM[fs][4 * ks + mt], 4), v(cM1 if ks else cM0), mt * 2048))
        return r

    def smf(fs):
        return [mfma(ACY + 4 * (nt * 4 + mt), SN[fs][2 * ks + nt], SM[fs][4 * ks + mt])
                for ks in range(2) for nt in range(2) for mt in range(4)]

    def solo_addr(j):
        return ["v_add_u32 %s, %s, %s" % (v(c), hx(SOLOB + j * 24576), v(b))
                for c, b in ((cM0, vM0), (cM1, vM1), (cN, gZ0), (cN + 1, gZ1))]

    interleave(a, jm(0), reads(1, 1, True) + solo_addr(0), per=2)
    a("s_waitcnt lgkmcnt(0)")
    a("s_barrier")
    m = jm(1, (2, 3, 0, 1))
    interleave(a, m[:8], sreads(0) + solo_addr(1), per=2)
    for i in range(8):
        a(m[8 + i])
        b = ACC + 32 + 4 * i
        for j in range(4):
            a("v_bfi_b32 %s, v28, v31, %s" % (v(b + j), v(b + j)))
        a("buffer_store_dwordx4 %s, %s, %s, 0 offen offset:%d sc1" % (v(b, 4), "v16" if i >= 4 else "v15", s(WS, 4), (i & 3) * 1024))
    a("s_waitcnt lgkmcnt(0)")
    mark(a, 11)
    for k in range(NSOLO):
        last = k == NSOLO - 1
        interleave(a, smf(k & 1), [] if last else sreads(1 - (k & 1)) + (solo_addr(k + 2) if k + 2 < NSOLO else []), per=2)
        if not last:
            a("s_waitcnt lgkmcnt(0)")
        if k == int(OPT.get("rxj", "2")):
            a("s_barrier")
    mark(a, 12)
    a("v_lshlrev_b32 v26, 4, v3")
    a("s_lshl_b32 %s, %s, 13" % (s(T0), s(sWAVE)))
    a("s_add_u32 %s, %s, %d" % (s(T0), s(T0), RXL))
    a("v_add_u32 v26, %s, v26" % s(T0))
    a("s_barrier")
    for mt in range(4):
        for nt in range(2):
            a("ds_read_b64 %s, %s offset:%d" % (v(XR + 4 * mt + 2 * nt, 2), "v27" if nt else "v19", mt * 2048))
    for i in range(8):
        a("ds_read_b128 %s, v26 offset:%d" % (v(RX + 4 * i, 4), i * 1024))
    a("s_waitcnt lgkmcnt(8)")
    for i in range(16):
        a("v_lshlrev_b32 %s, 16, %s" % (v(32 + 2 * i), v(XR + i)))
        a("v_and_b32 %s, %s, %s" % (v(33 + 2 * i), s(sHI), v(XR + i)))
    a("s_waitcnt lgkmcnt(0)")
    mark(a, 13)
    TMP = 80
    PK = [64, 68, 72, 76]
    MIMIC = OPT.get("mimic", "0") == "1"

    def rnd(regs, t):
        for i, r_ in enumerate(regs):
            a("v_cvt_pk_bf16_f32 %s, %s, %s" % (v(t + i), v(r_), v(r_ + 1)))
        for i, r_ in enumerate(regs):
            a("v_lshlrev_b32 %s, 16, %s" % (v(r_), v(t + i)))
            a("v_and_b32 %s, %s, %s" % (v(r_ + 1), s(sHI), v(t + i)))

    for mt in range(4):
        offs = [4 * mt, 4 * mt + 2, 16 + 4 * mt, 16 + 4 * mt + 2]
        o = [ACC + x for x in offs]
        y = [ACY + x for x in offs]
        xf = [32 + 8 * mt + 2 * i for i in range(4)]
        for i in range(4):
            a("v_pk_add_f32 %s, %s, %s" % (v(o[i], 2), v(o[i], 2), v(RX + offs[i], 2)))
        if MIMIC:
            rnd(o, 48)
        silu_pk(a, o, [TMP + 2 * i for i in range(4)])
        if MIMIC:
            rnd(o, 48)
            rnd(y, 52)
        if MIMIC:
            for i in range(4):
                a("v_pk_mul_f32 %s, %s, %s" % (v(o[i], 2), v(o[i], 2), v(y[i], 2)))
            rnd(o, 48)
            for i in range(4):
                a("v_pk_add_f32 %s, %s, %s" % (v(o[i], 2), v(o[i], 2), v(xf[i], 2)))
        else:
            for i in range(4):
                a("v_pk_fma_f32 %s, %s, %s, %s" % (v(o[i], 2), v(o[i], 2), v(y[i], 2), v(xf[i], 2)))
        P = PK[mt]
        for i in range(4):
            a("v_cvt_pk_bf16_f32 %s, %s, %s" % (v(P + i), v(o[i]), v(o[i] + 1)))
        a("s_nop 1")
        a("v_permlane16_swap_b32 %s, %s" % (v(P), v(P + 2)))
        a("v_permlane16_swap_b32 %s, %s" % (v(P + 1), v(P + 3)))
        a("buffer_store_dwordx4 %s, v17, %s, %s offen%s" % (v(P, 4), s(OUT, 4), s(T3 + mt), OPT.get("outmod", "_sc0_sc1").replace("_", " ")))
    flag_store(a, "epoch", 0)
    mark(a, 14)
    fine_dump(a, 1)
    a("s_endpgm")


GVA, GVB, GVA2, GVB2, GVC, GVD = 32, 36, 40, 44, 48, 52
GZA, GHA = 58, 59


def g2_loader_setup(a):
    a("v_lshrrev_b32 v6, 4, v3")
    a("s_lshr_b32 %s, %s, 1" % (s(T0), s(sL)))
    a("s_lshl_b32 %s, %s, 2" % (s(T0), s(T0)))
    a("v_or_b32 v7, %s, v6" % s(T0))
    a("v_lshlrev_b32 v7, 1, v7")
    a("v_and_b32 v28, 15, v3")
    a("v_xor_b32 v7, v7, v28")
    a("v_lshlrev_b32 v7, 4, v7")
    a("v_lshl_add_u32 v6, v6, 11, v7")
    a("s_mul_i32 %s, %s, %d" % (s(T0), s(sKH), 1792 * 2048))
    a("s_lshl_b32 %s, %s, 13" % (s(T1), s(sL)))
    a("s_add_u32 %s, %s, %s" % (s(T0), s(T0), s(T1)))
    a("s_lshl_b32 %s, %s, 7" % (s(T1), s(sNB8)))
    a("s_add_u32 %s, %s, %s" % (s(T0), s(T0), s(T1)))
    a("v_add_u32 v6, %s, v6" % s(T0))
    a("v_and_b32 v7, 128, v7")
    a("v_mul_u32_u24 v7, %d, v7" % (US() - 1))
    a("v_add_u32 v6, v6, v7")
    for i in range(4):
        a("v_add_u32 %s, %s, v6" % (v(GVB + i), hx(i * 16 * 2048)))
    for i in range(2):
        a("v_add_u32 %s, %s, v6" % (v(GVB2 + i), hx(((i + 2) * 16 + 192) * 2048)))
    a("s_lshl_b32 %s, %s, 4" % (s(T0), s(sCLS)))
    a("s_lshl_b32 %s, %s, 3" % (s(T1), s(sKH)))
    a("s_add_u32 %s, %s, %s" % (s(T0), s(T0), s(T1)))
    a("s_mul_i32 %s, %s, 49152" % (s(T1), s(T0)))
    a("s_add_u32 %s, %s, %s" % (s(T1), s(T1), hx(HR_OFF)))
    a("s_lshl_b32 %s, %s, 13" % (s(T2), s(T0)))
    a("s_add_u32 %s, %s, %s" % (s(T2), s(T2), hx(HL_OFF)))
    a("v_and_b32 v6, 64, v4")
    a("v_lshlrev_b32 v6, 7, v6")
    a("v_and_b32 v7, 48, v4")
    a("v_add_u32 v7, v7, v6")
    a("v_lshl_add_u32 v7, v5, 6, v7")
    a("v_add_u32 v7, %s, v7" % s(T1))
    for i in range(4):
        a("v_add_u32 %s, %d, v7" % (v(GVA + i), i * 32 * 64))
    a("v_and_b32 v7, 32, v4")
    a("v_lshl_add_u32 v6, v7, 7, v6")
    a("v_and_b32 v7, 16, v4")
    a("v_add_u32 v6, v6, v7")
    a("v_lshl_add_u32 v6, v5, 5, v6")
    a("v_add_u32 v6, %s, v6" % s(T2))
    for i in range(4):
        a("v_add_u32 %s, %d, v6" % (v(GVA2 + i), i * 32 * 32))
    a("s_cmp_gt_u32 %s, 8" % s(sCLS))
    a("s_cselect_b32 %s, -1, 0" % s(T0))
    a("s_sub_u32 %s, 16, %s" % (s(T2), s(sCLS)))
    a("s_cmp_gt_u32 %s, 8" % s(sCLS))
    a("s_cselect_b32 %s, %s, %s" % (s(T1), s(T2), s(sCLS)))
    a("s_lshl_b32 %s, %s, 19" % (s(T2), s(T1)))
    a("s_add_u32 %s, %s, %s" % (s(T2), s(T2), hx(ZT_OFF)))
    for i in range(4):
        a("v_add_u32 v6, %d, v5" % (32 * i))
        a("v_lshlrev_b32 v6, 4, v6")
        a("v_add_u32 v6, %s, v6" % s(sCLS))
        a("v_xor_b32 v6, %s, v6" % s(T0))
        a("v_subrev_u32 v6, %s, v6" % s(T0))
        a("v_and_b32 v6, 2047, v6")
        a("v_lshl_add_u32 %s, v6, 12, v4" % v(GVC + i))
    a("s_lshl_b32 %s, %s, 6" % (s(T3), s(sNB8)))
    a("s_mul_i32 %s, %s, %d" % (s(T4), s(sKH), 64 * US()))
    a("s_add_u32 %s, %s, %s" % (s(T3), s(T3), s(T4)))
    for i in range(2):
        a("v_add_u32 v6, %d, v5" % (32 * i))
        a("v_add_u32 v6, %s, v6" % s(T3))
        a("v_xor_b32 v6, %s, v6" % s(T0))
        a("v_subrev_u32 v6, %s, v6" % s(T0))
        a("v_and_b32 v7, 3, v6")
        a("v_bfe_u32 v6, v6, 2, 8")
        a("v_lshl_add_u32 v6, v7, 8, v6")
        a("v_and_b32 v7, 48, v4")
        a("v_lshl_add_u32 v6, v6, 6, v7")
        a("v_and_b32 v7, 64, v4")
        a("v_lshl_add_u32 v6, v7, 10, v6")
        a("v_add_u32 %s, %s, v6" % (v(GVD + i), s(T2)))
    a("s_lshl_b32 %s, %s, 1" % (s(T3), s(T3)))
    a("s_lshl_b32 %s, %s, 11" % (s(T4), s(sCLS)))
    a("s_add_u32 %s, %s, %s" % (s(T3), s(T3), s(T4)))
    a("v_lshl_add_u32 v6, v5, 15, v4")
    a("v_add_u32 %s, %s, v6" % (v(GVX), s(T3)))
    a("s_and_b32 %s, %s, 7" % (s(T3), s(T1)))
    a("s_lshl_b32 %s, %s, 9" % (s(T3), s(T3)))
    a("s_add_u32 %s, %s, %s" % (s(T3), s(T3), hx(ZF_OFF - SF_OFF)))
    a("v_add_u32 %s, %s, v31" % (v(GZA), s(T3)))
    a("s_andn2_b32 %s, %s, 127" % (s(T2), s(sHF)))
    a("v_and_b32 v6, 7, v3")
    a("v_lshlrev_b32 v6, 2, v6")
    a("v_add_u32 %s, %s, v6" % (v(GHA), s(T2)))
    a("s_and_b32 %s, %s, 4" % (s(T2), s(sCB8)))
    a("s_lshl_b32 %s, 15, %s" % (s(sMK), s(T2)))
    a("s_xor_b32 %s, %s, 255" % (s(sMK + 2), s(sMK)))
    a("s_bitset0_b32 %s, %s" % (s(sMK), s(sCB8)))
    a("s_mov_b32 %s, 0" % s(sMK + 1))
    a("s_mov_b32 %s, 0" % s(sMK + 3))


def loader_g2(a):
    a("s_add_u32 %s, %s, %d" % (s(sWRAP), s(sSL0), G2SLOT * 5))
    NT = NJ + NSOLO
    q = []

    def slot_of(st):
        a("s_add_u32 %s, %s, %d" % (s(sSLOT), s(sSL0), ((st + 4) % 5) * G2SLOT))

    def issue(st, want_a=True, want_b=True):
        slot_of(st)
        if st < NREG:
            breg = want_b and st < NRB()
            want_b = want_b and not breg
            if want_a or want_b:
                g2_koff(a, st, want_a, want_b)
            if want_a:
                for i in range(4):
                    dma(a, i * 4096, GVA + i, WS, sKA, coh=True)
            if want_b:
                for i in range(4):
                    dma(a, 16384 + i * 4096, GVB + i, W2, sKB)
            if breg:
                a("v_add_u32 v6, %s, %s" % (hx(((st + 4) % 5) * G2SLOT + 16384), v(GWA)))
                for i in range(4):
                    a("ds_write_b128 v6, %s offset:%d" % (v(RBB + 16 * st + 4 * i, 4), i * 4096))
            q.extend([st] * (4 * want_a + 4 * want_b))
        elif st < NJ:
            lam = st - NREG
            a("s_mov_b32 %s, %d" % (s(sKA), lam * 16384))
            a("s_mov_b32 %s, %d" % (s(sKB), (448 * lam + 192) * 2048))
            for i in range(4):
                dma(a, i * 4096, GVA2 + i, WS, sKA, coh=True)
            for i in range(2):
                dma(a, 16384 + i * 4096, GVB + i, W2, sKB)
            for i in range(2):
                dma(a, 16384 + (i + 2) * 4096, GVB2 + i, W2, sKB)
            q.extend([st] * 8)
        else:
            k = st - NJ
            a("s_add_u32 %s, %s, %d" % (s(sSLOT), s(sSL0), SOLOB + k * 24576))
            a("s_mov_b32 %s, %d" % (s(sKA), (k & 1) * 128))
            a("s_mov_b32 %s, %d" % (s(sKB), (k & 1) * 131072 + (k >> 1) * 262144))
            for i in range(4):
                dma(a, i * 4096, GVC + i, CI if k >= 2 else CR, sKA)
            for i in range(2):
                dma(a, 16384 + i * 4096, GVD + i, WS, sKB, coh=True)
            q.extend([st] * 6)

    def wait(*tags):
        idx = max(i for i, x in enumerate(q) if x in tags)
        a("s_waitcnt vmcnt(%d)" % (len(q) - idx - 1))
        del q[:idx + 1]

    assert NRB() == 0
    issue(0, want_a=False)
    if int(OPT.get("pw", "0")):
        w2_prefetch(a, range(10, 10 + int(OPT.get("pw", "0"))))
    a("s_barrier")
    issue(1, want_a=False)
    issue(2, want_a=False)
    top = a.newlabel("pre"); got = a.newlabel("got"); nogot = a.newlabel("nogot")
    a("s_mov_b32 %s, 0" % s(T6))
    a("s_mov_b32 %s, 0" % s(T7))
    a.label(top)
    poll_issue(a, 29, GHA)
    a("s_waitcnt vmcnt(0)")
    a("s_add_u32 %s, %s, 1" % (s(T7), s(T7)))
    poll_test(a, 29, s(sMK, 2))
    a("s_cbranch_scc0 %s" % got)
    a("s_sleep 2")
    a("s_cmp_lt_u32 %s, %s" % (s(T7), OPT.get("np", "2")))
    a("s_cbranch_scc1 %s" % top)
    a("s_branch %s" % nogot)
    a.label(got)
    mark(a, 9)
    for st in range(3):
        issue(st, want_b=False)
    a("s_mov_b32 %s, 1" % s(T6))
    a.label(nogot)
    a("s_barrier")
    late = a.newlabel("late"); go = a.newlabel("go")
    a("s_cmp_eq_u32 %s, 0" % s(T6))
    a("s_cbranch_scc1 %s" % late)
    issue(3)
    a("s_waitcnt vmcnt(16)")
    a("s_barrier")
    issue(4)
    a("s_waitcnt vmcnt(20)")
    a("s_branch %s" % go)
    a.label(late)
    for st in range(3, 5):
        issue(st, want_a=False)
    poll_check(a, 29, GHA, s(sMK, 2), False)
    mark(a, 8)
    issue(0, want_b=False)
    issue(1, want_b=False)
    a("s_waitcnt vmcnt(4)")
    a("s_barrier")
    for st in range(2, 5):
        issue(st, want_b=False)
    a("s_waitcnt vmcnt(12)")
    a.label(go)
    del q[:]
    q.extend([1] + [2] * 4 + [3] * 4 + [4] * 4)
    nxt = 5
    a.skipdma = True
    for k in range(0, NJ):
        last_issue = min(k + 5, NT - 1) if k < NJ - 3 else NT - 1
        tags = [k + 1] if k < NJ - 1 else [NT - 1]
        chk = None
        if nxt <= 12 <= last_issue:
            tags.append("p2"); chk = "h2"
        if nxt <= NJ <= last_issue:
            tags.append("p3"); chk = "z"
        fine(a)
        if k > 0:
            wait(*tags)
        else:
            q.remove(1)
        if chk == "h2":
            poll_check(a, 29, GHA, s(sMK + 2, 2), True)
        elif chk is not None:
            a("s_mov_b32 %s, -1" % s(sMK))
            poll_check(a, 29, GZA, s(sMK, 2), True)
        fine(a)
        a("s_barrier")
        while nxt <= last_issue:
            issue(nxt); nxt += 1
        PD = int(OPT.get("pd", "9"))
        if PD and k + 5 + PD < NJ:
            w2_prefetch(a, [2 * (k + 5 + PD), 2 * (k + 5 + PD) + 1])
        if k == int(OPT.get("zk", "6")):
            flag_store(a, "z")
        if k == NJ - 2:
            assert (k + 4) % 5 * G2SLOT == XL
            a("s_add_u32 %s, %s, %d" % (s(sSLOT), s(sSL0), XL))
            for i in range(4):
                a("s_mov_b32 %s, %d" % (s(sKA), i * 32 * 32768))
                dma(a, i * 4096, GVX, XS, sKA)
            q.extend(["x"] * 4)
        if k == 3:
            poll_issue(a, 29, GHA); q.append("p2")
        if k == NJ - 9:
            poll_issue(a, 29, GZA); q.append("p3")
    assert (NJ - 1 + 4) % 5 * G2SLOT == RXL
    RX = 64
    a("s_lshl_b32 %s, s2, 15" % s(T0))
    a("s_lshl_b32 %s, %s, 13" % (s(T1), s(sL)))
    a("s_add_u32 %s, %s, %s" % (s(T0), s(T0), s(T1)))
    a("s_add_u32 %s, %s, %s" % (s(T0), s(T0), hx(EX_OFF)))
    a("v_lshlrev_b32 v6, 4, v3")
    a("v_add_u32 v24, %s, v6" % s(T0))
    a("v_add_u32 v25, 4096, v24")
    a("s_add_u32 %s, %s, %d" % (s(T1), s(T1), RXL))
    a("v_add_u32 v6, %s, v6" % s(T1))
    a("v_mov_b32 v28, 0xff")
    a("v_mov_b32 v31, %s" % s(sTAG))
    a("s_barrier")
    top = a.newlabel("rx"); ok = a.newlabel("rxok")
    a("s_mov_b32 %s, 0" % s(T7))
    a.label(top)
    for i in range(8):
        a("buffer_load_dwordx4 %s, %s, %s, 0 offen offset:%d sc1" % (v(RX + 4 * i, 4), "v25" if i >= 4 else "v24", s(WS, 4), (i & 3) * 1024))
    a("s_waitcnt vmcnt(0)")
    a("v_or3_b32 v26, %s, %s, %s" % (v(RX), v(RX + 1), v(RX + 2)))
    a("v_bitop3_b32 v27, %s, %s, %s bitop3:0x80" % (v(RX), v(RX + 1), v(RX + 2)))
    for i in range(3, 31, 2):
        a("v_or3_b32 v26, v26, %s, %s" % (v(RX + i), v(RX + i + 1)))
        a("v_bitop3_b32 v27, v27, %s, %s bitop3:0x80" % (v(RX + i), v(RX + i + 1)))
    a("v_or_b32 v26, v26, %s" % v(RX + 31))
    a("v_and_b32 v27, v27, %s" % v(RX + 31))
    a("v_xor_b32 v26, v26, v31")
    a("v_xor_b32 v27, v27, v31")
    a("v_or_b32 v26, v26, v27")
    a("v_and_b32 v26, v26, v28")
    a("v_cmp_ne_u32 vcc, 0, v26")
    a("s_add_u32 %s, %s, 1" % (s(T7), s(T7)))
    a("s_nop 3")
    a("s_cbranch_vccz %s" % ok)
    a("s_sleep 2")
    a("s_cmp_lt_u32 %s, %d" % (s(T7), SPIN_MAX))
    a("s_cbranch_scc1 %s" % top)
    a.label(ok)
    for i in range(8):
        for j in range(4):
            a("v_bfi_b32 %s, v28, 0, %s" % (v(RX + 4 * i + j), v(RX + 4 * i + j)))
        a("ds_write_b128 v6, %s offset:%d" % (v(RX + 4 * i, 4), i * 1024))
    mark(a, 11, T7)
    fine_dump(a, 1)
    a("s_waitcnt lgkmcnt(0)")
    a("s_barrier")
    a("s_endpgm")


HEADER = """; Kernarg layout (88 bytes, ptrs only, base s[0:1]): 0 A_x, 8 dft_seq_re, 16 dft_seq_im, 24 dft_hid_re,
"""


def main():
    global STAMP
    args = sys.argv[1:]
    global FINE, NSGPR
    if "--fine" in args:
        FINE = True; NSGPR = 102; args.remove("--fine")
    if "--stamp" in args:
        STAMP = True; args.remove("--stamp")
    for x in list(args):
        if x.startswith("--") and "=" in x:
            k, val = x[2:].split("="); OPT[k] = val; args.remove(x)
    a = Asm()
    a.raw(HEADER.rstrip("\n"))
    nv = 256 if (STAMP or FINE or OPT.get('dbgt') == '1') else 248
    a.raw("; @launch grid=(256,1,1) block=(512,1,1) lds=163840")
    a.raw('.amdgcn_target "amdgcn-amd-amdhsa--gfx950"')
    a.raw(".text")
    name = NAME + "_kernel"
    kernel_header(a, name)
    prologue(a, "L_end")
    if FINE:
        a("s_mov_b32 s100, 0")
        a("v_mov_b32 v250, 0")
    mark(a, 0)
    a("s_cmp_ge_u32 %s, 4" % s(sWAVE))
    a("s_cbranch_scc1 L_loader")
    compute_setup(a)
    a("s_barrier")
    prep_ln(a)
    a("s_waitcnt lgkmcnt(0)")
    tag_ready(a)
    a("v_mov_b32 v29, %d" % SYNC)
    a("v_mov_b32 v30, 1")
    a("s_mov_b64 exec, 1")
    a("ds_add_u32 v29, v30")
    a("s_mov_b64 exec, -1")
    a("s_mov_b32 %s, 0" % s(T7))
    a.label("L_sync")
    a("ds_read_b32 v30, v29")
    a("s_add_u32 %s, %s, 1" % (s(T7), s(T7)))
    a("s_waitcnt lgkmcnt(0)")
    a("v_readfirstlane_b32 %s, v30" % s(T6))
    a("s_cmp_ge_u32 %s, %d" % (s(T7), SPIN_MAX))
    a("s_cbranch_scc1 L_synced")
    a("s_cmp_lt_u32 %s, 4" % s(T6))
    a("s_cbranch_scc1 L_sync")
    a.label("L_synced")
    dft = prep_dft(a)
    dft(0)
    a("s_waitcnt lgkmcnt(0)")
    dft(1)
    dft(3)
    compute_g1_s1(a)
    compute_g2(a)
    a.label("L_loader")
    if OPT.get("lprio", "0") != "0":
        a("s_setprio %s" % OPT.get("lprio", "0"))
    loader_setup(a)
    loader_g1_s1(a)
    loader_g2(a)
    a.label("L_end")
    a("s_endpgm")
    a.raw('.section .rodata,"a"')
    a.raw(kernel_desc(name, nv, NSGPR).rstrip("\n"))
    out = args[0] if args else "cdna_kernels/%s.s" % NAME
    open(out, "w").write(a.text())


if __name__ == "__main__":
    main()
```

```python
import math, struct, sys

NAME = "recurrent_scan__spectral_fnet__dense_activation_silu__prompt"

CS_OFF = 0x0000000
STAT_OFF = 0x0040000
HF_OFF = 0x0050000
SF_OFF = 0x0052000
ZF_OFF = 0x0054000
EP_OFF = 0x0058000
CB_OFF = 0x0400000
ZT_OFF = 0x0800000
HR_OFF = 0x0D00000
HL_OFF = 0x1900000
EX_OFF = 0x1C00000
STAMP_OFF = 0x4000000
WS_SZ = 0x10000000

STAMP = False
SC1 = " sc1"
SPIN_MAX = 200000
OPT = {}

G1SLOT = 45056
G2SLOT = 32768
STG = 143360
CSP = 135168
CSB = 161792
STB = 162816
S1SLOTS = [0, 32768, 65536, 98304]

sWAVE, sXCD, sLOC, sRB, sCB, sTAU, sCLS, sCB8, sKH = 3, 4, 5, 6, 7, 8, 9, 10, 11
sWM, sWN, sSLOT, sCNT = 12, 13, 14, 15
sL = 12
T0, T1, T2, T3, T4, T5, T6, T7 = 16, 17, 18, 19, 20, 21, 22, 23
sNB8 = 39
sTAG, sMK = 38, 76
sSP, sHALF, sHF = 26, 27, 28
WS, W1, DR, DI, W2, CR, CI, XS, OUT, DBG = 40, 44, 48, 52, 56, 60, 64, 68, 72, 76
sNL2E, sHI = 80, 82
C1, C2, C3 = 84, 86, 88
sKA, sKB, sWRAP, sSL0, sP3 = 90, 91, 92, 93, 94
NSGPR = 100


def f32(x):
    return struct.unpack("<I", struct.pack("<f", x))[0]


def hx(x):
    return "0x%x" % (x & 0xFFFFFFFF)


def v(i, n=1):
    return "v%d" % i if n == 1 else "v[%d:%d]" % (i, i + n - 1)


def s(i, n=1):
    return "s%d" % i if n == 1 else "s[%d:%d]" % (i, i + n - 1)


class Asm:
    def __init__(self):
        self.lines = []
        self.uid = 0

    def __call__(self, txt):
        self.lines.append("    " + txt)

    def label(self, l):
        self.lines.append(l + ":")

    def newlabel(self, p):
        self.uid += 1
        return "L_%s_%d" % (p, self.uid)

    def c(self, txt):
        self.lines.append("    ; " + txt)

    def raw(self, txt):
        self.lines.append(txt)

    def all(self, lst):
        for x in lst:
            self(x)

    def text(self):
        return "\n".join(self.lines) + "\n"


def srd(a, dst, ptr, off, size):
    if off:
        a("s_add_u32 %s, %s, %s" % (s(dst), s(ptr), hx(off)))
        a("s_addc_u32 %s, %s, 0" % (s(dst + 1), s(ptr + 1)))
    else:
        a("s_mov_b32 %s, %s" % (s(dst), s(ptr)))
        a("s_mov_b32 %s, %s" % (s(dst + 1), s(ptr + 1)))
    a("s_mov_b32 %s, %s" % (s(dst + 2), hx(size)))
    a("s_mov_b32 %s, 0x20000" % s(dst + 3))


def kernel_header(a, name):
    a.raw(".globl %s" % name)
    a.raw(".p2align 8")
    a.raw(".type %s,@function" % name)
    a.label(name)


def kernel_desc(name, vgpr, sgpr):
    acc = (vgpr + 3) // 4 * 4
    return "\n".join([
        ".p2align 6",
        ".amdhsa_kernel %s" % name,
        "  .amdhsa_next_free_vgpr %d" % vgpr,
        "  .amdhsa_next_free_sgpr %d" % sgpr,
        "  .amdhsa_accum_offset %d" % acc,
        "  .amdhsa_group_segment_fixed_size 0",
        "  .amdhsa_kernarg_size 88",
        "  .amdhsa_user_sgpr_count 2",
        "  .amdhsa_user_sgpr_kernarg_segment_ptr 1",
        "  .amdhsa_system_sgpr_workgroup_id_x 1",
        ".end_amdhsa_kernel",
    ]) + "\n"


NEG1 = " neg_lo:[0,1] neg_hi:[0,1]"


def mark(a, idx, extra=None):
    if idx == 0 and not getattr(a, "dt0", False):
        a.dt0 = True
        dbgt(a, 15, neg=True)
        dbgt(a, 0)
    elif idx in (3, 4, 5, 6, 7, 10, 11, 13) and extra is None:
        dbgt(a, idx)
    elif idx == 14:
        dbgt(a, 14, few=False)
    if not STAMP:
        return
    lab = a.newlabel("nost")
    a("s_and_b32 s96, %s, 3" % s(sWAVE))
    a("s_cmp_lg_u32 s96, 0")
    a("s_cbranch_scc1 %s" % lab)
    a("s_memrealtime s[96:97]")
    a("s_memtime s[98:99]")
    a("s_waitcnt lgkmcnt(0)")
    a("v_mov_b32 v252, s96")
    a("v_mov_b32 v253, %s" % ("s98" if extra is None else s(extra)))
    a("s_lshl_b32 s96, s2, 8")
    a("s_lshl_b32 s97, %s, 5" % s(sWAVE))
    a("s_add_u32 s96, s96, s97")
    a("s_add_u32 s96, s96, %s" % hx(STAMP_OFF + idx * 8))
    a("v_mov_b32 v254, s96")
    a("buffer_store_dwordx2 v[252:253], v254, %s, 0 offen" % s(WS, 4))
    a.label(lab)


FINE = False


def dbgt(a, idx, neg=False, few=True):
    if OPT.get("dbgt") != "1":
        return
    lab = a.newlabel("nodt")
    a("s_cmp_lg_u32 %s, 0" % s(sWAVE))
    a("s_cbranch_scc1 %s" % lab)
    if few:
        a("s_cmp_ge_u32 s2, 8")
        a("s_cbranch_scc1 %s" % lab)
    a("s_memrealtime s[96:97]")
    a("s_waitcnt lgkmcnt(0)")
    if neg:
        a("s_not_b32 s96, s96")
    a("v_mov_b32 v252, s96")
    a("v_mov_b32 v253, %d" % (4 * idx))
    a("s_mov_b64 exec, 1")
    a("global_atomic_umax v253, v252, s[34:35] sc1")
    a("s_mov_b64 exec, -1")
    a.label(lab)


def fine(a):
    if not FINE:
        return
    a("s_memtime s[98:99]")
    a("s_waitcnt lgkmcnt(0)")
    a("s_mov_b32 m0, s100")
    a("s_nop 0")
    a("v_writelane_b32 v250, s98, m0")
    a("s_add_u32 s100, s100, 1")


def fine_dump(a, slot):
    if not FINE:
        return
    a("s_lshl_b32 s96, s2, 11")
    a("s_lshl_b32 s97, %s, 8" % s(sWAVE))
    a("s_add_u32 s96, s96, s97")
    a("s_add_u32 s96, s96, %s" % hx(STAMP_OFF + 0x100000 * (1 + slot)))
    a("v_lshlrev_b32 v251, 2, v3")
    a("buffer_store_dword v250, v251, %s, s96 offen" % s(WS, 4))
    a("s_mov_b32 s100, 0")
    a("s_nop 1")
    a("v_mov_b32 v250, 0")


def interleave(a, main, fill, per=1, start=0):
    fi = 0
    for i, m in enumerate(main):
        a(m)
        if i >= start:
            for _ in range(per):
                if fi < len(fill):
                    a(fill[fi]); fi += 1
    while fi < len(fill):
        a(fill[fi]); fi += 1


def mfma(d, sa, sb, c=None):
    return "v_mfma_f32_16x16x32_bf16 %s, %s, %s, %s" % (v(d, 4), v(sa, 4), v(sb, 4), v(d, 4) if c is None else c)


def prologue(a, endlab):
    a("s_cmp_ge_u32 s2, 256")
    a("s_cbranch_scc1 %s" % endlab)
    if OPT.get("cpf", "1") == "1":
        a("s_getpc_b64 s[96:97]")
        a.label("L_pc")
        a("s_lshr_b32 s98, s2, 3")
        a("s_lshl_b32 s98, s98, 13")
        a("v_lshl_add_u32 v2, v0, 4, s98")
        a("v_cmp_gt_u32 vcc, L_end-L_pc, v2")
        a("s_and_saveexec_b64 s[98:99], vcc")
        a("s_cbranch_execz L_nocpf")
        a("global_load_dwordx4 v[244:247], v2, s[96:97]")
        a.label("L_nocpf")
        a("s_mov_b64 exec, -1")
    a("s_load_dwordx16 s[16:31], s[0:1], 0")
    a("s_load_dwordx4 s[32:35], s[0:1], 64")
    a("s_load_dwordx2 s[36:37], s[0:1], 80")
    a("v_lshrrev_b32 v1, 6, v0")
    a("v_and_b32 v3, 63, v0")
    a("s_and_b32 %s, s2, 7" % s(sXCD))
    a("s_lshr_b32 %s, s2, 3" % s(sLOC))
    a("v_readfirstlane_b32 %s, v1" % s(sWAVE))
    a("s_and_b32 s6, s4, 1"); a("s_lshl_b32 s6, s6, 3"); a("s_and_b32 s7, s5, 7"); a("s_add_u32 s6, s6, s7")
    a("s_lshr_b32 s7, s4, 1"); a("s_lshl_b32 s7, s7, 2"); a("s_lshr_b32 s8, s5, 3"); a("s_add_u32 s7, s7, s8")
    a("s_lshl_b32 s8, s4, 5"); a("s_add_u32 s8, s8, s5")
    a("s_mov_b32 s9, s6")
    a("s_lshr_b32 s11, s7, 3")
    a("s_and_b32 s10, s7, 7")
    a("s_mov_b32 %s, %s" % (s(sNL2E), hx(f32(-1.4426950408889634))))
    a("s_mov_b32 %s, %s" % (s(sNL2E + 1), hx(f32(-1.4426950408889634))))
    a("s_mov_b32 %s, 0xffff0000" % s(sHI))
    a("s_lshr_b32 s38, %s, 1" % s(sTAU))
    a("s_and_b32 s39, %s, 1" % s(sTAU))
    a("v_lshlrev_b32 v26, 18, v1")
    a("v_and_b32 v27, 31, v3")
    a("v_lshl_add_u32 v26, v27, 3, v26")
    a("v_lshrrev_b32 v27, 5, v3")
    a("v_lshl_add_u32 v26, v27, 9, v26")
    a("s_lshl_b32 s95, s38, 11")
    a("v_add_u32 v26, s95, v26")
    a("s_lshl_b32 s95, s39, 8")
    a("v_add_u32 v26, s95, v26")
    a("v_xor_b32 v27, 0x100, v26")
    a("v_mov_b32 v28, %d" % SYNC)
    a("v_mov_b32 v29, 0")
    a("ds_write_b32 v28, v29")
    a("s_waitcnt lgkmcnt(0)")
    srd(a, XS, 16, 0, 2048 * 1024 * 2)
    a("s_cmp_ge_u32 %s, 4" % s(sWAVE))
    a("s_cbranch_scc1 L_nox")
    for ri, B in enumerate(RAWB):
        a("s_mov_b32 s95, %s" % hx(ri * 0x100000))
        for hh in range(2):
            for jj in range(2):
                a("buffer_load_dwordx2 %s, %s, %s, s95 offen offset:%d" % (
                    v(B + 4 * hh + 2 * jj, 2), "v27" if hh else "v26", s(XS, 4), 1024 * jj))
    a.label("L_nox")
    srd(a, WS, 36, 0, WS_SZ)
    srd(a, W1, 28, 0, 1024 * 3584 * 2)
    srd(a, DR, 22, 0, 1024 * 1024 * 2)
    srd(a, DI, 24, 0, 1024 * 1024 * 2)
    srd(a, W2, 30, 0, 3584 * 1024 * 2)
    srd(a, CR, 18, 0, 2048 * 2048 * 2)
    srd(a, CI, 20, 0, 2048 * 2048 * 2)
    srd(a, OUT, 32, 0, 2048 * 1024 * 2)
    a("s_mov_b32 %s, s38" % s(sSP))
    a("s_mov_b32 %s, s39" % s(sHALF))
    a("s_lshl_b32 %s, %s, 4" % (s(sHF), s(sRB)))
    a("s_add_u32 %s, %s, %s" % (s(sHF), s(sHF), s(sCB)))
    a("s_lshr_b32 s95, %s, 3" % s(sHF))
    a("s_lshl_b32 s95, s95, 7")
    a("s_lshl_b32 %s, %s, 2" % (s(sHF), s(sCB8)))
    a("s_add_u32 %s, %s, s95" % (s(sHF), s(sHF)))
    a("s_add_u32 %s, %s, %s" % (s(sHF), s(sHF), hx(HF_OFF)))
    if US() == 1:
        a("s_lshl_b32 %s, %s, 1" % (s(sNB8), s(sCB8)))
    elif US() == 2:
        a("s_and_b32 s95, %s, 1" % s(sCB8))
        a("s_lshr_b32 %s, %s, 1" % (s(sNB8), s(sCB8)))
        a("s_lshl_b32 %s, %s, 2" % (s(sNB8), s(sNB8)))
        a("s_add_u32 %s, %s, s95" % (s(sNB8), s(sNB8)))
    else:
        a("s_and_b32 s95, %s, 3" % s(sCB8))
        a("s_lshr_b32 %s, %s, 2" % (s(sNB8), s(sCB8)))
        a("s_lshl_b32 %s, %s, 3" % (s(sNB8), s(sNB8)))
        a("s_add_u32 %s, %s, s95" % (s(sNB8), s(sNB8)))
    a("s_load_dword %s, s[36:37], %s" % (s(sTAG), hx(EP_OFF)))


def US():
    return int(OPT.get("us", "1"))


ROWB = [32, 76]
RAWB = [32, 76, 240, 120]


def tag_ready(a):
    a("s_add_u32 %s, %s, 0x9e3779b9" % (s(sTAG), s(sTAG)))


def flag_store(a, kind, wave=4):
    lab = a.newlabel("nf")
    a("s_cmp_lg_u32 %s, %d" % (s(sWAVE), wave))
    a("s_cbranch_scc1 %s" % lab)
    if kind == "h":
        a("v_mov_b32 v2, %s" % s(sHF))
    elif kind == "epoch":
        a("s_cmp_lg_u32 s2, 0")
        a("s_cbranch_scc1 %s" % lab)
        a("v_mov_b32 v2, %s" % hx(EP_OFF))
    else:
        idx = "s2" if kind == "s" else s(sTAU)
        a("s_lshr_b32 s96, %s, 3" % idx)
        a("s_lshl_b32 s96, s96, 7")
        a("s_and_b32 s97, %s, 7" % idx)
        a("s_lshl_b32 s97, s97, 2")
        a("s_add_u32 s96, s96, s97")
        a("s_add_u32 s96, s96, %s" % hx(SF_OFF if kind == "s" else ZF_OFF))
        a("v_mov_b32 v2, s96")
    a("v_mov_b32 v1, %s" % s(sTAG))
    a("s_mov_b64 exec, 1")
    a("buffer_store_dword v1, v2, %s, 0 offen sc1" % s(WS, 4))
    a("s_mov_b64 exec, -1")
    a("s_nop 3")
    a.label(lab)


def poll_issue(a, vdst, vaddr, n=1):
    for i in range(n):
        a("buffer_load_dword %s, %s, %s, 0 offen offset:%d sc1" % (v(vdst + i), v(vaddr), s(WS, 4), i * 1024))


def poll_test(a, vdst, mask, n=1):
    a("v_cmp_ne_u32 vcc, %s, %s" % (s(sTAG), v(vdst)))
    for i in range(1, n):
        a("v_cmp_ne_u32 s[96:97], %s, %s" % (s(sTAG), v(vdst + i)))
        a("s_or_b64 vcc, vcc, s[96:97]")
    a("s_nop 0")
    a("s_and_b64 vcc, vcc, %s" % mask)


def poll_check(a, vdst, vaddr, mask, issued, n=1):
    top = a.newlabel("poll"); done = a.newlabel("pdone"); chk = a.newlabel("pchk")
    a("s_mov_b32 %s, 0" % s(T7))
    if issued:
        a("s_branch %s" % chk)
    a.label(top)
    poll_issue(a, vdst, vaddr, n)
    a("s_waitcnt vmcnt(0)")
    a.label(chk)
    a("s_add_u32 %s, %s, 1" % (s(T7), s(T7)))
    poll_test(a, vdst, mask, n)
    a("s_cbranch_scc0 %s" % done)
    a("s_sleep %s" % OPT.get("sleep", "4"))
    a("s_cmp_lt_u32 %s, %d" % (s(T7), SPIN_MAX))
    a("s_cbranch_scc1 %s" % top)
    a.label(done)


def prep_ln(a):
    a("v_lshlrev_b32 v31, 8, v1")
    a("v_and_b32 v2, 31, v3")
    a("v_lshl_add_u32 v31, v2, 3, v31")
    a("v_lshrrev_b32 v2, 5, v3")
    a("v_lshl_add_u32 v31, v2, 12, v31")
    a("v_add_u32 v31, %d, v31" % STG)
    a("s_and_b32 %s, %s, 15" % (s(T0), s(sSP)))
    a("s_lshl_b32 %s, %s, 7" % (s(T0), s(T0)))
    a("s_lshr_b32 %s, %s, 4" % (s(T1), s(sSP)))
    a("s_add_u32 %s, %s, %s" % (s(T0), s(T0), s(T1)))
    a("s_lshl_b32 %s, %s, 3" % (s(T1), s(sWAVE)))
    a("s_add_u32 %s, %s, %s" % (s(T0), s(T0), s(T1)))
    a("s_lshl_b32 %s, %s, 3" % (s(T0), s(T0)))
    a("s_add_u32 %s, %s, %s" % (s(T0), s(T0), hx(STAT_OFF)))
    a("v_mov_b32 v2, %s" % s(T0))
    for ps in range(2):
        a("s_waitcnt vmcnt(%d)" % (8 if ps == 0 else 0))
        prep_ln_pass(a, ps)
    lab = a.newlabel("nostat")
    a("s_cmp_lg_u32 %s, 0" % s(sHALF))
    a("s_cbranch_scc1 %s" % lab)
    a("s_mov_b64 exec, 1")
    for ri in range(4):
        a("buffer_store_dwordx2 %s, v2, %s, 0 offen offset:%d%s" % (v(ROWB[ri & 1] + 32 * (ri >> 1), 2), s(WS, 4), ri * 256, SC1))
    a("s_mov_b64 exec, -1")
    a.label(lab)


def prep_ln_pass(a, ps):
    streams = []
    for rj, B in enumerate(ROWB):
        ri = 2 * ps + rj
        RAW, X, T, M, R, D = RAWB[ri], B + 8, B + 24, B + 32, B + 34, B + 36
        S1, S2 = (T5, T6) if rj == 0 else (24, 25)
        L = []
        for p in range(8):
            L.append("v_lshlrev_b32 %s, 16, %s" % (v(X + 2 * p), v(RAW + p)))
            L.append("v_and_b32 %s, %s, %s" % (v(X + 2 * p + 1), s(sHI), v(RAW + p)))
        pk = lambda d, x, y, m="": L.append("v_pk_add_f32 %s, %s, %s%s" % (v(d, 2), v(x, 2), v(y, 2), m))

        def wsum(r, sd):
            for m in ("quad_perm:[1,0,3,2] row_mask:0xf", "quad_perm:[2,3,0,1] row_mask:0xf",
                      "row_half_mirror row_mask:0xf", "row_mirror row_mask:0xf",
                      "row_bcast:15 row_mask:0xa", "row_bcast:31 row_mask:0xc"):
                L.append("s_nop 0")
                L.append("v_add_f32_dpp %s, %s, %s %s bank_mask:0xf" % (v(r), v(r), v(r), m))
            L.append("s_nop 0")
            L.append("v_readlane_b32 %s, %s, 63" % (s(sd), v(r)))
            L.append("s_nop 0")
        pk(T, X, X + 2); pk(T + 2, X + 4, X + 6); pk(T + 4, X + 8, X + 10); pk(T + 6, X + 12, X + 14)
        pk(T, T, T + 2); pk(T + 4, T + 4, T + 6); pk(T, T, T + 4)
        L.append("v_add_f32 %s, %s, %s" % (v(T), v(T), v(T + 1)))
        wsum(T, S1)
        L.append("v_mov_b32 %s, %s" % (v(M), hx(f32(1.0 / 1024))))
        L.append("v_mul_f32 %s, %s, %s" % (v(M), s(S1), v(M)))
        for g4 in range(2):
            for p in range(4):
                pk(D + 2 * p, X + 8 * g4 + 2 * p, M, " op_sel_hi:[1,0]" + NEG1)
            for p in range(4):
                t = T + 2 * (p & 1)
                if g4 == 0 and p < 2:
                    L.append("v_pk_mul_f32 %s, %s, %s" % (v(t, 2), v(D + 2 * p, 2), v(D + 2 * p, 2)))
                else:
                    L.append("v_pk_fma_f32 %s, %s, %s, %s" % (v(t, 2), v(D + 2 * p, 2), v(D + 2 * p, 2), v(t, 2)))
        pk(T, T, T + 2)
        L.append("v_add_f32 %s, %s, %s" % (v(T), v(T), v(T + 1)))
        wsum(T, S2)
        L.append("v_mov_b32 %s, %s" % (v(R), hx(f32(1.0 / 1024))))
        L.append("v_mul_f32 %s, %s, %s" % (v(R), s(S2), v(R)))
        L.append("v_cvt_pk_bf16_f32 %s, %s, %s" % (v(R), v(R), v(R)))
        L.append("v_lshlrev_b32 %s, 16, %s" % (v(R), v(R)))
        L.append("v_add_f32 %s, %s, %s" % (v(R), hx(f32(1e-5)), v(R)))
        L.append("v_cvt_pk_bf16_f32 %s, %s, %s" % (v(R), v(R), v(R)))
        L.append("v_lshlrev_b32 %s, 16, %s" % (v(R), v(R)))
        L.append("v_sqrt_f32 %s, %s" % (v(R), v(R)))
        L.append("v_cvt_pk_bf16_f32 %s, %s, %s" % (v(M), v(M), v(M)))
        L.append("v_cvt_pk_bf16_f32 %s, %s, %s" % (v(R), v(R), v(R)))
        L.append("v_lshlrev_b32 %s, 16, %s" % (v(M), v(M)))
        L.append("v_lshlrev_b32 %s, 16, %s" % (v(R), v(R)))
        L.append("v_rcp_f32 %s, %s" % (v(R), v(R)))
        for p in range(4):
            pk(D + 2 * p, X + 2 * p, M, " op_sel_hi:[1,0]" + NEG1)
        if ps == 0:
            L.append("v_mov_b32 %s, %s" % (v(B), v(M)))
            L.append("v_mov_b32 %s, %s" % (v(B + 1), v(R)))
        else:
            L.append("v_mov_b32 %s, %s" % (v(M + 1), v(R)))
        for p in range(4):
            L.append("v_cvt_pk_bf16_f32 %s, %s, %s" % (v(T + p), v(D + 2 * p), v(D + 2 * p + 1)))
        for p in range(4):
            L.append("v_lshlrev_b32 %s, 16, %s" % (v(D + 2 * p), v(T + p)))
            L.append("v_and_b32 %s, %s, %s" % (v(D + 2 * p + 1), s(sHI), v(T + p)))
        for p in range(4):
            L.append("v_pk_mul_f32 %s, %s, %s op_sel_hi:[1,0]" % (v(D + 2 * p, 2), v(D + 2 * p, 2), v(R, 2)))
        for p in range(4):
            L.append("v_cvt_pk_bf16_f32 %s, %s, %s" % (v(T + p), v(D + 2 * p), v(D + 2 * p + 1)))
        for p in range(4):
            L.append("v_lshlrev_b32 %s, 16, %s" % (v(X + 2 * p), v(T + p)))
            L.append("v_and_b32 %s, %s, %s" % (v(X + 2 * p + 1), s(sHI), v(T + p)))
        pk(D, X, X + 4); pk(D + 2, X + 2, X + 6)
        pk(D + 4, X, X + 4, NEG1); pk(D + 6, X + 2, X + 6, NEG1)
        for p in range(4):
            L.append("v_cvt_pk_f16_f32 %s, %s, %s" % (v(T + p), v(D + 2 * p), v(D + 2 * p + 1)))
        for wh in range(2):
            L.append("ds_write_b64 v31, %s offset:%d" % (v(T + 2 * wh, 2), wh * 8192 + ri * 1024))
        streams.append(L)
    for x, y in zip(*streams):
        a(x); a(y)


def prep_dft(a0):
    a = Asm()
    a("s_lshr_b32 %s, %s, 1" % (s(T0), s(sWAVE)))
    a("s_lshl_b32 %s, %s, 13" % (s(T1), s(T0)))
    a("s_add_u32 %s, %s, %d" % (s(T1), s(T1), STG))
    a("v_lshlrev_b32 v122, 2, v3")
    a("v_add_u32 v122, %s, v122" % s(T1))
    IN = [32, 48]
    for ab in range(2):
        for j in range(8):
            a("ds_read2st64_b32 %s, v122 offset0:%d offset1:%d" % (v(IN[ab] + 2 * j, 2), ab * 16 + j, ab * 16 + j + 8))
    a("s_lshl_b32 %s, %s, 9" % (s(T1), s(sSP)))
    a("s_lshl_b32 %s, %s, 8" % (s(T2), s(sHALF)))
    a("s_add_u32 %s, %s, %s" % (s(T1), s(T1), s(T2)))
    a("s_lshl_b32 %s, %s, 17" % (s(T2), s(T0)))
    a("s_add_u32 %s, %s, %s" % (s(T1), s(T1), s(T2)))
    a("s_add_u32 %s, %s, %s" % (s(T1), s(T1), hx(CB_OFF)))
    a("v_lshlrev_b32 v123, 2, v3")
    a("v_add_u32 v123, %s, v123" % s(T1))
    for r_, val in ((C1, math.cos(math.pi / 8)), (C2, math.cos(math.pi / 4)), (C3, math.cos(3 * math.pi / 8))):
        a("s_mov_b32 %s, %s" % (s(r_), hx(f32(val))))
        a("s_mov_b32 %s, %s" % (s(r_ + 1), hx(f32(val))))
    head = a.lines
    var = {}
    for parity in range(2):
        free = list(range(64, 120, 2))
        alloc = lambda: free.pop(0)

        def rel(*rs):
            free.extend(rs)

        def add(x, y):
            d = alloc(); a("v_pk_add_f32 %s, %s, %s" % (v(d, 2), v(x, 2), v(y, 2))); return d

        def sub(x, y):
            d = alloc(); a("v_pk_add_f32 %s, %s, %s%s" % (v(d, 2), v(x, 2), v(y, 2), NEG1)); return d

        def mul(x, c):
            d = alloc(); a("v_pk_mul_f32 %s, %s, %s" % (v(d, 2), v(x, 2), s(c, 2))); return d

        def fma(x, c, y, nx=False, ny=False):
            d = alloc()
            mod = " neg_lo:[%d,0,%d] neg_hi:[%d,0,%d]" % (nx, ny, nx, ny) if (nx or ny) else ""
            a("v_pk_fma_f32 %s, %s, %s, %s%s" % (v(d, 2), v(x, 2), s(c, 2), v(y, 2), mod)); return d

        def mix(r, neg):
            d = alloc()
            for h in range(2):
                a("v_fma_mix_f32 %s, %s, 1.0, %s%s op_sel:[%d,0,%d] op_sel_hi:[1,0,1]" % (v(d + h), v(r), "-" if neg else "", v(r + 1), h, h))
            rel(r)
            return d

        def dft(base):
            p = {}; q = {}
            if parity == 0:
                u = [mix(base + 2 * j, False) for j in range(8)]
                uu = []; uv = []
                for j in range(4):
                    uu.append(add(u[j], u[j + 4])); uv.append(sub(u[j], u[j + 4])); rel(u[j], u[j + 4])
                e0 = add(uu[0], uu[2]); e1 = add(uu[1], uu[3])
                p[4] = sub(uu[0], uu[2]); q[4] = sub(uu[1], uu[3]); rel(*uu)
                p[0] = add(e0, e1); p[8] = sub(e0, e1); rel(e0, e1)
                dm = sub(uv[1], uv[3]); dp = add(uv[1], uv[3])
                p[2] = fma(dm, C2, uv[0]); p[6] = fma(dm, C2, uv[0], nx=True)
                q[2] = fma(dp, C2, uv[2]); q[6] = fma(dp, C2, uv[2], ny=True)
                rel(dm, dp, *uv)
            else:
                w = [mix(base + 2 * j, True) for j in range(8)]
                aa = {}; bb = {}
                for j in (1, 2, 3):
                    aa[j] = sub(w[j], w[8 - j]); bb[j] = add(w[j], w[8 - j]); rel(w[j], w[8 - j])
                Ap = fma(aa[2], C2, w[0]); Am = fma(aa[2], C2, w[0], nx=True); rel(aa[2], w[0])
                t = mul(aa[1], C1); G1 = fma(aa[3], C3, t); rel(t)
                t = mul(aa[1], C3); G3 = fma(aa[3], C1, t, nx=True); rel(t, aa[1], aa[3])
                p[1] = add(Ap, G1); p[7] = sub(Ap, G1); p[3] = add(Am, G3); p[5] = sub(Am, G3); rel(Ap, Am, G1, G3)
                Bp = fma(bb[2], C2, w[4]); B3 = fma(bb[2], C2, w[4], ny=True); rel(bb[2], w[4])
                t = mul(bb[1], C3); H1 = fma(bb[3], C1, t); rel(t)
                t = mul(bb[1], C1); H3 = fma(bb[3], C3, t, nx=True); rel(t, bb[1], bb[3])
                q[1] = add(H1, Bp); q[7] = sub(H1, Bp); q[3] = add(H3, B3); q[5] = sub(H3, B3); rel(Bp, B3, H1, H3)
            return p, q

        a.lines = var[(1, parity)] = []
        pa, qa = dft(IN[0])
        a.lines = var[(2, parity)] = []
        pb, qb = dft(IN[1])
        tmpd = []
        for _ in range(4):
            r_ = alloc(); tmpd += [r_, r_ + 1]
        t2 = [alloc(), alloc()]
        cnt = [0]

        def st(reg, arr):
            d = tmpd[cnt[0] % len(tmpd)]; cnt[0] += 1
            a("v_cvt_pk_bf16_f32 %s, %s, %s" % (v(d), v(reg), v(reg + 1)))
            a("s_mov_b32 %s, %s" % (s(T1), hx(arr * 65536)))
            a("buffer_store_dword %s, v123, %s, %s offen%s" % (v(d), s(WS, 4), s(T1), SC1))

        rs = [2, 4, 6] if parity == 0 else [1, 3, 5, 7]
        a.lines = var[(3, parity, 0)] = []
        def comb(x, y, arr1, arr2):
            a("v_pk_add_f32 %s, %s, %s" % (v(t2[0], 2), v(x, 2), v(y, 2)))
            a("v_pk_add_f32 %s, %s, %s%s" % (v(t2[1], 2), v(x, 2), v(y, 2), NEG1))
            st(t2[0], arr1); st(t2[1], arr2)
        if parity == 0:
            comb(pa[0], pb[0], 0, 4); comb(pa[8], pb[8], 1, 5)
        for r_ in rs:
            comb(pa[r_], pb[r_], r_ * 8, r_ * 8 + 4); comb(qa[r_], qb[r_], r_ * 8 + 1, r_ * 8 + 5)
        a.lines = var[(3, parity, 1)] = []
        if parity == 0:
            st(pa[0], 0); st(pb[0], 1); st(pa[8], 4); st(pb[8], 5)
        for r_ in rs:
            a("v_pk_add_f32 %s, %s, %s%s" % (v(t2[0], 2), v(pa[r_], 2), v(qb[r_], 2), NEG1))
            a("v_pk_add_f32 %s, %s, %s" % (v(t2[1], 2), v(qa[r_], 2), v(pb[r_], 2)))
            st(t2[0], r_ * 8); st(t2[1], r_ * 8 + 1)
            a("v_pk_add_f32 %s, %s, %s" % (v(t2[0], 2), v(pa[r_], 2), v(qb[r_], 2)))
            a("v_pk_add_f32 %s, %s, %s%s" % (v(t2[1], 2), v(qa[r_], 2), v(pb[r_], 2), NEG1))
            st(t2[0], r_ * 8 + 4); st(t2[1], r_ * 8 + 5)

    def split(lines):
        idx = [i for i, x in enumerate(lines) if "buffer_store" in x]
        assert len(idx) == 16
        return lines[:idx[7] + 1], lines[idx[7] + 1:]

    def emit(cases):
        done = a0.newlabel("dd")
        labs = [a0.newlabel("dc") for _ in cases]
        uniq = []
        for l_, c in enumerate(cases):
            if c not in uniq:
                uniq.append(c)
        if len(uniq) == 2:
            a0("s_bitcmp1_b32 %s, 0" % s(sWAVE))
            a0("s_cbranch_scc1 %s" % labs[1])
            a0.lines += cases[0]; a0("s_branch %s" % done)
            a0.label(labs[1]); a0.lines += cases[1]
        else:
            for l_ in range(1, 4):
                a0("s_cmp_eq_u32 %s, %d" % (s(sWAVE), l_))
                a0("s_cbranch_scc1 %s" % labs[l_])
            for l_ in range(4):
                if l_:
                    a0.label(labs[l_])
                a0.lines += cases[l_]
                if l_ < 3:
                    a0("s_branch %s" % done)
        a0.label(done)

    def piece(n):
        if n == 0:
            a0.lines += head
        elif n == 1:
            emit([var[(1, l_ & 1)] + var[(2, l_ & 1)] for l_ in range(4)])
        else:
            emit([var[(3, l_ & 1, l_ >> 1)] for l_ in range(4)])
    return piece


def rowimg_frag_addr(a, dst0, dst1, rowbase_sgpr):
    a("v_and_b32 %s, 15, v3" % v(dst0))
    a("v_lshlrev_b32 %s, 7, %s" % (v(dst0), v(dst0)))
    a("v_lshrrev_b32 %s, 4, v3" % v(dst1))
    a("v_bfe_u32 v2, v3, 1, 3")
    a("v_xor_b32 %s, %s, v2" % (v(dst1), v(dst1)))
    a("v_lshl_add_u32 %s, %s, 4, %s" % (v(dst0), v(dst1), v(dst0)))
    a("v_add_u32 %s, %s, %s" % (v(dst0), s(rowbase_sgpr), v(dst0)))
    a("v_xor_b32 %s, 64, %s" % (v(dst1), v(dst0)))


def silu_tail(a, regs, tmp):
    for t in tmp:
        a("v_exp_f32 %s, %s" % (v(t), v(t)))
        a("v_exp_f32 %s, %s" % (v(t + 1), v(t + 1)))
    for t in tmp:
        a("v_pk_add_f32 %s, %s, 1.0 op_sel_hi:[1,0]" % (v(t, 2), v(t, 2)))
    for t in tmp:
        a("v_rcp_f32 %s, %s" % (v(t), v(t)))
        a("v_rcp_f32 %s, %s" % (v(t + 1), v(t + 1)))
    for r_, t in zip(regs, tmp):
        a("v_pk_mul_f32 %s, %s, %s" % (v(r_, 2), v(r_, 2), v(t, 2)))


def silu_pk(a, regs, tmp):
    for r_, t in zip(regs, tmp):
        a("v_pk_mul_f32 %s, %s, %s" % (v(t, 2), v(r_, 2), s(sNL2E, 2)))
    silu_tail(a, regs, tmp)


ACC1 = 128
vM0, vM1, vNa, vNb, vNc = 4, 5, 6, 7, 8
cM0, cM1, cNa, cNb, cNc = 9, 10, 11, 12, 13
vZ0, vZ1 = 14, 15


def compute_setup(a):
    a("s_lshr_b32 %s, %s, 1" % (s(sWM), s(sWAVE)))
    a("s_and_b32 %s, %s, 1" % (s(sWN), s(sWAVE)))
    a("s_lshl_b32 %s, s2, 15" % s(T0))
    a("s_lshl_b32 %s, %s, 13" % (s(T1), s(sWAVE)))
    a("s_add_u32 %s, %s, %s" % (s(T0), s(T0), s(T1)))
    a("s_add_u32 %s, %s, %s" % (s(T0), s(T0), hx(EX_OFF)))
    a("v_lshlrev_b32 v24, 4, v3")
    a("v_add_u32 v24, %s, v24" % s(T0))
    a("v_add_u32 v25, 4096, v24")
    a("s_lshl_b32 %s, %s, 13" % (s(T0), s(sWM)))
    rowimg_frag_addr(a, vM0, vM1, T0)
    a("s_lshl_b32 %s, %s, 13" % (s(T0), s(sWN)))
    a("s_add_u32 %s, %s, 16384" % (s(T0), s(T0)))
    rowimg_frag_addr(a, vZ0, vZ1, T0)
    a("v_lshrrev_b32 v18, 4, v3")
    a("v_bfe_u32 v17, v3, 2, 2")
    a("v_lshl_add_u32 v17, v18, 3, v17")
    a("v_mul_u32_u24 v17, 448, v17")
    a("v_and_b32 v19, 3, v3")
    a("v_lshl_add_u32 v17, v19, 3, v17")
    a("v_and_b32 v19, 1, v18")
    a("v_lshlrev_b32 v19, 5, v19")
    a("s_lshl_b32 %s, %s, 6" % (s(T0), s(sWN)))
    a("s_add_u32 %s, %s, 16384" % (s(T0), s(T0)))
    a("v_add_u32 v20, %s, v17" % s(T0))
    a("v_add_u32 %s, v20, v19" % v(vNa))
    a("v_sub_u32 %s, v20, v19" % v(vNb))
    a("s_lshl_b32 %s, %s, 5" % (s(T0), s(sWN)))
    a("v_xor_b32 v20, %s, v19" % s(T0))
    a("v_add_u32 v20, v20, v17")
    a("v_add_u32 %s, %d, v20" % (v(vNc), 16384 + 384))
    a("v_and_b32 v21, 1, v18")
    a("v_lshlrev_b32 v21, 5, v21")
    a("v_lshrrev_b32 v19, 1, v18")
    a("v_lshl_add_u32 v21, v19, 4, v21")
    a("s_lshl_b32 %s, %s, 4" % (s(T0), s(sRB)))
    a("s_add_u32 %s, %s, %s" % (s(T0), s(T0), s(sCB)))
    a("s_mul_i32 %s, %s, 49152" % (s(T1), s(T0)))
    a("s_lshl_b32 %s, %s, 13" % (s(T2), s(sWN)))
    a("s_add_u32 %s, %s, %s" % (s(T1), s(T1), s(T2)))
    a("s_lshl_b32 %s, %s, 12" % (s(T2), s(sWM)))
    a("s_add_u32 %s, %s, %s" % (s(T1), s(T1), s(T2)))
    a("s_add_u32 %s, %s, %s" % (s(T1), s(T1), hx(HR_OFF)))
    a("v_and_b32 v22, 15, v3")
    a("v_lshl_add_u32 v17, v22, 6, v21")
    a("v_add_u32 v17, %s, v17" % s(T1))
    a("s_lshl_b32 %s, %s, 13" % (s(T1), s(T0)))
    a("s_lshl_b32 %s, %s, 12" % (s(T2), s(sWN)))
    a("s_add_u32 %s, %s, %s" % (s(T1), s(T1), s(T2)))
    a("s_lshl_b32 %s, %s, 11" % (s(T2), s(sWM)))
    a("s_add_u32 %s, %s, %s" % (s(T1), s(T1), s(T2)))
    a("s_add_u32 %s, %s, %s" % (s(T1), s(T1), hx(HL_OFF)))
    a("v_and_b32 v20, 1, v18")
    a("v_lshl_add_u32 v20, v20, 4, v22")
    a("v_lshlrev_b32 v20, 5, v20")
    a("v_lshl_add_u32 v20, v19, 4, v20")
    a("v_add_u32 v20, %s, v20" % s(T1))
    a("s_lshl_b32 %s, %s, 7" % (s(T1), s(sWN)))
    a("s_add_u32 %s, %s, %d" % (s(T1), s(T1), CSB))
    a("v_lshlrev_b32 v26, 4, v18")
    a("v_add_u32 v26, %s, v26" % s(T1))
    a("s_lshl_b32 %s, %s, 6" % (s(T1), s(sWN)))
    a("s_add_u32 %s, %s, %d" % (s(T1), s(T1), CSB + 768))
    a("v_lshlrev_b32 v27, 4, v18")
    a("v_add_u32 v27, %s, v27" % s(T1))
    a("s_lshl_b32 %s, %s, 9" % (s(T1), s(sWM)))
    a("s_add_u32 %s, %s, %d" % (s(T1), s(T1), STB))
    a("v_lshlrev_b32 v28, 3, v22")
    a("v_add_u32 v28, %s, v28" % s(T1))
    for i in range(112):
        a("v_mov_b32 %s, 0" % v(ACC1 + i))
    a("s_mov_b32 %s, 0" % s(sSLOT))


def compute_g1_s1(a):
    ACC = ACC1
    FR = [32, 76]
    cZ0, cZ1 = cNa, cNb

    def set_addr(lst):
        return ["v_add_u32 %s, %s, %s" % (v(c), s(sSLOT), v(b)) for c, b in lst]

    def next_slot():
        return ["s_add_u32 s14, s14, %d" % G1SLOT, "s_cmp_eq_u32 s14, %d" % (G1SLOT * 3), "s_cselect_b32 s14, 0, s14"]

    G1A = [(cM0, vM0), (cM1, vM1), (cNa, vNa), (cNb, vNb), (cNc, vNc)]

    def s1_addr(k):
        return ["v_add_u32 %s, %s, %s" % (v(c), hx(S1SLOTS[k]), v(b)) for c, b in
                [(cM0, vM0), (cM1, vM1), (cZ0, vZ0), (cZ1, vZ1)]]

    def g1_reads(fs, ks):
        r = []
        for nt in range(7):
            ad = cNc if nt == 6 else (cNb if nt & 1 else cNa)
            off = 0 if nt == 6 else 128 * (nt >> 1) + 32 * (nt & 1)
            for h in range(2):
                r.append("ds_read_b64_tr_b16 %s, %s offset:%d" % (
                    v(FR[fs] + 16 + 4 * nt + 2 * h, 2), v(ad), ks * 14336 + h * 1792 + off))
            if nt < 4:
                r.append("ds_read_b128 %s, %s offset:%d" % (v(FR[fs] + 4 * nt, 4), v(cM1 if ks else cM0), nt * 2048))
        return r

    def g1_mfmas(fs):
        o = OPT.get("ord", "n")
        if o == "m":
            order = [(nt, mt) for mt in range(4) for nt in range(7)]
        elif o == "z":
            order = [(nt, mt if nt % 2 == 0 else 3 - mt) for nt in range(7) for mt in range(4)]
        else:
            order = [(nt, mt) for nt in range(7) for mt in range(4)]
        return [mfma(ACC + 4 * (nt * 4 + mt), FR[fs] + 16 + 4 * nt, FR[fs] + 4 * mt) for nt, mt in order]

    def g1_iter(extra_b=(), pre_bar=(), tail=(), flag=None):
        interleave(a, g1_mfmas(0), g1_reads(1, 1) + next_slot() + set_addr(G1A))
        a("s_waitcnt lgkmcnt(0)")
        a.all(pre_bar)
        fine(a)
        a("s_barrier")
        fine(a)
        interleave(a, g1_mfmas(1), g1_reads(0, 0) + list(extra_b))
        a("s_waitcnt lgkmcnt(0)")
        a.all(tail)

    def g1_loop(n):
        a("s_mov_b32 %s, 0" % s(sCNT))
        loop = a.newlabel("g1_loop")
        a.raw(".p2align 6")
        a.label(loop)
        g1_iter(["s_add_u32 s15, s15, 1", "s_cmp_lt_u32 s15, %d" % n], tail=["s_cbranch_scc1 %s" % loop])

    if OPT.get("sent", "none") == "pre":
        for i in range(4):
            a("v_mov_b32 %s, -1" % v(240 + i))
        for i in range(8):
            a("buffer_store_dwordx4 v[240:243], %s, %s, 0 offen offset:%d%s" % ("v25" if i >= 4 else "v24", s(WS, 4), (i & 3) * 1024, SC1))
    a.all(set_addr(G1A))
    mark(a, 3)
    a("s_barrier")
    mark(a, 4)
    a.all(g1_reads(0, 0))
    a("s_waitcnt lgkmcnt(0)")
    if STAMP:
        g1_loop(3)
        mark(a, 15)
        g1_loop(FLAGK - 3)
    else:
        g1_loop(FLAGK)
    g1_iter(pre_bar=["s_waitcnt vmcnt(0)"], flag="s")
    if STAMP:
        mark(a, 2)
        g1_loop(3)
        mark(a, 1)
        g1_loop(14 - FLAGK - 3)
    else:
        g1_loop(14 - FLAGK)
    interleave(a, g1_mfmas(0), g1_reads(1, 1) + s1_addr(0))
    a("s_waitcnt lgkmcnt(0)")
    a("s_barrier")
    CSR, STR = 32, 60
    rd = ["ds_read_b128 %s, v26 offset:%d" % (v(CSR + 4 * nt, 4), 256 * (nt >> 1) + 64 * (nt & 1)) for nt in range(6)]
    rd.append("ds_read_b128 %s, v27" % v(CSR + 24, 4))
    rd += ["ds_read_b64 %s, v28 offset:%d" % (v(STR + 2 * mt, 2), 128 * mt) for mt in range(4)]
    interleave(a, g1_mfmas(1), rd)
    mark(a, 5)
    a("s_waitcnt lgkmcnt(0)")
    RL = 68
    for mt in range(4):
        a("v_rcp_f32 %s, %s" % (v(RL + 2 * mt + 1), v(STR + 2 * mt + 1)))
        a("v_mul_f32 %s, %s, %s" % (v(RL + 2 * mt), s(sNL2E), v(STR + 2 * mt + 1)))
    TMP = 76
    PK = [88, 92, 96, 100, 104, 108, 112, 116]
    for pr in range(3):
        a("s_mov_b32 %s, %d" % (s(T0 + pr), pr * 16384))
    pki = 0
    groups = [[(mt, 2 * pr), (mt, 2 * pr + 1)] for mt in range(4) for pr in range(3)]
    groups.insert(6, [(0, 6), (1, 6)]); groups.append([(2, 6), (3, 6)])
    for gr in groups:
        regs = []; cs = []; mts = []
        for mt, nt in gr:
            b = ACC + 4 * (nt * 4 + mt)
            regs += [b, b + 2]; cs += [CSR + 4 * nt, CSR + 4 * nt + 2]; mts += [mt, mt]
        tmp = [TMP + 2 * i for i in range(4)]
        for r_, c_, mt in zip(regs, cs, mts):
            a("v_pk_fma_f32 %s, %s, %s, %s op_sel_hi:[1,0,1] neg_lo:[0,1,0] neg_hi:[0,1,0]" % (v(r_, 2), v(c_, 2), v(STR + 2 * mt, 2), v(r_, 2)))
        for r_, t, mt in zip(regs, tmp, mts):
            a("v_pk_mul_f32 %s, %s, %s op_sel_hi:[1,0]" % (v(t, 2), v(r_, 2), v(RL + 2 * mt, 2)))
        for t_ in tmp:
            a("v_exp_f32 %s, %s" % (v(t_), v(t_)))
            a("v_exp_f32 %s, %s" % (v(t_ + 1), v(t_ + 1)))
        for t_, mt in zip(tmp, mts):
            a("v_pk_fma_f32 %s, %s, %s, %s op_sel:[0,1,1]" % (v(t_, 2), v(t_, 2), v(RL + 2 * mt, 2), v(RL + 2 * mt, 2)))
        for t_ in tmp:
            a("v_rcp_f32 %s, %s" % (v(t_), v(t_)))
            a("v_rcp_f32 %s, %s" % (v(t_ + 1), v(t_ + 1)))
        for r_, t_ in zip(regs, tmp):
            a("v_pk_mul_f32 %s, %s, %s" % (v(r_, 2), v(r_, 2), v(t_, 2)))
        P = PK[pki % len(PK)]; pki += 1
        for i, r_ in enumerate(regs):
            a("v_cvt_pk_bf16_f32 %s, %s, %s" % (v(P + i), v(r_), v(r_ + 1)))
        a("s_nop 1")
        a("v_permlane16_swap_b32 %s, %s" % (v(P), v(P + 2)))
        a("v_permlane16_swap_b32 %s, %s" % (v(P + 1), v(P + 3)))
        mt, nt = gr[0]
        if nt < 6:
            a("buffer_store_dwordx4 %s, v17, %s, %s offen offset:%d%s" % (v(P, 4), s(WS, 4), s(T0 + nt // 2), mt * 1024, SC1))
        else:
            a("buffer_store_dwordx4 %s, v20, %s, 0 offen offset:%d%s" % (v(P, 4), s(WS, 4), (mt // 2) * 1024, SC1))
    mark(a, 6)
    fine_dump(a, 0)

    def s1_reads(fs, ks):
        r = []
        for t in range(4):
            r.append("ds_read_b128 %s, %s offset:%d" % (v(FR[fs] + 4 * t, 4), v(cM1 if ks else cM0), t * 2048))
            r.append("ds_read_b128 %s, %s offset:%d" % (v(FR[fs] + 16 + 4 * t, 4), v(cZ1 if ks else cZ0), t * 2048))
        return r

    def s1_mfmas(fs, first):
        return [mfma(ACC + 4 * (mt * 4 + nt), FR[fs] + 4 * mt, FR[fs] + 16 + 4 * nt, "0" if first else None)
                for mt in range(4) for nt in range(4)]

    HF = int(OPT.get("hf", "-1"))
    if HF == -1:
        a("s_waitcnt vmcnt(0)")
    a("s_barrier")
    a.all(s1_reads(0, 0))
    a("s_lshr_b32 %s, %s, 3" % (s(T0), s(sTAU)))
    a("s_and_b32 %s, %s, 3" % (s(T1), s(T0)))
    a("s_cmp_eq_u32 %s, 3" % s(T0))
    a("s_cselect_b32 %s, 1, %s" % (s(T1), s(T1)))
    a("s_lshr_b32 %s, %s, 2" % (s(T2), s(T0)))
    a("s_cmp_eq_u32 %s, 3" % s(T0))
    a("s_cselect_b32 %s, 8, %s" % (s(T2), s(T2)))
    a("s_lshl_b32 %s, %s, 19" % (s(T2), s(T2)))
    a("s_bfe_u32 %s, %s, 0x20001" % (s(T3), s(sTAU)))
    a("s_lshl_b32 %s, %s, 6" % (s(T3), s(T3)))
    a("s_lshl_b32 %s, %s, 5" % (s(T4), s(sWN)))
    a("s_add_u32 %s, %s, %s" % (s(T3), s(T3), s(T4)))
    a("v_and_b32 v17, 15, v3")
    a("v_add_u32 v17, %s, v17" % s(T3))
    a("v_sub_u32 v22, %d, v17" % (3 * 256 + 239))
    a("s_lshl_b32 %s, %s, 8" % (s(T1), s(T1)))
    a("v_add_u32 v17, %s, v17" % s(T1))
    a("s_and_b32 %s, %s, 1" % (s(T3), s(sTAU)))
    a("s_lshl_b32 %s, %s, 1" % (s(T3), s(T3)))
    a("s_add_u32 %s, %s, %s" % (s(T3), s(T3), s(sWM)))
    a("s_lshl_b32 %s, %s, 16" % (s(T3), s(T3)))
    a("s_add_u32 %s, %s, %s" % (s(T3), s(T3), hx(ZT_OFF)))
    a("v_add_u32 v23, %s, v21" % s(T3))
    a("v_lshl_add_u32 v17, v17, 6, v23")
    a("v_lshl_add_u32 v22, v22, 6, v23")
    a("s_waitcnt lgkmcnt(0)")
    for k in range(4):
        interleave(a, s1_mfmas(0, k == 0), s1_reads(1, 1) + (s1_addr(k + 1) if k < 3 else []))
        a("s_waitcnt lgkmcnt(0)")
        interleave(a, s1_mfmas(1, False), s1_reads(0, 0) if k < 3 else [])
        if k < 3:
            a("s_waitcnt lgkmcnt(0)")
        if k == 1:
            a("s_barrier")
        if k == HF:
            a("s_waitcnt vmcnt(0)")
            a("s_barrier")
            flag_store(a, "h")
    mark(a, 7)
    a("s_barrier")
    mark(a, 8)
    a("s_nop 7")
    TMP = 32
    PK = [56, 60, 64, 68, 72, 76, 80, 84]
    typeB = a.newlabel("s1_typeB"); done = a.newlabel("s1_done")
    a("s_and_b32 %s, %s, 29" % (s(T3), s(T0)))
    a("s_cmp_eq_u32 %s, 0" % s(T3))
    a("s_cbranch_scc1 %s" % typeB)
    tile = lambda m, n: ACC + 4 * (m * 4 + n)
    pki = 0
    for n in range(2):
        for uv in range(2):
            P = PK[pki]; pki += 1
            for m in range(2):
                for h in range(2):
                    if uv == 0:
                        a("v_pk_add_f32 %s, %s, %s" % (v(TMP + 2 * h, 2), v(tile(m, n) + 2 * h, 2), v(tile(m + 2, n + 2) + 2 * h, 2)))
                    else:
                        a("v_pk_add_f32 %s, %s, %s%s" % (v(TMP + 2 * h, 2), v(tile(m + 2, n) + 2 * h, 2), v(tile(m, n + 2) + 2 * h, 2), NEG1))
                for h in range(2):
                    a("v_cvt_pk_bf16_f32 %s, %s, %s" % (v(P + 2 * m + h), v(TMP + 2 * h), v(TMP + 2 * h + 1)))
            a("s_add_u32 %s, %s, %d" % (s(T3), s(T2), n * 1024 + uv * 262144))
            a("s_nop 0")
            a("v_permlane16_swap_b32 %s, %s" % (v(P), v(P + 2)))
            a("v_permlane16_swap_b32 %s, %s" % (v(P + 1), v(P + 3)))
            a("buffer_store_dwordx4 %s, v17, %s, %s offen%s" % (v(P, 4), s(WS, 4), s(T3), SC1))
    a("s_cmp_ge_u32 %s, 4" % s(T0))
    a("s_cbranch_scc1 %s" % done)
    a("s_mov_b32 %s, 0x80008000" % s(T4))
    pki = 0
    for n in range(2):
        for uv in range(2):
            P = PK[pki]; pki += 1
            a("s_add_u32 %s, %s, %d" % (s(T3), s(T2), (1 - n) * 1024 + uv * 262144))
            if uv:
                Q = PK[4 + n]
                for i in range(4):
                    a("v_xor_b32 %s, %s, %s" % (v(Q + i), s(T4), v(P + i)))
                P = Q
            a("buffer_store_dwordx4 %s, v22, %s, %s offen%s" % (v(P, 4), s(WS, 4), s(T3), SC1))
    a("s_branch %s" % done)
    a.label(typeB)
    pki = 0
    for n in range(2):
        for half in range(2):
            for uv in range(2):
                P = PK[pki]; pki += 1
                sg = "-" if uv else ""
                for m in range(2):
                    t = tile(m + 2 * half, n + 2 * uv)
                    for h in range(2):
                        a("v_cvt_pk_bf16_f32 %s, %s%s, %s%s" % (v(P + 2 * m + h), sg, v(t + 2 * h), sg, v(t + 2 * h + 1)))
                a("s_mov_b32 %s, %d" % (s(T3), half * 8 * 524288 + n * 1024 + uv * 262144))
                a("s_nop 0")
                a("v_permlane16_swap_b32 %s, %s" % (v(P), v(P + 2)))
                a("v_permlane16_swap_b32 %s, %s" % (v(P + 1), v(P + 3)))
                a("buffer_store_dwordx4 %s, v17, %s, %s offen%s" % (v(P, 4), s(WS, 4), s(T3), SC1))
    a.label(done)
    mark(a, 9)


def dma(a, ldsoff, vaddr, srd_, soff, coh=False):
    if OPT.get("nodma") == "1" and getattr(a, "skipdma", False):
        return
    a("s_add_u32 m0, %s, %d" % (s(sSLOT), ldsoff))
    a("s_nop 0")
    a("buffer_load_dwordx4 %s, %s, %s offen%s lds" % (v(vaddr), s(srd_, 4), s(soff), OPT.get("cohmod", "_sc1").replace("_", " ") if coh else ""))


LVA, LVB, LVC, LVD = 8, 12, 20, 24
CSD = 128


def g1_issue(a):
    for i in range(4):
        dma(a, i * 4096, LVA + i, XS, sKA)
    for i in range(7):
        dma(a, 16384 + i * 4096, LVB + i, W1, sKB)
    a("s_add_u32 %s, %s, 128" % (s(sKA), s(sKA)))
    a("s_add_u32 %s, %s, %d" % (s(sKB), s(sKB), 64 * 7168))
    a("s_add_u32 s14, s14, %d" % G1SLOT)
    a("s_cmp_eq_u32 s14, %s" % s(sWRAP))
    a("s_cselect_b32 s14, %s, s14" % s(sSL0))


def loader_setup(a):
    a("s_sub_u32 %s, %s, 4" % (s(sL), s(sWAVE)))
    a("s_and_b32 %s, %s, 1" % (s(T0), s(sL)))
    a("s_lshl_b32 %s, %s, 2" % (s(T0), s(T0)))
    a("v_lshrrev_b32 v4, 4, v3")
    a("v_add_u32 v4, %s, v4" % s(T0))
    a("v_and_b32 v5, 7, v3")
    a("v_xor_b32 v4, v4, v5")
    a("v_lshlrev_b32 v4, 4, v4")
    a("v_lshrrev_b32 v5, 3, v3")
    a("s_lshl_b32 %s, %s, 3" % (s(T0), s(sL)))
    a("v_add_u32 v5, %s, v5" % s(T0))
    a("v_lshlrev_b32 v30, 2, v3")
    a("s_lshl_b32 %s, %s, 10" % (s(sSL0), s(sL)))
    a("s_lshl_b32 %s, %s, 11" % (s(T0), s(sRB)))
    a("v_lshl_add_u32 v6, v5, 15, v4")
    a("v_add_u32 v6, %s, v6" % s(T0))
    for i in range(4):
        a("v_add_u32 %s, %s, v6" % (v(LVA + i), hx(i * 32 * 32768)))
    a("s_lshl_b32 %s, %s, 6" % (s(T0), s(sL)))
    a("v_add_u32 v6, %s, v3" % s(T0))
    a("s_mul_i32 %s, %s, 448" % (s(T1), s(sCB)))
    for i in range(7):
        a("v_add_u32 v7, %d, v6" % (256 * i))
        a("v_mul_u32_u24 v28, 2341, v7")
        a("v_lshrrev_b32 v28, 16, v28")
        a("v_mul_u32_u24 v29, 28, v28")
        a("v_sub_u32 v29, v7, v29")
        a("v_bfe_u32 v31, v28, 3, 1")
        a("v_lshlrev_b32 v31, 1, v31")
        a("v_xor_b32 v29, v29, v31")
        a("v_mul_u32_u24 v28, 7168, v28")
        a("v_lshl_add_u32 v28, v29, 4, v28")
        a("v_add_u32 %s, %s, v28" % (v(LVB + i), s(T1)))
    a("s_mov_b32 %s, %s" % (s(sSLOT), s(sSL0)))
    a("s_add_u32 %s, %s, %d" % (s(sWRAP), s(sSL0), G1SLOT * 3))
    a("s_mov_b32 %s, 0" % s(sKA))
    a("s_mov_b32 %s, 0" % s(sKB))
    a("v_and_b32 v6, 31, v3")
    a("v_lshrrev_b32 v7, 5, v3")
    a("v_mul_u32_u24 v7, 7168, v7")
    a("v_lshl_add_u32 v7, v6, 4, v7")
    a("s_xor_b32 %s, %s, %s" % (s(T0), s(sRB), OPT.get("csx", "0")))
    a("s_lshl_b32 %s, %s, 6" % (s(T0), s(T0)))
    a("s_lshl_b32 %s, %s, 4" % (s(T2), s(sL)))
    a("s_add_u32 %s, %s, %s" % (s(T0), s(T0), s(T2)))
    a("s_mul_i32 %s, %s, 7168" % (s(T0), s(T0)))
    a("s_add_u32 %s, %s, %s" % (s(T0), s(T0), s(T1)))
    a("v_add_u32 v7, %s, v7" % s(T0))
    a("v_cmp_gt_u32 vcc, 28, v6")
    a("v_mov_b32 v28, 0x7f000000")
    a("s_nop 0")
    a("v_cndmask_b32 v7, v28, v7, vcc")
    g1_issue(a)
    a("s_barrier")
    for i in range(8):
        a("s_mov_b32 %s, %d" % (s(T0), i * 2 * 7168))
        a("buffer_load_dwordx4 %s, v7, %s, %s offen" % (v(CSD + 4 * i, 4), s(W1, 4), s(T0)))
    for _ in range(int(OPT.get("early", "3")) - 1):
        g1_issue(a)
    pf_addr(a)
    if OPT.get("tlb", "0") != "0":
        sh = int(OPT.get("tlb"))
        a("v_lshlrev_b32 v2, %d, v3" % sh)
        a("s_lshl_b32 %s, %s, %d" % (s(T0), s(sL), sh + 6))
        a("v_add_u32 v2, %s, v2" % s(T0))
        a("v_cmp_gt_u32 vcc, 0x2400000, v2")
        a("s_and_saveexec_b64 s[96:97], vcc")
        a("s_cbranch_execz L_notlb")
        a("buffer_load_dword v244, v2, %s, 0 offen sc1" % s(WS, 4))
        a.label("L_notlb")
        a("s_mov_b64 exec, -1")
        for b_ in (W2, CR, CI, OUT, DR, DI):
            a("buffer_load_dword v244, v2, %s, 0 offen sc1" % s(b_, 4))


def pf_addr(a):
    a("s_lshl_b32 %s, s2, 2" % s(T0))
    a("s_add_u32 %s, %s, %s" % (s(T0), s(T0), s(sL)))
    a("s_mul_i32 %s, %s, 7168" % (s(T1), s(T0)))
    a("v_lshlrev_b32 v124, 4, v3")
    a("v_add_u32 v124, %s, v124" % s(T1))
    a("v_add_u32 v125, 4096, v124")
    a("s_lshr_b32 %s, %s, 1" % (s(T2), s(T0)))
    a("v_lshrrev_b32 v126, 5, v3"); a("v_lshlrev_b32 v126, 11, v126"); a("v_and_b32 v127, 31, v3"); a("v_lshl_add_u32 v126, v127, 4, v126")
    a("s_lshl_b32 %s, %s, 12" % (s(T3), s(T2))); a("v_add_u32 v126, %s, v126" % s(T3))
    a("v_lshrrev_b32 v127, 4, v3"); a("v_lshlrev_b32 v127, 12, v127"); a("v_and_b32 v2, 15, v3"); a("v_lshl_add_u32 v127, v2, 4, v127")
    a("s_lshl_b32 %s, %s, 14" % (s(T3), s(T2))); a("v_add_u32 v127, %s, v127" % s(T3))


def pf_pair(a, vaddr, sre, sim):
    l2 = a.newlabel("pf2"); l3 = a.newlabel("pf3")
    a("s_bitcmp1_b32 %s, 0" % s(sWAVE))
    a("s_cbranch_scc1 %s" % l2)
    a("buffer_load_dwordx4 v[244:247], %s, %s, 0 offen" % (v(vaddr), s(sre, 4)))
    a("s_branch %s" % l3)
    a.label(l2)
    a("buffer_load_dwordx4 v[244:247], %s, %s, 0 offen" % (v(vaddr), s(sim, 4)))
    a.label(l3)


def loader_g1_s1(a):
    AC = CSD + 32
    PFS = OPT.get("pf", "s") == "s"
    PFT = OPT.get("pf", "s").startswith("t")
    PFK = 99 if PFS else int(OPT.get("pf", "99").lstrip("t"))
    EARLY = int(OPT.get("early", "3"))
    q = ["g0"] * 11 + ["csl"] * 8 + [x for i in range(1, EARLY) for x in ["g%d" % i] * 11]

    def issue(st):
        g1_issue(a); q.extend(["g%d" % st] * 11)

    def need(*tags):
        idx = max(i for i, x in enumerate(q) if x in tags)
        n = len(q) - idx - 1
        del q[:idx + 1]
        return n

    def bar(*tags, lg=False):
        n = need(*tags)
        fine(a)
        a("s_waitcnt vmcnt(%d)%s" % (n, " lgkmcnt(0)" if lg else ""))
        fine(a)
        a("s_barrier")

    def prefetch():
        a.c("warm the memory-side cache with this wave's share of w2 and of the C slices")
        if PFT:
            a("v_mul_u32_u24 v2, 48, v3")
            a("v_add_u32 v124, v124, v2")
            a("v_add_u32 v125, v125, v2")
            a("buffer_load_dword v244, v124, %s, 0 offen" % s(W2, 4))
            a("buffer_load_dword v244, v125, %s, 0 offen" % s(W2, 4))
            q.extend(["pf"] * 2)
        else:
            for i in range(7):
                a("buffer_load_dwordx4 v[244:247], %s, %s, 0 offen offset:%d" % ("v125" if i >= 4 else "v124", s(W2, 4), (i & 3) * 1024))
            q.extend(["pf"] * 7)
        pf_pair(a, 127, CR, CI)
        q.append("pf")

    def cs_chunk(rng):
        for i in rng:
            for d in range(4):
                src = CSD + 4 * i + d
                t_ = AC + 2 * d if i == 0 else AC + 8 + 2 * d
                a("v_lshlrev_b32 %s, 16, %s" % (v(t_), v(src)))
                a("v_and_b32 %s, %s, %s" % (v(t_ + 1), s(sHI), v(src)))
            if i:
                for d in range(4):
                    a("v_pk_add_f32 %s, %s, %s" % (v(AC + 2 * d, 2), v(AC + 2 * d, 2), v(AC + 8 + 2 * d, 2)))

    def after0():
        cs_chunk(range(0, 4))

    def after1():
        cs_chunk(range(4, 8))
        a("v_lshrrev_b32 v28, 5, v3")
        a("s_lshl_b32 %s, %s, 1" % (s(T0), s(sL)))
        a("v_add_u32 v28, %s, v28" % s(T0))
        a("v_lshlrev_b32 v28, 10, v28")
        a("v_and_b32 v29, 31, v3")
        a("v_lshl_add_u32 v28, v29, 5, v28")
        a("v_add_u32 v28, %d, v28" % CSP)
        a("ds_write_b128 v28, %s" % v(AC, 4))
        a("ds_write_b128 v28, %s offset:16" % v(AC + 4, 4))
        a("s_waitcnt lgkmcnt(0)")

    def after2():
        a("s_lshl_b32 %s, %s, 8" % (s(T0), s(sL)))
        a("v_add_u32 v19, %s, v30" % s(T0))
        a("v_add_u32 v29, %d, v19" % CSP)
        for i in range(8):
            a("ds_read_b32 %s, v29 offset:%d" % (v(CSD + i), i * 1024))
        a("s_lshl_b32 %s, %s, 14" % (s(T0), s(sCB)))
        a("s_lshl_b32 %s, %s, 10" % (s(T1), s(sRB)))
        a("s_add_u32 %s, %s, %s" % (s(T1), s(T1), s(T0)))
        a("s_add_u32 %s, %s, %s" % (s(T1), s(T1), hx(CS_OFF)))
        tag_ready(a)
        a("v_lshrrev_b32 v31, 3, v3")
        a("v_lshlrev_b32 v31, 7, v31")
        a("v_and_b32 v28, 7, v3")
        a("v_lshl_add_u32 v31, v28, 2, v31")
        a("v_add_u32 v31, %s, v31" % hx(SF_OFF))
        a("s_waitcnt lgkmcnt(0)")
        for st in (4, 2, 1):
            for i in range(st):
                a("v_add_f32 %s, %s, %s" % (v(CSD + i), v(CSD + i), v(CSD + i + st)))
        a("buffer_store_dword %s, v19, %s, %s offen%s" % (v(CSD), s(WS, 4), s(T1), SC1))
        q.append("cs_store")

    def after3():
        a("s_lshr_b32 %s, %s, 3" % (s(T0), s(sTAU)))
        a("s_lshl_b32 %s, %s, 17" % (s(T1), s(T0)))
        a("s_and_b32 %s, %s, 1" % (s(T2), s(sTAU)))
        a("s_lshl_b32 %s, %s, 15" % (s(T3), s(T2)))
        a("s_add_u32 %s, %s, %s" % (s(T1), s(T1), s(T3)))
        a("s_add_u32 %s, %s, %s" % (s(T1), s(T1), hx(CB_OFF)))
        a("v_lshl_add_u32 v6, v5, 9, v4")
        a("v_add_u32 v6, %s, v6" % s(T1))
        for i in range(4):
            a("v_add_u32 %s, %s, v6" % (v(LVC + i), hx((i & 1) * 65536 + (i >> 1) * 32 * 512)))
        a("s_and_b32 %s, %s, 3" % (s(T1), s(T0)))
        a("s_cmp_eq_u32 %s, 3" % s(T0))
        a("s_cselect_b32 %s, 1, %s" % (s(T1), s(T1)))
        a("s_lshl_b32 %s, %s, 11" % (s(T1), s(T1)))
        a("s_bfe_u32 %s, %s, 0x20001" % (s(T3), s(sTAU)))
        a("s_lshl_b32 %s, %s, 19" % (s(T3), s(T3)))
        a("s_add_u32 %s, %s, %s" % (s(T1), s(T1), s(T3)))
        a("v_lshl_add_u32 v6, v5, 13, v4")
        a("v_add_u32 v6, %s, v6" % s(T1))
        for i in range(4):
            a("v_add_u32 %s, %s, v6" % (v(LVD + i), hx((i >> 1) * 32 * 8192)))
        a("s_lshl_b32 %s, s2, 15" % s(T0))
        a("s_lshl_b32 %s, %s, 13" % (s(T1), s(sL)))
        a("s_add_u32 %s, %s, %s" % (s(T0), s(T0), s(T1)))
        a("s_add_u32 %s, %s, %s" % (s(T0), s(T0), hx(EX_OFF)))
        a("v_lshlrev_b32 v6, 4, v3")
        a("v_add_u32 v6, %s, v6" % s(T0))
        a("v_add_u32 v7, 4096, v6")
        for i in range(4):
            a("v_mov_b32 %s, -1" % v(240 + i))

    def sentinel(i):
        a("buffer_store_dwordx4 v[240:243], %s, %s, 0 offen offset:%d%s" % ("v7" if i >= 4 else "v6", s(WS, 4), (i & 3) * 1024, SC1))
        q.append("sent")

    def after9():
        poll_issue(a, CSD + 20, 31, 4); q.extend(["poll"] * 4)

    def after11():
        a.c("fetch 4 of the 16 partial column sums of this column block per wave, and this class's row stats")
        a("s_lshl_b32 %s, %s, 14" % (s(T0), s(sCB)))
        a("s_lshl_b32 %s, %s, 12" % (s(T1), s(sL)))
        a("s_add_u32 %s, %s, %s" % (s(T0), s(T0), s(T1)))
        a("s_add_u32 %s, %s, %s" % (s(T0), s(T0), hx(CS_OFF)))
        a("v_lshlrev_b32 v28, 4, v3")
        for i in range(4):
            a("buffer_load_dwordx4 %s, v28, %s, %s offen offset:%d%s" % (v(CSD + 4 * i, 4), s(WS, 4), s(T0), i * 1024, SC1))
        a("s_lshl_b32 %s, %s, 10" % (s(T0), s(sRB)))
        a("s_add_u32 %s, %s, %s" % (s(T0), s(T0), hx(STAT_OFF)))
        a("buffer_load_dword %s, v19, %s, %s offen%s" % (v(CSD + 16), s(WS, 4), s(T0), SC1))
        q.extend(["fetch"] * 5)

    def after13():
        a("s_waitcnt vmcnt(%d)" % need("fetch"))
        for d, x in ((0, 4), (2, 6), (8, 12), (10, 14), (0, 8), (2, 10)):
            a("v_pk_add_f32 %s, %s, %s" % (v(CSD + d, 2), v(CSD + d, 2), v(CSD + x, 2)))
        a("s_lshl_b32 %s, %s, 10" % (s(T0), s(sL)))
        a("s_add_u32 %s, %s, %d" % (s(T0), s(T0), CSP))
        a("v_add_u32 v28, %s, v28" % s(T0))
        a("ds_write_b128 v28, %s" % v(CSD, 4))
        a("v_add_u32 v28, %d, v19" % STB)
        a("ds_write_b32 v28, %s" % v(CSD + 16))
        a("s_waitcnt lgkmcnt(0)")

    def after14():
        a("v_add_u32 v28, %d, v19" % CSP)
        for i in range(4):
            a("ds_read_b32 %s, v28 offset:%d" % (v(CSD + i), i * 1024))
        a("v_add_u32 v28, %d, v19" % CSB)
        a("s_waitcnt lgkmcnt(0)")
        a("v_add_f32 %s, %s, %s" % (v(CSD), v(CSD), v(CSD + 1)))
        a("v_add_f32 %s, %s, %s" % (v(CSD + 2), v(CSD + 2), v(CSD + 3)))
        a("v_add_f32 %s, %s, %s" % (v(CSD), v(CSD), v(CSD + 2)))
        a("ds_write_b32 v28, %s" % v(CSD))

    hooks = {0: after0, 1: after1, 2: after2, 9: after9, 11: after11, 13: after13, 14: after14}
    after3()
    for st in range(EARLY, 3):
        issue(st)
    if OPT.get("cov", "0") == "1":
        a("s_cmp_lt_u32 %s, 8" % s(sRB))
        a("s_mov_b32 %s, %d" % (s(T1), 512 * 7168))
        a("s_cselect_b32 %s, %s, %s" % (s(T1), s(T1), hx(-512 * 7168)))
        a("v_add_u32 v2, %s, v7" % s(T1))
        for i in range(8):
            a("s_mov_b32 %s, %d" % (s(T0), i * 2 * 7168))
            a("buffer_load_dwordx4 v[244:247], v2, %s, %s offen" % (s(W1, 4), s(T0)))
        q.extend(["pf"] * 8)
    pf_pair(a, 126, DR, DI); q.append("pf")
    if PFK == -1:
        prefetch()
    if PFS:
        pf_pair(a, 127, CR, CI); q.append("pf")
        a("s_lshl_b32 %s, s2, 2" % s(T0))
        a("s_add_u32 %s, %s, %s" % (s(T0), s(T0), s(sL)))
        a("s_mul_i32 %s, %s, 7168" % (s(T0), s(T0)))
        a("s_add_u32 s30, %s, %s" % (s(W2), s(T0)))
        a("s_addc_u32 s31, %s, 0" % s(W2 + 1))
    bar("g0")
    for k in range(15):
        tags = ["g%d" % (k + 1)]
        if k == FLAGK:
            tags.append("cs_store")
        if k == 11:
            fine(a)
            a("s_waitcnt vmcnt(%d)" % need("g12", "poll"))
            poll_check(a, CSD + 20, 31, "exec", True, 4)
            fine(a)
            a("s_barrier")
        else:
            bar(*tags)
        if k + 3 <= 15:
            issue(k + 3)
        if k == FLAGK:
            flag_store(a, "s")
        if k in hooks:
            hooks[k]()
        if 4 <= k <= 11 and OPT.get("sent", "none") == "g1":
            sentinel(k - 4)
        if k == 4 and OPT.get("sent", "none") == "g1b":
            for i in range(8):
                sentinel(i)
        if k == PFK:
            prefetch()
        if PFS and 3 <= k <= 11:
            for i in range(13 * (k - 3), min(112, 13 * (k - 2))):
                a("s_load_dword s29, s[30:31], %d" % (i * 64))

    def issue_s1(k):
        a("s_add_u32 %s, %s, %d" % (s(sSLOT), s(sSL0), S1SLOTS[k]))
        a("s_mov_b32 %s, %d" % (s(sKA), k * 128))
        for i in range(4):
            dma(a, i * 4096, LVC + i, WS, sKA, coh=True)
        for i in range(4):
            dma(a, 16384 + i * 4096, LVD + i, DI if i & 1 else DR, sKA)

    issue_s1(2)
    fine_dump(a, 0)
    a("s_waitcnt lgkmcnt(0)")
    a("s_barrier")
    for k in (0, 1, 3):
        issue_s1(k)
    g2_loader_setup(a)
    a("s_mul_i32 %s, %s, %d" % (s(T0), s(sKH), 1792 * 2048))
    a("s_lshl_b32 %s, %s, 7" % (s(T1), s(sNB8)))
    a("s_add_u32 %s, %s, %s" % (s(T0), s(T0), s(T1)))
    a("s_and_b32 %s, %s, 7" % (s(T1), s(sLOC)))
    a("s_cmp_ge_u32 %s, 4" % s(T1))
    a("s_cselect_b32 %s, %d, 0" % (s(sADJ), 192 * 2048))
    a("s_lshl_b32 %s, %s, 2" % (s(T1), s(T1)))
    a("s_add_u32 %s, %s, %s" % (s(T1), s(T1), s(sL)))
    a("s_lshl_b32 %s, %s, 12" % (s(T1), s(T1)))
    a("s_add_u32 %s, %s, %s" % (s(T0), s(T0), s(T1)))
    a("s_add_u32 s30, %s, %s" % (s(W2), s(T0)))
    a("s_addc_u32 s31, %s, 0" % s(W2 + 1))
    a("s_and_b32 %s, %s, 4" % (s(sP3), s(sCB8)))
    a("s_and_b32 %s, %s, 4" % (s(sP3), s(sCB8)))
    for st in range(NRB()):
        g2_koff(a, st, False, True)
        for i in range(4):
            a("buffer_load_dwordx4 %s, %s, %s, %s offen" % (v(RBB + 16 * st + 4 * i, 4), v(GVB + i), s(W2, 4), s(sKB)))
    a("v_lshlrev_b32 %s, 4, v3" % v(GWA))
    a("v_add_u32 %s, %s, %s" % (v(GWA), s(sSL0), v(GWA)))
    a("s_waitcnt vmcnt(%d)" % (4 * NRB()))
    a("s_barrier")
    flag_store(a, "h")


RBB = 64
XL = 0
GVX = 62
SOLOB = 65536
RXL = 32768
FLAGK = 5
SYNC = 159744
GWA = 60


def NRB():
    return int(OPT.get("nrb", "0"))


PF_G1 = 28
sADJ = 95


def w2_prefetch(a, halves):
    last = None
    for hs in halves:
        st, r = divmod(hs, 2)
        if st != last:
            if st < NREG:
                j, p_ = divmod(st, 3)
                a("s_xor_b32 s96, %s, %d" % (s(sP3), j))
                a("s_mul_i32 s96, s96, %d" % (224 * 2048))
                if p_:
                    a("s_add_u32 s96, s96, %d" % (p_ * 64 * 2048))
            else:
                a("s_add_u32 s96, %s, %d" % (s(sADJ), (448 * (st - NREG) + 192) * 2048))
            last = st
        for c in (0, 64, 128 * US(), 128 * US() + 64):
            a("s_load_dword s29, s[30:31], s96 offset:%d" % (r * 2048 + c))


def g2_koff(a, st, want_a, want_b):
    j, p_ = divmod(st, 3)
    a("s_xor_b32 %s, %s, %d" % (s(T0), s(sP3), j))
    if want_a:
        a("s_mul_i32 %s, %s, 49152" % (s(sKA), s(T0)))
        if p_:
            a("s_add_u32 %s, %s, %d" % (s(sKA), s(sKA), p_ * 16384))
    if want_b:
        a("s_mul_i32 %s, %s, %d" % (s(sKB), s(T0), 224 * 2048))
        if p_:
            a("s_add_u32 %s, %s, %d" % (s(sKB), s(sKB), p_ * 64 * 2048))


NJ = 28
NREG = 24
NSOLO = 4


def compute_g2(a):
    ACC = 128; ACY = 192; XR = 224; RX = 96
    FR = [32, 64]
    gN0, gZ0, gZ1 = 6, 7, 8
    cN = 11
    a("v_and_b32 v17, 15, v3")
    a("v_lshlrev_b32 v17, 15, v17")
    a("s_lshl_b32 %s, %s, 21" % (s(T0), s(sWM)))
    a("s_lshl_b32 %s, %s, 11" % (s(T1), s(sCLS)))
    a("s_add_u32 %s, %s, %s" % (s(T0), s(T0), s(T1)))
    a("s_lshl_b32 %s, %s, 7" % (s(T1), s(sNB8)))
    a("s_add_u32 %s, %s, %s" % (s(T0), s(T0), s(T1)))
    a("s_mul_i32 %s, %s, %d" % (s(T1), s(sKH), 128 * US()))
    a("s_add_u32 %s, %s, %s" % (s(T0), s(T0), s(T1)))
    a("s_lshl_b32 %s, %s, 6" % (s(T1), s(sWN)))
    a("s_add_u32 %s, %s, %s" % (s(T0), s(T0), s(T1)))
    a("v_add_u32 v17, %s, v17" % s(T0))
    a("v_lshrrev_b32 v19, 1, v18")
    a("s_lshl_b32 %s, %s, 2" % (s(T1), s(sWN)))
    a("v_add_u32 v19, %s, v19" % s(T1))
    a("v_bfe_u32 v20, v3, 1, 3")
    a("v_xor_b32 v19, v19, v20")
    a("v_lshlrev_b32 v19, 4, v19")
    a("v_and_b32 v20, 1, v18")
    a("v_lshl_add_u32 v19, v20, 3, v19")
    a("v_and_b32 v20, 15, v3")
    a("v_lshl_add_u32 v19, v20, 7, v19")
    a("s_lshl_b32 %s, %s, 13" % (s(T1), s(sWM)))
    a("s_add_u32 %s, %s, %d" % (s(T1), s(T1), XL))
    a("v_add_u32 v19, %s, v19" % s(T1))
    a("v_xor_b32 v27, 32, v19")
    for mt in range(4):
        a("s_mov_b32 %s, %d" % (s(T3 + mt), mt * 16 * 16 * 2048))
    a("v_add_u32 v17, v17, v21")
    a("s_lshl_b32 %s, %s, 12" % (s(T0), s(sWN)))
    a("s_add_u32 %s, %s, 16384" % (s(T0), s(T0)))
    rowimg_frag_addr(a, gZ0, gZ1, T0)
    a("v_bfe_u32 v20, v3, 2, 2")
    a("v_lshl_add_u32 v23, v18, 3, v20")
    a("v_lshlrev_b32 v23, 8, v23")
    a("v_and_b32 v22, 3, v3")
    a("v_lshl_add_u32 v23, v22, 3, v23")
    a("v_and_b32 v22, 1, v18")
    a("v_lshl_or_b32 v20, v22, 2, v20")
    a("s_lshl_b32 %s, %s, 1" % (s(T0), s(sWN)))
    a("s_lshl_b32 %s, %s, 2" % (s(T1), s(sKH)))
    a("s_add_u32 %s, %s, %s" % (s(T0), s(T0), s(T1)))
    a("v_xor_b32 v20, %s, v20" % s(T0))
    a("v_lshl_add_u32 v23, v20, 5, v23")
    a("v_add_u32 %s, 16384, v23" % v(gN0))
    a("v_mov_b32 v28, 0xff")
    a("v_mov_b32 v31, %s" % s(sTAG))
    a("v_xor_b32 v15, 0x20000, v24")
    a("v_xor_b32 v16, 0x20000, v25")
    for i in range(96):
        a("v_mov_b32 %s, 0" % v(ACC + i))
    a("s_mov_b32 %s, %d" % (s(sSLOT), 4 * G2SLOT))

    def set_addr(joint):
        r = ["v_add_u32 %s, s14, %s" % (v(cM0), v(vM0)), "v_add_u32 %s, s14, %s" % (v(cM1), v(vM1))]
        if joint:
            r.append("v_add_u32 %s, s14, %s" % (v(cN), v(gN0)))
            for nt, x in ((1, 32), (2, 128), (3, 160)):
                r.append("v_xor_b32 %s, %d, %s" % (v(cN + nt), x, v(cN)))
        else:
            r += ["v_add_u32 %s, s14, %s" % (v(cN), v(gZ0)), "v_add_u32 %s, s14, %s" % (v(cN + 1), v(gZ1))]
        return r

    def next_slot():
        return ["s_add_u32 s14, s14, %d" % G2SLOT, "s_cmp_eq_u32 s14, %d" % (G2SLOT * 5), "s_cselect_b32 s14, 0, s14"]

    def reads(fs, ks, joint):
        r = []
        for t in range(4):
            if joint:
                for h in range(2):
                    r.append("ds_read_b64_tr_b16 %s, %s offset:%d" % (v(FR[fs] + 16 + 4 * t + 2 * h, 2), v(cN + t), ks * 8192 + h * 1024))
            elif t < 2:
                r.append("ds_read_b128 %s, %s offset:%d" % (v(FR[fs] + 16 + 4 * t, 4), v(cN + ks), t * 2048))
            r.append("ds_read_b128 %s, %s offset:%d" % (v(FR[fs] + 4 * t, 4), v(cM1 if ks else cM0), t * 2048))
        return r

    ot = lambda mt, nt: ACC + 4 * (nt * 4 + mt)

    def jm(fs, order=(0, 1, 2, 3)):
        o = OPT.get("ord", "n")
        if o == "m" and order == (0, 1, 2, 3):
            od = [(nt, mt) for mt in range(4) for nt in order]
        elif o == "z" and order == (0, 1, 2, 3):
            od = [(nt, mt if nt % 2 == 0 else 3 - mt) for nt in order for mt in range(4)]
        else:
            od = [(nt, mt) for nt in order for mt in range(4)]
        return [mfma(ot(mt, nt), FR[fs] + 16 + 4 * nt, FR[fs] + 4 * mt) for nt, mt in od]

    def sm(fs):
        return [mfma(ACY + 4 * (nt * 4 + mt), FR[fs] + 16 + 4 * nt, FR[fs] + 4 * mt) for nt in range(2) for mt in range(4)]

    a.all(set_addr(True))
    a("s_barrier")
    mark(a, 10)
    a.all(reads(0, 0, True))
    a("s_mov_b32 %s, 0" % s(sCNT))
    a("s_waitcnt lgkmcnt(0)")

    def joint_iter(nxt_joint, extra=(), pre_bar=(), flag=None, bar=True):
        nr = OPT.get("noread") == "1"
        interleave(a, jm(0), ([] if nr else reads(1, 1, True)) + next_slot() + set_addr(nxt_joint), per=int(OPT.get("g2per", "2")))
        a("s_waitcnt lgkmcnt(0)")
        a.all(pre_bar)
        fine(a)
        if bar:
            a("s_barrier")
        fine(a)
        interleave(a, jm(1), ([] if nr else reads(0, 0, True)) + list(extra), per=1)
        a("s_waitcnt lgkmcnt(0)")

    ZK = int(OPT.get("zk", "6"))

    def g2_loop(n):
        a("s_mov_b32 %s, 0" % s(sCNT))
        loop = a.newlabel("g2_loop")
        a.raw(".p2align 6")
        a.label(loop)
        joint_iter(True, ["s_add_u32 s15, s15, 1", "s_cmp_lt_u32 s15, %d" % n])
        a("s_cbranch_scc1 %s" % loop)

    g2_loop(ZK)
    joint_iter(True, pre_bar=["s_waitcnt vmcnt(0)"], flag="z")
    mark(a, 26)
    g2_loop(NJ - 2 - ZK)
    SM = [[32 + 4 * i for i in range(8)], [64 + 4 * i for i in range(8)]]
    SN = [[96 + 4 * i for i in range(4)], [112 + 4 * i for i in range(4)]]

    def sreads(fs):
        r = []
        for ks in range(2):
            for nt in range(2):
                r.append("ds_read_b128 %s, %s offset:%d" % (v(SN[fs][2 * ks + nt], 4), v(cN + ks), nt * 2048))
            for mt in range(4):
                r.append("ds_read_b128 %s, %s offset:%d" % (v(SM[fs][4 * ks + mt], 4), v(cM1 if ks else cM0), mt * 2048))
        return r

    def smf(fs):
        return [mfma(ACY + 4 * (nt * 4 + mt), SN[fs][2 * ks + nt], SM[fs][4 * ks + mt])
                for ks in range(2) for nt in range(2) for mt in range(4)]

    def solo_addr(j):
        return ["v_add_u32 %s, %s, %s" % (v(c), hx(SOLOB + j * 24576), v(b))
                for c, b in ((cM0, vM0), (cM1, vM1), (cN, gZ0), (cN + 1, gZ1))]

    interleave(a, jm(0), reads(1, 1, True) + solo_addr(0), per=2)
    a("s_waitcnt lgkmcnt(0)")
    a("s_barrier")
    m = jm(1, (2, 3, 0, 1))
    interleave(a, m[:8], sreads(0) + solo_addr(1), per=2)
    for i in range(8):
        a(m[8 + i])
        b = ACC + 32 + 4 * i
        for j in range(4):
            a("v_bfi_b32 %s, v28, v31, %s" % (v(b + j), v(b + j)))
        a("buffer_store_dwordx4 %s, %s, %s, 0 offen offset:%d sc1" % (v(b, 4), "v16" if i >= 4 else "v15", s(WS, 4), (i & 3) * 1024))
    a("s_waitcnt lgkmcnt(0)")
    mark(a, 11)
    for k in range(NSOLO):
        last = k == NSOLO - 1
        interleave(a, smf(k & 1), [] if last else sreads(1 - (k & 1)) + (solo_addr(k + 2) if k + 2 < NSOLO else []), per=2)
        if not last:
            a("s_waitcnt lgkmcnt(0)")
        if k == int(OPT.get("rxj", "2")):
            a("s_barrier")
    mark(a, 12)
    a("v_lshlrev_b32 v26, 4, v3")
    a("s_lshl_b32 %s, %s, 13" % (s(T0), s(sWAVE)))
    a("s_add_u32 %s, %s, %d" % (s(T0), s(T0), RXL))
    a("v_add_u32 v26, %s, v26" % s(T0))
    a("s_barrier")
    for mt in range(4):
        for nt in range(2):
            a("ds_read_b64 %s, %s offset:%d" % (v(XR + 4 * mt + 2 * nt, 2), "v27" if nt else "v19", mt * 2048))
    for i in range(8):
        a("ds_read_b128 %s, v26 offset:%d" % (v(RX + 4 * i, 4), i * 1024))
    a("s_waitcnt lgkmcnt(8)")
    for i in range(16):
        a("v_lshlrev_b32 %s, 16, %s" % (v(32 + 2 * i), v(XR + i)))
        a("v_and_b32 %s, %s, %s" % (v(33 + 2 * i), s(sHI), v(XR + i)))
    a("s_waitcnt lgkmcnt(0)")
    mark(a, 13)
    TMP = 80
    PK = [64, 68, 72, 76]
    MIMIC = OPT.get("mimic", "0") == "1"

    def rnd(regs, t):
        for i, r_ in enumerate(regs):
            a("v_cvt_pk_bf16_f32 %s, %s, %s" % (v(t + i), v(r_), v(r_ + 1)))
        for i, r_ in enumerate(regs):
            a("v_lshlrev_b32 %s, 16, %s" % (v(r_), v(t + i)))
            a("v_and_b32 %s, %s, %s" % (v(r_ + 1), s(sHI), v(t + i)))

    for mt in range(4):
        offs = [4 * mt, 4 * mt + 2, 16 + 4 * mt, 16 + 4 * mt + 2]
        o = [ACC + x for x in offs]
        y = [ACY + x for x in offs]
        xf = [32 + 8 * mt + 2 * i for i in range(4)]
        for i in range(4):
            a("v_pk_add_f32 %s, %s, %s" % (v(o[i], 2), v(o[i], 2), v(RX + offs[i], 2)))
        if MIMIC:
            rnd(o, 48)
        silu_pk(a, o, [TMP + 2 * i for i in range(4)])
        if MIMIC:
            rnd(o, 48)
            rnd(y, 52)
        if MIMIC:
            for i in range(4):
                a("v_pk_mul_f32 %s, %s, %s" % (v(o[i], 2), v(o[i], 2), v(y[i], 2)))
            rnd(o, 48)
            for i in range(4):
                a("v_pk_add_f32 %s, %s, %s" % (v(o[i], 2), v(o[i], 2), v(xf[i], 2)))
        else:
            for i in range(4):
                a("v_pk_fma_f32 %s, %s, %s, %s" % (v(o[i], 2), v(o[i], 2), v(y[i], 2), v(xf[i], 2)))
        P = PK[mt]
        for i in range(4):
            a("v_cvt_pk_bf16_f32 %s, %s, %s" % (v(P + i), v(o[i]), v(o[i] + 1)))
        a("s_nop 1")
        a("v_permlane16_swap_b32 %s, %s" % (v(P), v(P + 2)))
        a("v_permlane16_swap_b32 %s, %s" % (v(P + 1), v(P + 3)))
        a("buffer_store_dwordx4 %s, v17, %s, %s offen%s" % (v(P, 4), s(OUT, 4), s(T3 + mt), OPT.get("outmod", "_sc0_sc1").replace("_", " ")))
    flag_store(a, "epoch", 0)
    mark(a, 14)
    fine_dump(a, 1)
    a("s_endpgm")


GVA, GVB, GVA2, GVB2, GVC, GVD = 32, 36, 40, 44, 48, 52
GZA, GHA = 58, 59


def g2_loader_setup(a):
    a("v_lshrrev_b32 v6, 4, v3")
    a("s_lshr_b32 %s, %s, 1" % (s(T0), s(sL)))
    a("s_lshl_b32 %s, %s, 2" % (s(T0), s(T0)))
    a("v_or_b32 v7, %s, v6" % s(T0))
    a("v_lshlrev_b32 v7, 1, v7")
    a("v_and_b32 v28, 15, v3")
    a("v_xor_b32 v7, v7, v28")
    a("v_lshlrev_b32 v7, 4, v7")
    a("v_lshl_add_u32 v6, v6, 11, v7")
    a("s_mul_i32 %s, %s, %d" % (s(T0), s(sKH), 1792 * 2048))
    a("s_lshl_b32 %s, %s, 13" % (s(T1), s(sL)))
    a("s_add_u32 %s, %s, %s" % (s(T0), s(T0), s(T1)))
    a("s_lshl_b32 %s, %s, 7" % (s(T1), s(sNB8)))
    a("s_add_u32 %s, %s, %s" % (s(T0), s(T0), s(T1)))
    a("v_add_u32 v6, %s, v6" % s(T0))
    a("v_and_b32 v7, 128, v7")
    a("v_mul_u32_u24 v7, %d, v7" % (US() - 1))
    a("v_add_u32 v6, v6, v7")
    for i in range(4):
        a("v_add_u32 %s, %s, v6" % (v(GVB + i), hx(i * 16 * 2048)))
    for i in range(2):
        a("v_add_u32 %s, %s, v6" % (v(GVB2 + i), hx(((i + 2) * 16 + 192) * 2048)))
    a("s_lshl_b32 %s, %s, 4" % (s(T0), s(sCLS)))
    a("s_lshl_b32 %s, %s, 3" % (s(T1), s(sKH)))
    a("s_add_u32 %s, %s, %s" % (s(T0), s(T0), s(T1)))
    a("s_mul_i32 %s, %s, 49152" % (s(T1), s(T0)))
    a("s_add_u32 %s, %s, %s" % (s(T1), s(T1), hx(HR_OFF)))
    a("s_lshl_b32 %s, %s, 13" % (s(T2), s(T0)))
    a("s_add_u32 %s, %s, %s" % (s(T2), s(T2), hx(HL_OFF)))
    a("v_and_b32 v6, 64, v4")
    a("v_lshlrev_b32 v6, 7, v6")
    a("v_and_b32 v7, 48, v4")
    a("v_add_u32 v7, v7, v6")
    a("v_lshl_add_u32 v7, v5, 6, v7")
    a("v_add_u32 v7, %s, v7" % s(T1))
    for i in range(4):
        a("v_add_u32 %s, %d, v7" % (v(GVA + i), i * 32 * 64))
    a("v_and_b32 v7, 32, v4")
    a("v_lshl_add_u32 v6, v7, 7, v6")
    a("v_and_b32 v7, 16, v4")
    a("v_add_u32 v6, v6, v7")
    a("v_lshl_add_u32 v6, v5, 5, v6")
    a("v_add_u32 v6, %s, v6" % s(T2))
    for i in range(4):
        a("v_add_u32 %s, %d, v6" % (v(GVA2 + i), i * 32 * 32))
    a("s_cmp_gt_u32 %s, 8" % s(sCLS))
    a("s_cselect_b32 %s, -1, 0" % s(T0))
    a("s_sub_u32 %s, 16, %s" % (s(T2), s(sCLS)))
    a("s_cmp_gt_u32 %s, 8" % s(sCLS))
    a("s_cselect_b32 %s, %s, %s" % (s(T1), s(T2), s(sCLS)))
    a("s_lshl_b32 %s, %s, 19" % (s(T2), s(T1)))
    a("s_add_u32 %s, %s, %s" % (s(T2), s(T2), hx(ZT_OFF)))
    for i in range(4):
        a("v_add_u32 v6, %d, v5" % (32 * i))
        a("v_lshlrev_b32 v6, 4, v6")
        a("v_add_u32 v6, %s, v6" % s(sCLS))
        a("v_xor_b32 v6, %s, v6" % s(T0))
        a("v_subrev_u32 v6, %s, v6" % s(T0))
        a("v_and_b32 v6, 2047, v6")
        a("v_lshl_add_u32 %s, v6, 12, v4" % v(GVC + i))
    a("s_lshl_b32 %s, %s, 6" % (s(T3), s(sNB8)))
    a("s_mul_i32 %s, %s, %d" % (s(T4), s(sKH), 64 * US()))
    a("s_add_u32 %s, %s, %s" % (s(T3), s(T3), s(T4)))
    for i in range(2):
        a("v_add_u32 v6, %d, v5" % (32 * i))
        a("v_add_u32 v6, %s, v6" % s(T3))
        a("v_xor_b32 v6, %s, v6" % s(T0))
        a("v_subrev_u32 v6, %s, v6" % s(T0))
        a("v_and_b32 v7, 3, v6")
        a("v_bfe_u32 v6, v6, 2, 8")
        a("v_lshl_add_u32 v6, v7, 8, v6")
        a("v_and_b32 v7, 48, v4")
        a("v_lshl_add_u32 v6, v6, 6, v7")
        a("v_and_b32 v7, 64, v4")
        a("v_lshl_add_u32 v6, v7, 10, v6")
        a("v_add_u32 %s, %s, v6" % (v(GVD + i), s(T2)))
    a("s_lshl_b32 %s, %s, 1" % (s(T3), s(T3)))
    a("s_lshl_b32 %s, %s, 11" % (s(T4), s(sCLS)))
    a("s_add_u32 %s, %s, %s" % (s(T3), s(T3), s(T4)))
    a("v_lshl_add_u32 v6, v5, 15, v4")
    a("v_add_u32 %s, %s, v6" % (v(GVX), s(T3)))
    a("s_and_b32 %s, %s, 7" % (s(T3), s(T1)))
    a("s_lshl_b32 %s, %s, 9" % (s(T3), s(T3)))
    a("s_add_u32 %s, %s, %s" % (s(T3), s(T3), hx(ZF_OFF - SF_OFF)))
    a("v_add_u32 %s, %s, v31" % (v(GZA), s(T3)))
    a("s_andn2_b32 %s, %s, 127" % (s(T2), s(sHF)))
    a("v_and_b32 v6, 7, v3")
    a("v_lshlrev_b32 v6, 2, v6")
    a("v_add_u32 %s, %s, v6" % (v(GHA), s(T2)))
    a("s_and_b32 %s, %s, 4" % (s(T2), s(sCB8)))
    a("s_lshl_b32 %s, 15, %s" % (s(sMK), s(T2)))
    a("s_xor_b32 %s, %s, 255" % (s(sMK + 2), s(sMK)))
    a("s_bitset0_b32 %s, %s" % (s(sMK), s(sCB8)))
    a("s_mov_b32 %s, 0" % s(sMK + 1))
    a("s_mov_b32 %s, 0" % s(sMK + 3))


def loader_g2(a):
    a("s_add_u32 %s, %s, %d" % (s(sWRAP), s(sSL0), G2SLOT * 5))
    NT = NJ + NSOLO
    q = []

    def slot_of(st):
        a("s_add_u32 %s, %s, %d" % (s(sSLOT), s(sSL0), ((st + 4) % 5) * G2SLOT))

    def issue(st, want_a=True, want_b=True):
        slot_of(st)
        if st < NREG:
            breg = want_b and st < NRB()
            want_b = want_b and not breg
            if want_a or want_b:
                g2_koff(a, st, want_a, want_b)
            if want_a:
                for i in range(4):
                    dma(a, i * 4096, GVA + i, WS, sKA, coh=True)
            if want_b:
                for i in range(4):
                    dma(a, 16384 + i * 4096, GVB + i, W2, sKB)
            if breg:
                a("v_add_u32 v6, %s, %s" % (hx(((st + 4) % 5) * G2SLOT + 16384), v(GWA)))
                for i in range(4):
                    a("ds_write_b128 v6, %s offset:%d" % (v(RBB + 16 * st + 4 * i, 4), i * 4096))
            q.extend([st] * (4 * want_a + 4 * want_b))
        elif st < NJ:
            lam = st - NREG
            a("s_mov_b32 %s, %d" % (s(sKA), lam * 16384))
            a("s_mov_b32 %s, %d" % (s(sKB), (448 * lam + 192) * 2048))
            for i in range(4):
                dma(a, i * 4096, GVA2 + i, WS, sKA, coh=True)
            for i in range(2):
                dma(a, 16384 + i * 4096, GVB + i, W2, sKB)
            for i in range(2):
                dma(a, 16384 + (i + 2) * 4096, GVB2 + i, W2, sKB)
            q.extend([st] * 8)
        else:
            k = st - NJ
            a("s_add_u32 %s, %s, %d" % (s(sSLOT), s(sSL0), SOLOB + k * 24576))
            a("s_mov_b32 %s, %d" % (s(sKA), (k & 1) * 128))
            a("s_mov_b32 %s, %d" % (s(sKB), (k & 1) * 131072 + (k >> 1) * 262144))
            for i in range(4):
                dma(a, i * 4096, GVC + i, CI if k >= 2 else CR, sKA)
            for i in range(2):
                dma(a, 16384 + i * 4096, GVD + i, WS, sKB, coh=True)
            q.extend([st] * 6)

    def wait(*tags):
        idx = max(i for i, x in enumerate(q) if x in tags)
        a("s_waitcnt vmcnt(%d)" % (len(q) - idx - 1))
        del q[:idx + 1]

    assert NRB() == 0
    issue(0, want_a=False)
    if int(OPT.get("pw", "0")):
        w2_prefetch(a, range(10, 10 + int(OPT.get("pw", "0"))))
    a("s_barrier")
    issue(1, want_a=False)
    issue(2, want_a=False)
    top = a.newlabel("pre"); got = a.newlabel("got"); nogot = a.newlabel("nogot")
    a("s_mov_b32 %s, 0" % s(T6))
    a("s_mov_b32 %s, 0" % s(T7))
    a.label(top)
    poll_issue(a, 29, GHA)
    a("s_waitcnt vmcnt(0)")
    a("s_add_u32 %s, %s, 1" % (s(T7), s(T7)))
    poll_test(a, 29, s(sMK, 2))
    a("s_cbranch_scc0 %s" % got)
    a("s_sleep 2")
    a("s_cmp_lt_u32 %s, %s" % (s(T7), OPT.get("np", "2")))
    a("s_cbranch_scc1 %s" % top)
    a("s_branch %s" % nogot)
    a.label(got)
    mark(a, 9)
    for st in range(3):
        issue(st, want_b=False)
    a("s_mov_b32 %s, 1" % s(T6))
    a.label(nogot)
    a("s_barrier")
    late = a.newlabel("late"); go = a.newlabel("go")
    a("s_cmp_eq_u32 %s, 0" % s(T6))
    a("s_cbranch_scc1 %s" % late)
    issue(3)
    a("s_waitcnt vmcnt(16)")
    a("s_barrier")
    issue(4)
    a("s_waitcnt vmcnt(20)")
    a("s_branch %s" % go)
    a.label(late)
    for st in range(3, 5):
        issue(st, want_a=False)
    poll_check(a, 29, GHA, s(sMK, 2), False)
    mark(a, 8)
    issue(0, want_b=False)
    issue(1, want_b=False)
    a("s_waitcnt vmcnt(4)")
    a("s_barrier")
    for st in range(2, 5):
        issue(st, want_b=False)
    a("s_waitcnt vmcnt(12)")
    a.label(go)
    del q[:]
    q.extend([1] + [2] * 4 + [3] * 4 + [4] * 4)
    nxt = 5
    a.skipdma = True
    for k in range(0, NJ):
        last_issue = min(k + 5, NT - 1) if k < NJ - 3 else NT - 1
        tags = [k + 1] if k < NJ - 1 else [NT - 1]
        chk = None
        if nxt <= 12 <= last_issue:
            tags.append("p2"); chk = "h2"
        if nxt <= NJ <= last_issue:
            tags.append("p3"); chk = "z"
        fine(a)
        if k > 0:
            wait(*tags)
        else:
            q.remove(1)
        if chk == "h2":
            poll_check(a, 29, GHA, s(sMK + 2, 2), True)
        elif chk is not None:
            a("s_mov_b32 %s, -1" % s(sMK))
            poll_check(a, 29, GZA, s(sMK, 2), True)
        fine(a)
        a("s_barrier")
        while nxt <= last_issue:
            issue(nxt); nxt += 1
        PD = int(OPT.get("pd", "9"))
        if PD and k + 5 + PD < NJ:
            w2_prefetch(a, [2 * (k + 5 + PD), 2 * (k + 5 + PD) + 1])
        if k == int(OPT.get("zk", "6")):
            flag_store(a, "z")
        if k == NJ - 2:
            assert (k + 4) % 5 * G2SLOT == XL
            a("s_add_u32 %s, %s, %d" % (s(sSLOT), s(sSL0), XL))
            for i in range(4):
                a("s_mov_b32 %s, %d" % (s(sKA), i * 32 * 32768))
                dma(a, i * 4096, GVX, XS, sKA)
            q.extend(["x"] * 4)
        if k == 3:
            poll_issue(a, 29, GHA); q.append("p2")
        if k == NJ - 9:
            poll_issue(a, 29, GZA); q.append("p3")
    assert (NJ - 1 + 4) % 5 * G2SLOT == RXL
    RX = 64
    a("s_lshl_b32 %s, s2, 15" % s(T0))
    a("s_lshl_b32 %s, %s, 13" % (s(T1), s(sL)))
    a("s_add_u32 %s, %s, %s" % (s(T0), s(T0), s(T1)))
    a("s_add_u32 %s, %s, %s" % (s(T0), s(T0), hx(EX_OFF)))
    a("v_lshlrev_b32 v6, 4, v3")
    a("v_add_u32 v24, %s, v6" % s(T0))
    a("v_add_u32 v25, 4096, v24")
    a("s_add_u32 %s, %s, %d" % (s(T1), s(T1), RXL))
    a("v_add_u32 v6, %s, v6" % s(T1))
    a("v_mov_b32 v28, 0xff")
    a("v_mov_b32 v31, %s" % s(sTAG))
    a("s_barrier")
    top = a.newlabel("rx"); ok = a.newlabel("rxok")
    a("s_mov_b32 %s, 0" % s(T7))
    a.label(top)
    for i in range(8):
        a("buffer_load_dwordx4 %s, %s, %s, 0 offen offset:%d sc1" % (v(RX + 4 * i, 4), "v25" if i >= 4 else "v24", s(WS, 4), (i & 3) * 1024))
    a("s_waitcnt vmcnt(0)")
    a("v_or3_b32 v26, %s, %s, %s" % (v(RX), v(RX + 1), v(RX + 2)))
    a("v_bitop3_b32 v27, %s, %s, %s bitop3:0x80" % (v(RX), v(RX + 1), v(RX + 2)))
    for i in range(3, 31, 2):
        a("v_or3_b32 v26, v26, %s, %s" % (v(RX + i), v(RX + i + 1)))
        a("v_bitop3_b32 v27, v27, %s, %s bitop3:0x80" % (v(RX + i), v(RX + i + 1)))
    a("v_or_b32 v26, v26, %s" % v(RX + 31))
    a("v_and_b32 v27, v27, %s" % v(RX + 31))
    a("v_xor_b32 v26, v26, v31")
    a("v_xor_b32 v27, v27, v31")
    a("v_or_b32 v26, v26, v27")
    a("v_and_b32 v26, v26, v28")
    a("v_cmp_ne_u32 vcc, 0, v26")
    a("s_add_u32 %s, %s, 1" % (s(T7), s(T7)))
    a("s_nop 3")
    a("s_cbranch_vccz %s" % ok)
    a("s_sleep 2")
    a("s_cmp_lt_u32 %s, %d" % (s(T7), SPIN_MAX))
    a("s_cbranch_scc1 %s" % top)
    a.label(ok)
    for i in range(8):
        for j in range(4):
            a("v_bfi_b32 %s, v28, 0, %s" % (v(RX + 4 * i + j), v(RX + 4 * i + j)))
        a("ds_write_b128 v6, %s offset:%d" % (v(RX + 4 * i, 4), i * 1024))
    mark(a, 11, T7)
    fine_dump(a, 1)
    a("s_waitcnt lgkmcnt(0)")
    a("s_barrier")
    a("s_endpgm")


HEADER = """; Kernarg layout (88 bytes, ptrs only, base s[0:1]): 0 A_x, 8 dft_seq_re, 16 dft_seq_im, 24 dft_hid_re,
"""


def main():
    global STAMP
    args = sys.argv[1:]
    global FINE, NSGPR
    if "--fine" in args:
        FINE = True; NSGPR = 102; args.remove("--fine")
    if "--stamp" in args:
        STAMP = True; args.remove("--stamp")
    for x in list(args):
        if x.startswith("--") and "=" in x:
            k, val = x[2:].split("="); OPT[k] = val; args.remove(x)
    a = Asm()
    a.raw(HEADER.rstrip("\n"))
    nv = 256 if (STAMP or FINE or OPT.get('dbgt') == '1') else 248
    a.raw("; @launch grid=(256,1,1) block=(512,1,1) lds=163840")
    a.raw('.amdgcn_target "amdgcn-amd-amdhsa--gfx950"')
    a.raw(".text")
    name = NAME + "_kernel"
    kernel_header(a, name)
    prologue(a, "L_end")
    if FINE:
        a("s_mov_b32 s100, 0")
        a("v_mov_b32 v250, 0")
    mark(a, 0)
    a("s_cmp_ge_u32 %s, 4" % s(sWAVE))
    a("s_cbranch_scc1 L_loader")
    compute_setup(a)
    a("s_barrier")
    prep_ln(a)
    a("s_waitcnt lgkmcnt(0)")
    tag_ready(a)
    a("v_mov_b32 v29, %d" % SYNC)
    a("v_mov_b32 v30, 1")
    a("s_mov_b64 exec, 1")
    a("ds_add_u32 v29, v30")
    a("s_mov_b64 exec, -1")
    a("s_mov_b32 %s, 0" % s(T7))
    a.label("L_sync")
    a("ds_read_b32 v30, v29")
    a("s_add_u32 %s, %s, 1" % (s(T7), s(T7)))
    a("s_waitcnt lgkmcnt(0)")
    a("v_readfirstlane_b32 %s, v30" % s(T6))
    a("s_cmp_ge_u32 %s, %d" % (s(T7), SPIN_MAX))
    a("s_cbranch_scc1 L_synced")
    a("s_cmp_lt_u32 %s, 4" % s(T6))
    a("s_cbranch_scc1 L_sync")
    a.label("L_synced")
    dft = prep_dft(a)
    dft(0)
    a("s_waitcnt lgkmcnt(0)")
    dft(1)
    dft(3)
    compute_g1_s1(a)
    compute_g2(a)
    a.label("L_loader")
    if OPT.get("lprio", "0") != "0":
        a("s_setprio %s" % OPT.get("lprio", "0"))
    loader_setup(a)
    loader_g1_s1(a)
    loader_g2(a)
    a.label("L_end")
    a("s_endpgm")
    a.raw('.section .rodata,"a"')
    a.raw(kernel_desc(name, nv, NSGPR).rstrip("\n"))
    out = args[0] if args else "cdna_kernels/%s.s" % NAME
    open(out, "w").write(a.text())


if __name__ == "__main__":
    main()
```

```python
import math, struct, sys

NAME = "recurrent_scan__spectral_fnet__dense_activation_silu__prompt"

CS_OFF = 0x0000000
STAT_OFF = 0x0040000
HF_OFF = 0x0050000
SF_OFF = 0x0052000
ZF_OFF = 0x0054000
EP_OFF = 0x0058000
CB_OFF = 0x0400000
ZT_OFF = 0x0800000
HR_OFF = 0x0D00000
HL_OFF = 0x1900000
EX_OFF = 0x1C00000
STAMP_OFF = 0x4000000
WS_SZ = 0x10000000

STAMP = False
SC1 = " sc1"
SPIN_MAX = 200000
OPT = {}

G1SLOT = 45056
G2SLOT = 32768
STG = 143360
CSP = 135168
CSB = 161792
STB = 162816
S1SLOTS = [0, 32768, 65536, 98304]

sWAVE, sXCD, sLOC, sRB, sCB, sTAU, sCLS, sCB8, sKH = 3, 4, 5, 6, 7, 8, 9, 10, 11
sWM, sWN, sSLOT, sCNT = 12, 13, 14, 15
sL = 12
T0, T1, T2, T3, T4, T5, T6, T7 = 16, 17, 18, 19, 20, 21, 22, 23
sNB8 = 39
sTAG, sMK = 38, 76
sSP, sHALF, sHF = 26, 27, 28
WS, W1, DR, DI, W2, CR, CI, XS, OUT, DBG = 40, 44, 48, 52, 56, 60, 64, 68, 72, 76
sNL2E, sHI = 80, 82
C1, C2, C3 = 84, 86, 88
sKA, sKB, sWRAP, sSL0, sP3 = 90, 91, 92, 93, 94
NSGPR = 100


def f32(x):
    return struct.unpack("<I", struct.pack("<f", x))[0]


def hx(x):
    return "0x%x" % (x & 0xFFFFFFFF)


def v(i, n=1):
    return "v%d" % i if n == 1 else "v[%d:%d]" % (i, i + n - 1)


def s(i, n=1):
    return "s%d" % i if n == 1 else "s[%d:%d]" % (i, i + n - 1)


class Asm:
    def __init__(self):
        self.lines = []
        self.uid = 0

    def __call__(self, txt):
        self.lines.append("    " + txt)

    def label(self, l):
        self.lines.append(l + ":")

    def newlabel(self, p):
        self.uid += 1
        return "L_%s_%d" % (p, self.uid)

    def c(self, txt):
        self.lines.append("    ; " + txt)

    def raw(self, txt):
        self.lines.append(txt)

    def all(self, lst):
        for x in lst:
            self(x)

    def text(self):
        return "\n".join(self.lines) + "\n"


def srd(a, dst, ptr, off, size):
    if off:
        a("s_add_u32 %s, %s, %s" % (s(dst), s(ptr), hx(off)))
        a("s_addc_u32 %s, %s, 0" % (s(dst + 1), s(ptr + 1)))
    else:
        a("s_mov_b32 %s, %s" % (s(dst), s(ptr)))
        a("s_mov_b32 %s, %s" % (s(dst + 1), s(ptr + 1)))
    a("s_mov_b32 %s, %s" % (s(dst + 2), hx(size)))
    a("s_mov_b32 %s, 0x20000" % s(dst + 3))


def kernel_header(a, name):
    a.raw(".globl %s" % name)
    a.raw(".p2align 8")
    a.raw(".type %s,@function" % name)
    a.label(name)


def kernel_desc(name, vgpr, sgpr):
    acc = (vgpr + 3) // 4 * 4
    return "\n".join([
        ".p2align 6",
        ".amdhsa_kernel %s" % name,
        "  .amdhsa_next_free_vgpr %d" % vgpr,
        "  .amdhsa_next_free_sgpr %d" % sgpr,
        "  .amdhsa_accum_offset %d" % acc,
        "  .amdhsa_group_segment_fixed_size 0",
        "  .amdhsa_kernarg_size 88",
        "  .amdhsa_user_sgpr_count 2",
        "  .amdhsa_user_sgpr_kernarg_segment_ptr 1",
        "  .amdhsa_system_sgpr_workgroup_id_x 1",
        ".end_amdhsa_kernel",
    ]) + "\n"


NEG1 = " neg_lo:[0,1] neg_hi:[0,1]"


def mark(a, idx, extra=None):
    if not STAMP:
        return
    lab = a.newlabel("nost")
    a("s_and_b32 s96, %s, 3" % s(sWAVE))
    a("s_cmp_lg_u32 s96, 0")
    a("s_cbranch_scc1 %s" % lab)
    a("s_memrealtime s[96:97]")
    a("s_memtime s[98:99]")
    a("s_waitcnt lgkmcnt(0)")
    a("v_mov_b32 v252, s96")
    a("v_mov_b32 v253, %s" % ("s98" if extra is None else s(extra)))
    a("s_lshl_b32 s96, s2, 8")
    a("s_lshl_b32 s97, %s, 5" % s(sWAVE))
    a("s_add_u32 s96, s96, s97")
    a("s_add_u32 s96, s96, %s" % hx(STAMP_OFF + idx * 8))
    a("v_mov_b32 v254, s96")
    a("buffer_store_dwordx2 v[252:253], v254, %s, 0 offen" % s(WS, 4))
    a.label(lab)


FINE = False


def fine(a):
    if not FINE:
        return
    a("s_memtime s[98:99]")
    a("s_waitcnt lgkmcnt(0)")
    a("s_mov_b32 m0, s100")
    a("s_nop 0")
    a("v_writelane_b32 v250, s98, m0")
    a("s_add_u32 s100, s100, 1")


def fine_dump(a, slot):
    if not FINE:
        return
    a("s_lshl_b32 s96, s2, 11")
    a("s_lshl_b32 s97, %s, 8" % s(sWAVE))
    a("s_add_u32 s96, s96, s97")
    a("s_add_u32 s96, s96, %s" % hx(STAMP_OFF + 0x100000 * (1 + slot)))
    a("v_lshlrev_b32 v251, 2, v3")
    a("buffer_store_dword v250, v251, %s, s96 offen" % s(WS, 4))
    a("s_mov_b32 s100, 0")
    a("s_nop 1")
    a("v_mov_b32 v250, 0")


def interleave(a, main, fill, per=1, start=0):
    fi = 0
    for i, m in enumerate(main):
        a(m)
        if i >= start:
            for _ in range(per):
                if fi < len(fill):
                    a(fill[fi]); fi += 1
    while fi < len(fill):
        a(fill[fi]); fi += 1


def mfma(d, sa, sb, c=None):
    return "v_mfma_f32_16x16x32_bf16 %s, %s, %s, %s" % (v(d, 4), v(sa, 4), v(sb, 4), v(d, 4) if c is None else c)


def prologue(a, endlab):
    a("s_cmp_ge_u32 s2, 256")
    a("s_cbranch_scc1 %s" % endlab)
    if OPT.get("cpf", "1") == "1":
        a("s_getpc_b64 s[96:97]")
        a.label("L_pc")
        a("s_lshr_b32 s98, s2, 3")
        a("s_lshl_b32 s98, s98, 13")
        a("v_lshl_add_u32 v2, v0, 4, s98")
        a("v_cmp_gt_u32 vcc, L_end-L_pc, v2")
        a("s_and_saveexec_b64 s[98:99], vcc")
        a("s_cbranch_execz L_nocpf")
        a("global_load_dwordx4 v[244:247], v2, s[96:97]")
        a.label("L_nocpf")
        a("s_mov_b64 exec, -1")
    a("s_load_dwordx16 s[16:31], s[0:1], 0")
    a("s_load_dwordx4 s[32:35], s[0:1], 64")
    a("s_load_dwordx2 s[36:37], s[0:1], 80")
    a("v_lshrrev_b32 v1, 6, v0")
    a("v_and_b32 v3, 63, v0")
    a("s_and_b32 %s, s2, 7" % s(sXCD))
    a("s_lshr_b32 %s, s2, 3" % s(sLOC))
    a("v_readfirstlane_b32 %s, v1" % s(sWAVE))
    a("s_and_b32 s6, s4, 1"); a("s_lshl_b32 s6, s6, 3"); a("s_and_b32 s7, s5, 7"); a("s_add_u32 s6, s6, s7")
    a("s_lshr_b32 s7, s4, 1"); a("s_lshl_b32 s7, s7, 2"); a("s_lshr_b32 s8, s5, 3"); a("s_add_u32 s7, s7, s8")
    a("s_lshl_b32 s8, s4, 5"); a("s_add_u32 s8, s8, s5")
    a("s_mov_b32 s9, s6")
    a("s_lshr_b32 s11, s7, 3")
    a("s_and_b32 s10, s7, 7")
    a("s_mov_b32 %s, %s" % (s(sNL2E), hx(f32(-1.4426950408889634))))
    a("s_mov_b32 %s, %s" % (s(sNL2E + 1), hx(f32(-1.4426950408889634))))
    a("s_mov_b32 %s, 0xffff0000" % s(sHI))
    a("s_lshr_b32 s38, %s, 1" % s(sTAU))
    a("s_and_b32 s39, %s, 1" % s(sTAU))
    a("v_lshlrev_b32 v26, 18, v1")
    a("v_and_b32 v27, 31, v3")
    a("v_lshl_add_u32 v26, v27, 3, v26")
    a("v_lshrrev_b32 v27, 5, v3")
    a("v_lshl_add_u32 v26, v27, 9, v26")
    a("s_lshl_b32 s95, s38, 11")
    a("v_add_u32 v26, s95, v26")
    a("s_lshl_b32 s95, s39, 8")
    a("v_add_u32 v26, s95, v26")
    a("v_xor_b32 v27, 0x100, v26")
    a("v_mov_b32 v28, %d" % SYNC)
    a("v_mov_b32 v29, 0")
    a("ds_write_b32 v28, v29")
    a("s_waitcnt lgkmcnt(0)")
    srd(a, XS, 16, 0, 2048 * 1024 * 2)
    a("s_cmp_ge_u32 %s, 4" % s(sWAVE))
    a("s_cbranch_scc1 L_nox")
    for ri, B in enumerate(RAWB):
        a("s_mov_b32 s95, %s" % hx(ri * 0x100000))
        for hh in range(2):
            for jj in range(2):
                a("buffer_load_dwordx2 %s, %s, %s, s95 offen offset:%d" % (
                    v(B + 4 * hh + 2 * jj, 2), "v27" if hh else "v26", s(XS, 4), 1024 * jj))
    a.label("L_nox")
    srd(a, WS, 36, 0, WS_SZ)
    srd(a, W1, 28, 0, 1024 * 3584 * 2)
    srd(a, DR, 22, 0, 1024 * 1024 * 2)
    srd(a, DI, 24, 0, 1024 * 1024 * 2)
    srd(a, W2, 30, 0, 3584 * 1024 * 2)
    srd(a, CR, 18, 0, 2048 * 2048 * 2)
    srd(a, CI, 20, 0, 2048 * 2048 * 2)
    srd(a, OUT, 32, 0, 2048 * 1024 * 2)
    a("s_mov_b32 %s, s38" % s(sSP))
    a("s_mov_b32 %s, s39" % s(sHALF))
    a("s_lshl_b32 %s, %s, 4" % (s(sHF), s(sRB)))
    a("s_add_u32 %s, %s, %s" % (s(sHF), s(sHF), s(sCB)))
    a("s_lshr_b32 s95, %s, 3" % s(sHF))
    a("s_lshl_b32 s95, s95, 7")
    a("s_lshl_b32 %s, %s, 2" % (s(sHF), s(sCB8)))
    a("s_add_u32 %s, %s, s95" % (s(sHF), s(sHF)))
    a("s_add_u32 %s, %s, %s" % (s(sHF), s(sHF), hx(HF_OFF)))
    if US() == 1:
        a("s_lshl_b32 %s, %s, 1" % (s(sNB8), s(sCB8)))
    elif US() == 2:
        a("s_and_b32 s95, %s, 1" % s(sCB8))
        a("s_lshr_b32 %s, %s, 1" % (s(sNB8), s(sCB8)))
        a("s_lshl_b32 %s, %s, 2" % (s(sNB8), s(sNB8)))
        a("s_add_u32 %s, %s, s95" % (s(sNB8), s(sNB8)))
    else:
        a("s_and_b32 s95, %s, 3" % s(sCB8))
        a("s_lshr_b32 %s, %s, 2" % (s(sNB8), s(sCB8)))
        a("s_lshl_b32 %s, %s, 3" % (s(sNB8), s(sNB8)))
        a("s_add_u32 %s, %s, s95" % (s(sNB8), s(sNB8)))
    a("s_load_dword %s, s[36:37], %s" % (s(sTAG), hx(EP_OFF)))


def US():
    return int(OPT.get("us", "1"))


ROWB = [32, 76]
RAWB = [32, 76, 240, 120]


def tag_ready(a):
    a("s_add_u32 %s, %s, 0x9e3779b9" % (s(sTAG), s(sTAG)))


def flag_store(a, kind, wave=4):
    lab = a.newlabel("nf")
    a("s_cmp_lg_u32 %s, %d" % (s(sWAVE), wave))
    a("s_cbranch_scc1 %s" % lab)
    if kind == "h":
        a("v_mov_b32 v2, %s" % s(sHF))
    elif kind == "epoch":
        a("s_cmp_lg_u32 s2, 0")
        a("s_cbranch_scc1 %s" % lab)
        a("v_mov_b32 v2, %s" % hx(EP_OFF))
    else:
        idx = "s2" if kind == "s" else s(sTAU)
        a("s_lshr_b32 s96, %s, 3" % idx)
        a("s_lshl_b32 s96, s96, 7")
        a("s_and_b32 s97, %s, 7" % idx)
        a("s_lshl_b32 s97, s97, 2")
        a("s_add_u32 s96, s96, s97")
        a("s_add_u32 s96, s96, %s" % hx(SF_OFF if kind == "s" else ZF_OFF))
        a("v_mov_b32 v2, s96")
    a("v_mov_b32 v1, %s" % s(sTAG))
    a("s_mov_b64 exec, 1")
    a("buffer_store_dword v1, v2, %s, 0 offen sc1" % s(WS, 4))
    a("s_mov_b64 exec, -1")
    a("s_nop 3")
    a.label(lab)


def poll_issue(a, vdst, vaddr, n=1):
    for i in range(n):
        a("buffer_load_dword %s, %s, %s, 0 offen offset:%d sc1" % (v(vdst + i), v(vaddr), s(WS, 4), i * 1024))


def poll_test(a, vdst, mask, n=1):
    a("v_cmp_ne_u32 vcc, %s, %s" % (s(sTAG), v(vdst)))
    for i in range(1, n):
        a("v_cmp_ne_u32 s[96:97], %s, %s" % (s(sTAG), v(vdst + i)))
        a("s_or_b64 vcc, vcc, s[96:97]")
    a("s_nop 0")
    a("s_and_b64 vcc, vcc, %s" % mask)


def poll_check(a, vdst, vaddr, mask, issued, n=1):
    top = a.newlabel("poll"); done = a.newlabel("pdone"); chk = a.newlabel("pchk")
    a("s_mov_b32 %s, 0" % s(T7))
    if issued:
        a("s_branch %s" % chk)
    a.label(top)
    poll_issue(a, vdst, vaddr, n)
    a("s_waitcnt vmcnt(0)")
    a.label(chk)
    a("s_add_u32 %s, %s, 1" % (s(T7), s(T7)))
    poll_test(a, vdst, mask, n)
    a("s_cbranch_scc0 %s" % done)
    a("s_sleep %s" % OPT.get("sleep", "4"))
    a("s_cmp_lt_u32 %s, %d" % (s(T7), SPIN_MAX))
    a("s_cbranch_scc1 %s" % top)
    a.label(done)


def prep_ln(a):
    a("v_lshlrev_b32 v31, 8, v1")
    a("v_and_b32 v2, 31, v3")
    a("v_lshl_add_u32 v31, v2, 3, v31")
    a("v_lshrrev_b32 v2, 5, v3")
    a("v_lshl_add_u32 v31, v2, 12, v31")
    a("v_add_u32 v31, %d, v31" % STG)
    a("s_and_b32 %s, %s, 15" % (s(T0), s(sSP)))
    a("s_lshl_b32 %s, %s, 7" % (s(T0), s(T0)))
    a("s_lshr_b32 %s, %s, 4" % (s(T1), s(sSP)))
    a("s_add_u32 %s, %s, %s" % (s(T0), s(T0), s(T1)))
    a("s_lshl_b32 %s, %s, 3" % (s(T1), s(sWAVE)))
    a("s_add_u32 %s, %s, %s" % (s(T0), s(T0), s(T1)))
    a("s_lshl_b32 %s, %s, 3" % (s(T0), s(T0)))
    a("s_add_u32 %s, %s, %s" % (s(T0), s(T0), hx(STAT_OFF)))
    a("v_mov_b32 v2, %s" % s(T0))
    for ps in range(2):
        a("s_waitcnt vmcnt(%d)" % (8 if ps == 0 else 0))
        prep_ln_pass(a, ps)
    lab = a.newlabel("nostat")
    a("s_cmp_lg_u32 %s, 0" % s(sHALF))
    a("s_cbranch_scc1 %s" % lab)
    a("s_mov_b64 exec, 1")
    for ri in range(4):
        a("buffer_store_dwordx2 %s, v2, %s, 0 offen offset:%d%s" % (v(ROWB[ri & 1] + 32 * (ri >> 1), 2), s(WS, 4), ri * 256, SC1))
    a("s_mov_b64 exec, -1")
    a.label(lab)


def prep_ln_pass(a, ps):
    streams = []
    for rj, B in enumerate(ROWB):
        ri = 2 * ps + rj
        RAW, X, T, M, R, D = RAWB[ri], B + 8, B + 24, B + 32, B + 34, B + 36
        S1, S2 = (T5, T6) if rj == 0 else (24, 25)
        L = []
        for p in range(8):
            L.append("v_lshlrev_b32 %s, 16, %s" % (v(X + 2 * p), v(RAW + p)))
            L.append("v_and_b32 %s, %s, %s" % (v(X + 2 * p + 1), s(sHI), v(RAW + p)))
        pk = lambda d, x, y, m="": L.append("v_pk_add_f32 %s, %s, %s%s" % (v(d, 2), v(x, 2), v(y, 2), m))

        def wsum(r, sd):
            for m in ("quad_perm:[1,0,3,2] row_mask:0xf", "quad_perm:[2,3,0,1] row_mask:0xf",
                      "row_half_mirror row_mask:0xf", "row_mirror row_mask:0xf",
                      "row_bcast:15 row_mask:0xa", "row_bcast:31 row_mask:0xc"):
                L.append("s_nop 0")
                L.append("v_add_f32_dpp %s, %s, %s %s bank_mask:0xf" % (v(r), v(r), v(r), m))
            L.append("s_nop 0")
            L.append("v_readlane_b32 %s, %s, 63" % (s(sd), v(r)))
            L.append("s_nop 0")
        pk(T, X, X + 2); pk(T + 2, X + 4, X + 6); pk(T + 4, X + 8, X + 10); pk(T + 6, X + 12, X + 14)
        pk(T, T, T + 2); pk(T + 4, T + 4, T + 6); pk(T, T, T + 4)
        L.append("v_add_f32 %s, %s, %s" % (v(T), v(T), v(T + 1)))
        wsum(T, S1)
        L.append("v_mov_b32 %s, %s" % (v(M), hx(f32(1.0 / 1024))))
        L.append("v_mul_f32 %s, %s, %s" % (v(M), s(S1), v(M)))
        for g4 in range(2):
            for p in range(4):
                pk(D + 2 * p, X + 8 * g4 + 2 * p, M, " op_sel_hi:[1,0]" + NEG1)
            for p in range(4):
                t = T + 2 * (p & 1)
                if g4 == 0 and p < 2:
                    L.append("v_pk_mul_f32 %s, %s, %s" % (v(t, 2), v(D + 2 * p, 2), v(D + 2 * p, 2)))
                else:
                    L.append("v_pk_fma_f32 %s, %s, %s, %s" % (v(t, 2), v(D + 2 * p, 2), v(D + 2 * p, 2), v(t, 2)))
        pk(T, T, T + 2)
        L.append("v_add_f32 %s, %s, %s" % (v(T), v(T), v(T + 1)))
        wsum(T, S2)
        L.append("v_mov_b32 %s, %s" % (v(R), hx(f32(1.0 / 1024))))
        L.append("v_mul_f32 %s, %s, %s" % (v(R), s(S2), v(R)))
        L.append("v_cvt_pk_bf16_f32 %s, %s, %s" % (v(R), v(R), v(R)))
        L.append("v_lshlrev_b32 %s, 16, %s" % (v(R), v(R)))
        L.append("v_add_f32 %s, %s, %s" % (v(R), hx(f32(1e-5)), v(R)))
        L.append("v_cvt_pk_bf16_f32 %s, %s, %s" % (v(R), v(R), v(R)))
        L.append("v_lshlrev_b32 %s, 16, %s" % (v(R), v(R)))
        L.append("v_sqrt_f32 %s, %s" % (v(R), v(R)))
        L.append("v_cvt_pk_bf16_f32 %s, %s, %s" % (v(M), v(M), v(M)))
        L.append("v_cvt_pk_bf16_f32 %s, %s, %s" % (v(R), v(R), v(R)))
        L.append("v_lshlrev_b32 %s, 16, %s" % (v(M), v(M)))
        L.append("v_lshlrev_b32 %s, 16, %s" % (v(R), v(R)))
        L.append("v_rcp_f32 %s, %s" % (v(R), v(R)))
        for p in range(4):
            pk(D + 2 * p, X + 2 * p, M, " op_sel_hi:[1,0]" + NEG1)
        if ps == 0:
            L.append("v_mov_b32 %s, %s" % (v(B), v(M)))
            L.append("v_mov_b32 %s, %s" % (v(B + 1), v(R)))
        else:
            L.append("v_mov_b32 %s, %s" % (v(M + 1), v(R)))
        for p in range(4):
            L.append("v_cvt_pk_bf16_f32 %s, %s, %s" % (v(T + p), v(D + 2 * p), v(D + 2 * p + 1)))
        for p in range(4):
            L.append("v_lshlrev_b32 %s, 16, %s" % (v(D + 2 * p), v(T + p)))
            L.append("v_and_b32 %s, %s, %s" % (v(D + 2 * p + 1), s(sHI), v(T + p)))
        for p in range(4):
            L.append("v_pk_mul_f32 %s, %s, %s op_sel_hi:[1,0]" % (v(D + 2 * p, 2), v(D + 2 * p, 2), v(R, 2)))
        for p in range(4):
            L.append("v_cvt_pk_bf16_f32 %s, %s, %s" % (v(T + p), v(D + 2 * p), v(D + 2 * p + 1)))
        for p in range(4):
            L.append("v_lshlrev_b32 %s, 16, %s" % (v(X + 2 * p), v(T + p)))
            L.append("v_and_b32 %s, %s, %s" % (v(X + 2 * p + 1), s(sHI), v(T + p)))
        pk(D, X, X + 4); pk(D + 2, X + 2, X + 6)
        pk(D + 4, X, X + 4, NEG1); pk(D + 6, X + 2, X + 6, NEG1)
        for p in range(4):
            L.append("v_cvt_pk_f16_f32 %s, %s, %s" % (v(T + p), v(D + 2 * p), v(D + 2 * p + 1)))
        for wh in range(2):
            L.append("ds_write_b64 v31, %s offset:%d" % (v(T + 2 * wh, 2), wh * 8192 + ri * 1024))
        streams.append(L)
    for x, y in zip(*streams):
        a(x); a(y)


def prep_dft(a0):
    a = Asm()
    a("s_lshr_b32 %s, %s, 1" % (s(T0), s(sWAVE)))
    a("s_lshl_b32 %s, %s, 13" % (s(T1), s(T0)))
    a("s_add_u32 %s, %s, %d" % (s(T1), s(T1), STG))
    a("v_lshlrev_b32 v122, 2, v3")
    a("v_add_u32 v122, %s, v122" % s(T1))
    IN = [32, 48]
    for ab in range(2):
        for j in range(8):
            a("ds_read2st64_b32 %s, v122 offset0:%d offset1:%d" % (v(IN[ab] + 2 * j, 2), ab * 16 + j, ab * 16 + j + 8))
    a("s_lshl_b32 %s, %s, 9" % (s(T1), s(sSP)))
    a("s_lshl_b32 %s, %s, 8" % (s(T2), s(sHALF)))
    a("s_add_u32 %s, %s, %s" % (s(T1), s(T1), s(T2)))
    a("s_lshl_b32 %s, %s, 17" % (s(T2), s(T0)))
    a("s_add_u32 %s, %s, %s" % (s(T1), s(T1), s(T2)))
    a("s_add_u32 %s, %s, %s" % (s(T1), s(T1), hx(CB_OFF)))
    a("v_lshlrev_b32 v123, 2, v3")
    a("v_add_u32 v123, %s, v123" % s(T1))
    for r_, val in ((C1, math.cos(math.pi / 8)), (C2, math.cos(math.pi / 4)), (C3, math.cos(3 * math.pi / 8))):
        a("s_mov_b32 %s, %s" % (s(r_), hx(f32(val))))
        a("s_mov_b32 %s, %s" % (s(r_ + 1), hx(f32(val))))
    head = a.lines
    var = {}
    for parity in range(2):
        free = list(range(64, 120, 2))
        alloc = lambda: free.pop(0)

        def rel(*rs):
            free.extend(rs)

        def add(x, y):
            d = alloc(); a("v_pk_add_f32 %s, %s, %s" % (v(d, 2), v(x, 2), v(y, 2))); return d

        def sub(x, y):
            d = alloc(); a("v_pk_add_f32 %s, %s, %s%s" % (v(d, 2), v(x, 2), v(y, 2), NEG1)); return d

        def mul(x, c):
            d = alloc(); a("v_pk_mul_f32 %s, %s, %s" % (v(d, 2), v(x, 2), s(c, 2))); return d

        def fma(x, c, y, nx=False, ny=False):
            d = alloc()
            mod = " neg_lo:[%d,0,%d] neg_hi:[%d,0,%d]" % (nx, ny, nx, ny) if (nx or ny) else ""
            a("v_pk_fma_f32 %s, %s, %s, %s%s" % (v(d, 2), v(x, 2), s(c, 2), v(y, 2), mod)); return d

        def mix(r, neg):
            d = alloc()
            for h in range(2):
                a("v_fma_mix_f32 %s, %s, 1.0, %s%s op_sel:[%d,0,%d] op_sel_hi:[1,0,1]" % (v(d + h), v(r), "-" if neg else "", v(r + 1), h, h))
            rel(r)
            return d

        def dft(base):
            p = {}; q = {}
            if parity == 0:
                u = [mix(base + 2 * j, False) for j in range(8)]
                uu = []; uv = []
                for j in range(4):
                    uu.append(add(u[j], u[j + 4])); uv.append(sub(u[j], u[j + 4])); rel(u[j], u[j + 4])
                e0 = add(uu[0], uu[2]); e1 = add(uu[1], uu[3])
                p[4] = sub(uu[0], uu[2]); q[4] = sub(uu[1], uu[3]); rel(*uu)
                p[0] = add(e0, e1); p[8] = sub(e0, e1); rel(e0, e1)
                dm = sub(uv[1], uv[3]); dp = add(uv[1], uv[3])
                p[2] = fma(dm, C2, uv[0]); p[6] = fma(dm, C2, uv[0], nx=True)
                q[2] = fma(dp, C2, uv[2]); q[6] = fma(dp, C2, uv[2], ny=True)
                rel(dm, dp, *uv)
            else:
                w = [mix(base + 2 * j, True) for j in range(8)]
                aa = {}; bb = {}
                for j in (1, 2, 3):
                    aa[j] = sub(w[j], w[8 - j]); bb[j] = add(w[j], w[8 - j]); rel(w[j], w[8 - j])
                Ap = fma(aa[2], C2, w[0]); Am = fma(aa[2], C2, w[0], nx=True); rel(aa[2], w[0])
                t = mul(aa[1], C1); G1 = fma(aa[3], C3, t); rel(t)
                t = mul(aa[1], C3); G3 = fma(aa[3], C1, t, nx=True); rel(t, aa[1], aa[3])
                p[1] = add(Ap, G1); p[7] = sub(Ap, G1); p[3] = add(Am, G3); p[5] = sub(Am, G3); rel(Ap, Am, G1, G3)
                Bp = fma(bb[2], C2, w[4]); B3 = fma(bb[2], C2, w[4], ny=True); rel(bb[2], w[4])
                t = mul(bb[1], C3); H1 = fma(bb[3], C1, t); rel(t)
                t = mul(bb[1], C1); H3 = fma(bb[3], C3, t, nx=True); rel(t, bb[1], bb[3])
                q[1] = add(H1, Bp); q[7] = sub(H1, Bp); q[3] = add(H3, B3); q[5] = sub(H3, B3); rel(Bp, B3, H1, H3)
            return p, q

        a.lines = var[(1, parity)] = []
        pa, qa = dft(IN[0])
        a.lines = var[(2, parity)] = []
        pb, qb = dft(IN[1])
        tmpd = []
        for _ in range(4):
            r_ = alloc(); tmpd += [r_, r_ + 1]
        t2 = [alloc(), alloc()]
        cnt = [0]

        def st(reg, arr):
            d = tmpd[cnt[0] % len(tmpd)]; cnt[0] += 1
            a("v_cvt_pk_bf16_f32 %s, %s, %s" % (v(d), v(reg), v(reg + 1)))
            a("s_mov_b32 %s, %s" % (s(T1), hx(arr * 65536)))
            a("buffer_store_dword %s, v123, %s, %s offen%s" % (v(d), s(WS, 4), s(T1), SC1))

        rs = [2, 4, 6] if parity == 0 else [1, 3, 5, 7]
        a.lines = var[(3, parity, 0)] = []
        def comb(x, y, arr1, arr2):
            a("v_pk_add_f32 %s, %s, %s" % (v(t2[0], 2), v(x, 2), v(y, 2)))
            a("v_pk_add_f32 %s, %s, %s%s" % (v(t2[1], 2), v(x, 2), v(y, 2), NEG1))
            st(t2[0], arr1); st(t2[1], arr2)
        if parity == 0:
            comb(pa[0], pb[0], 0, 4); comb(pa[8], pb[8], 1, 5)
        for r_ in rs:
            comb(pa[r_], pb[r_], r_ * 8, r_ * 8 + 4); comb(qa[r_], qb[r_], r_ * 8 + 1, r_ * 8 + 5)
        a.lines = var[(3, parity, 1)] = []
        if parity == 0:
            st(pa[0], 0); st(pb[0], 1); st(pa[8], 4); st(pb[8], 5)
        for r_ in rs:
            a("v_pk_add_f32 %s, %s, %s%s" % (v(t2[0], 2), v(pa[r_], 2), v(qb[r_], 2), NEG1))
            a("v_pk_add_f32 %s, %s, %s" % (v(t2[1], 2), v(qa[r_], 2), v(pb[r_], 2)))
            st(t2[0], r_ * 8); st(t2[1], r_ * 8 + 1)
            a("v_pk_add_f32 %s, %s, %s" % (v(t2[0], 2), v(pa[r_], 2), v(qb[r_], 2)))
            a("v_pk_add_f32 %s, %s, %s%s" % (v(t2[1], 2), v(qa[r_], 2), v(pb[r_], 2), NEG1))
            st(t2[0], r_ * 8 + 4); st(t2[1], r_ * 8 + 5)

    def split(lines):
        idx = [i for i, x in enumerate(lines) if "buffer_store" in x]
        assert len(idx) == 16
        return lines[:idx[7] + 1], lines[idx[7] + 1:]

    def emit(cases):
        done = a0.newlabel("dd")
        labs = [a0.newlabel("dc") for _ in cases]
        uniq = []
        for l_, c in enumerate(cases):
            if c not in uniq:
                uniq.append(c)
        if len(uniq) == 2:
            a0("s_bitcmp1_b32 %s, 0" % s(sWAVE))
            a0("s_cbranch_scc1 %s" % labs[1])
            a0.lines += cases[0]; a0("s_branch %s" % done)
            a0.label(labs[1]); a0.lines += cases[1]
        else:
            for l_ in range(1, 4):
                a0("s_cmp_eq_u32 %s, %d" % (s(sWAVE), l_))
                a0("s_cbranch_scc1 %s" % labs[l_])
            for l_ in range(4):
                if l_:
                    a0.label(labs[l_])
                a0.lines += cases[l_]
                if l_ < 3:
                    a0("s_branch %s" % done)
        a0.label(done)

    def piece(n):
        if n == 0:
            a0.lines += head
        elif n == 1:
            emit([var[(1, l_ & 1)] + var[(2, l_ & 1)] for l_ in range(4)])
        else:
            emit([var[(3, l_ & 1, l_ >> 1)] for l_ in range(4)])
    return piece


def rowimg_frag_addr(a, dst0, dst1, rowbase_sgpr):
    a("v_and_b32 %s, 15, v3" % v(dst0))
    a("v_lshlrev_b32 %s, 7, %s" % (v(dst0), v(dst0)))
    a("v_lshrrev_b32 %s, 4, v3" % v(dst1))
    a("v_bfe_u32 v2, v3, 1, 3")
    a("v_xor_b32 %s, %s, v2" % (v(dst1), v(dst1)))
    a("v_lshl_add_u32 %s, %s, 4, %s" % (v(dst0), v(dst1), v(dst0)))
    a("v_add_u32 %s, %s, %s" % (v(dst0), s(rowbase_sgpr), v(dst0)))
    a("v_xor_b32 %s, 64, %s" % (v(dst1), v(dst0)))


def silu_tail(a, regs, tmp):
    for t in tmp:
        a("v_exp_f32 %s, %s" % (v(t), v(t)))
        a("v_exp_f32 %s, %s" % (v(t + 1), v(t + 1)))
    for t in tmp:
        a("v_pk_add_f32 %s, %s, 1.0 op_sel_hi:[1,0]" % (v(t, 2), v(t, 2)))
    for t in tmp:
        a("v_rcp_f32 %s, %s" % (v(t), v(t)))
        a("v_rcp_f32 %s, %s" % (v(t + 1), v(t + 1)))
    for r_, t in zip(regs, tmp):
        a("v_pk_mul_f32 %s, %s, %s" % (v(r_, 2), v(r_, 2), v(t, 2)))


def silu_pk(a, regs, tmp):
    for r_, t in zip(regs, tmp):
        a("v_pk_mul_f32 %s, %s, %s" % (v(t, 2), v(r_, 2), s(sNL2E, 2)))
    silu_tail(a, regs, tmp)


ACC1 = 128
vM0, vM1, vNa, vNb, vNc = 4, 5, 6, 7, 8
cM0, cM1, cNa, cNb, cNc = 9, 10, 11, 12, 13
vZ0, vZ1 = 14, 15


def compute_setup(a):
    a("s_lshr_b32 %s, %s, 1" % (s(sWM), s(sWAVE)))
    a("s_and_b32 %s, %s, 1" % (s(sWN), s(sWAVE)))
    a("s_lshl_b32 %s, s2, 15" % s(T0))
    a("s_lshl_b32 %s, %s, 13" % (s(T1), s(sWAVE)))
    a("s_add_u32 %s, %s, %s" % (s(T0), s(T0), s(T1)))
    a("s_add_u32 %s, %s, %s" % (s(T0), s(T0), hx(EX_OFF)))
    a("v_lshlrev_b32 v24, 4, v3")
    a("v_add_u32 v24, %s, v24" % s(T0))
    a("v_add_u32 v25, 4096, v24")
    a("s_lshl_b32 %s, %s, 13" % (s(T0), s(sWM)))
    rowimg_frag_addr(a, vM0, vM1, T0)
    a("s_lshl_b32 %s, %s, 13" % (s(T0), s(sWN)))
    a("s_add_u32 %s, %s, 16384" % (s(T0), s(T0)))
    rowimg_frag_addr(a, vZ0, vZ1, T0)
    a("v_lshrrev_b32 v18, 4, v3")
    a("v_bfe_u32 v17, v3, 2, 2")
    a("v_lshl_add_u32 v17, v18, 3, v17")
    a("v_mul_u32_u24 v17, 448, v17")
    a("v_and_b32 v19, 3, v3")
    a("v_lshl_add_u32 v17, v19, 3, v17")
    a("v_and_b32 v19, 1, v18")
    a("v_lshlrev_b32 v19, 5, v19")
    a("s_lshl_b32 %s, %s, 6" % (s(T0), s(sWN)))
    a("s_add_u32 %s, %s, 16384" % (s(T0), s(T0)))
    a("v_add_u32 v20, %s, v17" % s(T0))
    a("v_add_u32 %s, v20, v19" % v(vNa))
    a("v_sub_u32 %s, v20, v19" % v(vNb))
    a("s_lshl_b32 %s, %s, 5" % (s(T0), s(sWN)))
    a("v_xor_b32 v20, %s, v19" % s(T0))
    a("v_add_u32 v20, v20, v17")
    a("v_add_u32 %s, %d, v20" % (v(vNc), 16384 + 384))
    a("v_and_b32 v21, 1, v18")
    a("v_lshlrev_b32 v21, 5, v21")
    a("v_lshrrev_b32 v19, 1, v18")
    a("v_lshl_add_u32 v21, v19, 4, v21")
    a("s_lshl_b32 %s, %s, 4" % (s(T0), s(sRB)))
    a("s_add_u32 %s, %s, %s" % (s(T0), s(T0), s(sCB)))
    a("s_mul_i32 %s, %s, 49152" % (s(T1), s(T0)))
    a("s_lshl_b32 %s, %s, 13" % (s(T2), s(sWN)))
    a("s_add_u32 %s, %s, %s" % (s(T1), s(T1), s(T2)))
    a("s_lshl_b32 %s, %s, 12" % (s(T2), s(sWM)))
    a("s_add_u32 %s, %s, %s" % (s(T1), s(T1), s(T2)))
    a("s_add_u32 %s, %s, %s" % (s(T1), s(T1), hx(HR_OFF)))
    a("v_and_b32 v22, 15, v3")
    a("v_lshl_add_u32 v17, v22, 6, v21")
    a("v_add_u32 v17, %s, v17" % s(T1))
    a("s_lshl_b32 %s, %s, 13" % (s(T1), s(T0)))
    a("s_lshl_b32 %s, %s, 12" % (s(T2), s(sWN)))
    a("s_add_u32 %s, %s, %s" % (s(T1), s(T1), s(T2)))
    a("s_lshl_b32 %s, %s, 11" % (s(T2), s(sWM)))
    a("s_add_u32 %s, %s, %s" % (s(T1), s(T1), s(T2)))
    a("s_add_u32 %s, %s, %s" % (s(T1), s(T1), hx(HL_OFF)))
    a("v_and_b32 v20, 1, v18")
    a("v_lshl_add_u32 v20, v20, 4, v22")
    a("v_lshlrev_b32 v20, 5, v20")
    a("v_lshl_add_u32 v20, v19, 4, v20")
    a("v_add_u32 v20, %s, v20" % s(T1))
    a("s_lshl_b32 %s, %s, 7" % (s(T1), s(sWN)))
    a("s_add_u32 %s, %s, %d" % (s(T1), s(T1), CSB))
    a("v_lshlrev_b32 v26, 4, v18")
    a("v_add_u32 v26, %s, v26" % s(T1))
    a("s_lshl_b32 %s, %s, 6" % (s(T1), s(sWN)))
    a("s_add_u32 %s, %s, %d" % (s(T1), s(T1), CSB + 768))
    a("v_lshlrev_b32 v27, 4, v18")
    a("v_add_u32 v27, %s, v27" % s(T1))
    a("s_lshl_b32 %s, %s, 9" % (s(T1), s(sWM)))
    a("s_add_u32 %s, %s, %d" % (s(T1), s(T1), STB))
    a("v_lshlrev_b32 v28, 3, v22")
    a("v_add_u32 v28, %s, v28" % s(T1))
    for i in range(112):
        a("v_mov_b32 %s, 0" % v(ACC1 + i))
    a("s_mov_b32 %s, 0" % s(sSLOT))


def compute_g1_s1(a):
    ACC = ACC1
    FR = [32, 76]
    cZ0, cZ1 = cNa, cNb

    def set_addr(lst):
        return ["v_add_u32 %s, %s, %s" % (v(c), s(sSLOT), v(b)) for c, b in lst]

    def next_slot():
        return ["s_add_u32 s14, s14, %d" % G1SLOT, "s_cmp_eq_u32 s14, %d" % (G1SLOT * 3), "s_cselect_b32 s14, 0, s14"]

    G1A = [(cM0, vM0), (cM1, vM1), (cNa, vNa), (cNb, vNb), (cNc, vNc)]

    def s1_addr(k):
        return ["v_add_u32 %s, %s, %s" % (v(c), hx(S1SLOTS[k]), v(b)) for c, b in
                [(cM0, vM0), (cM1, vM1), (cZ0, vZ0), (cZ1, vZ1)]]

    def g1_reads(fs, ks):
        r = []
        for nt in range(7):
            ad = cNc if nt == 6 else (cNb if nt & 1 else cNa)
            off = 0 if nt == 6 else 128 * (nt >> 1) + 32 * (nt & 1)
            for h in range(2):
                r.append("ds_read_b64_tr_b16 %s, %s offset:%d" % (
                    v(FR[fs] + 16 + 4 * nt + 2 * h, 2), v(ad), ks * 14336 + h * 1792 + off))
            if nt < 4:
                r.append("ds_read_b128 %s, %s offset:%d" % (v(FR[fs] + 4 * nt, 4), v(cM1 if ks else cM0), nt * 2048))
        return r

    def g1_mfmas(fs):
        o = OPT.get("ord", "n")
        if o == "m":
            order = [(nt, mt) for mt in range(4) for nt in range(7)]
        elif o == "z":
            order = [(nt, mt if nt % 2 == 0 else 3 - mt) for nt in range(7) for mt in range(4)]
        else:
            order = [(nt, mt) for nt in range(7) for mt in range(4)]
        return [mfma(ACC + 4 * (nt * 4 + mt), FR[fs] + 16 + 4 * nt, FR[fs] + 4 * mt) for nt, mt in order]

    def g1_iter(extra_b=(), pre_bar=(), tail=(), flag=None):
        interleave(a, g1_mfmas(0), g1_reads(1, 1) + next_slot() + set_addr(G1A))
        a("s_waitcnt lgkmcnt(0)")
        a.all(pre_bar)
        fine(a)
        a("s_barrier")
        fine(a)
        interleave(a, g1_mfmas(1), g1_reads(0, 0) + list(extra_b))
        a("s_waitcnt lgkmcnt(0)")
        a.all(tail)

    def g1_loop(n):
        a("s_mov_b32 %s, 0" % s(sCNT))
        loop = a.newlabel("g1_loop")
        a.raw(".p2align 6")
        a.label(loop)
        g1_iter(["s_add_u32 s15, s15, 1", "s_cmp_lt_u32 s15, %d" % n], tail=["s_cbranch_scc1 %s" % loop])

    if OPT.get("sent", "none") == "pre":
        for i in range(4):
            a("v_mov_b32 %s, -1" % v(240 + i))
        for i in range(8):
            a("buffer_store_dwordx4 v[240:243], %s, %s, 0 offen offset:%d%s" % ("v25" if i >= 4 else "v24", s(WS, 4), (i & 3) * 1024, SC1))
    a.all(set_addr(G1A))
    mark(a, 3)
    a("s_barrier")
    mark(a, 4)
    a.all(g1_reads(0, 0))
    a("s_waitcnt lgkmcnt(0)")
    if STAMP:
        g1_loop(3)
        mark(a, 15)
        g1_loop(FLAGK - 3)
    else:
        g1_loop(FLAGK)
    g1_iter(pre_bar=["s_waitcnt vmcnt(0)"], flag="s")
    if STAMP:
        mark(a, 2)
        g1_loop(3)
        mark(a, 1)
        g1_loop(14 - FLAGK - 3)
    else:
        g1_loop(14 - FLAGK)
    interleave(a, g1_mfmas(0), g1_reads(1, 1) + s1_addr(0))
    a("s_waitcnt lgkmcnt(0)")
    a("s_barrier")
    CSR, STR = 32, 60
    rd = ["ds_read_b128 %s, v26 offset:%d" % (v(CSR + 4 * nt, 4), 256 * (nt >> 1) + 64 * (nt & 1)) for nt in range(6)]
    rd.append("ds_read_b128 %s, v27" % v(CSR + 24, 4))
    rd += ["ds_read_b64 %s, v28 offset:%d" % (v(STR + 2 * mt, 2), 128 * mt) for mt in range(4)]
    interleave(a, g1_mfmas(1), rd)
    mark(a, 5)
    a("s_waitcnt lgkmcnt(0)")
    RL = 68
    for mt in range(4):
        a("v_rcp_f32 %s, %s" % (v(RL + 2 * mt + 1), v(STR + 2 * mt + 1)))
        a("v_mul_f32 %s, %s, %s" % (v(RL + 2 * mt), s(sNL2E), v(STR + 2 * mt + 1)))
    TMP = 76
    PK = [88, 92, 96, 100, 104, 108, 112, 116]
    for pr in range(3):
        a("s_mov_b32 %s, %d" % (s(T0 + pr), pr * 16384))
    pki = 0
    groups = [[(mt, 2 * pr), (mt, 2 * pr + 1)] for mt in range(4) for pr in range(3)]
    groups.insert(6, [(0, 6), (1, 6)]); groups.append([(2, 6), (3, 6)])
    for gr in groups:
        regs = []; cs = []; mts = []
        for mt, nt in gr:
            b = ACC + 4 * (nt * 4 + mt)
            regs += [b, b + 2]; cs += [CSR + 4 * nt, CSR + 4 * nt + 2]; mts += [mt, mt]
        tmp = [TMP + 2 * i for i in range(4)]
        for r_, c_, mt in zip(regs, cs, mts):
            a("v_pk_fma_f32 %s, %s, %s, %s op_sel_hi:[1,0,1] neg_lo:[0,1,0] neg_hi:[0,1,0]" % (v(r_, 2), v(c_, 2), v(STR + 2 * mt, 2), v(r_, 2)))
        for r_, t, mt in zip(regs, tmp, mts):
            a("v_pk_mul_f32 %s, %s, %s op_sel_hi:[1,0]" % (v(t, 2), v(r_, 2), v(RL + 2 * mt, 2)))
        for t_ in tmp:
            a("v_exp_f32 %s, %s" % (v(t_), v(t_)))
            a("v_exp_f32 %s, %s" % (v(t_ + 1), v(t_ + 1)))
        for t_, mt in zip(tmp, mts):
            a("v_pk_fma_f32 %s, %s, %s, %s op_sel:[0,1,1]" % (v(t_, 2), v(t_, 2), v(RL + 2 * mt, 2), v(RL + 2 * mt, 2)))
        for t_ in tmp:
            a("v_rcp_f32 %s, %s" % (v(t_), v(t_)))
            a("v_rcp_f32 %s, %s" % (v(t_ + 1), v(t_ + 1)))
        for r_, t_ in zip(regs, tmp):
            a("v_pk_mul_f32 %s, %s, %s" % (v(r_, 2), v(r_, 2), v(t_, 2)))
        P = PK[pki % len(PK)]; pki += 1
        for i, r_ in enumerate(regs):
            a("v_cvt_pk_bf16_f32 %s, %s, %s" % (v(P + i), v(r_), v(r_ + 1)))
        a("s_nop 1")
        a("v_permlane16_swap_b32 %s, %s" % (v(P), v(P + 2)))
        a("v_permlane16_swap_b32 %s, %s" % (v(P + 1), v(P + 3)))
        mt, nt = gr[0]
        if nt < 6:
            a("buffer_store_dwordx4 %s, v17, %s, %s offen offset:%d%s" % (v(P, 4), s(WS, 4), s(T0 + nt // 2), mt * 1024, SC1))
        else:
            a("buffer_store_dwordx4 %s, v20, %s, 0 offen offset:%d%s" % (v(P, 4), s(WS, 4), (mt // 2) * 1024, SC1))
    mark(a, 6)
    fine_dump(a, 0)

    def s1_reads(fs, ks):
        r = []
        for t in range(4):
            r.append("ds_read_b128 %s, %s offset:%d" % (v(FR[fs] + 4 * t, 4), v(cM1 if ks else cM0), t * 2048))
            r.append("ds_read_b128 %s, %s offset:%d" % (v(FR[fs] + 16 + 4 * t, 4), v(cZ1 if ks else cZ0), t * 2048))
        return r

    def s1_mfmas(fs, first):
        return [mfma(ACC + 4 * (mt * 4 + nt), FR[fs] + 4 * mt, FR[fs] + 16 + 4 * nt, "0" if first else None)
                for mt in range(4) for nt in range(4)]

    HF = int(OPT.get("hf", "-1"))
    if HF == -1:
        a("s_waitcnt vmcnt(0)")
    a("s_barrier")
    a.all(s1_reads(0, 0))
    a("s_lshr_b32 %s, %s, 3" % (s(T0), s(sTAU)))
    a("s_and_b32 %s, %s, 3" % (s(T1), s(T0)))
    a("s_cmp_eq_u32 %s, 3" % s(T0))
    a("s_cselect_b32 %s, 1, %s" % (s(T1), s(T1)))
    a("s_lshr_b32 %s, %s, 2" % (s(T2), s(T0)))
    a("s_cmp_eq_u32 %s, 3" % s(T0))
    a("s_cselect_b32 %s, 8, %s" % (s(T2), s(T2)))
    a("s_lshl_b32 %s, %s, 19" % (s(T2), s(T2)))
    a("s_bfe_u32 %s, %s, 0x20001" % (s(T3), s(sTAU)))
    a("s_lshl_b32 %s, %s, 6" % (s(T3), s(T3)))
    a("s_lshl_b32 %s, %s, 5" % (s(T4), s(sWN)))
    a("s_add_u32 %s, %s, %s" % (s(T3), s(T3), s(T4)))
    a("v_and_b32 v17, 15, v3")
    a("v_add_u32 v17, %s, v17" % s(T3))
    a("v_sub_u32 v22, %d, v17" % (3 * 256 + 239))
    a("s_lshl_b32 %s, %s, 8" % (s(T1), s(T1)))
    a("v_add_u32 v17, %s, v17" % s(T1))
    a("s_and_b32 %s, %s, 1" % (s(T3), s(sTAU)))
    a("s_lshl_b32 %s, %s, 1" % (s(T3), s(T3)))
    a("s_add_u32 %s, %s, %s" % (s(T3), s(T3), s(sWM)))
    a("s_lshl_b32 %s, %s, 16" % (s(T3), s(T3)))
    a("s_add_u32 %s, %s, %s" % (s(T3), s(T3), hx(ZT_OFF)))
    a("v_add_u32 v23, %s, v21" % s(T3))
    a("v_lshl_add_u32 v17, v17, 6, v23")
    a("v_lshl_add_u32 v22, v22, 6, v23")
    a("s_waitcnt lgkmcnt(0)")
    for k in range(4):
        interleave(a, s1_mfmas(0, k == 0), s1_reads(1, 1) + (s1_addr(k + 1) if k < 3 else []))
        a("s_waitcnt lgkmcnt(0)")
        interleave(a, s1_mfmas(1, False), s1_reads(0, 0) if k < 3 else [])
        if k < 3:
            a("s_waitcnt lgkmcnt(0)")
        if k == 1:
            a("s_barrier")
        if k == HF:
            a("s_waitcnt vmcnt(0)")
            a("s_barrier")
            flag_store(a, "h")
    mark(a, 7)
    a("s_barrier")
    mark(a, 8)
    a("s_nop 7")
    TMP = 32
    PK = [56, 60, 64, 68, 72, 76, 80, 84]
    typeB = a.newlabel("s1_typeB"); done = a.newlabel("s1_done")
    a("s_and_b32 %s, %s, 29" % (s(T3), s(T0)))
    a("s_cmp_eq_u32 %s, 0" % s(T3))
    a("s_cbranch_scc1 %s" % typeB)
    tile = lambda m, n: ACC + 4 * (m * 4 + n)
    pki = 0
    for n in range(2):
        for uv in range(2):
            P = PK[pki]; pki += 1
            for m in range(2):
                for h in range(2):
                    if uv == 0:
                        a("v_pk_add_f32 %s, %s, %s" % (v(TMP + 2 * h, 2), v(tile(m, n) + 2 * h, 2), v(tile(m + 2, n + 2) + 2 * h, 2)))
                    else:
                        a("v_pk_add_f32 %s, %s, %s%s" % (v(TMP + 2 * h, 2), v(tile(m + 2, n) + 2 * h, 2), v(tile(m, n + 2) + 2 * h, 2), NEG1))
                for h in range(2):
                    a("v_cvt_pk_bf16_f32 %s, %s, %s" % (v(P + 2 * m + h), v(TMP + 2 * h), v(TMP + 2 * h + 1)))
            a("s_add_u32 %s, %s, %d" % (s(T3), s(T2), n * 1024 + uv * 262144))
            a("s_nop 0")
            a("v_permlane16_swap_b32 %s, %s" % (v(P), v(P + 2)))
            a("v_permlane16_swap_b32 %s, %s" % (v(P + 1), v(P + 3)))
            a("buffer_store_dwordx4 %s, v17, %s, %s offen%s" % (v(P, 4), s(WS, 4), s(T3), SC1))
    a("s_cmp_ge_u32 %s, 4" % s(T0))
    a("s_cbranch_scc1 %s" % done)
    a("s_mov_b32 %s, 0x80008000" % s(T4))
    pki = 0
    for n in range(2):
        for uv in range(2):
            P = PK[pki]; pki += 1
            a("s_add_u32 %s, %s, %d" % (s(T3), s(T2), (1 - n) * 1024 + uv * 262144))
            if uv:
                Q = PK[4 + n]
                for i in range(4):
                    a("v_xor_b32 %s, %s, %s" % (v(Q + i), s(T4), v(P + i)))
                P = Q
            a("buffer_store_dwordx4 %s, v22, %s, %s offen%s" % (v(P, 4), s(WS, 4), s(T3), SC1))
    a("s_branch %s" % done)
    a.label(typeB)
    pki = 0
    for n in range(2):
        for half in range(2):
            for uv in range(2):
                P = PK[pki]; pki += 1
                sg = "-" if uv else ""
                for m in range(2):
                    t = tile(m + 2 * half, n + 2 * uv)
                    for h in range(2):
                        a("v_cvt_pk_bf16_f32 %s, %s%s, %s%s" % (v(P + 2 * m + h), sg, v(t + 2 * h), sg, v(t + 2 * h + 1)))
                a("s_mov_b32 %s, %d" % (s(T3), half * 8 * 524288 + n * 1024 + uv * 262144))
                a("s_nop 0")
                a("v_permlane16_swap_b32 %s, %s" % (v(P), v(P + 2)))
                a("v_permlane16_swap_b32 %s, %s" % (v(P + 1), v(P + 3)))
                a("buffer_store_dwordx4 %s, v17, %s, %s offen%s" % (v(P, 4), s(WS, 4), s(T3), SC1))
    a.label(done)
    mark(a, 9)


def dma(a, ldsoff, vaddr, srd_, soff, coh=False):
    if OPT.get("nodma") == "1" and getattr(a, "skipdma", False):
        return
    a("s_add_u32 m0, %s, %d" % (s(sSLOT), ldsoff))
    a("s_nop 0")
    a("buffer_load_dwordx4 %s, %s, %s offen%s lds" % (v(vaddr), s(srd_, 4), s(soff), OPT.get("cohmod", "_sc1").replace("_", " ") if coh else ""))


LVA, LVB, LVC, LVD = 8, 12, 20, 24
CSD = 128


def g1_issue(a):
    for i in range(4):
        dma(a, i * 4096, LVA + i, XS, sKA)
    for i in range(7):
        dma(a, 16384 + i * 4096, LVB + i, W1, sKB)
    a("s_add_u32 %s, %s, 128" % (s(sKA), s(sKA)))
    a("s_add_u32 %s, %s, %d" % (s(sKB), s(sKB), 64 * 7168))
    a("s_add_u32 s14, s14, %d" % G1SLOT)
    a("s_cmp_eq_u32 s14, %s" % s(sWRAP))
    a("s_cselect_b32 s14, %s, s14" % s(sSL0))


def loader_setup(a):
    a("s_sub_u32 %s, %s, 4" % (s(sL), s(sWAVE)))
    a("s_and_b32 %s, %s, 1" % (s(T0), s(sL)))
    a("s_lshl_b32 %s, %s, 2" % (s(T0), s(T0)))
    a("v_lshrrev_b32 v4, 4, v3")
    a("v_add_u32 v4, %s, v4" % s(T0))
    a("v_and_b32 v5, 7, v3")
    a("v_xor_b32 v4, v4, v5")
    a("v_lshlrev_b32 v4, 4, v4")
    a("v_lshrrev_b32 v5, 3, v3")
    a("s_lshl_b32 %s, %s, 3" % (s(T0), s(sL)))
    a("v_add_u32 v5, %s, v5" % s(T0))
    a("v_lshlrev_b32 v30, 2, v3")
    a("s_lshl_b32 %s, %s, 10" % (s(sSL0), s(sL)))
    a("s_lshl_b32 %s, %s, 11" % (s(T0), s(sRB)))
    a("v_lshl_add_u32 v6, v5, 15, v4")
    a("v_add_u32 v6, %s, v6" % s(T0))
    for i in range(4):
        a("v_add_u32 %s, %s, v6" % (v(LVA + i), hx(i * 32 * 32768)))
    a("s_lshl_b32 %s, %s, 6" % (s(T0), s(sL)))
    a("v_add_u32 v6, %s, v3" % s(T0))
    a("s_mul_i32 %s, %s, 448" % (s(T1), s(sCB)))
    for i in range(7):
        a("v_add_u32 v7, %d, v6" % (256 * i))
        a("v_mul_u32_u24 v28, 2341, v7")
        a("v_lshrrev_b32 v28, 16, v28")
        a("v_mul_u32_u24 v29, 28, v28")
        a("v_sub_u32 v29, v7, v29")
        a("v_bfe_u32 v31, v28, 3, 1")
        a("v_lshlrev_b32 v31, 1, v31")
        a("v_xor_b32 v29, v29, v31")
        a("v_mul_u32_u24 v28, 7168, v28")
        a("v_lshl_add_u32 v28, v29, 4, v28")
        a("v_add_u32 %s, %s, v28" % (v(LVB + i), s(T1)))
    a("s_mov_b32 %s, %s" % (s(sSLOT), s(sSL0)))
    a("s_add_u32 %s, %s, %d" % (s(sWRAP), s(sSL0), G1SLOT * 3))
    a("s_mov_b32 %s, 0" % s(sKA))
    a("s_mov_b32 %s, 0" % s(sKB))
    a("v_and_b32 v6, 31, v3")
    a("v_lshrrev_b32 v7, 5, v3")
    a("v_mul_u32_u24 v7, 7168, v7")
    a("v_lshl_add_u32 v7, v6, 4, v7")
    a("s_xor_b32 %s, %s, %s" % (s(T0), s(sRB), OPT.get("csx", "0")))
    a("s_lshl_b32 %s, %s, 6" % (s(T0), s(T0)))
    a("s_lshl_b32 %s, %s, 4" % (s(T2), s(sL)))
    a("s_add_u32 %s, %s, %s" % (s(T0), s(T0), s(T2)))
    a("s_mul_i32 %s, %s, 7168" % (s(T0), s(T0)))
    a("s_add_u32 %s, %s, %s" % (s(T0), s(T0), s(T1)))
    a("v_add_u32 v7, %s, v7" % s(T0))
    a("v_cmp_gt_u32 vcc, 28, v6")
    a("v_mov_b32 v28, 0x7f000000")
    a("s_nop 0")
    a("v_cndmask_b32 v7, v28, v7, vcc")
    g1_issue(a)
    a("s_barrier")
    for i in range(8):
        a("s_mov_b32 %s, %d" % (s(T0), i * 2 * 7168))
        a("buffer_load_dwordx4 %s, v7, %s, %s offen" % (v(CSD + 4 * i, 4), s(W1, 4), s(T0)))
    for _ in range(int(OPT.get("early", "3")) - 1):
        g1_issue(a)
    pf_addr(a)


def pf_addr(a):
    a("s_lshl_b32 %s, s2, 2" % s(T0))
    a("s_add_u32 %s, %s, %s" % (s(T0), s(T0), s(sL)))
    a("s_mul_i32 %s, %s, 7168" % (s(T1), s(T0)))
    a("v_lshlrev_b32 v124, 4, v3")
    a("v_add_u32 v124, %s, v124" % s(T1))
    a("v_add_u32 v125, 4096, v124")
    a("s_lshr_b32 %s, %s, 1" % (s(T2), s(T0)))
    a("v_lshrrev_b32 v126, 5, v3"); a("v_lshlrev_b32 v126, 11, v126"); a("v_and_b32 v127, 31, v3"); a("v_lshl_add_u32 v126, v127, 4, v126")
    a("s_lshl_b32 %s, %s, 12" % (s(T3), s(T2))); a("v_add_u32 v126, %s, v126" % s(T3))
    a("v_lshrrev_b32 v127, 4, v3"); a("v_lshlrev_b32 v127, 12, v127"); a("v_and_b32 v2, 15, v3"); a("v_lshl_add_u32 v127, v2, 4, v127")
    a("s_lshl_b32 %s, %s, 14" % (s(T3), s(T2))); a("v_add_u32 v127, %s, v127" % s(T3))


def pf_pair(a, vaddr, sre, sim):
    l2 = a.newlabel("pf2"); l3 = a.newlabel("pf3")
    a("s_bitcmp1_b32 %s, 0" % s(sWAVE))
    a("s_cbranch_scc1 %s" % l2)
    a("buffer_load_dwordx4 v[244:247], %s, %s, 0 offen" % (v(vaddr), s(sre, 4)))
    a("s_branch %s" % l3)
    a.label(l2)
    a("buffer_load_dwordx4 v[244:247], %s, %s, 0 offen" % (v(vaddr), s(sim, 4)))
    a.label(l3)


def loader_g1_s1(a):
    AC = CSD + 32
    PFS = OPT.get("pf", "s") == "s"
    PFT = OPT.get("pf", "s").startswith("t")
    PFK = 99 if PFS else int(OPT.get("pf", "99").lstrip("t"))
    EARLY = int(OPT.get("early", "3"))
    q = ["g0"] * 11 + ["csl"] * 8 + [x for i in range(1, EARLY) for x in ["g%d" % i] * 11]

    def issue(st):
        g1_issue(a); q.extend(["g%d" % st] * 11)

    def need(*tags):
        idx = max(i for i, x in enumerate(q) if x in tags)
        n = len(q) - idx - 1
        del q[:idx + 1]
        return n

    def bar(*tags, lg=False):
        n = need(*tags)
        fine(a)
        a("s_waitcnt vmcnt(%d)%s" % (n, " lgkmcnt(0)" if lg else ""))
        fine(a)
        a("s_barrier")

    def prefetch():
        a.c("warm the memory-side cache with this wave's share of w2 and of the C slices")
        if PFT:
            a("v_mul_u32_u24 v2, 48, v3")
            a("v_add_u32 v124, v124, v2")
            a("v_add_u32 v125, v125, v2")
            a("buffer_load_dword v244, v124, %s, 0 offen" % s(W2, 4))
            a("buffer_load_dword v244, v125, %s, 0 offen" % s(W2, 4))
            q.extend(["pf"] * 2)
        else:
            for i in range(7):
                a("buffer_load_dwordx4 v[244:247], %s, %s, 0 offen offset:%d" % ("v125" if i >= 4 else "v124", s(W2, 4), (i & 3) * 1024))
            q.extend(["pf"] * 7)
        pf_pair(a, 127, CR, CI)
        q.append("pf")

    def cs_chunk(rng):
        for i in rng:
            for d in range(4):
                src = CSD + 4 * i + d
                t_ = AC + 2 * d if i == 0 else AC + 8 + 2 * d
                a("v_lshlrev_b32 %s, 16, %s" % (v(t_), v(src)))
                a("v_and_b32 %s, %s, %s" % (v(t_ + 1), s(sHI), v(src)))
            if i:
                for d in range(4):
                    a("v_pk_add_f32 %s, %s, %s" % (v(AC + 2 * d, 2), v(AC + 2 * d, 2), v(AC + 8 + 2 * d, 2)))

    def after0():
        cs_chunk(range(0, 4))

    def after1():
        cs_chunk(range(4, 8))
        a("v_lshrrev_b32 v28, 5, v3")
        a("s_lshl_b32 %s, %s, 1" % (s(T0), s(sL)))
        a("v_add_u32 v28, %s, v28" % s(T0))
        a("v_lshlrev_b32 v28, 10, v28")
        a("v_and_b32 v29, 31, v3")
        a("v_lshl_add_u32 v28, v29, 5, v28")
        a("v_add_u32 v28, %d, v28" % CSP)
        a("ds_write_b128 v28, %s" % v(AC, 4))
        a("ds_write_b128 v28, %s offset:16" % v(AC + 4, 4))
        a("s_waitcnt lgkmcnt(0)")

    def after2():
        a("s_lshl_b32 %s, %s, 8" % (s(T0), s(sL)))
        a("v_add_u32 v19, %s, v30" % s(T0))
        a("v_add_u32 v29, %d, v19" % CSP)
        for i in range(8):
            a("ds_read_b32 %s, v29 offset:%d" % (v(CSD + i), i * 1024))
        a("s_lshl_b32 %s, %s, 14" % (s(T0), s(sCB)))
        a("s_lshl_b32 %s, %s, 10" % (s(T1), s(sRB)))
        a("s_add_u32 %s, %s, %s" % (s(T1), s(T1), s(T0)))
        a("s_add_u32 %s, %s, %s" % (s(T1), s(T1), hx(CS_OFF)))
        tag_ready(a)
        a("v_lshrrev_b32 v31, 3, v3")
        a("v_lshlrev_b32 v31, 7, v31")
        a("v_and_b32 v28, 7, v3")
        a("v_lshl_add_u32 v31, v28, 2, v31")
        a("v_add_u32 v31, %s, v31" % hx(SF_OFF))
        a("s_waitcnt lgkmcnt(0)")
        for st in (4, 2, 1):
            for i in range(st):
                a("v_add_f32 %s, %s, %s" % (v(CSD + i), v(CSD + i), v(CSD + i + st)))
        a("buffer_store_dword %s, v19, %s, %s offen%s" % (v(CSD), s(WS, 4), s(T1), SC1))
        q.append("cs_store")

    def after3():
        a("s_lshr_b32 %s, %s, 3" % (s(T0), s(sTAU)))
        a("s_lshl_b32 %s, %s, 17" % (s(T1), s(T0)))
        a("s_and_b32 %s, %s, 1" % (s(T2), s(sTAU)))
        a("s_lshl_b32 %s, %s, 15" % (s(T3), s(T2)))
        a("s_add_u32 %s, %s, %s" % (s(T1), s(T1), s(T3)))
        a("s_add_u32 %s, %s, %s" % (s(T1), s(T1), hx(CB_OFF)))
        a("v_lshl_add_u32 v6, v5, 9, v4")
        a("v_add_u32 v6, %s, v6" % s(T1))
        for i in range(4):
            a("v_add_u32 %s, %s, v6" % (v(LVC + i), hx((i & 1) * 65536 + (i >> 1) * 32 * 512)))
        a("s_and_b32 %s, %s, 3" % (s(T1), s(T0)))
        a("s_cmp_eq_u32 %s, 3" % s(T0))
        a("s_cselect_b32 %s, 1, %s" % (s(T1), s(T1)))
        a("s_lshl_b32 %s, %s, 11" % (s(T1), s(T1)))
        a("s_bfe_u32 %s, %s, 0x20001" % (s(T3), s(sTAU)))
        a("s_lshl_b32 %s, %s, 19" % (s(T3), s(T3)))
        a("s_add_u32 %s, %s, %s" % (s(T1), s(T1), s(T3)))
        a("v_lshl_add_u32 v6, v5, 13, v4")
        a("v_add_u32 v6, %s, v6" % s(T1))
        for i in range(4):
            a("v_add_u32 %s, %s, v6" % (v(LVD + i), hx((i >> 1) * 32 * 8192)))
        a("s_lshl_b32 %s, s2, 15" % s(T0))
        a("s_lshl_b32 %s, %s, 13" % (s(T1), s(sL)))
        a("s_add_u32 %s, %s, %s" % (s(T0), s(T0), s(T1)))
        a("s_add_u32 %s, %s, %s" % (s(T0), s(T0), hx(EX_OFF)))
        a("v_lshlrev_b32 v6, 4, v3")
        a("v_add_u32 v6, %s, v6" % s(T0))
        a("v_add_u32 v7, 4096, v6")
        for i in range(4):
            a("v_mov_b32 %s, -1" % v(240 + i))

    def sentinel(i):
        a("buffer_store_dwordx4 v[240:243], %s, %s, 0 offen offset:%d%s" % ("v7" if i >= 4 else "v6", s(WS, 4), (i & 3) * 1024, SC1))
        q.append("sent")

    def after9():
        poll_issue(a, CSD + 20, 31, 4); q.extend(["poll"] * 4)

    def after11():
        a.c("fetch 4 of the 16 partial column sums of this column block per wave, and this class's row stats")
        a("s_lshl_b32 %s, %s, 14" % (s(T0), s(sCB)))
        a("s_lshl_b32 %s, %s, 12" % (s(T1), s(sL)))
        a("s_add_u32 %s, %s, %s" % (s(T0), s(T0), s(T1)))
        a("s_add_u32 %s, %s, %s" % (s(T0), s(T0), hx(CS_OFF)))
        a("v_lshlrev_b32 v28, 4, v3")
        for i in range(4):
            a("buffer_load_dwordx4 %s, v28, %s, %s offen offset:%d%s" % (v(CSD + 4 * i, 4), s(WS, 4), s(T0), i * 1024, SC1))
        a("s_lshl_b32 %s, %s, 10" % (s(T0), s(sRB)))
        a("s_add_u32 %s, %s, %s" % (s(T0), s(T0), hx(STAT_OFF)))
        a("buffer_load_dword %s, v19, %s, %s offen%s" % (v(CSD + 16), s(WS, 4), s(T0), SC1))
        q.extend(["fetch"] * 5)

    def after13():
        a("s_waitcnt vmcnt(%d)" % need("fetch"))
        for d, x in ((0, 4), (2, 6), (8, 12), (10, 14), (0, 8), (2, 10)):
            a("v_pk_add_f32 %s, %s, %s" % (v(CSD + d, 2), v(CSD + d, 2), v(CSD + x, 2)))
        a("s_lshl_b32 %s, %s, 10" % (s(T0), s(sL)))
        a("s_add_u32 %s, %s, %d" % (s(T0), s(T0), CSP))
        a("v_add_u32 v28, %s, v28" % s(T0))
        a("ds_write_b128 v28, %s" % v(CSD, 4))
        a("v_add_u32 v28, %d, v19" % STB)
        a("ds_write_b32 v28, %s" % v(CSD + 16))
        a("s_waitcnt lgkmcnt(0)")

    def after14():
        a("v_add_u32 v28, %d, v19" % CSP)
        for i in range(4):
            a("ds_read_b32 %s, v28 offset:%d" % (v(CSD + i), i * 1024))
        a("v_add_u32 v28, %d, v19" % CSB)
        a("s_waitcnt lgkmcnt(0)")
        a("v_add_f32 %s, %s, %s" % (v(CSD), v(CSD), v(CSD + 1)))
        a("v_add_f32 %s, %s, %s" % (v(CSD + 2), v(CSD + 2), v(CSD + 3)))
        a("v_add_f32 %s, %s, %s" % (v(CSD), v(CSD), v(CSD + 2)))
        a("ds_write_b32 v28, %s" % v(CSD))

    hooks = {0: after0, 1: after1, 2: after2, 9: after9, 11: after11, 13: after13, 14: after14}
    after3()
    for st in range(EARLY, 3):
        issue(st)
    if OPT.get("cov", "0") == "1":
        a("s_cmp_lt_u32 %s, 8" % s(sRB))
        a("s_mov_b32 %s, %d" % (s(T1), 512 * 7168))
        a("s_cselect_b32 %s, %s, %s" % (s(T1), s(T1), hx(-512 * 7168)))
        a("v_add_u32 v2, %s, v7" % s(T1))
        for i in range(8):
            a("s_mov_b32 %s, %d" % (s(T0), i * 2 * 7168))
            a("buffer_load_dwordx4 v[244:247], v2, %s, %s offen" % (s(W1, 4), s(T0)))
        q.extend(["pf"] * 8)
    pf_pair(a, 126, DR, DI); q.append("pf")
    if PFK == -1:
        prefetch()
    if PFS:
        pf_pair(a, 127, CR, CI); q.append("pf")
        a("s_lshl_b32 %s, s2, 2" % s(T0))
        a("s_add_u32 %s, %s, %s" % (s(T0), s(T0), s(sL)))
        a("s_mul_i32 %s, %s, 7168" % (s(T0), s(T0)))
        a("s_add_u32 s30, %s, %s" % (s(W2), s(T0)))
        a("s_addc_u32 s31, %s, 0" % s(W2 + 1))
    bar("g0")
    for k in range(15):
        tags = ["g%d" % (k + 1)]
        if k == FLAGK:
            tags.append("cs_store")
        if k == 11:
            fine(a)
            a("s_waitcnt vmcnt(%d)" % need("g12", "poll"))
            poll_check(a, CSD + 20, 31, "exec", True, 4)
            fine(a)
            a("s_barrier")
        else:
            bar(*tags)
        if k + 3 <= 15:
            issue(k + 3)
        if k == FLAGK:
            flag_store(a, "s")
        if k in hooks:
            hooks[k]()
        if 4 <= k <= 11 and OPT.get("sent", "none") == "g1":
            sentinel(k - 4)
        if k == 4 and OPT.get("sent", "none") == "g1b":
            for i in range(8):
                sentinel(i)
        if k == PFK:
            prefetch()
        if PFS and 3 <= k <= 11:
            for i in range(13 * (k - 3), min(112, 13 * (k - 2))):
                a("s_load_dword s29, s[30:31], %d" % (i * 64))

    def issue_s1(k):
        a("s_add_u32 %s, %s, %d" % (s(sSLOT), s(sSL0), S1SLOTS[k]))
        a("s_mov_b32 %s, %d" % (s(sKA), k * 128))
        for i in range(4):
            dma(a, i * 4096, LVC + i, WS, sKA, coh=True)
        for i in range(4):
            dma(a, 16384 + i * 4096, LVD + i, DI if i & 1 else DR, sKA)

    issue_s1(2)
    fine_dump(a, 0)
    a("s_waitcnt lgkmcnt(0)")
    a("s_barrier")
    for k in (0, 1, 3):
        issue_s1(k)
    g2_loader_setup(a)
    a("s_mul_i32 %s, %s, %d" % (s(T0), s(sKH), 1792 * 2048))
    a("s_lshl_b32 %s, %s, 7" % (s(T1), s(sNB8)))
    a("s_add_u32 %s, %s, %s" % (s(T0), s(T0), s(T1)))
    a("s_and_b32 %s, %s, 7" % (s(T1), s(sLOC)))
    a("s_cmp_ge_u32 %s, 4" % s(T1))
    a("s_cselect_b32 %s, %d, 0" % (s(sADJ), 192 * 2048))
    a("s_lshl_b32 %s, %s, 2" % (s(T1), s(T1)))
    a("s_add_u32 %s, %s, %s" % (s(T1), s(T1), s(sL)))
    a("s_lshl_b32 %s, %s, 12" % (s(T1), s(T1)))
    a("s_add_u32 %s, %s, %s" % (s(T0), s(T0), s(T1)))
    a("s_add_u32 s30, %s, %s" % (s(W2), s(T0)))
    a("s_addc_u32 s31, %s, 0" % s(W2 + 1))
    a("s_and_b32 %s, %s, 4" % (s(sP3), s(sCB8)))
    a("s_and_b32 %s, %s, 4" % (s(sP3), s(sCB8)))
    for st in range(NRB()):
        g2_koff(a, st, False, True)
        for i in range(4):
            a("buffer_load_dwordx4 %s, %s, %s, %s offen" % (v(RBB + 16 * st + 4 * i, 4), v(GVB + i), s(W2, 4), s(sKB)))
    a("v_lshlrev_b32 %s, 4, v3" % v(GWA))
    a("v_add_u32 %s, %s, %s" % (v(GWA), s(sSL0), v(GWA)))
    a("s_waitcnt vmcnt(%d)" % (4 * NRB()))
    a("s_barrier")
    flag_store(a, "h")


RBB = 64
XL = 0
GVX = 62
SOLOB = 65536
RXL = 32768
FLAGK = 5
SYNC = 159744
GWA = 60


def NRB():
    return int(OPT.get("nrb", "0"))


PF_G1 = 28
sADJ = 95


def w2_prefetch(a, halves):
    last = None
    for hs in halves:
        st, r = divmod(hs, 2)
        if st != last:
            if st < NREG:
                j, p_ = divmod(st, 3)
                a("s_xor_b32 s96, %s, %d" % (s(sP3), j))
                a("s_mul_i32 s96, s96, %d" % (224 * 2048))
                if p_:
                    a("s_add_u32 s96, s96, %d" % (p_ * 64 * 2048))
            else:
                a("s_add_u32 s96, %s, %d" % (s(sADJ), (448 * (st - NREG) + 192) * 2048))
            last = st
        for c in (0, 64, 128 * US(), 128 * US() + 64):
            a("s_load_dword s29, s[30:31], s96 offset:%d" % (r * 2048 + c))


def g2_koff(a, st, want_a, want_b):
    j, p_ = divmod(st, 3)
    a("s_xor_b32 %s, %s, %d" % (s(T0), s(sP3), j))
    if want_a:
        a("s_mul_i32 %s, %s, 49152" % (s(sKA), s(T0)))
        if p_:
            a("s_add_u32 %s, %s, %d" % (s(sKA), s(sKA), p_ * 16384))
    if want_b:
        a("s_mul_i32 %s, %s, %d" % (s(sKB), s(T0), 224 * 2048))
        if p_:
            a("s_add_u32 %s, %s, %d" % (s(sKB), s(sKB), p_ * 64 * 2048))


NJ = 28
NREG = 24
NSOLO = 4


def compute_g2(a):
    ACC = 128; ACY = 192; XR = 224; RX = 96
    FR = [32, 64]
    gN0, gZ0, gZ1 = 6, 7, 8
    cN = 11
    a("v_and_b32 v17, 15, v3")
    a("v_lshlrev_b32 v17, 15, v17")
    a("s_lshl_b32 %s, %s, 21" % (s(T0), s(sWM)))
    a("s_lshl_b32 %s, %s, 11" % (s(T1), s(sCLS)))
    a("s_add_u32 %s, %s, %s" % (s(T0), s(T0), s(T1)))
    a("s_lshl_b32 %s, %s, 7" % (s(T1), s(sNB8)))
    a("s_add_u32 %s, %s, %s" % (s(T0), s(T0), s(T1)))
    a("s_mul_i32 %s, %s, %d" % (s(T1), s(sKH), 128 * US()))
    a("s_add_u32 %s, %s, %s" % (s(T0), s(T0), s(T1)))
    a("s_lshl_b32 %s, %s, 6" % (s(T1), s(sWN)))
    a("s_add_u32 %s, %s, %s" % (s(T0), s(T0), s(T1)))
    a("v_add_u32 v17, %s, v17" % s(T0))
    a("v_lshrrev_b32 v19, 1, v18")
    a("s_lshl_b32 %s, %s, 2" % (s(T1), s(sWN)))
    a("v_add_u32 v19, %s, v19" % s(T1))
    a("v_bfe_u32 v20, v3, 1, 3")
    a("v_xor_b32 v19, v19, v20")
    a("v_lshlrev_b32 v19, 4, v19")
    a("v_and_b32 v20, 1, v18")
    a("v_lshl_add_u32 v19, v20, 3, v19")
    a("v_and_b32 v20, 15, v3")
    a("v_lshl_add_u32 v19, v20, 7, v19")
    a("s_lshl_b32 %s, %s, 13" % (s(T1), s(sWM)))
    a("s_add_u32 %s, %s, %d" % (s(T1), s(T1), XL))
    a("v_add_u32 v19, %s, v19" % s(T1))
    a("v_xor_b32 v27, 32, v19")
    for mt in range(4):
        a("s_mov_b32 %s, %d" % (s(T3 + mt), mt * 16 * 16 * 2048))
    a("v_add_u32 v17, v17, v21")
    a("s_lshl_b32 %s, %s, 12" % (s(T0), s(sWN)))
    a("s_add_u32 %s, %s, 16384" % (s(T0), s(T0)))
    rowimg_frag_addr(a, gZ0, gZ1, T0)
    a("v_bfe_u32 v20, v3, 2, 2")
    a("v_lshl_add_u32 v23, v18, 3, v20")
    a("v_lshlrev_b32 v23, 8, v23")
    a("v_and_b32 v22, 3, v3")
    a("v_lshl_add_u32 v23, v22, 3, v23")
    a("v_and_b32 v22, 1, v18")
    a("v_lshl_or_b32 v20, v22, 2, v20")
    a("s_lshl_b32 %s, %s, 1" % (s(T0), s(sWN)))
    a("s_lshl_b32 %s, %s, 2" % (s(T1), s(sKH)))
    a("s_add_u32 %s, %s, %s" % (s(T0), s(T0), s(T1)))
    a("v_xor_b32 v20, %s, v20" % s(T0))
    a("v_lshl_add_u32 v23, v20, 5, v23")
    a("v_add_u32 %s, 16384, v23" % v(gN0))
    a("v_mov_b32 v28, 0xff")
    a("v_mov_b32 v31, %s" % s(sTAG))
    a("v_xor_b32 v15, 0x20000, v24")
    a("v_xor_b32 v16, 0x20000, v25")
    for i in range(96):
        a("v_mov_b32 %s, 0" % v(ACC + i))
    a("s_mov_b32 %s, %d" % (s(sSLOT), 4 * G2SLOT))

    def set_addr(joint):
        r = ["v_add_u32 %s, s14, %s" % (v(cM0), v(vM0)), "v_add_u32 %s, s14, %s" % (v(cM1), v(vM1))]
        if joint:
            r.append("v_add_u32 %s, s14, %s" % (v(cN), v(gN0)))
            for nt, x in ((1, 32), (2, 128), (3, 160)):
                r.append("v_xor_b32 %s, %d, %s" % (v(cN + nt), x, v(cN)))
        else:
            r += ["v_add_u32 %s, s14, %s" % (v(cN), v(gZ0)), "v_add_u32 %s, s14, %s" % (v(cN + 1), v(gZ1))]
        return r

    def next_slot():
        return ["s_add_u32 s14, s14, %d" % G2SLOT, "s_cmp_eq_u32 s14, %d" % (G2SLOT * 5), "s_cselect_b32 s14, 0, s14"]

    def reads(fs, ks, joint):
        r = []
        for t in range(4):
            if joint:
                for h in range(2):
                    r.append("ds_read_b64_tr_b16 %s, %s offset:%d" % (v(FR[fs] + 16 + 4 * t + 2 * h, 2), v(cN + t), ks * 8192 + h * 1024))
            elif t < 2:
                r.append("ds_read_b128 %s, %s offset:%d" % (v(FR[fs] + 16 + 4 * t, 4), v(cN + ks), t * 2048))
            r.append("ds_read_b128 %s, %s offset:%d" % (v(FR[fs] + 4 * t, 4), v(cM1 if ks else cM0), t * 2048))
        return r

    ot = lambda mt, nt: ACC + 4 * (nt * 4 + mt)

    def jm(fs, order=(0, 1, 2, 3)):
        o = OPT.get("ord", "n")
        if o == "m" and order == (0, 1, 2, 3):
            od = [(nt, mt) for mt in range(4) for nt in order]
        elif o == "z" and order == (0, 1, 2, 3):
            od = [(nt, mt if nt % 2 == 0 else 3 - mt) for nt in order for mt in range(4)]
        else:
            od = [(nt, mt) for nt in order for mt in range(4)]
        return [mfma(ot(mt, nt), FR[fs] + 16 + 4 * nt, FR[fs] + 4 * mt) for nt, mt in od]

    def sm(fs):
        return [mfma(ACY + 4 * (nt * 4 + mt), FR[fs] + 16 + 4 * nt, FR[fs] + 4 * mt) for nt in range(2) for mt in range(4)]

    a.all(set_addr(True))
    a("s_barrier")
    mark(a, 10)
    a.all(reads(0, 0, True))
    a("s_mov_b32 %s, 0" % s(sCNT))
    a("s_waitcnt lgkmcnt(0)")

    def joint_iter(nxt_joint, extra=(), pre_bar=(), flag=None, bar=True):
        nr = OPT.get("noread") == "1"
        interleave(a, jm(0), ([] if nr else reads(1, 1, True)) + next_slot() + set_addr(nxt_joint), per=int(OPT.get("g2per", "2")))
        a("s_waitcnt lgkmcnt(0)")
        a.all(pre_bar)
        fine(a)
        if bar:
            a("s_barrier")
        fine(a)
        interleave(a, jm(1), ([] if nr else reads(0, 0, True)) + list(extra), per=1)
        a("s_waitcnt lgkmcnt(0)")

    ZK = int(OPT.get("zk", "6"))

    def g2_loop(n):
        a("s_mov_b32 %s, 0" % s(sCNT))
        loop = a.newlabel("g2_loop")
        a.raw(".p2align 6")
        a.label(loop)
        joint_iter(True, ["s_add_u32 s15, s15, 1", "s_cmp_lt_u32 s15, %d" % n])
        a("s_cbranch_scc1 %s" % loop)

    g2_loop(ZK)
    joint_iter(True, pre_bar=["s_waitcnt vmcnt(0)"], flag="z")
    mark(a, 26)
    g2_loop(NJ - 2 - ZK)
    SM = [[32 + 4 * i for i in range(8)], [64 + 4 * i for i in range(8)]]
    SN = [[96 + 4 * i for i in range(4)], [112 + 4 * i for i in range(4)]]

    def sreads(fs):
        r = []
        for ks in range(2):
            for nt in range(2):
                r.append("ds_read_b128 %s, %s offset:%d" % (v(SN[fs][2 * ks + nt], 4), v(cN + ks), nt * 2048))
            for mt in range(4):
                r.append("ds_read_b128 %s, %s offset:%d" % (v(SM[fs][4 * ks + mt], 4), v(cM1 if ks else cM0), mt * 2048))
        return r

    def smf(fs):
        return [mfma(ACY + 4 * (nt * 4 + mt), SN[fs][2 * ks + nt], SM[fs][4 * ks + mt])
                for ks in range(2) for nt in range(2) for mt in range(4)]

    def solo_addr(j):
        return ["v_add_u32 %s, %s, %s" % (v(c), hx(SOLOB + j * 24576), v(b))
                for c, b in ((cM0, vM0), (cM1, vM1), (cN, gZ0), (cN + 1, gZ1))]

    interleave(a, jm(0), reads(1, 1, True) + solo_addr(0), per=2)
    a("s_waitcnt lgkmcnt(0)")
    a("s_barrier")
    m = jm(1, (2, 3, 0, 1))
    interleave(a, m[:8], sreads(0) + solo_addr(1), per=2)
    for i in range(8):
        a(m[8 + i])
        b = ACC + 32 + 4 * i
        for j in range(4):
            a("v_bfi_b32 %s, v28, v31, %s" % (v(b + j), v(b + j)))
        a("buffer_store_dwordx4 %s, %s, %s, 0 offen offset:%d sc1" % (v(b, 4), "v16" if i >= 4 else "v15", s(WS, 4), (i & 3) * 1024))
    a("s_waitcnt lgkmcnt(0)")
    mark(a, 11)
    for k in range(NSOLO):
        last = k == NSOLO - 1
        interleave(a, smf(k & 1), [] if last else sreads(1 - (k & 1)) + (solo_addr(k + 2) if k + 2 < NSOLO else []), per=2)
        if not last:
            a("s_waitcnt lgkmcnt(0)")
        if k == int(OPT.get("rxj", "2")):
            a("s_barrier")
    mark(a, 12)
    a("v_lshlrev_b32 v26, 4, v3")
    a("s_lshl_b32 %s, %s, 13" % (s(T0), s(sWAVE)))
    a("s_add_u32 %s, %s, %d" % (s(T0), s(T0), RXL))
    a("v_add_u32 v26, %s, v26" % s(T0))
    a("s_barrier")
    for mt in range(4):
        for nt in range(2):
            a("ds_read_b64 %s, %s offset:%d" % (v(XR + 4 * mt + 2 * nt, 2), "v27" if nt else "v19", mt * 2048))
    for i in range(8):
        a("ds_read_b128 %s, v26 offset:%d" % (v(RX + 4 * i, 4), i * 1024))
    a("s_waitcnt lgkmcnt(8)")
    for i in range(16):
        a("v_lshlrev_b32 %s, 16, %s" % (v(32 + 2 * i), v(XR + i)))
        a("v_and_b32 %s, %s, %s" % (v(33 + 2 * i), s(sHI), v(XR + i)))
    a("s_waitcnt lgkmcnt(0)")
    mark(a, 13)
    TMP = 80
    PK = [64, 68, 72, 76]
    MIMIC = OPT.get("mimic", "0") == "1"

    def rnd(regs, t):
        for i, r_ in enumerate(regs):
            a("v_cvt_pk_bf16_f32 %s, %s, %s" % (v(t + i), v(r_), v(r_ + 1)))
        for i, r_ in enumerate(regs):
            a("v_lshlrev_b32 %s, 16, %s" % (v(r_), v(t + i)))
            a("v_and_b32 %s, %s, %s" % (v(r_ + 1), s(sHI), v(t + i)))

    for mt in range(4):
        offs = [4 * mt, 4 * mt + 2, 16 + 4 * mt, 16 + 4 * mt + 2]
        o = [ACC + x for x in offs]
        y = [ACY + x for x in offs]
        xf = [32 + 8 * mt + 2 * i for i in range(4)]
        for i in range(4):
            a("v_pk_add_f32 %s, %s, %s" % (v(o[i], 2), v(o[i], 2), v(RX + offs[i], 2)))
        if MIMIC:
            rnd(o, 48)
        silu_pk(a, o, [TMP + 2 * i for i in range(4)])
        if MIMIC:
            rnd(o, 48)
            rnd(y, 52)
        if MIMIC:
            for i in range(4):
                a("v_pk_mul_f32 %s, %s, %s" % (v(o[i], 2), v(o[i], 2), v(y[i], 2)))
            rnd(o, 48)
            for i in range(4):
                a("v_pk_add_f32 %s, %s, %s" % (v(o[i], 2), v(o[i], 2), v(xf[i], 2)))
        else:
            for i in range(4):
                a("v_pk_fma_f32 %s, %s, %s, %s" % (v(o[i], 2), v(o[i], 2), v(y[i], 2), v(xf[i], 2)))
        P = PK[mt]
        for i in range(4):
            a("v_cvt_pk_bf16_f32 %s, %s, %s" % (v(P + i), v(o[i]), v(o[i] + 1)))
        a("s_nop 1")
        a("v_permlane16_swap_b32 %s, %s" % (v(P), v(P + 2)))
        a("v_permlane16_swap_b32 %s, %s" % (v(P + 1), v(P + 3)))
        a("buffer_store_dwordx4 %s, v17, %s, %s offen%s" % (v(P, 4), s(OUT, 4), s(T3 + mt), OPT.get("outmod", "_sc0_sc1").replace("_", " ")))
    flag_store(a, "epoch", 0)
    mark(a, 14)
    fine_dump(a, 1)
    a("s_endpgm")


GVA, GVB, GVA2, GVB2, GVC, GVD = 32, 36, 40, 44, 48, 52
GZA, GHA = 58, 59


def g2_loader_setup(a):
    a("v_lshrrev_b32 v6, 4, v3")
    a("s_lshr_b32 %s, %s, 1" % (s(T0), s(sL)))
    a("s_lshl_b32 %s, %s, 2" % (s(T0), s(T0)))
    a("v_or_b32 v7, %s, v6" % s(T0))
    a("v_lshlrev_b32 v7, 1, v7")
    a("v_and_b32 v28, 15, v3")
    a("v_xor_b32 v7, v7, v28")
    a("v_lshlrev_b32 v7, 4, v7")
    a("v_lshl_add_u32 v6, v6, 11, v7")
    a("s_mul_i32 %s, %s, %d" % (s(T0), s(sKH), 1792 * 2048))
    a("s_lshl_b32 %s, %s, 13" % (s(T1), s(sL)))
    a("s_add_u32 %s, %s, %s" % (s(T0), s(T0), s(T1)))
    a("s_lshl_b32 %s, %s, 7" % (s(T1), s(sNB8)))
    a("s_add_u32 %s, %s, %s" % (s(T0), s(T0), s(T1)))
    a("v_add_u32 v6, %s, v6" % s(T0))
    a("v_and_b32 v7, 128, v7")
    a("v_mul_u32_u24 v7, %d, v7" % (US() - 1))
    a("v_add_u32 v6, v6, v7")
    for i in range(4):
        a("v_add_u32 %s, %s, v6" % (v(GVB + i), hx(i * 16 * 2048)))
    for i in range(2):
        a("v_add_u32 %s, %s, v6" % (v(GVB2 + i), hx(((i + 2) * 16 + 192) * 2048)))
    a("s_lshl_b32 %s, %s, 4" % (s(T0), s(sCLS)))
    a("s_lshl_b32 %s, %s, 3" % (s(T1), s(sKH)))
    a("s_add_u32 %s, %s, %s" % (s(T0), s(T0), s(T1)))
    a("s_mul_i32 %s, %s, 49152" % (s(T1), s(T0)))
    a("s_add_u32 %s, %s, %s" % (s(T1), s(T1), hx(HR_OFF)))
    a("s_lshl_b32 %s, %s, 13" % (s(T2), s(T0)))
    a("s_add_u32 %s, %s, %s" % (s(T2), s(T2), hx(HL_OFF)))
    a("v_and_b32 v6, 64, v4")
    a("v_lshlrev_b32 v6, 7, v6")
    a("v_and_b32 v7, 48, v4")
    a("v_add_u32 v7, v7, v6")
    a("v_lshl_add_u32 v7, v5, 6, v7")
    a("v_add_u32 v7, %s, v7" % s(T1))
    for i in range(4):
        a("v_add_u32 %s, %d, v7" % (v(GVA + i), i * 32 * 64))
    a("v_and_b32 v7, 32, v4")
    a("v_lshl_add_u32 v6, v7, 7, v6")
    a("v_and_b32 v7, 16, v4")
    a("v_add_u32 v6, v6, v7")
    a("v_lshl_add_u32 v6, v5, 5, v6")
    a("v_add_u32 v6, %s, v6" % s(T2))
    for i in range(4):
        a("v_add_u32 %s, %d, v6" % (v(GVA2 + i), i * 32 * 32))
    a("s_cmp_gt_u32 %s, 8" % s(sCLS))
    a("s_cselect_b32 %s, -1, 0" % s(T0))
    a("s_sub_u32 %s, 16, %s" % (s(T2), s(sCLS)))
    a("s_cmp_gt_u32 %s, 8" % s(sCLS))
    a("s_cselect_b32 %s, %s, %s" % (s(T1), s(T2), s(sCLS)))
    a("s_lshl_b32 %s, %s, 19" % (s(T2), s(T1)))
    a("s_add_u32 %s, %s, %s" % (s(T2), s(T2), hx(ZT_OFF)))
    for i in range(4):
        a("v_add_u32 v6, %d, v5" % (32 * i))
        a("v_lshlrev_b32 v6, 4, v6")
        a("v_add_u32 v6, %s, v6" % s(sCLS))
        a("v_xor_b32 v6, %s, v6" % s(T0))
        a("v_subrev_u32 v6, %s, v6" % s(T0))
        a("v_and_b32 v6, 2047, v6")
        a("v_lshl_add_u32 %s, v6, 12, v4" % v(GVC + i))
    a("s_lshl_b32 %s, %s, 6" % (s(T3), s(sNB8)))
    a("s_mul_i32 %s, %s, %d" % (s(T4), s(sKH), 64 * US()))
    a("s_add_u32 %s, %s, %s" % (s(T3), s(T3), s(T4)))
    for i in range(2):
        a("v_add_u32 v6, %d, v5" % (32 * i))
        a("v_add_u32 v6, %s, v6" % s(T3))
        a("v_xor_b32 v6, %s, v6" % s(T0))
        a("v_subrev_u32 v6, %s, v6" % s(T0))
        a("v_and_b32 v7, 3, v6")
        a("v_bfe_u32 v6, v6, 2, 8")
        a("v_lshl_add_u32 v6, v7, 8, v6")
        a("v_and_b32 v7, 48, v4")
        a("v_lshl_add_u32 v6, v6, 6, v7")
        a("v_and_b32 v7, 64, v4")
        a("v_lshl_add_u32 v6, v7, 10, v6")
        a("v_add_u32 %s, %s, v6" % (v(GVD + i), s(T2)))
    a("s_lshl_b32 %s, %s, 1" % (s(T3), s(T3)))
    a("s_lshl_b32 %s, %s, 11" % (s(T4), s(sCLS)))
    a("s_add_u32 %s, %s, %s" % (s(T3), s(T3), s(T4)))
    a("v_lshl_add_u32 v6, v5, 15, v4")
    a("v_add_u32 %s, %s, v6" % (v(GVX), s(T3)))
    a("s_and_b32 %s, %s, 7" % (s(T3), s(T1)))
    a("s_lshl_b32 %s, %s, 9" % (s(T3), s(T3)))
    a("s_add_u32 %s, %s, %s" % (s(T3), s(T3), hx(ZF_OFF - SF_OFF)))
    a("v_add_u32 %s, %s, v31" % (v(GZA), s(T3)))
    a("s_andn2_b32 %s, %s, 127" % (s(T2), s(sHF)))
    a("v_and_b32 v6, 7, v3")
    a("v_lshlrev_b32 v6, 2, v6")
    a("v_add_u32 %s, %s, v6" % (v(GHA), s(T2)))
    a("s_and_b32 %s, %s, 4" % (s(T2), s(sCB8)))
    a("s_lshl_b32 %s, 15, %s" % (s(sMK), s(T2)))
    a("s_xor_b32 %s, %s, 255" % (s(sMK + 2), s(sMK)))
    a("s_bitset0_b32 %s, %s" % (s(sMK), s(sCB8)))
    a("s_mov_b32 %s, 0" % s(sMK + 1))
    a("s_mov_b32 %s, 0" % s(sMK + 3))


def loader_g2(a):
    a("s_add_u32 %s, %s, %d" % (s(sWRAP), s(sSL0), G2SLOT * 5))
    NT = NJ + NSOLO
    q = []

    def slot_of(st):
        a("s_add_u32 %s, %s, %d" % (s(sSLOT), s(sSL0), ((st + 4) % 5) * G2SLOT))

    def issue(st, want_a=True, want_b=True):
        slot_of(st)
        if st < NREG:
            breg = want_b and st < NRB()
            want_b = want_b and not breg
            if want_a or want_b:
                g2_koff(a, st, want_a, want_b)
            if want_a:
                for i in range(4):
                    dma(a, i * 4096, GVA + i, WS, sKA, coh=True)
            if want_b:
                for i in range(4):
                    dma(a, 16384 + i * 4096, GVB + i, W2, sKB)
            if breg:
                a("v_add_u32 v6, %s, %s" % (hx(((st + 4) % 5) * G2SLOT + 16384), v(GWA)))
                for i in range(4):
                    a("ds_write_b128 v6, %s offset:%d" % (v(RBB + 16 * st + 4 * i, 4), i * 4096))
            q.extend([st] * (4 * want_a + 4 * want_b))
        elif st < NJ:
            lam = st - NREG
            a("s_mov_b32 %s, %d" % (s(sKA), lam * 16384))
            a("s_mov_b32 %s, %d" % (s(sKB), (448 * lam + 192) * 2048))
            for i in range(4):
                dma(a, i * 4096, GVA2 + i, WS, sKA, coh=True)
            for i in range(2):
                dma(a, 16384 + i * 4096, GVB + i, W2, sKB)
            for i in range(2):
                dma(a, 16384 + (i + 2) * 4096, GVB2 + i, W2, sKB)
            q.extend([st] * 8)
        else:
            k = st - NJ
            a("s_add_u32 %s, %s, %d" % (s(sSLOT), s(sSL0), SOLOB + k * 24576))
            a("s_mov_b32 %s, %d" % (s(sKA), (k & 1) * 128))
            a("s_mov_b32 %s, %d" % (s(sKB), (k & 1) * 131072 + (k >> 1) * 262144))
            for i in range(4):
                dma(a, i * 4096, GVC + i, CI if k >= 2 else CR, sKA)
            for i in range(2):
                dma(a, 16384 + i * 4096, GVD + i, WS, sKB, coh=True)
            q.extend([st] * 6)

    def wait(*tags):
        idx = max(i for i, x in enumerate(q) if x in tags)
        a("s_waitcnt vmcnt(%d)" % (len(q) - idx - 1))
        del q[:idx + 1]

    assert NRB() == 0
    issue(0, want_a=False)
    if int(OPT.get("pw", "0")):
        w2_prefetch(a, range(10, 10 + int(OPT.get("pw", "0"))))
    a("s_barrier")
    issue(1, want_a=False)
    issue(2, want_a=False)
    top = a.newlabel("pre"); got = a.newlabel("got"); nogot = a.newlabel("nogot")
    a("s_mov_b32 %s, 0" % s(T6))
    a("s_mov_b32 %s, 0" % s(T7))
    a.label(top)
    poll_issue(a, 29, GHA)
    a("s_waitcnt vmcnt(0)")
    a("s_add_u32 %s, %s, 1" % (s(T7), s(T7)))
    poll_test(a, 29, s(sMK, 2))
    a("s_cbranch_scc0 %s" % got)
    a("s_sleep 2")
    a("s_cmp_lt_u32 %s, %s" % (s(T7), OPT.get("np", "2")))
    a("s_cbranch_scc1 %s" % top)
    a("s_branch %s" % nogot)
    a.label(got)
    mark(a, 9)
    for st in range(3):
        issue(st, want_b=False)
    a("s_mov_b32 %s, 1" % s(T6))
    a.label(nogot)
    a("s_barrier")
    late = a.newlabel("late"); go = a.newlabel("go")
    a("s_cmp_eq_u32 %s, 0" % s(T6))
    a("s_cbranch_scc1 %s" % late)
    issue(3)
    a("s_waitcnt vmcnt(16)")
    a("s_barrier")
    issue(4)
    a("s_waitcnt vmcnt(20)")
    a("s_branch %s" % go)
    a.label(late)
    for st in range(3, 5):
        issue(st, want_a=False)
    poll_check(a, 29, GHA, s(sMK, 2), False)
    mark(a, 8)
    issue(0, want_b=False)
    issue(1, want_b=False)
    a("s_waitcnt vmcnt(4)")
    a("s_barrier")
    for st in range(2, 5):
        issue(st, want_b=False)
    a("s_waitcnt vmcnt(12)")
    a.label(go)
    del q[:]
    q.extend([1] + [2] * 4 + [3] * 4 + [4] * 4)
    nxt = 5
    a.skipdma = True
    for k in range(0, NJ):
        last_issue = min(k + 5, NT - 1) if k < NJ - 3 else NT - 1
        tags = [k + 1] if k < NJ - 1 else [NT - 1]
        chk = None
        if nxt <= 12 <= last_issue:
            tags.append("p2"); chk = "h2"
        if nxt <= NJ <= last_issue:
            tags.append("p3"); chk = "z"
        fine(a)
        if k > 0:
            wait(*tags)
        else:
            q.remove(1)
        if chk == "h2":
            poll_check(a, 29, GHA, s(sMK + 2, 2), True)
        elif chk is not None:
            a("s_mov_b32 %s, -1" % s(sMK))
            poll_check(a, 29, GZA, s(sMK, 2), True)
        fine(a)
        a("s_barrier")
        while nxt <= last_issue:
            issue(nxt); nxt += 1
        PD = int(OPT.get("pd", "9"))
        if PD and k + 5 + PD < NJ:
            w2_prefetch(a, [2 * (k + 5 + PD), 2 * (k + 5 + PD) + 1])
        if k == int(OPT.get("zk", "6")):
            flag_store(a, "z")
        if k == NJ - 2:
            assert (k + 4) % 5 * G2SLOT == XL
            a("s_add_u32 %s, %s, %d" % (s(sSLOT), s(sSL0), XL))
            for i in range(4):
                a("s_mov_b32 %s, %d" % (s(sKA), i * 32 * 32768))
                dma(a, i * 4096, GVX, XS, sKA)
            q.extend(["x"] * 4)
        if k == 3:
            poll_issue(a, 29, GHA); q.append("p2")
        if k == NJ - 9:
            poll_issue(a, 29, GZA); q.append("p3")
    assert (NJ - 1 + 4) % 5 * G2SLOT == RXL
    RX = 64
    a("s_lshl_b32 %s, s2, 15" % s(T0))
    a("s_lshl_b32 %s, %s, 13" % (s(T1), s(sL)))
    a("s_add_u32 %s, %s, %s" % (s(T0), s(T0), s(T1)))
    a("s_add_u32 %s, %s, %s" % (s(T0), s(T0), hx(EX_OFF)))
    a("v_lshlrev_b32 v6, 4, v3")
    a("v_add_u32 v24, %s, v6" % s(T0))
    a("v_add_u32 v25, 4096, v24")
    a("s_add_u32 %s, %s, %d" % (s(T1), s(T1), RXL))
    a("v_add_u32 v6, %s, v6" % s(T1))
    a("v_mov_b32 v28, 0xff")
    a("v_mov_b32 v31, %s" % s(sTAG))
    a("s_barrier")
    top = a.newlabel("rx"); ok = a.newlabel("rxok")
    a("s_mov_b32 %s, 0" % s(T7))
    a.label(top)
    for i in range(8):
        a("buffer_load_dwordx4 %s, %s, %s, 0 offen offset:%d sc1" % (v(RX + 4 * i, 4), "v25" if i >= 4 else "v24", s(WS, 4), (i & 3) * 1024))
    a("s_waitcnt vmcnt(0)")
    a("v_or3_b32 v26, %s, %s, %s" % (v(RX), v(RX + 1), v(RX + 2)))
    a("v_bitop3_b32 v27, %s, %s, %s bitop3:0x80" % (v(RX), v(RX + 1), v(RX + 2)))
    for i in range(3, 31, 2):
        a("v_or3_b32 v26, v26, %s, %s" % (v(RX + i), v(RX + i + 1)))
        a("v_bitop3_b32 v27, v27, %s, %s bitop3:0x80" % (v(RX + i), v(RX + i + 1)))
    a("v_or_b32 v26, v26, %s" % v(RX + 31))
    a("v_and_b32 v27, v27, %s" % v(RX + 31))
    a("v_xor_b32 v26, v26, v31")
    a("v_xor_b32 v27, v27, v31")
    a("v_or_b32 v26, v26, v27")
    a("v_and_b32 v26, v26, v28")
    a("v_cmp_ne_u32 vcc, 0, v26")
    a("s_add_u32 %s, %s, 1" % (s(T7), s(T7)))
    a("s_nop 3")
    a("s_cbranch_vccz %s" % ok)
    a("s_sleep 2")
    a("s_cmp_lt_u32 %s, %d" % (s(T7), SPIN_MAX))
    a("s_cbranch_scc1 %s" % top)
    a.label(ok)
    for i in range(8):
        for j in range(4):
            a("v_bfi_b32 %s, v28, 0, %s" % (v(RX + 4 * i + j), v(RX + 4 * i + j)))
        a("ds_write_b128 v6, %s offset:%d" % (v(RX + 4 * i, 4), i * 1024))
    mark(a, 11, T7)
    fine_dump(a, 1)
    a("s_waitcnt lgkmcnt(0)")
    a("s_barrier")
    a("s_endpgm")


HEADER = """; Kernarg layout (88 bytes, ptrs only, base s[0:1]): 0 A_x, 8 dft_seq_re, 16 dft_seq_im, 24 dft_hid_re,
"""


def main():
    global STAMP
    args = sys.argv[1:]
    global FINE, NSGPR
    if "--fine" in args:
        FINE = True; NSGPR = 102; args.remove("--fine")
    if "--stamp" in args:
        STAMP = True; args.remove("--stamp")
    for x in list(args):
        if x.startswith("--") and "=" in x:
            k, val = x[2:].split("="); OPT[k] = val; args.remove(x)
    a = Asm()
    a.raw(HEADER.rstrip("\n"))
    nv = 256 if (STAMP or FINE) else 248
    a.raw("; @launch grid=(256,1,1) block=(512,1,1) lds=163840")
    a.raw('.amdgcn_target "amdgcn-amd-amdhsa--gfx950"')
    a.raw(".text")
    name = NAME + "_kernel"
    kernel_header(a, name)
    prologue(a, "L_end")
    if FINE:
        a("s_mov_b32 s100, 0")
        a("v_mov_b32 v250, 0")
    mark(a, 0)
    a("s_cmp_ge_u32 %s, 4" % s(sWAVE))
    a("s_cbranch_scc1 L_loader")
    compute_setup(a)
    a("s_barrier")
    prep_ln(a)
    a("s_waitcnt lgkmcnt(0)")
    tag_ready(a)
    a("v_mov_b32 v29, %d" % SYNC)
    a("v_mov_b32 v30, 1")
    a("s_mov_b64 exec, 1")
    a("ds_add_u32 v29, v30")
    a("s_mov_b64 exec, -1")
    a("s_mov_b32 %s, 0" % s(T7))
    a.label("L_sync")
    a("ds_read_b32 v30, v29")
    a("s_add_u32 %s, %s, 1" % (s(T7), s(T7)))
    a("s_waitcnt lgkmcnt(0)")
    a("v_readfirstlane_b32 %s, v30" % s(T6))
    a("s_cmp_ge_u32 %s, %d" % (s(T7), SPIN_MAX))
    a("s_cbranch_scc1 L_synced")
    a("s_cmp_lt_u32 %s, 4" % s(T6))
    a("s_cbranch_scc1 L_sync")
    a.label("L_synced")
    dft = prep_dft(a)
    dft(0)
    a("s_waitcnt lgkmcnt(0)")
    dft(1)
    dft(3)
    compute_g1_s1(a)
    compute_g2(a)
    a.label("L_loader")
    if OPT.get("lprio", "0") != "0":
        a("s_setprio %s" % OPT.get("lprio", "0"))
    loader_setup(a)
    loader_g1_s1(a)
    loader_g2(a)
    a.label("L_end")
    a("s_endpgm")
    a.raw('.section .rodata,"a"')
    a.raw(kernel_desc(name, nv, NSGPR).rstrip("\n"))
    out = args[0] if args else "cdna_kernels/%s.s" % NAME
    open(out, "w").write(a.text())


if __name__ == "__main__":
    main()
```

```python
import math, struct, sys

NAME = "recurrent_scan__spectral_fnet__dense_activation_silu__prompt"

CS_OFF = 0x0000000
STAT_OFF = 0x0040000
HF_OFF = 0x0060000
SF_OFF = 0x0052000
ZF_OFF = 0x0054000
EP_OFF = 0x0058000
CB_OFF = 0x0400000
ZT_OFF = 0x0800000
HR_OFF = 0x0D00000
HL_OFF = 0x1900000
EX_OFF = 0x1C00000
STAMP_OFF = 0x4000000
WS_SZ = 0x10000000

STAMP = False
SC1 = " sc1"
SPIN_MAX = 200000
OPT = {}

G1SLOT = 45056
G2SLOT = 32768
STG = 143360
CSP = 135168
CSB = 161792
STB = 162816
S1SLOTS = [0, 32768, 65536, 98304]

sWAVE, sXCD, sLOC, sRB, sCB, sTAU, sCLS, sCB8, sKH = 3, 4, 5, 6, 7, 8, 9, 10, 11
sWM, sWN, sSLOT, sCNT = 12, 13, 14, 15
sL = 12
T0, T1, T2, T3, T4, T5, T6, T7 = 16, 17, 18, 19, 20, 21, 22, 23
sNB8 = 39
sTAG, sMK = 38, 76
sSP, sHALF, sHF = 26, 27, 28
WS, W1, DR, DI, W2, CR, CI, XS, OUT, DBG = 40, 44, 48, 52, 56, 60, 64, 68, 72, 76
sNL2E, sHI = 80, 82
C1, C2, C3 = 84, 86, 88
sKA, sKB, sWRAP, sSL0, sP3 = 90, 91, 92, 93, 94
NSGPR = 100


def f32(x):
    return struct.unpack("<I", struct.pack("<f", x))[0]


def hx(x):
    return "0x%x" % (x & 0xFFFFFFFF)


def v(i, n=1):
    return "v%d" % i if n == 1 else "v[%d:%d]" % (i, i + n - 1)


def s(i, n=1):
    return "s%d" % i if n == 1 else "s[%d:%d]" % (i, i + n - 1)


class Asm:
    def __init__(self):
        self.lines = []
        self.uid = 0

    def __call__(self, txt):
        self.lines.append("    " + txt)

    def label(self, l):
        self.lines.append(l + ":")

    def newlabel(self, p):
        self.uid += 1
        return "L_%s_%d" % (p, self.uid)

    def c(self, txt):
        self.lines.append("    ; " + txt)

    def raw(self, txt):
        self.lines.append(txt)

    def all(self, lst):
        for x in lst:
            self(x)

    def text(self):
        return "\n".join(self.lines) + "\n"


def srd(a, dst, ptr, off, size):
    if off:
        a("s_add_u32 %s, %s, %s" % (s(dst), s(ptr), hx(off)))
        a("s_addc_u32 %s, %s, 0" % (s(dst + 1), s(ptr + 1)))
    else:
        a("s_mov_b32 %s, %s" % (s(dst), s(ptr)))
        a("s_mov_b32 %s, %s" % (s(dst + 1), s(ptr + 1)))
    a("s_mov_b32 %s, %s" % (s(dst + 2), hx(size)))
    a("s_mov_b32 %s, 0x20000" % s(dst + 3))


def kernel_header(a, name):
    a.raw(".globl %s" % name)
    a.raw(".p2align 8")
    a.raw(".type %s,@function" % name)
    a.label(name)


def kernel_desc(name, vgpr, sgpr):
    acc = (vgpr + 3) // 4 * 4
    return "\n".join([
        ".p2align 6",
        ".amdhsa_kernel %s" % name,
        "  .amdhsa_next_free_vgpr %d" % vgpr,
        "  .amdhsa_next_free_sgpr %d" % sgpr,
        "  .amdhsa_accum_offset %d" % acc,
        "  .amdhsa_group_segment_fixed_size 0",
        "  .amdhsa_kernarg_size 88",
        "  .amdhsa_user_sgpr_count 2",
        "  .amdhsa_user_sgpr_kernarg_segment_ptr 1",
        "  .amdhsa_system_sgpr_workgroup_id_x 1",
        ".end_amdhsa_kernel",
    ]) + "\n"


NEG1 = " neg_lo:[0,1] neg_hi:[0,1]"


def mark(a, idx, extra=None):
    if idx == 0 and not getattr(a, "dt0", False):
        a.dt0 = True
        dbgt(a, 15, neg=True)
        dbgt(a, 0)
    elif idx in (3, 4, 5, 6, 7, 10, 11, 13) and extra is None:
        dbgt(a, idx)
    elif idx == 14:
        dbgt(a, 14, few=False)
    if not STAMP:
        return
    lab = a.newlabel("nost")
    a("s_and_b32 s96, %s, 3" % s(sWAVE))
    a("s_cmp_lg_u32 s96, 0")
    a("s_cbranch_scc1 %s" % lab)
    a("s_memrealtime s[96:97]")
    a("s_memtime s[98:99]")
    a("s_waitcnt lgkmcnt(0)")
    r0 = 0 if idx in (7, 8, 9) else 252
    a("v_mov_b32 %s, s96" % v(r0))
    a("v_mov_b32 %s, %s" % (v(r0 + 1), "s98" if extra is None else s(extra)))
    a("s_lshl_b32 s96, s2, 8")
    a("s_lshl_b32 s97, %s, 5" % s(sWAVE))
    a("s_add_u32 s96, s96, s97")
    a("s_add_u32 s96, s96, %s" % hx(STAMP_OFF + idx * 8))
    a("v_mov_b32 %s, s96" % v(r0 + 2))
    a("buffer_store_dwordx2 %s, %s, %s, 0 offen" % (v(r0, 2), v(r0 + 2), s(WS, 4)))
    a.label(lab)


FINE = False


def dbgt(a, idx, neg=False, few=True):
    if OPT.get("dbgt") != "1":
        return
    lab = a.newlabel("nodt")
    a("s_cmp_lg_u32 %s, 0" % s(sWAVE))
    a("s_cbranch_scc1 %s" % lab)
    if few:
        a("s_cmp_ge_u32 s2, 8")
        a("s_cbranch_scc1 %s" % lab)
    a("s_memrealtime s[96:97]")
    a("s_waitcnt lgkmcnt(0)")
    if neg:
        a("s_not_b32 s96, s96")
    a("v_mov_b32 v252, s96")
    a("v_mov_b32 v253, %d" % (4 * idx))
    a("s_mov_b64 exec, 1")
    a("global_atomic_umax v253, v252, s[34:35] sc1")
    a("s_mov_b64 exec, -1")
    a.label(lab)


def fine(a):
    if not FINE:
        return
    a("s_memtime s[98:99]")
    a("s_waitcnt lgkmcnt(0)")
    a("s_mov_b32 m0, s100")
    a("s_nop 0")
    a("v_writelane_b32 v250, s98, m0")
    a("s_add_u32 s100, s100, 1")


def fine_dump(a, slot):
    if not FINE:
        return
    a("s_lshl_b32 s96, s2, 11")
    a("s_lshl_b32 s97, %s, 8" % s(sWAVE))
    a("s_add_u32 s96, s96, s97")
    a("s_add_u32 s96, s96, %s" % hx(STAMP_OFF + 0x100000 * (1 + slot)))
    a("v_lshlrev_b32 v251, 2, v3")
    a("buffer_store_dword v250, v251, %s, s96 offen" % s(WS, 4))
    a("s_mov_b32 s100, 0")
    a("s_nop 1")
    a("v_mov_b32 v250, 0")


def interleave(a, main, fill, per=1, start=0):
    fi = 0
    for i, m in enumerate(main):
        a(m)
        if i >= start:
            for _ in range(per):
                if fi < len(fill):
                    a(fill[fi]); fi += 1
    while fi < len(fill):
        a(fill[fi]); fi += 1


def mfma(d, sa, sb, c=None):
    return "v_mfma_f32_16x16x32_bf16 %s, %s, %s, %s" % (v(d, 4), v(sa, 4), v(sb, 4), v(d, 4) if c is None else c)


def prologue(a, endlab):
    a("s_cmp_ge_u32 s2, 256")
    a("s_cbranch_scc1 %s" % endlab)
    if OPT.get("cpf", "1") == "1":
        a("s_getpc_b64 s[96:97]")
        a.label("L_pc")
        a("s_lshr_b32 s98, s2, 3")
        a("s_lshl_b32 s98, s98, 13")
        a("v_lshl_add_u32 v2, v0, 4, s98")
        a("v_cmp_gt_u32 vcc, L_end-L_pc, v2")
        a("s_and_saveexec_b64 s[98:99], vcc")
        a("s_cbranch_execz L_nocpf")
        a("global_load_dwordx4 v[244:247], v2, s[96:97]")
        a.label("L_nocpf")
        a("s_mov_b64 exec, -1")
    a("s_load_dwordx16 s[16:31], s[0:1], 0")
    a("s_load_dwordx4 s[32:35], s[0:1], 64")
    a("s_load_dwordx2 s[36:37], s[0:1], 80")
    a("v_lshrrev_b32 v1, 6, v0")
    a("v_and_b32 v3, 63, v0")
    a("s_and_b32 %s, s2, 7" % s(sXCD))
    a("s_lshr_b32 %s, s2, 3" % s(sLOC))
    a("v_readfirstlane_b32 %s, v1" % s(sWAVE))
    a("s_and_b32 s6, s4, 1"); a("s_lshl_b32 s6, s6, 3"); a("s_and_b32 s7, s5, 7"); a("s_add_u32 s6, s6, s7")
    a("s_lshr_b32 s7, s4, 1"); a("s_lshl_b32 s7, s7, 2"); a("s_lshr_b32 s8, s5, 3"); a("s_add_u32 s7, s7, s8")
    a("s_lshl_b32 s8, s4, 5"); a("s_add_u32 s8, s8, s5")
    a("s_mov_b32 s9, s6")
    a("s_lshr_b32 s11, s7, 3")
    a("s_and_b32 s10, s7, 7")
    a("s_mov_b32 %s, %s" % (s(sNL2E), hx(f32(-1.4426950408889634))))
    a("s_mov_b32 %s, %s" % (s(sNL2E + 1), hx(f32(-1.4426950408889634))))
    a("s_mov_b32 %s, 0xffff0000" % s(sHI))
    a("s_lshr_b32 s38, %s, 1" % s(sTAU))
    a("s_and_b32 s39, %s, 1" % s(sTAU))
    a("v_lshlrev_b32 v26, 18, v1")
    a("v_and_b32 v27, 31, v3")
    a("v_lshl_add_u32 v26, v27, 3, v26")
    a("v_lshrrev_b32 v27, 5, v3")
    a("v_lshl_add_u32 v26, v27, 9, v26")
    a("s_lshl_b32 s95, s38, 11")
    a("v_add_u32 v26, s95, v26")
    a("s_lshl_b32 s95, s39, 8")
    a("v_add_u32 v26, s95, v26")
    a("v_xor_b32 v27, 0x100, v26")
    a("v_mov_b32 v28, %d" % SYNC)
    a("v_mov_b32 v29, 0")
    a("ds_write_b32 v28, v29")
    a("s_waitcnt lgkmcnt(0)")
    srd(a, XS, 16, 0, 2048 * 1024 * 2)
    a("s_cmp_ge_u32 %s, 4" % s(sWAVE))
    a("s_cbranch_scc1 L_nox")
    for ri, B in enumerate(RAWB):
        a("s_mov_b32 s95, %s" % hx(ri * 0x100000))
        for hh in range(2):
            for jj in range(2):
                a("buffer_load_dwordx2 %s, %s, %s, s95 offen offset:%d" % (
                    v(B + 4 * hh + 2 * jj, 2), "v27" if hh else "v26", s(XS, 4), 1024 * jj))
    a.label("L_nox")
    srd(a, WS, 36, 0, WS_SZ)
    srd(a, W1, 28, 0, 1024 * 3584 * 2)
    srd(a, DR, 22, 0, 1024 * 1024 * 2)
    srd(a, DI, 24, 0, 1024 * 1024 * 2)
    srd(a, W2, 30, 0, 3584 * 1024 * 2)
    srd(a, CR, 18, 0, 2048 * 2048 * 2)
    srd(a, CI, 20, 0, 2048 * 2048 * 2)
    srd(a, OUT, 32, 0, 2048 * 1024 * 2)
    a("s_mov_b32 %s, s38" % s(sSP))
    a("s_mov_b32 %s, s39" % s(sHALF))
    a("s_lshl_b32 %s, %s, 4" % (s(sHF), s(sRB)))
    a("s_add_u32 %s, %s, %s" % (s(sHF), s(sHF), s(sCB)))
    a("s_lshr_b32 s95, %s, 3" % s(sHF))
    a("s_lshl_b32 s95, s95, 9")
    a("s_lshl_b32 %s, %s, 2" % (s(sHF), s(sCB8)))
    a("s_add_u32 %s, %s, %s" % (s(sHF), s(sHF), s(sWAVE)))
    a("s_lshl_b32 %s, %s, 2" % (s(sHF), s(sHF)))
    a("s_and_b32 %s, %s, 127" % (s(sHF), s(sHF)))
    a("s_add_u32 %s, %s, s95" % (s(sHF), s(sHF)))
    a("s_add_u32 %s, %s, %s" % (s(sHF), s(sHF), hx(HF_OFF)))
    if US() == 1:
        a("s_lshl_b32 %s, %s, 1" % (s(sNB8), s(sCB8)))
    elif US() == 2:
        a("s_and_b32 s95, %s, 1" % s(sCB8))
        a("s_lshr_b32 %s, %s, 1" % (s(sNB8), s(sCB8)))
        a("s_lshl_b32 %s, %s, 2" % (s(sNB8), s(sNB8)))
        a("s_add_u32 %s, %s, s95" % (s(sNB8), s(sNB8)))
    else:
        a("s_and_b32 s95, %s, 3" % s(sCB8))
        a("s_lshr_b32 %s, %s, 2" % (s(sNB8), s(sCB8)))
        a("s_lshl_b32 %s, %s, 3" % (s(sNB8), s(sNB8)))
        a("s_add_u32 %s, %s, s95" % (s(sNB8), s(sNB8)))
    a("s_load_dword %s, s[36:37], %s" % (s(sTAG), hx(EP_OFF)))


def US():
    return int(OPT.get("us", "1"))


ROWB = [32, 76]
RAWB = [32, 76, 240, 120]


def tag_ready(a):
    a("s_add_u32 %s, %s, 0x9e3779b9" % (s(sTAG), s(sTAG)))


def flag_store(a, kind, wave=4):
    lab = a.newlabel("nf")
    a("s_cmp_lg_u32 %s, %d" % (s(sWAVE), wave))
    a("s_cbranch_scc1 %s" % lab)
    if kind == "h":
        a("v_mov_b32 v2, %s" % s(sHF))
    elif kind == "epoch":
        a("s_cmp_lg_u32 s2, 0")
        a("s_cbranch_scc1 %s" % lab)
        a("v_mov_b32 v2, %s" % hx(EP_OFF))
    else:
        idx = "s2" if kind == "s" else s(sTAU)
        a("s_lshr_b32 s96, %s, 3" % idx)
        a("s_lshl_b32 s96, s96, 7")
        a("s_and_b32 s97, %s, 7" % idx)
        a("s_lshl_b32 s97, s97, 2")
        a("s_add_u32 s96, s96, s97")
        a("s_add_u32 s96, s96, %s" % hx(SF_OFF if kind == "s" else ZF_OFF))
        a("v_mov_b32 v2, s96")
    a("v_mov_b32 v1, %s" % s(sTAG))
    a("s_mov_b64 exec, 1")
    a("buffer_store_dword v1, v2, %s, 0 offen sc1" % s(WS, 4))
    a("s_mov_b64 exec, -1")
    a("s_nop 3")
    a.label(lab)


def poll_issue(a, vdst, vaddr, n=1, off=0, stride=1024):
    for i in range(n):
        a("buffer_load_dword %s, %s, %s, 0 offen offset:%d sc1" % (v(vdst + i), v(vaddr), s(WS, 4), off + i * stride))


def hflag(a, phase, n):
    a("s_waitcnt vmcnt(%d)" % n)
    a("s_mov_b64 exec, 1")
    a("buffer_store_dword v1, v2, %s, 0 offen offset:%d sc1" % (s(WS, 4), phase * 128))
    a("s_mov_b64 exec, -1")


def poll_test(a, vdst, mask, n=1):
    a("v_cmp_ne_u32 vcc, %s, %s" % (s(sTAG), v(vdst)))
    for i in range(1, n):
        a("v_cmp_ne_u32 s[96:97], %s, %s" % (s(sTAG), v(vdst + i)))
        a("s_or_b64 vcc, vcc, s[96:97]")
    a("s_nop 0")
    a("s_and_b64 vcc, vcc, %s" % mask)


def poll_check(a, vdst, vaddr, mask, issued, n=1, off=0, stride=1024):
    top = a.newlabel("poll"); done = a.newlabel("pdone"); chk = a.newlabel("pchk")
    a("s_mov_b32 %s, 0" % s(T7))
    if issued:
        a("s_branch %s" % chk)
    a.label(top)
    poll_issue(a, vdst, vaddr, n, off, stride)
    a("s_waitcnt vmcnt(0)")
    a.label(chk)
    a("s_add_u32 %s, %s, 1" % (s(T7), s(T7)))
    poll_test(a, vdst, mask, n)
    a("s_cbranch_scc0 %s" % done)
    a("s_sleep %s" % OPT.get("sleep", "4"))
    a("s_cmp_lt_u32 %s, %d" % (s(T7), SPIN_MAX))
    a("s_cbranch_scc1 %s" % top)
    a.label(done)


def prep_ln(a):
    a("v_lshlrev_b32 v31, 8, v1")
    a("v_and_b32 v2, 31, v3")
    a("v_lshl_add_u32 v31, v2, 3, v31")
    a("v_lshrrev_b32 v2, 5, v3")
    a("v_lshl_add_u32 v31, v2, 12, v31")
    a("v_add_u32 v31, %d, v31" % STG)
    a("s_and_b32 %s, %s, 15" % (s(T0), s(sSP)))
    a("s_lshl_b32 %s, %s, 7" % (s(T0), s(T0)))
    a("s_lshr_b32 %s, %s, 4" % (s(T1), s(sSP)))
    a("s_add_u32 %s, %s, %s" % (s(T0), s(T0), s(T1)))
    a("s_lshl_b32 %s, %s, 3" % (s(T1), s(sWAVE)))
    a("s_add_u32 %s, %s, %s" % (s(T0), s(T0), s(T1)))
    a("s_lshl_b32 %s, %s, 3" % (s(T0), s(T0)))
    a("s_add_u32 %s, %s, %s" % (s(T0), s(T0), hx(STAT_OFF)))
    a("v_mov_b32 v2, %s" % s(T0))
    for ps in range(2):
        a("s_waitcnt vmcnt(%d)" % (8 if ps == 0 else 0))
        if OPT.get("sst") == "1":
            mark(a, 28 + ps)
        prep_ln_pass(a, ps)
    lab = a.newlabel("nostat")
    a("s_cmp_lg_u32 %s, 0" % s(sHALF))
    a("s_cbranch_scc1 %s" % lab)
    a("s_mov_b64 exec, 1")
    for ri in range(4):
        a("buffer_store_dwordx2 %s, v2, %s, 0 offen offset:%d%s" % (v(ROWB[ri & 1] + 32 * (ri >> 1), 2), s(WS, 4), ri * 256, SC1))
    a("s_mov_b64 exec, -1")
    a.label(lab)


def prep_ln_pass(a, ps):
    streams = []
    for rj, B in enumerate(ROWB):
        ri = 2 * ps + rj
        RAW, X, T, M, R, D = RAWB[ri], B + 8, B + 24, B + 32, B + 34, B + 36
        S1, S2 = (T5, T6) if rj == 0 else (24, 25)
        L = []
        for p in range(8):
            L.append("v_lshlrev_b32 %s, 16, %s" % (v(X + 2 * p), v(RAW + p)))
            L.append("v_and_b32 %s, %s, %s" % (v(X + 2 * p + 1), s(sHI), v(RAW + p)))
        pk = lambda d, x, y, m="": L.append("v_pk_add_f32 %s, %s, %s%s" % (v(d, 2), v(x, 2), v(y, 2), m))

        def wsum(r, sd):
            for m in ("quad_perm:[1,0,3,2] row_mask:0xf", "quad_perm:[2,3,0,1] row_mask:0xf",
                      "row_half_mirror row_mask:0xf", "row_mirror row_mask:0xf",
                      "row_bcast:15 row_mask:0xa", "row_bcast:31 row_mask:0xc"):
                L.append("s_nop 0")
                L.append("v_add_f32_dpp %s, %s, %s %s bank_mask:0xf" % (v(r), v(r), v(r), m))
            L.append("s_nop 0")
            L.append("v_readlane_b32 %s, %s, 63" % (s(sd), v(r)))
            L.append("s_nop 0")
        pk(T, X, X + 2); pk(T + 2, X + 4, X + 6); pk(T + 4, X + 8, X + 10); pk(T + 6, X + 12, X + 14)
        pk(T, T, T + 2); pk(T + 4, T + 4, T + 6); pk(T, T, T + 4)
        L.append("v_add_f32 %s, %s, %s" % (v(T), v(T), v(T + 1)))
        wsum(T, S1)
        L.append("v_mov_b32 %s, %s" % (v(M), hx(f32(1.0 / 1024))))
        L.append("v_mul_f32 %s, %s, %s" % (v(M), s(S1), v(M)))
        for g4 in range(2):
            for p in range(4):
                pk(D + 2 * p, X + 8 * g4 + 2 * p, M, " op_sel_hi:[1,0]" + NEG1)
            for p in range(4):
                t = T + 2 * (p & 1)
                if g4 == 0 and p < 2:
                    L.append("v_pk_mul_f32 %s, %s, %s" % (v(t, 2), v(D + 2 * p, 2), v(D + 2 * p, 2)))
                else:
                    L.append("v_pk_fma_f32 %s, %s, %s, %s" % (v(t, 2), v(D + 2 * p, 2), v(D + 2 * p, 2), v(t, 2)))
        pk(T, T, T + 2)
        L.append("v_add_f32 %s, %s, %s" % (v(T), v(T), v(T + 1)))
        wsum(T, S2)
        L.append("v_mov_b32 %s, %s" % (v(R), hx(f32(1.0 / 1024))))
        L.append("v_mul_f32 %s, %s, %s" % (v(R), s(S2), v(R)))
        L.append("v_cvt_pk_bf16_f32 %s, %s, %s" % (v(R), v(R), v(R)))
        L.append("v_lshlrev_b32 %s, 16, %s" % (v(R), v(R)))
        L.append("v_add_f32 %s, %s, %s" % (v(R), hx(f32(1e-5)), v(R)))
        L.append("v_cvt_pk_bf16_f32 %s, %s, %s" % (v(R), v(R), v(R)))
        L.append("v_lshlrev_b32 %s, 16, %s" % (v(R), v(R)))
        L.append("v_sqrt_f32 %s, %s" % (v(R), v(R)))
        L.append("v_cvt_pk_bf16_f32 %s, %s, %s" % (v(M), v(M), v(M)))
        L.append("v_cvt_pk_bf16_f32 %s, %s, %s" % (v(R), v(R), v(R)))
        L.append("v_lshlrev_b32 %s, 16, %s" % (v(M), v(M)))
        L.append("v_lshlrev_b32 %s, 16, %s" % (v(R), v(R)))
        L.append("v_rcp_f32 %s, %s" % (v(R), v(R)))
        for p in range(4):
            pk(D + 2 * p, X + 2 * p, M, " op_sel_hi:[1,0]" + NEG1)
        if ps == 0:
            L.append("v_mov_b32 %s, %s" % (v(B), v(M)))
            L.append("v_mov_b32 %s, %s" % (v(B + 1), v(R)))
        else:
            L.append("v_mov_b32 %s, %s" % (v(M + 1), v(R)))
        for p in range(4):
            L.append("v_cvt_pk_bf16_f32 %s, %s, %s" % (v(T + p), v(D + 2 * p), v(D + 2 * p + 1)))
        for p in range(4):
            L.append("v_lshlrev_b32 %s, 16, %s" % (v(D + 2 * p), v(T + p)))
            L.append("v_and_b32 %s, %s, %s" % (v(D + 2 * p + 1), s(sHI), v(T + p)))
        for p in range(4):
            L.append("v_pk_mul_f32 %s, %s, %s op_sel_hi:[1,0]" % (v(D + 2 * p, 2), v(D + 2 * p, 2), v(R, 2)))
        for p in range(4):
            L.append("v_cvt_pk_bf16_f32 %s, %s, %s" % (v(T + p), v(D + 2 * p), v(D + 2 * p + 1)))
        for p in range(4):
            L.append("v_lshlrev_b32 %s, 16, %s" % (v(X + 2 * p), v(T + p)))
            L.append("v_and_b32 %s, %s, %s" % (v(X + 2 * p + 1), s(sHI), v(T + p)))
        pk(D, X, X + 4); pk(D + 2, X + 2, X + 6)
        pk(D + 4, X, X + 4, NEG1); pk(D + 6, X + 2, X + 6, NEG1)
        for p in range(4):
            L.append("v_cvt_pk_f16_f32 %s, %s, %s" % (v(T + p), v(D + 2 * p), v(D + 2 * p + 1)))
        for wh in range(2):
            L.append("ds_write_b64 v31, %s offset:%d" % (v(T + 2 * wh, 2), wh * 8192 + ri * 1024))
        streams.append(L)
    for x, y in zip(*streams):
        a(x); a(y)


def prep_dft(a0):
    a = Asm()
    a("s_lshr_b32 %s, %s, 1" % (s(T0), s(sWAVE)))
    a("s_lshl_b32 %s, %s, 13" % (s(T1), s(T0)))
    a("s_add_u32 %s, %s, %d" % (s(T1), s(T1), STG))
    a("v_lshlrev_b32 v122, 2, v3")
    a("v_add_u32 v122, %s, v122" % s(T1))
    IN = [32, 48]
    for ab in range(2):
        for j in range(8):
            a("ds_read2st64_b32 %s, v122 offset0:%d offset1:%d" % (v(IN[ab] + 2 * j, 2), ab * 16 + j, ab * 16 + j + 8))
    a("s_lshl_b32 %s, %s, 9" % (s(T1), s(sSP)))
    a("s_lshl_b32 %s, %s, 8" % (s(T2), s(sHALF)))
    a("s_add_u32 %s, %s, %s" % (s(T1), s(T1), s(T2)))
    a("s_lshl_b32 %s, %s, 17" % (s(T2), s(T0)))
    a("s_add_u32 %s, %s, %s" % (s(T1), s(T1), s(T2)))
    a("s_add_u32 %s, %s, %s" % (s(T1), s(T1), hx(CB_OFF)))
    a("v_lshlrev_b32 v123, 2, v3")
    a("v_add_u32 v123, %s, v123" % s(T1))
    for r_, val in ((C1, math.cos(math.pi / 8)), (C2, math.cos(math.pi / 4)), (C3, math.cos(3 * math.pi / 8))):
        a("s_mov_b32 %s, %s" % (s(r_), hx(f32(val))))
        a("s_mov_b32 %s, %s" % (s(r_ + 1), hx(f32(val))))
    head = a.lines
    var = {}
    for parity in range(2):
        free = list(range(64, 120, 2))
        alloc = lambda: free.pop(0)

        def rel(*rs):
            free.extend(rs)

        def add(x, y):
            d = alloc(); a("v_pk_add_f32 %s, %s, %s" % (v(d, 2), v(x, 2), v(y, 2))); return d

        def sub(x, y):
            d = alloc(); a("v_pk_add_f32 %s, %s, %s%s" % (v(d, 2), v(x, 2), v(y, 2), NEG1)); return d

        def mul(x, c):
            d = alloc(); a("v_pk_mul_f32 %s, %s, %s" % (v(d, 2), v(x, 2), s(c, 2))); return d

        def fma(x, c, y, nx=False, ny=False):
            d = alloc()
            mod = " neg_lo:[%d,0,%d] neg_hi:[%d,0,%d]" % (nx, ny, nx, ny) if (nx or ny) else ""
            a("v_pk_fma_f32 %s, %s, %s, %s%s" % (v(d, 2), v(x, 2), s(c, 2), v(y, 2), mod)); return d

        def mix(r, neg):
            d = alloc()
            for h in range(2):
                a("v_fma_mix_f32 %s, %s, 1.0, %s%s op_sel:[%d,0,%d] op_sel_hi:[1,0,1]" % (v(d + h), v(r), "-" if neg else "", v(r + 1), h, h))
            rel(r)
            return d

        def dft(base):
            p = {}; q = {}
            if parity == 0:
                u = [mix(base + 2 * j, False) for j in range(8)]
                uu = []; uv = []
                for j in range(4):
                    uu.append(add(u[j], u[j + 4])); uv.append(sub(u[j], u[j + 4])); rel(u[j], u[j + 4])
                e0 = add(uu[0], uu[2]); e1 = add(uu[1], uu[3])
                p[4] = sub(uu[0], uu[2]); q[4] = sub(uu[1], uu[3]); rel(*uu)
                p[0] = add(e0, e1); p[8] = sub(e0, e1); rel(e0, e1)
                dm = sub(uv[1], uv[3]); dp = add(uv[1], uv[3])
                p[2] = fma(dm, C2, uv[0]); p[6] = fma(dm, C2, uv[0], nx=True)
                q[2] = fma(dp, C2, uv[2]); q[6] = fma(dp, C2, uv[2], ny=True)
                rel(dm, dp, *uv)
            else:
                w = [mix(base + 2 * j, True) for j in range(8)]
                aa = {}; bb = {}
                for j in (1, 2, 3):
                    aa[j] = sub(w[j], w[8 - j]); bb[j] = add(w[j], w[8 - j]); rel(w[j], w[8 - j])
                Ap = fma(aa[2], C2, w[0]); Am = fma(aa[2], C2, w[0], nx=True); rel(aa[2], w[0])
                t = mul(aa[1], C1); G1 = fma(aa[3], C3, t); rel(t)
                t = mul(aa[1], C3); G3 = fma(aa[3], C1, t, nx=True); rel(t, aa[1], aa[3])
                p[1] = add(Ap, G1); p[7] = sub(Ap, G1); p[3] = add(Am, G3); p[5] = sub(Am, G3); rel(Ap, Am, G1, G3)
                Bp = fma(bb[2], C2, w[4]); B3 = fma(bb[2], C2, w[4], ny=True); rel(bb[2], w[4])
                t = mul(bb[1], C3); H1 = fma(bb[3], C1, t); rel(t)
                t = mul(bb[1], C1); H3 = fma(bb[3], C3, t, nx=True); rel(t, bb[1], bb[3])
                q[1] = add(H1, Bp); q[7] = sub(H1, Bp); q[3] = add(H3, B3); q[5] = sub(H3, B3); rel(Bp, B3, H1, H3)
            return p, q

        a.lines = var[(1, parity)] = []
        pa, qa = dft(IN[0])
        a.lines = var[(2, parity)] = []
        pb, qb = dft(IN[1])
        tmpd = []
        for _ in range(4):
            r_ = alloc(); tmpd += [r_, r_ + 1]
        t2 = [alloc(), alloc()]
        cnt = [0]

        def st(reg, arr):
            d = tmpd[cnt[0] % len(tmpd)]; cnt[0] += 1
            a("v_cvt_pk_bf16_f32 %s, %s, %s" % (v(d), v(reg), v(reg + 1)))
            a("s_mov_b32 %s, %s" % (s(T1), hx(arr * 65536)))
            a("buffer_store_dword %s, v123, %s, %s offen%s" % (v(d), s(WS, 4), s(T1), SC1))

        rs = [2, 4, 6] if parity == 0 else [1, 3, 5, 7]
        a.lines = var[(3, parity, 0)] = []
        def comb(x, y, arr1, arr2):
            a("v_pk_add_f32 %s, %s, %s" % (v(t2[0], 2), v(x, 2), v(y, 2)))
            a("v_pk_add_f32 %s, %s, %s%s" % (v(t2[1], 2), v(x, 2), v(y, 2), NEG1))
            st(t2[0], arr1); st(t2[1], arr2)
        if parity == 0:
            comb(pa[0], pb[0], 0, 4); comb(pa[8], pb[8], 1, 5)
        for r_ in rs:
            comb(pa[r_], pb[r_], r_ * 8, r_ * 8 + 4); comb(qa[r_], qb[r_], r_ * 8 + 1, r_ * 8 + 5)
        a.lines = var[(3, parity, 1)] = []
        if parity == 0:
            st(pa[0], 0); st(pb[0], 1); st(pa[8], 4); st(pb[8], 5)
        for r_ in rs:
            a("v_pk_add_f32 %s, %s, %s%s" % (v(t2[0], 2), v(pa[r_], 2), v(qb[r_], 2), NEG1))
            a("v_pk_add_f32 %s, %s, %s" % (v(t2[1], 2), v(qa[r_], 2), v(pb[r_], 2)))
            st(t2[0], r_ * 8); st(t2[1], r_ * 8 + 1)
            a("v_pk_add_f32 %s, %s, %s" % (v(t2[0], 2), v(pa[r_], 2), v(qb[r_], 2)))
            a("v_pk_add_f32 %s, %s, %s%s" % (v(t2[1], 2), v(qa[r_], 2), v(pb[r_], 2), NEG1))
            st(t2[0], r_ * 8 + 4); st(t2[1], r_ * 8 + 5)

    def split(lines):
        idx = [i for i, x in enumerate(lines) if "buffer_store" in x]
        assert len(idx) == 16
        return lines[:idx[7] + 1], lines[idx[7] + 1:]

    def emit(cases):
        done = a0.newlabel("dd")
        labs = [a0.newlabel("dc") for _ in cases]
        uniq = []
        for l_, c in enumerate(cases):
            if c not in uniq:
                uniq.append(c)
        if len(uniq) == 2:
            a0("s_bitcmp1_b32 %s, 0" % s(sWAVE))
            a0("s_cbranch_scc1 %s" % labs[1])
            a0.lines += cases[0]; a0("s_branch %s" % done)
            a0.label(labs[1]); a0.lines += cases[1]
        else:
            for l_ in range(1, 4):
                a0("s_cmp_eq_u32 %s, %d" % (s(sWAVE), l_))
                a0("s_cbranch_scc1 %s" % labs[l_])
            for l_ in range(4):
                if l_:
                    a0.label(labs[l_])
                a0.lines += cases[l_]
                if l_ < 3:
                    a0("s_branch %s" % done)
        a0.label(done)

    def piece(n):
        if n == 0:
            a0.lines += head
        elif n == 1:
            emit([var[(1, l_ & 1)] + var[(2, l_ & 1)] for l_ in range(4)])
        else:
            emit([var[(3, l_ & 1, l_ >> 1)] for l_ in range(4)])
    return piece


def rowimg_frag_addr(a, dst0, dst1, rowbase_sgpr):
    a("v_and_b32 %s, 15, v3" % v(dst0))
    a("v_lshlrev_b32 %s, 7, %s" % (v(dst0), v(dst0)))
    a("v_lshrrev_b32 %s, 4, v3" % v(dst1))
    a("v_bfe_u32 v2, v3, 1, 3")
    a("v_xor_b32 %s, %s, v2" % (v(dst1), v(dst1)))
    a("v_lshl_add_u32 %s, %s, 4, %s" % (v(dst0), v(dst1), v(dst0)))
    a("v_add_u32 %s, %s, %s" % (v(dst0), s(rowbase_sgpr), v(dst0)))
    a("v_xor_b32 %s, 64, %s" % (v(dst1), v(dst0)))


def silu_tail(a, regs, tmp):
    for t in tmp:
        a("v_exp_f32 %s, %s" % (v(t), v(t)))
        a("v_exp_f32 %s, %s" % (v(t + 1), v(t + 1)))
    for t in tmp:
        a("v_pk_add_f32 %s, %s, 1.0 op_sel_hi:[1,0]" % (v(t, 2), v(t, 2)))
    for t in tmp:
        a("v_rcp_f32 %s, %s" % (v(t), v(t)))
        a("v_rcp_f32 %s, %s" % (v(t + 1), v(t + 1)))
    for r_, t in zip(regs, tmp):
        a("v_pk_mul_f32 %s, %s, %s" % (v(r_, 2), v(r_, 2), v(t, 2)))


def silu_pk(a, regs, tmp):
    for r_, t in zip(regs, tmp):
        a("v_pk_mul_f32 %s, %s, %s" % (v(t, 2), v(r_, 2), s(sNL2E, 2)))
    silu_tail(a, regs, tmp)


ACC1 = 128
vM0, vM1, vNa, vNb, vNc = 4, 5, 6, 7, 8
cM0, cM1, cNa, cNb, cNc = 9, 10, 11, 12, 13
vZ0, vZ1 = 14, 15


def compute_setup(a):
    a("s_lshr_b32 %s, %s, 1" % (s(sWM), s(sWAVE)))
    a("s_and_b32 %s, %s, 1" % (s(sWN), s(sWAVE)))
    a("s_lshl_b32 %s, s2, 15" % s(T0))
    a("s_lshl_b32 %s, %s, 13" % (s(T1), s(sWAVE)))
    a("s_add_u32 %s, %s, %s" % (s(T0), s(T0), s(T1)))
    a("s_add_u32 %s, %s, %s" % (s(T0), s(T0), hx(EX_OFF)))
    a("v_lshlrev_b32 v24, 4, v3")
    a("v_add_u32 v24, %s, v24" % s(T0))
    a("v_add_u32 v25, 4096, v24")
    a("s_lshl_b32 %s, %s, 13" % (s(T0), s(sWM)))
    rowimg_frag_addr(a, vM0, vM1, T0)
    a("s_lshl_b32 %s, %s, 13" % (s(T0), s(sWN)))
    a("s_add_u32 %s, %s, 16384" % (s(T0), s(T0)))
    rowimg_frag_addr(a, vZ0, vZ1, T0)
    a("v_lshrrev_b32 v18, 4, v3")
    a("v_bfe_u32 v17, v3, 2, 2")
    a("v_lshl_add_u32 v17, v18, 3, v17")
    a("v_mul_u32_u24 v17, 448, v17")
    a("v_and_b32 v19, 3, v3")
    a("v_lshl_add_u32 v17, v19, 3, v17")
    a("v_and_b32 v19, 1, v18")
    a("v_lshlrev_b32 v19, 5, v19")
    a("s_lshl_b32 %s, %s, 6" % (s(T0), s(sWN)))
    a("s_add_u32 %s, %s, 16384" % (s(T0), s(T0)))
    a("v_add_u32 v20, %s, v17" % s(T0))
    a("v_add_u32 %s, v20, v19" % v(vNa))
    a("v_sub_u32 %s, v20, v19" % v(vNb))
    a("s_lshl_b32 %s, %s, 5" % (s(T0), s(sWN)))
    a("v_xor_b32 v20, %s, v19" % s(T0))
    a("v_add_u32 v20, v20, v17")
    a("v_add_u32 %s, %d, v20" % (v(vNc), 16384 + 384))
    a("v_and_b32 v21, 1, v18")
    a("v_lshlrev_b32 v21, 5, v21")
    a("v_lshrrev_b32 v19, 1, v18")
    a("v_lshl_add_u32 v21, v19, 4, v21")
    a("s_lshl_b32 %s, %s, 4" % (s(T0), s(sRB)))
    a("s_add_u32 %s, %s, %s" % (s(T0), s(T0), s(sCB)))
    a("s_mul_i32 %s, %s, 49152" % (s(T1), s(T0)))
    a("s_lshl_b32 %s, %s, 13" % (s(T2), s(sWN)))
    a("s_add_u32 %s, %s, %s" % (s(T1), s(T1), s(T2)))
    a("s_lshl_b32 %s, %s, 12" % (s(T2), s(sWM)))
    a("s_add_u32 %s, %s, %s" % (s(T1), s(T1), s(T2)))
    a("s_add_u32 %s, %s, %s" % (s(T1), s(T1), hx(HR_OFF)))
    a("v_and_b32 v22, 15, v3")
    a("v_lshl_add_u32 v17, v22, 6, v21")
    a("v_add_u32 v17, %s, v17" % s(T1))
    a("s_lshl_b32 %s, %s, 13" % (s(T1), s(T0)))
    a("s_lshl_b32 %s, %s, 12" % (s(T2), s(sWN)))
    a("s_add_u32 %s, %s, %s" % (s(T1), s(T1), s(T2)))
    a("s_lshl_b32 %s, %s, 11" % (s(T2), s(sWM)))
    a("s_add_u32 %s, %s, %s" % (s(T1), s(T1), s(T2)))
    a("s_add_u32 %s, %s, %s" % (s(T1), s(T1), hx(HL_OFF)))
    a("v_and_b32 v20, 1, v18")
    a("v_lshl_add_u32 v20, v20, 4, v22")
    a("v_lshlrev_b32 v20, 5, v20")
    a("v_lshl_add_u32 v20, v19, 4, v20")
    a("v_add_u32 v20, %s, v20" % s(T1))
    a("s_lshl_b32 %s, %s, 7" % (s(T1), s(sWN)))
    a("s_add_u32 %s, %s, %d" % (s(T1), s(T1), CSB))
    a("v_lshlrev_b32 v26, 4, v18")
    a("v_add_u32 v26, %s, v26" % s(T1))
    a("s_lshl_b32 %s, %s, 6" % (s(T1), s(sWN)))
    a("s_add_u32 %s, %s, %d" % (s(T1), s(T1), CSB + 768))
    a("v_lshlrev_b32 v27, 4, v18")
    a("v_add_u32 v27, %s, v27" % s(T1))
    a("s_lshl_b32 %s, %s, 9" % (s(T1), s(sWM)))
    a("s_add_u32 %s, %s, %d" % (s(T1), s(T1), STB))
    a("v_lshlrev_b32 v28, 3, v22")
    a("v_add_u32 v28, %s, v28" % s(T1))
    for i in range(112):
        a("v_mov_b32 %s, 0" % v(ACC1 + i))
    a("s_mov_b32 %s, 0" % s(sSLOT))


def compute_g1_s1(a):
    ACC = ACC1
    FR = [32, 76]
    cZ0, cZ1 = cNa, cNb

    def set_addr(lst):
        return ["v_add_u32 %s, %s, %s" % (v(c), s(sSLOT), v(b)) for c, b in lst]

    def next_slot():
        return ["s_add_u32 s14, s14, %d" % G1SLOT, "s_cmp_eq_u32 s14, %d" % (G1SLOT * 3), "s_cselect_b32 s14, 0, s14"]

    G1A = [(cM0, vM0), (cM1, vM1), (cNa, vNa), (cNb, vNb), (cNc, vNc)]

    def s1_addr(k):
        return ["v_add_u32 %s, %s, %s" % (v(c), hx(S1SLOTS[k]), v(b)) for c, b in
                [(cM0, vM0), (cM1, vM1), (cZ0, vZ0), (cZ1, vZ1)]]

    def g1_reads(fs, ks):
        r = []
        for nt in range(7):
            ad = cNc if nt == 6 else (cNb if nt & 1 else cNa)
            off = 0 if nt == 6 else 128 * (nt >> 1) + 32 * (nt & 1)
            for h in range(2):
                r.append("ds_read_b64_tr_b16 %s, %s offset:%d" % (
                    v(FR[fs] + 16 + 4 * nt + 2 * h, 2), v(ad), ks * 14336 + h * 1792 + off))
            if nt < 4:
                r.append("ds_read_b128 %s, %s offset:%d" % (v(FR[fs] + 4 * nt, 4), v(cM1 if ks else cM0), nt * 2048))
        return r

    def g1_mfmas(fs):
        o = OPT.get("ord", "n")
        if o == "m":
            order = [(nt, mt) for mt in range(4) for nt in range(7)]
        elif o == "z":
            order = [(nt, mt if nt % 2 == 0 else 3 - mt) for nt in range(7) for mt in range(4)]
        else:
            order = [(nt, mt) for nt in range(7) for mt in range(4)]
        return [mfma(ACC + 4 * (nt * 4 + mt), FR[fs] + 16 + 4 * nt, FR[fs] + 4 * mt) for nt, mt in order]

    def g1_iter(extra_b=(), pre_bar=(), tail=(), flag=None):
        interleave(a, g1_mfmas(0), g1_reads(1, 1) + next_slot() + set_addr(G1A))
        a("s_waitcnt lgkmcnt(0)")
        a.all(pre_bar)
        fine(a)
        a("s_barrier")
        fine(a)
        interleave(a, g1_mfmas(1), g1_reads(0, 0) + list(extra_b))
        a("s_waitcnt lgkmcnt(0)")
        a.all(tail)

    def g1_loop(n):
        a("s_mov_b32 %s, 0" % s(sCNT))
        loop = a.newlabel("g1_loop")
        a.raw(".p2align 6")
        a.label(loop)
        g1_iter(["s_add_u32 s15, s15, 1", "s_cmp_lt_u32 s15, %d" % n], tail=["s_cbranch_scc1 %s" % loop])

    if OPT.get("sent", "none") == "pre":
        for i in range(4):
            a("v_mov_b32 %s, -1" % v(240 + i))
        for i in range(8):
            a("buffer_store_dwordx4 v[240:243], %s, %s, 0 offen offset:%d%s" % ("v25" if i >= 4 else "v24", s(WS, 4), (i & 3) * 1024, SC1))
    a.all(set_addr(G1A))
    mark(a, 3)
    a("s_barrier")
    mark(a, 4)
    a.all(g1_reads(0, 0))
    a("s_waitcnt lgkmcnt(0)")
    if STAMP:
        g1_loop(3)
        mark(a, 15)
        g1_loop(FLAGK - 3)
    else:
        g1_loop(FLAGK)
    g1_iter(pre_bar=["s_waitcnt vmcnt(0)"], flag="s")
    if STAMP:
        mark(a, 2)
        g1_loop(3)
        mark(a, 1)
        g1_loop(14 - FLAGK - 3)
    else:
        g1_loop(14 - FLAGK)
    interleave(a, g1_mfmas(0), g1_reads(1, 1) + s1_addr(0))
    a("s_waitcnt lgkmcnt(0)")
    a("s_barrier")
    CSR, STR = 32, 60
    rd = ["ds_read_b128 %s, v26 offset:%d" % (v(CSR + 4 * nt, 4), 256 * (nt >> 1) + 64 * (nt & 1)) for nt in range(6)]
    rd.append("ds_read_b128 %s, v27" % v(CSR + 24, 4))
    rd += ["ds_read_b64 %s, v28 offset:%d" % (v(STR + 2 * mt, 2), 128 * mt) for mt in range(4)]
    interleave(a, g1_mfmas(1), rd)
    mark(a, 5)
    a("s_waitcnt lgkmcnt(0)")
    if OPT.get("eprio", "0") != "0":
        a("s_setprio %s" % OPT.get("eprio"))
    RL = 68
    for mt in range(4):
        a("v_rcp_f32 %s, %s" % (v(RL + 2 * mt + 1), v(STR + 2 * mt + 1)))
        a("v_mul_f32 %s, %s, %s" % (v(RL + 2 * mt), s(sNL2E), v(STR + 2 * mt + 1)))
    TMP = 76
    PK = [88, 92, 96, 100, 104, 108, 112, 116]
    for pr in range(3):
        a("s_mov_b32 %s, %d" % (s(T0 + pr), pr * 16384))
    pki = 0
    groups = [[(mt, 2 * pr), (mt, 2 * pr + 1)] for pr in range(3) for mt in range(4)]
    groups += [[(0, 6), (1, 6)], [(2, 6), (3, 6)]]
    a("v_mov_b32 v1, %s" % s(sTAG))
    a("v_mov_b32 v2, %s" % s(sHF))
    F0 = int(OPT.get("f0", "8"))
    for gi, gr in enumerate(groups):
        if gi == F0:
            hflag(a, 0, F0 - 4)
        regs = []; cs = []; mts = []
        for mt, nt in gr:
            b = ACC + 4 * (nt * 4 + mt)
            regs += [b, b + 2]; cs += [CSR + 4 * nt, CSR + 4 * nt + 2]; mts += [mt, mt]
        tmp = [TMP + 2 * i for i in range(4)]
        for r_, c_, mt in zip(regs, cs, mts):
            a("v_pk_fma_f32 %s, %s, %s, %s op_sel_hi:[1,0,1] neg_lo:[0,1,0] neg_hi:[0,1,0]" % (v(r_, 2), v(c_, 2), v(STR + 2 * mt, 2), v(r_, 2)))
        for r_, t, mt in zip(regs, tmp, mts):
            a("v_pk_mul_f32 %s, %s, %s op_sel_hi:[1,0]" % (v(t, 2), v(r_, 2), v(RL + 2 * mt, 2)))
        for t_ in tmp:
            a("v_exp_f32 %s, %s" % (v(t_), v(t_)))
            a("v_exp_f32 %s, %s" % (v(t_ + 1), v(t_ + 1)))
        for t_, mt in zip(tmp, mts):
            a("v_pk_fma_f32 %s, %s, %s, %s op_sel:[0,1,1]" % (v(t_, 2), v(t_, 2), v(RL + 2 * mt, 2), v(RL + 2 * mt, 2)))
        for t_ in tmp:
            a("v_rcp_f32 %s, %s" % (v(t_), v(t_)))
            a("v_rcp_f32 %s, %s" % (v(t_ + 1), v(t_ + 1)))
        for r_, t_ in zip(regs, tmp):
            a("v_pk_mul_f32 %s, %s, %s" % (v(r_, 2), v(r_, 2), v(t_, 2)))
        P = PK[pki % len(PK)]; pki += 1
        for i, r_ in enumerate(regs):
            a("v_cvt_pk_bf16_f32 %s, %s, %s" % (v(P + i), v(r_), v(r_ + 1)))
        a("s_nop 1")
        a("v_permlane16_swap_b32 %s, %s" % (v(P), v(P + 2)))
        a("v_permlane16_swap_b32 %s, %s" % (v(P + 1), v(P + 3)))
        mt, nt = gr[0]
        if nt < 6:
            a("buffer_store_dwordx4 %s, v17, %s, %s offen offset:%d%s" % (v(P, 4), s(WS, 4), s(T0 + nt // 2), mt * 1024, SC1))
        else:
            a("buffer_store_dwordx4 %s, v20, %s, 0 offen offset:%d%s" % (v(P, 4), s(WS, 4), (mt // 2) * 1024, SC1))
    mark(a, 6)
    fine_dump(a, 0)

    def s1_reads(fs, ks):
        r = []
        for t in range(4):
            r.append("ds_read_b128 %s, %s offset:%d" % (v(FR[fs] + 4 * t, 4), v(cM1 if ks else cM0), t * 2048))
            r.append("ds_read_b128 %s, %s offset:%d" % (v(FR[fs] + 16 + 4 * t, 4), v(cZ1 if ks else cZ0), t * 2048))
        return r

    def s1_mfmas(fs, first):
        return [mfma(ACC + 4 * (mt * 4 + nt), FR[fs] + 4 * mt, FR[fs] + 16 + 4 * nt, "0" if first else None)
                for mt in range(4) for nt in range(4)]

    hflag(a, 1, 7 if F0 >= 8 else 6)
    g2_setup(a)
    a("v_mov_b32 v2, %s" % s(sHF))
    ACC = 192
    HF = -1
    a("s_barrier")
    a.all(s1_reads(0, 0))
    a("s_lshr_b32 %s, %s, 3" % (s(T0), s(sTAU)))
    a("s_and_b32 %s, %s, 3" % (s(T1), s(T0)))
    a("s_cmp_eq_u32 %s, 3" % s(T0))
    a("s_cselect_b32 %s, 1, %s" % (s(T1), s(T1)))
    a("s_lshr_b32 %s, %s, 2" % (s(T2), s(T0)))
    a("s_cmp_eq_u32 %s, 3" % s(T0))
    a("s_cselect_b32 %s, 8, %s" % (s(T2), s(T2)))
    a("s_lshl_b32 %s, %s, 19" % (s(T2), s(T2)))
    a("s_bfe_u32 %s, %s, 0x20001" % (s(T3), s(sTAU)))
    a("s_lshl_b32 %s, %s, 6" % (s(T3), s(T3)))
    a("s_lshl_b32 %s, %s, 5" % (s(T4), s(sWN)))
    a("s_add_u32 %s, %s, %s" % (s(T3), s(T3), s(T4)))
    a("v_and_b32 v17, 15, v3")
    a("v_add_u32 v17, %s, v17" % s(T3))
    a("v_sub_u32 v22, %d, v17" % (3 * 256 + 239))
    a("s_lshl_b32 %s, %s, 8" % (s(T1), s(T1)))
    a("v_add_u32 v17, %s, v17" % s(T1))
    a("s_and_b32 %s, %s, 1" % (s(T3), s(sTAU)))
    a("s_lshl_b32 %s, %s, 1" % (s(T3), s(T3)))
    a("s_add_u32 %s, %s, %s" % (s(T3), s(T3), s(sWM)))
    a("s_lshl_b32 %s, %s, 16" % (s(T3), s(T3)))
    a("s_add_u32 %s, %s, %s" % (s(T3), s(T3), hx(ZT_OFF)))
    a("v_add_u32 v23, %s, v21" % s(T3))
    a("v_lshl_add_u32 v17, v17, 6, v23")
    a("v_lshl_add_u32 v22, v22, 6, v23")
    a("s_waitcnt lgkmcnt(0)")
    for k in range(4):
        interleave(a, s1_mfmas(0, k == 0), s1_reads(1, 1) + (s1_addr(k + 1) if k < 3 else []))
        a("s_waitcnt lgkmcnt(0)")
        interleave(a, s1_mfmas(1, False), s1_reads(0, 0) if k < 3 else [])
        if k < 3:
            a("s_waitcnt lgkmcnt(0)")
        if k == 1:
            a("s_barrier")
        if k == 2:
            hflag(a, 2, 0)
            a("s_nop 3")
        if k == HF:
            a("s_waitcnt vmcnt(0)")
            a("s_barrier")
            flag_store(a, "h")
    mark(a, 7)
    a("s_barrier")
    mark(a, 8)
    a("s_nop 7")
    TMP = 32
    PK = [56, 60, 64, 68, 72, 76, 80, 84]
    typeB = a.newlabel("s1_typeB"); done = a.newlabel("s1_done")
    a("s_and_b32 %s, %s, 29" % (s(T3), s(T0)))
    a("s_cmp_eq_u32 %s, 0" % s(T3))
    a("s_cbranch_scc1 %s" % typeB)
    tile = lambda m, n: ACC + 4 * (m * 4 + n)
    pki = 0
    for n in range(2):
        for uv in range(2):
            P = PK[pki]; pki += 1
            for m in range(2):
                for h in range(2):
                    if uv == 0:
                        a("v_pk_add_f32 %s, %s, %s" % (v(TMP + 2 * h, 2), v(tile(m, n) + 2 * h, 2), v(tile(m + 2, n + 2) + 2 * h, 2)))
                    else:
                        a("v_pk_add_f32 %s, %s, %s%s" % (v(TMP + 2 * h, 2), v(tile(m + 2, n) + 2 * h, 2), v(tile(m, n + 2) + 2 * h, 2), NEG1))
                for h in range(2):
                    a("v_cvt_pk_bf16_f32 %s, %s, %s" % (v(P + 2 * m + h), v(TMP + 2 * h), v(TMP + 2 * h + 1)))
            a("s_add_u32 %s, %s, %d" % (s(T3), s(T2), n * 1024 + uv * 262144))
            a("s_nop 0")
            a("v_permlane16_swap_b32 %s, %s" % (v(P), v(P + 2)))
            a("v_permlane16_swap_b32 %s, %s" % (v(P + 1), v(P + 3)))
            a("buffer_store_dwordx4 %s, v17, %s, %s offen%s" % (v(P, 4), s(WS, 4), s(T3), SC1))
    a("s_cmp_ge_u32 %s, 4" % s(T0))
    a("s_cbranch_scc1 %s" % done)
    a("s_mov_b32 %s, 0x80008000" % s(T4))
    pki = 0
    for n in range(2):
        for uv in range(2):
            P = PK[pki]; pki += 1
            a("s_add_u32 %s, %s, %d" % (s(T3), s(T2), (1 - n) * 1024 + uv * 262144))
            if uv:
                Q = PK[4 + n]
                for i in range(4):
                    a("v_xor_b32 %s, %s, %s" % (v(Q + i), s(T4), v(P + i)))
                P = Q
            a("buffer_store_dwordx4 %s, v22, %s, %s offen%s" % (v(P, 4), s(WS, 4), s(T3), SC1))
    a("s_branch %s" % done)
    a.label(typeB)
    pki = 0
    for n in range(2):
        for half in range(2):
            for uv in range(2):
                P = PK[pki]; pki += 1
                sg = "-" if uv else ""
                for m in range(2):
                    t = tile(m + 2 * half, n + 2 * uv)
                    for h in range(2):
                        a("v_cvt_pk_bf16_f32 %s, %s%s, %s%s" % (v(P + 2 * m + h), sg, v(t + 2 * h), sg, v(t + 2 * h + 1)))
                a("s_mov_b32 %s, %d" % (s(T3), half * 8 * 524288 + n * 1024 + uv * 262144))
                a("s_nop 0")
                a("v_permlane16_swap_b32 %s, %s" % (v(P), v(P + 2)))
                a("v_permlane16_swap_b32 %s, %s" % (v(P + 1), v(P + 3)))
                a("buffer_store_dwordx4 %s, v17, %s, %s offen%s" % (v(P, 4), s(WS, 4), s(T3), SC1))
    a.label(done)
    mark(a, 9)


def dma(a, ldsoff, vaddr, srd_, soff, coh=False):
    if OPT.get("nodma") == "1" and getattr(a, "skipdma", False):
        return
    a("s_add_u32 m0, %s, %d" % (s(sSLOT), ldsoff))
    a("s_nop 0")
    a("buffer_load_dwordx4 %s, %s, %s offen%s lds" % (v(vaddr), s(srd_, 4), s(soff), OPT.get("cohmod", "_sc1").replace("_", " ") if coh else ""))


LVA, LVB, LVC, LVD = 8, 12, 20, 24
CSD = 128


def g1_issue(a):
    for i in range(4):
        dma(a, i * 4096, LVA + i, XS, sKA)
    for i in range(7):
        dma(a, 16384 + i * 4096, LVB + i, W1, sKB)
    a("s_add_u32 %s, %s, 128" % (s(sKA), s(sKA)))
    a("s_add_u32 %s, %s, %d" % (s(sKB), s(sKB), 64 * 7168))
    a("s_add_u32 s14, s14, %d" % G1SLOT)
    a("s_cmp_eq_u32 s14, %s" % s(sWRAP))
    a("s_cselect_b32 s14, %s, s14" % s(sSL0))


def loader_setup(a):
    a("s_sub_u32 %s, %s, 4" % (s(sL), s(sWAVE)))
    a("s_and_b32 %s, %s, 1" % (s(T0), s(sL)))
    a("s_lshl_b32 %s, %s, 2" % (s(T0), s(T0)))
    a("v_lshrrev_b32 v4, 4, v3")
    a("v_add_u32 v4, %s, v4" % s(T0))
    a("v_and_b32 v5, 7, v3")
    a("v_xor_b32 v4, v4, v5")
    a("v_lshlrev_b32 v4, 4, v4")
    a("v_lshrrev_b32 v5, 3, v3")
    a("s_lshl_b32 %s, %s, 3" % (s(T0), s(sL)))
    a("v_add_u32 v5, %s, v5" % s(T0))
    a("v_lshlrev_b32 v30, 2, v3")
    a("s_lshl_b32 %s, %s, 10" % (s(sSL0), s(sL)))
    a("s_lshl_b32 %s, %s, 11" % (s(T0), s(sRB)))
    a("v_lshl_add_u32 v6, v5, 15, v4")
    a("v_add_u32 v6, %s, v6" % s(T0))
    for i in range(4):
        a("v_add_u32 %s, %s, v6" % (v(LVA + i), hx(i * 32 * 32768)))
    a("s_lshl_b32 %s, %s, 6" % (s(T0), s(sL)))
    a("v_add_u32 v6, %s, v3" % s(T0))
    a("s_mul_i32 %s, %s, 448" % (s(T1), s(sCB)))
    for i in range(7):
        a("v_add_u32 v7, %d, v6" % (256 * i))
        a("v_mul_u32_u24 v28, 2341, v7")
        a("v_lshrrev_b32 v28, 16, v28")
        a("v_mul_u32_u24 v29, 28, v28")
        a("v_sub_u32 v29, v7, v29")
        a("v_bfe_u32 v31, v28, 3, 1")
        a("v_lshlrev_b32 v31, 1, v31")
        a("v_xor_b32 v29, v29, v31")
        a("v_mul_u32_u24 v28, 7168, v28")
        a("v_lshl_add_u32 v28, v29, 4, v28")
        a("v_add_u32 %s, %s, v28" % (v(LVB + i), s(T1)))
    a("s_mov_b32 %s, %s" % (s(sSLOT), s(sSL0)))
    a("s_add_u32 %s, %s, %d" % (s(sWRAP), s(sSL0), G1SLOT * 3))
    a("s_mov_b32 %s, 0" % s(sKA))
    a("s_mov_b32 %s, 0" % s(sKB))
    a("v_and_b32 v6, 31, v3")
    a("v_lshrrev_b32 v7, 5, v3")
    a("v_mul_u32_u24 v7, 7168, v7")
    a("v_lshl_add_u32 v7, v6, 4, v7")
    a("s_xor_b32 %s, %s, %s" % (s(T0), s(sRB), OPT.get("csx", "0")))
    a("s_lshl_b32 %s, %s, 6" % (s(T0), s(T0)))
    a("s_lshl_b32 %s, %s, 4" % (s(T2), s(sL)))
    a("s_add_u32 %s, %s, %s" % (s(T0), s(T0), s(T2)))
    a("s_mul_i32 %s, %s, 7168" % (s(T0), s(T0)))
    a("s_add_u32 %s, %s, %s" % (s(T0), s(T0), s(T1)))
    a("v_add_u32 v7, %s, v7" % s(T0))
    a("v_cmp_gt_u32 vcc, 28, v6")
    a("v_mov_b32 v28, 0x7f000000")
    a("s_nop 0")
    a("v_cndmask_b32 v7, v28, v7, vcc")
    def csl():
        for i in range(8):
            a("s_mov_b32 %s, %d" % (s(T0), i * 2 * 7168))
            a("buffer_load_dwordx4 %s, v7, %s, %s offen" % (v(CSD + 4 * i, 4), s(W1, 4), s(T0)))

    SO = OPT.get("so", "g")
    if SO == "g":
        g1_issue(a)
        a("s_barrier")
        csl()
    elif SO == "c":
        csl()
        a("s_barrier")
        g1_issue(a)
    else:
        a("s_barrier")
        csl()
        g1_issue(a)
    for _ in range(int(OPT.get("early", "3")) - 1):
        g1_issue(a)
    pf_addr(a)
    if OPT.get("tlb", "21") != "0":
        sh = int(OPT.get("tlb", "21"))
        a("v_lshlrev_b32 v2, %d, v3" % sh)
        a("s_lshl_b32 %s, %s, %d" % (s(T0), s(sL), sh + 6))
        a("v_add_u32 v2, %s, v2" % s(T0))
        a("v_cmp_gt_u32 vcc, 0x2400000, v2")
        a("s_and_saveexec_b64 s[96:97], vcc")
        a("s_cbranch_execz L_notlb")
        a("buffer_load_dword v244, v2, %s, 0 offen sc1" % s(WS, 4))
        a.label("L_notlb")
        a("s_mov_b64 exec, -1")
        for b_ in (W2, CR, CI, OUT, DR, DI):
            a("buffer_load_dword v244, v2, %s, 0 offen sc1" % s(b_, 4))


def pf_addr(a):
    a("s_lshl_b32 %s, s2, 2" % s(T0))
    a("s_add_u32 %s, %s, %s" % (s(T0), s(T0), s(sL)))
    a("s_mul_i32 %s, %s, 7168" % (s(T1), s(T0)))
    a("v_lshlrev_b32 v124, 4, v3")
    a("v_add_u32 v124, %s, v124" % s(T1))
    a("v_add_u32 v125, 4096, v124")
    a("s_lshr_b32 %s, %s, 1" % (s(T2), s(T0)))
    a("v_lshrrev_b32 v126, 5, v3"); a("v_lshlrev_b32 v126, 11, v126"); a("v_and_b32 v127, 31, v3"); a("v_lshl_add_u32 v126, v127, 4, v126")
    a("s_lshl_b32 %s, %s, 12" % (s(T3), s(T2))); a("v_add_u32 v126, %s, v126" % s(T3))
    a("v_lshrrev_b32 v127, 4, v3"); a("v_lshlrev_b32 v127, 12, v127"); a("v_and_b32 v2, 15, v3"); a("v_lshl_add_u32 v127, v2, 4, v127")
    a("s_lshl_b32 %s, %s, 14" % (s(T3), s(T2))); a("v_add_u32 v127, %s, v127" % s(T3))


def pf_pair(a, vaddr, sre, sim):
    l2 = a.newlabel("pf2"); l3 = a.newlabel("pf3")
    a("s_bitcmp1_b32 %s, 0" % s(sWAVE))
    a("s_cbranch_scc1 %s" % l2)
    a("buffer_load_dwordx4 v[244:247], %s, %s, 0 offen" % (v(vaddr), s(sre, 4)))
    a("s_branch %s" % l3)
    a.label(l2)
    a("buffer_load_dwordx4 v[244:247], %s, %s, 0 offen" % (v(vaddr), s(sim, 4)))
    a.label(l3)


def loader_g1_s1(a):
    AC = CSD + 32
    FINECS = OPT.get("finecs", "1") == "1"
    PFS = OPT.get("pf", "s") == "s"
    PFT = OPT.get("pf", "s").startswith("t")
    PFK = 99 if PFS else int(OPT.get("pf", "99").lstrip("t"))
    EARLY = int(OPT.get("early", "3"))
    q = (["g0"] * 11 + ["csl"] * 8 if OPT.get("so", "g") == "g" else ["csl"] * 8 + ["g0"] * 11) + [x for i in range(1, EARLY) for x in ["g%d" % i] * 11]

    def issue(st):
        g1_issue(a); q.extend(["g%d" % st] * 11)

    def need(*tags):
        idx = max(i for i, x in enumerate(q) if x in tags)
        n = len(q) - idx - 1
        del q[:idx + 1]
        return n

    def bar(*tags, lg=False):
        n = need(*tags)
        fine(a)
        a("s_waitcnt vmcnt(%d)%s" % (n, " lgkmcnt(0)" if lg else ""))
        fine(a)
        a("s_barrier")

    def prefetch():
        a.c("warm the memory-side cache with this wave's share of w2 and of the C slices")
        if PFT:
            a("v_mul_u32_u24 v2, 48, v3")
            a("v_add_u32 v124, v124, v2")
            a("v_add_u32 v125, v125, v2")
            a("buffer_load_dword v244, v124, %s, 0 offen" % s(W2, 4))
            a("buffer_load_dword v244, v125, %s, 0 offen" % s(W2, 4))
            q.extend(["pf"] * 2)
        else:
            for i in range(7):
                a("buffer_load_dwordx4 v[244:247], %s, %s, 0 offen offset:%d" % ("v125" if i >= 4 else "v124", s(W2, 4), (i & 3) * 1024))
            q.extend(["pf"] * 7)
        pf_pair(a, 127, CR, CI)
        q.append("pf")

    def cs_chunk(rng):
        for i in rng:
            for d in range(4):
                src = CSD + 4 * i + d
                t_ = AC + 2 * d if i == 0 else AC + 8 + 2 * d
                a("v_lshlrev_b32 %s, 16, %s" % (v(t_), v(src)))
                a("v_and_b32 %s, %s, %s" % (v(t_ + 1), s(sHI), v(src)))
            if i:
                for d in range(4):
                    a("v_pk_add_f32 %s, %s, %s" % (v(AC + 2 * d, 2), v(AC + 2 * d, 2), v(AC + 8 + 2 * d, 2)))

    def after0():
        cs_chunk(range(0, 4))

    def after1():
        cs_chunk(range(6, 8) if FINECS else range(4, 8))
        a("v_lshrrev_b32 v28, 5, v3")
        a("s_lshl_b32 %s, %s, 1" % (s(T0), s(sL)))
        a("v_add_u32 v28, %s, v28" % s(T0))
        a("v_lshlrev_b32 v28, 10, v28")
        a("v_and_b32 v29, 31, v3")
        a("v_lshl_add_u32 v28, v29, 5, v28")
        a("v_add_u32 v28, %d, v28" % CSP)
        a("ds_write_b128 v28, %s" % v(AC, 4))
        a("ds_write_b128 v28, %s offset:16" % v(AC + 4, 4))
        a("s_waitcnt lgkmcnt(0)")

    def after2():
        a("s_lshl_b32 %s, %s, 8" % (s(T0), s(sL)))
        a("v_add_u32 v19, %s, v30" % s(T0))
        a("v_add_u32 v29, %d, v19" % CSP)
        for i in range(8):
            a("ds_read_b32 %s, v29 offset:%d" % (v(CSD + i), i * 1024))
        a("s_lshl_b32 %s, %s, 14" % (s(T0), s(sCB)))
        a("s_lshl_b32 %s, %s, 10" % (s(T1), s(sRB)))
        a("s_add_u32 %s, %s, %s" % (s(T1), s(T1), s(T0)))
        a("s_add_u32 %s, %s, %s" % (s(T1), s(T1), hx(CS_OFF)))
        tag_ready(a)
        a("v_lshrrev_b32 v31, 3, v3")
        a("v_lshlrev_b32 v31, 7, v31")
        a("v_and_b32 v28, 7, v3")
        a("v_lshl_add_u32 v31, v28, 2, v31")
        a("v_add_u32 v31, %s, v31" % hx(SF_OFF))
        a("s_waitcnt lgkmcnt(0)")
        for st in (4, 2, 1):
            for i in range(st):
                a("v_add_f32 %s, %s, %s" % (v(CSD + i), v(CSD + i), v(CSD + i + st)))
        a("buffer_store_dword %s, v19, %s, %s offen%s" % (v(CSD), s(WS, 4), s(T1), SC1))
        q.append("cs_store")

    def after3():
        a("s_lshr_b32 %s, %s, 3" % (s(T0), s(sTAU)))
        a("s_lshl_b32 %s, %s, 17" % (s(T1), s(T0)))
        a("s_and_b32 %s, %s, 1" % (s(T2), s(sTAU)))
        a("s_lshl_b32 %s, %s, 15" % (s(T3), s(T2)))
        a("s_add_u32 %s, %s, %s" % (s(T1), s(T1), s(T3)))
        a("s_add_u32 %s, %s, %s" % (s(T1), s(T1), hx(CB_OFF)))
        a("v_lshl_add_u32 v6, v5, 9, v4")
        a("v_add_u32 v6, %s, v6" % s(T1))
        for i in range(4):
            a("v_add_u32 %s, %s, v6" % (v(LVC + i), hx((i & 1) * 65536 + (i >> 1) * 32 * 512)))
        a("s_and_b32 %s, %s, 3" % (s(T1), s(T0)))
        a("s_cmp_eq_u32 %s, 3" % s(T0))
        a("s_cselect_b32 %s, 1, %s" % (s(T1), s(T1)))
        a("s_lshl_b32 %s, %s, 11" % (s(T1), s(T1)))
        a("s_bfe_u32 %s, %s, 0x20001" % (s(T3), s(sTAU)))
        a("s_lshl_b32 %s, %s, 19" % (s(T3), s(T3)))
        a("s_add_u32 %s, %s, %s" % (s(T1), s(T1), s(T3)))
        a("v_lshl_add_u32 v6, v5, 13, v4")
        a("v_add_u32 v6, %s, v6" % s(T1))
        for i in range(4):
            a("v_add_u32 %s, %s, v6" % (v(LVD + i), hx((i >> 1) * 32 * 8192)))
        a("s_lshl_b32 %s, s2, 15" % s(T0))
        a("s_lshl_b32 %s, %s, 13" % (s(T1), s(sL)))
        a("s_add_u32 %s, %s, %s" % (s(T0), s(T0), s(T1)))
        a("s_add_u32 %s, %s, %s" % (s(T0), s(T0), hx(EX_OFF)))
        a("v_lshlrev_b32 v6, 4, v3")
        a("v_add_u32 v6, %s, v6" % s(T0))
        a("v_add_u32 v7, 4096, v6")
        for i in range(4):
            a("v_mov_b32 %s, -1" % v(240 + i))

    def sentinel(i):
        a("buffer_store_dwordx4 v[240:243], %s, %s, 0 offen offset:%d%s" % ("v7" if i >= 4 else "v6", s(WS, 4), (i & 3) * 1024, SC1))
        q.append("sent")

    def after9():
        poll_issue(a, CSD + 20, 31, 4); q.extend(["poll"] * 4)

    def after11():
        a.c("fetch 4 of the 16 partial column sums of this column block per wave, and this class's row stats")
        a("s_lshl_b32 %s, %s, 14" % (s(T0), s(sCB)))
        a("s_lshl_b32 %s, %s, 12" % (s(T1), s(sL)))
        a("s_add_u32 %s, %s, %s" % (s(T0), s(T0), s(T1)))
        a("s_add_u32 %s, %s, %s" % (s(T0), s(T0), hx(CS_OFF)))
        a("v_lshlrev_b32 v28, 4, v3")
        for i in range(4):
            a("buffer_load_dwordx4 %s, v28, %s, %s offen offset:%d%s" % (v(CSD + 4 * i, 4), s(WS, 4), s(T0), i * 1024, SC1))
        a("s_lshl_b32 %s, %s, 10" % (s(T0), s(sRB)))
        a("s_add_u32 %s, %s, %s" % (s(T0), s(T0), hx(STAT_OFF)))
        a("buffer_load_dword %s, v19, %s, %s offen%s" % (v(CSD + 16), s(WS, 4), s(T0), SC1))
        q.extend(["fetch"] * 5)

    def after13():
        a("s_waitcnt vmcnt(%d)" % need("fetch"))
        for d, x in ((0, 4), (2, 6), (8, 12), (10, 14), (0, 8), (2, 10)):
            a("v_pk_add_f32 %s, %s, %s" % (v(CSD + d, 2), v(CSD + d, 2), v(CSD + x, 2)))
        a("s_lshl_b32 %s, %s, 10" % (s(T0), s(sL)))
        a("s_add_u32 %s, %s, %d" % (s(T0), s(T0), CSP))
        a("v_add_u32 v28, %s, v28" % s(T0))
        a("ds_write_b128 v28, %s" % v(CSD, 4))
        a("v_add_u32 v28, %d, v19" % STB)
        a("ds_write_b32 v28, %s" % v(CSD + 16))
        a("s_waitcnt lgkmcnt(0)")

    def after14():
        a("v_add_u32 v28, %d, v19" % CSP)
        for i in range(4):
            a("ds_read_b32 %s, v28 offset:%d" % (v(CSD + i), i * 1024))
        a("v_add_u32 v28, %d, v19" % CSB)
        a("s_waitcnt lgkmcnt(0)")
        a("v_add_f32 %s, %s, %s" % (v(CSD), v(CSD), v(CSD + 1)))
        a("v_add_f32 %s, %s, %s" % (v(CSD + 2), v(CSD + 2), v(CSD + 3)))
        a("v_add_f32 %s, %s, %s" % (v(CSD), v(CSD), v(CSD + 2)))
        a("ds_write_b32 v28, %s" % v(CSD))

    hooks = {0: after0, 1: after1, 2: after2} if not FINECS else {
        0: lambda: cs_chunk(range(0, 2)), 1: lambda: cs_chunk(range(2, 4)), 2: lambda: cs_chunk(range(4, 6)), 3: after1, 4: after2}
    hooks.update({9: after9, 11: after11, 13: after13, 14: after14})
    after3()
    LATE = OPT.get("late", "0") == "1"
    if not LATE:
        for st in range(EARLY, 3):
            issue(st)
    if OPT.get("cov", "0") == "1":
        a("s_cmp_lt_u32 %s, 8" % s(sRB))
        a("s_mov_b32 %s, %d" % (s(T1), 512 * 7168))
        a("s_cselect_b32 %s, %s, %s" % (s(T1), s(T1), hx(-512 * 7168)))
        a("v_add_u32 v2, %s, v7" % s(T1))
        for i in range(8):
            a("s_mov_b32 %s, %d" % (s(T0), i * 2 * 7168))
            a("buffer_load_dwordx4 v[244:247], v2, %s, %s offen" % (s(W1, 4), s(T0)))
        q.extend(["pf"] * 8)
    pf_pair(a, 126, DR, DI); q.append("pf")
    if PFK == -1:
        prefetch()
    if PFS:
        pf_pair(a, 127, CR, CI); q.append("pf")
        a("s_lshl_b32 %s, s2, 2" % s(T0))
        a("s_add_u32 %s, %s, %s" % (s(T0), s(T0), s(sL)))
        a("s_mul_i32 %s, %s, 7168" % (s(T0), s(T0)))
        a("s_add_u32 s30, %s, %s" % (s(W2), s(T0)))
        a("s_addc_u32 s31, %s, 0" % s(W2 + 1))
    if OPT.get("sst") == "1":
        mark(a, 1)
    bar("g0")
    if OPT.get("g1prio", "0") != "0":
        a("s_setprio %s" % OPT.get("g1prio"))
    if LATE:
        for st in range(EARLY, 3):
            issue(st)
    for k in range(15):
        tags = ["g%d" % (k + 1)]
        if k == FLAGK:
            tags.append("cs_store")
        if k == 11:
            fine(a)
            a("s_waitcnt vmcnt(%d)" % need("g12", "poll"))
            poll_check(a, CSD + 20, 31, "exec", True, 4)
            fine(a)
            a("s_barrier")
        else:
            bar(*tags)
        if k + 3 <= 15:
            issue(k + 3)
        if k == FLAGK:
            flag_store(a, "s")
        if k in hooks:
            hooks[k]()
        if 4 <= k <= 11 and OPT.get("sent", "none") == "g1":
            sentinel(k - 4)
        if k == 4 and OPT.get("sent", "none") == "g1b":
            for i in range(8):
                sentinel(i)
        if k == PFK:
            prefetch()
        if PFS and 4 <= k <= 12:
            for i in range(13 * (k - 4), min(112, 13 * (k - 3))):
                a("s_load_dword s29, s[30:31], %d" % (i * 64))

    def issue_s1(k):
        a("s_add_u32 %s, %s, %d" % (s(sSLOT), s(sSL0), S1SLOTS[k]))
        a("s_mov_b32 %s, %d" % (s(sKA), k * 128))
        for i in range(4):
            dma(a, i * 4096, LVC + i, WS, sKA, coh=True)
        for i in range(4):
            dma(a, 16384 + i * 4096, LVD + i, DI if i & 1 else DR, sKA)

    issue_s1(2)
    fine_dump(a, 0)
    a("s_waitcnt lgkmcnt(0)")
    a("s_barrier")
    if OPT.get("g1prio", "0") != "0":
        a("s_setprio 0")
    for k in (0, 1, 3):
        issue_s1(k)
    g2_loader_setup(a)
    a("s_mul_i32 %s, %s, %d" % (s(T0), s(sKH), 1792 * 2048))
    a("s_lshl_b32 %s, %s, 7" % (s(T1), s(sNB8)))
    a("s_add_u32 %s, %s, %s" % (s(T0), s(T0), s(T1)))
    a("s_and_b32 %s, %s, 7" % (s(T1), s(sLOC)))
    a("s_cmp_ge_u32 %s, 4" % s(T1))
    a("s_cselect_b32 %s, %d, 0" % (s(sADJ), 192 * 2048))
    a("s_lshl_b32 %s, %s, 2" % (s(T1), s(T1)))
    a("s_add_u32 %s, %s, %s" % (s(T1), s(T1), s(sL)))
    a("s_lshl_b32 %s, %s, 12" % (s(T1), s(T1)))
    a("s_add_u32 %s, %s, %s" % (s(T0), s(T0), s(T1)))
    a("s_add_u32 s30, %s, %s" % (s(W2), s(T0)))
    a("s_addc_u32 s31, %s, 0" % s(W2 + 1))
    a("s_and_b32 %s, %s, 4" % (s(sP3), s(sCB8)))
    a("s_and_b32 %s, %s, 4" % (s(sP3), s(sCB8)))
    for st in range(NRB()):
        g2_koff(a, st, False, True)
        for i in range(4):
            a("buffer_load_dwordx4 %s, %s, %s, %s offen" % (v(RBB + 16 * st + 4 * i, 4), v(GVB + i), s(W2, 4), s(sKB)))
    a("v_lshlrev_b32 %s, 4, v3" % v(GWA))
    a("v_add_u32 %s, %s, %s" % (v(GWA), s(sSL0), v(GWA)))
    a("s_waitcnt vmcnt(%d)" % (4 * NRB()))
    a("s_barrier")


RBB = 64
XL = 0
GVX = 62
SOLOB = 65536
RXL = 32768
FLAGK = 7
SYNC = 159744
GWA = 60


def NRB():
    return int(OPT.get("nrb", "0"))


PF_G1 = 28
sADJ = 95


def jp(st):
    return (st // 12) * 4 + st % 4, (st % 12) // 4


def w2_prefetch(a, halves):
    last = None
    for hs in halves:
        st, r = divmod(hs, 2)
        if st != last:
            if st < NREG:
                j, p_ = jp(st)
                a("s_xor_b32 s96, %s, %d" % (s(sP3), j))
                a("s_mul_i32 s96, s96, %d" % (224 * 2048))
                if p_:
                    a("s_add_u32 s96, s96, %d" % (p_ * 64 * 2048))
            else:
                a("s_add_u32 s96, %s, %d" % (s(sADJ), (448 * (st - NREG) + 192) * 2048))
            last = st
        for c in (0, 64, 128 * US(), 128 * US() + 64):
            a("s_load_dword s29, s[30:31], s96 offset:%d" % (r * 2048 + c))


def g2_koff(a, st, want_a, want_b):
    j, p_ = jp(st)
    a("s_xor_b32 %s, %s, %d" % (s(T0), s(sP3), j))
    if want_a:
        a("s_mul_i32 %s, %s, 49152" % (s(sKA), s(T0)))
        if p_:
            a("s_add_u32 %s, %s, %d" % (s(sKA), s(sKA), p_ * 16384))
    if want_b:
        a("s_mul_i32 %s, %s, %d" % (s(sKB), s(T0), 224 * 2048))
        if p_:
            a("s_add_u32 %s, %s, %d" % (s(sKB), s(sKB), p_ * 64 * 2048))


NJ = 28
NREG = 24
NSOLO = 4


def g2_setup(a):
    ACC = 128
    gN0, gZ0, gZ1 = 6, 7, 8
    a("v_and_b32 v16, 15, v3")
    a("v_lshlrev_b32 v16, 15, v16")
    a("s_lshl_b32 %s, %s, 21" % (s(T0), s(sWM)))
    a("s_lshl_b32 %s, %s, 11" % (s(T1), s(sCLS)))
    a("s_add_u32 %s, %s, %s" % (s(T0), s(T0), s(T1)))
    a("s_lshl_b32 %s, %s, 7" % (s(T1), s(sNB8)))
    a("s_add_u32 %s, %s, %s" % (s(T0), s(T0), s(T1)))
    a("s_mul_i32 %s, %s, %d" % (s(T1), s(sKH), 128 * US()))
    a("s_add_u32 %s, %s, %s" % (s(T0), s(T0), s(T1)))
    a("s_lshl_b32 %s, %s, 6" % (s(T1), s(sWN)))
    a("s_add_u32 %s, %s, %s" % (s(T0), s(T0), s(T1)))
    a("v_add_u32 v16, %s, v16" % s(T0))
    a("v_lshrrev_b32 v19, 1, v18")
    a("s_lshl_b32 %s, %s, 2" % (s(T1), s(sWN)))
    a("v_add_u32 v19, %s, v19" % s(T1))
    a("v_bfe_u32 v20, v3, 1, 3")
    a("v_xor_b32 v19, v19, v20")
    a("v_lshlrev_b32 v19, 4, v19")
    a("v_and_b32 v20, 1, v18")
    a("v_lshl_add_u32 v19, v20, 3, v19")
    a("v_and_b32 v20, 15, v3")
    a("v_lshl_add_u32 v19, v20, 7, v19")
    a("s_lshl_b32 %s, %s, 13" % (s(T1), s(sWM)))
    a("s_add_u32 %s, %s, %d" % (s(T1), s(T1), XL))
    a("v_add_u32 v19, %s, v19" % s(T1))
    a("v_xor_b32 v27, 32, v19")
    for mt in range(4):
        a("s_mov_b32 %s, %d" % (s(C1 + mt), mt * 16 * 16 * 2048))
    a("v_add_u32 v16, v16, v21")
    a("s_lshl_b32 %s, %s, 12" % (s(T0), s(sWN)))
    a("s_add_u32 %s, %s, 16384" % (s(T0), s(T0)))
    rowimg_frag_addr(a, gZ0, gZ1, T0)
    a("v_bfe_u32 v20, v3, 2, 2")
    a("v_lshl_add_u32 v23, v18, 3, v20")
    a("v_lshlrev_b32 v23, 8, v23")
    a("v_and_b32 v22, 3, v3")
    a("v_lshl_add_u32 v23, v22, 3, v23")
    a("v_and_b32 v22, 1, v18")
    a("v_lshl_or_b32 v20, v22, 2, v20")
    a("s_lshl_b32 %s, %s, 1" % (s(T0), s(sWN)))
    a("s_lshl_b32 %s, %s, 2" % (s(T1), s(sKH)))
    a("s_add_u32 %s, %s, %s" % (s(T0), s(T0), s(T1)))
    a("v_xor_b32 v20, %s, v20" % s(T0))
    a("v_lshl_add_u32 v23, v20, 5, v23")
    a("v_add_u32 %s, 16384, v23" % v(gN0))
    a("v_mov_b32 v28, 0xff")
    a("v_mov_b32 v31, %s" % s(sTAG))
    a("v_xor_b32 v29, 0x20000, v24")
    a("v_xor_b32 v30, 0x20000, v25")
    for i in range(64):
        a("v_mov_b32 %s, 0" % v(ACC + i))


def compute_g2(a):
    ACC = 128; ACY = 192; XR = 224; RX = 96
    FR = [32, 64]
    gN0, gZ0, gZ1 = 6, 7, 8
    cN = 11
    a("s_mov_b32 %s, %d" % (s(sSLOT), 4 * G2SLOT))

    def set_addr(joint):
        r = ["v_add_u32 %s, s14, %s" % (v(cM0), v(vM0)), "v_add_u32 %s, s14, %s" % (v(cM1), v(vM1))]
        if joint:
            r.append("v_add_u32 %s, s14, %s" % (v(cN), v(gN0)))
            for nt, x in ((1, 32), (2, 128), (3, 160)):
                r.append("v_xor_b32 %s, %d, %s" % (v(cN + nt), x, v(cN)))
        else:
            r += ["v_add_u32 %s, s14, %s" % (v(cN), v(gZ0)), "v_add_u32 %s, s14, %s" % (v(cN + 1), v(gZ1))]
        return r

    def next_slot():
        return ["s_add_u32 s14, s14, %d" % G2SLOT, "s_cmp_eq_u32 s14, %d" % (G2SLOT * 5), "s_cselect_b32 s14, 0, s14"]

    def reads(fs, ks, joint):
        r = []
        for t in range(4):
            if joint:
                for h in range(2):
                    r.append("ds_read_b64_tr_b16 %s, %s offset:%d" % (v(FR[fs] + 16 + 4 * t + 2 * h, 2), v(cN + t), ks * 8192 + h * 1024))
            elif t < 2:
                r.append("ds_read_b128 %s, %s offset:%d" % (v(FR[fs] + 16 + 4 * t, 4), v(cN + ks), t * 2048))
            r.append("ds_read_b128 %s, %s offset:%d" % (v(FR[fs] + 4 * t, 4), v(cM1 if ks else cM0), t * 2048))
        return r

    ot = lambda mt, nt: ACC + 4 * (nt * 4 + mt)

    def jm(fs, order=(0, 1, 2, 3)):
        o = OPT.get("ord", "n")
        if o == "m" and order == (0, 1, 2, 3):
            od = [(nt, mt) for mt in range(4) for nt in order]
        elif o == "z" and order == (0, 1, 2, 3):
            od = [(nt, mt if nt % 2 == 0 else 3 - mt) for nt in order for mt in range(4)]
        else:
            od = [(nt, mt) for nt in order for mt in range(4)]
        return [mfma(ot(mt, nt), FR[fs] + 16 + 4 * nt, FR[fs] + 4 * mt) for nt, mt in od]

    def sm(fs):
        return [mfma(ACY + 4 * (nt * 4 + mt), FR[fs] + 16 + 4 * nt, FR[fs] + 4 * mt) for nt in range(2) for mt in range(4)]

    a.all(set_addr(True))
    a("s_barrier")
    mark(a, 10)
    a.all(reads(0, 0, True))
    a("s_mov_b32 %s, 0" % s(sCNT))
    a("s_waitcnt lgkmcnt(0)")

    def joint_iter(nxt_joint, extra=(), pre_bar=(), flag=None, bar=True):
        nr = OPT.get("noread") == "1"
        interleave(a, jm(0), ([] if nr else reads(1, 1, True)) + next_slot() + set_addr(nxt_joint), per=int(OPT.get("g2per", "2")))
        a("s_waitcnt lgkmcnt(0)")
        a.all(pre_bar)
        fine(a)
        if bar:
            a("s_barrier")
        fine(a)
        interleave(a, jm(1), ([] if nr else reads(0, 0, True)) + list(extra), per=1)
        a("s_waitcnt lgkmcnt(0)")

    ZK = int(OPT.get("zk", "6"))

    def g2_loop(n):
        a("s_mov_b32 %s, 0" % s(sCNT))
        loop = a.newlabel("g2_loop")
        a.raw(".p2align 6")
        a.label(loop)
        joint_iter(True, ["s_add_u32 s15, s15, 1", "s_cmp_lt_u32 s15, %d" % n])
        a("s_cbranch_scc1 %s" % loop)

    g2_loop(ZK)
    joint_iter(True, pre_bar=["s_waitcnt vmcnt(0)"], flag="z")
    mark(a, 26)
    g2_loop(NJ - 2 - ZK)
    SM = [[32 + 4 * i for i in range(8)], [64 + 4 * i for i in range(8)]]
    SN = [[96 + 4 * i for i in range(4)], [112 + 4 * i for i in range(4)]]

    def sreads(fs):
        r = []
        for ks in range(2):
            for nt in range(2):
                r.append("ds_read_b128 %s, %s offset:%d" % (v(SN[fs][2 * ks + nt], 4), v(cN + ks), nt * 2048))
            for mt in range(4):
                r.append("ds_read_b128 %s, %s offset:%d" % (v(SM[fs][4 * ks + mt], 4), v(cM1 if ks else cM0), mt * 2048))
        return r

    def smf(fs, first=False):
        return [mfma(ACY + 4 * (nt * 4 + mt), SN[fs][2 * ks + nt], SM[fs][4 * ks + mt], "0" if first and ks == 0 else None)
                for ks in range(2) for nt in range(2) for mt in range(4)]

    def solo_addr(j):
        return ["v_add_u32 %s, %s, %s" % (v(c), hx(SOLOB + j * 24576), v(b))
                for c, b in ((cM0, vM0), (cM1, vM1), (cN, gZ0), (cN + 1, gZ1))]

    interleave(a, jm(0), reads(1, 1, True) + solo_addr(0), per=2)
    a("s_waitcnt lgkmcnt(0)")
    a("s_barrier")
    m = jm(1, (2, 3, 0, 1))
    interleave(a, m[:8], sreads(0) + solo_addr(1), per=2)
    for i in range(8):
        a(m[8 + i])
        b = ACC + 32 + 4 * i
        for j in range(4):
            a("v_bfi_b32 %s, v28, v31, %s" % (v(b + j), v(b + j)))
        a("buffer_store_dwordx4 %s, %s, %s, 0 offen offset:%d sc1" % (v(b, 4), "v30" if i >= 4 else "v29", s(WS, 4), (i & 3) * 1024))
    a("s_waitcnt lgkmcnt(0)")
    mark(a, 11)
    for k in range(NSOLO):
        last = k == NSOLO - 1
        interleave(a, smf(k & 1, k == 0), [] if last else sreads(1 - (k & 1)) + (solo_addr(k + 2) if k + 2 < NSOLO else []), per=2)
        if not last:
            a("s_waitcnt lgkmcnt(0)")
        if k == int(OPT.get("rxj", "2")):
            a("s_barrier")
    mark(a, 12)
    a("v_lshlrev_b32 v26, 4, v3")
    a("s_lshl_b32 %s, %s, 13" % (s(T0), s(sWAVE)))
    a("s_add_u32 %s, %s, %d" % (s(T0), s(T0), RXL))
    a("v_add_u32 v26, %s, v26" % s(T0))
    a("s_barrier")
    for mt in range(4):
        for nt in range(2):
            a("ds_read_b64 %s, %s offset:%d" % (v(XR + 4 * mt + 2 * nt, 2), "v27" if nt else "v19", mt * 2048))
    for i in range(8):
        a("ds_read_b128 %s, v26 offset:%d" % (v(RX + 4 * i, 4), i * 1024))
    a("s_waitcnt lgkmcnt(8)")
    for i in range(16):
        a("v_lshlrev_b32 %s, 16, %s" % (v(32 + 2 * i), v(XR + i)))
        a("v_and_b32 %s, %s, %s" % (v(33 + 2 * i), s(sHI), v(XR + i)))
    a("s_waitcnt lgkmcnt(0)")
    mark(a, 13)
    TMP = 80
    PK = [64, 68, 72, 76]
    MIMIC = OPT.get("mimic", "0") == "1"

    def rnd(regs, t):
        for i, r_ in enumerate(regs):
            a("v_cvt_pk_bf16_f32 %s, %s, %s" % (v(t + i), v(r_), v(r_ + 1)))
        for i, r_ in enumerate(regs):
            a("v_lshlrev_b32 %s, 16, %s" % (v(r_), v(t + i)))
            a("v_and_b32 %s, %s, %s" % (v(r_ + 1), s(sHI), v(t + i)))

    for mt in range(4):
        offs = [4 * mt, 4 * mt + 2, 16 + 4 * mt, 16 + 4 * mt + 2]
        o = [ACC + x for x in offs]
        y = [ACY + x for x in offs]
        xf = [32 + 8 * mt + 2 * i for i in range(4)]
        for i in range(4):
            a("v_pk_add_f32 %s, %s, %s" % (v(o[i], 2), v(o[i], 2), v(RX + offs[i], 2)))
        if MIMIC:
            rnd(o, 48)
        silu_pk(a, o, [TMP + 2 * i for i in range(4)])
        if MIMIC:
            rnd(o, 48)
            rnd(y, 52)
        if MIMIC:
            for i in range(4):
                a("v_pk_mul_f32 %s, %s, %s" % (v(o[i], 2), v(o[i], 2), v(y[i], 2)))
            rnd(o, 48)
            for i in range(4):
                a("v_pk_add_f32 %s, %s, %s" % (v(o[i], 2), v(o[i], 2), v(xf[i], 2)))
        else:
            for i in range(4):
                a("v_pk_fma_f32 %s, %s, %s, %s" % (v(o[i], 2), v(o[i], 2), v(y[i], 2), v(xf[i], 2)))
        P = PK[mt]
        for i in range(4):
            a("v_cvt_pk_bf16_f32 %s, %s, %s" % (v(P + i), v(o[i]), v(o[i] + 1)))
        a("s_nop 1")
        a("v_permlane16_swap_b32 %s, %s" % (v(P), v(P + 2)))
        a("v_permlane16_swap_b32 %s, %s" % (v(P + 1), v(P + 3)))
        a("buffer_store_dwordx4 %s, v16, %s, %s offen%s" % (v(P, 4), s(OUT, 4), s(C1 + mt), OPT.get("outmod", "_sc0_sc1").replace("_", " ")))
    flag_store(a, "epoch", 0)
    mark(a, 14)
    fine_dump(a, 1)
    a("s_endpgm")


GVA, GVB, GVA2, GVB2, GVC, GVD = 32, 36, 40, 44, 48, 52
GZA, GHA = 58, 59


def g2_loader_setup(a):
    a("v_lshrrev_b32 v6, 4, v3")
    a("s_lshr_b32 %s, %s, 1" % (s(T0), s(sL)))
    a("s_lshl_b32 %s, %s, 2" % (s(T0), s(T0)))
    a("v_or_b32 v7, %s, v6" % s(T0))
    a("v_lshlrev_b32 v7, 1, v7")
    a("v_and_b32 v28, 15, v3")
    a("v_xor_b32 v7, v7, v28")
    a("v_lshlrev_b32 v7, 4, v7")
    a("v_lshl_add_u32 v6, v6, 11, v7")
    a("s_mul_i32 %s, %s, %d" % (s(T0), s(sKH), 1792 * 2048))
    a("s_lshl_b32 %s, %s, 13" % (s(T1), s(sL)))
    a("s_add_u32 %s, %s, %s" % (s(T0), s(T0), s(T1)))
    a("s_lshl_b32 %s, %s, 7" % (s(T1), s(sNB8)))
    a("s_add_u32 %s, %s, %s" % (s(T0), s(T0), s(T1)))
    a("v_add_u32 v6, %s, v6" % s(T0))
    a("v_and_b32 v7, 128, v7")
    a("v_mul_u32_u24 v7, %d, v7" % (US() - 1))
    a("v_add_u32 v6, v6, v7")
    for i in range(4):
        a("v_add_u32 %s, %s, v6" % (v(GVB + i), hx(i * 16 * 2048)))
    for i in range(2):
        a("v_add_u32 %s, %s, v6" % (v(GVB2 + i), hx(((i + 2) * 16 + 192) * 2048)))
    a("s_lshl_b32 %s, %s, 4" % (s(T0), s(sCLS)))
    a("s_lshl_b32 %s, %s, 3" % (s(T1), s(sKH)))
    a("s_add_u32 %s, %s, %s" % (s(T0), s(T0), s(T1)))
    a("s_mul_i32 %s, %s, 49152" % (s(T1), s(T0)))
    a("s_add_u32 %s, %s, %s" % (s(T1), s(T1), hx(HR_OFF)))
    a("s_lshl_b32 %s, %s, 13" % (s(T2), s(T0)))
    a("s_add_u32 %s, %s, %s" % (s(T2), s(T2), hx(HL_OFF)))
    a("v_and_b32 v6, 64, v4")
    a("v_lshlrev_b32 v6, 7, v6")
    a("v_and_b32 v7, 48, v4")
    a("v_add_u32 v7, v7, v6")
    a("v_lshl_add_u32 v7, v5, 6, v7")
    a("v_add_u32 v7, %s, v7" % s(T1))
    for i in range(4):
        a("v_add_u32 %s, %d, v7" % (v(GVA + i), i * 32 * 64))
    a("v_and_b32 v7, 32, v4")
    a("v_lshl_add_u32 v6, v7, 7, v6")
    a("v_and_b32 v7, 16, v4")
    a("v_add_u32 v6, v6, v7")
    a("v_lshl_add_u32 v6, v5, 5, v6")
    a("v_add_u32 v6, %s, v6" % s(T2))
    for i in range(4):
        a("v_add_u32 %s, %d, v6" % (v(GVA2 + i), i * 32 * 32))
    a("s_cmp_gt_u32 %s, 8" % s(sCLS))
    a("s_cselect_b32 %s, -1, 0" % s(T0))
    a("s_sub_u32 %s, 16, %s" % (s(T2), s(sCLS)))
    a("s_cmp_gt_u32 %s, 8" % s(sCLS))
    a("s_cselect_b32 %s, %s, %s" % (s(T1), s(T2), s(sCLS)))
    a("s_lshl_b32 %s, %s, 19" % (s(T2), s(T1)))
    a("s_add_u32 %s, %s, %s" % (s(T2), s(T2), hx(ZT_OFF)))
    for i in range(4):
        a("v_add_u32 v6, %d, v5" % (32 * i))
        a("v_lshlrev_b32 v6, 4, v6")
        a("v_add_u32 v6, %s, v6" % s(sCLS))
        a("v_xor_b32 v6, %s, v6" % s(T0))
        a("v_subrev_u32 v6, %s, v6" % s(T0))
        a("v_and_b32 v6, 2047, v6")
        a("v_lshl_add_u32 %s, v6, 12, v4" % v(GVC + i))
    a("s_lshl_b32 %s, %s, 6" % (s(T3), s(sNB8)))
    a("s_mul_i32 %s, %s, %d" % (s(T4), s(sKH), 64 * US()))
    a("s_add_u32 %s, %s, %s" % (s(T3), s(T3), s(T4)))
    for i in range(2):
        a("v_add_u32 v6, %d, v5" % (32 * i))
        a("v_add_u32 v6, %s, v6" % s(T3))
        a("v_xor_b32 v6, %s, v6" % s(T0))
        a("v_subrev_u32 v6, %s, v6" % s(T0))
        a("v_and_b32 v7, 3, v6")
        a("v_bfe_u32 v6, v6, 2, 8")
        a("v_lshl_add_u32 v6, v7, 8, v6")
        a("v_and_b32 v7, 48, v4")
        a("v_lshl_add_u32 v6, v6, 6, v7")
        a("v_and_b32 v7, 64, v4")
        a("v_lshl_add_u32 v6, v7, 10, v6")
        a("v_add_u32 %s, %s, v6" % (v(GVD + i), s(T2)))
    a("s_lshl_b32 %s, %s, 1" % (s(T3), s(T3)))
    a("s_lshl_b32 %s, %s, 11" % (s(T4), s(sCLS)))
    a("s_add_u32 %s, %s, %s" % (s(T3), s(T3), s(T4)))
    a("v_lshl_add_u32 v6, v5, 15, v4")
    a("v_add_u32 %s, %s, v6" % (v(GVX), s(T3)))
    a("s_and_b32 %s, %s, 7" % (s(T3), s(T1)))
    a("s_lshl_b32 %s, %s, 9" % (s(T3), s(T3)))
    a("s_add_u32 %s, %s, %s" % (s(T3), s(T3), hx(ZF_OFF - SF_OFF)))
    a("v_add_u32 %s, %s, v31" % (v(GZA), s(T3)))
    a("s_andn2_b32 %s, %s, 127" % (s(T2), s(sHF)))
    a("v_and_b32 v6, 31, v3")
    a("v_lshlrev_b32 v6, 2, v6")
    a("v_add_u32 %s, %s, v6" % (v(GHA), s(T2)))
    a("s_and_b32 %s, %s, 4" % (s(T2), s(sCB8)))
    a("s_lshl_b32 %s, %s, 2" % (s(T2), s(T2)))
    a("s_lshl_b32 %s, 0xffff, %s" % (s(sMK), s(T2)))
    a("s_not_b32 %s, %s" % (s(sMK + 2), s(sMK)))
    a("s_mov_b32 %s, 0" % s(sMK + 1))
    a("s_mov_b32 %s, 0" % s(sMK + 3))


def loader_g2(a):
    a("s_add_u32 %s, %s, %d" % (s(sWRAP), s(sSL0), G2SLOT * 5))
    NT = NJ + NSOLO
    q = []

    def slot_of(st):
        a("s_add_u32 %s, %s, %d" % (s(sSLOT), s(sSL0), ((st + 4) % 5) * G2SLOT))

    def issue(st, want_a=True, want_b=True):
        slot_of(st)
        if st < NREG:
            breg = want_b and st < NRB()
            want_b = want_b and not breg
            if want_a or want_b:
                g2_koff(a, st, want_a, want_b)
            if want_a:
                for i in range(4):
                    dma(a, i * 4096, GVA + i, WS, sKA, coh=True)
            if want_b:
                for i in range(4):
                    dma(a, 16384 + i * 4096, GVB + i, W2, sKB)
            if breg:
                a("v_add_u32 v6, %s, %s" % (hx(((st + 4) % 5) * G2SLOT + 16384), v(GWA)))
                for i in range(4):
                    a("ds_write_b128 v6, %s offset:%d" % (v(RBB + 16 * st + 4 * i, 4), i * 4096))
            q.extend([st] * (4 * want_a + 4 * want_b))
        elif st < NJ:
            lam = st - NREG
            a("s_mov_b32 %s, %d" % (s(sKA), lam * 16384))
            a("s_mov_b32 %s, %d" % (s(sKB), (448 * lam + 192) * 2048))
            for i in range(4):
                dma(a, i * 4096, GVA2 + i, WS, sKA, coh=True)
            for i in range(2):
                dma(a, 16384 + i * 4096, GVB + i, W2, sKB)
            for i in range(2):
                dma(a, 16384 + (i + 2) * 4096, GVB2 + i, W2, sKB)
            q.extend([st] * 8)
        else:
            k = st - NJ
            a("s_add_u32 %s, %s, %d" % (s(sSLOT), s(sSL0), SOLOB + k * 24576))
            a("s_mov_b32 %s, %d" % (s(sKA), (k & 1) * 128))
            a("s_mov_b32 %s, %d" % (s(sKB), (k & 1) * 131072 + (k >> 1) * 262144))
            for i in range(4):
                dma(a, i * 4096, GVC + i, CI if k >= 2 else CR, sKA)
            for i in range(2):
                dma(a, 16384 + i * 4096, GVD + i, WS, sKB, coh=True)
            q.extend([st] * 6)

    def wait(*tags):
        idx = max(i for i, x in enumerate(q) if x in tags)
        a("s_waitcnt vmcnt(%d)" % (len(q) - idx - 1))
        del q[:idx + 1]

    assert NRB() == 0
    top = a.newlabel("pre"); got = a.newlabel("got"); nogot = a.newlabel("nogot"); slow = a.newlabel("slow"); got2 = a.newlabel("got2")
    a("s_mov_b32 %s, 0" % s(T6))
    a("s_mov_b32 %s, 0" % s(T7))
    if OPT.get("e0", "1") == "1":
        poll_issue(a, 29, GHA)
        issue(0, want_a=False)
        a("s_waitcnt vmcnt(4)")
        poll_test(a, 29, s(sMK, 2))
        a("s_cbranch_scc1 %s" % slow)
        mark(a, 9)
        issue(0, want_b=False)
        a("s_barrier")
        issue(1, want_a=False)
        issue(2, want_a=False)
        a("s_branch %s" % got2)
        a.label(slow)
    else:
        if OPT.get("e0") == "2" and OPT.get("e0p", "a") == "a":
            poll_issue(a, 29, GHA)
        issue(0, want_a=False)
    a("s_barrier")
    if OPT.get("e0") == "2" and OPT.get("e0p", "a") == "b":
        poll_issue(a, 29, GHA)
    issue(1, want_a=False)
    issue(2, want_a=False)
    if OPT.get("e0") == "2":
        a("s_waitcnt vmcnt(%d)" % (12 if OPT.get("e0p", "a") == "a" else 8))
        poll_test(a, 29, s(sMK, 2))
        a("s_cbranch_scc0 %s" % got)
    a.label(top)
    poll_issue(a, 29, GHA)
    a("s_waitcnt vmcnt(0)")
    a("s_add_u32 %s, %s, 1" % (s(T7), s(T7)))
    poll_test(a, 29, s(sMK, 2))
    a("s_cbranch_scc0 %s" % got)
    a("s_sleep 2")
    a("s_cmp_lt_u32 %s, %s" % (s(T7), OPT.get("np", "2")))
    a("s_cbranch_scc1 %s" % top)
    a("s_branch %s" % nogot)
    a.label(got)
    mark(a, 9)
    issue(0, want_b=False)
    a.label(got2)
    for st in range(1, 3):
        issue(st, want_b=False)
    poll_issue(a, 30, GHA, off=128)
    a("s_mov_b32 %s, 1" % s(T6))
    a.label(nogot)
    a("s_barrier")
    late = a.newlabel("late"); go = a.newlabel("go")
    a("s_cmp_eq_u32 %s, 0" % s(T6))
    a("s_cbranch_scc1 %s" % late)
    issue(3)
    a("s_waitcnt vmcnt(17)")
    a("s_barrier")
    a("s_waitcnt vmcnt(8)")
    poll_check(a, 30, GHA, s(sMK, 2), True, off=128)
    issue(4)
    a("s_branch %s" % go)
    a.label(late)
    for st in range(3, 5):
        issue(st, want_a=False)
    poll_check(a, 29, GHA, s(sMK, 2), False, n=2, stride=128)
    mark(a, 8)
    issue(0, want_b=False)
    issue(1, want_b=False)
    a("s_waitcnt vmcnt(4)")
    a("s_barrier")
    for st in range(2, 5):
        issue(st, want_b=False)
    a("s_waitcnt vmcnt(12)")
    a.label(go)
    del q[:]
    q.extend([1] + [2] * 4 + [3] * 4 + [4] * 4)
    poll_issue(a, 29, GHA, off=256); q.append("p1")
    nxt = 5
    a.skipdma = True
    for k in range(0, NJ):
        last_issue = min(k + 5, NT - 1) if k < NJ - 3 else NT - 1
        tags = [k + 1] if k < NJ - 1 else [NT - 1]
        chk = None
        if nxt <= 8 <= last_issue:
            tags.append("p1"); chk = "h1"
        if nxt <= 12 <= last_issue:
            tags.append("p2"); chk = "h2"
        if nxt <= NJ <= last_issue:
            tags.append("p3"); chk = "z"
        fine(a)
        if k > 0:
            wait(*tags)
        else:
            q.remove(1)
        if chk == "h1":
            poll_check(a, 29, GHA, s(sMK, 2), True, off=256)
        elif chk == "h2":
            poll_check(a, 29, GHA, s(sMK + 2, 2), True, off=256)
        elif chk is not None:
            a("s_mov_b32 %s, -1" % s(sMK))
            poll_check(a, 29, GZA, s(sMK, 2), True)
        fine(a)
        a("s_barrier")
        while nxt <= last_issue:
            issue(nxt); nxt += 1
        PD = int(OPT.get("pd", "9"))
        if PD and k + 5 + PD < NJ:
            w2_prefetch(a, [2 * (k + 5 + PD), 2 * (k + 5 + PD) + 1])
        if k == int(OPT.get("zk", "6")):
            flag_store(a, "z")
        if k == NJ - 2:
            assert (k + 4) % 5 * G2SLOT == XL
            a("s_add_u32 %s, %s, %d" % (s(sSLOT), s(sSL0), XL))
            for i in range(4):
                a("s_mov_b32 %s, %d" % (s(sKA), i * 32 * 32768))
                dma(a, i * 4096, GVX, XS, sKA)
            q.extend(["x"] * 4)
        if k == 3:
            poll_issue(a, 29, GHA, off=256); q.append("p2")
        if k == NJ - 9:
            poll_issue(a, 29, GZA); q.append("p3")
    assert (NJ - 1 + 4) % 5 * G2SLOT == RXL
    RX = 64
    a("s_lshl_b32 %s, s2, 15" % s(T0))
    a("s_lshl_b32 %s, %s, 13" % (s(T1), s(sL)))
    a("s_add_u32 %s, %s, %s" % (s(T0), s(T0), s(T1)))
    a("s_add_u32 %s, %s, %s" % (s(T0), s(T0), hx(EX_OFF)))
    a("v_lshlrev_b32 v6, 4, v3")
    a("v_add_u32 v24, %s, v6" % s(T0))
    a("v_add_u32 v25, 4096, v24")
    a("s_add_u32 %s, %s, %d" % (s(T1), s(T1), RXL))
    a("v_add_u32 v6, %s, v6" % s(T1))
    a("v_mov_b32 v28, 0xff")
    a("v_mov_b32 v31, %s" % s(sTAG))
    a("s_barrier")
    top = a.newlabel("rx"); ok = a.newlabel("rxok")
    a("s_mov_b32 %s, 0" % s(T7))
    a.label(top)
    for i in range(8):
        a("buffer_load_dwordx4 %s, %s, %s, 0 offen offset:%d sc1" % (v(RX + 4 * i, 4), "v25" if i >= 4 else "v24", s(WS, 4), (i & 3) * 1024))
    a("s_waitcnt vmcnt(0)")
    a("v_or3_b32 v26, %s, %s, %s" % (v(RX), v(RX + 1), v(RX + 2)))
    a("v_bitop3_b32 v27, %s, %s, %s bitop3:0x80" % (v(RX), v(RX + 1), v(RX + 2)))
    for i in range(3, 31, 2):
        a("v_or3_b32 v26, v26, %s, %s" % (v(RX + i), v(RX + i + 1)))
        a("v_bitop3_b32 v27, v27, %s, %s bitop3:0x80" % (v(RX + i), v(RX + i + 1)))
    a("v_or_b32 v26, v26, %s" % v(RX + 31))
    a("v_and_b32 v27, v27, %s" % v(RX + 31))
    a("v_xor_b32 v26, v26, v31")
    a("v_xor_b32 v27, v27, v31")
    a("v_or_b32 v26, v26, v27")
    a("v_and_b32 v26, v26, v28")
    a("v_cmp_ne_u32 vcc, 0, v26")
    a("s_add_u32 %s, %s, 1" % (s(T7), s(T7)))
    a("s_nop 3")
    a("s_cbranch_vccz %s" % ok)
    a("s_sleep 2")
    a("s_cmp_lt_u32 %s, %d" % (s(T7), SPIN_MAX))
    a("s_cbranch_scc1 %s" % top)
    a.label(ok)
    for i in range(8):
        for j in range(4):
            a("v_bfi_b32 %s, v28, 0, %s" % (v(RX + 4 * i + j), v(RX + 4 * i + j)))
        a("ds_write_b128 v6, %s offset:%d" % (v(RX + 4 * i, 4), i * 1024))
    mark(a, 11, T7)
    fine_dump(a, 1)
    a("s_waitcnt lgkmcnt(0)")
    a("s_barrier")
    a("s_endpgm")


HEADER = """; Kernarg layout (88 bytes, ptrs only, base s[0:1]): 0 A_x, 8 dft_seq_re, 16 dft_seq_im, 24 dft_hid_re,
"""


def main():
    global STAMP
    args = sys.argv[1:]
    global FINE, NSGPR
    if "--fine" in args:
        FINE = True; NSGPR = 102; args.remove("--fine")
    if "--stamp" in args:
        STAMP = True; args.remove("--stamp")
    for x in list(args):
        if x.startswith("--") and "=" in x:
            k, val = x[2:].split("="); OPT[k] = val; args.remove(x)
    a = Asm()
    a.raw(HEADER.rstrip("\n"))
    nv = 256
    a.raw("; @launch grid=(256,1,1) block=(512,1,1) lds=163840")
    a.raw('.amdgcn_target "amdgcn-amd-amdhsa--gfx950"')
    a.raw(".text")
    name = NAME + "_kernel"
    kernel_header(a, name)
    prologue(a, "L_end")
    if FINE:
        a("s_mov_b32 s100, 0")
        a("v_mov_b32 v250, 0")
    mark(a, 0)
    a("s_cmp_ge_u32 %s, 4" % s(sWAVE))
    a("s_cbranch_scc1 L_loader")
    compute_setup(a)
    a("s_barrier")
    prep_ln(a)
    a("s_waitcnt lgkmcnt(0)")
    tag_ready(a)
    a("v_mov_b32 v29, %d" % SYNC)
    a("v_mov_b32 v30, 1")
    a("s_mov_b64 exec, 1")
    a("ds_add_u32 v29, v30")
    a("s_mov_b64 exec, -1")
    a("s_mov_b32 %s, 0" % s(T7))
    a.label("L_sync")
    a("ds_read_b32 v30, v29")
    a("s_add_u32 %s, %s, 1" % (s(T7), s(T7)))
    a("s_waitcnt lgkmcnt(0)")
    a("v_readfirstlane_b32 %s, v30" % s(T6))
    a("s_cmp_ge_u32 %s, %d" % (s(T7), SPIN_MAX))
    a("s_cbranch_scc1 L_synced")
    a("s_cmp_lt_u32 %s, 4" % s(T6))
    a("s_cbranch_scc1 L_sync")
    a.label("L_synced")
    if OPT.get("sst") == "1":
        mark(a, 30)
    dft = prep_dft(a)
    dft(0)
    a("s_waitcnt lgkmcnt(0)")
    dft(1)
    if OPT.get("sst") == "1":
        mark(a, 31)
    dft(3)
    compute_g1_s1(a)
    compute_g2(a)
    a.label("L_loader")
    if OPT.get("lprio", "0") != "0":
        a("s_setprio %s" % OPT.get("lprio", "0"))
    loader_setup(a)
    loader_g1_s1(a)
    loader_g2(a)
    a.label("L_end")
    a("s_endpgm")
    a.raw('.section .rodata,"a"')
    a.raw(kernel_desc(name, nv, NSGPR).rstrip("\n"))
    out = args[0] if args else "cdna_kernels/%s.s" % NAME
    open(out, "w").write(a.text())


if __name__ == "__main__":
    main()
```

```python
import math, struct, sys

NAME = "recurrent_scan__spectral_fnet__dense_activation_silu__prompt"

CS_OFF = 0x0000000
STAT_OFF = 0x0040000
HF_OFF = 0x0060000
SF_OFF = 0x0052000
ZF_OFF = 0x0054000
EP_OFF = 0x0058000
CP_OFF = 0x0100000
DP_OFF = 0x0200000
CB_OFF = 0x0400000
ZT_OFF = 0x0800000
HR_OFF = 0x0D00000
HL_OFF = 0x1900000
EX_OFF = 0x1C00000
STAMP_OFF = 0x4000000
WS_SZ = 0x10000000

STAMP = False
SC1 = " sc1"
SPIN_MAX = 200000
OPT = {}

G1SLOT = 45056
G2SLOT = 32768
STG = 143360
CSP = 135168
CSB = 161792
STB = 162816
S1SLOTS = [0, 32768, 65536, 98304]

sWAVE, sXCD, sLOC, sRB, sCB, sTAU, sCLS, sCB8, sKH = 3, 4, 5, 6, 7, 8, 9, 10, 11
sWM, sWN, sSLOT, sCNT = 12, 13, 14, 15
sL = 12
T0, T1, T2, T3, T4, T5, T6, T7 = 16, 17, 18, 19, 20, 21, 22, 23
sNB8 = 39
sTAG, sMK = 38, 76
sSP, sHALF, sHF = 26, 27, 28
WS, W1, DR, DI, W2, CR, CI, XS, OUT, DBG = 40, 44, 48, 52, 56, 60, 64, 68, 72, 76
sNL2E, sHI = 80, 82
C1, C2, C3 = 84, 86, 88
sKA, sKB, sWRAP, sSL0, sP3 = 90, 91, 92, 93, 94
NSGPR = 100


def f32(x):
    return struct.unpack("<I", struct.pack("<f", x))[0]


def hx(x):
    return "0x%x" % (x & 0xFFFFFFFF)


def v(i, n=1):
    return "v%d" % i if n == 1 else "v[%d:%d]" % (i, i + n - 1)


def s(i, n=1):
    return "s%d" % i if n == 1 else "s[%d:%d]" % (i, i + n - 1)


class Asm:
    def __init__(self):
        self.lines = []
        self.uid = 0

    def __call__(self, txt):
        self.lines.append("    " + txt)

    def label(self, l):
        self.lines.append(l + ":")

    def newlabel(self, p):
        self.uid += 1
        return "L_%s_%d" % (p, self.uid)

    def c(self, txt):
        self.lines.append("    ; " + txt)

    def raw(self, txt):
        self.lines.append(txt)

    def all(self, lst):
        for x in lst:
            self(x)

    def text(self):
        return "\n".join(self.lines) + "\n"


def srd(a, dst, ptr, off, size):
    if off:
        a("s_add_u32 %s, %s, %s" % (s(dst), s(ptr), hx(off)))
        a("s_addc_u32 %s, %s, 0" % (s(dst + 1), s(ptr + 1)))
    else:
        a("s_mov_b32 %s, %s" % (s(dst), s(ptr)))
        a("s_mov_b32 %s, %s" % (s(dst + 1), s(ptr + 1)))
    a("s_mov_b32 %s, %s" % (s(dst + 2), hx(size)))
    a("s_mov_b32 %s, 0x20000" % s(dst + 3))


def kernel_header(a, name):
    a.raw(".globl %s" % name)
    a.raw(".p2align 8")
    a.raw(".type %s,@function" % name)
    a.label(name)


def kernel_desc(name, vgpr, sgpr):
    acc = (vgpr + 3) // 4 * 4
    return "\n".join([
        ".p2align 6",
        ".amdhsa_kernel %s" % name,
        "  .amdhsa_next_free_vgpr %d" % vgpr,
        "  .amdhsa_next_free_sgpr %d" % sgpr,
        "  .amdhsa_accum_offset %d" % acc,
        "  .amdhsa_group_segment_fixed_size 0",
        "  .amdhsa_kernarg_size 88",
        "  .amdhsa_user_sgpr_count 2",
        "  .amdhsa_user_sgpr_kernarg_segment_ptr 1",
        "  .amdhsa_system_sgpr_workgroup_id_x 1",
        ".end_amdhsa_kernel",
    ]) + "\n"


NEG1 = " neg_lo:[0,1] neg_hi:[0,1]"


def smod(kind):
    return OPT.get(kind + "mod", "_sc1").replace("_", " ")


def mark(a, idx, extra=None):
    if idx == 0 and not getattr(a, "dt0", False):
        a.dt0 = True
        dbgt(a, 15, neg=True)
        dbgt(a, 0)
    elif idx in (3, 4, 5, 6, 7, 10, 11, 13) and extra is None:
        dbgt(a, idx)
    elif idx == 14:
        dbgt(a, 14, few=False)
    if not STAMP:
        return
    lab = a.newlabel("nost")
    a("s_and_b32 s96, %s, 3" % s(sWAVE))
    a("s_cmp_lg_u32 s96, 0")
    a("s_cbranch_scc1 %s" % lab)
    a("s_memrealtime s[96:97]")
    a("s_memtime s[98:99]")
    a("s_waitcnt lgkmcnt(0)")
    r0 = 0 if idx in (7, 8, 9) else 252
    a("v_mov_b32 %s, s96" % v(r0))
    a("v_mov_b32 %s, %s" % (v(r0 + 1), "s98" if extra is None else s(extra)))
    a("s_lshl_b32 s96, s2, 8")
    a("s_lshl_b32 s97, %s, 5" % s(sWAVE))
    a("s_add_u32 s96, s96, s97")
    a("s_add_u32 s96, s96, %s" % hx(STAMP_OFF + idx * 8))
    a("v_mov_b32 %s, s96" % v(r0 + 2))
    a("buffer_store_dwordx2 %s, %s, %s, 0 offen" % (v(r0, 2), v(r0 + 2), s(WS, 4)))
    a.label(lab)


FINE = False


def dbgt(a, idx, neg=False, few=True):
    if OPT.get("dbgt") != "1":
        return
    lab = a.newlabel("nodt")
    a("s_cmp_lg_u32 %s, 0" % s(sWAVE))
    a("s_cbranch_scc1 %s" % lab)
    if few:
        a("s_cmp_ge_u32 s2, 8")
        a("s_cbranch_scc1 %s" % lab)
    a("s_memrealtime s[96:97]")
    a("s_waitcnt lgkmcnt(0)")
    if neg:
        a("s_not_b32 s96, s96")
    a("v_mov_b32 v252, s96")
    a("v_mov_b32 v253, %d" % (4 * idx))
    a("s_mov_b64 exec, 1")
    a("global_atomic_umax v253, v252, s[34:35] sc1")
    a("s_mov_b64 exec, -1")
    a.label(lab)


def fine(a):
    if not FINE:
        return
    a("s_memtime s[98:99]")
    a("s_waitcnt lgkmcnt(0)")
    a("s_mov_b32 m0, s100")
    a("s_nop 0")
    a("v_writelane_b32 v250, s98, m0")
    a("s_add_u32 s100, s100, 1")


def fine_dump(a, slot):
    if not FINE:
        return
    a("s_lshl_b32 s96, s2, 11")
    a("s_lshl_b32 s97, %s, 8" % s(sWAVE))
    a("s_add_u32 s96, s96, s97")
    a("s_add_u32 s96, s96, %s" % hx(STAMP_OFF + 0x100000 * (1 + slot)))
    a("v_lshlrev_b32 v251, 2, v3")
    a("buffer_store_dword v250, v251, %s, s96 offen" % s(WS, 4))
    a("s_mov_b32 s100, 0")
    a("s_nop 1")
    a("v_mov_b32 v250, 0")


def interleave(a, main, fill, per=1, start=0):
    fi = 0
    for i, m in enumerate(main):
        a(m)
        if i >= start:
            for _ in range(per):
                if fi < len(fill):
                    a(fill[fi]); fi += 1
    while fi < len(fill):
        a(fill[fi]); fi += 1


def mfma(d, sa, sb, c=None):
    return "v_mfma_f32_16x16x32_bf16 %s, %s, %s, %s" % (v(d, 4), v(sa, 4), v(sb, 4), v(d, 4) if c is None else c)


def prologue(a, endlab):
    a("s_cmp_ge_u32 s2, 256")
    a("s_cbranch_scc1 %s" % endlab)
    if OPT.get("cpf", "1") == "1":
        a("s_getpc_b64 s[96:97]")
        a.label("L_pc")
        a("s_lshr_b32 s98, s2, 3")
        a("s_lshl_b32 s98, s98, 13")
        a("v_lshl_add_u32 v2, v0, 4, s98")
        a("v_cmp_gt_u32 vcc, L_end-L_pc, v2")
        a("s_and_saveexec_b64 s[98:99], vcc")
        a("s_cbranch_execz L_nocpf")
        a("global_load_dwordx4 v[244:247], v2, s[96:97]")
        a.label("L_nocpf")
        a("s_mov_b64 exec, -1")
    a("s_load_dwordx16 s[16:31], s[0:1], 0")
    a("s_load_dwordx4 s[32:35], s[0:1], 64")
    a("s_load_dwordx2 s[36:37], s[0:1], 80")
    a("v_lshrrev_b32 v1, 6, v0")
    a("v_and_b32 v3, 63, v0")
    a("s_and_b32 %s, s2, 7" % s(sXCD))
    a("s_lshr_b32 %s, s2, 3" % s(sLOC))
    a("v_readfirstlane_b32 %s, v1" % s(sWAVE))
    a("s_and_b32 s6, s4, 1"); a("s_lshl_b32 s6, s6, 3"); a("s_and_b32 s7, s5, 7"); a("s_add_u32 s6, s6, s7")
    a("s_lshr_b32 s7, s4, 1"); a("s_lshl_b32 s7, s7, 2"); a("s_lshr_b32 s8, s5, 3"); a("s_add_u32 s7, s7, s8")
    a("s_lshl_b32 s8, s4, 5"); a("s_add_u32 s8, s8, s5")
    a("s_mov_b32 s9, s6")
    a("s_lshr_b32 s11, s7, 3")
    a("s_and_b32 s10, s7, 7")
    a("s_mov_b32 %s, %s" % (s(sNL2E), hx(f32(-1.4426950408889634))))
    a("s_mov_b32 %s, %s" % (s(sNL2E + 1), hx(f32(-1.4426950408889634))))
    a("s_mov_b32 %s, 0xffff0000" % s(sHI))
    a("s_lshr_b32 s38, %s, 1" % s(sTAU))
    a("s_and_b32 s39, %s, 1" % s(sTAU))
    a("v_lshlrev_b32 v26, 18, v1")
    a("v_and_b32 v27, 31, v3")
    a("v_lshl_add_u32 v26, v27, 3, v26")
    a("v_lshrrev_b32 v27, 5, v3")
    a("v_lshl_add_u32 v26, v27, 9, v26")
    a("s_lshl_b32 s95, s38, 11")
    a("v_add_u32 v26, s95, v26")
    a("s_lshl_b32 s95, s39, 8")
    a("v_add_u32 v26, s95, v26")
    a("v_xor_b32 v27, 0x100, v26")
    a("v_mov_b32 v28, %d" % SYNC)
    a("v_mov_b32 v29, 0")
    a("ds_write_b32 v28, v29")
    a("s_waitcnt lgkmcnt(0)")
    srd(a, XS, 16, 0, 2048 * 1024 * 2)
    a("s_cmp_ge_u32 %s, 4" % s(sWAVE))
    a("s_cbranch_scc1 L_nox")
    for ri, B in enumerate(RAWB):
        a("s_mov_b32 s95, %s" % hx(ri * 0x100000))
        for hh in range(2):
            for jj in range(2):
                a("buffer_load_dwordx2 %s, %s, %s, s95 offen offset:%d" % (
                    v(B + 4 * hh + 2 * jj, 2), "v27" if hh else "v26", s(XS, 4), 1024 * jj))
    a.label("L_nox")
    srd(a, WS, 36, 0, WS_SZ)
    srd(a, W1, 28, 0, 1024 * 3584 * 2)
    srd(a, DR, 22, 0, 1024 * 1024 * 2)
    srd(a, DI, 24, 0, 1024 * 1024 * 2)
    srd(a, W2, 30, 0, 3584 * 1024 * 2)
    srd(a, CR, 18, 0, 2048 * 2048 * 2)
    srd(a, CI, 20, 0, 2048 * 2048 * 2)
    srd(a, OUT, 32, 0, 2048 * 1024 * 2)
    a("s_mov_b32 %s, s38" % s(sSP))
    a("s_mov_b32 %s, s39" % s(sHALF))
    a("s_lshl_b32 %s, %s, 4" % (s(sHF), s(sRB)))
    a("s_add_u32 %s, %s, %s" % (s(sHF), s(sHF), s(sCB)))
    a("s_lshr_b32 s95, %s, 3" % s(sHF))
    a("s_lshl_b32 s95, s95, 9")
    a("s_lshl_b32 %s, %s, 2" % (s(sHF), s(sCB8)))
    a("s_add_u32 %s, %s, %s" % (s(sHF), s(sHF), s(sWAVE)))
    a("s_lshl_b32 %s, %s, 2" % (s(sHF), s(sHF)))
    a("s_and_b32 %s, %s, 127" % (s(sHF), s(sHF)))
    a("s_add_u32 %s, %s, s95" % (s(sHF), s(sHF)))
    a("s_add_u32 %s, %s, %s" % (s(sHF), s(sHF), hx(HF_OFF)))
    if US() == 1:
        a("s_lshl_b32 %s, %s, 1" % (s(sNB8), s(sCB8)))
    elif US() == 2:
        a("s_and_b32 s95, %s, 1" % s(sCB8))
        a("s_lshr_b32 %s, %s, 1" % (s(sNB8), s(sCB8)))
        a("s_lshl_b32 %s, %s, 2" % (s(sNB8), s(sNB8)))
        a("s_add_u32 %s, %s, s95" % (s(sNB8), s(sNB8)))
    else:
        a("s_and_b32 s95, %s, 3" % s(sCB8))
        a("s_lshr_b32 %s, %s, 2" % (s(sNB8), s(sCB8)))
        a("s_lshl_b32 %s, %s, 3" % (s(sNB8), s(sNB8)))
        a("s_add_u32 %s, %s, s95" % (s(sNB8), s(sNB8)))
    a("s_load_dword %s, s[36:37], %s" % (s(sTAG), hx(EP_OFF)))


def US():
    return int(OPT.get("us", "1"))


ROWB = [32, 76]
RAWB = [32, 76, 240, 120]


def tag_ready(a):
    a("s_add_u32 %s, %s, 0x9e3779b9" % (s(sTAG), s(sTAG)))


def flag_store(a, kind, wave=4):
    lab = a.newlabel("nf")
    a("s_cmp_lg_u32 %s, %d" % (s(sWAVE), wave))
    a("s_cbranch_scc1 %s" % lab)
    if kind == "h":
        a("v_mov_b32 v2, %s" % s(sHF))
    elif kind == "epoch":
        a("s_cmp_lg_u32 s2, 0")
        a("s_cbranch_scc1 %s" % lab)
        a("v_mov_b32 v2, %s" % hx(EP_OFF))
    else:
        idx = "s2" if kind == "s" else s(sTAU)
        a("s_lshr_b32 s96, %s, 3" % idx)
        a("s_lshl_b32 s96, s96, 7")
        a("s_and_b32 s97, %s, 7" % idx)
        a("s_lshl_b32 s97, s97, 2")
        a("s_add_u32 s96, s96, s97")
        a("s_add_u32 s96, s96, %s" % hx(SF_OFF if kind == "s" else ZF_OFF))
        a("v_mov_b32 v2, s96")
    a("v_mov_b32 v1, %s" % s(sTAG))
    a("s_mov_b64 exec, 1")
    a("buffer_store_dword v1, v2, %s, 0 offen sc1" % s(WS, 4))
    a("s_mov_b64 exec, -1")
    a("s_nop 3")
    a.label(lab)


def poll_issue(a, vdst, vaddr, n=1, off=0, stride=1024):
    for i in range(n):
        a("buffer_load_dword %s, %s, %s, 0 offen offset:%d sc1" % (v(vdst + i), v(vaddr), s(WS, 4), off + i * stride))


def hflag(a, phase, n):
    a("s_waitcnt vmcnt(%d)" % n)
    a("s_mov_b64 exec, 1")
    a("buffer_store_dword v1, v2, %s, 0 offen offset:%d sc1" % (s(WS, 4), phase * 128))
    a("s_mov_b64 exec, -1")


def poll_test(a, vdst, mask, n=1):
    a("v_cmp_ne_u32 vcc, %s, %s" % (s(sTAG), v(vdst)))
    for i in range(1, n):
        a("v_cmp_ne_u32 s[96:97], %s, %s" % (s(sTAG), v(vdst + i)))
        a("s_or_b64 vcc, vcc, s[96:97]")
    a("s_nop 0")
    a("s_and_b64 vcc, vcc, %s" % mask)


def poll_check(a, vdst, vaddr, mask, issued, n=1, off=0, stride=1024):
    top = a.newlabel("poll"); done = a.newlabel("pdone"); chk = a.newlabel("pchk")
    a("s_mov_b32 %s, 0" % s(T7))
    if issued:
        a("s_branch %s" % chk)
    a.label(top)
    poll_issue(a, vdst, vaddr, n, off, stride)
    a("s_waitcnt vmcnt(0)")
    a.label(chk)
    a("s_add_u32 %s, %s, 1" % (s(T7), s(T7)))
    poll_test(a, vdst, mask, n)
    a("s_cbranch_scc0 %s" % done)
    a("s_sleep %s" % OPT.get("sleep", "4"))
    a("s_cmp_lt_u32 %s, %d" % (s(T7), SPIN_MAX))
    a("s_cbranch_scc1 %s" % top)
    a.label(done)


def prep_ln(a):
    a("v_lshlrev_b32 v31, 8, v1")
    a("v_and_b32 v2, 31, v3")
    a("v_lshl_add_u32 v31, v2, 3, v31")
    a("v_lshrrev_b32 v2, 5, v3")
    a("v_lshl_add_u32 v31, v2, 12, v31")
    a("v_add_u32 v31, %d, v31" % STG)
    a("s_and_b32 %s, %s, 15" % (s(T0), s(sSP)))
    a("s_lshl_b32 %s, %s, 7" % (s(T0), s(T0)))
    a("s_lshr_b32 %s, %s, 4" % (s(T1), s(sSP)))
    a("s_add_u32 %s, %s, %s" % (s(T0), s(T0), s(T1)))
    a("s_lshl_b32 %s, %s, 3" % (s(T1), s(sWAVE)))
    a("s_add_u32 %s, %s, %s" % (s(T0), s(T0), s(T1)))
    a("s_lshl_b32 %s, %s, 3" % (s(T0), s(T0)))
    a("s_add_u32 %s, %s, %s" % (s(T0), s(T0), hx(STAT_OFF)))
    a("v_mov_b32 v2, %s" % s(T0))
    for ps in range(2):
        a("s_waitcnt vmcnt(%d)" % (8 if ps == 0 else 0))
        if OPT.get("sst") == "1":
            mark(a, 28 + ps)
        prep_ln_pass(a, ps)
    lab = a.newlabel("nostat")
    a("s_cmp_lg_u32 %s, 0" % s(sHALF))
    a("s_cbranch_scc1 %s" % lab)
    a("s_mov_b64 exec, 1")
    for ri in range(4):
        a("buffer_store_dwordx2 %s, v2, %s, 0 offen offset:%d%s" % (v(ROWB[ri & 1] + 32 * (ri >> 1), 2), s(WS, 4), ri * 256, SC1))
    a("s_mov_b64 exec, -1")
    a.label(lab)


def prep_ln_pass(a, ps):
    streams = []
    for rj, B in enumerate(ROWB):
        ri = 2 * ps + rj
        RAW, X, T, M, R, D = RAWB[ri], B + 8, B + 24, B + 32, B + 34, B + 36
        S1, S2 = (T5, T6) if rj == 0 else (24, 25)
        L = []
        for p in range(8):
            L.append("v_lshlrev_b32 %s, 16, %s" % (v(X + 2 * p), v(RAW + p)))
            L.append("v_and_b32 %s, %s, %s" % (v(X + 2 * p + 1), s(sHI), v(RAW + p)))
        pk = lambda d, x, y, m="": L.append("v_pk_add_f32 %s, %s, %s%s" % (v(d, 2), v(x, 2), v(y, 2), m))

        def wsum(r, sd):
            for m in ("quad_perm:[1,0,3,2] row_mask:0xf", "quad_perm:[2,3,0,1] row_mask:0xf",
                      "row_half_mirror row_mask:0xf", "row_mirror row_mask:0xf",
                      "row_bcast:15 row_mask:0xa", "row_bcast:31 row_mask:0xc"):
                L.append("s_nop 0")
                L.append("v_add_f32_dpp %s, %s, %s %s bank_mask:0xf" % (v(r), v(r), v(r), m))
            L.append("s_nop 0")
            L.append("v_readlane_b32 %s, %s, 63" % (s(sd), v(r)))
            L.append("s_nop 0")
        pk(T, X, X + 2); pk(T + 2, X + 4, X + 6); pk(T + 4, X + 8, X + 10); pk(T + 6, X + 12, X + 14)
        pk(T, T, T + 2); pk(T + 4, T + 4, T + 6); pk(T, T, T + 4)
        L.append("v_add_f32 %s, %s, %s" % (v(T), v(T), v(T + 1)))
        wsum(T, S1)
        L.append("v_mov_b32 %s, %s" % (v(M), hx(f32(1.0 / 1024))))
        L.append("v_mul_f32 %s, %s, %s" % (v(M), s(S1), v(M)))
        for g4 in range(2):
            for p in range(4):
                pk(D + 2 * p, X + 8 * g4 + 2 * p, M, " op_sel_hi:[1,0]" + NEG1)
            for p in range(4):
                t = T + 2 * (p & 1)
                if g4 == 0 and p < 2:
                    L.append("v_pk_mul_f32 %s, %s, %s" % (v(t, 2), v(D + 2 * p, 2), v(D + 2 * p, 2)))
                else:
                    L.append("v_pk_fma_f32 %s, %s, %s, %s" % (v(t, 2), v(D + 2 * p, 2), v(D + 2 * p, 2), v(t, 2)))
        pk(T, T, T + 2)
        L.append("v_add_f32 %s, %s, %s" % (v(T), v(T), v(T + 1)))
        wsum(T, S2)
        L.append("v_mov_b32 %s, %s" % (v(R), hx(f32(1.0 / 1024))))
        L.append("v_mul_f32 %s, %s, %s" % (v(R), s(S2), v(R)))
        L.append("v_cvt_pk_bf16_f32 %s, %s, %s" % (v(R), v(R), v(R)))
        L.append("v_lshlrev_b32 %s, 16, %s" % (v(R), v(R)))
        L.append("v_add_f32 %s, %s, %s" % (v(R), hx(f32(1e-5)), v(R)))
        L.append("v_cvt_pk_bf16_f32 %s, %s, %s" % (v(R), v(R), v(R)))
        L.append("v_lshlrev_b32 %s, 16, %s" % (v(R), v(R)))
        L.append("v_sqrt_f32 %s, %s" % (v(R), v(R)))
        L.append("v_cvt_pk_bf16_f32 %s, %s, %s" % (v(M), v(M), v(M)))
        L.append("v_cvt_pk_bf16_f32 %s, %s, %s" % (v(R), v(R), v(R)))
        L.append("v_lshlrev_b32 %s, 16, %s" % (v(M), v(M)))
        L.append("v_lshlrev_b32 %s, 16, %s" % (v(R), v(R)))
        L.append("v_rcp_f32 %s, %s" % (v(R), v(R)))
        for p in range(4):
            pk(D + 2 * p, X + 2 * p, M, " op_sel_hi:[1,0]" + NEG1)
        if ps == 0:
            L.append("v_mov_b32 %s, %s" % (v(B), v(M)))
            L.append("v_mov_b32 %s, %s" % (v(B + 1), v(R)))
        else:
            L.append("v_mov_b32 %s, %s" % (v(M + 1), v(R)))
        for p in range(4):
            L.append("v_cvt_pk_bf16_f32 %s, %s, %s" % (v(T + p), v(D + 2 * p), v(D + 2 * p + 1)))
        for p in range(4):
            L.append("v_lshlrev_b32 %s, 16, %s" % (v(D + 2 * p), v(T + p)))
            L.append("v_and_b32 %s, %s, %s" % (v(D + 2 * p + 1), s(sHI), v(T + p)))
        for p in range(4):
            L.append("v_pk_mul_f32 %s, %s, %s op_sel_hi:[1,0]" % (v(D + 2 * p, 2), v(D + 2 * p, 2), v(R, 2)))
        for p in range(4):
            L.append("v_cvt_pk_bf16_f32 %s, %s, %s" % (v(T + p), v(D + 2 * p), v(D + 2 * p + 1)))
        for p in range(4):
            L.append("v_lshlrev_b32 %s, 16, %s" % (v(X + 2 * p), v(T + p)))
            L.append("v_and_b32 %s, %s, %s" % (v(X + 2 * p + 1), s(sHI), v(T + p)))
        pk(D, X, X + 4); pk(D + 2, X + 2, X + 6)
        pk(D + 4, X, X + 4, NEG1); pk(D + 6, X + 2, X + 6, NEG1)
        for p in range(4):
            L.append("v_cvt_pk_f16_f32 %s, %s, %s" % (v(T + p), v(D + 2 * p), v(D + 2 * p + 1)))
        for wh in range(2):
            L.append("ds_write_b64 v31, %s offset:%d" % (v(T + 2 * wh, 2), wh * 8192 + ri * 1024))
        streams.append(L)
    for x, y in zip(*streams):
        a(x); a(y)


def prep_dft(a0):
    a = Asm()
    a("s_lshr_b32 %s, %s, 1" % (s(T0), s(sWAVE)))
    a("s_lshl_b32 %s, %s, 13" % (s(T1), s(T0)))
    a("s_add_u32 %s, %s, %d" % (s(T1), s(T1), STG))
    a("v_lshlrev_b32 v122, 2, v3")
    a("v_add_u32 v122, %s, v122" % s(T1))
    IN = [32, 48]
    for ab in range(2):
        for j in range(8):
            a("ds_read2st64_b32 %s, v122 offset0:%d offset1:%d" % (v(IN[ab] + 2 * j, 2), ab * 16 + j, ab * 16 + j + 8))
    a("s_lshl_b32 %s, %s, 9" % (s(T1), s(sSP)))
    a("s_lshl_b32 %s, %s, 8" % (s(T2), s(sHALF)))
    a("s_add_u32 %s, %s, %s" % (s(T1), s(T1), s(T2)))
    a("s_lshl_b32 %s, %s, 17" % (s(T2), s(T0)))
    a("s_add_u32 %s, %s, %s" % (s(T1), s(T1), s(T2)))
    a("s_add_u32 %s, %s, %s" % (s(T1), s(T1), hx(CB_OFF)))
    a("v_lshlrev_b32 v123, 2, v3")
    a("v_add_u32 v123, %s, v123" % s(T1))
    for r_, val in ((C1, math.cos(math.pi / 8)), (C2, math.cos(math.pi / 4)), (C3, math.cos(3 * math.pi / 8))):
        a("s_mov_b32 %s, %s" % (s(r_), hx(f32(val))))
        a("s_mov_b32 %s, %s" % (s(r_ + 1), hx(f32(val))))
    head = a.lines
    var = {}
    for parity in range(2):
        free = list(range(64, 120, 2))
        alloc = lambda: free.pop(0)

        def rel(*rs):
            free.extend(rs)

        def add(x, y):
            d = alloc(); a("v_pk_add_f32 %s, %s, %s" % (v(d, 2), v(x, 2), v(y, 2))); return d

        def sub(x, y):
            d = alloc(); a("v_pk_add_f32 %s, %s, %s%s" % (v(d, 2), v(x, 2), v(y, 2), NEG1)); return d

        def mul(x, c):
            d = alloc(); a("v_pk_mul_f32 %s, %s, %s" % (v(d, 2), v(x, 2), s(c, 2))); return d

        def fma(x, c, y, nx=False, ny=False):
            d = alloc()
            mod = " neg_lo:[%d,0,%d] neg_hi:[%d,0,%d]" % (nx, ny, nx, ny) if (nx or ny) else ""
            a("v_pk_fma_f32 %s, %s, %s, %s%s" % (v(d, 2), v(x, 2), s(c, 2), v(y, 2), mod)); return d

        def mix(r, neg):
            d = alloc()
            for h in range(2):
                a("v_fma_mix_f32 %s, %s, 1.0, %s%s op_sel:[%d,0,%d] op_sel_hi:[1,0,1]" % (v(d + h), v(r), "-" if neg else "", v(r + 1), h, h))
            rel(r)
            return d

        def dft(base):
            p = {}; q = {}
            if parity == 0:
                u = [mix(base + 2 * j, False) for j in range(8)]
                uu = []; uv = []
                for j in range(4):
                    uu.append(add(u[j], u[j + 4])); uv.append(sub(u[j], u[j + 4])); rel(u[j], u[j + 4])
                e0 = add(uu[0], uu[2]); e1 = add(uu[1], uu[3])
                p[4] = sub(uu[0], uu[2]); q[4] = sub(uu[1], uu[3]); rel(*uu)
                p[0] = add(e0, e1); p[8] = sub(e0, e1); rel(e0, e1)
                dm = sub(uv[1], uv[3]); dp = add(uv[1], uv[3])
                p[2] = fma(dm, C2, uv[0]); p[6] = fma(dm, C2, uv[0], nx=True)
                q[2] = fma(dp, C2, uv[2]); q[6] = fma(dp, C2, uv[2], ny=True)
                rel(dm, dp, *uv)
            else:
                w = [mix(base + 2 * j, True) for j in range(8)]
                aa = {}; bb = {}
                for j in (1, 2, 3):
                    aa[j] = sub(w[j], w[8 - j]); bb[j] = add(w[j], w[8 - j]); rel(w[j], w[8 - j])
                Ap = fma(aa[2], C2, w[0]); Am = fma(aa[2], C2, w[0], nx=True); rel(aa[2], w[0])
                t = mul(aa[1], C1); G1 = fma(aa[3], C3, t); rel(t)
                t = mul(aa[1], C3); G3 = fma(aa[3], C1, t, nx=True); rel(t, aa[1], aa[3])
                p[1] = add(Ap, G1); p[7] = sub(Ap, G1); p[3] = add(Am, G3); p[5] = sub(Am, G3); rel(Ap, Am, G1, G3)
                Bp = fma(bb[2], C2, w[4]); B3 = fma(bb[2], C2, w[4], ny=True); rel(bb[2], w[4])
                t = mul(bb[1], C3); H1 = fma(bb[3], C1, t); rel(t)
                t = mul(bb[1], C1); H3 = fma(bb[3], C3, t, nx=True); rel(t, bb[1], bb[3])
                q[1] = add(H1, Bp); q[7] = sub(H1, Bp); q[3] = add(H3, B3); q[5] = sub(H3, B3); rel(Bp, B3, H1, H3)
            return p, q

        a.lines = var[(1, parity)] = []
        pa, qa = dft(IN[0])
        a.lines = var[(2, parity)] = []
        pb, qb = dft(IN[1])
        tmpd = []
        for _ in range(4):
            r_ = alloc(); tmpd += [r_, r_ + 1]
        t2 = [alloc(), alloc()]
        cnt = [0]

        def st(reg, arr):
            d = tmpd[cnt[0] % len(tmpd)]; cnt[0] += 1
            a("v_cvt_pk_bf16_f32 %s, %s, %s" % (v(d), v(reg), v(reg + 1)))
            a("s_mov_b32 %s, %s" % (s(T1), hx(arr * 65536)))
            a("buffer_store_dword %s, v123, %s, %s offen%s" % (v(d), s(WS, 4), s(T1), smod("cb")))

        rs = [2, 4, 6] if parity == 0 else [1, 3, 5, 7]
        a.lines = var[(3, parity, 0)] = []
        def comb(x, y, arr1, arr2):
            a("v_pk_add_f32 %s, %s, %s" % (v(t2[0], 2), v(x, 2), v(y, 2)))
            a("v_pk_add_f32 %s, %s, %s%s" % (v(t2[1], 2), v(x, 2), v(y, 2), NEG1))
            st(t2[0], arr1); st(t2[1], arr2)
        if parity == 0:
            comb(pa[0], pb[0], 0, 4); comb(pa[8], pb[8], 1, 5)
        for r_ in rs:
            comb(pa[r_], pb[r_], r_ * 8, r_ * 8 + 4); comb(qa[r_], qb[r_], r_ * 8 + 1, r_ * 8 + 5)
        a.lines = var[(3, parity, 1)] = []
        if parity == 0:
            st(pa[0], 0); st(pb[0], 1); st(pa[8], 4); st(pb[8], 5)
        for r_ in rs:
            a("v_pk_add_f32 %s, %s, %s%s" % (v(t2[0], 2), v(pa[r_], 2), v(qb[r_], 2), NEG1))
            a("v_pk_add_f32 %s, %s, %s" % (v(t2[1], 2), v(qa[r_], 2), v(pb[r_], 2)))
            st(t2[0], r_ * 8); st(t2[1], r_ * 8 + 1)
            a("v_pk_add_f32 %s, %s, %s" % (v(t2[0], 2), v(pa[r_], 2), v(qb[r_], 2)))
            a("v_pk_add_f32 %s, %s, %s%s" % (v(t2[1], 2), v(qa[r_], 2), v(pb[r_], 2), NEG1))
            st(t2[0], r_ * 8 + 4); st(t2[1], r_ * 8 + 5)

    def split(lines):
        idx = [i for i, x in enumerate(lines) if "buffer_store" in x]
        assert len(idx) == 16
        return lines[:idx[7] + 1], lines[idx[7] + 1:]

    def emit(cases):
        done = a0.newlabel("dd")
        labs = [a0.newlabel("dc") for _ in cases]
        uniq = []
        for l_, c in enumerate(cases):
            if c not in uniq:
                uniq.append(c)
        if len(uniq) == 2:
            a0("s_bitcmp1_b32 %s, 0" % s(sWAVE))
            a0("s_cbranch_scc1 %s" % labs[1])
            a0.lines += cases[0]; a0("s_branch %s" % done)
            a0.label(labs[1]); a0.lines += cases[1]
        else:
            for l_ in range(1, 4):
                a0("s_cmp_eq_u32 %s, %d" % (s(sWAVE), l_))
                a0("s_cbranch_scc1 %s" % labs[l_])
            for l_ in range(4):
                if l_:
                    a0.label(labs[l_])
                a0.lines += cases[l_]
                if l_ < 3:
                    a0("s_branch %s" % done)
        a0.label(done)

    def piece(n):
        if n == 0:
            a0.lines += head
        elif n == 1:
            emit([var[(1, l_ & 1)] + var[(2, l_ & 1)] for l_ in range(4)])
        else:
            emit([var[(3, l_ & 1, l_ >> 1)] for l_ in range(4)])
    return piece


def rowimg_frag_addr(a, dst0, dst1, rowbase_sgpr):
    a("v_and_b32 %s, 15, v3" % v(dst0))
    a("v_lshlrev_b32 %s, 7, %s" % (v(dst0), v(dst0)))
    a("v_lshrrev_b32 %s, 4, v3" % v(dst1))
    a("v_bfe_u32 v2, v3, 1, 3")
    a("v_xor_b32 %s, %s, v2" % (v(dst1), v(dst1)))
    a("v_lshl_add_u32 %s, %s, 4, %s" % (v(dst0), v(dst1), v(dst0)))
    a("v_add_u32 %s, %s, %s" % (v(dst0), s(rowbase_sgpr), v(dst0)))
    a("v_xor_b32 %s, 64, %s" % (v(dst1), v(dst0)))


def silu_tail(a, regs, tmp):
    for t in tmp:
        a("v_exp_f32 %s, %s" % (v(t), v(t)))
        a("v_exp_f32 %s, %s" % (v(t + 1), v(t + 1)))
    for t in tmp:
        a("v_pk_add_f32 %s, %s, 1.0 op_sel_hi:[1,0]" % (v(t, 2), v(t, 2)))
    for t in tmp:
        a("v_rcp_f32 %s, %s" % (v(t), v(t)))
        a("v_rcp_f32 %s, %s" % (v(t + 1), v(t + 1)))
    for r_, t in zip(regs, tmp):
        a("v_pk_mul_f32 %s, %s, %s" % (v(r_, 2), v(r_, 2), v(t, 2)))


def silu_pk(a, regs, tmp):
    for r_, t in zip(regs, tmp):
        a("v_pk_mul_f32 %s, %s, %s" % (v(t, 2), v(r_, 2), s(sNL2E, 2)))
    silu_tail(a, regs, tmp)


ACC1 = 128
vM0, vM1, vNa, vNb, vNc = 4, 5, 6, 7, 8
cM0, cM1, cNa, cNb, cNc = 9, 10, 11, 12, 13
vZ0, vZ1 = 14, 15


def compute_setup(a):
    a("s_lshr_b32 %s, %s, 1" % (s(sWM), s(sWAVE)))
    a("s_and_b32 %s, %s, 1" % (s(sWN), s(sWAVE)))
    a("s_lshl_b32 %s, s2, 15" % s(T0))
    a("s_lshl_b32 %s, %s, 13" % (s(T1), s(sWAVE)))
    a("s_add_u32 %s, %s, %s" % (s(T0), s(T0), s(T1)))
    a("s_add_u32 %s, %s, %s" % (s(T0), s(T0), hx(EX_OFF)))
    a("v_lshlrev_b32 v24, 4, v3")
    a("v_add_u32 v24, %s, v24" % s(T0))
    a("v_add_u32 v25, 4096, v24")
    a("s_lshl_b32 %s, %s, 13" % (s(T0), s(sWM)))
    rowimg_frag_addr(a, vM0, vM1, T0)
    a("s_lshl_b32 %s, %s, 13" % (s(T0), s(sWN)))
    a("s_add_u32 %s, %s, 16384" % (s(T0), s(T0)))
    rowimg_frag_addr(a, vZ0, vZ1, T0)
    a("v_lshrrev_b32 v18, 4, v3")
    a("v_bfe_u32 v17, v3, 2, 2")
    a("v_lshl_add_u32 v17, v18, 3, v17")
    a("v_mul_u32_u24 v17, 448, v17")
    a("v_and_b32 v19, 3, v3")
    a("v_lshl_add_u32 v17, v19, 3, v17")
    a("v_and_b32 v19, 1, v18")
    a("v_lshlrev_b32 v19, 5, v19")
    a("s_lshl_b32 %s, %s, 6" % (s(T0), s(sWN)))
    a("s_add_u32 %s, %s, 16384" % (s(T0), s(T0)))
    a("v_add_u32 v20, %s, v17" % s(T0))
    a("v_add_u32 %s, v20, v19" % v(vNa))
    a("v_sub_u32 %s, v20, v19" % v(vNb))
    a("s_lshl_b32 %s, %s, 5" % (s(T0), s(sWN)))
    a("v_xor_b32 v20, %s, v19" % s(T0))
    a("v_add_u32 v20, v20, v17")
    a("v_add_u32 %s, %d, v20" % (v(vNc), 16384 + 384))
    a("v_and_b32 v21, 1, v18")
    a("v_lshlrev_b32 v21, 5, v21")
    a("v_lshrrev_b32 v19, 1, v18")
    a("v_lshl_add_u32 v21, v19, 4, v21")
    a("s_lshl_b32 %s, %s, 4" % (s(T0), s(sRB)))
    a("s_add_u32 %s, %s, %s" % (s(T0), s(T0), s(sCB)))
    a("s_mul_i32 %s, %s, 49152" % (s(T1), s(T0)))
    a("s_lshl_b32 %s, %s, 13" % (s(T2), s(sWN)))
    a("s_add_u32 %s, %s, %s" % (s(T1), s(T1), s(T2)))
    a("s_lshl_b32 %s, %s, 12" % (s(T2), s(sWM)))
    a("s_add_u32 %s, %s, %s" % (s(T1), s(T1), s(T2)))
    a("s_add_u32 %s, %s, %s" % (s(T1), s(T1), hx(HR_OFF)))
    a("v_and_b32 v22, 15, v3")
    a("v_lshl_add_u32 v17, v22, 6, v21")
    a("v_add_u32 v17, %s, v17" % s(T1))
    a("s_lshl_b32 %s, %s, 13" % (s(T1), s(T0)))
    a("s_lshl_b32 %s, %s, 12" % (s(T2), s(sWN)))
    a("s_add_u32 %s, %s, %s" % (s(T1), s(T1), s(T2)))
    a("s_lshl_b32 %s, %s, 11" % (s(T2), s(sWM)))
    a("s_add_u32 %s, %s, %s" % (s(T1), s(T1), s(T2)))
    a("s_add_u32 %s, %s, %s" % (s(T1), s(T1), hx(HL_OFF)))
    a("v_and_b32 v20, 1, v18")
    a("v_lshl_add_u32 v20, v20, 4, v22")
    a("v_lshlrev_b32 v20, 5, v20")
    a("v_lshl_add_u32 v20, v19, 4, v20")
    a("v_add_u32 v20, %s, v20" % s(T1))
    a("s_lshl_b32 %s, %s, 7" % (s(T1), s(sWN)))
    a("s_add_u32 %s, %s, %d" % (s(T1), s(T1), CSB))
    a("v_lshlrev_b32 v26, 4, v18")
    a("v_add_u32 v26, %s, v26" % s(T1))
    a("s_lshl_b32 %s, %s, 6" % (s(T1), s(sWN)))
    a("s_add_u32 %s, %s, %d" % (s(T1), s(T1), CSB + 768))
    a("v_lshlrev_b32 v27, 4, v18")
    a("v_add_u32 v27, %s, v27" % s(T1))
    a("s_lshl_b32 %s, %s, 9" % (s(T1), s(sWM)))
    a("s_add_u32 %s, %s, %d" % (s(T1), s(T1), STB))
    a("v_lshlrev_b32 v28, 3, v22")
    a("v_add_u32 v28, %s, v28" % s(T1))
    for i in range(112):
        a("v_mov_b32 %s, 0" % v(ACC1 + i))
    a("s_mov_b32 %s, 0" % s(sSLOT))


def compute_g1_s1(a):
    ACC = ACC1
    FR = [32, 76]
    cZ0, cZ1 = cNa, cNb

    def set_addr(lst):
        return ["v_add_u32 %s, %s, %s" % (v(c), s(sSLOT), v(b)) for c, b in lst]

    def next_slot():
        return ["s_add_u32 s14, s14, %d" % G1SLOT, "s_cmp_eq_u32 s14, %d" % (G1SLOT * 3), "s_cselect_b32 s14, 0, s14"]

    G1A = [(cM0, vM0), (cM1, vM1), (cNa, vNa), (cNb, vNb), (cNc, vNc)]

    def s1_addr(k):
        return ["v_add_u32 %s, %s, %s" % (v(c), hx(S1SLOTS[k]), v(b)) for c, b in
                [(cM0, vM0), (cM1, vM1), (cZ0, vZ0), (cZ1, vZ1)]]

    def g1_reads(fs, ks):
        r = []
        for nt in range(7):
            ad = cNc if nt == 6 else (cNb if nt & 1 else cNa)
            off = 0 if nt == 6 else 128 * (nt >> 1) + 32 * (nt & 1)
            for h in range(2):
                r.append("ds_read_b64_tr_b16 %s, %s offset:%d" % (
                    v(FR[fs] + 16 + 4 * nt + 2 * h, 2), v(ad), ks * 14336 + h * 1792 + off))
            if nt < 4:
                r.append("ds_read_b128 %s, %s offset:%d" % (v(FR[fs] + 4 * nt, 4), v(cM1 if ks else cM0), nt * 2048))
        return r

    def g1_mfmas(fs):
        o = OPT.get("ord", "n")
        if o == "m":
            order = [(nt, mt) for mt in range(4) for nt in range(7)]
        elif o == "z":
            order = [(nt, mt if nt % 2 == 0 else 3 - mt) for nt in range(7) for mt in range(4)]
        else:
            order = [(nt, mt) for nt in range(7) for mt in range(4)]
        return [mfma(ACC + 4 * (nt * 4 + mt), FR[fs] + 16 + 4 * nt, FR[fs] + 4 * mt) for nt, mt in order]

    def g1_iter(extra_b=(), pre_bar=(), tail=(), flag=None):
        interleave(a, g1_mfmas(0), g1_reads(1, 1) + next_slot() + set_addr(G1A))
        a("s_waitcnt lgkmcnt(0)")
        a.all(pre_bar)
        fine(a)
        a("s_barrier")
        fine(a)
        interleave(a, g1_mfmas(1), g1_reads(0, 0) + list(extra_b))
        a("s_waitcnt lgkmcnt(0)")
        a.all(tail)

    def g1_loop(n):
        a("s_mov_b32 %s, 0" % s(sCNT))
        loop = a.newlabel("g1_loop")
        a.raw(".p2align 6")
        a.label(loop)
        g1_iter(["s_add_u32 s15, s15, 1", "s_cmp_lt_u32 s15, %d" % n], tail=["s_cbranch_scc1 %s" % loop])

    if OPT.get("sent", "none") == "pre":
        for i in range(4):
            a("v_mov_b32 %s, -1" % v(240 + i))
        for i in range(8):
            a("buffer_store_dwordx4 v[240:243], %s, %s, 0 offen offset:%d%s" % ("v25" if i >= 4 else "v24", s(WS, 4), (i & 3) * 1024, SC1))
    a.all(set_addr(G1A))
    mark(a, 3)
    a("s_barrier")
    mark(a, 4)
    a.all(g1_reads(0, 0))
    a("s_waitcnt lgkmcnt(0)")
    if STAMP:
        g1_loop(3)
        mark(a, 15)
        g1_loop(FLAGK - 3)
    else:
        g1_loop(FLAGK)
    g1_iter(pre_bar=["s_waitcnt vmcnt(0)"], flag="s")
    if STAMP:
        mark(a, 2)
        g1_loop(3)
        mark(a, 1)
        g1_loop(14 - FLAGK - 3)
    else:
        g1_loop(14 - FLAGK)
    interleave(a, g1_mfmas(0), g1_reads(1, 1) + s1_addr(0))
    a("s_waitcnt lgkmcnt(0)")
    a("s_barrier")
    CSR, STR = 32, 60
    rd = ["ds_read_b128 %s, v26 offset:%d" % (v(CSR + 4 * nt, 4), 256 * (nt >> 1) + 64 * (nt & 1)) for nt in range(6)]
    rd.append("ds_read_b128 %s, v27" % v(CSR + 24, 4))
    rd += ["ds_read_b64 %s, v28 offset:%d" % (v(STR + 2 * mt, 2), 128 * mt) for mt in range(4)]
    interleave(a, g1_mfmas(1), rd)
    mark(a, 5)
    a("s_waitcnt lgkmcnt(0)")
    if OPT.get("eprio", "0") != "0":
        a("s_setprio %s" % OPT.get("eprio"))
    RL = 68
    for mt in range(4):
        a("v_rcp_f32 %s, %s" % (v(RL + 2 * mt + 1), v(STR + 2 * mt + 1)))
        a("v_mul_f32 %s, %s, %s" % (v(RL + 2 * mt), s(sNL2E), v(STR + 2 * mt + 1)))
    TMP = 76
    PK = [88, 92, 96, 100, 104, 108, 112, 116]
    for pr in range(3):
        a("s_mov_b32 %s, %d" % (s(T0 + pr), pr * 16384))
    pki = 0
    groups = [[(mt, 2 * pr), (mt, 2 * pr + 1)] for pr in range(3) for mt in range(4)]
    groups += [[(0, 6), (1, 6)], [(2, 6), (3, 6)]]
    a("v_mov_b32 v1, %s" % s(sTAG))
    a("v_mov_b32 v2, %s" % s(sHF))
    F0 = int(OPT.get("f0", "8"))
    for gi, gr in enumerate(groups):
        if gi == F0:
            hflag(a, 0, F0 - 4)
        regs = []; cs = []; mts = []
        for mt, nt in gr:
            b = ACC + 4 * (nt * 4 + mt)
            regs += [b, b + 2]; cs += [CSR + 4 * nt, CSR + 4 * nt + 2]; mts += [mt, mt]
        tmp = [TMP + 2 * i for i in range(4)]
        for r_, c_, mt in zip(regs, cs, mts):
            a("v_pk_fma_f32 %s, %s, %s, %s op_sel_hi:[1,0,1] neg_lo:[0,1,0] neg_hi:[0,1,0]" % (v(r_, 2), v(c_, 2), v(STR + 2 * mt, 2), v(r_, 2)))
        for r_, t, mt in zip(regs, tmp, mts):
            a("v_pk_mul_f32 %s, %s, %s op_sel_hi:[1,0]" % (v(t, 2), v(r_, 2), v(RL + 2 * mt, 2)))
        for t_ in tmp:
            a("v_exp_f32 %s, %s" % (v(t_), v(t_)))
            a("v_exp_f32 %s, %s" % (v(t_ + 1), v(t_ + 1)))
        for t_, mt in zip(tmp, mts):
            a("v_pk_fma_f32 %s, %s, %s, %s op_sel:[0,1,1]" % (v(t_, 2), v(t_, 2), v(RL + 2 * mt, 2), v(RL + 2 * mt, 2)))
        for t_ in tmp:
            a("v_rcp_f32 %s, %s" % (v(t_), v(t_)))
            a("v_rcp_f32 %s, %s" % (v(t_ + 1), v(t_ + 1)))
        for r_, t_ in zip(regs, tmp):
            a("v_pk_mul_f32 %s, %s, %s" % (v(r_, 2), v(r_, 2), v(t_, 2)))
        P = PK[pki % len(PK)]; pki += 1
        for i, r_ in enumerate(regs):
            a("v_cvt_pk_bf16_f32 %s, %s, %s" % (v(P + i), v(r_), v(r_ + 1)))
        a("s_nop 1")
        a("v_permlane16_swap_b32 %s, %s" % (v(P), v(P + 2)))
        a("v_permlane16_swap_b32 %s, %s" % (v(P + 1), v(P + 3)))
        mt, nt = gr[0]
        if nt < 6:
            a("buffer_store_dwordx4 %s, v17, %s, %s offen offset:%d%s" % (v(P, 4), s(WS, 4), s(T0 + nt // 2), mt * 1024, smod("h%d" % (nt // 2))))
        else:
            a("buffer_store_dwordx4 %s, v20, %s, 0 offen offset:%d%s" % (v(P, 4), s(WS, 4), (mt // 2) * 1024, smod("h3")))
    mark(a, 6)
    fine_dump(a, 0)

    def s1_reads(fs, ks):
        r = []
        for t in range(4):
            r.append("ds_read_b128 %s, %s offset:%d" % (v(FR[fs] + 4 * t, 4), v(cM1 if ks else cM0), t * 2048))
            r.append("ds_read_b128 %s, %s offset:%d" % (v(FR[fs] + 16 + 4 * t, 4), v(cZ1 if ks else cZ0), t * 2048))
        return r

    def s1_mfmas(fs, first):
        return [mfma(ACC + 4 * (mt * 4 + nt), FR[fs] + 4 * mt, FR[fs] + 16 + 4 * nt, "0" if first else None)
                for mt in range(4) for nt in range(4)]

    hflag(a, 1, 7 if F0 >= 8 else 6)
    g2_setup(a)
    a("v_mov_b32 v2, %s" % s(sHF))
    ACC = 192
    HF = -1
    a("s_barrier")
    a.all(s1_reads(0, 0))
    a("s_lshr_b32 %s, %s, 3" % (s(T0), s(sTAU)))
    a("s_and_b32 %s, %s, 3" % (s(T1), s(T0)))
    a("s_cmp_eq_u32 %s, 3" % s(T0))
    a("s_cselect_b32 %s, 1, %s" % (s(T1), s(T1)))
    a("s_lshr_b32 %s, %s, 2" % (s(T2), s(T0)))
    a("s_cmp_eq_u32 %s, 3" % s(T0))
    a("s_cselect_b32 %s, 8, %s" % (s(T2), s(T2)))
    a("s_lshl_b32 %s, %s, 19" % (s(T2), s(T2)))
    a("s_bfe_u32 %s, %s, 0x20001" % (s(T3), s(sTAU)))
    a("s_lshl_b32 %s, %s, 6" % (s(T3), s(T3)))
    a("s_lshl_b32 %s, %s, 5" % (s(T4), s(sWN)))
    a("s_add_u32 %s, %s, %s" % (s(T3), s(T3), s(T4)))
    a("v_and_b32 v17, 15, v3")
    a("v_add_u32 v17, %s, v17" % s(T3))
    a("v_sub_u32 v22, %d, v17" % (3 * 256 + 239))
    a("s_lshl_b32 %s, %s, 8" % (s(T1), s(T1)))
    a("v_add_u32 v17, %s, v17" % s(T1))
    a("s_and_b32 %s, %s, 1" % (s(T3), s(sTAU)))
    a("s_lshl_b32 %s, %s, 1" % (s(T3), s(T3)))
    a("s_add_u32 %s, %s, %s" % (s(T3), s(T3), s(sWM)))
    a("s_lshl_b32 %s, %s, 16" % (s(T3), s(T3)))
    a("s_add_u32 %s, %s, %s" % (s(T3), s(T3), hx(ZT_OFF)))
    a("v_add_u32 v23, %s, v21" % s(T3))
    a("v_lshl_add_u32 v17, v17, 6, v23")
    a("v_lshl_add_u32 v22, v22, 6, v23")
    a("s_waitcnt lgkmcnt(0)")
    for k in range(4):
        interleave(a, s1_mfmas(0, k == 0), s1_reads(1, 1) + (s1_addr(k + 1) if k < 3 else []))
        a("s_waitcnt lgkmcnt(0)")
        interleave(a, s1_mfmas(1, False), s1_reads(0, 0) if k < 3 else [])
        if k < 3:
            a("s_waitcnt lgkmcnt(0)")
        if k == 1:
            a("s_barrier")
        if k == 2:
            hflag(a, 2, 0)
            a("s_nop 3")
        if k == HF:
            a("s_waitcnt vmcnt(0)")
            a("s_barrier")
            flag_store(a, "h")
    mark(a, 7)
    a("s_barrier")
    mark(a, 8)
    a("s_nop 7")
    TMP = 32
    PK = [56, 60, 64, 68, 72, 76, 80, 84]
    typeB = a.newlabel("s1_typeB"); done = a.newlabel("s1_done")
    a("s_and_b32 %s, %s, 29" % (s(T3), s(T0)))
    a("s_cmp_eq_u32 %s, 0" % s(T3))
    a("s_cbranch_scc1 %s" % typeB)
    tile = lambda m, n: ACC + 4 * (m * 4 + n)
    pki = 0
    for n in range(2):
        for uv in range(2):
            P = PK[pki]; pki += 1
            for m in range(2):
                for h in range(2):
                    if uv == 0:
                        a("v_pk_add_f32 %s, %s, %s" % (v(TMP + 2 * h, 2), v(tile(m, n) + 2 * h, 2), v(tile(m + 2, n + 2) + 2 * h, 2)))
                    else:
                        a("v_pk_add_f32 %s, %s, %s%s" % (v(TMP + 2 * h, 2), v(tile(m + 2, n) + 2 * h, 2), v(tile(m, n + 2) + 2 * h, 2), NEG1))
                for h in range(2):
                    a("v_cvt_pk_bf16_f32 %s, %s, %s" % (v(P + 2 * m + h), v(TMP + 2 * h), v(TMP + 2 * h + 1)))
            a("s_add_u32 %s, %s, %d" % (s(T3), s(T2), n * 1024 + uv * 262144))
            a("s_nop 0")
            a("v_permlane16_swap_b32 %s, %s" % (v(P), v(P + 2)))
            a("v_permlane16_swap_b32 %s, %s" % (v(P + 1), v(P + 3)))
            a("buffer_store_dwordx4 %s, v17, %s, %s offen%s" % (v(P, 4), s(WS, 4), s(T3), smod("zt")))
    a("s_cmp_ge_u32 %s, 4" % s(T0))
    a("s_cbranch_scc1 %s" % done)
    a("s_mov_b32 %s, 0x80008000" % s(T4))
    pki = 0
    for n in range(2):
        for uv in range(2):
            P = PK[pki]; pki += 1
            a("s_add_u32 %s, %s, %d" % (s(T3), s(T2), (1 - n) * 1024 + uv * 262144))
            if uv:
                Q = PK[4 + n]
                for i in range(4):
                    a("v_xor_b32 %s, %s, %s" % (v(Q + i), s(T4), v(P + i)))
                P = Q
            a("buffer_store_dwordx4 %s, v22, %s, %s offen%s" % (v(P, 4), s(WS, 4), s(T3), smod("zt")))
    a("s_branch %s" % done)
    a.label(typeB)
    pki = 0
    for n in range(2):
        for half in range(2):
            for uv in range(2):
                P = PK[pki]; pki += 1
                sg = "-" if uv else ""
                for m in range(2):
                    t = tile(m + 2 * half, n + 2 * uv)
                    for h in range(2):
                        a("v_cvt_pk_bf16_f32 %s, %s%s, %s%s" % (v(P + 2 * m + h), sg, v(t + 2 * h), sg, v(t + 2 * h + 1)))
                a("s_mov_b32 %s, %d" % (s(T3), half * 8 * 524288 + n * 1024 + uv * 262144))
                a("s_nop 0")
                a("v_permlane16_swap_b32 %s, %s" % (v(P), v(P + 2)))
                a("v_permlane16_swap_b32 %s, %s" % (v(P + 1), v(P + 3)))
                a("buffer_store_dwordx4 %s, v17, %s, %s offen%s" % (v(P, 4), s(WS, 4), s(T3), smod("zt")))
    a.label(done)
    mark(a, 9)


def dma(a, ldsoff, vaddr, srd_, soff, coh=False):
    if OPT.get("nodma") == "1" and getattr(a, "skipdma", False):
        return
    a("s_add_u32 m0, %s, %d" % (s(sSLOT), ldsoff))
    a("s_nop 0")
    a("buffer_load_dwordx4 %s, %s, %s offen%s lds" % (v(vaddr), s(srd_, 4), s(soff), OPT.get("cohmod", "_sc1").replace("_", " ") if coh else ""))


LVA, LVB, LVC, LVD = 8, 12, 20, 24
CSD = 128


def g1_issue(a):
    for i in range(4):
        dma(a, i * 4096, LVA + i, XS, sKA)
    for i in range(7):
        dma(a, 16384 + i * 4096, LVB + i, W1, sKB)
    a("s_add_u32 %s, %s, 128" % (s(sKA), s(sKA)))
    a("s_add_u32 %s, %s, %d" % (s(sKB), s(sKB), 64 * 7168))
    a("s_add_u32 s14, s14, %d" % G1SLOT)
    a("s_cmp_eq_u32 s14, %s" % s(sWRAP))
    a("s_cselect_b32 s14, %s, s14" % s(sSL0))


def loader_setup(a):
    a("s_sub_u32 %s, %s, 4" % (s(sL), s(sWAVE)))
    a("s_and_b32 %s, %s, 1" % (s(T0), s(sL)))
    a("s_lshl_b32 %s, %s, 2" % (s(T0), s(T0)))
    a("v_lshrrev_b32 v4, 4, v3")
    a("v_add_u32 v4, %s, v4" % s(T0))
    a("v_and_b32 v5, 7, v3")
    a("v_xor_b32 v4, v4, v5")
    a("v_lshlrev_b32 v4, 4, v4")
    a("v_lshrrev_b32 v5, 3, v3")
    a("s_lshl_b32 %s, %s, 3" % (s(T0), s(sL)))
    a("v_add_u32 v5, %s, v5" % s(T0))
    a("v_lshlrev_b32 v30, 2, v3")
    a("s_lshl_b32 %s, %s, 10" % (s(sSL0), s(sL)))
    a("s_lshl_b32 %s, %s, 11" % (s(T0), s(sRB)))
    a("v_lshl_add_u32 v6, v5, 15, v4")
    a("v_add_u32 v6, %s, v6" % s(T0))
    for i in range(4):
        a("v_add_u32 %s, %s, v6" % (v(LVA + i), hx(i * 32 * 32768)))
    a("s_lshl_b32 %s, %s, 6" % (s(T0), s(sL)))
    a("v_add_u32 v6, %s, v3" % s(T0))
    a("s_mul_i32 %s, %s, 448" % (s(T1), s(sCB)))
    for i in range(7):
        a("v_add_u32 v7, %d, v6" % (256 * i))
        a("v_mul_u32_u24 v28, 2341, v7")
        a("v_lshrrev_b32 v28, 16, v28")
        a("v_mul_u32_u24 v29, 28, v28")
        a("v_sub_u32 v29, v7, v29")
        a("v_bfe_u32 v31, v28, 3, 1")
        a("v_lshlrev_b32 v31, 1, v31")
        a("v_xor_b32 v29, v29, v31")
        a("v_mul_u32_u24 v28, 7168, v28")
        a("v_lshl_add_u32 v28, v29, 4, v28")
        a("v_add_u32 %s, %s, v28" % (v(LVB + i), s(T1)))
    a("s_mov_b32 %s, %s" % (s(sSLOT), s(sSL0)))
    a("s_add_u32 %s, %s, %d" % (s(sWRAP), s(sSL0), G1SLOT * 3))
    a("s_mov_b32 %s, 0" % s(sKA))
    a("s_mov_b32 %s, 0" % s(sKB))
    a("v_and_b32 v6, 31, v3")
    a("v_lshrrev_b32 v7, 5, v3")
    a("v_mul_u32_u24 v7, 7168, v7")
    a("v_lshl_add_u32 v7, v6, 4, v7")
    a("s_xor_b32 %s, %s, %s" % (s(T0), s(sRB), OPT.get("csx", "0")))
    a("s_lshl_b32 %s, %s, 6" % (s(T0), s(T0)))
    a("s_lshl_b32 %s, %s, 4" % (s(T2), s(sL)))
    a("s_add_u32 %s, %s, %s" % (s(T0), s(T0), s(T2)))
    a("s_mul_i32 %s, %s, 7168" % (s(T0), s(T0)))
    a("s_add_u32 %s, %s, %s" % (s(T0), s(T0), s(T1)))
    a("v_add_u32 v7, %s, v7" % s(T0))
    a("v_cmp_gt_u32 vcc, 28, v6")
    a("v_mov_b32 v28, 0x7f000000")
    a("s_nop 0")
    a("v_cndmask_b32 v7, v28, v7, vcc")
    def csl():
        for i in range(8):
            a("s_mov_b32 %s, %d" % (s(T0), i * 2 * 7168))
            a("buffer_load_dwordx4 %s, v7, %s, %s offen" % (v(CSD + 4 * i, 4), s(W1, 4), s(T0)))

    SO = OPT.get("so", "g")
    if SO == "g":
        g1_issue(a)
        a("s_barrier")
        csl()
    elif SO == "c":
        csl()
        a("s_barrier")
        g1_issue(a)
    else:
        a("s_barrier")
        csl()
        g1_issue(a)
    for _ in range(int(OPT.get("early", "3")) - 1):
        g1_issue(a)
    pf_addr(a)
    if OPT.get("tlb", "21") != "0":
        sh = int(OPT.get("tlb", "21"))
        a("v_lshlrev_b32 v2, %d, v3" % sh)
        a("s_lshl_b32 %s, %s, %d" % (s(T0), s(sL), sh + 6))
        a("v_add_u32 v2, %s, v2" % s(T0))
        a("v_cmp_gt_u32 vcc, 0x2400000, v2")
        a("s_and_saveexec_b64 s[96:97], vcc")
        a("s_cbranch_execz L_notlb")
        a("buffer_load_dword v244, v2, %s, 0 offen sc1" % s(WS, 4))
        a.label("L_notlb")
        a("s_mov_b64 exec, -1")
        for b_ in (W2, CR, CI, OUT, DR, DI):
            a("buffer_load_dword v244, v2, %s, 0 offen sc1" % s(b_, 4))


def code_refresh(a, q):
    if OPT.get("cref", "1") != "1":
        return
    lab = a.newlabel("pc")
    a("s_getpc_b64 s[96:97]")
    a.label(lab)
    a("s_sub_u32 s96, s96, %s-L_pc" % lab)
    a("s_subb_u32 s97, s97, 0")
    a("s_lshl_b32 s98, %s, 2" % s(sLOC))
    a("s_add_u32 s98, s98, %s" % s(sL))
    a("s_lshl_b32 s98, s98, 10")
    a("s_min_u32 s98, s98, (L_end-L_pc-1024)&0xfffffff0")
    a("v_lshl_add_u32 v2, v3, 4, s98")
    a("global_load_dwordx4 v[244:247], v2, s[96:97]")
    q.append("code")


def pf_addr(a):
    a("s_lshl_b32 %s, s2, 2" % s(T0))
    a("s_add_u32 %s, %s, %s" % (s(T0), s(T0), s(sL)))
    a("s_mul_i32 %s, %s, 7168" % (s(T1), s(T0)))
    a("v_lshlrev_b32 v124, 4, v3")
    a("v_add_u32 v124, %s, v124" % s(T1))
    a("v_add_u32 v125, 4096, v124")
    a("s_lshr_b32 %s, %s, 1" % (s(T2), s(T0)))
    a("v_lshrrev_b32 v126, 5, v3"); a("v_lshlrev_b32 v126, 11, v126"); a("v_and_b32 v127, 31, v3"); a("v_lshl_add_u32 v126, v127, 4, v126")
    a("s_lshl_b32 %s, %s, 12" % (s(T3), s(T2))); a("v_add_u32 v126, %s, v126" % s(T3))
    a("v_lshrrev_b32 v127, 4, v3"); a("v_lshlrev_b32 v127, 12, v127"); a("v_and_b32 v2, 15, v3"); a("v_lshl_add_u32 v127, v2, 4, v127")
    a("s_lshl_b32 %s, %s, 14" % (s(T3), s(T2))); a("v_add_u32 v127, %s, v127" % s(T3))
    pack_addr(a)


def pack_addr(a):
    a("s_and_b32 %s, %s, 1" % (s(T3), s(sL)))
    a("v_lshrrev_b32 v122, 5, v3")
    a("s_lshl_b32 %s, %s, 1" % (s(T4), s(T2)))
    a("v_add_u32 v122, %s, v122" % s(T4))
    a("v_and_b32 v2, 3, v122")
    a("v_lshrrev_b32 v122, 2, v122")
    a("v_lshlrev_b32 v122, 9, v122")
    a("v_lshl_add_u32 v122, v2, 18, v122")
    a("v_and_b32 v2, 31, v3")
    a("v_lshl_add_u32 v122, v2, 4, v122")
    a("s_lshl_b32 %s, %s, 17" % (s(T4), s(T3)))
    a("s_add_u32 %s, %s, %s" % (s(T4), s(T4), hx(DP_OFF)))
    a("v_add_u32 v122, %s, v122" % s(T4))
    a("v_lshrrev_b32 v123, 4, v3")
    a("s_lshl_b32 %s, %s, 2" % (s(T4), s(T2)))
    a("v_add_u32 v123, %s, v123" % s(T4))
    a("v_and_b32 v2, 15, v123")
    a("v_lshrrev_b32 v123, 4, v123")
    a("v_lshlrev_b32 v123, 8, v123")
    a("v_lshl_add_u32 v123, v2, 16, v123")
    a("v_and_b32 v2, 15, v3")
    a("v_lshl_add_u32 v123, v2, 4, v123")
    a("s_lshl_b32 %s, %s, 15" % (s(T4), s(T3)))
    a("s_add_u32 %s, %s, %s" % (s(T4), s(T4), hx(CP_OFF)))
    a("v_add_u32 v123, %s, v123" % s(T4))


def pf_pair(a, vaddr, sre, sim, dst=244):
    l2 = a.newlabel("pf2"); l3 = a.newlabel("pf3")
    a("s_bitcmp1_b32 %s, 0" % s(sWAVE))
    a("s_cbranch_scc1 %s" % l2)
    a("buffer_load_dwordx4 %s, %s, %s, 0 offen" % (v(dst, 4), v(vaddr), s(sre, 4)))
    a("s_branch %s" % l3)
    a.label(l2)
    a("buffer_load_dwordx4 %s, %s, %s, 0 offen" % (v(dst, 4), v(vaddr), s(sim, 4)))
    a.label(l3)


def loader_g1_s1(a):
    AC = CSD + 32
    FINECS = OPT.get("finecs", "1") == "1"
    PFS = OPT.get("pf", "s") == "s"
    PFT = OPT.get("pf", "s").startswith("t")
    PFK = 99 if PFS else int(OPT.get("pf", "99").lstrip("t"))
    EARLY = int(OPT.get("early", "3"))
    q = (["g0"] * 11 + ["csl"] * 8 if OPT.get("so", "g") == "g" else ["csl"] * 8 + ["g0"] * 11) + [x for i in range(1, EARLY) for x in ["g%d" % i] * 11]

    def issue(st):
        g1_issue(a); q.extend(["g%d" % st] * 11)

    def need(*tags):
        idx = max(i for i, x in enumerate(q) if x in tags)
        n = len(q) - idx - 1
        del q[:idx + 1]
        return n

    def bar(*tags, lg=False):
        n = need(*tags)
        fine(a)
        a("s_waitcnt vmcnt(%d)%s" % (n, " lgkmcnt(0)" if lg else ""))
        fine(a)
        a("s_barrier")

    def prefetch():
        a.c("warm the memory-side cache with this wave's share of w2 and of the C slices")
        if PFT:
            a("v_mul_u32_u24 v2, 48, v3")
            a("v_add_u32 v124, v124, v2")
            a("v_add_u32 v125, v125, v2")
            a("buffer_load_dword v244, v124, %s, 0 offen" % s(W2, 4))
            a("buffer_load_dword v244, v125, %s, 0 offen" % s(W2, 4))
            q.extend(["pf"] * 2)
        else:
            for i in range(7):
                a("buffer_load_dwordx4 v[244:247], %s, %s, 0 offen offset:%d" % ("v125" if i >= 4 else "v124", s(W2, 4), (i & 3) * 1024))
            q.extend(["pf"] * 7)
        pf_pair(a, 127, CR, CI)
        q.append("pf")

    def cs_chunk(rng):
        for i in rng:
            for d in range(4):
                src = CSD + 4 * i + d
                t_ = AC + 2 * d if i == 0 else AC + 8 + 2 * d
                a("v_lshlrev_b32 %s, 16, %s" % (v(t_), v(src)))
                a("v_and_b32 %s, %s, %s" % (v(t_ + 1), s(sHI), v(src)))
            if i:
                for d in range(4):
                    a("v_pk_add_f32 %s, %s, %s" % (v(AC + 2 * d, 2), v(AC + 2 * d, 2), v(AC + 8 + 2 * d, 2)))

    def after0():
        cs_chunk(range(0, 4))

    def after1():
        cs_chunk(range(6, 8) if FINECS else range(4, 8))
        a("v_lshrrev_b32 v28, 5, v3")
        a("s_lshl_b32 %s, %s, 1" % (s(T0), s(sL)))
        a("v_add_u32 v28, %s, v28" % s(T0))
        a("v_lshlrev_b32 v28, 10, v28")
        a("v_and_b32 v29, 31, v3")
        a("v_lshl_add_u32 v28, v29, 5, v28")
        a("v_add_u32 v28, %d, v28" % CSP)
        a("ds_write_b128 v28, %s" % v(AC, 4))
        a("ds_write_b128 v28, %s offset:16" % v(AC + 4, 4))
        a("s_waitcnt lgkmcnt(0)")

    def after2a():
        a("s_lshl_b32 %s, %s, 8" % (s(T0), s(sL)))
        a("v_add_u32 v19, %s, v30" % s(T0))
        a("v_add_u32 v29, %d, v19" % CSP)
        a("s_lshl_b32 %s, %s, 14" % (s(T0), s(sCB)))
        a("s_lshl_b32 %s, %s, 10" % (s(T5), s(sRB)))
        a("s_add_u32 %s, %s, %s" % (s(T5), s(T5), s(T0)))
        a("s_add_u32 %s, %s, %s" % (s(T5), s(T5), hx(CS_OFF)))
        tag_ready(a)
        a("v_lshrrev_b32 v31, 3, v3")
        a("v_lshlrev_b32 v31, 7, v31")
        a("v_and_b32 v28, 7, v3")
        a("v_lshl_add_u32 v31, v28, 2, v31")
        a("v_add_u32 v31, %s, v31" % hx(SF_OFF))

    def after2b():
        for i in range(4):
            a("ds_read2st64_b32 %s, v29 offset0:%d offset1:%d" % (v(CSD + 2 * i, 2), 8 * i, 8 * i + 4))
        a("s_waitcnt lgkmcnt(0)")
        a("v_pk_add_f32 %s, %s, %s" % (v(CSD, 2), v(CSD, 2), v(CSD + 2, 2)))
        a("v_pk_add_f32 %s, %s, %s" % (v(CSD + 4, 2), v(CSD + 4, 2), v(CSD + 6, 2)))
        a("v_pk_add_f32 %s, %s, %s" % (v(CSD, 2), v(CSD, 2), v(CSD + 4, 2)))
        a("v_add_f32 %s, %s, %s" % (v(CSD), v(CSD), v(CSD + 1)))
        a("buffer_store_dword %s, v19, %s, %s offen%s" % (v(CSD), s(WS, 4), s(T5), SC1))
        q.append("cs_store")

    def after2():
        after2a(); after2b()

    def after3():
        a("s_lshr_b32 %s, %s, 3" % (s(T0), s(sTAU)))
        a("s_lshl_b32 %s, %s, 17" % (s(T1), s(T0)))
        a("s_and_b32 %s, %s, 1" % (s(T2), s(sTAU)))
        a("s_lshl_b32 %s, %s, 15" % (s(T3), s(T2)))
        a("s_add_u32 %s, %s, %s" % (s(T1), s(T1), s(T3)))
        a("s_add_u32 %s, %s, %s" % (s(T1), s(T1), hx(CB_OFF)))
        a("v_lshl_add_u32 v6, v5, 9, v4")
        a("v_add_u32 v6, %s, v6" % s(T1))
        for i in range(4):
            a("v_add_u32 %s, %s, v6" % (v(LVC + i), hx((i & 1) * 65536 + (i >> 1) * 32 * 512)))
        a("s_and_b32 %s, %s, 3" % (s(T1), s(T0)))
        a("s_cmp_eq_u32 %s, 3" % s(T0))
        a("s_cselect_b32 %s, 1, %s" % (s(T1), s(T1)))
        a("s_lshl_b32 %s, %s, 18" % (s(T1), s(T1)))
        a("s_bfe_u32 %s, %s, 0x20001" % (s(T3), s(sTAU)))
        a("s_lshl_b32 %s, %s, 15" % (s(T3), s(T3)))
        a("s_add_u32 %s, %s, %s" % (s(T1), s(T1), s(T3)))
        a("s_add_u32 %s, %s, %s" % (s(T1), s(T1), hx(DP_OFF)))
        a("v_lshl_add_u32 v6, v5, 9, v4")
        a("v_add_u32 v6, %s, v6" % s(T1))
        for i in range(4):
            a("v_add_u32 %s, %s, v6" % (v(LVD + i), hx((i & 1) * 131072 + (i >> 1) * 32 * 512)))
        a("s_lshl_b32 %s, s2, 15" % s(T0))
        a("s_lshl_b32 %s, %s, 13" % (s(T1), s(sL)))
        a("s_add_u32 %s, %s, %s" % (s(T0), s(T0), s(T1)))
        a("s_add_u32 %s, %s, %s" % (s(T0), s(T0), hx(EX_OFF)))
        a("v_lshlrev_b32 v6, 4, v3")
        a("v_add_u32 v6, %s, v6" % s(T0))
        a("v_add_u32 v7, 4096, v6")
        for i in range(4):
            a("v_mov_b32 %s, -1" % v(240 + i))

    def sentinel(i):
        a("buffer_store_dwordx4 v[240:243], %s, %s, 0 offen offset:%d%s" % ("v7" if i >= 4 else "v6", s(WS, 4), (i & 3) * 1024, SC1))
        q.append("sent")

    def after9():
        poll_issue(a, CSD + 20, 31, 4); q.extend(["poll"] * 4)

    def after11():
        a.c("fetch 4 of the 16 partial column sums of this column block per wave, and this class's row stats")
        a("s_lshl_b32 %s, %s, 14" % (s(T0), s(sCB)))
        a("s_lshl_b32 %s, %s, 12" % (s(T1), s(sL)))
        a("s_add_u32 %s, %s, %s" % (s(T0), s(T0), s(T1)))
        a("s_add_u32 %s, %s, %s" % (s(T0), s(T0), hx(CS_OFF)))
        a("v_lshlrev_b32 v28, 4, v3")
        for i in range(4):
            a("buffer_load_dwordx4 %s, v28, %s, %s offen offset:%d%s" % (v(CSD + 4 * i, 4), s(WS, 4), s(T0), i * 1024, SC1))
        a("s_lshl_b32 %s, %s, 10" % (s(T0), s(sRB)))
        a("s_add_u32 %s, %s, %s" % (s(T0), s(T0), hx(STAT_OFF)))
        a("buffer_load_dword %s, v19, %s, %s offen%s" % (v(CSD + 16), s(WS, 4), s(T0), SC1))
        q.extend(["fetch"] * 5)

    def after13():
        a("s_waitcnt vmcnt(%d)" % need("fetch"))
        for d, x in ((0, 4), (2, 6), (8, 12), (10, 14), (0, 8), (2, 10)):
            a("v_pk_add_f32 %s, %s, %s" % (v(CSD + d, 2), v(CSD + d, 2), v(CSD + x, 2)))
        a("s_lshl_b32 %s, %s, 10" % (s(T0), s(sL)))
        a("s_add_u32 %s, %s, %d" % (s(T0), s(T0), CSP))
        a("v_add_u32 v28, %s, v28" % s(T0))
        a("ds_write_b128 v28, %s" % v(CSD, 4))
        a("v_add_u32 v28, %d, v19" % STB)
        a("ds_write_b32 v28, %s" % v(CSD + 16))
        a("s_waitcnt lgkmcnt(0)")

    def after14():
        a("v_add_u32 v28, %d, v19" % CSP)
        for i in range(4):
            a("ds_read_b32 %s, v28 offset:%d" % (v(CSD + i), i * 1024))
        a("v_add_u32 v28, %d, v19" % CSB)
        a("s_waitcnt lgkmcnt(0)")
        a("v_add_f32 %s, %s, %s" % (v(CSD), v(CSD), v(CSD + 1)))
        a("v_add_f32 %s, %s, %s" % (v(CSD + 2), v(CSD + 2), v(CSD + 3)))
        a("v_add_f32 %s, %s, %s" % (v(CSD), v(CSD), v(CSD + 2)))
        a("ds_write_b32 v28, %s" % v(CSD))

    CSPRE = OPT.get("cspre", "1") == "1"
    hooks = {0: after0, 1: after1, 2: after2} if not FINECS else {
        0: lambda: cs_chunk(range(0, 2)), 1: lambda: cs_chunk(range(2, 4)), 2: lambda: cs_chunk(range(4, 6)), 3: after1, 4: after2}
    def pack_store():
        assert "dc" not in q
        a("buffer_store_dwordx4 v[232:235], v122, %s, 0 offen%s" % (s(WS, 4), smod("pk")))
        a("buffer_store_dwordx4 v[236:239], v123, %s, 0 offen%s" % (s(WS, 4), smod("pk")))
        q.extend(["cs_store"] * 2)

    if CSPRE:
        hooks = {0: after2b, 2: pack_store}
    hooks.update({9: after9, 11: after11, 13: after13, 14: after14})
    after3()
    LATE = OPT.get("late", "0") == "1"
    if not LATE:
        for st in range(EARLY, 3):
            issue(st)
    if OPT.get("cov", "0") == "1":
        a("s_cmp_lt_u32 %s, 8" % s(sRB))
        a("s_mov_b32 %s, %d" % (s(T1), 512 * 7168))
        a("s_cselect_b32 %s, %s, %s" % (s(T1), s(T1), hx(-512 * 7168)))
        a("v_add_u32 v2, %s, v7" % s(T1))
        for i in range(8):
            a("s_mov_b32 %s, %d" % (s(T0), i * 2 * 7168))
            a("buffer_load_dwordx4 v[244:247], v2, %s, %s offen" % (s(W1, 4), s(T0)))
        q.extend(["pf"] * 8)
    pf_pair(a, 126, DR, DI, 232); q.append("dc")
    if PFK == -1:
        prefetch()
    if PFS:
        pf_pair(a, 127, CR, CI, 236); q.append("dc")
        a("s_lshl_b32 %s, s2, 2" % s(T0))
        a("s_add_u32 %s, %s, %s" % (s(T0), s(T0), s(sL)))
        a("s_mul_i32 %s, %s, 7168" % (s(T0), s(T0)))
        a("s_add_u32 s30, %s, %s" % (s(W2), s(T0)))
        a("s_addc_u32 s31, %s, 0" % s(W2 + 1))
    if CSPRE:
        a("s_waitcnt vmcnt(%d)" % (len(q) - max(i for i, x in enumerate(q) if x == "csl") - 1))
        cs_chunk(range(0, 6))
        after1()
        after2a()
    if OPT.get("sst") == "1":
        mark(a, 1)
    bar("g0")
    if OPT.get("g1prio", "0") != "0":
        a("s_setprio %s" % OPT.get("g1prio"))
    if LATE:
        for st in range(EARLY, 3):
            issue(st)
    for k in range(15):
        tags = ["g%d" % (k + 1)]
        if k == FLAGK:
            tags.append("cs_store")
        if k == 11:
            fine(a)
            a("s_waitcnt vmcnt(%d)" % need("g12", "poll"))
            poll_check(a, CSD + 20, 31, "exec", True, 4)
            fine(a)
            a("s_barrier")
        else:
            bar(*tags)
        if k + 3 <= 15:
            issue(k + 3)
        if k == FLAGK:
            flag_store(a, "s")
        if k == int(OPT.get("cr1", "8")):
            code_refresh(a, q)
        if k in hooks:
            hooks[k]()
        if 4 <= k <= 11 and OPT.get("sent", "none") == "g1":
            sentinel(k - 4)
        if k == 4 and OPT.get("sent", "none") == "g1b":
            for i in range(8):
                sentinel(i)
        if k == PFK:
            prefetch()
        if PFS and 1 <= k <= 11:
            for i in range(11 * (k - 1), min(112, 11 * k)):
                a("s_load_dword s29, s[30:31], %d" % (i * 64))

    def issue_s1(k):
        a("s_add_u32 %s, %s, %d" % (s(sSLOT), s(sSL0), S1SLOTS[k]))
        a("s_mov_b32 %s, %d" % (s(sKA), k * 128))
        for i in range(4):
            dma(a, i * 4096, LVC + i, WS, sKA, coh=True)
        for i in range(4):
            dma(a, 16384 + i * 4096, LVD + i, WS, sKA, coh=True)

    issue_s1(2)
    fine_dump(a, 0)
    a("s_waitcnt lgkmcnt(0)")
    a("s_barrier")
    if OPT.get("g1prio", "0") != "0":
        a("s_setprio 0")
    for k in (0, 1, 3):
        issue_s1(k)
    g2_loader_setup(a)
    a("s_mul_i32 %s, %s, %d" % (s(T0), s(sKH), 1792 * 2048))
    a("s_lshl_b32 %s, %s, 7" % (s(T1), s(sNB8)))
    a("s_add_u32 %s, %s, %s" % (s(T0), s(T0), s(T1)))
    a("s_and_b32 %s, %s, 7" % (s(T1), s(sLOC)))
    a("s_cmp_ge_u32 %s, 4" % s(T1))
    a("s_cselect_b32 %s, %d, 0" % (s(sADJ), 192 * 2048))
    a("s_lshl_b32 %s, %s, 2" % (s(T1), s(T1)))
    a("s_add_u32 %s, %s, %s" % (s(T1), s(T1), s(sL)))
    a("s_lshl_b32 %s, %s, 12" % (s(T1), s(T1)))
    a("s_add_u32 %s, %s, %s" % (s(T0), s(T0), s(T1)))
    a("s_add_u32 s30, %s, %s" % (s(W2), s(T0)))
    a("s_addc_u32 s31, %s, 0" % s(W2 + 1))
    a("s_and_b32 %s, %s, %d" % (s(sP3), s(sCB8), 0 if OPT.get("same") == "1" else 4))
    a("s_and_b32 %s, %s, %d" % (s(sP3), s(sCB8), 0 if OPT.get("same") == "1" else 4))
    for st in range(NRB()):
        g2_koff(a, st, False, True)
        for i in range(4):
            a("buffer_load_dwordx4 %s, %s, %s, %s offen" % (v(RBB + 16 * st + 4 * i, 4), v(GVB + i), s(W2, 4), s(sKB)))
    a("v_lshlrev_b32 %s, 4, v3" % v(GWA))
    a("v_add_u32 %s, %s, %s" % (v(GWA), s(sSL0), v(GWA)))
    a("s_waitcnt vmcnt(%d)" % (4 * NRB()))
    a("s_barrier")


RBB = 64
XL = 0
GVX = 62
SOLOB = 65536
RXL = 32768
FLAGK = 5
SYNC = 159744
GWA = 60


def NRB():
    return int(OPT.get("nrb", "0"))


PF_G1 = 28
sADJ = 95


def jp(st):
    return (st // 12) * 4 + st % 4, (st % 12) // 4


def w2_prefetch(a, halves):
    last = None
    for hs in halves:
        st, r = divmod(hs, 2)
        if st != last:
            if st < NREG:
                j, p_ = jp(st)
                a("s_xor_b32 s96, %s, %d" % (s(sP3), j))
                a("s_mul_i32 s96, s96, %d" % (224 * 2048))
                if p_:
                    a("s_add_u32 s96, s96, %d" % (p_ * 64 * 2048))
            else:
                a("s_add_u32 s96, %s, %d" % (s(sADJ), (448 * (st - NREG) + 192) * 2048))
            last = st
        for c in (0, 64, 128 * US(), 128 * US() + 64):
            a("s_load_dword s29, s[30:31], s96 offset:%d" % (r * 2048 + c))


def g2_koff(a, st, want_a, want_b):
    j, p_ = jp(st)
    a("s_xor_b32 %s, %s, %d" % (s(T0), s(sP3), j))
    if want_a:
        a("s_mul_i32 %s, %s, 49152" % (s(sKA), s(T0)))
        if p_:
            a("s_add_u32 %s, %s, %d" % (s(sKA), s(sKA), p_ * 16384))
    if want_b:
        a("s_mul_i32 %s, %s, %d" % (s(sKB), s(T0), 224 * 2048))
        if p_:
            a("s_add_u32 %s, %s, %d" % (s(sKB), s(sKB), p_ * 64 * 2048))


NJ = 28
NREG = 24
NSOLO = 4


def g2_setup(a):
    ACC = 128
    gN0, gZ0, gZ1 = 6, 7, 8
    a("v_and_b32 v16, 15, v3")
    a("v_lshlrev_b32 v16, 15, v16")
    a("s_lshl_b32 %s, %s, 21" % (s(T0), s(sWM)))
    a("s_lshl_b32 %s, %s, 11" % (s(T1), s(sCLS)))
    a("s_add_u32 %s, %s, %s" % (s(T0), s(T0), s(T1)))
    a("s_lshl_b32 %s, %s, 7" % (s(T1), s(sNB8)))
    a("s_add_u32 %s, %s, %s" % (s(T0), s(T0), s(T1)))
    a("s_mul_i32 %s, %s, %d" % (s(T1), s(sKH), 128 * US()))
    a("s_add_u32 %s, %s, %s" % (s(T0), s(T0), s(T1)))
    a("s_lshl_b32 %s, %s, 6" % (s(T1), s(sWN)))
    a("s_add_u32 %s, %s, %s" % (s(T0), s(T0), s(T1)))
    a("v_add_u32 v16, %s, v16" % s(T0))
    a("v_lshrrev_b32 v19, 1, v18")
    a("s_lshl_b32 %s, %s, 2" % (s(T1), s(sWN)))
    a("v_add_u32 v19, %s, v19" % s(T1))
    a("v_bfe_u32 v20, v3, 1, 3")
    a("v_xor_b32 v19, v19, v20")
    a("v_lshlrev_b32 v19, 4, v19")
    a("v_and_b32 v20, 1, v18")
    a("v_lshl_add_u32 v19, v20, 3, v19")
    a("v_and_b32 v20, 15, v3")
    a("v_lshl_add_u32 v19, v20, 7, v19")
    a("s_lshl_b32 %s, %s, 13" % (s(T1), s(sWM)))
    a("s_add_u32 %s, %s, %d" % (s(T1), s(T1), XL))
    a("v_add_u32 v19, %s, v19" % s(T1))
    a("v_xor_b32 v27, 32, v19")
    for mt in range(4):
        a("s_mov_b32 %s, %d" % (s(C1 + mt), mt * 16 * 16 * 2048))
    a("v_add_u32 v16, v16, v21")
    a("s_lshl_b32 %s, %s, 12" % (s(T0), s(sWN)))
    a("s_add_u32 %s, %s, 16384" % (s(T0), s(T0)))
    rowimg_frag_addr(a, gZ0, gZ1, T0)
    a("v_bfe_u32 v20, v3, 2, 2")
    a("v_lshl_add_u32 v23, v18, 3, v20")
    a("v_lshlrev_b32 v23, 8, v23")
    a("v_and_b32 v22, 3, v3")
    a("v_lshl_add_u32 v23, v22, 3, v23")
    a("v_and_b32 v22, 1, v18")
    a("v_lshl_or_b32 v20, v22, 2, v20")
    a("s_lshl_b32 %s, %s, 1" % (s(T0), s(sWN)))
    a("s_lshl_b32 %s, %s, 2" % (s(T1), s(sKH)))
    a("s_add_u32 %s, %s, %s" % (s(T0), s(T0), s(T1)))
    a("v_xor_b32 v20, %s, v20" % s(T0))
    a("v_lshl_add_u32 v23, v20, 5, v23")
    a("v_add_u32 %s, 16384, v23" % v(gN0))
    a("v_mov_b32 v28, 0xff")
    a("v_mov_b32 v31, %s" % s(sTAG))
    a("v_xor_b32 v29, 0x20000, v24")
    a("v_xor_b32 v30, 0x20000, v25")
    for i in range(64):
        a("v_mov_b32 %s, 0" % v(ACC + i))


def compute_g2(a):
    ACC = 128; ACY = 192; XR = 224; RX = 96
    FR = [32, 64]
    gN0, gZ0, gZ1 = 6, 7, 8
    cN = 11
    a("s_mov_b32 %s, %d" % (s(sSLOT), 4 * G2SLOT))

    def set_addr(joint):
        r = ["v_add_u32 %s, s14, %s" % (v(cM0), v(vM0)), "v_add_u32 %s, s14, %s" % (v(cM1), v(vM1))]
        if joint:
            r.append("v_add_u32 %s, s14, %s" % (v(cN), v(gN0)))
            for nt, x in ((1, 32), (2, 128), (3, 160)):
                r.append("v_xor_b32 %s, %d, %s" % (v(cN + nt), x, v(cN)))
        else:
            r += ["v_add_u32 %s, s14, %s" % (v(cN), v(gZ0)), "v_add_u32 %s, s14, %s" % (v(cN + 1), v(gZ1))]
        return r

    def next_slot():
        return ["s_add_u32 s14, s14, %d" % G2SLOT, "s_cmp_eq_u32 s14, %d" % (G2SLOT * 5), "s_cselect_b32 s14, 0, s14"]

    def reads(fs, ks, joint):
        r = []
        for t in range(4):
            if joint:
                for h in range(2):
                    r.append("ds_read_b64_tr_b16 %s, %s offset:%d" % (v(FR[fs] + 16 + 4 * t + 2 * h, 2), v(cN + t), ks * 8192 + h * 1024))
            elif t < 2:
                r.append("ds_read_b128 %s, %s offset:%d" % (v(FR[fs] + 16 + 4 * t, 4), v(cN + ks), t * 2048))
            r.append("ds_read_b128 %s, %s offset:%d" % (v(FR[fs] + 4 * t, 4), v(cM1 if ks else cM0), t * 2048))
        return r

    ot = lambda mt, nt: ACC + 4 * (nt * 4 + mt)

    def jm(fs, order=(0, 1, 2, 3)):
        o = OPT.get("ord", "n")
        if o == "m" and order == (0, 1, 2, 3):
            od = [(nt, mt) for mt in range(4) for nt in order]
        elif o == "z" and order == (0, 1, 2, 3):
            od = [(nt, mt if nt % 2 == 0 else 3 - mt) for nt in order for mt in range(4)]
        else:
            od = [(nt, mt) for nt in order for mt in range(4)]
        return [mfma(ot(mt, nt), FR[fs] + 16 + 4 * nt, FR[fs] + 4 * mt) for nt, mt in od]

    def sm(fs):
        return [mfma(ACY + 4 * (nt * 4 + mt), FR[fs] + 16 + 4 * nt, FR[fs] + 4 * mt) for nt in range(2) for mt in range(4)]

    a.all(set_addr(True))
    a("s_barrier")
    mark(a, 10)
    a.all(reads(0, 0, True))
    a("s_mov_b32 %s, 0" % s(sCNT))
    a("s_waitcnt lgkmcnt(0)")

    def joint_iter(nxt_joint, extra=(), pre_bar=(), flag=None, bar=True):
        nr = OPT.get("noread") == "1"
        interleave(a, jm(0), ([] if nr else reads(1, 1, True)) + next_slot() + set_addr(nxt_joint), per=int(OPT.get("g2per", "2")))
        a("s_waitcnt lgkmcnt(0)")
        a.all(pre_bar)
        fine(a)
        if bar:
            a("s_barrier")
        fine(a)
        interleave(a, jm(1), ([] if nr else reads(0, 0, True)) + list(extra), per=1)
        a("s_waitcnt lgkmcnt(0)")

    ZK = int(OPT.get("zk", "6"))

    def g2_loop(n):
        a("s_mov_b32 %s, 0" % s(sCNT))
        loop = a.newlabel("g2_loop")
        a.raw(".p2align 6")
        a.label(loop)
        joint_iter(True, ["s_add_u32 s15, s15, 1", "s_cmp_lt_u32 s15, %d" % n])
        a("s_cbranch_scc1 %s" % loop)

    g2_loop(ZK)
    joint_iter(True, pre_bar=["s_waitcnt vmcnt(0)"], flag="z")
    mark(a, 26)
    g2_loop(NJ - 2 - ZK)
    SM = [[32 + 4 * i for i in range(8)], [64 + 4 * i for i in range(8)]]
    SN = [[96 + 4 * i for i in range(4)], [112 + 4 * i for i in range(4)]]

    def sreads(fs):
        r = []
        for ks in range(2):
            for nt in range(2):
                r.append("ds_read_b128 %s, %s offset:%d" % (v(SN[fs][2 * ks + nt], 4), v(cN + ks), nt * 2048))
            for mt in range(4):
                r.append("ds_read_b128 %s, %s offset:%d" % (v(SM[fs][4 * ks + mt], 4), v(cM1 if ks else cM0), mt * 2048))
        return r

    def smf(fs, first=False):
        return [mfma(ACY + 4 * (nt * 4 + mt), SN[fs][2 * ks + nt], SM[fs][4 * ks + mt], "0" if first and ks == 0 else None)
                for ks in range(2) for nt in range(2) for mt in range(4)]

    def solo_addr(j):
        return ["v_add_u32 %s, %s, %s" % (v(c), hx(SOLOB + j * 24576), v(b))
                for c, b in ((cM0, vM0), (cM1, vM1), (cN, gZ0), (cN + 1, gZ1))]

    interleave(a, jm(0), reads(1, 1, True) + solo_addr(0), per=2)
    a("s_waitcnt lgkmcnt(0)")
    a("s_barrier")
    m = jm(1, (2, 3, 0, 1))
    interleave(a, m[:8], sreads(0) + solo_addr(1), per=2)
    for i in range(8):
        a(m[8 + i])
        b = ACC + 32 + 4 * i
        for j in range(4):
            a("v_bfi_b32 %s, v28, v31, %s" % (v(b + j), v(b + j)))
        a("buffer_store_dwordx4 %s, %s, %s, 0 offen offset:%d%s" % (v(b, 4), "v30" if i >= 4 else "v29", s(WS, 4), (i & 3) * 1024, smod("ex")))
    a("s_waitcnt lgkmcnt(0)")
    mark(a, 11)
    for k in range(NSOLO):
        last = k == NSOLO - 1
        interleave(a, smf(k & 1, k == 0), [] if last else sreads(1 - (k & 1)) + (solo_addr(k + 2) if k + 2 < NSOLO else []), per=2)
        if not last:
            a("s_waitcnt lgkmcnt(0)")
        if k == 0:
            a("s_barrier")
        if k == int(OPT.get("rxj", "2")):
            a("s_barrier")
    mark(a, 12)
    a("v_lshlrev_b32 v26, 4, v3")
    a("s_lshl_b32 %s, %s, 13" % (s(T0), s(sWAVE)))
    a("s_add_u32 %s, %s, %d" % (s(T0), s(T0), RXL))
    a("v_add_u32 v26, %s, v26" % s(T0))
    a("s_barrier")
    for mt in range(4):
        for nt in range(2):
            a("ds_read_b64 %s, %s offset:%d" % (v(XR + 4 * mt + 2 * nt, 2), "v27" if nt else "v19", mt * 2048))
    for i in range(8):
        a("ds_read_b128 %s, v26 offset:%d" % (v(RX + 4 * i, 4), i * 1024))
    a("s_waitcnt lgkmcnt(8)")
    for i in range(16):
        a("v_lshlrev_b32 %s, 16, %s" % (v(32 + 2 * i), v(XR + i)))
        a("v_and_b32 %s, %s, %s" % (v(33 + 2 * i), s(sHI), v(XR + i)))
    a("s_waitcnt lgkmcnt(0)")
    mark(a, 13)
    TMP = 80
    PK = [64, 68, 72, 76]
    MIMIC = OPT.get("mimic", "0") == "1"

    def rnd(regs, t):
        for i, r_ in enumerate(regs):
            a("v_cvt_pk_bf16_f32 %s, %s, %s" % (v(t + i), v(r_), v(r_ + 1)))
        for i, r_ in enumerate(regs):
            a("v_lshlrev_b32 %s, 16, %s" % (v(r_), v(t + i)))
            a("v_and_b32 %s, %s, %s" % (v(r_ + 1), s(sHI), v(t + i)))

    for mt in range(4):
        offs = [4 * mt, 4 * mt + 2, 16 + 4 * mt, 16 + 4 * mt + 2]
        o = [ACC + x for x in offs]
        y = [ACY + x for x in offs]
        xf = [32 + 8 * mt + 2 * i for i in range(4)]
        for i in range(4):
            a("v_pk_add_f32 %s, %s, %s" % (v(o[i], 2), v(o[i], 2), v(RX + offs[i], 2)))
        if MIMIC:
            rnd(o, 48)
        silu_pk(a, o, [TMP + 2 * i for i in range(4)])
        if MIMIC:
            rnd(o, 48)
            rnd(y, 52)
        if MIMIC:
            for i in range(4):
                a("v_pk_mul_f32 %s, %s, %s" % (v(o[i], 2), v(o[i], 2), v(y[i], 2)))
            rnd(o, 48)
            for i in range(4):
                a("v_pk_add_f32 %s, %s, %s" % (v(o[i], 2), v(o[i], 2), v(xf[i], 2)))
        else:
            for i in range(4):
                a("v_pk_fma_f32 %s, %s, %s, %s" % (v(o[i], 2), v(o[i], 2), v(y[i], 2), v(xf[i], 2)))
        P = PK[mt]
        for i in range(4):
            a("v_cvt_pk_bf16_f32 %s, %s, %s" % (v(P + i), v(o[i]), v(o[i] + 1)))
        a("s_nop 1")
        a("v_permlane16_swap_b32 %s, %s" % (v(P), v(P + 2)))
        a("v_permlane16_swap_b32 %s, %s" % (v(P + 1), v(P + 3)))
        a("buffer_store_dwordx4 %s, v16, %s, %s offen%s" % (v(P, 4), s(OUT, 4), s(C1 + mt), OPT.get("outmod", "_sc0_sc1").replace("_", " ")))
    flag_store(a, "epoch", 0)
    mark(a, 14)
    fine_dump(a, 1)
    a("s_endpgm")


GVA, GVB, GVA2, GVB2, GVC, GVD = 32, 36, 40, 44, 48, 52
GZA, GHA = 58, 59


def g2_loader_setup(a):
    a("v_lshrrev_b32 v6, 4, v3")
    a("s_lshr_b32 %s, %s, 1" % (s(T0), s(sL)))
    a("s_lshl_b32 %s, %s, 2" % (s(T0), s(T0)))
    a("v_or_b32 v7, %s, v6" % s(T0))
    a("v_lshlrev_b32 v7, 1, v7")
    a("v_and_b32 v28, 15, v3")
    a("v_xor_b32 v7, v7, v28")
    a("v_lshlrev_b32 v7, 4, v7")
    a("v_lshl_add_u32 v6, v6, 11, v7")
    a("s_mul_i32 %s, %s, %d" % (s(T0), s(sKH), 1792 * 2048))
    a("s_lshl_b32 %s, %s, 13" % (s(T1), s(sL)))
    a("s_add_u32 %s, %s, %s" % (s(T0), s(T0), s(T1)))
    a("s_lshl_b32 %s, %s, 7" % (s(T1), s(sNB8)))
    a("s_add_u32 %s, %s, %s" % (s(T0), s(T0), s(T1)))
    a("v_add_u32 v6, %s, v6" % s(T0))
    a("v_and_b32 v7, 128, v7")
    a("v_mul_u32_u24 v7, %d, v7" % (US() - 1))
    a("v_add_u32 v6, v6, v7")
    for i in range(4):
        a("v_add_u32 %s, %s, v6" % (v(GVB + i), hx(i * 16 * 2048)))
    for i in range(2):
        a("v_add_u32 %s, %s, v6" % (v(GVB2 + i), hx(((i + 2) * 16 + 192) * 2048)))
    a("s_lshl_b32 %s, %s, 4" % (s(T0), s(sCLS)))
    a("s_lshl_b32 %s, %s, 3" % (s(T1), s(sKH)))
    a("s_add_u32 %s, %s, %s" % (s(T0), s(T0), s(T1)))
    a("s_mul_i32 %s, %s, 49152" % (s(T1), s(T0)))
    a("s_add_u32 %s, %s, %s" % (s(T1), s(T1), hx(HR_OFF)))
    a("s_lshl_b32 %s, %s, 13" % (s(T2), s(T0)))
    a("s_add_u32 %s, %s, %s" % (s(T2), s(T2), hx(HL_OFF)))
    a("v_and_b32 v6, 64, v4")
    a("v_lshlrev_b32 v6, 7, v6")
    a("v_and_b32 v7, 48, v4")
    a("v_add_u32 v7, v7, v6")
    a("v_lshl_add_u32 v7, v5, 6, v7")
    a("v_add_u32 v7, %s, v7" % s(T1))
    for i in range(4):
        a("v_add_u32 %s, %d, v7" % (v(GVA + i), i * 32 * 64))
    a("v_and_b32 v7, 32, v4")
    a("v_lshl_add_u32 v6, v7, 7, v6")
    a("v_and_b32 v7, 16, v4")
    a("v_add_u32 v6, v6, v7")
    a("v_lshl_add_u32 v6, v5, 5, v6")
    a("v_add_u32 v6, %s, v6" % s(T2))
    for i in range(4):
        a("v_add_u32 %s, %d, v6" % (v(GVA2 + i), i * 32 * 32))
    a("s_cmp_gt_u32 %s, 8" % s(sCLS))
    a("s_cselect_b32 %s, -1, 0" % s(T0))
    a("s_sub_u32 %s, 16, %s" % (s(T2), s(sCLS)))
    a("s_cmp_gt_u32 %s, 8" % s(sCLS))
    a("s_cselect_b32 %s, %s, %s" % (s(T1), s(T2), s(sCLS)))
    a("s_lshl_b32 %s, %s, 19" % (s(T2), s(T1)))
    a("s_add_u32 %s, %s, %s" % (s(T2), s(T2), hx(ZT_OFF)))
    a("s_lshl_b32 %s, %s, 16" % (s(T3), s(T1)))
    a("s_add_u32 %s, %s, %s" % (s(T3), s(T3), hx(CP_OFF)))
    a("s_and_b32 %s, %s, 127" % (s(T4), s(T0)))
    for i in range(4):
        a("v_add_u32 v6, %d, v5" % (32 * i))
        a("v_xor_b32 v6, %s, v6" % s(T4))
        a("v_lshl_add_u32 v6, v6, 8, v4")
        a("v_add_u32 %s, %s, v6" % (v(GVC + i), s(T3)))
    a("s_lshl_b32 %s, %s, 6" % (s(T3), s(sNB8)))
    a("s_mul_i32 %s, %s, %d" % (s(T4), s(sKH), 64 * US()))
    a("s_add_u32 %s, %s, %s" % (s(T3), s(T3), s(T4)))
    for i in range(2):
        a("v_add_u32 v6, %d, v5" % (32 * i))
        a("v_add_u32 v6, %s, v6" % s(T3))
        a("v_xor_b32 v6, %s, v6" % s(T0))
        a("v_subrev_u32 v6, %s, v6" % s(T0))
        a("v_and_b32 v7, 3, v6")
        a("v_bfe_u32 v6, v6, 2, 8")
        a("v_lshl_add_u32 v6, v7, 8, v6")
        a("v_and_b32 v7, 48, v4")
        a("v_lshl_add_u32 v6, v6, 6, v7")
        a("v_and_b32 v7, 64, v4")
        a("v_lshl_add_u32 v6, v7, 10, v6")
        a("v_add_u32 %s, %s, v6" % (v(GVD + i), s(T2)))
    a("s_lshl_b32 %s, %s, 1" % (s(T3), s(T3)))
    a("s_lshl_b32 %s, %s, 11" % (s(T4), s(sCLS)))
    a("s_add_u32 %s, %s, %s" % (s(T3), s(T3), s(T4)))
    a("v_lshl_add_u32 v6, v5, 15, v4")
    a("v_add_u32 %s, %s, v6" % (v(GVX), s(T3)))
    a("s_and_b32 %s, %s, 7" % (s(T3), s(T1)))
    a("s_lshl_b32 %s, %s, 9" % (s(T3), s(T3)))
    a("s_add_u32 %s, %s, %s" % (s(T3), s(T3), hx(ZF_OFF - SF_OFF)))
    a("v_add_u32 %s, %s, v31" % (v(GZA), s(T3)))
    a("s_andn2_b32 %s, %s, 127" % (s(T2), s(sHF)))
    a("v_and_b32 v6, 31, v3")
    a("v_lshlrev_b32 v6, 2, v6")
    a("v_add_u32 %s, %s, v6" % (v(GHA), s(T2)))
    a("s_and_b32 %s, %s, %d" % (s(T2), s(sCB8), 0 if OPT.get("same") == "1" else 4))
    a("s_lshl_b32 %s, %s, 2" % (s(T2), s(T2)))
    a("s_lshl_b32 %s, 0xffff, %s" % (s(sMK), s(T2)))
    a("s_not_b32 %s, %s" % (s(sMK + 2), s(sMK)))
    a("s_mov_b32 %s, 0" % s(sMK + 1))
    a("s_mov_b32 %s, 0" % s(sMK + 3))


def loader_g2(a):
    a("s_add_u32 %s, %s, %d" % (s(sWRAP), s(sSL0), G2SLOT * 5))
    NT = NJ + NSOLO
    q = []

    def slot_of(st):
        a("s_add_u32 %s, %s, %d" % (s(sSLOT), s(sSL0), ((st + 4) % 5) * G2SLOT))

    def issue(st, want_a=True, want_b=True):
        slot_of(st)
        if st < NREG:
            breg = want_b and st < NRB()
            want_b = want_b and not breg
            if want_a or want_b:
                g2_koff(a, st, want_a, want_b)
            if want_a:
                for i in range(4):
                    dma(a, i * 4096, GVA + i, WS, sKA, coh=True)
            if want_b:
                for i in range(4):
                    dma(a, 16384 + i * 4096, GVB + i, W2, sKB)
            if breg:
                a("v_add_u32 v6, %s, %s" % (hx(((st + 4) % 5) * G2SLOT + 16384), v(GWA)))
                for i in range(4):
                    a("ds_write_b128 v6, %s offset:%d" % (v(RBB + 16 * st + 4 * i, 4), i * 4096))
            q.extend([st] * (4 * want_a + 4 * want_b))
        elif st < NJ:
            lam = st - NREG
            a("s_mov_b32 %s, %d" % (s(sKA), lam * 16384))
            a("s_mov_b32 %s, %d" % (s(sKB), (448 * lam + 192) * 2048))
            for i in range(4):
                dma(a, i * 4096, GVA2 + i, WS, sKA, coh=True)
            for i in range(2):
                dma(a, 16384 + i * 4096, GVB + i, W2, sKB)
            for i in range(2):
                dma(a, 16384 + (i + 2) * 4096, GVB2 + i, W2, sKB)
            q.extend([st] * 8)
        else:
            k = st - NJ
            a("s_add_u32 %s, %s, %d" % (s(sSLOT), s(sSL0), SOLOB + k * 24576))
            a("s_mov_b32 %s, %d" % (s(sKA), (k & 1) * 128 + (k >> 1) * 32768))
            a("s_mov_b32 %s, %d" % (s(sKB), (k & 1) * 131072 + (k >> 1) * 262144))
            for i in range(4):
                dma(a, i * 4096, GVC + i, WS, sKA, coh=True)
            for i in range(2):
                dma(a, 16384 + i * 4096, GVD + i, WS, sKB, coh=True)
            q.extend([st] * 6)

    def wait(*tags):
        idx = max(i for i, x in enumerate(q) if x in tags)
        a("s_waitcnt vmcnt(%d)" % (len(q) - idx - 1))
        del q[:idx + 1]

    assert NRB() == 0
    top = a.newlabel("pre"); got = a.newlabel("got"); nogot = a.newlabel("nogot"); slow = a.newlabel("slow"); got2 = a.newlabel("got2")
    a("s_mov_b32 %s, 0" % s(T6))
    a("s_mov_b32 %s, 0" % s(T7))
    if OPT.get("e0", "1") == "1":
        poll_issue(a, 29, GHA)
        issue(0, want_a=False)
        a("s_waitcnt vmcnt(4)")
        poll_test(a, 29, s(sMK, 2))
        a("s_cbranch_scc1 %s" % slow)
        mark(a, 9)
        issue(0, want_b=False)
        a("s_barrier")
        issue(1, want_a=False)
        issue(2, want_a=False)
        a("s_branch %s" % got2)
        a.label(slow)
    else:
        if OPT.get("e0") == "2" and OPT.get("e0p", "a") == "a":
            poll_issue(a, 29, GHA)
        issue(0, want_a=False)
    a("s_barrier")
    if OPT.get("e0") == "2" and OPT.get("e0p", "a") == "b":
        poll_issue(a, 29, GHA)
    issue(1, want_a=False)
    issue(2, want_a=False)
    if OPT.get("e0") == "2":
        a("s_waitcnt vmcnt(%d)" % (12 if OPT.get("e0p", "a") == "a" else 8))
        poll_test(a, 29, s(sMK, 2))
        a("s_cbranch_scc0 %s" % got)
    a.label(top)
    poll_issue(a, 29, GHA)
    a("s_waitcnt vmcnt(0)")
    a("s_add_u32 %s, %s, 1" % (s(T7), s(T7)))
    poll_test(a, 29, s(sMK, 2))
    a("s_cbranch_scc0 %s" % got)
    a("s_sleep 2")
    a("s_cmp_lt_u32 %s, %s" % (s(T7), OPT.get("np", "2")))
    a("s_cbranch_scc1 %s" % top)
    a("s_branch %s" % nogot)
    a.label(got)
    mark(a, 9)
    issue(0, want_b=False)
    a.label(got2)
    for st in range(1, 3):
        issue(st, want_b=False)
    poll_issue(a, 30, GHA, off=128)
    a("s_mov_b32 %s, 1" % s(T6))
    a.label(nogot)
    a("s_barrier")
    late = a.newlabel("late"); go = a.newlabel("go")
    a("s_cmp_eq_u32 %s, 0" % s(T6))
    a("s_cbranch_scc1 %s" % late)
    issue(3)
    a("s_waitcnt vmcnt(17)")
    a("s_barrier")
    a("s_waitcnt vmcnt(8)")
    poll_check(a, 30, GHA, s(sMK, 2), True, off=128)
    issue(4)
    a("s_branch %s" % go)
    a.label(late)
    for st in range(3, 5):
        issue(st, want_a=False)
    poll_check(a, 29, GHA, s(sMK, 2), False, n=2, stride=128)
    mark(a, 8)
    issue(0, want_b=False)
    issue(1, want_b=False)
    a("s_waitcnt vmcnt(4)")
    a("s_barrier")
    for st in range(2, 5):
        issue(st, want_b=False)
    a("s_waitcnt vmcnt(12)")
    a.label(go)
    del q[:]
    q.extend([1] + [2] * 4 + [3] * 4 + [4] * 4)
    poll_issue(a, 29, GHA, off=256); q.append("p1")
    nxt = 5
    a.skipdma = True
    for k in range(0, NJ):
        last_issue = min(k + 5, NT - 1) if k < NJ - 3 else NT - 1
        tags = [k + 1] if k < NJ - 1 else [NJ + 1]
        chk = None
        if nxt <= 8 <= last_issue:
            tags.append("p1"); chk = "h1"
        if nxt <= 12 <= last_issue:
            tags.append("p2"); chk = "h2"
        if nxt <= NJ <= last_issue:
            tags.append("p3"); chk = "z"
        fine(a)
        if k > 0:
            wait(*tags)
        else:
            q.remove(1)
        if chk == "h1":
            poll_check(a, 29, GHA, s(sMK, 2), True, off=256)
        elif chk == "h2":
            poll_check(a, 29, GHA, s(sMK + 2, 2), True, off=256)
        elif chk is not None:
            a("s_mov_b32 %s, -1" % s(sMK))
            poll_check(a, 29, GZA, s(sMK, 2), True)
        fine(a)
        a("s_barrier")
        while nxt <= last_issue:
            issue(nxt); nxt += 1
        PD = int(OPT.get("pd", "9"))
        if PD and k + 5 + PD < NJ:
            w2_prefetch(a, [2 * (k + 5 + PD), 2 * (k + 5 + PD) + 1])
        if k == int(OPT.get("zk", "6")):
            flag_store(a, "z")
        if k in (int(OPT.get("cr2", "9")), int(OPT.get("cr3", "17"))):
            code_refresh(a, q)
        if k == int(OPT.get("xk", "12")):
            for i in range(4):
                a("s_mov_b32 %s, %d" % (s(T0), i * 32 * 32768))
                a("buffer_load_dwordx4 %s, %s, %s, %s offen" % (v(100 + 4 * i, 4), v(GVX), s(XS, 4), s(T0)))
            q.extend(["x"] * 4)
        if k == NJ - 2:
            assert (k + 4) % 5 * G2SLOT == XL and "x" not in q
            a("v_add_u32 v7, %d, %s" % (XL, v(GWA)) if XL else "v_mov_b32 v7, %s" % v(GWA))
            for i in range(4):
                a("ds_write_b128 v7, %s offset:%d" % (v(100 + 4 * i, 4), i * 4096))
        if k == 3:
            poll_issue(a, 29, GHA, off=256); q.append("p2")
        if k == NJ - 9:
            poll_issue(a, 29, GZA); q.append("p3")
    assert (NJ - 1 + 4) % 5 * G2SLOT == RXL
    RX = 64
    a("s_lshl_b32 %s, s2, 15" % s(T0))
    a("s_lshl_b32 %s, %s, 13" % (s(T1), s(sL)))
    a("s_add_u32 %s, %s, %s" % (s(T0), s(T0), s(T1)))
    a("s_add_u32 %s, %s, %s" % (s(T0), s(T0), hx(EX_OFF)))
    a("v_lshlrev_b32 v6, 4, v3")
    a("v_add_u32 v24, %s, v6" % s(T0))
    a("v_add_u32 v25, 4096, v24")
    a("s_add_u32 %s, %s, %d" % (s(T1), s(T1), RXL))
    a("v_add_u32 v6, %s, v6" % s(T1))
    a("v_mov_b32 v28, 0xff")
    a("v_mov_b32 v31, %s" % s(sTAG))
    wait(NT - 1)
    a("s_barrier")
    a("s_barrier")
    top = a.newlabel("rx"); ok = a.newlabel("rxok")
    a("s_mov_b32 %s, 0" % s(T7))
    a.label(top)
    for i in range(8):
        a("buffer_load_dwordx4 %s, %s, %s, 0 offen offset:%d sc1" % (v(RX + 4 * i, 4), "v25" if i >= 4 else "v24", s(WS, 4), (i & 3) * 1024))
    a("s_waitcnt vmcnt(0)")
    a("v_or3_b32 v26, %s, %s, %s" % (v(RX), v(RX + 1), v(RX + 2)))
    a("v_bitop3_b32 v27, %s, %s, %s bitop3:0x80" % (v(RX), v(RX + 1), v(RX + 2)))
    for i in range(3, 31, 2):
        a("v_or3_b32 v26, v26, %s, %s" % (v(RX + i), v(RX + i + 1)))
        a("v_bitop3_b32 v27, v27, %s, %s bitop3:0x80" % (v(RX + i), v(RX + i + 1)))
    a("v_or_b32 v26, v26, %s" % v(RX + 31))
    a("v_and_b32 v27, v27, %s" % v(RX + 31))
    a("v_xor_b32 v26, v26, v31")
    a("v_xor_b32 v27, v27, v31")
    a("v_or_b32 v26, v26, v27")
    a("v_and_b32 v26, v26, v28")
    a("v_cmp_ne_u32 vcc, 0, v26")
    a("s_add_u32 %s, %s, 1" % (s(T7), s(T7)))
    a("s_nop 3")
    a("s_cbranch_vccz %s" % ok)
    a("s_sleep 2")
    a("s_cmp_lt_u32 %s, %d" % (s(T7), SPIN_MAX))
    a("s_cbranch_scc1 %s" % top)
    a.label(ok)
    for i in range(8):
        for j in range(4):
            a("v_bfi_b32 %s, v28, 0, %s" % (v(RX + 4 * i + j), v(RX + 4 * i + j)))
        a("ds_write_b128 v6, %s offset:%d" % (v(RX + 4 * i, 4), i * 1024))
    mark(a, 11, T7)
    fine_dump(a, 1)
    a("s_waitcnt lgkmcnt(0)")
    a("s_barrier")
    a("s_endpgm")


HEADER = """; Kernarg layout (88 bytes, ptrs only, base s[0:1]): 0 A_x, 8 dft_seq_re, 16 dft_seq_im, 24 dft_hid_re,
"""


def main():
    global STAMP
    args = sys.argv[1:]
    global FINE, NSGPR
    if "--fine" in args:
        FINE = True; NSGPR = 102; args.remove("--fine")
    if "--stamp" in args:
        STAMP = True; args.remove("--stamp")
    for x in list(args):
        if x.startswith("--") and "=" in x:
            k, val = x[2:].split("="); OPT[k] = val; args.remove(x)
    a = Asm()
    a.raw(HEADER.rstrip("\n"))
    nv = 256
    a.raw("; @launch grid=(256,1,1) block=(512,1,1) lds=163840")
    a.raw('.amdgcn_target "amdgcn-amd-amdhsa--gfx950"')
    a.raw(".text")
    name = NAME + "_kernel"
    kernel_header(a, name)
    prologue(a, "L_end")
    if FINE:
        a("s_mov_b32 s100, 0")
        a("v_mov_b32 v250, 0")
    mark(a, 0)
    a("s_cmp_ge_u32 %s, 4" % s(sWAVE))
    a("s_cbranch_scc1 L_loader")
    compute_setup(a)
    a("s_barrier")
    prep_ln(a)
    a("s_waitcnt lgkmcnt(0)")
    tag_ready(a)
    a("v_mov_b32 v29, %d" % SYNC)
    a("v_mov_b32 v30, 1")
    a("s_mov_b64 exec, 1")
    a("ds_add_u32 v29, v30")
    a("s_mov_b64 exec, -1")
    a("s_mov_b32 %s, 0" % s(T7))
    a.label("L_sync")
    a("ds_read_b32 v30, v29")
    a("s_add_u32 %s, %s, 1" % (s(T7), s(T7)))
    a("s_waitcnt lgkmcnt(0)")
    a("v_readfirstlane_b32 %s, v30" % s(T6))
    a("s_cmp_ge_u32 %s, %d" % (s(T7), SPIN_MAX))
    a("s_cbranch_scc1 L_synced")
    a("s_cmp_lt_u32 %s, 4" % s(T6))
    a("s_cbranch_scc1 L_sync")
    a.label("L_synced")
    if OPT.get("sst") == "1":
        mark(a, 30)
    dft = prep_dft(a)
    dft(0)
    a("s_waitcnt lgkmcnt(0)")
    dft(1)
    if OPT.get("sst") == "1":
        mark(a, 31)
    dft(3)
    compute_g1_s1(a)
    compute_g2(a)
    a.label("L_loader")
    if OPT.get("lprio", "0") != "0":
        a("s_setprio %s" % OPT.get("lprio", "0"))
    loader_setup(a)
    loader_g1_s1(a)
    loader_g2(a)
    a.label("L_end")
    a("s_endpgm")
    a.raw('.section .rodata,"a"')
    a.raw(kernel_desc(name, nv, NSGPR).rstrip("\n"))
    out = args[0] if args else "cdna_kernels/%s.s" % NAME
    open(out, "w").write(a.text())


if __name__ == "__main__":
    main()
```

```python
import math, struct, sys

NAME = "recurrent_scan__spectral_fnet__dense_activation_silu__prompt"

CS_OFF = 0x0000000
STAT_OFF = 0x0040000
HF_OFF = 0x0060000
SF_OFF = 0x0052000
ZF_OFF = 0x0054000
EP_OFF = 0x0058000
CP_OFF = 0x0100000
DP_OFF = 0x0200000
CB_OFF = 0x0400000
ZT_OFF = 0x0800000
HR_OFF = 0x0D00000
HL_OFF = 0x1900000
EX_OFF = 0x1C00000
STAMP_OFF = 0x4000000
WS_SZ = 0x10000000

STAMP = False
SC1 = " sc1"
SPIN_MAX = 200000
OPT = {}

G1SLOT = 45056
G2SLOT = 32768
STG = 143360
CSP = 135168
CSB = 161792
STB = 162816
S1SLOTS = [0, 32768, 65536, 98304]

sWAVE, sXCD, sLOC, sRB, sCB, sTAU, sCLS, sCB8, sKH = 3, 4, 5, 6, 7, 8, 9, 10, 11
sWM, sWN, sSLOT, sCNT = 12, 13, 14, 15
sL = 12
T0, T1, T2, T3, T4, T5, T6, T7 = 16, 17, 18, 19, 20, 21, 22, 23
sNB8 = 39
sTAG, sMK = 38, 76
sSP, sHALF, sHF = 26, 27, 28
WS, W1, DR, DI, W2, CR, CI, XS, OUT, DBG = 40, 44, 48, 52, 56, 60, 64, 68, 72, 76
sNL2E, sHI = 80, 82
C1, C2, C3 = 84, 86, 88
sKA, sKB, sWRAP, sSL0, sP3 = 90, 91, 92, 93, 94
NSGPR = 100


def f32(x):
    return struct.unpack("<I", struct.pack("<f", x))[0]


def hx(x):
    return "0x%x" % (x & 0xFFFFFFFF)


def v(i, n=1):
    return "v%d" % i if n == 1 else "v[%d:%d]" % (i, i + n - 1)


def s(i, n=1):
    return "s%d" % i if n == 1 else "s[%d:%d]" % (i, i + n - 1)


class Asm:
    def __init__(self):
        self.lines = []
        self.uid = 0

    def __call__(self, txt):
        self.lines.append("    " + txt)

    def label(self, l):
        self.lines.append(l + ":")

    def newlabel(self, p):
        self.uid += 1
        return "L_%s_%d" % (p, self.uid)

    def c(self, txt):
        self.lines.append("    ; " + txt)

    def raw(self, txt):
        self.lines.append(txt)

    def all(self, lst):
        for x in lst:
            self(x)

    def text(self):
        return "\n".join(self.lines) + "\n"


def srd(a, dst, ptr, off, size):
    if off:
        a("s_add_u32 %s, %s, %s" % (s(dst), s(ptr), hx(off)))
        a("s_addc_u32 %s, %s, 0" % (s(dst + 1), s(ptr + 1)))
    else:
        a("s_mov_b32 %s, %s" % (s(dst), s(ptr)))
        a("s_mov_b32 %s, %s" % (s(dst + 1), s(ptr + 1)))
    a("s_mov_b32 %s, %s" % (s(dst + 2), hx(size)))
    a("s_mov_b32 %s, 0x20000" % s(dst + 3))


def kernel_header(a, name):
    a.raw(".globl %s" % name)
    a.raw(".p2align 8")
    a.raw(".type %s,@function" % name)
    a.label(name)


def kernel_desc(name, vgpr, sgpr):
    acc = (vgpr + 3) // 4 * 4
    return "\n".join([
        ".p2align 6",
        ".amdhsa_kernel %s" % name,
        "  .amdhsa_next_free_vgpr %d" % vgpr,
        "  .amdhsa_next_free_sgpr %d" % sgpr,
        "  .amdhsa_accum_offset %d" % acc,
        "  .amdhsa_group_segment_fixed_size 0",
        "  .amdhsa_kernarg_size 88",
        "  .amdhsa_user_sgpr_count 2",
        "  .amdhsa_user_sgpr_kernarg_segment_ptr 1",
        "  .amdhsa_system_sgpr_workgroup_id_x 1",
        ".end_amdhsa_kernel",
    ]) + "\n"


NEG1 = " neg_lo:[0,1] neg_hi:[0,1]"


def smod(kind):
    return OPT.get(kind + "mod", "_sc1").replace("_", " ")


def mark(a, idx, extra=None):
    if idx == 0 and not getattr(a, "dt0", False):
        a.dt0 = True
        dbgt(a, 15, neg=True)
        dbgt(a, 0)
    elif idx in (3, 4, 5, 6, 7, 10, 11, 13) and extra is None:
        dbgt(a, idx)
    elif idx == 14:
        dbgt(a, 14, few=False)
    if not STAMP:
        return
    lab = a.newlabel("nost")
    a("s_and_b32 s96, %s, 3" % s(sWAVE))
    a("s_cmp_lg_u32 s96, 0")
    a("s_cbranch_scc1 %s" % lab)
    a("s_memrealtime s[96:97]")
    a("s_memtime s[98:99]")
    a("s_waitcnt lgkmcnt(0)")
    r0 = 252 if idx in (0, 28, 29, 30, 31) else 0
    a("v_mov_b32 %s, s96" % v(r0))
    a("v_mov_b32 %s, %s" % (v(r0 + 1), "s98" if extra is None else s(extra)))
    a("s_lshl_b32 s96, s2, 8")
    a("s_lshl_b32 s97, %s, 5" % s(sWAVE))
    a("s_add_u32 s96, s96, s97")
    a("s_add_u32 s96, s96, %s" % hx(STAMP_OFF + idx * 8))
    a("v_mov_b32 %s, s96" % v(r0 + 2))
    a("buffer_store_dwordx2 %s, %s, %s, 0 offen" % (v(r0, 2), v(r0 + 2), s(WS, 4)))
    a.label(lab)


FINE = False


def dbgt(a, idx, neg=False, few=True):
    if OPT.get("dbgt") != "1":
        return
    lab = a.newlabel("nodt")
    a("s_cmp_lg_u32 %s, 0" % s(sWAVE))
    a("s_cbranch_scc1 %s" % lab)
    if few:
        a("s_cmp_ge_u32 s2, 8")
        a("s_cbranch_scc1 %s" % lab)
    a("s_memrealtime s[96:97]")
    a("s_waitcnt lgkmcnt(0)")
    if neg:
        a("s_not_b32 s96, s96")
    a("v_mov_b32 v252, s96")
    a("v_mov_b32 v253, %d" % (4 * idx))
    a("s_mov_b64 exec, 1")
    a("global_atomic_umax v253, v252, s[34:35] sc1")
    a("s_mov_b64 exec, -1")
    a.label(lab)


def fine(a):
    if not FINE:
        return
    a("s_memtime s[98:99]")
    a("s_waitcnt lgkmcnt(0)")
    a("s_mov_b32 m0, s100")
    a("s_nop 0")
    a("v_writelane_b32 v250, s98, m0")
    a("s_add_u32 s100, s100, 1")


def fine_dump(a, slot):
    if not FINE:
        return
    a("s_lshl_b32 s96, s2, 11")
    a("s_lshl_b32 s97, %s, 8" % s(sWAVE))
    a("s_add_u32 s96, s96, s97")
    a("s_add_u32 s96, s96, %s" % hx(STAMP_OFF + 0x100000 * (1 + slot)))
    a("v_lshlrev_b32 v251, 2, v3")
    a("buffer_store_dword v250, v251, %s, s96 offen" % s(WS, 4))
    a("s_mov_b32 s100, 0")
    a("s_nop 1")
    a("v_mov_b32 v250, 0")


def interleave(a, main, fill, per=1, start=0):
    fi = 0
    for i, m in enumerate(main):
        a(m)
        if i >= start:
            for _ in range(per):
                if fi < len(fill):
                    a(fill[fi]); fi += 1
    while fi < len(fill):
        a(fill[fi]); fi += 1


def mfma(d, sa, sb, c=None):
    return "v_mfma_f32_16x16x32_bf16 %s, %s, %s, %s" % (v(d, 4), v(sa, 4), v(sb, 4), v(d, 4) if c is None else c)


def prologue(a, endlab):
    a("s_cmp_ge_u32 s2, 256")
    a("s_cbranch_scc1 %s" % endlab)
    if OPT.get("cpf", "1") == "1":
        a("s_getpc_b64 s[96:97]")
        a.label("L_pc")
        a("s_lshr_b32 s98, s2, 3")
        a("s_lshl_b32 s98, s98, 13")
        a("v_lshl_add_u32 v2, v0, 4, s98")
        a("v_cmp_gt_u32 vcc, L_end-L_pc, v2")
        a("s_and_saveexec_b64 s[98:99], vcc")
        a("s_cbranch_execz L_nocpf")
        a("global_load_dwordx4 v[244:247], v2, s[96:97]")
        a.label("L_nocpf")
        a("s_mov_b64 exec, -1")
    a("s_load_dwordx16 s[16:31], s[0:1], 0")
    a("s_load_dwordx4 s[32:35], s[0:1], 64")
    a("s_load_dwordx2 s[36:37], s[0:1], 80")
    a("v_lshrrev_b32 v1, 6, v0")
    a("v_and_b32 v3, 63, v0")
    a("s_and_b32 %s, s2, 7" % s(sXCD))
    a("s_lshr_b32 %s, s2, 3" % s(sLOC))
    a("v_readfirstlane_b32 %s, v1" % s(sWAVE))
    a("s_and_b32 s6, s4, 1"); a("s_lshl_b32 s6, s6, 3"); a("s_and_b32 s7, s5, 7"); a("s_add_u32 s6, s6, s7")
    a("s_lshr_b32 s7, s4, 1"); a("s_lshl_b32 s7, s7, 2"); a("s_lshr_b32 s8, s5, 3"); a("s_add_u32 s7, s7, s8")
    a("s_lshl_b32 s8, s4, 5"); a("s_add_u32 s8, s8, s5")
    a("s_mov_b32 s9, s6")
    a("s_lshr_b32 s11, s7, 3")
    a("s_and_b32 s10, s7, 7")
    a("s_mov_b32 %s, %s" % (s(sNL2E), hx(f32(-1.4426950408889634))))
    a("s_mov_b32 %s, %s" % (s(sNL2E + 1), hx(f32(-1.4426950408889634))))
    a("s_mov_b32 %s, 0xffff0000" % s(sHI))
    a("s_lshr_b32 s38, %s, 1" % s(sTAU))
    a("s_and_b32 s39, %s, 1" % s(sTAU))
    a("v_lshlrev_b32 v26, 18, v1")
    a("v_and_b32 v27, 31, v3")
    a("v_lshl_add_u32 v26, v27, 3, v26")
    a("v_lshrrev_b32 v27, 5, v3")
    a("v_lshl_add_u32 v26, v27, 9, v26")
    a("s_lshl_b32 s95, s38, 11")
    a("v_add_u32 v26, s95, v26")
    a("s_lshl_b32 s95, s39, 8")
    a("v_add_u32 v26, s95, v26")
    a("v_xor_b32 v27, 0x100, v26")
    a("v_mov_b32 v28, %d" % SYNC)
    a("v_mov_b32 v29, 0")
    a("ds_write_b32 v28, v29")
    a("s_waitcnt lgkmcnt(0)")
    srd(a, XS, 16, 0, 2048 * 1024 * 2)
    a("s_cmp_ge_u32 %s, 4" % s(sWAVE))
    a("s_cbranch_scc1 L_nox")
    for ri, B in enumerate(RAWB):
        a("s_mov_b32 s95, %s" % hx(ri * 0x100000))
        for hh in range(2):
            for jj in range(2):
                a("buffer_load_dwordx2 %s, %s, %s, s95 offen offset:%d" % (
                    v(B + 4 * hh + 2 * jj, 2), "v27" if hh else "v26", s(XS, 4), 1024 * jj))
    a.label("L_nox")
    srd(a, WS, 36, 0, WS_SZ)
    srd(a, W1, 28, 0, 1024 * 3584 * 2)
    srd(a, DR, 22, 0, 1024 * 1024 * 2)
    srd(a, DI, 24, 0, 1024 * 1024 * 2)
    srd(a, W2, 30, 0, 3584 * 1024 * 2)
    srd(a, CR, 18, 0, 2048 * 2048 * 2)
    srd(a, CI, 20, 0, 2048 * 2048 * 2)
    srd(a, OUT, 32, 0, 2048 * 1024 * 2)
    a("s_mov_b32 %s, s38" % s(sSP))
    a("s_mov_b32 %s, s39" % s(sHALF))
    a("s_lshl_b32 %s, %s, 4" % (s(sHF), s(sRB)))
    a("s_add_u32 %s, %s, %s" % (s(sHF), s(sHF), s(sCB)))
    a("s_lshr_b32 s95, %s, 3" % s(sHF))
    a("s_lshl_b32 s95, s95, 9")
    a("s_lshl_b32 %s, %s, 2" % (s(sHF), s(sCB8)))
    a("s_add_u32 %s, %s, %s" % (s(sHF), s(sHF), s(sWAVE)))
    a("s_lshl_b32 %s, %s, 2" % (s(sHF), s(sHF)))
    a("s_and_b32 %s, %s, 127" % (s(sHF), s(sHF)))
    a("s_add_u32 %s, %s, s95" % (s(sHF), s(sHF)))
    a("s_add_u32 %s, %s, %s" % (s(sHF), s(sHF), hx(HF_OFF)))
    if US() == 1:
        a("s_lshl_b32 %s, %s, 1" % (s(sNB8), s(sCB8)))
    elif US() == 2:
        a("s_and_b32 s95, %s, 1" % s(sCB8))
        a("s_lshr_b32 %s, %s, 1" % (s(sNB8), s(sCB8)))
        a("s_lshl_b32 %s, %s, 2" % (s(sNB8), s(sNB8)))
        a("s_add_u32 %s, %s, s95" % (s(sNB8), s(sNB8)))
    else:
        a("s_and_b32 s95, %s, 3" % s(sCB8))
        a("s_lshr_b32 %s, %s, 2" % (s(sNB8), s(sCB8)))
        a("s_lshl_b32 %s, %s, 3" % (s(sNB8), s(sNB8)))
        a("s_add_u32 %s, %s, s95" % (s(sNB8), s(sNB8)))
    a("s_load_dword %s, s[36:37], %s" % (s(sTAG), hx(EP_OFF)))


def US():
    return int(OPT.get("us", "1"))


ROWB = [32, 76]
RAWB = [32, 76, 240, 120]


def tag_ready(a):
    a("s_add_u32 %s, %s, 0x9e3779b9" % (s(sTAG), s(sTAG)))


def flag_store(a, kind, wave=4):
    lab = a.newlabel("nf")
    a("s_cmp_lg_u32 %s, %d" % (s(sWAVE), wave))
    a("s_cbranch_scc1 %s" % lab)
    if kind == "h":
        a("v_mov_b32 v2, %s" % s(sHF))
    elif kind == "epoch":
        a("s_cmp_lg_u32 s2, 0")
        a("s_cbranch_scc1 %s" % lab)
        a("v_mov_b32 v2, %s" % hx(EP_OFF))
    else:
        idx = "s2" if kind == "s" else s(sTAU)
        a("s_lshr_b32 s96, %s, 3" % idx)
        a("s_lshl_b32 s96, s96, 7")
        a("s_and_b32 s97, %s, 7" % idx)
        a("s_lshl_b32 s97, s97, 2")
        a("s_add_u32 s96, s96, s97")
        a("s_add_u32 s96, s96, %s" % hx(SF_OFF if kind == "s" else ZF_OFF))
        a("v_mov_b32 v2, s96")
    a("v_mov_b32 v1, %s" % s(sTAG))
    a("s_mov_b64 exec, 1")
    a("buffer_store_dword v1, v2, %s, 0 offen sc1" % s(WS, 4))
    a("s_mov_b64 exec, -1")
    a("s_nop 3")
    a.label(lab)


def poll_issue(a, vdst, vaddr, n=1, off=0, stride=1024):
    for i in range(n):
        a("buffer_load_dword %s, %s, %s, 0 offen offset:%d sc1" % (v(vdst + i), v(vaddr), s(WS, 4), off + i * stride))


def hflag(a, phase, n):
    a("v_mov_b32 v1, %s" % s(sTAG))
    a("v_mov_b32 v2, %s" % s(sHF))
    a("s_waitcnt vmcnt(%d)" % n)
    a("s_mov_b64 exec, 1")
    a("buffer_store_dword v1, v2, %s, 0 offen offset:%d sc1" % (s(WS, 4), phase * 128))
    a("s_mov_b64 exec, -1")


def poll_test(a, vdst, mask, n=1):
    a("v_cmp_ne_u32 vcc, %s, %s" % (s(sTAG), v(vdst)))
    for i in range(1, n):
        a("v_cmp_ne_u32 s[96:97], %s, %s" % (s(sTAG), v(vdst + i)))
        a("s_or_b64 vcc, vcc, s[96:97]")
    a("s_nop 0")
    a("s_and_b64 vcc, vcc, %s" % mask)


def poll_check(a, vdst, vaddr, mask, issued, n=1, off=0, stride=1024):
    top = a.newlabel("poll"); done = a.newlabel("pdone"); chk = a.newlabel("pchk")
    a("s_mov_b32 %s, 0" % s(T7))
    if issued:
        a("s_branch %s" % chk)
    a.label(top)
    poll_issue(a, vdst, vaddr, n, off, stride)
    a("s_waitcnt vmcnt(0)")
    a.label(chk)
    a("s_add_u32 %s, %s, 1" % (s(T7), s(T7)))
    poll_test(a, vdst, mask, n)
    a("s_cbranch_scc0 %s" % done)
    a("s_sleep %s" % OPT.get("sleep", "4"))
    a("s_cmp_lt_u32 %s, %d" % (s(T7), SPIN_MAX))
    a("s_cbranch_scc1 %s" % top)
    a.label(done)


def prep_ln(a):
    a("v_lshlrev_b32 v31, 8, v1")
    a("v_and_b32 v2, 31, v3")
    a("v_lshl_add_u32 v31, v2, 3, v31")
    a("v_lshrrev_b32 v2, 5, v3")
    a("v_lshl_add_u32 v31, v2, 12, v31")
    a("v_add_u32 v31, %d, v31" % STG)
    a("s_and_b32 %s, %s, 15" % (s(T0), s(sSP)))
    a("s_lshl_b32 %s, %s, 7" % (s(T0), s(T0)))
    a("s_lshr_b32 %s, %s, 4" % (s(T1), s(sSP)))
    a("s_add_u32 %s, %s, %s" % (s(T0), s(T0), s(T1)))
    a("s_lshl_b32 %s, %s, 3" % (s(T1), s(sWAVE)))
    a("s_add_u32 %s, %s, %s" % (s(T0), s(T0), s(T1)))
    a("s_lshl_b32 %s, %s, 3" % (s(T0), s(T0)))
    a("s_add_u32 %s, %s, %s" % (s(T0), s(T0), hx(STAT_OFF)))
    a("v_mov_b32 v2, %s" % s(T0))
    for ps in range(2):
        a("s_waitcnt vmcnt(%d)" % (8 if ps == 0 else 0))
        if OPT.get("sst") == "1":
            mark(a, 28 + ps)
        prep_ln_pass(a, ps)
    lab = a.newlabel("nostat")
    a("s_cmp_lg_u32 %s, 0" % s(sHALF))
    a("s_cbranch_scc1 %s" % lab)
    a("s_mov_b64 exec, 1")
    for ri in range(4):
        a("buffer_store_dwordx2 %s, v2, %s, 0 offen offset:%d%s" % (v(ROWB[ri & 1] + 32 * (ri >> 1), 2), s(WS, 4), ri * 256, SC1))
    a("s_mov_b64 exec, -1")
    a.label(lab)


def prep_ln_pass(a, ps):
    streams = []
    for rj, B in enumerate(ROWB):
        ri = 2 * ps + rj
        RAW, X, T, M, R, D = RAWB[ri], B + 8, B + 24, B + 32, B + 34, B + 36
        S1, S2 = (T5, T6) if rj == 0 else (24, 25)
        L = []
        for p in range(8):
            L.append("v_lshlrev_b32 %s, 16, %s" % (v(X + 2 * p), v(RAW + p)))
            L.append("v_and_b32 %s, %s, %s" % (v(X + 2 * p + 1), s(sHI), v(RAW + p)))
        pk = lambda d, x, y, m="": L.append("v_pk_add_f32 %s, %s, %s%s" % (v(d, 2), v(x, 2), v(y, 2), m))

        def wsum(r, sd):
            for m in ("quad_perm:[1,0,3,2] row_mask:0xf", "quad_perm:[2,3,0,1] row_mask:0xf",
                      "row_half_mirror row_mask:0xf", "row_mirror row_mask:0xf",
                      "row_bcast:15 row_mask:0xa", "row_bcast:31 row_mask:0xc"):
                L.append("s_nop 0")
                L.append("v_add_f32_dpp %s, %s, %s %s bank_mask:0xf" % (v(r), v(r), v(r), m))
            L.append("s_nop 0")
            L.append("v_readlane_b32 %s, %s, 63" % (s(sd), v(r)))
            L.append("s_nop 0")
        pk(T, X, X + 2); pk(T + 2, X + 4, X + 6); pk(T + 4, X + 8, X + 10); pk(T + 6, X + 12, X + 14)
        pk(T, T, T + 2); pk(T + 4, T + 4, T + 6); pk(T, T, T + 4)
        L.append("v_add_f32 %s, %s, %s" % (v(T), v(T), v(T + 1)))
        wsum(T, S1)
        L.append("v_mov_b32 %s, %s" % (v(M), hx(f32(1.0 / 1024))))
        L.append("v_mul_f32 %s, %s, %s" % (v(M), s(S1), v(M)))
        for g4 in range(2):
            for p in range(4):
                pk(D + 2 * p, X + 8 * g4 + 2 * p, M, " op_sel_hi:[1,0]" + NEG1)
            for p in range(4):
                t = T + 2 * (p & 1)
                if g4 == 0 and p < 2:
                    L.append("v_pk_mul_f32 %s, %s, %s" % (v(t, 2), v(D + 2 * p, 2), v(D + 2 * p, 2)))
                else:
                    L.append("v_pk_fma_f32 %s, %s, %s, %s" % (v(t, 2), v(D + 2 * p, 2), v(D + 2 * p, 2), v(t, 2)))
        pk(T, T, T + 2)
        L.append("v_add_f32 %s, %s, %s" % (v(T), v(T), v(T + 1)))
        wsum(T, S2)
        L.append("v_mov_b32 %s, %s" % (v(R), hx(f32(1.0 / 1024))))
        L.append("v_mul_f32 %s, %s, %s" % (v(R), s(S2), v(R)))
        L.append("v_cvt_pk_bf16_f32 %s, %s, %s" % (v(R), v(R), v(R)))
        L.append("v_lshlrev_b32 %s, 16, %s" % (v(R), v(R)))
        L.append("v_add_f32 %s, %s, %s" % (v(R), hx(f32(1e-5)), v(R)))
        L.append("v_cvt_pk_bf16_f32 %s, %s, %s" % (v(R), v(R), v(R)))
        L.append("v_lshlrev_b32 %s, 16, %s" % (v(R), v(R)))
        L.append("v_sqrt_f32 %s, %s" % (v(R), v(R)))
        L.append("v_cvt_pk_bf16_f32 %s, %s, %s" % (v(M), v(M), v(M)))
        L.append("v_cvt_pk_bf16_f32 %s, %s, %s" % (v(R), v(R), v(R)))
        L.append("v_lshlrev_b32 %s, 16, %s" % (v(M), v(M)))
        L.append("v_lshlrev_b32 %s, 16, %s" % (v(R), v(R)))
        L.append("v_rcp_f32 %s, %s" % (v(R), v(R)))
        for p in range(4):
            pk(D + 2 * p, X + 2 * p, M, " op_sel_hi:[1,0]" + NEG1)
        if ps == 0:
            L.append("v_mov_b32 %s, %s" % (v(B), v(M)))
            L.append("v_mov_b32 %s, %s" % (v(B + 1), v(R)))
        else:
            L.append("v_mov_b32 %s, %s" % (v(M + 1), v(R)))
        for p in range(4):
            L.append("v_cvt_pk_bf16_f32 %s, %s, %s" % (v(T + p), v(D + 2 * p), v(D + 2 * p + 1)))
        for p in range(4):
            L.append("v_lshlrev_b32 %s, 16, %s" % (v(D + 2 * p), v(T + p)))
            L.append("v_and_b32 %s, %s, %s" % (v(D + 2 * p + 1), s(sHI), v(T + p)))
        for p in range(4):
            L.append("v_pk_mul_f32 %s, %s, %s op_sel_hi:[1,0]" % (v(D + 2 * p, 2), v(D + 2 * p, 2), v(R, 2)))
        for p in range(4):
            L.append("v_cvt_pk_bf16_f32 %s, %s, %s" % (v(T + p), v(D + 2 * p), v(D + 2 * p + 1)))
        for p in range(4):
            L.append("v_lshlrev_b32 %s, 16, %s" % (v(X + 2 * p), v(T + p)))
            L.append("v_and_b32 %s, %s, %s" % (v(X + 2 * p + 1), s(sHI), v(T + p)))
        pk(D, X, X + 4); pk(D + 2, X + 2, X + 6)
        pk(D + 4, X, X + 4, NEG1); pk(D + 6, X + 2, X + 6, NEG1)
        for p in range(4):
            L.append("v_cvt_pk_f16_f32 %s, %s, %s" % (v(T + p), v(D + 2 * p), v(D + 2 * p + 1)))
        for wh in range(2):
            L.append("ds_write_b64 v31, %s offset:%d" % (v(T + 2 * wh, 2), wh * 8192 + ri * 1024))
        streams.append(L)
    for x, y in zip(*streams):
        a(x); a(y)


def prep_dft(a0):
    a = Asm()
    a("s_lshr_b32 %s, %s, 1" % (s(T0), s(sWAVE)))
    a("s_lshl_b32 %s, %s, 13" % (s(T1), s(T0)))
    a("s_add_u32 %s, %s, %d" % (s(T1), s(T1), STG))
    a("v_lshlrev_b32 v122, 2, v3")
    a("v_add_u32 v122, %s, v122" % s(T1))
    IN = [32, 48]
    for ab in range(2):
        for j in range(8):
            a("ds_read2st64_b32 %s, v122 offset0:%d offset1:%d" % (v(IN[ab] + 2 * j, 2), ab * 16 + j, ab * 16 + j + 8))
    a("s_lshl_b32 %s, %s, 9" % (s(T1), s(sSP)))
    a("s_lshl_b32 %s, %s, 8" % (s(T2), s(sHALF)))
    a("s_add_u32 %s, %s, %s" % (s(T1), s(T1), s(T2)))
    a("s_lshl_b32 %s, %s, 17" % (s(T2), s(T0)))
    a("s_add_u32 %s, %s, %s" % (s(T1), s(T1), s(T2)))
    a("s_add_u32 %s, %s, %s" % (s(T1), s(T1), hx(CB_OFF)))
    a("v_lshlrev_b32 v123, 2, v3")
    a("v_add_u32 v123, %s, v123" % s(T1))
    for r_, val in ((C1, math.cos(math.pi / 8)), (C2, math.cos(math.pi / 4)), (C3, math.cos(3 * math.pi / 8))):
        a("s_mov_b32 %s, %s" % (s(r_), hx(f32(val))))
        a("s_mov_b32 %s, %s" % (s(r_ + 1), hx(f32(val))))
    head = a.lines
    var = {}
    for parity in range(2):
        free = list(range(64, 120, 2))
        alloc = lambda: free.pop(0)

        def rel(*rs):
            free.extend(rs)

        def add(x, y):
            d = alloc(); a("v_pk_add_f32 %s, %s, %s" % (v(d, 2), v(x, 2), v(y, 2))); return d

        def sub(x, y):
            d = alloc(); a("v_pk_add_f32 %s, %s, %s%s" % (v(d, 2), v(x, 2), v(y, 2), NEG1)); return d

        def mul(x, c):
            d = alloc(); a("v_pk_mul_f32 %s, %s, %s" % (v(d, 2), v(x, 2), s(c, 2))); return d

        def fma(x, c, y, nx=False, ny=False):
            d = alloc()
            mod = " neg_lo:[%d,0,%d] neg_hi:[%d,0,%d]" % (nx, ny, nx, ny) if (nx or ny) else ""
            a("v_pk_fma_f32 %s, %s, %s, %s%s" % (v(d, 2), v(x, 2), s(c, 2), v(y, 2), mod)); return d

        def mix(r, neg):
            d = alloc()
            for h in range(2):
                a("v_fma_mix_f32 %s, %s, 1.0, %s%s op_sel:[%d,0,%d] op_sel_hi:[1,0,1]" % (v(d + h), v(r), "-" if neg else "", v(r + 1), h, h))
            rel(r)
            return d

        def dft(base):
            p = {}; q = {}
            if parity == 0:
                u = [mix(base + 2 * j, False) for j in range(8)]
                uu = []; uv = []
                for j in range(4):
                    uu.append(add(u[j], u[j + 4])); uv.append(sub(u[j], u[j + 4])); rel(u[j], u[j + 4])
                e0 = add(uu[0], uu[2]); e1 = add(uu[1], uu[3])
                p[4] = sub(uu[0], uu[2]); q[4] = sub(uu[1], uu[3]); rel(*uu)
                p[0] = add(e0, e1); p[8] = sub(e0, e1); rel(e0, e1)
                dm = sub(uv[1], uv[3]); dp = add(uv[1], uv[3])
                p[2] = fma(dm, C2, uv[0]); p[6] = fma(dm, C2, uv[0], nx=True)
                q[2] = fma(dp, C2, uv[2]); q[6] = fma(dp, C2, uv[2], ny=True)
                rel(dm, dp, *uv)
            else:
                w = [mix(base + 2 * j, True) for j in range(8)]
                aa = {}; bb = {}
                for j in (1, 2, 3):
                    aa[j] = sub(w[j], w[8 - j]); bb[j] = add(w[j], w[8 - j]); rel(w[j], w[8 - j])
                Ap = fma(aa[2], C2, w[0]); Am = fma(aa[2], C2, w[0], nx=True); rel(aa[2], w[0])
                t = mul(aa[1], C1); G1 = fma(aa[3], C3, t); rel(t)
                t = mul(aa[1], C3); G3 = fma(aa[3], C1, t, nx=True); rel(t, aa[1], aa[3])
                p[1] = add(Ap, G1); p[7] = sub(Ap, G1); p[3] = add(Am, G3); p[5] = sub(Am, G3); rel(Ap, Am, G1, G3)
                Bp = fma(bb[2], C2, w[4]); B3 = fma(bb[2], C2, w[4], ny=True); rel(bb[2], w[4])
                t = mul(bb[1], C3); H1 = fma(bb[3], C1, t); rel(t)
                t = mul(bb[1], C1); H3 = fma(bb[3], C3, t, nx=True); rel(t, bb[1], bb[3])
                q[1] = add(H1, Bp); q[7] = sub(H1, Bp); q[3] = add(H3, B3); q[5] = sub(H3, B3); rel(Bp, B3, H1, H3)
            return p, q

        a.lines = var[(1, parity)] = []
        pa, qa = dft(IN[0])
        a.lines = var[(2, parity)] = []
        pb, qb = dft(IN[1])
        tmpd = []
        for _ in range(4):
            r_ = alloc(); tmpd += [r_, r_ + 1]
        t2 = [alloc(), alloc()]
        cnt = [0]

        def st(reg, arr):
            d = tmpd[cnt[0] % len(tmpd)]; cnt[0] += 1
            a("v_cvt_pk_bf16_f32 %s, %s, %s" % (v(d), v(reg), v(reg + 1)))
            a("s_mov_b32 %s, %s" % (s(T1), hx(arr * 65536)))
            a("buffer_store_dword %s, v123, %s, %s offen%s" % (v(d), s(WS, 4), s(T1), smod("cb")))

        rs = [2, 4, 6] if parity == 0 else [1, 3, 5, 7]
        a.lines = var[(3, parity, 0)] = []
        def comb(x, y, arr1, arr2):
            a("v_pk_add_f32 %s, %s, %s" % (v(t2[0], 2), v(x, 2), v(y, 2)))
            a("v_pk_add_f32 %s, %s, %s%s" % (v(t2[1], 2), v(x, 2), v(y, 2), NEG1))
            st(t2[0], arr1); st(t2[1], arr2)
        if parity == 0:
            comb(pa[0], pb[0], 0, 4); comb(pa[8], pb[8], 1, 5)
        for r_ in rs:
            comb(pa[r_], pb[r_], r_ * 8, r_ * 8 + 4); comb(qa[r_], qb[r_], r_ * 8 + 1, r_ * 8 + 5)
        a.lines = var[(3, parity, 1)] = []
        if parity == 0:
            st(pa[0], 0); st(pb[0], 1); st(pa[8], 4); st(pb[8], 5)
        for r_ in rs:
            a("v_pk_add_f32 %s, %s, %s%s" % (v(t2[0], 2), v(pa[r_], 2), v(qb[r_], 2), NEG1))
            a("v_pk_add_f32 %s, %s, %s" % (v(t2[1], 2), v(qa[r_], 2), v(pb[r_], 2)))
            st(t2[0], r_ * 8); st(t2[1], r_ * 8 + 1)
            a("v_pk_add_f32 %s, %s, %s" % (v(t2[0], 2), v(pa[r_], 2), v(qb[r_], 2)))
            a("v_pk_add_f32 %s, %s, %s%s" % (v(t2[1], 2), v(qa[r_], 2), v(pb[r_], 2), NEG1))
            st(t2[0], r_ * 8 + 4); st(t2[1], r_ * 8 + 5)

    def split(lines):
        idx = [i for i, x in enumerate(lines) if "buffer_store" in x]
        assert len(idx) == 16
        return lines[:idx[7] + 1], lines[idx[7] + 1:]

    def emit(cases):
        done = a0.newlabel("dd")
        labs = [a0.newlabel("dc") for _ in cases]
        uniq = []
        for l_, c in enumerate(cases):
            if c not in uniq:
                uniq.append(c)
        if len(uniq) == 2:
            a0("s_bitcmp1_b32 %s, 0" % s(sWAVE))
            a0("s_cbranch_scc1 %s" % labs[1])
            a0.lines += cases[0]; a0("s_branch %s" % done)
            a0.label(labs[1]); a0.lines += cases[1]
        else:
            for l_ in range(1, 4):
                a0("s_cmp_eq_u32 %s, %d" % (s(sWAVE), l_))
                a0("s_cbranch_scc1 %s" % labs[l_])
            for l_ in range(4):
                if l_:
                    a0.label(labs[l_])
                a0.lines += cases[l_]
                if l_ < 3:
                    a0("s_branch %s" % done)
        a0.label(done)

    def piece(n):
        if n == 0:
            a0.lines += head
        elif n == 1:
            emit([var[(1, l_ & 1)] + var[(2, l_ & 1)] for l_ in range(4)])
        else:
            emit([var[(3, l_ & 1, l_ >> 1)] for l_ in range(4)])
    return piece


def rowimg_frag_addr(a, dst0, dst1, rowbase_sgpr):
    a("v_and_b32 %s, 15, v3" % v(dst0))
    a("v_lshlrev_b32 %s, 7, %s" % (v(dst0), v(dst0)))
    a("v_lshrrev_b32 %s, 4, v3" % v(dst1))
    a("v_bfe_u32 v2, v3, 1, 3")
    a("v_xor_b32 %s, %s, v2" % (v(dst1), v(dst1)))
    a("v_lshl_add_u32 %s, %s, 4, %s" % (v(dst0), v(dst1), v(dst0)))
    a("v_add_u32 %s, %s, %s" % (v(dst0), s(rowbase_sgpr), v(dst0)))
    a("v_xor_b32 %s, 64, %s" % (v(dst1), v(dst0)))


def silu_tail(a, regs, tmp):
    for t in tmp:
        a("v_exp_f32 %s, %s" % (v(t), v(t)))
        a("v_exp_f32 %s, %s" % (v(t + 1), v(t + 1)))
    for t in tmp:
        a("v_pk_add_f32 %s, %s, 1.0 op_sel_hi:[1,0]" % (v(t, 2), v(t, 2)))
    for t in tmp:
        a("v_rcp_f32 %s, %s" % (v(t), v(t)))
        a("v_rcp_f32 %s, %s" % (v(t + 1), v(t + 1)))
    for r_, t in zip(regs, tmp):
        a("v_pk_mul_f32 %s, %s, %s" % (v(r_, 2), v(r_, 2), v(t, 2)))


def silu_pk(a, regs, tmp):
    for r_, t in zip(regs, tmp):
        a("v_pk_mul_f32 %s, %s, %s" % (v(t, 2), v(r_, 2), s(sNL2E, 2)))
    silu_tail(a, regs, tmp)


ACC1 = 128
vM0, vM1, vNa, vNb, vNc = 4, 5, 6, 7, 8
cM0, cM1, cNa, cNb, cNc = 9, 10, 11, 12, 13
vZ0, vZ1 = 14, 15


def compute_setup(a):
    a("s_lshr_b32 %s, %s, 1" % (s(sWM), s(sWAVE)))
    a("s_and_b32 %s, %s, 1" % (s(sWN), s(sWAVE)))
    a("s_lshl_b32 %s, s2, 15" % s(T0))
    a("s_lshl_b32 %s, %s, 13" % (s(T1), s(sWAVE)))
    a("s_add_u32 %s, %s, %s" % (s(T0), s(T0), s(T1)))
    a("s_add_u32 %s, %s, %s" % (s(T0), s(T0), hx(EX_OFF)))
    a("v_lshlrev_b32 v24, 4, v3")
    a("v_add_u32 v24, %s, v24" % s(T0))
    a("v_add_u32 v25, 4096, v24")
    a("s_lshl_b32 %s, %s, 13" % (s(T0), s(sWM)))
    rowimg_frag_addr(a, vM0, vM1, T0)
    a("s_lshl_b32 %s, %s, 13" % (s(T0), s(sWN)))
    a("s_add_u32 %s, %s, 16384" % (s(T0), s(T0)))
    rowimg_frag_addr(a, vZ0, vZ1, T0)
    a("v_lshrrev_b32 v18, 4, v3")
    a("v_bfe_u32 v17, v3, 2, 2")
    a("v_lshl_add_u32 v17, v18, 3, v17")
    a("v_mul_u32_u24 v17, 448, v17")
    a("v_and_b32 v19, 3, v3")
    a("v_lshl_add_u32 v17, v19, 3, v17")
    a("v_and_b32 v19, 1, v18")
    a("v_lshlrev_b32 v19, 5, v19")
    a("s_lshl_b32 %s, %s, 6" % (s(T0), s(sWN)))
    a("s_add_u32 %s, %s, 16384" % (s(T0), s(T0)))
    a("v_add_u32 v20, %s, v17" % s(T0))
    a("v_add_u32 %s, v20, v19" % v(vNa))
    a("v_sub_u32 %s, v20, v19" % v(vNb))
    a("s_lshl_b32 %s, %s, 5" % (s(T0), s(sWN)))
    a("v_xor_b32 v20, %s, v19" % s(T0))
    a("v_add_u32 v20, v20, v17")
    a("v_add_u32 %s, %d, v20" % (v(vNc), 16384 + 384))
    a("v_and_b32 v21, 1, v18")
    a("v_lshlrev_b32 v21, 5, v21")
    a("v_lshrrev_b32 v19, 1, v18")
    a("v_lshl_add_u32 v21, v19, 4, v21")
    a("s_lshl_b32 %s, %s, 4" % (s(T0), s(sRB)))
    a("s_add_u32 %s, %s, %s" % (s(T0), s(T0), s(sCB)))
    a("s_mul_i32 %s, %s, 49152" % (s(T1), s(T0)))
    a("s_lshl_b32 %s, %s, 13" % (s(T2), s(sWN)))
    a("s_add_u32 %s, %s, %s" % (s(T1), s(T1), s(T2)))
    a("s_lshl_b32 %s, %s, 12" % (s(T2), s(sWM)))
    a("s_add_u32 %s, %s, %s" % (s(T1), s(T1), s(T2)))
    a("s_add_u32 %s, %s, %s" % (s(T1), s(T1), hx(HR_OFF)))
    a("v_and_b32 v22, 15, v3")
    a("v_lshl_add_u32 v17, v22, 6, v21")
    a("v_add_u32 v17, %s, v17" % s(T1))
    a("s_lshl_b32 %s, %s, 13" % (s(T1), s(T0)))
    a("s_lshl_b32 %s, %s, 12" % (s(T2), s(sWN)))
    a("s_add_u32 %s, %s, %s" % (s(T1), s(T1), s(T2)))
    a("s_lshl_b32 %s, %s, 11" % (s(T2), s(sWM)))
    a("s_add_u32 %s, %s, %s" % (s(T1), s(T1), s(T2)))
    a("s_add_u32 %s, %s, %s" % (s(T1), s(T1), hx(HL_OFF)))
    a("v_and_b32 v20, 1, v18")
    a("v_lshl_add_u32 v20, v20, 4, v22")
    a("v_lshlrev_b32 v20, 5, v20")
    a("v_lshl_add_u32 v20, v19, 4, v20")
    a("v_add_u32 v20, %s, v20" % s(T1))
    a("s_lshl_b32 %s, %s, 7" % (s(T1), s(sWN)))
    a("s_add_u32 %s, %s, %d" % (s(T1), s(T1), CSB))
    a("v_lshlrev_b32 v26, 4, v18")
    a("v_add_u32 v26, %s, v26" % s(T1))
    a("s_lshl_b32 %s, %s, 6" % (s(T1), s(sWN)))
    a("s_add_u32 %s, %s, %d" % (s(T1), s(T1), CSB + 768))
    a("v_lshlrev_b32 v27, 4, v18")
    a("v_add_u32 v27, %s, v27" % s(T1))
    a("s_lshl_b32 %s, %s, 9" % (s(T1), s(sWM)))
    a("s_add_u32 %s, %s, %d" % (s(T1), s(T1), STB))
    a("v_lshlrev_b32 v28, 3, v22")
    a("v_add_u32 v28, %s, v28" % s(T1))
    for i in range(112):
        a("v_mov_b32 %s, 0" % v(ACC1 + i))
    a("s_mov_b32 %s, 0" % s(sSLOT))


def compute_g1_s1(a):
    ACC = ACC1
    FR = [32, 76]
    cZ0, cZ1 = cNa, cNb

    def set_addr(lst):
        return ["v_add_u32 %s, %s, %s" % (v(c), s(sSLOT), v(b)) for c, b in lst]

    def next_slot():
        return ["s_add_u32 s14, s14, %d" % G1SLOT, "s_cmp_eq_u32 s14, %d" % (G1SLOT * 3), "s_cselect_b32 s14, 0, s14"]

    G1A = [(cM0, vM0), (cM1, vM1), (cNa, vNa), (cNb, vNb), (cNc, vNc)]

    def s1_addr(k):
        return ["v_add_u32 %s, %s, %s" % (v(c), hx(S1SLOTS[k]), v(b)) for c, b in
                [(cM0, vM0), (cM1, vM1), (cZ0, vZ0), (cZ1, vZ1)]]

    def g1_reads(fs, ks):
        r = []
        for nt in range(7):
            ad = cNc if nt == 6 else (cNb if nt & 1 else cNa)
            off = 0 if nt == 6 else 128 * (nt >> 1) + 32 * (nt & 1)
            for h in range(2):
                r.append("ds_read_b64_tr_b16 %s, %s offset:%d" % (
                    v(FR[fs] + 16 + 4 * nt + 2 * h, 2), v(ad), ks * 14336 + h * 1792 + off))
            if nt < 4:
                r.append("ds_read_b128 %s, %s offset:%d" % (v(FR[fs] + 4 * nt, 4), v(cM1 if ks else cM0), nt * 2048))
        return r

    def g1_mfmas(fs):
        o = OPT.get("ord", "n")
        if o == "m":
            order = [(nt, mt) for mt in range(4) for nt in range(7)]
        elif o == "z":
            order = [(nt, mt if nt % 2 == 0 else 3 - mt) for nt in range(7) for mt in range(4)]
        else:
            order = [(nt, mt) for nt in range(7) for mt in range(4)]
        return [mfma(ACC + 4 * (nt * 4 + mt), FR[fs] + 16 + 4 * nt, FR[fs] + 4 * mt) for nt, mt in order]

    def x_capture():
        lab = a.newlabel("nox")
        a("s_sub_u32 s83, s83, 1")
        a("s_cbranch_scc0 %s" % lab)
        a("v_add_u32 v29, s14, v31")
        a("v_xor_b32 v30, 32, v29")
        for mt in range(4):
            for nt in range(2):
                a("ds_read_b64 %s, %s offset:%d" % (v(240 + 4 * mt + 2 * nt, 2), "v30" if nt else "v29", mt * 2048))
        a.label(lab)

    def g1_iter(extra_b=(), pre_bar=(), tail=(), flag=None):
        x_capture()
        interleave(a, g1_mfmas(0), g1_reads(1, 1) + next_slot() + set_addr(G1A))
        a("s_waitcnt lgkmcnt(0)")
        a.all(pre_bar)
        fine(a)
        a("s_barrier")
        fine(a)
        interleave(a, g1_mfmas(1), g1_reads(0, 0) + list(extra_b))
        a("s_waitcnt lgkmcnt(0)")
        a.all(tail)

    def g1_loop(n):
        a("s_mov_b32 %s, 0" % s(sCNT))
        loop = a.newlabel("g1_loop")
        a.raw(".p2align 6")
        a.label(loop)
        g1_iter(["s_add_u32 s15, s15, 1", "s_cmp_lt_u32 s15, %d" % n], tail=["s_cbranch_scc1 %s" % loop])

    if OPT.get("sent", "none") == "pre":
        for i in range(4):
            a("v_mov_b32 %s, -1" % v(240 + i))
        for i in range(8):
            a("buffer_store_dwordx4 v[240:243], %s, %s, 0 offen offset:%d%s" % ("v25" if i >= 4 else "v24", s(WS, 4), (i & 3) * 1024, SC1))
    a("v_lshrrev_b32 v31, 1, v18")
    a("s_lshl_b32 %s, %s, 2" % (s(T1), s(sWN)))
    a("v_add_u32 v31, %s, v31" % s(T1))
    a("v_bfe_u32 v29, v3, 1, 3")
    a("v_xor_b32 v31, v31, v29")
    a("v_lshlrev_b32 v31, 4, v31")
    a("v_and_b32 v29, 1, v18")
    a("v_lshl_add_u32 v31, v29, 3, v31")
    a("v_and_b32 v29, 15, v3")
    a("v_lshl_add_u32 v31, v29, 7, v31")
    a("s_lshl_b32 %s, %s, 13" % (s(T1), s(sWM)))
    a("v_add_u32 v31, %s, v31" % s(T1))
    a("s_mul_i32 s83, %s, %d" % (s(sKH), US()))
    a("s_add_u32 s83, s83, %s" % s(sNB8))
    a.all(set_addr(G1A))
    mark(a, 3)
    a("s_barrier")
    mark(a, 4)
    a.all(g1_reads(0, 0))
    a("s_waitcnt lgkmcnt(0)")
    if STAMP:
        g1_loop(3)
        mark(a, 15)
        g1_loop(FLAGK - 3)
    else:
        g1_loop(FLAGK)
    g1_iter(pre_bar=["s_waitcnt vmcnt(0)"], flag="s")
    if STAMP:
        mark(a, 2)
        g1_loop(3)
        mark(a, 1)
        g1_loop(14 - FLAGK - 3)
    else:
        g1_loop(14 - FLAGK)
    x_capture()
    interleave(a, g1_mfmas(0), g1_reads(1, 1) + s1_addr(0))
    a("s_waitcnt lgkmcnt(0)")
    a("s_barrier")
    CSR, STR = 32, 60
    rd = ["ds_read_b128 %s, v26 offset:%d" % (v(CSR + 4 * nt, 4), 256 * (nt >> 1) + 64 * (nt & 1)) for nt in range(6)]
    rd.append("ds_read_b128 %s, v27" % v(CSR + 24, 4))
    rd += ["ds_read_b64 %s, v28 offset:%d" % (v(STR + 2 * mt, 2), 128 * mt) for mt in range(4)]
    interleave(a, g1_mfmas(1), rd)
    mark(a, 5)
    a("s_waitcnt lgkmcnt(0)")
    if OPT.get("eprio", "0") != "0":
        a("s_setprio %s" % OPT.get("eprio"))
    RL = 68
    for mt in range(4):
        a("v_rcp_f32 %s, %s" % (v(RL + 2 * mt + 1), v(STR + 2 * mt + 1)))
        a("v_mul_f32 %s, %s, %s" % (v(RL + 2 * mt), s(sNL2E), v(STR + 2 * mt + 1)))
    TMP = 76
    PK = [88, 92, 96, 100, 104, 108, 112, 116]
    for pr in range(3):
        a("s_mov_b32 %s, %d" % (s(T0 + pr), pr * 16384))
    pki = 0
    groups = [[(mt, 2 * pr), (mt, 2 * pr + 1)] for pr in range(3) for mt in range(4)]
    groups += [[(0, 6), (1, 6)], [(2, 6), (3, 6)]]
    F0 = int(OPT.get("f0", "8"))
    for gi, gr in enumerate(groups):
        if gi == F0:
            hflag(a, 0, F0 - 4)
        regs = []; cs = []; mts = []
        for mt, nt in gr:
            b = ACC + 4 * (nt * 4 + mt)
            regs += [b, b + 2]; cs += [CSR + 4 * nt, CSR + 4 * nt + 2]; mts += [mt, mt]
        tmp = [TMP + 2 * i for i in range(4)]
        for r_, c_, mt in zip(regs, cs, mts):
            a("v_pk_fma_f32 %s, %s, %s, %s op_sel_hi:[1,0,1] neg_lo:[0,1,0] neg_hi:[0,1,0]" % (v(r_, 2), v(c_, 2), v(STR + 2 * mt, 2), v(r_, 2)))
        for r_, t, mt in zip(regs, tmp, mts):
            a("v_pk_mul_f32 %s, %s, %s op_sel_hi:[1,0]" % (v(t, 2), v(r_, 2), v(RL + 2 * mt, 2)))
        for t_ in tmp:
            a("v_exp_f32 %s, %s" % (v(t_), v(t_)))
            a("v_exp_f32 %s, %s" % (v(t_ + 1), v(t_ + 1)))
        for t_, mt in zip(tmp, mts):
            a("v_pk_fma_f32 %s, %s, %s, %s op_sel:[0,1,1]" % (v(t_, 2), v(t_, 2), v(RL + 2 * mt, 2), v(RL + 2 * mt, 2)))
        for t_ in tmp:
            a("v_rcp_f32 %s, %s" % (v(t_), v(t_)))
            a("v_rcp_f32 %s, %s" % (v(t_ + 1), v(t_ + 1)))
        for r_, t_ in zip(regs, tmp):
            a("v_pk_mul_f32 %s, %s, %s" % (v(r_, 2), v(r_, 2), v(t_, 2)))
        P = PK[pki % len(PK)]; pki += 1
        for i, r_ in enumerate(regs):
            a("v_cvt_pk_bf16_f32 %s, %s, %s" % (v(P + i), v(r_), v(r_ + 1)))
        a("s_nop 1")
        a("v_permlane16_swap_b32 %s, %s" % (v(P), v(P + 2)))
        a("v_permlane16_swap_b32 %s, %s" % (v(P + 1), v(P + 3)))
        mt, nt = gr[0]
        if nt < 6:
            a("buffer_store_dwordx4 %s, v17, %s, %s offen offset:%d%s" % (v(P, 4), s(WS, 4), s(T0 + nt // 2), mt * 1024, smod("h%d" % (nt // 2))))
        else:
            a("buffer_store_dwordx4 %s, v20, %s, 0 offen offset:%d%s" % (v(P, 4), s(WS, 4), (mt // 2) * 1024, smod("h3")))
    mark(a, 6)
    fine_dump(a, 0)

    def s1_reads(fs, ks):
        r = []
        for t in range(4):
            r.append("ds_read_b128 %s, %s offset:%d" % (v(FR[fs] + 4 * t, 4), v(cM1 if ks else cM0), t * 2048))
            r.append("ds_read_b128 %s, %s offset:%d" % (v(FR[fs] + 16 + 4 * t, 4), v(cZ1 if ks else cZ0), t * 2048))
        return r

    def s1_mfmas(fs, first):
        return [mfma(tile(mt, nt), FR[fs] + 4 * mt, FR[fs] + 16 + 4 * nt, "0" if first else None)
                for mt in range(4) for nt in range(4)]

    tile = lambda m, n: 192 + 4 * (m * 4 + n) if m < 3 else 108 + 4 * n

    hflag(a, 1, 7 if F0 >= 8 else 6)
    g2_setup(a)
    HF = -1
    a("s_barrier")
    a.all(s1_reads(0, 0))
    a("s_lshr_b32 %s, %s, 3" % (s(T0), s(sTAU)))
    a("s_and_b32 %s, %s, 3" % (s(T1), s(T0)))
    a("s_cmp_eq_u32 %s, 3" % s(T0))
    a("s_cselect_b32 %s, 1, %s" % (s(T1), s(T1)))
    a("s_lshr_b32 %s, %s, 2" % (s(T2), s(T0)))
    a("s_cmp_eq_u32 %s, 3" % s(T0))
    a("s_cselect_b32 %s, 8, %s" % (s(T2), s(T2)))
    a("s_lshl_b32 %s, %s, 19" % (s(T2), s(T2)))
    a("s_bfe_u32 %s, %s, 0x20001" % (s(T3), s(sTAU)))
    a("s_lshl_b32 %s, %s, 6" % (s(T3), s(T3)))
    a("s_lshl_b32 %s, %s, 5" % (s(T4), s(sWN)))
    a("s_add_u32 %s, %s, %s" % (s(T3), s(T3), s(T4)))
    a("v_and_b32 v17, 15, v3")
    a("v_add_u32 v17, %s, v17" % s(T3))
    a("v_sub_u32 v22, %d, v17" % (3 * 256 + 239))
    a("s_lshl_b32 %s, %s, 8" % (s(T1), s(T1)))
    a("v_add_u32 v17, %s, v17" % s(T1))
    a("s_and_b32 %s, %s, 1" % (s(T3), s(sTAU)))
    a("s_lshl_b32 %s, %s, 1" % (s(T3), s(T3)))
    a("s_add_u32 %s, %s, %s" % (s(T3), s(T3), s(sWM)))
    a("s_lshl_b32 %s, %s, 16" % (s(T3), s(T3)))
    a("s_add_u32 %s, %s, %s" % (s(T3), s(T3), hx(ZT_OFF)))
    a("v_add_u32 v23, %s, v21" % s(T3))
    a("v_lshl_add_u32 v17, v17, 6, v23")
    a("v_lshl_add_u32 v22, v22, 6, v23")
    a("s_waitcnt lgkmcnt(0)")
    for k in range(4):
        interleave(a, s1_mfmas(0, k == 0), s1_reads(1, 1) + (s1_addr(k + 1) if k < 3 else []))
        a("s_waitcnt lgkmcnt(0)")
        interleave(a, s1_mfmas(1, False), s1_reads(0, 0) if k < 3 else [])
        if k < 3:
            a("s_waitcnt lgkmcnt(0)")
        if k == 1:
            a("s_barrier")
        if k == 2:
            hflag(a, 2, 0)
            a("s_nop 3")
        if k == HF:
            a("s_waitcnt vmcnt(0)")
            a("s_barrier")
            flag_store(a, "h")
    mark(a, 7)
    a("s_barrier")
    mark(a, 8)
    a("s_nop 7")
    TMP = 32
    PK = [56, 60, 64, 68, 72, 76, 80, 84]
    typeB = a.newlabel("s1_typeB"); done = a.newlabel("s1_done")
    a("s_and_b32 %s, %s, 29" % (s(T3), s(T0)))
    a("s_cmp_eq_u32 %s, 0" % s(T3))
    a("s_cbranch_scc1 %s" % typeB)
    pki = 0
    for n in range(2):
        for uv in range(2):
            P = PK[pki]; pki += 1
            for m in range(2):
                for h in range(2):
                    if uv == 0:
                        a("v_pk_add_f32 %s, %s, %s" % (v(TMP + 2 * h, 2), v(tile(m, n) + 2 * h, 2), v(tile(m + 2, n + 2) + 2 * h, 2)))
                    else:
                        a("v_pk_add_f32 %s, %s, %s%s" % (v(TMP + 2 * h, 2), v(tile(m + 2, n) + 2 * h, 2), v(tile(m, n + 2) + 2 * h, 2), NEG1))
                for h in range(2):
                    a("v_cvt_pk_bf16_f32 %s, %s, %s" % (v(P + 2 * m + h), v(TMP + 2 * h), v(TMP + 2 * h + 1)))
            a("s_add_u32 %s, %s, %d" % (s(T3), s(T2), n * 1024 + uv * 262144))
            a("s_nop 0")
            a("v_permlane16_swap_b32 %s, %s" % (v(P), v(P + 2)))
            a("v_permlane16_swap_b32 %s, %s" % (v(P + 1), v(P + 3)))
            a("buffer_store_dwordx4 %s, v17, %s, %s offen%s" % (v(P, 4), s(WS, 4), s(T3), smod("zt")))
    a("s_cmp_ge_u32 %s, 4" % s(T0))
    a("s_cbranch_scc1 %s" % done)
    a("s_mov_b32 %s, 0x80008000" % s(T4))
    pki = 0
    for n in range(2):
        for uv in range(2):
            P = PK[pki]; pki += 1
            a("s_add_u32 %s, %s, %d" % (s(T3), s(T2), (1 - n) * 1024 + uv * 262144))
            if uv:
                Q = PK[4 + n]
                for i in range(4):
                    a("v_xor_b32 %s, %s, %s" % (v(Q + i), s(T4), v(P + i)))
                P = Q
            a("buffer_store_dwordx4 %s, v22, %s, %s offen%s" % (v(P, 4), s(WS, 4), s(T3), smod("zt")))
    a("s_branch %s" % done)
    a.label(typeB)
    pki = 0
    for n in range(2):
        for half in range(2):
            for uv in range(2):
                P = PK[pki]; pki += 1
                sg = "-" if uv else ""
                for m in range(2):
                    t = tile(m + 2 * half, n + 2 * uv)
                    for h in range(2):
                        a("v_cvt_pk_bf16_f32 %s, %s%s, %s%s" % (v(P + 2 * m + h), sg, v(t + 2 * h), sg, v(t + 2 * h + 1)))
                a("s_mov_b32 %s, %d" % (s(T3), half * 8 * 524288 + n * 1024 + uv * 262144))
                a("s_nop 0")
                a("v_permlane16_swap_b32 %s, %s" % (v(P), v(P + 2)))
                a("v_permlane16_swap_b32 %s, %s" % (v(P + 1), v(P + 3)))
                a("buffer_store_dwordx4 %s, v17, %s, %s offen%s" % (v(P, 4), s(WS, 4), s(T3), smod("zt")))
    a.label(done)
    mark(a, 9)


def dma(a, ldsoff, vaddr, srd_, soff, coh=False):
    if OPT.get("nodma") == "1" and getattr(a, "skipdma", False):
        return
    a("s_add_u32 m0, %s, %d" % (s(sSLOT), ldsoff))
    a("s_nop 0")
    a("buffer_load_dwordx4 %s, %s, %s offen%s lds" % (v(vaddr), s(srd_, 4), s(soff), OPT.get("cohmod", "_sc1").replace("_", " ") if coh else ""))


LVA, LVB, LVC, LVD = 8, 12, 20, 24
CSD = 128


def g1_issue(a):
    for i in range(4):
        dma(a, i * 4096, LVA + i, XS, sKA)
    for i in range(7):
        dma(a, 16384 + i * 4096, LVB + i, W1, sKB)
    a("s_add_u32 %s, %s, 128" % (s(sKA), s(sKA)))
    a("s_add_u32 %s, %s, %d" % (s(sKB), s(sKB), 64 * 7168))
    a("s_add_u32 s14, s14, %d" % G1SLOT)
    a("s_cmp_eq_u32 s14, %s" % s(sWRAP))
    a("s_cselect_b32 s14, %s, s14" % s(sSL0))


def loader_setup(a):
    a("s_sub_u32 %s, %s, 4" % (s(sL), s(sWAVE)))
    a("s_and_b32 %s, %s, 1" % (s(T0), s(sL)))
    a("s_lshl_b32 %s, %s, 2" % (s(T0), s(T0)))
    a("v_lshrrev_b32 v4, 4, v3")
    a("v_add_u32 v4, %s, v4" % s(T0))
    a("v_and_b32 v5, 7, v3")
    a("v_xor_b32 v4, v4, v5")
    a("v_lshlrev_b32 v4, 4, v4")
    a("v_lshrrev_b32 v5, 3, v3")
    a("s_lshl_b32 %s, %s, 3" % (s(T0), s(sL)))
    a("v_add_u32 v5, %s, v5" % s(T0))
    a("v_lshlrev_b32 v30, 2, v3")
    a("s_lshl_b32 %s, %s, 10" % (s(sSL0), s(sL)))
    a("s_lshl_b32 %s, %s, 11" % (s(T0), s(sRB)))
    a("v_lshl_add_u32 v6, v5, 15, v4")
    a("v_add_u32 v6, %s, v6" % s(T0))
    for i in range(4):
        a("v_add_u32 %s, %s, v6" % (v(LVA + i), hx(i * 32 * 32768)))
    a("s_lshl_b32 %s, %s, 6" % (s(T0), s(sL)))
    a("v_add_u32 v6, %s, v3" % s(T0))
    a("s_mul_i32 %s, %s, 448" % (s(T1), s(sCB)))
    for i in range(7):
        a("v_add_u32 v7, %d, v6" % (256 * i))
        a("v_mul_u32_u24 v28, 2341, v7")
        a("v_lshrrev_b32 v28, 16, v28")
        a("v_mul_u32_u24 v29, 28, v28")
        a("v_sub_u32 v29, v7, v29")
        a("v_bfe_u32 v31, v28, 3, 1")
        a("v_lshlrev_b32 v31, 1, v31")
        a("v_xor_b32 v29, v29, v31")
        a("v_mul_u32_u24 v28, 7168, v28")
        a("v_lshl_add_u32 v28, v29, 4, v28")
        a("v_add_u32 %s, %s, v28" % (v(LVB + i), s(T1)))
    a("s_mov_b32 %s, %s" % (s(sSLOT), s(sSL0)))
    a("s_add_u32 %s, %s, %d" % (s(sWRAP), s(sSL0), G1SLOT * 3))
    a("s_mov_b32 %s, 0" % s(sKA))
    a("s_mov_b32 %s, 0" % s(sKB))
    a("v_and_b32 v6, 31, v3")
    a("v_lshrrev_b32 v7, 5, v3")
    a("v_mul_u32_u24 v7, 7168, v7")
    a("v_lshl_add_u32 v7, v6, 4, v7")
    a("s_xor_b32 %s, %s, %s" % (s(T0), s(sRB), OPT.get("csx", "0")))
    a("s_lshl_b32 %s, %s, 6" % (s(T0), s(T0)))
    a("s_lshl_b32 %s, %s, 4" % (s(T2), s(sL)))
    a("s_add_u32 %s, %s, %s" % (s(T0), s(T0), s(T2)))
    a("s_mul_i32 %s, %s, 7168" % (s(T0), s(T0)))
    a("s_add_u32 %s, %s, %s" % (s(T0), s(T0), s(T1)))
    a("v_add_u32 v7, %s, v7" % s(T0))
    a("v_cmp_gt_u32 vcc, 28, v6")
    a("v_mov_b32 v28, 0x7f000000")
    a("s_nop 0")
    a("v_cndmask_b32 v7, v28, v7, vcc")
    def csl():
        for i in range(8):
            a("s_mov_b32 %s, %d" % (s(T0), i * 2 * 7168))
            a("buffer_load_dwordx4 %s, v7, %s, %s offen" % (v(CSD + 4 * i, 4), s(W1, 4), s(T0)))

    SO = OPT.get("so", "g")
    if SO == "g":
        g1_issue(a)
        a("s_barrier")
        csl()
    elif SO == "c":
        csl()
        a("s_barrier")
        g1_issue(a)
    else:
        a("s_barrier")
        csl()
        g1_issue(a)
    for _ in range(int(OPT.get("early", "3")) - 1):
        g1_issue(a)
    pf_addr(a)
    if OPT.get("tlb", "21") != "0":
        sh = int(OPT.get("tlb", "21"))
        a("v_lshlrev_b32 v2, %d, v3" % sh)
        a("s_lshl_b32 %s, %s, %d" % (s(T0), s(sL), sh + 6))
        a("v_add_u32 v2, %s, v2" % s(T0))
        a("v_cmp_gt_u32 vcc, 0x2400000, v2")
        a("s_and_saveexec_b64 s[96:97], vcc")
        a("s_cbranch_execz L_notlb")
        a("buffer_load_dword v244, v2, %s, 0 offen sc1" % s(WS, 4))
        a.label("L_notlb")
        a("s_mov_b64 exec, -1")
        for b_ in (W2, CR, CI, OUT, DR, DI):
            a("buffer_load_dword v244, v2, %s, 0 offen sc1" % s(b_, 4))


def code_refresh(a, q):
    if OPT.get("cref", "0") != "1":
        return
    lab = a.newlabel("pc")
    a("s_getpc_b64 s[96:97]")
    a.label(lab)
    a("s_sub_u32 s96, s96, %s-L_pc" % lab)
    a("s_subb_u32 s97, s97, 0")
    a("s_lshl_b32 s98, %s, 2" % s(sLOC))
    a("s_add_u32 s98, s98, %s" % s(sL))
    a("s_lshl_b32 s98, s98, 10")
    a("s_min_u32 s98, s98, (L_end-L_pc-1024)&0xfffffff0")
    a("v_lshl_add_u32 v2, v3, 4, s98")
    a("global_load_dwordx4 v[244:247], v2, s[96:97]")
    q.append("code")


def pf_addr(a):
    a("s_lshl_b32 %s, s2, 2" % s(T0))
    a("s_add_u32 %s, %s, %s" % (s(T0), s(T0), s(sL)))
    a("s_mul_i32 %s, %s, 7168" % (s(T1), s(T0)))
    a("v_lshlrev_b32 v124, 4, v3")
    a("v_add_u32 v124, %s, v124" % s(T1))
    a("v_add_u32 v125, 4096, v124")
    a("s_lshr_b32 %s, %s, 1" % (s(T2), s(T0)))
    a("v_lshrrev_b32 v126, 5, v3"); a("v_lshlrev_b32 v126, 11, v126"); a("v_and_b32 v127, 31, v3"); a("v_lshl_add_u32 v126, v127, 4, v126")
    a("s_lshl_b32 %s, %s, 12" % (s(T3), s(T2))); a("v_add_u32 v126, %s, v126" % s(T3))
    a("v_lshrrev_b32 v127, 4, v3"); a("v_lshlrev_b32 v127, 12, v127"); a("v_and_b32 v2, 15, v3"); a("v_lshl_add_u32 v127, v2, 4, v127")
    a("s_lshl_b32 %s, %s, 14" % (s(T3), s(T2))); a("v_add_u32 v127, %s, v127" % s(T3))
    pack_addr(a)


def pack_addr(a):
    a("s_and_b32 %s, %s, 1" % (s(T3), s(sL)))
    a("v_lshrrev_b32 v122, 5, v3")
    a("s_lshl_b32 %s, %s, 1" % (s(T4), s(T2)))
    a("v_add_u32 v122, %s, v122" % s(T4))
    a("v_and_b32 v2, 3, v122")
    a("v_lshrrev_b32 v122, 2, v122")
    a("v_lshlrev_b32 v122, 9, v122")
    a("v_lshl_add_u32 v122, v2, 18, v122")
    a("v_and_b32 v2, 31, v3")
    a("v_lshl_add_u32 v122, v2, 4, v122")
    a("s_lshl_b32 %s, %s, 17" % (s(T4), s(T3)))
    a("s_add_u32 %s, %s, %s" % (s(T4), s(T4), hx(DP_OFF)))
    a("v_add_u32 v122, %s, v122" % s(T4))
    a("v_lshrrev_b32 v123, 4, v3")
    a("s_lshl_b32 %s, %s, 2" % (s(T4), s(T2)))
    a("v_add_u32 v123, %s, v123" % s(T4))
    a("v_and_b32 v2, 15, v123")
    a("v_lshrrev_b32 v123, 4, v123")
    a("v_lshlrev_b32 v123, 8, v123")
    a("v_lshl_add_u32 v123, v2, 16, v123")
    a("v_and_b32 v2, 15, v3")
    a("v_lshl_add_u32 v123, v2, 4, v123")
    a("s_lshl_b32 %s, %s, 15" % (s(T4), s(T3)))
    a("s_add_u32 %s, %s, %s" % (s(T4), s(T4), hx(CP_OFF)))
    a("v_add_u32 v123, %s, v123" % s(T4))


def pf_pair(a, vaddr, sre, sim, dst=244):
    l2 = a.newlabel("pf2"); l3 = a.newlabel("pf3")
    a("s_bitcmp1_b32 %s, 0" % s(sWAVE))
    a("s_cbranch_scc1 %s" % l2)
    a("buffer_load_dwordx4 %s, %s, %s, 0 offen" % (v(dst, 4), v(vaddr), s(sre, 4)))
    a("s_branch %s" % l3)
    a.label(l2)
    a("buffer_load_dwordx4 %s, %s, %s, 0 offen" % (v(dst, 4), v(vaddr), s(sim, 4)))
    a.label(l3)


def loader_g1_s1(a):
    AC = CSD + 32
    FINECS = OPT.get("finecs", "1") == "1"
    PFS = OPT.get("pf", "s") == "s"
    PFT = OPT.get("pf", "s").startswith("t")
    PFK = 99 if PFS else int(OPT.get("pf", "99").lstrip("t"))
    EARLY = int(OPT.get("early", "3"))
    q = (["g0"] * 11 + ["csl"] * 8 if OPT.get("so", "g") == "g" else ["csl"] * 8 + ["g0"] * 11) + [x for i in range(1, EARLY) for x in ["g%d" % i] * 11]

    def issue(st):
        g1_issue(a); q.extend(["g%d" % st] * 11)

    def need(*tags):
        idx = max(i for i, x in enumerate(q) if x in tags)
        n = len(q) - idx - 1
        del q[:idx + 1]
        return n

    def bar(*tags, lg=False):
        n = need(*tags)
        fine(a)
        a("s_waitcnt vmcnt(%d)%s" % (n, " lgkmcnt(0)" if lg else ""))
        fine(a)
        a("s_barrier")

    def prefetch():
        a.c("warm the memory-side cache with this wave's share of w2 and of the C slices")
        if PFT:
            a("v_mul_u32_u24 v2, 48, v3")
            a("v_add_u32 v124, v124, v2")
            a("v_add_u32 v125, v125, v2")
            a("buffer_load_dword v244, v124, %s, 0 offen" % s(W2, 4))
            a("buffer_load_dword v244, v125, %s, 0 offen" % s(W2, 4))
            q.extend(["pf"] * 2)
        else:
            for i in range(7):
                a("buffer_load_dwordx4 v[244:247], %s, %s, 0 offen offset:%d" % ("v125" if i >= 4 else "v124", s(W2, 4), (i & 3) * 1024))
            q.extend(["pf"] * 7)
        pf_pair(a, 127, CR, CI)
        q.append("pf")

    def cs_chunk(rng):
        for i in rng:
            for d in range(4):
                src = CSD + 4 * i + d
                t_ = AC + 2 * d if i == 0 else AC + 8 + 2 * d
                a("v_lshlrev_b32 %s, 16, %s" % (v(t_), v(src)))
                a("v_and_b32 %s, %s, %s" % (v(t_ + 1), s(sHI), v(src)))
            if i:
                for d in range(4):
                    a("v_pk_add_f32 %s, %s, %s" % (v(AC + 2 * d, 2), v(AC + 2 * d, 2), v(AC + 8 + 2 * d, 2)))

    def after0():
        cs_chunk(range(0, 4))

    def after1():
        cs_chunk(range(6, 8) if FINECS else range(4, 8))
        a("v_lshrrev_b32 v28, 5, v3")
        a("s_lshl_b32 %s, %s, 1" % (s(T0), s(sL)))
        a("v_add_u32 v28, %s, v28" % s(T0))
        a("v_lshlrev_b32 v28, 10, v28")
        a("v_and_b32 v29, 31, v3")
        a("v_lshl_add_u32 v28, v29, 5, v28")
        a("v_add_u32 v28, %d, v28" % CSP)
        a("ds_write_b128 v28, %s" % v(AC, 4))
        a("ds_write_b128 v28, %s offset:16" % v(AC + 4, 4))
        a("s_waitcnt lgkmcnt(0)")

    def after2a():
        a("s_lshl_b32 %s, %s, 8" % (s(T0), s(sL)))
        a("v_add_u32 v19, %s, v30" % s(T0))
        a("v_add_u32 v29, %d, v19" % CSP)
        a("s_lshl_b32 %s, %s, 14" % (s(T0), s(sCB)))
        a("s_lshl_b32 %s, %s, 10" % (s(T5), s(sRB)))
        a("s_add_u32 %s, %s, %s" % (s(T5), s(T5), s(T0)))
        a("s_add_u32 %s, %s, %s" % (s(T5), s(T5), hx(CS_OFF)))
        tag_ready(a)
        a("v_lshrrev_b32 v31, 3, v3")
        a("v_lshlrev_b32 v31, 7, v31")
        a("v_and_b32 v28, 7, v3")
        a("v_lshl_add_u32 v31, v28, 2, v31")
        a("v_add_u32 v31, %s, v31" % hx(SF_OFF))

    def after2b():
        for i in range(4):
            a("ds_read2st64_b32 %s, v29 offset0:%d offset1:%d" % (v(CSD + 2 * i, 2), 8 * i, 8 * i + 4))
        a("s_waitcnt lgkmcnt(0)")
        a("v_pk_add_f32 %s, %s, %s" % (v(CSD, 2), v(CSD, 2), v(CSD + 2, 2)))
        a("v_pk_add_f32 %s, %s, %s" % (v(CSD + 4, 2), v(CSD + 4, 2), v(CSD + 6, 2)))
        a("v_pk_add_f32 %s, %s, %s" % (v(CSD, 2), v(CSD, 2), v(CSD + 4, 2)))
        a("v_add_f32 %s, %s, %s" % (v(CSD), v(CSD), v(CSD + 1)))
        a("buffer_store_dword %s, v19, %s, %s offen%s" % (v(CSD), s(WS, 4), s(T5), SC1))
        q.append("cs_store")

    def after2():
        after2a(); after2b()

    def after3():
        a("s_lshr_b32 %s, %s, 3" % (s(T0), s(sTAU)))
        a("s_lshl_b32 %s, %s, 17" % (s(T1), s(T0)))
        a("s_and_b32 %s, %s, 1" % (s(T2), s(sTAU)))
        a("s_lshl_b32 %s, %s, 15" % (s(T3), s(T2)))
        a("s_add_u32 %s, %s, %s" % (s(T1), s(T1), s(T3)))
        a("s_add_u32 %s, %s, %s" % (s(T1), s(T1), hx(CB_OFF)))
        a("v_lshl_add_u32 v6, v5, 9, v4")
        a("v_add_u32 v6, %s, v6" % s(T1))
        for i in range(4):
            a("v_add_u32 %s, %s, v6" % (v(LVC + i), hx((i & 1) * 65536 + (i >> 1) * 32 * 512)))
        a("s_and_b32 %s, %s, 3" % (s(T1), s(T0)))
        a("s_cmp_eq_u32 %s, 3" % s(T0))
        a("s_cselect_b32 %s, 1, %s" % (s(T1), s(T1)))
        a("s_lshl_b32 %s, %s, 18" % (s(T1), s(T1)))
        a("s_bfe_u32 %s, %s, 0x20001" % (s(T3), s(sTAU)))
        a("s_lshl_b32 %s, %s, 15" % (s(T3), s(T3)))
        a("s_add_u32 %s, %s, %s" % (s(T1), s(T1), s(T3)))
        a("s_add_u32 %s, %s, %s" % (s(T1), s(T1), hx(DP_OFF)))
        a("v_lshl_add_u32 v6, v5, 9, v4")
        a("v_add_u32 v6, %s, v6" % s(T1))
        for i in range(4):
            a("v_add_u32 %s, %s, v6" % (v(LVD + i), hx((i & 1) * 131072 + (i >> 1) * 32 * 512)))
        a("s_lshl_b32 %s, s2, 15" % s(T0))
        a("s_lshl_b32 %s, %s, 13" % (s(T1), s(sL)))
        a("s_add_u32 %s, %s, %s" % (s(T0), s(T0), s(T1)))
        a("s_add_u32 %s, %s, %s" % (s(T0), s(T0), hx(EX_OFF)))
        a("v_lshlrev_b32 v6, 4, v3")
        a("v_add_u32 v6, %s, v6" % s(T0))
        a("v_add_u32 v7, 4096, v6")
        for i in range(4):
            a("v_mov_b32 %s, -1" % v(240 + i))

    def sentinel(i):
        a("buffer_store_dwordx4 v[240:243], %s, %s, 0 offen offset:%d%s" % ("v7" if i >= 4 else "v6", s(WS, 4), (i & 3) * 1024, SC1))
        q.append("sent")

    def after9():
        poll_issue(a, CSD + 20, 31, 4); q.extend(["poll"] * 4)

    def after11():
        a.c("fetch 4 of the 16 partial column sums of this column block per wave, and this class's row stats")
        a("s_lshl_b32 %s, %s, 14" % (s(T0), s(sCB)))
        a("s_lshl_b32 %s, %s, 12" % (s(T1), s(sL)))
        a("s_add_u32 %s, %s, %s" % (s(T0), s(T0), s(T1)))
        a("s_add_u32 %s, %s, %s" % (s(T0), s(T0), hx(CS_OFF)))
        a("v_lshlrev_b32 v28, 4, v3")
        for i in range(4):
            a("buffer_load_dwordx4 %s, v28, %s, %s offen offset:%d%s" % (v(CSD + 4 * i, 4), s(WS, 4), s(T0), i * 1024, SC1))
        a("s_lshl_b32 %s, %s, 10" % (s(T0), s(sRB)))
        a("s_add_u32 %s, %s, %s" % (s(T0), s(T0), hx(STAT_OFF)))
        a("buffer_load_dword %s, v19, %s, %s offen%s" % (v(CSD + 16), s(WS, 4), s(T0), SC1))
        q.extend(["fetch"] * 5)

    def after13():
        a("s_waitcnt vmcnt(%d)" % need("fetch"))
        for d, x in ((0, 4), (2, 6), (8, 12), (10, 14), (0, 8), (2, 10)):
            a("v_pk_add_f32 %s, %s, %s" % (v(CSD + d, 2), v(CSD + d, 2), v(CSD + x, 2)))
        a("s_lshl_b32 %s, %s, 10" % (s(T0), s(sL)))
        a("s_add_u32 %s, %s, %d" % (s(T0), s(T0), CSP))
        a("v_add_u32 v28, %s, v28" % s(T0))
        a("ds_write_b128 v28, %s" % v(CSD, 4))
        a("v_add_u32 v28, %d, v19" % STB)
        a("ds_write_b32 v28, %s" % v(CSD + 16))
        a("s_waitcnt lgkmcnt(0)")

    def after14():
        a("v_add_u32 v28, %d, v19" % CSP)
        for i in range(4):
            a("ds_read_b32 %s, v28 offset:%d" % (v(CSD + i), i * 1024))
        a("v_add_u32 v28, %d, v19" % CSB)
        a("s_waitcnt lgkmcnt(0)")
        a("v_add_f32 %s, %s, %s" % (v(CSD), v(CSD), v(CSD + 1)))
        a("v_add_f32 %s, %s, %s" % (v(CSD + 2), v(CSD + 2), v(CSD + 3)))
        a("v_add_f32 %s, %s, %s" % (v(CSD), v(CSD), v(CSD + 2)))
        a("ds_write_b32 v28, %s" % v(CSD))

    CSPRE = OPT.get("cspre", "1") == "1"
    hooks = {0: after0, 1: after1, 2: after2} if not FINECS else {
        0: lambda: cs_chunk(range(0, 2)), 1: lambda: cs_chunk(range(2, 4)), 2: lambda: cs_chunk(range(4, 6)), 3: after1, 4: after2}
    def pack_store():
        assert "dc" not in q
        a("buffer_store_dwordx4 v[232:235], v122, %s, 0 offen%s" % (s(WS, 4), smod("pk")))
        a("buffer_store_dwordx4 v[236:239], v123, %s, 0 offen%s" % (s(WS, 4), smod("pk")))
        q.extend(["cs_store"] * 2)

    if CSPRE:
        hooks = {0: after2b, 2: pack_store}
    hooks.update({9: after9, 11: after11, 13: after13, 14: after14})
    after3()
    LATE = OPT.get("late", "0") == "1"
    if not LATE:
        for st in range(EARLY, 3):
            issue(st)
    if OPT.get("cov", "0") == "1":
        a("s_cmp_lt_u32 %s, 8" % s(sRB))
        a("s_mov_b32 %s, %d" % (s(T1), 512 * 7168))
        a("s_cselect_b32 %s, %s, %s" % (s(T1), s(T1), hx(-512 * 7168)))
        a("v_add_u32 v2, %s, v7" % s(T1))
        for i in range(8):
            a("s_mov_b32 %s, %d" % (s(T0), i * 2 * 7168))
            a("buffer_load_dwordx4 v[244:247], v2, %s, %s offen" % (s(W1, 4), s(T0)))
        q.extend(["pf"] * 8)
    pf_pair(a, 126, DR, DI, 232); q.append("dc")
    if PFK == -1:
        prefetch()
    if PFS:
        pf_pair(a, 127, CR, CI, 236); q.append("dc")
        a("s_lshl_b32 %s, s2, 2" % s(T0))
        a("s_add_u32 %s, %s, %s" % (s(T0), s(T0), s(sL)))
        a("s_mul_i32 %s, %s, 7168" % (s(T0), s(T0)))
        a("s_add_u32 s30, %s, %s" % (s(W2), s(T0)))
        a("s_addc_u32 s31, %s, 0" % s(W2 + 1))
    if CSPRE:
        a("s_waitcnt vmcnt(%d)" % (len(q) - max(i for i, x in enumerate(q) if x == "csl") - 1))
        cs_chunk(range(0, 6))
        after1()
        after2a()
    if OPT.get("sst") == "1":
        mark(a, 1)
    bar("g0")
    if OPT.get("g1prio", "0") != "0":
        a("s_setprio %s" % OPT.get("g1prio"))
    if LATE:
        for st in range(EARLY, 3):
            issue(st)
    for k in range(15):
        tags = ["g%d" % (k + 1)]
        if k == FLAGK:
            tags.append("cs_store")
        if k == 11:
            fine(a)
            a("s_waitcnt vmcnt(%d)" % need("g12", "poll"))
            poll_check(a, CSD + 20, 31, "exec", True, 4)
            fine(a)
            a("s_barrier")
        else:
            bar(*tags)
        if k + 3 <= 15:
            issue(k + 3)
        if k == FLAGK:
            flag_store(a, "s")
        if k == int(OPT.get("cr1", "8")):
            code_refresh(a, q)
        if k in hooks:
            hooks[k]()
        if 4 <= k <= 11 and OPT.get("sent", "none") == "g1":
            sentinel(k - 4)
        if k == 4 and OPT.get("sent", "none") == "g1b":
            for i in range(8):
                sentinel(i)
        if k == PFK:
            prefetch()
        if PFS and 1 <= k <= 11:
            for i in range(11 * (k - 1), min(112, 11 * k)):
                a("s_load_dword s29, s[30:31], %d" % (i * 64))

    def issue_s1(k):
        a("s_add_u32 %s, %s, %d" % (s(sSLOT), s(sSL0), S1SLOTS[k]))
        a("s_mov_b32 %s, %d" % (s(sKA), k * 128))
        for i in range(4):
            dma(a, i * 4096, LVC + i, WS, sKA, coh=True)
        for i in range(4):
            dma(a, 16384 + i * 4096, LVD + i, WS, sKA, coh=True)

    issue_s1(2)
    fine_dump(a, 0)
    a("s_waitcnt lgkmcnt(0)")
    a("s_barrier")
    if OPT.get("g1prio", "0") != "0":
        a("s_setprio 0")
    for k in (0, 1, 3):
        issue_s1(k)
    g2_loader_setup(a)
    a("s_mul_i32 %s, %s, %d" % (s(T0), s(sKH), 1792 * 2048))
    a("s_lshl_b32 %s, %s, 7" % (s(T1), s(sNB8)))
    a("s_add_u32 %s, %s, %s" % (s(T0), s(T0), s(T1)))
    a("s_and_b32 %s, %s, 7" % (s(T1), s(sLOC)))
    a("s_cmp_ge_u32 %s, 4" % s(T1))
    a("s_cselect_b32 %s, %d, 0" % (s(sADJ), 192 * 2048))
    a("s_lshl_b32 %s, %s, 2" % (s(T1), s(T1)))
    a("s_add_u32 %s, %s, %s" % (s(T1), s(T1), s(sL)))
    a("s_lshl_b32 %s, %s, 12" % (s(T1), s(T1)))
    a("s_add_u32 %s, %s, %s" % (s(T0), s(T0), s(T1)))
    a("s_add_u32 s30, %s, %s" % (s(W2), s(T0)))
    a("s_addc_u32 s31, %s, 0" % s(W2 + 1))
    a("s_and_b32 %s, %s, %d" % (s(sP3), s(sCB8), 0 if OPT.get("same") == "1" else 4))
    a("s_and_b32 %s, %s, %d" % (s(sP3), s(sCB8), 0 if OPT.get("same") == "1" else 4))
    for st in range(NRB()):
        g2_koff(a, st, False, True)
        for i in range(4):
            a("buffer_load_dwordx4 %s, %s, %s, %s offen" % (v(RBB + 16 * st + 4 * i, 4), v(GVB + i), s(W2, 4), s(sKB)))
    a("v_lshlrev_b32 %s, 4, v3" % v(GWA))
    a("v_add_u32 %s, %s, %s" % (v(GWA), s(sSL0), v(GWA)))
    a("s_waitcnt vmcnt(%d)" % (4 * NRB()))
    a("s_barrier")


RBB = 64
XL = 0
GVX = 62
SOLOB = 65536
RXL = 32768
FLAGK = 5
SYNC = 159744
GWA = 60


def NRB():
    return int(OPT.get("nrb", "0"))


PF_G1 = 28
sADJ = 95


def jp(st):
    return (st // 12) * 4 + st % 4, (st % 12) // 4


def w2_prefetch(a, halves):
    last = None
    for hs in halves:
        st, r = divmod(hs, 2)
        if st != last:
            if st < NREG:
                j, p_ = jp(st)
                a("s_xor_b32 s96, %s, %d" % (s(sP3), j))
                a("s_mul_i32 s96, s96, %d" % (224 * 2048))
                if p_:
                    a("s_add_u32 s96, s96, %d" % (p_ * 64 * 2048))
            else:
                a("s_add_u32 s96, %s, %d" % (s(sADJ), (448 * (st - NREG) + 192) * 2048))
            last = st
        for c in (0, 64, 128 * US(), 128 * US() + 64):
            a("s_load_dword s29, s[30:31], s96 offset:%d" % (r * 2048 + c))


def g2_koff(a, st, want_a, want_b):
    j, p_ = jp(st)
    a("s_xor_b32 %s, %s, %d" % (s(T0), s(sP3), j))
    if want_a:
        a("s_mul_i32 %s, %s, 49152" % (s(sKA), s(T0)))
        if p_:
            a("s_add_u32 %s, %s, %d" % (s(sKA), s(sKA), p_ * 16384))
    if want_b:
        a("s_mul_i32 %s, %s, %d" % (s(sKB), s(T0), 224 * 2048))
        if p_:
            a("s_add_u32 %s, %s, %d" % (s(sKB), s(sKB), p_ * 64 * 2048))


NJ = 28
NREG = 24
NSOLO = 4


def g2_setup(a):
    ACC = 128
    gN0, gZ0, gZ1 = 6, 7, 8
    a("v_and_b32 v16, 15, v3")
    a("v_lshlrev_b32 v16, 15, v16")
    a("s_lshl_b32 %s, %s, 21" % (s(T0), s(sWM)))
    a("s_lshl_b32 %s, %s, 11" % (s(T1), s(sCLS)))
    a("s_add_u32 %s, %s, %s" % (s(T0), s(T0), s(T1)))
    a("s_lshl_b32 %s, %s, 7" % (s(T1), s(sNB8)))
    a("s_add_u32 %s, %s, %s" % (s(T0), s(T0), s(T1)))
    a("s_mul_i32 %s, %s, %d" % (s(T1), s(sKH), 128 * US()))
    a("s_add_u32 %s, %s, %s" % (s(T0), s(T0), s(T1)))
    a("s_lshl_b32 %s, %s, 6" % (s(T1), s(sWN)))
    a("s_add_u32 %s, %s, %s" % (s(T0), s(T0), s(T1)))
    a("v_add_u32 v16, %s, v16" % s(T0))
    for mt in range(4):
        a("s_mov_b32 %s, %d" % (s(C1 + mt), mt * 16 * 16 * 2048))
    a("v_add_u32 v16, v16, v21")
    a("s_lshl_b32 %s, %s, 12" % (s(T0), s(sWN)))
    a("s_add_u32 %s, %s, 16384" % (s(T0), s(T0)))
    rowimg_frag_addr(a, gZ0, gZ1, T0)
    a("v_bfe_u32 v20, v3, 2, 2")
    a("v_lshl_add_u32 v23, v18, 3, v20")
    a("v_lshlrev_b32 v23, 8, v23")
    a("v_and_b32 v22, 3, v3")
    a("v_lshl_add_u32 v23, v22, 3, v23")
    a("v_and_b32 v22, 1, v18")
    a("v_lshl_or_b32 v20, v22, 2, v20")
    a("s_lshl_b32 %s, %s, 1" % (s(T0), s(sWN)))
    a("s_lshl_b32 %s, %s, 2" % (s(T1), s(sKH)))
    a("s_add_u32 %s, %s, %s" % (s(T0), s(T0), s(T1)))
    a("v_xor_b32 v20, %s, v20" % s(T0))
    a("v_lshl_add_u32 v23, v20, 5, v23")
    a("v_add_u32 %s, 16384, v23" % v(gN0))
    a("v_mov_b32 v28, 0xff")
    a("v_mov_b32 v31, %s" % s(sTAG))
    a("v_xor_b32 v29, 0x20000, v24")
    a("v_xor_b32 v30, 0x20000, v25")
    for i in range(64):
        a("v_mov_b32 %s, 0" % v(ACC + i))


def compute_g2(a):
    ACC = 128; ACY = 192; XR = 240; RX = 96
    FR = [32, 64]
    gN0, gZ0, gZ1 = 6, 7, 8
    cN = 11
    a("s_mov_b32 %s, %d" % (s(sSLOT), 4 * G2SLOT))

    def set_addr(joint):
        r = ["v_add_u32 %s, s14, %s" % (v(cM0), v(vM0)), "v_add_u32 %s, s14, %s" % (v(cM1), v(vM1))]
        if joint:
            r.append("v_add_u32 %s, s14, %s" % (v(cN), v(gN0)))
            for nt, x in ((1, 32), (2, 128), (3, 160)):
                r.append("v_xor_b32 %s, %d, %s" % (v(cN + nt), x, v(cN)))
        else:
            r += ["v_add_u32 %s, s14, %s" % (v(cN), v(gZ0)), "v_add_u32 %s, s14, %s" % (v(cN + 1), v(gZ1))]
        return r

    def next_slot():
        return ["s_add_u32 s14, s14, %d" % G2SLOT, "s_cmp_eq_u32 s14, %d" % (G2SLOT * 5), "s_cselect_b32 s14, 0, s14"]

    def reads(fs, ks, joint):
        r = []
        for t in range(4):
            if joint:
                for h in range(2):
                    r.append("ds_read_b64_tr_b16 %s, %s offset:%d" % (v(FR[fs] + 16 + 4 * t + 2 * h, 2), v(cN + t), ks * 8192 + h * 1024))
            elif t < 2:
                r.append("ds_read_b128 %s, %s offset:%d" % (v(FR[fs] + 16 + 4 * t, 4), v(cN + ks), t * 2048))
            r.append("ds_read_b128 %s, %s offset:%d" % (v(FR[fs] + 4 * t, 4), v(cM1 if ks else cM0), t * 2048))
        return r

    ot = lambda mt, nt: ACC + 4 * (nt * 4 + mt)

    def jm(fs, order=(0, 1, 2, 3)):
        o = OPT.get("ord", "n")
        if o == "m" and order == (0, 1, 2, 3):
            od = [(nt, mt) for mt in range(4) for nt in order]
        elif o == "z" and order == (0, 1, 2, 3):
            od = [(nt, mt if nt % 2 == 0 else 3 - mt) for nt in order for mt in range(4)]
        else:
            od = [(nt, mt) for nt in order for mt in range(4)]
        return [mfma(ot(mt, nt), FR[fs] + 16 + 4 * nt, FR[fs] + 4 * mt) for nt, mt in od]

    def sm(fs):
        return [mfma(ACY + 4 * (nt * 4 + mt), FR[fs] + 16 + 4 * nt, FR[fs] + 4 * mt) for nt in range(2) for mt in range(4)]

    a.all(set_addr(True))
    a("s_barrier")
    mark(a, 10)
    a.all(reads(0, 0, True))
    a("s_mov_b32 %s, 0" % s(sCNT))
    a("s_waitcnt lgkmcnt(0)")

    def joint_iter(nxt_joint, extra=(), pre_bar=(), flag=None, bar=True):
        nr = OPT.get("noread") == "1"
        interleave(a, jm(0), ([] if nr else reads(1, 1, True)) + next_slot() + set_addr(nxt_joint), per=int(OPT.get("g2per", "2")))
        a("s_waitcnt lgkmcnt(0)")
        a.all(pre_bar)
        fine(a)
        if bar:
            a("s_barrier")
        fine(a)
        interleave(a, jm(1), ([] if nr else reads(0, 0, True)) + list(extra), per=1)
        a("s_waitcnt lgkmcnt(0)")

    ZK = int(OPT.get("zk", "6"))

    def g2_loop(n):
        a("s_mov_b32 %s, 0" % s(sCNT))
        loop = a.newlabel("g2_loop")
        a.raw(".p2align 6")
        a.label(loop)
        joint_iter(True, ["s_add_u32 s15, s15, 1", "s_cmp_lt_u32 s15, %d" % n])
        a("s_cbranch_scc1 %s" % loop)

    g2_loop(ZK)
    joint_iter(True, pre_bar=["s_waitcnt vmcnt(0)"], flag="z")
    mark(a, 26)
    g2_loop(NJ - 2 - ZK)
    SM = [[32 + 4 * i for i in range(8)], [64 + 4 * i for i in range(8)]]
    SN = [[96 + 4 * i for i in range(4)], [112 + 4 * i for i in range(4)]]

    def sreads(fs):
        r = []
        for ks in range(2):
            for nt in range(2):
                r.append("ds_read_b128 %s, %s offset:%d" % (v(SN[fs][2 * ks + nt], 4), v(cN + ks), nt * 2048))
            for mt in range(4):
                r.append("ds_read_b128 %s, %s offset:%d" % (v(SM[fs][4 * ks + mt], 4), v(cM1 if ks else cM0), mt * 2048))
        return r

    def smf(fs, first=False):
        return [mfma(ACY + 4 * (nt * 4 + mt), SN[fs][2 * ks + nt], SM[fs][4 * ks + mt], "0" if first and ks == 0 else None)
                for ks in range(2) for nt in range(2) for mt in range(4)]

    def solo_addr(j):
        return ["v_add_u32 %s, %s, %s" % (v(c), hx(SOLOB + j * 24576), v(b))
                for c, b in ((cM0, vM0), (cM1, vM1), (cN, gZ0), (cN + 1, gZ1))]

    interleave(a, jm(0), reads(1, 1, True) + solo_addr(0), per=2)
    a("s_waitcnt lgkmcnt(0)")
    a("s_barrier")
    m = jm(1, (2, 3, 0, 1))
    interleave(a, m[:8], sreads(0) + solo_addr(1), per=2)
    for i in range(8):
        a(m[8 + i])
        b = ACC + 32 + 4 * i
        for j in range(4):
            a("v_bfi_b32 %s, v28, v31, %s" % (v(b + j), v(b + j)))
        a("buffer_store_dwordx4 %s, %s, %s, 0 offen offset:%d%s" % (v(b, 4), "v30" if i >= 4 else "v29", s(WS, 4), (i & 3) * 1024, smod("ex")))
    a("s_waitcnt lgkmcnt(0)")
    mark(a, 11)
    for k in range(NSOLO):
        last = k == NSOLO - 1
        interleave(a, smf(k & 1, k == 0), [] if last else sreads(1 - (k & 1)) + (solo_addr(k + 2) if k + 2 < NSOLO else []), per=2)
        if not last:
            a("s_waitcnt lgkmcnt(0)")
        if k == 0:
            a("s_barrier")
        if k == int(OPT.get("rxj", "2")):
            a("s_barrier")
    mark(a, 12)
    a("v_lshlrev_b32 v26, 4, v3")
    a("s_lshl_b32 %s, %s, 13" % (s(T0), s(sWAVE)))
    a("s_add_u32 %s, %s, %d" % (s(T0), s(T0), RXL))
    a("v_add_u32 v26, %s, v26" % s(T0))
    for i in range(16):
        a("v_lshlrev_b32 %s, 16, %s" % (v(32 + 2 * i), v(XR + i)))
        a("v_and_b32 %s, %s, %s" % (v(33 + 2 * i), s(sHI), v(XR + i)))
    a("s_barrier")
    for i in range(8):
        a("ds_read_b128 %s, v26 offset:%d" % (v(RX + 4 * i, 4), i * 1024))
    a("s_waitcnt lgkmcnt(0)")
    mark(a, 13)
    TMP = 80
    PK = [64, 68, 72, 76]
    MIMIC = OPT.get("mimic", "0") == "1"

    def rnd(regs, t):
        for i, r_ in enumerate(regs):
            a("v_cvt_pk_bf16_f32 %s, %s, %s" % (v(t + i), v(r_), v(r_ + 1)))
        for i, r_ in enumerate(regs):
            a("v_lshlrev_b32 %s, 16, %s" % (v(r_), v(t + i)))
            a("v_and_b32 %s, %s, %s" % (v(r_ + 1), s(sHI), v(t + i)))

    for mt in range(4):
        offs = [4 * mt, 4 * mt + 2, 16 + 4 * mt, 16 + 4 * mt + 2]
        o = [ACC + x for x in offs]
        y = [ACY + x for x in offs]
        xf = [32 + 8 * mt + 2 * i for i in range(4)]
        for i in range(4):
            a("v_pk_add_f32 %s, %s, %s" % (v(o[i], 2), v(o[i], 2), v(RX + offs[i], 2)))
        if MIMIC:
            rnd(o, 48)
        silu_pk(a, o, [TMP + 2 * i for i in range(4)])
        if MIMIC:
            rnd(o, 48)
            rnd(y, 52)
        if MIMIC:
            for i in range(4):
                a("v_pk_mul_f32 %s, %s, %s" % (v(o[i], 2), v(o[i], 2), v(y[i], 2)))
            rnd(o, 48)
            for i in range(4):
                a("v_pk_add_f32 %s, %s, %s" % (v(o[i], 2), v(o[i], 2), v(xf[i], 2)))
        else:
            for i in range(4):
                a("v_pk_fma_f32 %s, %s, %s, %s" % (v(o[i], 2), v(o[i], 2), v(y[i], 2), v(xf[i], 2)))
        P = PK[mt]
        for i in range(4):
            a("v_cvt_pk_bf16_f32 %s, %s, %s" % (v(P + i), v(o[i]), v(o[i] + 1)))
        a("s_nop 1")
        a("v_permlane16_swap_b32 %s, %s" % (v(P), v(P + 2)))
        a("v_permlane16_swap_b32 %s, %s" % (v(P + 1), v(P + 3)))
        a("buffer_store_dwordx4 %s, v16, %s, %s offen%s" % (v(P, 4), s(OUT, 4), s(C1 + mt), OPT.get("outmod", "_sc0_sc1").replace("_", " ")))
    flag_store(a, "epoch", 0)
    mark(a, 14)
    fine_dump(a, 1)
    a("s_endpgm")


GVA, GVB, GVA2, GVB2, GVC, GVD = 32, 36, 40, 44, 48, 52
GZA, GHA = 58, 59


def g2_loader_setup(a):
    a("v_lshrrev_b32 v6, 4, v3")
    a("s_lshr_b32 %s, %s, 1" % (s(T0), s(sL)))
    a("s_lshl_b32 %s, %s, 2" % (s(T0), s(T0)))
    a("v_or_b32 v7, %s, v6" % s(T0))
    a("v_lshlrev_b32 v7, 1, v7")
    a("v_and_b32 v28, 15, v3")
    a("v_xor_b32 v7, v7, v28")
    a("v_lshlrev_b32 v7, 4, v7")
    a("v_lshl_add_u32 v6, v6, 11, v7")
    a("s_mul_i32 %s, %s, %d" % (s(T0), s(sKH), 1792 * 2048))
    a("s_lshl_b32 %s, %s, 13" % (s(T1), s(sL)))
    a("s_add_u32 %s, %s, %s" % (s(T0), s(T0), s(T1)))
    a("s_lshl_b32 %s, %s, 7" % (s(T1), s(sNB8)))
    a("s_add_u32 %s, %s, %s" % (s(T0), s(T0), s(T1)))
    a("v_add_u32 v6, %s, v6" % s(T0))
    a("v_and_b32 v7, 128, v7")
    a("v_mul_u32_u24 v7, %d, v7" % (US() - 1))
    a("v_add_u32 v6, v6, v7")
    for i in range(4):
        a("v_add_u32 %s, %s, v6" % (v(GVB + i), hx(i * 16 * 2048)))
    for i in range(2):
        a("v_add_u32 %s, %s, v6" % (v(GVB2 + i), hx(((i + 2) * 16 + 192) * 2048)))
    a("s_lshl_b32 %s, %s, 4" % (s(T0), s(sCLS)))
    a("s_lshl_b32 %s, %s, 3" % (s(T1), s(sKH)))
    a("s_add_u32 %s, %s, %s" % (s(T0), s(T0), s(T1)))
    a("s_mul_i32 %s, %s, 49152" % (s(T1), s(T0)))
    a("s_add_u32 %s, %s, %s" % (s(T1), s(T1), hx(HR_OFF)))
    a("s_lshl_b32 %s, %s, 13" % (s(T2), s(T0)))
    a("s_add_u32 %s, %s, %s" % (s(T2), s(T2), hx(HL_OFF)))
    a("v_and_b32 v6, 64, v4")
    a("v_lshlrev_b32 v6, 7, v6")
    a("v_and_b32 v7, 48, v4")
    a("v_add_u32 v7, v7, v6")
    a("v_lshl_add_u32 v7, v5, 6, v7")
    a("v_add_u32 v7, %s, v7" % s(T1))
    for i in range(4):
        a("v_add_u32 %s, %d, v7" % (v(GVA + i), i * 32 * 64))
    a("v_and_b32 v7, 32, v4")
    a("v_lshl_add_u32 v6, v7, 7, v6")
    a("v_and_b32 v7, 16, v4")
    a("v_add_u32 v6, v6, v7")
    a("v_lshl_add_u32 v6, v5, 5, v6")
    a("v_add_u32 v6, %s, v6" % s(T2))
    for i in range(4):
        a("v_add_u32 %s, %d, v6" % (v(GVA2 + i), i * 32 * 32))
    a("s_cmp_gt_u32 %s, 8" % s(sCLS))
    a("s_cselect_b32 %s, -1, 0" % s(T0))
    a("s_sub_u32 %s, 16, %s" % (s(T2), s(sCLS)))
    a("s_cmp_gt_u32 %s, 8" % s(sCLS))
    a("s_cselect_b32 %s, %s, %s" % (s(T1), s(T2), s(sCLS)))
    a("s_lshl_b32 %s, %s, 19" % (s(T2), s(T1)))
    a("s_add_u32 %s, %s, %s" % (s(T2), s(T2), hx(ZT_OFF)))
    a("s_lshl_b32 %s, %s, 16" % (s(T3), s(T1)))
    a("s_add_u32 %s, %s, %s" % (s(T3), s(T3), hx(CP_OFF)))
    a("s_and_b32 %s, %s, 127" % (s(T4), s(T0)))
    for i in range(4):
        a("v_add_u32 v6, %d, v5" % (32 * i))
        a("v_xor_b32 v6, %s, v6" % s(T4))
        a("v_lshl_add_u32 v6, v6, 8, v4")
        a("v_add_u32 %s, %s, v6" % (v(GVC + i), s(T3)))
    a("s_lshl_b32 %s, %s, 6" % (s(T3), s(sNB8)))
    a("s_mul_i32 %s, %s, %d" % (s(T4), s(sKH), 64 * US()))
    a("s_add_u32 %s, %s, %s" % (s(T3), s(T3), s(T4)))
    for i in range(2):
        a("v_add_u32 v6, %d, v5" % (32 * i))
        a("v_add_u32 v6, %s, v6" % s(T3))
        a("v_xor_b32 v6, %s, v6" % s(T0))
        a("v_subrev_u32 v6, %s, v6" % s(T0))
        a("v_and_b32 v7, 3, v6")
        a("v_bfe_u32 v6, v6, 2, 8")
        a("v_lshl_add_u32 v6, v7, 8, v6")
        a("v_and_b32 v7, 48, v4")
        a("v_lshl_add_u32 v6, v6, 6, v7")
        a("v_and_b32 v7, 64, v4")
        a("v_lshl_add_u32 v6, v7, 10, v6")
        a("v_add_u32 %s, %s, v6" % (v(GVD + i), s(T2)))
    a("s_and_b32 %s, %s, 7" % (s(T3), s(T1)))
    a("s_lshl_b32 %s, %s, 9" % (s(T3), s(T3)))
    a("s_add_u32 %s, %s, %s" % (s(T3), s(T3), hx(ZF_OFF - SF_OFF)))
    a("v_add_u32 %s, %s, v31" % (v(GZA), s(T3)))
    a("s_andn2_b32 %s, %s, 127" % (s(T2), s(sHF)))
    a("v_and_b32 v6, 31, v3")
    a("v_lshlrev_b32 v6, 2, v6")
    a("v_add_u32 %s, %s, v6" % (v(GHA), s(T2)))
    a("s_and_b32 %s, %s, %d" % (s(T2), s(sCB8), 0 if OPT.get("same") == "1" else 4))
    a("s_lshl_b32 %s, %s, 2" % (s(T2), s(T2)))
    a("s_lshl_b32 %s, 0xffff, %s" % (s(sMK), s(T2)))
    a("s_not_b32 %s, %s" % (s(sMK + 2), s(sMK)))
    a("s_mov_b32 %s, 0" % s(sMK + 1))
    a("s_mov_b32 %s, 0" % s(sMK + 3))


def loader_g2(a):
    a("s_add_u32 %s, %s, %d" % (s(sWRAP), s(sSL0), G2SLOT * 5))
    NT = NJ + NSOLO
    q = []

    def slot_of(st):
        a("s_add_u32 %s, %s, %d" % (s(sSLOT), s(sSL0), ((st + 4) % 5) * G2SLOT))

    def issue(st, want_a=True, want_b=True):
        slot_of(st)
        if st < NREG:
            breg = want_b and st < NRB()
            want_b = want_b and not breg
            if want_a or want_b:
                g2_koff(a, st, want_a, want_b)
            if want_a:
                for i in range(4):
                    dma(a, i * 4096, GVA + i, WS, sKA, coh=True)
            if want_b:
                for i in range(4):
                    dma(a, 16384 + i * 4096, GVB + i, W2, sKB)
            if breg:
                a("v_add_u32 v6, %s, %s" % (hx(((st + 4) % 5) * G2SLOT + 16384), v(GWA)))
                for i in range(4):
                    a("ds_write_b128 v6, %s offset:%d" % (v(RBB + 16 * st + 4 * i, 4), i * 4096))
            q.extend([st] * (4 * want_a + 4 * want_b))
        elif st < NJ:
            lam = st - NREG
            a("s_mov_b32 %s, %d" % (s(sKA), lam * 16384))
            a("s_mov_b32 %s, %d" % (s(sKB), (448 * lam + 192) * 2048))
            for i in range(4):
                dma(a, i * 4096, GVA2 + i, WS, sKA, coh=True)
            for i in range(2):
                dma(a, 16384 + i * 4096, GVB + i, W2, sKB)
            for i in range(2):
                dma(a, 16384 + (i + 2) * 4096, GVB2 + i, W2, sKB)
            q.extend([st] * 8)
        else:
            k = st - NJ
            a("s_add_u32 %s, %s, %d" % (s(sSLOT), s(sSL0), SOLOB + k * 24576))
            a("s_mov_b32 %s, %d" % (s(sKA), (k & 1) * 128 + (k >> 1) * 32768))
            a("s_mov_b32 %s, %d" % (s(sKB), (k & 1) * 131072 + (k >> 1) * 262144))
            for i in range(4):
                dma(a, i * 4096, GVC + i, WS, sKA, coh=True)
            for i in range(2):
                dma(a, 16384 + i * 4096, GVD + i, WS, sKB, coh=True)
            q.extend([st] * 6)

    def wait(*tags):
        idx = max(i for i, x in enumerate(q) if x in tags)
        a("s_waitcnt vmcnt(%d)" % (len(q) - idx - 1))
        del q[:idx + 1]

    assert NRB() == 0
    top = a.newlabel("pre"); got = a.newlabel("got"); nogot = a.newlabel("nogot"); slow = a.newlabel("slow"); got2 = a.newlabel("got2")
    a("s_mov_b32 %s, 0" % s(T6))
    a("s_mov_b32 %s, 0" % s(T7))
    if OPT.get("e0", "0") == "1":
        poll_issue(a, 29, GHA)
        issue(0, want_a=False)
        a("s_waitcnt vmcnt(4)")
        poll_test(a, 29, s(sMK, 2))
        a("s_cbranch_scc1 %s" % slow)
        mark(a, 9)
        issue(0, want_b=False)
        a("s_barrier")
        issue(1, want_a=False)
        issue(2, want_a=False)
        a("s_branch %s" % got2)
        a.label(slow)
    else:
        if OPT.get("e0") == "2" and OPT.get("e0p", "a") == "a":
            poll_issue(a, 29, GHA)
        issue(0, want_a=False)
    a("s_barrier")
    if OPT.get("e0") == "2" and OPT.get("e0p", "a") == "b":
        poll_issue(a, 29, GHA)
    issue(1, want_a=False)
    issue(2, want_a=False)
    if OPT.get("e0") == "2":
        a("s_waitcnt vmcnt(%d)" % (12 if OPT.get("e0p", "a") == "a" else 8))
        poll_test(a, 29, s(sMK, 2))
        a("s_cbranch_scc0 %s" % got)
    a.label(top)
    poll_issue(a, 29, GHA)
    a("s_waitcnt vmcnt(0)")
    a("s_add_u32 %s, %s, 1" % (s(T7), s(T7)))
    poll_test(a, 29, s(sMK, 2))
    a("s_cbranch_scc0 %s" % got)
    a("s_sleep 2")
    a("s_cmp_lt_u32 %s, %s" % (s(T7), OPT.get("np", "2")))
    a("s_cbranch_scc1 %s" % top)
    a("s_branch %s" % nogot)
    a.label(got)
    mark(a, 9)
    issue(0, want_b=False)
    a.label(got2)
    for st in range(1, 3):
        issue(st, want_b=False)
    poll_issue(a, 30, GHA, off=128)
    a("s_mov_b32 %s, 1" % s(T6))
    a.label(nogot)
    a("s_barrier")
    late = a.newlabel("late"); go = a.newlabel("go")
    a("s_cmp_eq_u32 %s, 0" % s(T6))
    a("s_cbranch_scc1 %s" % late)
    issue(3)
    a("s_waitcnt vmcnt(17)")
    a("s_barrier")
    a("s_waitcnt vmcnt(8)")
    poll_check(a, 30, GHA, s(sMK, 2), True, off=128)
    issue(4)
    a("s_branch %s" % go)
    a.label(late)
    for st in range(3, 5):
        issue(st, want_a=False)
    poll_check(a, 29, GHA, s(sMK, 2), False, n=2, stride=128)
    mark(a, 8)
    issue(0, want_b=False)
    issue(1, want_b=False)
    a("s_waitcnt vmcnt(4)")
    a("s_barrier")
    for st in range(2, 5):
        issue(st, want_b=False)
    a("s_waitcnt vmcnt(12)")
    a.label(go)
    del q[:]
    q.extend([1] + [2] * 4 + [3] * 4 + [4] * 4)
    poll_issue(a, 29, GHA, off=256); q.append("p1")
    nxt = 5
    a.skipdma = True
    for k in range(0, NJ):
        last_issue = min(k + 5, NT - 1) if k < NJ - 3 else NT - 1
        tags = [k + 1] if k < NJ - 1 else [NJ + 1]
        chk = None
        if nxt <= 8 <= last_issue:
            tags.append("p1"); chk = "h1"
        if nxt <= 12 <= last_issue:
            tags.append("p2"); chk = "h2"
        if nxt <= NJ <= last_issue:
            tags.append("p3"); chk = "z"
        fine(a)
        if k > 0:
            wait(*tags)
        else:
            q.remove(1)
        if chk == "h1":
            poll_check(a, 29, GHA, s(sMK, 2), True, off=256)
        elif chk == "h2":
            poll_check(a, 29, GHA, s(sMK + 2, 2), True, off=256)
        elif chk is not None:
            a("s_mov_b32 %s, -1" % s(sMK))
            poll_check(a, 29, GZA, s(sMK, 2), True)
        fine(a)
        a("s_barrier")
        while nxt <= last_issue:
            issue(nxt); nxt += 1
        PD = int(OPT.get("pd", "9"))
        if PD and k + 5 + PD < NJ:
            w2_prefetch(a, [2 * (k + 5 + PD), 2 * (k + 5 + PD) + 1])
        if k == int(OPT.get("zk", "6")):
            flag_store(a, "z")
        if k in (int(OPT.get("cr2", "9")), int(OPT.get("cr3", "17"))):
            code_refresh(a, q)
        if k == 3:
            poll_issue(a, 29, GHA, off=256); q.append("p2")
        if k == NJ - 9:
            poll_issue(a, 29, GZA); q.append("p3")
    assert (NJ - 1 + 4) % 5 * G2SLOT == RXL
    RX = 64
    a("s_lshl_b32 %s, s2, 15" % s(T0))
    a("s_lshl_b32 %s, %s, 13" % (s(T1), s(sL)))
    a("s_add_u32 %s, %s, %s" % (s(T0), s(T0), s(T1)))
    a("s_add_u32 %s, %s, %s" % (s(T0), s(T0), hx(EX_OFF)))
    a("v_lshlrev_b32 v6, 4, v3")
    a("v_add_u32 v24, %s, v6" % s(T0))
    a("v_add_u32 v25, 4096, v24")
    a("s_add_u32 %s, %s, %d" % (s(T1), s(T1), RXL))
    a("v_add_u32 v6, %s, v6" % s(T1))
    a("v_mov_b32 v28, 0xff")
    a("v_mov_b32 v31, %s" % s(sTAG))
    wait(NT - 1)
    a("s_barrier")
    a("s_barrier")
    top = a.newlabel("rx"); ok = a.newlabel("rxok")
    a("s_mov_b32 %s, 0" % s(T7))
    a.label(top)
    for i in range(8):
        a("buffer_load_dwordx4 %s, %s, %s, 0 offen offset:%d sc1" % (v(RX + 4 * i, 4), "v25" if i >= 4 else "v24", s(WS, 4), (i & 3) * 1024))
    a("s_waitcnt vmcnt(0)")
    a("v_or3_b32 v26, %s, %s, %s" % (v(RX), v(RX + 1), v(RX + 2)))
    a("v_bitop3_b32 v27, %s, %s, %s bitop3:0x80" % (v(RX), v(RX + 1), v(RX + 2)))
    for i in range(3, 31, 2):
        a("v_or3_b32 v26, v26, %s, %s" % (v(RX + i), v(RX + i + 1)))
        a("v_bitop3_b32 v27, v27, %s, %s bitop3:0x80" % (v(RX + i), v(RX + i + 1)))
    a("v_or_b32 v26, v26, %s" % v(RX + 31))
    a("v_and_b32 v27, v27, %s" % v(RX + 31))
    a("v_xor_b32 v26, v26, v31")
    a("v_xor_b32 v27, v27, v31")
    a("v_or_b32 v26, v26, v27")
    a("v_and_b32 v26, v26, v28")
    a("v_cmp_ne_u32 vcc, 0, v26")
    a("s_add_u32 %s, %s, 1" % (s(T7), s(T7)))
    a("s_nop 3")
    a("s_cbranch_vccz %s" % ok)
    a("s_sleep 2")
    a("s_cmp_lt_u32 %s, %d" % (s(T7), SPIN_MAX))
    a("s_cbranch_scc1 %s" % top)
    a.label(ok)
    for i in range(8):
        for j in range(4):
            a("v_bfi_b32 %s, v28, 0, %s" % (v(RX + 4 * i + j), v(RX + 4 * i + j)))
        a("ds_write_b128 v6, %s offset:%d" % (v(RX + 4 * i, 4), i * 1024))
    mark(a, 11, T7)
    fine_dump(a, 1)
    a("s_waitcnt lgkmcnt(0)")
    a("s_barrier")
    a("s_endpgm")


HEADER = """; Kernarg layout (88 bytes, ptrs only, base s[0:1]): 0 A_x, 8 dft_seq_re, 16 dft_seq_im, 24 dft_hid_re,
"""


def main():
    global STAMP
    args = sys.argv[1:]
    global FINE, NSGPR
    if "--fine" in args:
        FINE = True; NSGPR = 102; args.remove("--fine")
    if "--stamp" in args:
        STAMP = True; args.remove("--stamp")
    for x in list(args):
        if x.startswith("--") and "=" in x:
            k, val = x[2:].split("="); OPT[k] = val; args.remove(x)
    a = Asm()
    a.raw(HEADER.rstrip("\n"))
    nv = 256
    a.raw("; @launch grid=(256,1,1) block=(512,1,1) lds=163840")
    a.raw('.amdgcn_target "amdgcn-amd-amdhsa--gfx950"')
    a.raw(".text")
    name = NAME + "_kernel"
    kernel_header(a, name)
    prologue(a, "L_end")
    if FINE:
        a("s_mov_b32 s100, 0")
        a("v_mov_b32 v250, 0")
    mark(a, 0)
    a("s_cmp_ge_u32 %s, 4" % s(sWAVE))
    a("s_cbranch_scc1 L_loader")
    compute_setup(a)
    a("s_barrier")
    prep_ln(a)
    a("s_waitcnt lgkmcnt(0)")
    tag_ready(a)
    a("v_mov_b32 v29, %d" % SYNC)
    a("v_mov_b32 v30, 1")
    a("s_mov_b64 exec, 1")
    a("ds_add_u32 v29, v30")
    a("s_mov_b64 exec, -1")
    a("s_mov_b32 %s, 0" % s(T7))
    a.label("L_sync")
    a("ds_read_b32 v30, v29")
    a("s_add_u32 %s, %s, 1" % (s(T7), s(T7)))
    a("s_waitcnt lgkmcnt(0)")
    a("v_readfirstlane_b32 %s, v30" % s(T6))
    a("s_cmp_ge_u32 %s, %d" % (s(T7), SPIN_MAX))
    a("s_cbranch_scc1 L_synced")
    a("s_cmp_lt_u32 %s, 4" % s(T6))
    a("s_cbranch_scc1 L_sync")
    a.label("L_synced")
    if OPT.get("sst") == "1":
        mark(a, 30)
    dft = prep_dft(a)
    dft(0)
    a("s_waitcnt lgkmcnt(0)")
    dft(1)
    if OPT.get("sst") == "1":
        mark(a, 31)
    dft(3)
    compute_g1_s1(a)
    compute_g2(a)
    a.label("L_loader")
    if OPT.get("lprio", "0") != "0":
        a("s_setprio %s" % OPT.get("lprio", "0"))
    loader_setup(a)
    loader_g1_s1(a)
    loader_g2(a)
    a.label("L_end")
    a("s_endpgm")
    a.raw('.section .rodata,"a"')
    a.raw(kernel_desc(name, nv, NSGPR).rstrip("\n"))
    out = args[0] if args else "cdna_kernels/%s.s" % NAME
    open(out, "w").write(a.text())


if __name__ == "__main__":
    main()
```

```python
import math, struct, sys

NAME = "recurrent_scan__spectral_fnet__dense_activation_silu__prompt"

CS_OFF = 0x0000000
STAT_OFF = 0x0040000
HF_OFF = 0x0060000
SF_OFF = 0x0052000
ZF_OFF = 0x0054000
EP_OFF = 0x0058000
CP_OFF = 0x0100000
DP_OFF = 0x0200000
CB_OFF = 0x0400000
ZT_OFF = 0x0800000
HR_OFF = 0x0D00000
HL_OFF = 0x1900000
EX_OFF = 0x1C00000
STAMP_OFF = 0x4000000
WS_SZ = 0x10000000

STAMP = False
SC1 = " sc1"
SPIN_MAX = 200000
OPT = {}

G1SLOT = 45056
G2SLOT = 32768
STG = 143360
CSP = 135168
CSB = 161792
STB = 162816
S1SLOTS = [0, 32768, 65536, 98304]

sWAVE, sXCD, sLOC, sRB, sCB, sTAU, sCLS, sCB8, sKH = 3, 4, 5, 6, 7, 8, 9, 10, 11
sWM, sWN, sSLOT, sCNT = 12, 13, 14, 15
sL = 12
T0, T1, T2, T3, T4, T5, T6, T7 = 16, 17, 18, 19, 20, 21, 22, 23
sNB8 = 39
sTAG, sMK = 38, 76
sSP, sHALF, sHF = 26, 27, 28
WS, W1, DR, DI, W2, CR, CI, XS, OUT, DBG = 40, 44, 48, 52, 56, 60, 64, 68, 72, 76
sNL2E, sHI = 80, 82
C1, C2, C3 = 84, 86, 88
sKA, sKB, sWRAP, sSL0, sP3 = 90, 91, 92, 93, 94
NSGPR = 100


def f32(x):
    return struct.unpack("<I", struct.pack("<f", x))[0]


def hx(x):
    return "0x%x" % (x & 0xFFFFFFFF)


def v(i, n=1):
    return "v%d" % i if n == 1 else "v[%d:%d]" % (i, i + n - 1)


def s(i, n=1):
    return "s%d" % i if n == 1 else "s[%d:%d]" % (i, i + n - 1)


class Asm:
    def __init__(self):
        self.lines = []
        self.uid = 0

    def __call__(self, txt):
        self.lines.append("    " + txt)

    def label(self, l):
        self.lines.append(l + ":")

    def newlabel(self, p):
        self.uid += 1
        return "L_%s_%d" % (p, self.uid)

    def c(self, txt):
        self.lines.append("    ; " + txt)

    def raw(self, txt):
        self.lines.append(txt)

    def all(self, lst):
        for x in lst:
            self(x)

    def text(self):
        return "\n".join(self.lines) + "\n"


def srd(a, dst, ptr, off, size):
    if off:
        a("s_add_u32 %s, %s, %s" % (s(dst), s(ptr), hx(off)))
        a("s_addc_u32 %s, %s, 0" % (s(dst + 1), s(ptr + 1)))
    else:
        a("s_mov_b32 %s, %s" % (s(dst), s(ptr)))
        a("s_mov_b32 %s, %s" % (s(dst + 1), s(ptr + 1)))
    a("s_mov_b32 %s, %s" % (s(dst + 2), hx(size)))
    a("s_mov_b32 %s, 0x20000" % s(dst + 3))


def kernel_header(a, name):
    a.raw(".globl %s" % name)
    a.raw(".p2align 8")
    a.raw(".type %s,@function" % name)
    a.label(name)


def kernel_desc(name, vgpr, sgpr):
    acc = (vgpr + 3) // 4 * 4
    return "\n".join([
        ".p2align 6",
        ".amdhsa_kernel %s" % name,
        "  .amdhsa_next_free_vgpr %d" % vgpr,
        "  .amdhsa_next_free_sgpr %d" % sgpr,
        "  .amdhsa_accum_offset %d" % acc,
        "  .amdhsa_group_segment_fixed_size 0",
        "  .amdhsa_kernarg_size 88",
        "  .amdhsa_user_sgpr_count 2",
        "  .amdhsa_user_sgpr_kernarg_segment_ptr 1",
        "  .amdhsa_system_sgpr_workgroup_id_x 1",
        ".end_amdhsa_kernel",
    ]) + "\n"


NEG1 = " neg_lo:[0,1] neg_hi:[0,1]"


def smod(kind):
    return OPT.get(kind + "mod", "_sc1").replace("_", " ")


def mark(a, idx, extra=None):
    if idx == 0 and not getattr(a, "dt0", False):
        a.dt0 = True
        dbgt(a, 15, neg=True)
        dbgt(a, 0)
    elif idx in (3, 4, 5, 6, 7, 10, 11, 13) and extra is None:
        dbgt(a, idx)
    elif idx == 14:
        dbgt(a, 14, few=False)
    if not STAMP:
        return
    lab = a.newlabel("nost")
    a("s_and_b32 s96, %s, 3" % s(sWAVE))
    a("s_cmp_lg_u32 s96, 0")
    a("s_cbranch_scc1 %s" % lab)
    a("s_memrealtime s[96:97]")
    a("s_memtime s[98:99]")
    a("s_waitcnt lgkmcnt(0)")
    r0 = 252 if idx in (0, 28, 29, 30, 31) else 0
    a("v_mov_b32 %s, s96" % v(r0))
    a("v_mov_b32 %s, %s" % (v(r0 + 1), "s98" if extra is None else s(extra)))
    a("s_lshl_b32 s96, s2, 8")
    a("s_lshl_b32 s97, %s, 5" % s(sWAVE))
    a("s_add_u32 s96, s96, s97")
    a("s_add_u32 s96, s96, %s" % hx(STAMP_OFF + idx * 8))
    a("v_mov_b32 %s, s96" % v(r0 + 2))
    a("buffer_store_dwordx2 %s, %s, %s, 0 offen" % (v(r0, 2), v(r0 + 2), s(WS, 4)))
    a.label(lab)


FINE = False


def dbgt(a, idx, neg=False, few=True):
    if OPT.get("dbgt") != "1":
        return
    lab = a.newlabel("nodt")
    a("s_cmp_lg_u32 %s, 0" % s(sWAVE))
    a("s_cbranch_scc1 %s" % lab)
    if few:
        a("s_cmp_ge_u32 s2, 8")
        a("s_cbranch_scc1 %s" % lab)
    a("s_memrealtime s[96:97]")
    a("s_waitcnt lgkmcnt(0)")
    if neg:
        a("s_not_b32 s96, s96")
    a("v_mov_b32 v252, s96")
    a("v_mov_b32 v253, %d" % (4 * idx))
    a("s_mov_b64 exec, 1")
    a("global_atomic_umax v253, v252, s[34:35] sc1")
    a("s_mov_b64 exec, -1")
    a.label(lab)


def fine(a):
    if not FINE:
        return
    a("s_memtime s[98:99]")
    a("s_waitcnt lgkmcnt(0)")
    a("s_mov_b32 m0, s100")
    a("s_nop 0")
    a("v_writelane_b32 v250, s98, m0")
    a("s_add_u32 s100, s100, 1")


def fine_dump(a, slot):
    if not FINE:
        return
    a("s_lshl_b32 s96, s2, 11")
    a("s_lshl_b32 s97, %s, 8" % s(sWAVE))
    a("s_add_u32 s96, s96, s97")
    a("s_add_u32 s96, s96, %s" % hx(STAMP_OFF + 0x100000 * (1 + slot)))
    a("v_lshlrev_b32 v251, 2, v3")
    a("buffer_store_dword v250, v251, %s, s96 offen" % s(WS, 4))
    a("s_mov_b32 s100, 0")
    a("s_nop 1")
    a("v_mov_b32 v250, 0")


def interleave(a, main, fill, per=1, start=0):
    fi = 0
    for i, m in enumerate(main):
        a(m)
        if i >= start:
            for _ in range(per):
                if fi < len(fill):
                    a(fill[fi]); fi += 1
    while fi < len(fill):
        a(fill[fi]); fi += 1


def mfma(d, sa, sb, c=None):
    return "v_mfma_f32_16x16x32_bf16 %s, %s, %s, %s" % (v(d, 4), v(sa, 4), v(sb, 4), v(d, 4) if c is None else c)


def prologue(a, endlab):
    a("s_cmp_ge_u32 s2, 256")
    a("s_cbranch_scc1 %s" % endlab)
    if OPT.get("cpf", "1") == "1":
        a("s_getpc_b64 s[96:97]")
        a.label("L_pc")
        a("s_lshr_b32 s98, s2, 3")
        a("s_lshl_b32 s98, s98, 13")
        a("v_lshl_add_u32 v2, v0, 4, s98")
        a("v_cmp_gt_u32 vcc, L_end-L_pc, v2")
        a("s_and_saveexec_b64 s[98:99], vcc")
        a("s_cbranch_execz L_nocpf")
        a("global_load_dwordx4 v[244:247], v2, s[96:97]")
        a.label("L_nocpf")
        a("s_mov_b64 exec, -1")
    a("s_load_dwordx16 s[16:31], s[0:1], 0")
    a("s_load_dwordx4 s[32:35], s[0:1], 64")
    a("s_load_dwordx2 s[36:37], s[0:1], 80")
    a("v_lshrrev_b32 v1, 6, v0")
    a("v_and_b32 v3, 63, v0")
    a("s_and_b32 %s, s2, 7" % s(sXCD))
    a("s_lshr_b32 %s, s2, 3" % s(sLOC))
    a("v_readfirstlane_b32 %s, v1" % s(sWAVE))
    a("s_and_b32 s6, s4, 1"); a("s_lshl_b32 s6, s6, 3"); a("s_and_b32 s7, s5, 7"); a("s_add_u32 s6, s6, s7")
    a("s_lshr_b32 s7, s4, 1"); a("s_lshl_b32 s7, s7, 2"); a("s_lshr_b32 s8, s5, 3"); a("s_add_u32 s7, s7, s8")
    a("s_lshl_b32 s8, s4, 5"); a("s_add_u32 s8, s8, s5")
    a("s_mov_b32 s9, s6")
    a("s_lshr_b32 s11, s7, 3")
    a("s_and_b32 s10, s7, 7")
    a("s_mov_b32 %s, %s" % (s(sNL2E), hx(f32(-1.4426950408889634))))
    a("s_mov_b32 %s, %s" % (s(sNL2E + 1), hx(f32(-1.4426950408889634))))
    a("s_mov_b32 %s, 0xffff0000" % s(sHI))
    a("s_lshr_b32 s38, %s, 1" % s(sTAU))
    a("s_and_b32 s39, %s, 1" % s(sTAU))
    a("v_lshlrev_b32 v26, 18, v1")
    a("v_and_b32 v27, 31, v3")
    a("v_lshl_add_u32 v26, v27, 3, v26")
    a("v_lshrrev_b32 v27, 5, v3")
    a("v_lshl_add_u32 v26, v27, 9, v26")
    a("s_lshl_b32 s95, s38, 11")
    a("v_add_u32 v26, s95, v26")
    a("s_lshl_b32 s95, s39, 8")
    a("v_add_u32 v26, s95, v26")
    a("v_xor_b32 v27, 0x100, v26")
    a("v_mov_b32 v28, %d" % SYNC)
    a("v_mov_b32 v29, 0")
    a("ds_write_b32 v28, v29")
    a("s_waitcnt lgkmcnt(0)")
    srd(a, XS, 16, 0, 2048 * 1024 * 2)
    a("s_cmp_ge_u32 %s, 4" % s(sWAVE))
    a("s_cbranch_scc1 L_nox")
    for ri, B in enumerate(RAWB):
        a("s_mov_b32 s95, %s" % hx(ri * 0x100000))
        for hh in range(2):
            for jj in range(2):
                a("buffer_load_dwordx2 %s, %s, %s, s95 offen offset:%d" % (
                    v(B + 4 * hh + 2 * jj, 2), "v27" if hh else "v26", s(XS, 4), 1024 * jj))
    a.label("L_nox")
    srd(a, WS, 36, 0, WS_SZ)
    srd(a, W1, 28, 0, 1024 * 3584 * 2)
    srd(a, DR, 22, 0, 1024 * 1024 * 2)
    srd(a, DI, 24, 0, 1024 * 1024 * 2)
    srd(a, W2, 30, 0, 3584 * 1024 * 2)
    srd(a, CR, 18, 0, 2048 * 2048 * 2)
    srd(a, CI, 20, 0, 2048 * 2048 * 2)
    srd(a, OUT, 32, 0, 2048 * 1024 * 2)
    a("s_mov_b32 %s, s38" % s(sSP))
    a("s_mov_b32 %s, s39" % s(sHALF))
    a("s_lshl_b32 %s, %s, 4" % (s(sHF), s(sRB)))
    a("s_add_u32 %s, %s, %s" % (s(sHF), s(sHF), s(sCB)))
    a("s_lshr_b32 s95, %s, 3" % s(sHF))
    a("s_lshl_b32 s95, s95, 9")
    a("s_lshl_b32 %s, %s, 2" % (s(sHF), s(sCB8)))
    a("s_add_u32 %s, %s, %s" % (s(sHF), s(sHF), s(sWAVE)))
    a("s_lshl_b32 %s, %s, 2" % (s(sHF), s(sHF)))
    a("s_and_b32 %s, %s, 127" % (s(sHF), s(sHF)))
    a("s_add_u32 %s, %s, s95" % (s(sHF), s(sHF)))
    a("s_add_u32 %s, %s, %s" % (s(sHF), s(sHF), hx(HF_OFF)))
    if US() == 1:
        a("s_lshl_b32 %s, %s, 1" % (s(sNB8), s(sCB8)))
    elif US() == 2:
        a("s_and_b32 s95, %s, 1" % s(sCB8))
        a("s_lshr_b32 %s, %s, 1" % (s(sNB8), s(sCB8)))
        a("s_lshl_b32 %s, %s, 2" % (s(sNB8), s(sNB8)))
        a("s_add_u32 %s, %s, s95" % (s(sNB8), s(sNB8)))
    else:
        a("s_and_b32 s95, %s, 3" % s(sCB8))
        a("s_lshr_b32 %s, %s, 2" % (s(sNB8), s(sCB8)))
        a("s_lshl_b32 %s, %s, 3" % (s(sNB8), s(sNB8)))
        a("s_add_u32 %s, %s, s95" % (s(sNB8), s(sNB8)))
    a("s_load_dword %s, s[36:37], %s" % (s(sTAG), hx(EP_OFF)))


def US():
    return int(OPT.get("us", "1"))


ROWB = [32, 76]
RAWB = [32, 76, 240, 120]


def tag_ready(a):
    a("s_add_u32 %s, %s, 0x9e3779b9" % (s(sTAG), s(sTAG)))


def flag_store(a, kind, wave=4):
    lab = a.newlabel("nf")
    a("s_cmp_lg_u32 %s, %d" % (s(sWAVE), wave))
    a("s_cbranch_scc1 %s" % lab)
    if kind == "h":
        a("v_mov_b32 v2, %s" % s(sHF))
    elif kind == "epoch":
        a("s_cmp_lg_u32 s2, 0")
        a("s_cbranch_scc1 %s" % lab)
        a("v_mov_b32 v2, %s" % hx(EP_OFF))
    else:
        idx = "s2" if kind == "s" else s(sTAU)
        a("s_lshr_b32 s96, %s, 3" % idx)
        a("s_lshl_b32 s96, s96, 7")
        a("s_and_b32 s97, %s, 7" % idx)
        a("s_lshl_b32 s97, s97, 2")
        a("s_add_u32 s96, s96, s97")
        a("s_add_u32 s96, s96, %s" % hx(SF_OFF if kind == "s" else ZF_OFF))
        a("v_mov_b32 v2, s96")
    a("v_mov_b32 v1, %s" % s(sTAG))
    a("s_mov_b64 exec, 1")
    a("buffer_store_dword v1, v2, %s, 0 offen sc1" % s(WS, 4))
    a("s_mov_b64 exec, -1")
    a("s_nop 3")
    a.label(lab)


def poll_issue(a, vdst, vaddr, n=1, off=0, stride=1024):
    for i in range(n):
        a("buffer_load_dword %s, %s, %s, 0 offen offset:%d sc1" % (v(vdst + i), v(vaddr), s(WS, 4), off + i * stride))


def hflag(a, phase, n):
    a("v_mov_b32 v1, %s" % s(sTAG))
    a("v_mov_b32 v2, %s" % s(sHF))
    a("s_waitcnt vmcnt(%d)" % n)
    a("s_mov_b64 exec, 1")
    a("buffer_store_dword v1, v2, %s, 0 offen offset:%d sc1" % (s(WS, 4), phase * 128))
    a("s_mov_b64 exec, -1")


def poll_test(a, vdst, mask, n=1):
    a("v_cmp_ne_u32 vcc, %s, %s" % (s(sTAG), v(vdst)))
    for i in range(1, n):
        a("v_cmp_ne_u32 s[96:97], %s, %s" % (s(sTAG), v(vdst + i)))
        a("s_or_b64 vcc, vcc, s[96:97]")
    a("s_nop 0")
    a("s_and_b64 vcc, vcc, %s" % mask)


def poll_check(a, vdst, vaddr, mask, issued, n=1, off=0, stride=1024):
    top = a.newlabel("poll"); done = a.newlabel("pdone"); chk = a.newlabel("pchk")
    a("s_mov_b32 %s, 0" % s(T7))
    if issued:
        a("s_branch %s" % chk)
    a.label(top)
    poll_issue(a, vdst, vaddr, n, off, stride)
    a("s_waitcnt vmcnt(0)")
    a.label(chk)
    a("s_add_u32 %s, %s, 1" % (s(T7), s(T7)))
    poll_test(a, vdst, mask, n)
    a("s_cbranch_scc0 %s" % done)
    a("s_sleep %s" % OPT.get("sleep", "4"))
    a("s_cmp_lt_u32 %s, %d" % (s(T7), SPIN_MAX))
    a("s_cbranch_scc1 %s" % top)
    a.label(done)


def prep_ln(a):
    a("v_lshlrev_b32 v31, 8, v1")
    a("v_and_b32 v2, 31, v3")
    a("v_lshl_add_u32 v31, v2, 3, v31")
    a("v_lshrrev_b32 v2, 5, v3")
    a("v_lshl_add_u32 v31, v2, 12, v31")
    a("v_add_u32 v31, %d, v31" % STG)
    a("s_and_b32 %s, %s, 15" % (s(T0), s(sSP)))
    a("s_lshl_b32 %s, %s, 7" % (s(T0), s(T0)))
    a("s_lshr_b32 %s, %s, 4" % (s(T1), s(sSP)))
    a("s_add_u32 %s, %s, %s" % (s(T0), s(T0), s(T1)))
    a("s_lshl_b32 %s, %s, 3" % (s(T1), s(sWAVE)))
    a("s_add_u32 %s, %s, %s" % (s(T0), s(T0), s(T1)))
    a("s_lshl_b32 %s, %s, 3" % (s(T0), s(T0)))
    a("s_add_u32 %s, %s, %s" % (s(T0), s(T0), hx(STAT_OFF)))
    a("v_mov_b32 v2, %s" % s(T0))
    for ps in range(2):
        a("s_waitcnt vmcnt(%d)" % (8 if ps == 0 else 0))
        if OPT.get("sst") == "1":
            mark(a, 28 + ps)
        prep_ln_pass(a, ps)
    lab = a.newlabel("nostat")
    a("s_cmp_lg_u32 %s, 0" % s(sHALF))
    a("s_cbranch_scc1 %s" % lab)
    a("s_mov_b64 exec, 1")
    for ri in range(4):
        a("buffer_store_dwordx2 %s, v2, %s, 0 offen offset:%d%s" % (v(ROWB[ri & 1] + 32 * (ri >> 1), 2), s(WS, 4), ri * 256, SC1))
    a("s_mov_b64 exec, -1")
    a.label(lab)


def prep_ln_pass(a, ps):
    streams = []
    for rj, B in enumerate(ROWB):
        ri = 2 * ps + rj
        RAW, X, T, M, R, D = RAWB[ri], B + 8, B + 24, B + 32, B + 34, B + 36
        S1, S2 = (T5, T6) if rj == 0 else (24, 25)
        L = []
        for p in range(8):
            L.append("v_lshlrev_b32 %s, 16, %s" % (v(X + 2 * p), v(RAW + p)))
            L.append("v_and_b32 %s, %s, %s" % (v(X + 2 * p + 1), s(sHI), v(RAW + p)))
        pk = lambda d, x, y, m="": L.append("v_pk_add_f32 %s, %s, %s%s" % (v(d, 2), v(x, 2), v(y, 2), m))

        def wsum(r, sd):
            for m in ("quad_perm:[1,0,3,2] row_mask:0xf", "quad_perm:[2,3,0,1] row_mask:0xf",
                      "row_half_mirror row_mask:0xf", "row_mirror row_mask:0xf",
                      "row_bcast:15 row_mask:0xa", "row_bcast:31 row_mask:0xc"):
                L.append("s_nop 0")
                L.append("v_add_f32_dpp %s, %s, %s %s bank_mask:0xf" % (v(r), v(r), v(r), m))
            L.append("s_nop 0")
            L.append("v_readlane_b32 %s, %s, 63" % (s(sd), v(r)))
            L.append("s_nop 0")
        pk(T, X, X + 2); pk(T + 2, X + 4, X + 6); pk(T + 4, X + 8, X + 10); pk(T + 6, X + 12, X + 14)
        pk(T, T, T + 2); pk(T + 4, T + 4, T + 6); pk(T, T, T + 4)
        L.append("v_add_f32 %s, %s, %s" % (v(T), v(T), v(T + 1)))
        wsum(T, S1)
        L.append("v_mov_b32 %s, %s" % (v(M), hx(f32(1.0 / 1024))))
        L.append("v_mul_f32 %s, %s, %s" % (v(M), s(S1), v(M)))
        for g4 in range(2):
            for p in range(4):
                pk(D + 2 * p, X + 8 * g4 + 2 * p, M, " op_sel_hi:[1,0]" + NEG1)
            for p in range(4):
                t = T + 2 * (p & 1)
                if g4 == 0 and p < 2:
                    L.append("v_pk_mul_f32 %s, %s, %s" % (v(t, 2), v(D + 2 * p, 2), v(D + 2 * p, 2)))
                else:
                    L.append("v_pk_fma_f32 %s, %s, %s, %s" % (v(t, 2), v(D + 2 * p, 2), v(D + 2 * p, 2), v(t, 2)))
        pk(T, T, T + 2)
        L.append("v_add_f32 %s, %s, %s" % (v(T), v(T), v(T + 1)))
        wsum(T, S2)
        L.append("v_mov_b32 %s, %s" % (v(R), hx(f32(1.0 / 1024))))
        L.append("v_mul_f32 %s, %s, %s" % (v(R), s(S2), v(R)))
        L.append("v_cvt_pk_bf16_f32 %s, %s, %s" % (v(R), v(R), v(R)))
        L.append("v_lshlrev_b32 %s, 16, %s" % (v(R), v(R)))
        L.append("v_add_f32 %s, %s, %s" % (v(R), hx(f32(1e-5)), v(R)))
        L.append("v_cvt_pk_bf16_f32 %s, %s, %s" % (v(R), v(R), v(R)))
        L.append("v_lshlrev_b32 %s, 16, %s" % (v(R), v(R)))
        L.append("v_sqrt_f32 %s, %s" % (v(R), v(R)))
        L.append("v_cvt_pk_bf16_f32 %s, %s, %s" % (v(M), v(M), v(M)))
        L.append("v_cvt_pk_bf16_f32 %s, %s, %s" % (v(R), v(R), v(R)))
        L.append("v_lshlrev_b32 %s, 16, %s" % (v(M), v(M)))
        L.append("v_lshlrev_b32 %s, 16, %s" % (v(R), v(R)))
        L.append("v_rcp_f32 %s, %s" % (v(R), v(R)))
        for p in range(4):
            pk(D + 2 * p, X + 2 * p, M, " op_sel_hi:[1,0]" + NEG1)
        if ps == 0:
            L.append("v_mov_b32 %s, %s" % (v(B), v(M)))
            L.append("v_mov_b32 %s, %s" % (v(B + 1), v(R)))
        else:
            L.append("v_mov_b32 %s, %s" % (v(M + 1), v(R)))
        for p in range(4):
            L.append("v_cvt_pk_bf16_f32 %s, %s, %s" % (v(T + p), v(D + 2 * p), v(D + 2 * p + 1)))
        for p in range(4):
            L.append("v_lshlrev_b32 %s, 16, %s" % (v(D + 2 * p), v(T + p)))
            L.append("v_and_b32 %s, %s, %s" % (v(D + 2 * p + 1), s(sHI), v(T + p)))
        for p in range(4):
            L.append("v_pk_mul_f32 %s, %s, %s op_sel_hi:[1,0]" % (v(D + 2 * p, 2), v(D + 2 * p, 2), v(R, 2)))
        for p in range(4):
            L.append("v_cvt_pk_bf16_f32 %s, %s, %s" % (v(T + p), v(D + 2 * p), v(D + 2 * p + 1)))
        for p in range(4):
            L.append("v_lshlrev_b32 %s, 16, %s" % (v(X + 2 * p), v(T + p)))
            L.append("v_and_b32 %s, %s, %s" % (v(X + 2 * p + 1), s(sHI), v(T + p)))
        pk(D, X, X + 4); pk(D + 2, X + 2, X + 6)
        pk(D + 4, X, X + 4, NEG1); pk(D + 6, X + 2, X + 6, NEG1)
        for p in range(4):
            L.append("v_cvt_pk_f16_f32 %s, %s, %s" % (v(T + p), v(D + 2 * p), v(D + 2 * p + 1)))
        for wh in range(2):
            L.append("ds_write_b64 v31, %s offset:%d" % (v(T + 2 * wh, 2), wh * 8192 + ri * 1024))
        streams.append(L)
    for x, y in zip(*streams):
        a(x); a(y)


def prep_dft(a0):
    a = Asm()
    a("s_lshr_b32 %s, %s, 1" % (s(T0), s(sWAVE)))
    a("s_lshl_b32 %s, %s, 13" % (s(T1), s(T0)))
    a("s_add_u32 %s, %s, %d" % (s(T1), s(T1), STG))
    a("v_lshlrev_b32 v122, 2, v3")
    a("v_add_u32 v122, %s, v122" % s(T1))
    IN = [32, 48]
    for ab in range(2):
        for j in range(8):
            a("ds_read2st64_b32 %s, v122 offset0:%d offset1:%d" % (v(IN[ab] + 2 * j, 2), ab * 16 + j, ab * 16 + j + 8))
    a("s_lshl_b32 %s, %s, 9" % (s(T1), s(sSP)))
    a("s_lshl_b32 %s, %s, 8" % (s(T2), s(sHALF)))
    a("s_add_u32 %s, %s, %s" % (s(T1), s(T1), s(T2)))
    a("s_lshl_b32 %s, %s, 17" % (s(T2), s(T0)))
    a("s_add_u32 %s, %s, %s" % (s(T1), s(T1), s(T2)))
    a("s_add_u32 %s, %s, %s" % (s(T1), s(T1), hx(CB_OFF)))
    a("v_lshlrev_b32 v123, 2, v3")
    a("v_add_u32 v123, %s, v123" % s(T1))
    for r_, val in ((C1, math.cos(math.pi / 8)), (C2, math.cos(math.pi / 4)), (C3, math.cos(3 * math.pi / 8))):
        a("s_mov_b32 %s, %s" % (s(r_), hx(f32(val))))
        a("s_mov_b32 %s, %s" % (s(r_ + 1), hx(f32(val))))
    head = a.lines
    var = {}
    for parity in range(2):
        free = list(range(64, 120, 2))
        alloc = lambda: free.pop(0)

        def rel(*rs):
            free.extend(rs)

        def add(x, y):
            d = alloc(); a("v_pk_add_f32 %s, %s, %s" % (v(d, 2), v(x, 2), v(y, 2))); return d

        def sub(x, y):
            d = alloc(); a("v_pk_add_f32 %s, %s, %s%s" % (v(d, 2), v(x, 2), v(y, 2), NEG1)); return d

        def mul(x, c):
            d = alloc(); a("v_pk_mul_f32 %s, %s, %s" % (v(d, 2), v(x, 2), s(c, 2))); return d

        def fma(x, c, y, nx=False, ny=False):
            d = alloc()
            mod = " neg_lo:[%d,0,%d] neg_hi:[%d,0,%d]" % (nx, ny, nx, ny) if (nx or ny) else ""
            a("v_pk_fma_f32 %s, %s, %s, %s%s" % (v(d, 2), v(x, 2), s(c, 2), v(y, 2), mod)); return d

        def mix(r, neg):
            d = alloc()
            for h in range(2):
                a("v_fma_mix_f32 %s, %s, 1.0, %s%s op_sel:[%d,0,%d] op_sel_hi:[1,0,1]" % (v(d + h), v(r), "-" if neg else "", v(r + 1), h, h))
            rel(r)
            return d

        def dft(base):
            p = {}; q = {}
            if parity == 0:
                u = [mix(base + 2 * j, False) for j in range(8)]
                uu = []; uv = []
                for j in range(4):
                    uu.append(add(u[j], u[j + 4])); uv.append(sub(u[j], u[j + 4])); rel(u[j], u[j + 4])
                e0 = add(uu[0], uu[2]); e1 = add(uu[1], uu[3])
                p[4] = sub(uu[0], uu[2]); q[4] = sub(uu[1], uu[3]); rel(*uu)
                p[0] = add(e0, e1); p[8] = sub(e0, e1); rel(e0, e1)
                dm = sub(uv[1], uv[3]); dp = add(uv[1], uv[3])
                p[2] = fma(dm, C2, uv[0]); p[6] = fma(dm, C2, uv[0], nx=True)
                q[2] = fma(dp, C2, uv[2]); q[6] = fma(dp, C2, uv[2], ny=True)
                rel(dm, dp, *uv)
            else:
                w = [mix(base + 2 * j, True) for j in range(8)]
                aa = {}; bb = {}
                for j in (1, 2, 3):
                    aa[j] = sub(w[j], w[8 - j]); bb[j] = add(w[j], w[8 - j]); rel(w[j], w[8 - j])
                Ap = fma(aa[2], C2, w[0]); Am = fma(aa[2], C2, w[0], nx=True); rel(aa[2], w[0])
                t = mul(aa[1], C1); G1 = fma(aa[3], C3, t); rel(t)
                t = mul(aa[1], C3); G3 = fma(aa[3], C1, t, nx=True); rel(t, aa[1], aa[3])
                p[1] = add(Ap, G1); p[7] = sub(Ap, G1); p[3] = add(Am, G3); p[5] = sub(Am, G3); rel(Ap, Am, G1, G3)
                Bp = fma(bb[2], C2, w[4]); B3 = fma(bb[2], C2, w[4], ny=True); rel(bb[2], w[4])
                t = mul(bb[1], C3); H1 = fma(bb[3], C1, t); rel(t)
                t = mul(bb[1], C1); H3 = fma(bb[3], C3, t, nx=True); rel(t, bb[1], bb[3])
                q[1] = add(H1, Bp); q[7] = sub(H1, Bp); q[3] = add(H3, B3); q[5] = sub(H3, B3); rel(Bp, B3, H1, H3)
            return p, q

        a.lines = var[(1, parity)] = []
        pa, qa = dft(IN[0])
        a.lines = var[(2, parity)] = []
        pb, qb = dft(IN[1])
        tmpd = []
        for _ in range(4):
            r_ = alloc(); tmpd += [r_, r_ + 1]
        t2 = [alloc(), alloc()]
        cnt = [0]

        def st(reg, arr):
            d = tmpd[cnt[0] % len(tmpd)]; cnt[0] += 1
            a("v_cvt_pk_bf16_f32 %s, %s, %s" % (v(d), v(reg), v(reg + 1)))
            a("s_mov_b32 %s, %s" % (s(T1), hx(arr * 65536)))
            a("buffer_store_dword %s, v123, %s, %s offen%s" % (v(d), s(WS, 4), s(T1), smod("cb")))

        rs = [2, 4, 6] if parity == 0 else [1, 3, 5, 7]
        a.lines = var[(3, parity, 0)] = []
        def comb(x, y, arr1, arr2):
            a("v_pk_add_f32 %s, %s, %s" % (v(t2[0], 2), v(x, 2), v(y, 2)))
            a("v_pk_add_f32 %s, %s, %s%s" % (v(t2[1], 2), v(x, 2), v(y, 2), NEG1))
            st(t2[0], arr1); st(t2[1], arr2)
        if parity == 0:
            comb(pa[0], pb[0], 0, 4); comb(pa[8], pb[8], 1, 5)
        for r_ in rs:
            comb(pa[r_], pb[r_], r_ * 8, r_ * 8 + 4); comb(qa[r_], qb[r_], r_ * 8 + 1, r_ * 8 + 5)
        a.lines = var[(3, parity, 1)] = []
        if parity == 0:
            st(pa[0], 0); st(pb[0], 1); st(pa[8], 4); st(pb[8], 5)
        for r_ in rs:
            a("v_pk_add_f32 %s, %s, %s%s" % (v(t2[0], 2), v(pa[r_], 2), v(qb[r_], 2), NEG1))
            a("v_pk_add_f32 %s, %s, %s" % (v(t2[1], 2), v(qa[r_], 2), v(pb[r_], 2)))
            st(t2[0], r_ * 8); st(t2[1], r_ * 8 + 1)
            a("v_pk_add_f32 %s, %s, %s" % (v(t2[0], 2), v(pa[r_], 2), v(qb[r_], 2)))
            a("v_pk_add_f32 %s, %s, %s%s" % (v(t2[1], 2), v(qa[r_], 2), v(pb[r_], 2), NEG1))
            st(t2[0], r_ * 8 + 4); st(t2[1], r_ * 8 + 5)

    def split(lines):
        idx = [i for i, x in enumerate(lines) if "buffer_store" in x]
        assert len(idx) == 16
        return lines[:idx[7] + 1], lines[idx[7] + 1:]

    def emit(cases):
        done = a0.newlabel("dd")
        labs = [a0.newlabel("dc") for _ in cases]
        uniq = []
        for l_, c in enumerate(cases):
            if c not in uniq:
                uniq.append(c)
        if len(uniq) == 2:
            a0("s_bitcmp1_b32 %s, 0" % s(sWAVE))
            a0("s_cbranch_scc1 %s" % labs[1])
            a0.lines += cases[0]; a0("s_branch %s" % done)
            a0.label(labs[1]); a0.lines += cases[1]
        else:
            for l_ in range(1, 4):
                a0("s_cmp_eq_u32 %s, %d" % (s(sWAVE), l_))
                a0("s_cbranch_scc1 %s" % labs[l_])
            for l_ in range(4):
                if l_:
                    a0.label(labs[l_])
                a0.lines += cases[l_]
                if l_ < 3:
                    a0("s_branch %s" % done)
        a0.label(done)

    def piece(n):
        if n == 0:
            a0.lines += head
        elif n == 1:
            emit([var[(1, l_ & 1)] + var[(2, l_ & 1)] for l_ in range(4)])
        else:
            emit([var[(3, l_ & 1, l_ >> 1)] for l_ in range(4)])
    return piece


def rowimg_frag_addr(a, dst0, dst1, rowbase_sgpr):
    a("v_and_b32 %s, 15, v3" % v(dst0))
    a("v_lshlrev_b32 %s, 7, %s" % (v(dst0), v(dst0)))
    a("v_lshrrev_b32 %s, 4, v3" % v(dst1))
    a("v_bfe_u32 v2, v3, 1, 3")
    a("v_xor_b32 %s, %s, v2" % (v(dst1), v(dst1)))
    a("v_lshl_add_u32 %s, %s, 4, %s" % (v(dst0), v(dst1), v(dst0)))
    a("v_add_u32 %s, %s, %s" % (v(dst0), s(rowbase_sgpr), v(dst0)))
    a("v_xor_b32 %s, 64, %s" % (v(dst1), v(dst0)))


def silu_tail(a, regs, tmp):
    for t in tmp:
        a("v_exp_f32 %s, %s" % (v(t), v(t)))
        a("v_exp_f32 %s, %s" % (v(t + 1), v(t + 1)))
    for t in tmp:
        a("v_pk_add_f32 %s, %s, 1.0 op_sel_hi:[1,0]" % (v(t, 2), v(t, 2)))
    for t in tmp:
        a("v_rcp_f32 %s, %s" % (v(t), v(t)))
        a("v_rcp_f32 %s, %s" % (v(t + 1), v(t + 1)))
    for r_, t in zip(regs, tmp):
        a("v_pk_mul_f32 %s, %s, %s" % (v(r_, 2), v(r_, 2), v(t, 2)))


def silu_pk(a, regs, tmp):
    for r_, t in zip(regs, tmp):
        a("v_pk_mul_f32 %s, %s, %s" % (v(t, 2), v(r_, 2), s(sNL2E, 2)))
    silu_tail(a, regs, tmp)


ACC1 = 128
vM0, vM1, vNa, vNb, vNc = 4, 5, 6, 7, 8
cM0, cM1, cNa, cNb, cNc = 9, 10, 11, 12, 13
vZ0, vZ1 = 14, 15


def compute_setup(a):
    a("s_lshr_b32 %s, %s, 1" % (s(sWM), s(sWAVE)))
    a("s_and_b32 %s, %s, 1" % (s(sWN), s(sWAVE)))
    a("s_lshl_b32 %s, s2, 15" % s(T0))
    a("s_lshl_b32 %s, %s, 13" % (s(T1), s(sWAVE)))
    a("s_add_u32 %s, %s, %s" % (s(T0), s(T0), s(T1)))
    a("s_add_u32 %s, %s, %s" % (s(T0), s(T0), hx(EX_OFF)))
    a("v_lshlrev_b32 v24, 4, v3")
    a("v_add_u32 v24, %s, v24" % s(T0))
    a("v_add_u32 v25, 4096, v24")
    a("s_lshl_b32 %s, %s, 13" % (s(T0), s(sWM)))
    rowimg_frag_addr(a, vM0, vM1, T0)
    a("s_lshl_b32 %s, %s, 13" % (s(T0), s(sWN)))
    a("s_add_u32 %s, %s, 16384" % (s(T0), s(T0)))
    rowimg_frag_addr(a, vZ0, vZ1, T0)
    a("v_lshrrev_b32 v18, 4, v3")
    a("v_bfe_u32 v17, v3, 2, 2")
    a("v_lshl_add_u32 v17, v18, 3, v17")
    a("v_mul_u32_u24 v17, 448, v17")
    a("v_and_b32 v19, 3, v3")
    a("v_lshl_add_u32 v17, v19, 3, v17")
    a("v_and_b32 v19, 1, v18")
    a("v_lshlrev_b32 v19, 5, v19")
    a("s_lshl_b32 %s, %s, 6" % (s(T0), s(sWN)))
    a("s_add_u32 %s, %s, 16384" % (s(T0), s(T0)))
    a("v_add_u32 v20, %s, v17" % s(T0))
    a("v_add_u32 %s, v20, v19" % v(vNa))
    a("v_sub_u32 %s, v20, v19" % v(vNb))
    a("s_lshl_b32 %s, %s, 5" % (s(T0), s(sWN)))
    a("v_xor_b32 v20, %s, v19" % s(T0))
    a("v_add_u32 v20, v20, v17")
    a("v_add_u32 %s, %d, v20" % (v(vNc), 16384 + 384))
    a("v_and_b32 v21, 1, v18")
    a("v_lshlrev_b32 v21, 5, v21")
    a("v_lshrrev_b32 v19, 1, v18")
    a("v_lshl_add_u32 v21, v19, 4, v21")
    a("s_lshl_b32 %s, %s, 4" % (s(T0), s(sRB)))
    a("s_add_u32 %s, %s, %s" % (s(T0), s(T0), s(sCB)))
    a("s_mul_i32 %s, %s, 49152" % (s(T1), s(T0)))
    a("s_lshl_b32 %s, %s, 13" % (s(T2), s(sWN)))
    a("s_add_u32 %s, %s, %s" % (s(T1), s(T1), s(T2)))
    a("s_lshl_b32 %s, %s, 12" % (s(T2), s(sWM)))
    a("s_add_u32 %s, %s, %s" % (s(T1), s(T1), s(T2)))
    a("s_add_u32 %s, %s, %s" % (s(T1), s(T1), hx(HR_OFF)))
    a("v_and_b32 v22, 15, v3")
    a("v_lshl_add_u32 v17, v22, 6, v21")
    a("v_add_u32 v17, %s, v17" % s(T1))
    a("s_lshl_b32 %s, %s, 13" % (s(T1), s(T0)))
    a("s_lshl_b32 %s, %s, 12" % (s(T2), s(sWN)))
    a("s_add_u32 %s, %s, %s" % (s(T1), s(T1), s(T2)))
    a("s_lshl_b32 %s, %s, 11" % (s(T2), s(sWM)))
    a("s_add_u32 %s, %s, %s" % (s(T1), s(T1), s(T2)))
    a("s_add_u32 %s, %s, %s" % (s(T1), s(T1), hx(HL_OFF)))
    a("v_and_b32 v20, 1, v18")
    a("v_lshl_add_u32 v20, v20, 4, v22")
    a("v_lshlrev_b32 v20, 5, v20")
    a("v_lshl_add_u32 v20, v19, 4, v20")
    a("v_add_u32 v20, %s, v20" % s(T1))
    a("s_lshl_b32 %s, %s, 7" % (s(T1), s(sWN)))
    a("s_add_u32 %s, %s, %d" % (s(T1), s(T1), CSB))
    a("v_lshlrev_b32 v26, 4, v18")
    a("v_add_u32 v26, %s, v26" % s(T1))
    a("s_lshl_b32 %s, %s, 6" % (s(T1), s(sWN)))
    a("s_add_u32 %s, %s, %d" % (s(T1), s(T1), CSB + 768))
    a("v_lshlrev_b32 v27, 4, v18")
    a("v_add_u32 v27, %s, v27" % s(T1))
    a("s_lshl_b32 %s, %s, 9" % (s(T1), s(sWM)))
    a("s_add_u32 %s, %s, %d" % (s(T1), s(T1), STB))
    a("v_lshlrev_b32 v28, 3, v22")
    a("v_add_u32 v28, %s, v28" % s(T1))
    for i in range(112):
        a("v_mov_b32 %s, 0" % v(ACC1 + i))
    a("s_mov_b32 %s, 0" % s(sSLOT))


def compute_g1_s1(a):
    ACC = ACC1
    FR = [32, 76]
    cZ0, cZ1 = cNa, cNb

    def set_addr(lst):
        return ["v_add_u32 %s, %s, %s" % (v(c), s(sSLOT), v(b)) for c, b in lst]

    def next_slot():
        return ["s_add_u32 s14, s14, %d" % G1SLOT, "s_cmp_eq_u32 s14, %d" % (G1SLOT * 3), "s_cselect_b32 s14, 0, s14"]

    G1A = [(cM0, vM0), (cM1, vM1), (cNa, vNa), (cNb, vNb), (cNc, vNc)]

    def s1_addr(k):
        return ["v_add_u32 %s, %s, %s" % (v(c), hx(S1SLOTS[k]), v(b)) for c, b in
                [(cM0, vM0), (cM1, vM1), (cZ0, vZ0), (cZ1, vZ1)]]

    def g1_reads(fs, ks):
        r = []
        for nt in range(7):
            ad = cNc if nt == 6 else (cNb if nt & 1 else cNa)
            off = 0 if nt == 6 else 128 * (nt >> 1) + 32 * (nt & 1)
            for h in range(2):
                r.append("ds_read_b64_tr_b16 %s, %s offset:%d" % (
                    v(FR[fs] + 16 + 4 * nt + 2 * h, 2), v(ad), ks * 14336 + h * 1792 + off))
            if nt < 4:
                r.append("ds_read_b128 %s, %s offset:%d" % (v(FR[fs] + 4 * nt, 4), v(cM1 if ks else cM0), nt * 2048))
        return r

    def g1_mfmas(fs):
        o = OPT.get("ord", "z")
        if o == "m":
            order = [(nt, mt) for mt in range(4) for nt in range(7)]
        elif o == "z":
            order = [(nt, mt if nt % 2 == 0 else 3 - mt) for nt in range(7) for mt in range(4)]
        else:
            order = [(nt, mt) for nt in range(7) for mt in range(4)]
        return [mfma(ACC + 4 * (nt * 4 + mt), FR[fs] + 16 + 4 * nt, FR[fs] + 4 * mt) for nt, mt in order]

    def x_capture():
        lab = a.newlabel("nox")
        a("s_sub_u32 s83, s83, 1")
        a("s_cbranch_scc0 %s" % lab)
        a("v_add_u32 v29, s14, v31")
        a("v_xor_b32 v30, 32, v29")
        for mt in range(4):
            for nt in range(2):
                a("ds_read_b64 %s, %s offset:%d" % (v(240 + 4 * mt + 2 * nt, 2), "v30" if nt else "v29", mt * 2048))
        a.label(lab)

    def g1_iter(extra_b=(), pre_bar=(), tail=(), flag=None):
        x_capture()
        bp = int(OPT.get("bp", "0"))
        m0, m1 = g1_mfmas(0), g1_mfmas(1)
        interleave(a, m0[:28 - bp], g1_reads(1, 1) + next_slot() + set_addr(G1A))
        a("s_waitcnt lgkmcnt(0)")
        a.all(pre_bar)
        fine(a)
        a("s_barrier")
        fine(a)
        interleave(a, m0[28 - bp:] + m1, g1_reads(0, 0) + list(extra_b), start=int(OPT.get("bs", "0")))
        a("s_waitcnt lgkmcnt(0)")
        a.all(tail)

    def g1_loop(n):
        a("s_mov_b32 %s, 0" % s(sCNT))
        loop = a.newlabel("g1_loop")
        a.raw(".p2align 6")
        a.label(loop)
        g1_iter(["s_add_u32 s15, s15, 1", "s_cmp_lt_u32 s15, %d" % n], tail=["s_cbranch_scc1 %s" % loop])

    if OPT.get("sent", "none") == "pre":
        for i in range(4):
            a("v_mov_b32 %s, -1" % v(240 + i))
        for i in range(8):
            a("buffer_store_dwordx4 v[240:243], %s, %s, 0 offen offset:%d%s" % ("v25" if i >= 4 else "v24", s(WS, 4), (i & 3) * 1024, SC1))
    a("v_lshrrev_b32 v31, 1, v18")
    a("s_lshl_b32 %s, %s, 2" % (s(T1), s(sWN)))
    a("v_add_u32 v31, %s, v31" % s(T1))
    a("v_bfe_u32 v29, v3, 1, 3")
    a("v_xor_b32 v31, v31, v29")
    a("v_lshlrev_b32 v31, 4, v31")
    a("v_and_b32 v29, 1, v18")
    a("v_lshl_add_u32 v31, v29, 3, v31")
    a("v_and_b32 v29, 15, v3")
    a("v_lshl_add_u32 v31, v29, 7, v31")
    a("s_lshl_b32 %s, %s, 13" % (s(T1), s(sWM)))
    a("v_add_u32 v31, %s, v31" % s(T1))
    a("s_mul_i32 s83, %s, %d" % (s(sKH), US()))
    a("s_add_u32 s83, s83, %s" % s(sNB8))
    a.all(set_addr(G1A))
    mark(a, 3)
    a("s_barrier")
    mark(a, 4)
    a.all(g1_reads(0, 0))
    a("s_waitcnt lgkmcnt(0)")
    if STAMP:
        g1_loop(3)
        mark(a, 15)
        g1_loop(FLAGK - 3)
    else:
        g1_loop(FLAGK)
    g1_iter(pre_bar=["s_waitcnt vmcnt(0)"], flag="s")
    if STAMP:
        mark(a, 2)
        g1_loop(3)
        mark(a, 1)
        g1_loop(14 - FLAGK - 3)
    else:
        g1_loop(14 - FLAGK)
    x_capture()
    interleave(a, g1_mfmas(0), g1_reads(1, 1) + s1_addr(0))
    a("s_waitcnt lgkmcnt(0)")
    a("s_barrier")
    CSR, STR = 32, 60
    rd = ["ds_read_b128 %s, v26 offset:%d" % (v(CSR + 4 * nt, 4), 256 * (nt >> 1) + 64 * (nt & 1)) for nt in range(6)]
    rd.append("ds_read_b128 %s, v27" % v(CSR + 24, 4))
    rd += ["ds_read_b64 %s, v28 offset:%d" % (v(STR + 2 * mt, 2), 128 * mt) for mt in range(4)]
    interleave(a, g1_mfmas(1), rd)
    mark(a, 5)
    a("s_waitcnt lgkmcnt(0)")
    if OPT.get("eprio", "0") != "0":
        a("s_setprio %s" % OPT.get("eprio"))
    RL = 68
    for mt in range(4):
        a("v_rcp_f32 %s, %s" % (v(RL + 2 * mt + 1), v(STR + 2 * mt + 1)))
        a("v_mul_f32 %s, %s, %s" % (v(RL + 2 * mt), s(sNL2E), v(STR + 2 * mt + 1)))
    TMP = 76
    PK = [88, 92, 96, 100, 104, 108, 112, 116]
    for pr in range(3):
        a("s_mov_b32 %s, %d" % (s(T0 + pr), pr * 16384))
    pki = 0
    groups = [[(mt, 2 * pr), (mt, 2 * pr + 1)] for pr in range(3) for mt in range(4)]
    groups += [[(0, 6), (1, 6)], [(2, 6), (3, 6)]]
    F0 = int(OPT.get("f0", "8"))
    for gi, gr in enumerate(groups):
        if gi == F0:
            hflag(a, 0, F0 - 4)
        regs = []; cs = []; mts = []
        for mt, nt in gr:
            b = ACC + 4 * (nt * 4 + mt)
            regs += [b, b + 2]; cs += [CSR + 4 * nt, CSR + 4 * nt + 2]; mts += [mt, mt]
        tmp = [TMP + 2 * i for i in range(4)]
        for r_, c_, mt in zip(regs, cs, mts):
            a("v_pk_fma_f32 %s, %s, %s, %s op_sel_hi:[1,0,1] neg_lo:[0,1,0] neg_hi:[0,1,0]" % (v(r_, 2), v(c_, 2), v(STR + 2 * mt, 2), v(r_, 2)))
        for r_, t, mt in zip(regs, tmp, mts):
            a("v_pk_mul_f32 %s, %s, %s op_sel_hi:[1,0]" % (v(t, 2), v(r_, 2), v(RL + 2 * mt, 2)))
        for t_ in tmp:
            a("v_exp_f32 %s, %s" % (v(t_), v(t_)))
            a("v_exp_f32 %s, %s" % (v(t_ + 1), v(t_ + 1)))
        for t_, mt in zip(tmp, mts):
            a("v_pk_fma_f32 %s, %s, %s, %s op_sel:[0,1,1]" % (v(t_, 2), v(t_, 2), v(RL + 2 * mt, 2), v(RL + 2 * mt, 2)))
        for t_ in tmp:
            a("v_rcp_f32 %s, %s" % (v(t_), v(t_)))
            a("v_rcp_f32 %s, %s" % (v(t_ + 1), v(t_ + 1)))
        for r_, t_ in zip(regs, tmp):
            a("v_pk_mul_f32 %s, %s, %s" % (v(r_, 2), v(r_, 2), v(t_, 2)))
        P = PK[pki % len(PK)]; pki += 1
        for i, r_ in enumerate(regs):
            a("v_cvt_pk_bf16_f32 %s, %s, %s" % (v(P + i), v(r_), v(r_ + 1)))
        a("s_nop 1")
        a("v_permlane16_swap_b32 %s, %s" % (v(P), v(P + 2)))
        a("v_permlane16_swap_b32 %s, %s" % (v(P + 1), v(P + 3)))
        mt, nt = gr[0]
        if nt < 6:
            a("buffer_store_dwordx4 %s, v17, %s, %s offen offset:%d%s" % (v(P, 4), s(WS, 4), s(T0 + nt // 2), mt * 1024, smod("h%d" % (nt // 2))))
        else:
            a("buffer_store_dwordx4 %s, v20, %s, 0 offen offset:%d%s" % (v(P, 4), s(WS, 4), (mt // 2) * 1024, smod("h3")))
    mark(a, 6)
    fine_dump(a, 0)

    def s1_reads(fs, ks):
        r = []
        for t in range(4):
            r.append("ds_read_b128 %s, %s offset:%d" % (v(FR[fs] + 4 * t, 4), v(cM1 if ks else cM0), t * 2048))
            r.append("ds_read_b128 %s, %s offset:%d" % (v(FR[fs] + 16 + 4 * t, 4), v(cZ1 if ks else cZ0), t * 2048))
        return r

    def s1_mfmas(fs, first):
        return [mfma(tile(mt, nt), FR[fs] + 4 * mt, FR[fs] + 16 + 4 * nt, "0" if first else None)
                for mt in range(4) for nt in (range(4) if mt % 2 == 0 else range(3, -1, -1))]

    tile = lambda m, n: 192 + 4 * (m * 4 + n) if m < 3 else 108 + 4 * n

    hflag(a, 1, 7 if F0 >= 8 else 6)
    g2_setup(a)
    HF = -1
    a("s_barrier")
    a.all(s1_reads(0, 0))
    a("s_lshr_b32 %s, %s, 3" % (s(T0), s(sTAU)))
    a("s_and_b32 %s, %s, 3" % (s(T1), s(T0)))
    a("s_cmp_eq_u32 %s, 3" % s(T0))
    a("s_cselect_b32 %s, 1, %s" % (s(T1), s(T1)))
    a("s_lshr_b32 %s, %s, 2" % (s(T2), s(T0)))
    a("s_cmp_eq_u32 %s, 3" % s(T0))
    a("s_cselect_b32 %s, 8, %s" % (s(T2), s(T2)))
    a("s_lshl_b32 %s, %s, 19" % (s(T2), s(T2)))
    a("s_bfe_u32 %s, %s, 0x20001" % (s(T3), s(sTAU)))
    a("s_lshl_b32 %s, %s, 6" % (s(T3), s(T3)))
    a("s_lshl_b32 %s, %s, 5" % (s(T4), s(sWN)))
    a("s_add_u32 %s, %s, %s" % (s(T3), s(T3), s(T4)))
    a("v_and_b32 v17, 15, v3")
    a("v_add_u32 v17, %s, v17" % s(T3))
    a("v_sub_u32 v22, %d, v17" % (3 * 256 + 239))
    a("s_lshl_b32 %s, %s, 8" % (s(T1), s(T1)))
    a("v_add_u32 v17, %s, v17" % s(T1))
    a("s_and_b32 %s, %s, 1" % (s(T3), s(sTAU)))
    a("s_lshl_b32 %s, %s, 1" % (s(T3), s(T3)))
    a("s_add_u32 %s, %s, %s" % (s(T3), s(T3), s(sWM)))
    a("s_lshl_b32 %s, %s, 16" % (s(T3), s(T3)))
    a("s_add_u32 %s, %s, %s" % (s(T3), s(T3), hx(ZT_OFF)))
    a("v_add_u32 v23, %s, v21" % s(T3))
    a("v_lshl_add_u32 v17, v17, 6, v23")
    a("v_lshl_add_u32 v22, v22, 6, v23")
    a("s_waitcnt lgkmcnt(0)")
    for k in range(4):
        interleave(a, s1_mfmas(0, k == 0), s1_reads(1, 1) + (s1_addr(k + 1) if k < 3 else []))
        a("s_waitcnt lgkmcnt(0)")
        interleave(a, s1_mfmas(1, False), s1_reads(0, 0) if k < 3 else [])
        if k < 3:
            a("s_waitcnt lgkmcnt(0)")
        if k == 1:
            a("s_barrier")
        if k == 2:
            hflag(a, 2, 0)
            a("s_nop 3")
        if k == HF:
            a("s_waitcnt vmcnt(0)")
            a("s_barrier")
            flag_store(a, "h")
    mark(a, 7)
    a("s_barrier")
    mark(a, 8)
    a("s_nop 7")
    TMP = 32
    PK = [56, 60, 64, 68, 72, 76, 80, 84]
    typeB = a.newlabel("s1_typeB"); done = a.newlabel("s1_done")
    a("s_and_b32 %s, %s, 29" % (s(T3), s(T0)))
    a("s_cmp_eq_u32 %s, 0" % s(T3))
    a("s_cbranch_scc1 %s" % typeB)
    pki = 0
    for n in range(2):
        for uv in range(2):
            P = PK[pki]; pki += 1
            for m in range(2):
                for h in range(2):
                    if uv == 0:
                        a("v_pk_add_f32 %s, %s, %s" % (v(TMP + 2 * h, 2), v(tile(m, n) + 2 * h, 2), v(tile(m + 2, n + 2) + 2 * h, 2)))
                    else:
                        a("v_pk_add_f32 %s, %s, %s%s" % (v(TMP + 2 * h, 2), v(tile(m + 2, n) + 2 * h, 2), v(tile(m, n + 2) + 2 * h, 2), NEG1))
                for h in range(2):
                    a("v_cvt_pk_bf16_f32 %s, %s, %s" % (v(P + 2 * m + h), v(TMP + 2 * h), v(TMP + 2 * h + 1)))
            a("s_add_u32 %s, %s, %d" % (s(T3), s(T2), n * 1024 + uv * 262144))
            a("s_nop 0")
            a("v_permlane16_swap_b32 %s, %s" % (v(P), v(P + 2)))
            a("v_permlane16_swap_b32 %s, %s" % (v(P + 1), v(P + 3)))
            a("buffer_store_dwordx4 %s, v17, %s, %s offen%s" % (v(P, 4), s(WS, 4), s(T3), smod("zt")))
    a("s_cmp_ge_u32 %s, 4" % s(T0))
    a("s_cbranch_scc1 %s" % done)
    a("s_mov_b32 %s, 0x80008000" % s(T4))
    pki = 0
    for n in range(2):
        for uv in range(2):
            P = PK[pki]; pki += 1
            a("s_add_u32 %s, %s, %d" % (s(T3), s(T2), (1 - n) * 1024 + uv * 262144))
            if uv:
                Q = PK[4 + n]
                for i in range(4):
                    a("v_xor_b32 %s, %s, %s" % (v(Q + i), s(T4), v(P + i)))
                P = Q
            a("buffer_store_dwordx4 %s, v22, %s, %s offen%s" % (v(P, 4), s(WS, 4), s(T3), smod("zt")))
    a("s_branch %s" % done)
    a.label(typeB)
    pki = 0
    for n in range(2):
        for half in range(2):
            for uv in range(2):
                P = PK[pki]; pki += 1
                sg = "-" if uv else ""
                for m in range(2):
                    t = tile(m + 2 * half, n + 2 * uv)
                    for h in range(2):
                        a("v_cvt_pk_bf16_f32 %s, %s%s, %s%s" % (v(P + 2 * m + h), sg, v(t + 2 * h), sg, v(t + 2 * h + 1)))
                a("s_mov_b32 %s, %d" % (s(T3), half * 8 * 524288 + n * 1024 + uv * 262144))
                a("s_nop 0")
                a("v_permlane16_swap_b32 %s, %s" % (v(P), v(P + 2)))
                a("v_permlane16_swap_b32 %s, %s" % (v(P + 1), v(P + 3)))
                a("buffer_store_dwordx4 %s, v17, %s, %s offen%s" % (v(P, 4), s(WS, 4), s(T3), smod("zt")))
    a.label(done)
    mark(a, 9)


def dma(a, ldsoff, vaddr, srd_, soff, coh=False):
    if OPT.get("nodma") == "1" and getattr(a, "skipdma", False):
        return
    a("s_add_u32 m0, %s, %d" % (s(sSLOT), ldsoff))
    a("s_nop 0")
    a("buffer_load_dwordx4 %s, %s, %s offen%s lds" % (v(vaddr), s(srd_, 4), s(soff), OPT.get("cohmod", "_sc1").replace("_", " ") if coh else ""))


LVA, LVB, LVC, LVD = 8, 12, 20, 24
CSD = 128


def g1_issue(a):
    for i in range(4):
        dma(a, i * 4096, LVA + i, XS, sKA)
    for i in range(7):
        dma(a, 16384 + i * 4096, LVB + i, W1, sKB)
    a("s_add_u32 %s, %s, 128" % (s(sKA), s(sKA)))
    a("s_add_u32 %s, %s, %d" % (s(sKB), s(sKB), 64 * 7168))
    a("s_add_u32 s14, s14, %d" % G1SLOT)
    a("s_cmp_eq_u32 s14, %s" % s(sWRAP))
    a("s_cselect_b32 s14, %s, s14" % s(sSL0))


def loader_setup(a):
    a("s_sub_u32 %s, %s, 4" % (s(sL), s(sWAVE)))
    a("s_and_b32 %s, %s, 1" % (s(T0), s(sL)))
    a("s_lshl_b32 %s, %s, 2" % (s(T0), s(T0)))
    a("v_lshrrev_b32 v4, 4, v3")
    a("v_add_u32 v4, %s, v4" % s(T0))
    a("v_and_b32 v5, 7, v3")
    a("v_xor_b32 v4, v4, v5")
    a("v_lshlrev_b32 v4, 4, v4")
    a("v_lshrrev_b32 v5, 3, v3")
    a("s_lshl_b32 %s, %s, 3" % (s(T0), s(sL)))
    a("v_add_u32 v5, %s, v5" % s(T0))
    a("v_lshlrev_b32 v30, 2, v3")
    a("s_lshl_b32 %s, %s, 10" % (s(sSL0), s(sL)))
    a("s_lshl_b32 %s, %s, 11" % (s(T0), s(sRB)))
    a("v_lshl_add_u32 v6, v5, 15, v4")
    a("v_add_u32 v6, %s, v6" % s(T0))
    for i in range(4):
        a("v_add_u32 %s, %s, v6" % (v(LVA + i), hx(i * 32 * 32768)))
    a("s_lshl_b32 %s, %s, 6" % (s(T0), s(sL)))
    a("v_add_u32 v6, %s, v3" % s(T0))
    a("s_mul_i32 %s, %s, 448" % (s(T1), s(sCB)))
    for i in range(7):
        a("v_add_u32 v7, %d, v6" % (256 * i))
        a("v_mul_u32_u24 v28, 2341, v7")
        a("v_lshrrev_b32 v28, 16, v28")
        a("v_mul_u32_u24 v29, 28, v28")
        a("v_sub_u32 v29, v7, v29")
        a("v_bfe_u32 v31, v28, 3, 1")
        a("v_lshlrev_b32 v31, 1, v31")
        a("v_xor_b32 v29, v29, v31")
        a("v_mul_u32_u24 v28, 7168, v28")
        a("v_lshl_add_u32 v28, v29, 4, v28")
        a("v_add_u32 %s, %s, v28" % (v(LVB + i), s(T1)))
    a("s_mov_b32 %s, %s" % (s(sSLOT), s(sSL0)))
    a("s_add_u32 %s, %s, %d" % (s(sWRAP), s(sSL0), G1SLOT * 3))
    a("s_mov_b32 %s, 0" % s(sKA))
    a("s_mov_b32 %s, 0" % s(sKB))
    a("v_and_b32 v6, 31, v3")
    a("v_lshrrev_b32 v7, 5, v3")
    a("v_mul_u32_u24 v7, 7168, v7")
    a("v_lshl_add_u32 v7, v6, 4, v7")
    a("s_xor_b32 %s, %s, %s" % (s(T0), s(sRB), OPT.get("csx", "0")))
    a("s_lshl_b32 %s, %s, 6" % (s(T0), s(T0)))
    a("s_lshl_b32 %s, %s, 4" % (s(T2), s(sL)))
    a("s_add_u32 %s, %s, %s" % (s(T0), s(T0), s(T2)))
    a("s_mul_i32 %s, %s, 7168" % (s(T0), s(T0)))
    a("s_add_u32 %s, %s, %s" % (s(T0), s(T0), s(T1)))
    a("v_add_u32 v7, %s, v7" % s(T0))
    a("v_cmp_gt_u32 vcc, 28, v6")
    a("v_mov_b32 v28, 0x7f000000")
    a("s_nop 0")
    a("v_cndmask_b32 v7, v28, v7, vcc")
    def csl():
        for i in range(8):
            a("s_mov_b32 %s, %d" % (s(T0), i * 2 * 7168))
            a("buffer_load_dwordx4 %s, v7, %s, %s offen" % (v(CSD + 4 * i, 4), s(W1, 4), s(T0)))

    SO = OPT.get("so", "c")
    if SO == "g":
        g1_issue(a)
        a("s_barrier")
        csl()
    elif SO == "c":
        csl()
        a("s_barrier")
        g1_issue(a)
    else:
        a("s_barrier")
        csl()
        g1_issue(a)
    for _ in range(int(OPT.get("early", "2")) - 1):
        g1_issue(a)
    pf_addr(a)
    if OPT.get("tlb", "21") != "0":
        sh = int(OPT.get("tlb", "21"))
        a("v_lshlrev_b32 v2, %d, v3" % sh)
        a("s_lshl_b32 %s, %s, %d" % (s(T0), s(sL), sh + 6))
        a("v_add_u32 v2, %s, v2" % s(T0))
        a("v_cmp_gt_u32 vcc, 0x2400000, v2")
        a("s_and_saveexec_b64 s[96:97], vcc")
        a("s_cbranch_execz L_notlb")
        a("buffer_load_dword v244, v2, %s, 0 offen sc1" % s(WS, 4))
        a.label("L_notlb")
        a("s_mov_b64 exec, -1")
        for b_ in (W2, CR, CI, OUT, DR, DI):
            a("buffer_load_dword v244, v2, %s, 0 offen sc1" % s(b_, 4))


def page_touch(a, q):
    a("v_lshlrev_b32 v2, 21, v3")
    a("s_lshl_b32 s96, %s, 27" % s(sL))
    a("v_add_u32 v2, s96, v2")
    a("v_cmp_gt_u32 vcc, 0x2400000, v2")
    a("v_mov_b32 v1, 0x7f000000")
    a("s_nop 0")
    a("v_cndmask_b32 v2, v1, v2, vcc")
    a("buffer_load_dword v244, v2, %s, 0 offen sc1" % s(WS, 4))
    a("buffer_load_dword v244, v2, %s, 0 offen sc1" % s(OUT, 4))
    q.extend(["touch"] * 2)


def code_refresh(a, q):
    if OPT.get("cref", "0") != "1":
        return
    lab = a.newlabel("pc")
    a("s_getpc_b64 s[96:97]")
    a.label(lab)
    a("s_sub_u32 s96, s96, %s-L_pc" % lab)
    a("s_subb_u32 s97, s97, 0")
    a("s_lshl_b32 s98, %s, 2" % s(sLOC))
    a("s_add_u32 s98, s98, %s" % s(sL))
    a("s_lshl_b32 s98, s98, 10")
    a("s_min_u32 s98, s98, (L_end-L_pc-1024)&0xfffffff0")
    a("v_lshl_add_u32 v2, v3, 4, s98")
    a("global_load_dwordx4 v[244:247], v2, s[96:97]")
    q.append("code")


def pf_addr(a):
    a("s_lshl_b32 %s, s2, 2" % s(T0))
    a("s_add_u32 %s, %s, %s" % (s(T0), s(T0), s(sL)))
    a("s_mul_i32 %s, %s, 7168" % (s(T1), s(T0)))
    a("v_lshlrev_b32 v124, 4, v3")
    a("v_add_u32 v124, %s, v124" % s(T1))
    a("v_add_u32 v125, 4096, v124")
    a("s_lshr_b32 %s, %s, 1" % (s(T2), s(T0)))
    a("v_lshrrev_b32 v126, 5, v3"); a("v_lshlrev_b32 v126, 11, v126"); a("v_and_b32 v127, 31, v3"); a("v_lshl_add_u32 v126, v127, 4, v126")
    a("s_lshl_b32 %s, %s, 12" % (s(T3), s(T2))); a("v_add_u32 v126, %s, v126" % s(T3))
    a("v_lshrrev_b32 v127, 4, v3"); a("v_lshlrev_b32 v127, 12, v127"); a("v_and_b32 v2, 15, v3"); a("v_lshl_add_u32 v127, v2, 4, v127")
    a("s_lshl_b32 %s, %s, 14" % (s(T3), s(T2))); a("v_add_u32 v127, %s, v127" % s(T3))
    pack_addr(a)


def pack_addr(a):
    a("s_and_b32 %s, %s, 1" % (s(T3), s(sL)))
    a("v_lshrrev_b32 v122, 5, v3")
    a("s_lshl_b32 %s, %s, 1" % (s(T4), s(T2)))
    a("v_add_u32 v122, %s, v122" % s(T4))
    a("v_and_b32 v2, 3, v122")
    a("v_lshrrev_b32 v122, 2, v122")
    a("v_lshlrev_b32 v122, 9, v122")
    a("v_lshl_add_u32 v122, v2, 18, v122")
    a("v_and_b32 v2, 31, v3")
    a("v_lshl_add_u32 v122, v2, 4, v122")
    a("s_lshl_b32 %s, %s, 17" % (s(T4), s(T3)))
    a("s_add_u32 %s, %s, %s" % (s(T4), s(T4), hx(DP_OFF)))
    a("v_add_u32 v122, %s, v122" % s(T4))
    a("v_lshrrev_b32 v123, 4, v3")
    a("s_lshl_b32 %s, %s, 2" % (s(T4), s(T2)))
    a("v_add_u32 v123, %s, v123" % s(T4))
    a("v_and_b32 v2, 15, v123")
    a("v_lshrrev_b32 v123, 4, v123")
    a("v_lshlrev_b32 v123, 8, v123")
    a("v_lshl_add_u32 v123, v2, 16, v123")
    a("v_and_b32 v2, 15, v3")
    a("v_lshl_add_u32 v123, v2, 4, v123")
    a("s_lshl_b32 %s, %s, 15" % (s(T4), s(T3)))
    a("s_add_u32 %s, %s, %s" % (s(T4), s(T4), hx(CP_OFF)))
    a("v_add_u32 v123, %s, v123" % s(T4))


def pf_pair(a, vaddr, sre, sim, dst=244):
    l2 = a.newlabel("pf2"); l3 = a.newlabel("pf3")
    a("s_bitcmp1_b32 %s, 0" % s(sWAVE))
    a("s_cbranch_scc1 %s" % l2)
    a("buffer_load_dwordx4 %s, %s, %s, 0 offen" % (v(dst, 4), v(vaddr), s(sre, 4)))
    a("s_branch %s" % l3)
    a.label(l2)
    a("buffer_load_dwordx4 %s, %s, %s, 0 offen" % (v(dst, 4), v(vaddr), s(sim, 4)))
    a.label(l3)


def loader_g1_s1(a):
    AC = CSD + 32
    FINECS = OPT.get("finecs", "1") == "1"
    PFS = OPT.get("pf", "s") == "s"
    PFT = OPT.get("pf", "s").startswith("t")
    PFK = 99 if PFS else int(OPT.get("pf", "99").lstrip("t"))
    EARLY = int(OPT.get("early", "2"))
    q = (["g0"] * 11 + ["csl"] * 8 if OPT.get("so", "c") == "g" else ["csl"] * 8 + ["g0"] * 11) + [x for i in range(1, EARLY) for x in ["g%d" % i] * 11]

    def issue(st):
        g1_issue(a); q.extend(["g%d" % st] * 11)

    def need(*tags):
        idx = max(i for i, x in enumerate(q) if x in tags)
        n = len(q) - idx - 1
        del q[:idx + 1]
        return n

    def bar(*tags, lg=False):
        n = need(*tags)
        fine(a)
        a("s_waitcnt vmcnt(%d)%s" % (n, " lgkmcnt(0)" if lg else ""))
        fine(a)
        a("s_barrier")

    def prefetch():
        a.c("warm the memory-side cache with this wave's share of w2 and of the C slices")
        if PFT:
            a("v_mul_u32_u24 v2, 48, v3")
            a("v_add_u32 v124, v124, v2")
            a("v_add_u32 v125, v125, v2")
            a("buffer_load_dword v244, v124, %s, 0 offen" % s(W2, 4))
            a("buffer_load_dword v244, v125, %s, 0 offen" % s(W2, 4))
            q.extend(["pf"] * 2)
        else:
            for i in range(7):
                a("buffer_load_dwordx4 v[244:247], %s, %s, 0 offen offset:%d" % ("v125" if i >= 4 else "v124", s(W2, 4), (i & 3) * 1024))
            q.extend(["pf"] * 7)
        pf_pair(a, 127, CR, CI)
        q.append("pf")

    def cs_chunk(rng):
        for i in rng:
            for d in range(4):
                src = CSD + 4 * i + d
                t_ = AC + 2 * d if i == 0 else AC + 8 + 2 * d
                a("v_lshlrev_b32 %s, 16, %s" % (v(t_), v(src)))
                a("v_and_b32 %s, %s, %s" % (v(t_ + 1), s(sHI), v(src)))
            if i:
                for d in range(4):
                    a("v_pk_add_f32 %s, %s, %s" % (v(AC + 2 * d, 2), v(AC + 2 * d, 2), v(AC + 8 + 2 * d, 2)))

    def after0():
        cs_chunk(range(0, 4))

    def after1():
        cs_chunk(range(6, 8) if FINECS else range(4, 8))
        a("v_lshrrev_b32 v28, 5, v3")
        a("s_lshl_b32 %s, %s, 1" % (s(T0), s(sL)))
        a("v_add_u32 v28, %s, v28" % s(T0))
        a("v_lshlrev_b32 v28, 10, v28")
        a("v_and_b32 v29, 31, v3")
        a("v_lshl_add_u32 v28, v29, 5, v28")
        a("v_add_u32 v28, %d, v28" % CSP)
        a("ds_write_b128 v28, %s" % v(AC, 4))
        a("ds_write_b128 v28, %s offset:16" % v(AC + 4, 4))
        a("s_waitcnt lgkmcnt(0)")

    def after2a():
        a("s_lshl_b32 %s, %s, 8" % (s(T0), s(sL)))
        a("v_add_u32 v19, %s, v30" % s(T0))
        a("v_add_u32 v29, %d, v19" % CSP)
        a("s_lshl_b32 %s, %s, 14" % (s(T0), s(sCB)))
        a("s_lshl_b32 %s, %s, 10" % (s(T5), s(sRB)))
        a("s_add_u32 %s, %s, %s" % (s(T5), s(T5), s(T0)))
        a("s_add_u32 %s, %s, %s" % (s(T5), s(T5), hx(CS_OFF)))
        tag_ready(a)
        a("v_lshrrev_b32 v31, 3, v3")
        a("v_lshlrev_b32 v31, 7, v31")
        a("v_and_b32 v28, 7, v3")
        a("v_lshl_add_u32 v31, v28, 2, v31")
        a("v_add_u32 v31, %s, v31" % hx(SF_OFF))

    def after2b():
        for i in range(4):
            a("ds_read2st64_b32 %s, v29 offset0:%d offset1:%d" % (v(CSD + 2 * i, 2), 8 * i, 8 * i + 4))
        a("s_waitcnt lgkmcnt(0)")
        a("v_pk_add_f32 %s, %s, %s" % (v(CSD, 2), v(CSD, 2), v(CSD + 2, 2)))
        a("v_pk_add_f32 %s, %s, %s" % (v(CSD + 4, 2), v(CSD + 4, 2), v(CSD + 6, 2)))
        a("v_pk_add_f32 %s, %s, %s" % (v(CSD, 2), v(CSD, 2), v(CSD + 4, 2)))
        a("v_add_f32 %s, %s, %s" % (v(CSD), v(CSD), v(CSD + 1)))
        a("buffer_store_dword %s, v19, %s, %s offen%s" % (v(CSD), s(WS, 4), s(T5), SC1))
        q.append("cs_store")

    def after2():
        after2a(); after2b()

    def after3():
        a("s_lshr_b32 %s, %s, 3" % (s(T0), s(sTAU)))
        a("s_lshl_b32 %s, %s, 17" % (s(T1), s(T0)))
        a("s_and_b32 %s, %s, 1" % (s(T2), s(sTAU)))
        a("s_lshl_b32 %s, %s, 15" % (s(T3), s(T2)))
        a("s_add_u32 %s, %s, %s" % (s(T1), s(T1), s(T3)))
        a("s_add_u32 %s, %s, %s" % (s(T1), s(T1), hx(CB_OFF)))
        a("v_lshl_add_u32 v6, v5, 9, v4")
        a("v_add_u32 v6, %s, v6" % s(T1))
        for i in range(4):
            a("v_add_u32 %s, %s, v6" % (v(LVC + i), hx((i & 1) * 65536 + (i >> 1) * 32 * 512)))
        a("s_and_b32 %s, %s, 3" % (s(T1), s(T0)))
        a("s_cmp_eq_u32 %s, 3" % s(T0))
        a("s_cselect_b32 %s, 1, %s" % (s(T1), s(T1)))
        a("s_lshl_b32 %s, %s, 18" % (s(T1), s(T1)))
        a("s_bfe_u32 %s, %s, 0x20001" % (s(T3), s(sTAU)))
        a("s_lshl_b32 %s, %s, 15" % (s(T3), s(T3)))
        a("s_add_u32 %s, %s, %s" % (s(T1), s(T1), s(T3)))
        a("s_add_u32 %s, %s, %s" % (s(T1), s(T1), hx(DP_OFF)))
        a("v_lshl_add_u32 v6, v5, 9, v4")
        a("v_add_u32 v6, %s, v6" % s(T1))
        for i in range(4):
            a("v_add_u32 %s, %s, v6" % (v(LVD + i), hx((i & 1) * 131072 + (i >> 1) * 32 * 512)))
        a("s_lshl_b32 %s, s2, 15" % s(T0))
        a("s_lshl_b32 %s, %s, 13" % (s(T1), s(sL)))
        a("s_add_u32 %s, %s, %s" % (s(T0), s(T0), s(T1)))
        a("s_add_u32 %s, %s, %s" % (s(T0), s(T0), hx(EX_OFF)))
        a("v_lshlrev_b32 v6, 4, v3")
        a("v_add_u32 v6, %s, v6" % s(T0))
        a("v_add_u32 v7, 4096, v6")
        for i in range(4):
            a("v_mov_b32 %s, -1" % v(240 + i))

    def sentinel(i):
        a("buffer_store_dwordx4 v[240:243], %s, %s, 0 offen offset:%d%s" % ("v7" if i >= 4 else "v6", s(WS, 4), (i & 3) * 1024, SC1))
        q.append("sent")

    def after9():
        poll_issue(a, CSD + 20, 31, 4); q.extend(["poll"] * 4)

    def after11():
        a.c("fetch 4 of the 16 partial column sums of this column block per wave, and this class's row stats")
        a("s_lshl_b32 %s, %s, 14" % (s(T0), s(sCB)))
        a("s_lshl_b32 %s, %s, 12" % (s(T1), s(sL)))
        a("s_add_u32 %s, %s, %s" % (s(T0), s(T0), s(T1)))
        a("s_add_u32 %s, %s, %s" % (s(T0), s(T0), hx(CS_OFF)))
        a("v_lshlrev_b32 v28, 4, v3")
        for i in range(4):
            a("buffer_load_dwordx4 %s, v28, %s, %s offen offset:%d%s" % (v(CSD + 4 * i, 4), s(WS, 4), s(T0), i * 1024, SC1))
        a("s_lshl_b32 %s, %s, 10" % (s(T0), s(sRB)))
        a("s_add_u32 %s, %s, %s" % (s(T0), s(T0), hx(STAT_OFF)))
        a("buffer_load_dword %s, v19, %s, %s offen%s" % (v(CSD + 16), s(WS, 4), s(T0), SC1))
        q.extend(["fetch"] * 5)

    def after13():
        a("s_waitcnt vmcnt(%d)" % need("fetch"))
        for d, x in ((0, 4), (2, 6), (8, 12), (10, 14), (0, 8), (2, 10)):
            a("v_pk_add_f32 %s, %s, %s" % (v(CSD + d, 2), v(CSD + d, 2), v(CSD + x, 2)))
        a("s_lshl_b32 %s, %s, 10" % (s(T0), s(sL)))
        a("s_add_u32 %s, %s, %d" % (s(T0), s(T0), CSP))
        a("v_add_u32 v28, %s, v28" % s(T0))
        a("ds_write_b128 v28, %s" % v(CSD, 4))
        a("v_add_u32 v28, %d, v19" % STB)
        a("ds_write_b32 v28, %s" % v(CSD + 16))
        a("s_waitcnt lgkmcnt(0)")

    def after14():
        a("v_add_u32 v28, %d, v19" % CSP)
        for i in range(4):
            a("ds_read_b32 %s, v28 offset:%d" % (v(CSD + i), i * 1024))
        a("v_add_u32 v28, %d, v19" % CSB)
        a("s_waitcnt lgkmcnt(0)")
        a("v_add_f32 %s, %s, %s" % (v(CSD), v(CSD), v(CSD + 1)))
        a("v_add_f32 %s, %s, %s" % (v(CSD + 2), v(CSD + 2), v(CSD + 3)))
        a("v_add_f32 %s, %s, %s" % (v(CSD), v(CSD), v(CSD + 2)))
        a("ds_write_b32 v28, %s" % v(CSD))

    CSPRE = OPT.get("cspre", "1") == "1"
    hooks = {0: after0, 1: after1, 2: after2} if not FINECS else {
        0: lambda: cs_chunk(range(0, 2)), 1: lambda: cs_chunk(range(2, 4)), 2: lambda: cs_chunk(range(4, 6)), 3: after1, 4: after2}
    def pack_store():
        assert "dc" not in q
        a("buffer_store_dwordx4 v[232:235], v122, %s, 0 offen%s" % (s(WS, 4), smod("pk")))
        a("buffer_store_dwordx4 v[236:239], v123, %s, 0 offen%s" % (s(WS, 4), smod("pk")))
        q.extend(["cs_store"] * 2)

    if CSPRE:
        hooks = {0: after2b, 2: pack_store}
    hooks.update({9: after9, 11: after11, 13: after13, 14: after14})
    after3()
    LATE = OPT.get("late", "1") == "1"
    if not LATE:
        for st in range(EARLY, 3):
            issue(st)
    if OPT.get("cov", "0") == "1":
        a("s_cmp_lt_u32 %s, 8" % s(sRB))
        a("s_mov_b32 %s, %d" % (s(T1), 512 * 7168))
        a("s_cselect_b32 %s, %s, %s" % (s(T1), s(T1), hx(-512 * 7168)))
        a("v_add_u32 v2, %s, v7" % s(T1))
        for i in range(8):
            a("s_mov_b32 %s, %d" % (s(T0), i * 2 * 7168))
            a("buffer_load_dwordx4 v[244:247], v2, %s, %s offen" % (s(W1, 4), s(T0)))
        q.extend(["pf"] * 8)
    pf_pair(a, 126, DR, DI, 232); q.append("dc")
    if PFK == -1:
        prefetch()
    if PFS:
        pf_pair(a, 127, CR, CI, 236); q.append("dc")
        a("s_lshl_b32 %s, s2, 2" % s(T0))
        a("s_add_u32 %s, %s, %s" % (s(T0), s(T0), s(sL)))
        a("s_mul_i32 %s, %s, 7168" % (s(T0), s(T0)))
        a("s_add_u32 s30, %s, %s" % (s(W2), s(T0)))
        a("s_addc_u32 s31, %s, 0" % s(W2 + 1))
    if CSPRE:
        a("s_waitcnt vmcnt(%d)" % (len(q) - max(i for i, x in enumerate(q) if x == "csl") - 1))
        cs_chunk(range(0, 6))
        after1()
        after2a()
    if OPT.get("sst") == "1":
        mark(a, 1)
    bar("g0")
    if OPT.get("g1prio", "0") != "0":
        a("s_setprio %s" % OPT.get("g1prio"))
    if LATE:
        for st in range(EARLY, 3):
            issue(st)
    for k in range(15):
        tags = ["g%d" % (k + 1)]
        if k == FLAGK:
            tags.append("cs_store")
        if k == 11:
            fine(a)
            a("s_waitcnt vmcnt(%d)" % need("g12", "poll"))
            poll_check(a, CSD + 20, 31, "exec", True, 4)
            fine(a)
            a("s_barrier")
        else:
            bar(*tags)
        if k + 3 <= 15:
            issue(k + 3)
        if k == FLAGK:
            flag_store(a, "s")
        if k == int(OPT.get("cr1", "8")):
            code_refresh(a, q)
        if str(k) == OPT.get("pt1", ""):
            page_touch(a, q)
        if k in hooks:
            hooks[k]()
        if 4 <= k <= 11 and OPT.get("sent", "none") == "g1":
            sentinel(k - 4)
        if k == 4 and OPT.get("sent", "none") == "g1b":
            for i in range(8):
                sentinel(i)
        if str(k) == OPT.get("t2", ""):
            a("s_xor_b32 %s, s2, %s" % (s(T0), OPT.get("t2x", "1")))
            a("s_lshl_b32 %s, %s, 2" % (s(T0), s(T0)))
            a("s_add_u32 %s, %s, %s" % (s(T0), s(T0), s(sL)))
            a("s_mul_i32 %s, %s, 7168" % (s(T1), s(T0)))
            a("v_lshlrev_b32 v2, 6, v3")
            a("buffer_load_dword v244, v2, %s, %s offen" % (s(W2, 4), s(T1)))
            a("s_add_u32 %s, %s, 3072" % (s(T1), s(T1)))
            a("buffer_load_dword v244, v2, %s, %s offen" % (s(W2, 4), s(T1)))
            a("s_lshl_b32 %s, %s, 10" % (s(T1), s(T0)))
            a("s_add_u32 %s, %s, %s" % (s(T1), s(T1), hx(CP_OFF)))
            a("v_and_b32 v2, 0x3ff, v2")
            a("buffer_load_dword v244, v2, %s, %s offen sc1" % (s(WS, 4), s(T1)))
            q.extend(["t2"] * 3)
        if k == PFK:
            prefetch()
        if PFS and 1 <= k <= 11:
            for i in range(11 * (k - 1), min(112, 11 * k)):
                a("s_load_dword s29, s[30:31], %d" % (i * 64))

    def issue_s1(k):
        a("s_add_u32 %s, %s, %d" % (s(sSLOT), s(sSL0), S1SLOTS[k]))
        a("s_mov_b32 %s, %d" % (s(sKA), k * 128))
        for i in range(4):
            dma(a, i * 4096, LVC + i, WS, sKA, coh=True)
        for i in range(4):
            dma(a, 16384 + i * 4096, LVD + i, WS, sKA, coh=True)

    issue_s1(2)
    fine_dump(a, 0)
    a("s_waitcnt lgkmcnt(0)")
    a("s_barrier")
    if OPT.get("g1prio", "0") != "0":
        a("s_setprio 0")
    for k in (0, 1, 3):
        issue_s1(k)
    g2_loader_setup(a)
    a("s_mul_i32 %s, %s, %d" % (s(T0), s(sKH), 1792 * 2048))
    a("s_lshl_b32 %s, %s, 7" % (s(T1), s(sNB8)))
    a("s_add_u32 %s, %s, %s" % (s(T0), s(T0), s(T1)))
    a("s_and_b32 %s, %s, 7" % (s(T1), s(sLOC)))
    a("s_cmp_ge_u32 %s, 4" % s(T1))
    a("s_cselect_b32 %s, %d, 0" % (s(sADJ), 192 * 2048))
    a("s_lshl_b32 %s, %s, 2" % (s(T1), s(T1)))
    a("s_add_u32 %s, %s, %s" % (s(T1), s(T1), s(sL)))
    a("s_lshl_b32 %s, %s, 12" % (s(T1), s(T1)))
    a("s_add_u32 %s, %s, %s" % (s(T0), s(T0), s(T1)))
    a("s_add_u32 s30, %s, %s" % (s(W2), s(T0)))
    a("s_addc_u32 s31, %s, 0" % s(W2 + 1))
    a("s_and_b32 %s, %s, %d" % (s(sP3), s(sCB8), 0 if OPT.get("same") == "1" else 4))
    a("s_and_b32 %s, %s, %d" % (s(sP3), s(sCB8), 0 if OPT.get("same") == "1" else 4))
    for st in range(NRB()):
        g2_koff(a, st, False, True)
        for i in range(4):
            a("buffer_load_dwordx4 %s, %s, %s, %s offen" % (v(RBB + 16 * st + 4 * i, 4), v(GVB + i), s(W2, 4), s(sKB)))
    a("v_lshlrev_b32 %s, 4, v3" % v(GWA))
    a("v_add_u32 %s, %s, %s" % (v(GWA), s(sSL0), v(GWA)))
    a("s_waitcnt vmcnt(%d)" % (4 * NRB()))
    a("s_barrier")


RBB = 64
XL = 0
GVX = 62
SOLOB = 65536
RXL = 32768
FLAGK = 5
SYNC = 159744
GWA = 60


def NRB():
    return int(OPT.get("nrb", "0"))


PF_G1 = 28
sADJ = 95


def jp(st):
    return (st // 12) * 4 + st % 4, (st % 12) // 4


def w2_prefetch(a, halves):
    last = None
    for hs in halves:
        st, r = divmod(hs, 2)
        if st != last:
            if st < NREG:
                j, p_ = jp(st)
                a("s_xor_b32 s96, %s, %d" % (s(sP3), j))
                a("s_mul_i32 s96, s96, %d" % (224 * 2048))
                if p_:
                    a("s_add_u32 s96, s96, %d" % (p_ * 64 * 2048))
            else:
                a("s_add_u32 s96, %s, %d" % (s(sADJ), (448 * (st - NREG) + 192) * 2048))
            last = st
        for c in (0, 64, 128 * US(), 128 * US() + 64):
            a("s_load_dword s29, s[30:31], s96 offset:%d" % (r * 2048 + c))


def g2_koff(a, st, want_a, want_b):
    j, p_ = jp(st)
    a("s_xor_b32 %s, %s, %d" % (s(T0), s(sP3), j))
    if want_a:
        a("s_mul_i32 %s, %s, 49152" % (s(sKA), s(T0)))
        if p_:
            a("s_add_u32 %s, %s, %d" % (s(sKA), s(sKA), p_ * 16384))
    if want_b:
        a("s_mul_i32 %s, %s, %d" % (s(sKB), s(T0), 224 * 2048))
        if p_:
            a("s_add_u32 %s, %s, %d" % (s(sKB), s(sKB), p_ * 64 * 2048))


NJ = 28
NREG = 24
NSOLO = 4


def g2_setup(a):
    ACC = 128
    gN0, gZ0, gZ1 = 6, 7, 8
    a("v_and_b32 v16, 15, v3")
    a("v_lshlrev_b32 v16, 15, v16")
    a("s_lshl_b32 %s, %s, 21" % (s(T0), s(sWM)))
    a("s_lshl_b32 %s, %s, 11" % (s(T1), s(sCLS)))
    a("s_add_u32 %s, %s, %s" % (s(T0), s(T0), s(T1)))
    a("s_lshl_b32 %s, %s, 7" % (s(T1), s(sNB8)))
    a("s_add_u32 %s, %s, %s" % (s(T0), s(T0), s(T1)))
    a("s_mul_i32 %s, %s, %d" % (s(T1), s(sKH), 128 * US()))
    a("s_add_u32 %s, %s, %s" % (s(T0), s(T0), s(T1)))
    a("s_lshl_b32 %s, %s, 6" % (s(T1), s(sWN)))
    a("s_add_u32 %s, %s, %s" % (s(T0), s(T0), s(T1)))
    a("v_add_u32 v16, %s, v16" % s(T0))
    for mt in range(4):
        a("s_mov_b32 %s, %d" % (s(C1 + mt), mt * 16 * 16 * 2048))
    a("v_add_u32 v16, v16, v21")
    a("s_lshl_b32 %s, %s, 12" % (s(T0), s(sWN)))
    a("s_add_u32 %s, %s, 16384" % (s(T0), s(T0)))
    rowimg_frag_addr(a, gZ0, gZ1, T0)
    a("v_bfe_u32 v20, v3, 2, 2")
    a("v_lshl_add_u32 v23, v18, 3, v20")
    a("v_lshlrev_b32 v23, 8, v23")
    a("v_and_b32 v22, 3, v3")
    a("v_lshl_add_u32 v23, v22, 3, v23")
    a("v_and_b32 v22, 1, v18")
    a("v_lshl_or_b32 v20, v22, 2, v20")
    a("s_lshl_b32 %s, %s, 1" % (s(T0), s(sWN)))
    a("s_lshl_b32 %s, %s, 2" % (s(T1), s(sKH)))
    a("s_add_u32 %s, %s, %s" % (s(T0), s(T0), s(T1)))
    a("v_xor_b32 v20, %s, v20" % s(T0))
    a("v_lshl_add_u32 v23, v20, 5, v23")
    a("v_add_u32 %s, 16384, v23" % v(gN0))
    a("v_mov_b32 v28, 0xff")
    a("v_mov_b32 v31, %s" % s(sTAG))
    a("v_xor_b32 v29, 0x20000, v24")
    a("v_xor_b32 v30, 0x20000, v25")
    for i in range(64):
        a("v_mov_b32 %s, 0" % v(ACC + i))


def compute_g2(a):
    ACC = 128; ACY = 192; XR = 240; RX = 96
    FR = [32, 64]
    gN0, gZ0, gZ1 = 6, 7, 8
    cN = 11
    a("s_mov_b32 %s, %d" % (s(sSLOT), 4 * G2SLOT))

    def set_addr(joint):
        r = ["v_add_u32 %s, s14, %s" % (v(cM0), v(vM0)), "v_add_u32 %s, s14, %s" % (v(cM1), v(vM1))]
        if joint:
            r.append("v_add_u32 %s, s14, %s" % (v(cN), v(gN0)))
            for nt, x in ((1, 32), (2, 128), (3, 160)):
                r.append("v_xor_b32 %s, %d, %s" % (v(cN + nt), x, v(cN)))
        else:
            r += ["v_add_u32 %s, s14, %s" % (v(cN), v(gZ0)), "v_add_u32 %s, s14, %s" % (v(cN + 1), v(gZ1))]
        return r

    def next_slot():
        return ["s_add_u32 s14, s14, %d" % G2SLOT, "s_cmp_eq_u32 s14, %d" % (G2SLOT * 5), "s_cselect_b32 s14, 0, s14"]

    def reads(fs, ks, joint):
        r = []
        for t in range(4):
            if joint:
                for h in range(2):
                    r.append("ds_read_b64_tr_b16 %s, %s offset:%d" % (v(FR[fs] + 16 + 4 * t + 2 * h, 2), v(cN + t), ks * 8192 + h * 1024))
            elif t < 2:
                r.append("ds_read_b128 %s, %s offset:%d" % (v(FR[fs] + 16 + 4 * t, 4), v(cN + ks), t * 2048))
            r.append("ds_read_b128 %s, %s offset:%d" % (v(FR[fs] + 4 * t, 4), v(cM1 if ks else cM0), t * 2048))
        return r

    ot = lambda mt, nt: ACC + 4 * (nt * 4 + mt)

    def jm(fs, order=(0, 1, 2, 3)):
        o = OPT.get("ord", "z")
        if o == "m" and order == (0, 1, 2, 3):
            od = [(nt, mt) for mt in range(4) for nt in order]
        elif o == "z" and order == (0, 1, 2, 3):
            od = [(nt, mt if nt % 2 == 0 else 3 - mt) for nt in order for mt in range(4)]
        else:
            od = [(nt, mt) for nt in order for mt in range(4)]
        return [mfma(ot(mt, nt), FR[fs] + 16 + 4 * nt, FR[fs] + 4 * mt) for nt, mt in od]

    def sm(fs):
        return [mfma(ACY + 4 * (nt * 4 + mt), FR[fs] + 16 + 4 * nt, FR[fs] + 4 * mt) for nt in range(2) for mt in range(4)]

    a.all(set_addr(True))
    a("s_barrier")
    mark(a, 10)
    a.all(reads(0, 0, True))
    a("s_mov_b32 %s, 0" % s(sCNT))
    a("s_waitcnt lgkmcnt(0)")

    def joint_iter(nxt_joint, extra=(), pre_bar=(), flag=None, bar=True):
        nr = OPT.get("noread") == "1"
        interleave(a, jm(0), ([] if nr else reads(1, 1, True)) + next_slot() + set_addr(nxt_joint), per=int(OPT.get("g2per", "2")))
        a("s_waitcnt lgkmcnt(0)")
        a.all(pre_bar)
        fine(a)
        if bar:
            a("s_barrier")
        fine(a)
        interleave(a, jm(1), ([] if nr else reads(0, 0, True)) + list(extra), per=1)
        a("s_waitcnt lgkmcnt(0)")

    ZK = int(OPT.get("zk", "6"))

    def g2_loop(n):
        a("s_mov_b32 %s, 0" % s(sCNT))
        loop = a.newlabel("g2_loop")
        a.raw(".p2align 6")
        a.label(loop)
        joint_iter(True, ["s_add_u32 s15, s15, 1", "s_cmp_lt_u32 s15, %d" % n])
        a("s_cbranch_scc1 %s" % loop)

    g2_loop(ZK)
    joint_iter(True, pre_bar=["s_waitcnt vmcnt(0)"], flag="z")
    mark(a, 26)
    g2_loop(NJ - 2 - ZK)
    SM = [[32 + 4 * i for i in range(8)], [64 + 4 * i for i in range(8)]]
    SN = [[96 + 4 * i for i in range(4)], [112 + 4 * i for i in range(4)]]

    def sreads(fs):
        r = []
        for ks in range(2):
            for nt in range(2):
                r.append("ds_read_b128 %s, %s offset:%d" % (v(SN[fs][2 * ks + nt], 4), v(cN + ks), nt * 2048))
            for mt in range(4):
                r.append("ds_read_b128 %s, %s offset:%d" % (v(SM[fs][4 * ks + mt], 4), v(cM1 if ks else cM0), mt * 2048))
        return r

    def smf(fs, first=False):
        return [mfma(ACY + 4 * (nt * 4 + mt), SN[fs][2 * ks + nt], SM[fs][4 * ks + mt], "0" if first and ks == 0 else None)
                for ks in range(2) for nt in range(2) for mt in range(4)]

    def solo_addr(j):
        return ["v_add_u32 %s, %s, %s" % (v(c), hx(SOLOB + j * 24576), v(b))
                for c, b in ((cM0, vM0), (cM1, vM1), (cN, gZ0), (cN + 1, gZ1))]

    interleave(a, jm(0), reads(1, 1, True) + solo_addr(0), per=2)
    a("s_waitcnt lgkmcnt(0)")
    a("s_barrier")
    m = jm(1, (2, 3, 0, 1))
    interleave(a, m[:8], sreads(0) + solo_addr(1), per=2)
    for i in range(8):
        a(m[8 + i])
        b = ACC + 32 + 4 * i
        for j in range(4):
            a("v_bfi_b32 %s, v28, v31, %s" % (v(b + j), v(b + j)))
        a("buffer_store_dwordx4 %s, %s, %s, 0 offen offset:%d%s" % (v(b, 4), "v30" if i >= 4 else "v29", s(WS, 4), (i & 3) * 1024, smod("ex")))
    a("s_waitcnt lgkmcnt(0)")
    mark(a, 11)
    for k in range(NSOLO):
        last = k == NSOLO - 1
        interleave(a, smf(k & 1, k == 0), [] if last else sreads(1 - (k & 1)) + (solo_addr(k + 2) if k + 2 < NSOLO else []), per=2)
        if not last:
            a("s_waitcnt lgkmcnt(0)")
        if k == 0:
            a("s_barrier")
        if k == int(OPT.get("rxj", "2")):
            a("s_barrier")
    mark(a, 12)
    a("v_lshlrev_b32 v26, 4, v3")
    a("s_lshl_b32 %s, %s, 13" % (s(T0), s(sWAVE)))
    a("s_add_u32 %s, %s, %d" % (s(T0), s(T0), RXL))
    a("v_add_u32 v26, %s, v26" % s(T0))
    for i in range(16):
        a("v_lshlrev_b32 %s, 16, %s" % (v(32 + 2 * i), v(XR + i)))
        a("v_and_b32 %s, %s, %s" % (v(33 + 2 * i), s(sHI), v(XR + i)))
    a("s_barrier")
    for i in range(8):
        a("ds_read_b128 %s, v26 offset:%d" % (v(RX + 4 * i, 4), i * 1024))
    a("s_waitcnt lgkmcnt(0)")
    mark(a, 13)
    TMP = 80
    PK = [64, 68, 72, 76]
    MIMIC = OPT.get("mimic", "0") == "1"

    def rnd(regs, t):
        for i, r_ in enumerate(regs):
            a("v_cvt_pk_bf16_f32 %s, %s, %s" % (v(t + i), v(r_), v(r_ + 1)))
        for i, r_ in enumerate(regs):
            a("v_lshlrev_b32 %s, 16, %s" % (v(r_), v(t + i)))
            a("v_and_b32 %s, %s, %s" % (v(r_ + 1), s(sHI), v(t + i)))

    for mt in range(4):
        offs = [4 * mt, 4 * mt + 2, 16 + 4 * mt, 16 + 4 * mt + 2]
        o = [ACC + x for x in offs]
        y = [ACY + x for x in offs]
        xf = [32 + 8 * mt + 2 * i for i in range(4)]
        for i in range(4):
            a("v_pk_add_f32 %s, %s, %s" % (v(o[i], 2), v(o[i], 2), v(RX + offs[i], 2)))
        if MIMIC:
            rnd(o, 48)
        silu_pk(a, o, [TMP + 2 * i for i in range(4)])
        if MIMIC:
            rnd(o, 48)
            rnd(y, 52)
        if MIMIC:
            for i in range(4):
                a("v_pk_mul_f32 %s, %s, %s" % (v(o[i], 2), v(o[i], 2), v(y[i], 2)))
            rnd(o, 48)
            for i in range(4):
                a("v_pk_add_f32 %s, %s, %s" % (v(o[i], 2), v(o[i], 2), v(xf[i], 2)))
        else:
            for i in range(4):
                a("v_pk_fma_f32 %s, %s, %s, %s" % (v(o[i], 2), v(o[i], 2), v(y[i], 2), v(xf[i], 2)))
        P = PK[mt]
        for i in range(4):
            a("v_cvt_pk_bf16_f32 %s, %s, %s" % (v(P + i), v(o[i]), v(o[i] + 1)))
        a("s_nop 1")
        a("v_permlane16_swap_b32 %s, %s" % (v(P), v(P + 2)))
        a("v_permlane16_swap_b32 %s, %s" % (v(P + 1), v(P + 3)))
        a("buffer_store_dwordx4 %s, v16, %s, %s offen%s" % (v(P, 4), s(OUT, 4), s(C1 + mt), OPT.get("outmod", "_sc0_sc1").replace("_", " ")))
    flag_store(a, "epoch", 0)
    mark(a, 14)
    fine_dump(a, 1)
    a("s_endpgm")


GVA, GVB, GVA2, GVB2, GVC, GVD = 32, 36, 40, 44, 48, 52
GZA, GHA = 58, 59


def g2_loader_setup(a):
    a("v_lshrrev_b32 v6, 4, v3")
    a("s_lshr_b32 %s, %s, 1" % (s(T0), s(sL)))
    a("s_lshl_b32 %s, %s, 2" % (s(T0), s(T0)))
    a("v_or_b32 v7, %s, v6" % s(T0))
    a("v_lshlrev_b32 v7, 1, v7")
    a("v_and_b32 v28, 15, v3")
    a("v_xor_b32 v7, v7, v28")
    a("v_lshlrev_b32 v7, 4, v7")
    a("v_lshl_add_u32 v6, v6, 11, v7")
    a("s_mul_i32 %s, %s, %d" % (s(T0), s(sKH), 1792 * 2048))
    a("s_lshl_b32 %s, %s, 13" % (s(T1), s(sL)))
    a("s_add_u32 %s, %s, %s" % (s(T0), s(T0), s(T1)))
    a("s_lshl_b32 %s, %s, 7" % (s(T1), s(sNB8)))
    a("s_add_u32 %s, %s, %s" % (s(T0), s(T0), s(T1)))
    a("v_add_u32 v6, %s, v6" % s(T0))
    a("v_and_b32 v7, 128, v7")
    a("v_mul_u32_u24 v7, %d, v7" % (US() - 1))
    a("v_add_u32 v6, v6, v7")
    for i in range(4):
        a("v_add_u32 %s, %s, v6" % (v(GVB + i), hx(i * 16 * 2048)))
    for i in range(2):
        a("v_add_u32 %s, %s, v6" % (v(GVB2 + i), hx(((i + 2) * 16 + 192) * 2048)))
    a("s_lshl_b32 %s, %s, 4" % (s(T0), s(sCLS)))
    a("s_lshl_b32 %s, %s, 3" % (s(T1), s(sKH)))
    a("s_add_u32 %s, %s, %s" % (s(T0), s(T0), s(T1)))
    a("s_mul_i32 %s, %s, 49152" % (s(T1), s(T0)))
    a("s_add_u32 %s, %s, %s" % (s(T1), s(T1), hx(HR_OFF)))
    a("s_lshl_b32 %s, %s, 13" % (s(T2), s(T0)))
    a("s_add_u32 %s, %s, %s" % (s(T2), s(T2), hx(HL_OFF)))
    a("v_and_b32 v6, 64, v4")
    a("v_lshlrev_b32 v6, 7, v6")
    a("v_and_b32 v7, 48, v4")
    a("v_add_u32 v7, v7, v6")
    a("v_lshl_add_u32 v7, v5, 6, v7")
    a("v_add_u32 v7, %s, v7" % s(T1))
    for i in range(4):
        a("v_add_u32 %s, %d, v7" % (v(GVA + i), i * 32 * 64))
    a("v_and_b32 v7, 32, v4")
    a("v_lshl_add_u32 v6, v7, 7, v6")
    a("v_and_b32 v7, 16, v4")
    a("v_add_u32 v6, v6, v7")
    a("v_lshl_add_u32 v6, v5, 5, v6")
    a("v_add_u32 v6, %s, v6" % s(T2))
    for i in range(4):
        a("v_add_u32 %s, %d, v6" % (v(GVA2 + i), i * 32 * 32))
    a("s_cmp_gt_u32 %s, 8" % s(sCLS))
    a("s_cselect_b32 %s, -1, 0" % s(T0))
    a("s_sub_u32 %s, 16, %s" % (s(T2), s(sCLS)))
    a("s_cmp_gt_u32 %s, 8" % s(sCLS))
    a("s_cselect_b32 %s, %s, %s" % (s(T1), s(T2), s(sCLS)))
    a("s_lshl_b32 %s, %s, 19" % (s(T2), s(T1)))
    a("s_add_u32 %s, %s, %s" % (s(T2), s(T2), hx(ZT_OFF)))
    a("s_lshl_b32 %s, %s, 16" % (s(T3), s(T1)))
    a("s_add_u32 %s, %s, %s" % (s(T3), s(T3), hx(CP_OFF)))
    a("s_and_b32 %s, %s, 127" % (s(T4), s(T0)))
    for i in range(4):
        a("v_add_u32 v6, %d, v5" % (32 * i))
        a("v_xor_b32 v6, %s, v6" % s(T4))
        a("v_lshl_add_u32 v6, v6, 8, v4")
        a("v_add_u32 %s, %s, v6" % (v(GVC + i), s(T3)))
    a("s_lshl_b32 %s, %s, 6" % (s(T3), s(sNB8)))
    a("s_mul_i32 %s, %s, %d" % (s(T4), s(sKH), 64 * US()))
    a("s_add_u32 %s, %s, %s" % (s(T3), s(T3), s(T4)))
    for i in range(2):
        a("v_add_u32 v6, %d, v5" % (32 * i))
        a("v_add_u32 v6, %s, v6" % s(T3))
        a("v_xor_b32 v6, %s, v6" % s(T0))
        a("v_subrev_u32 v6, %s, v6" % s(T0))
        a("v_and_b32 v7, 3, v6")
        a("v_bfe_u32 v6, v6, 2, 8")
        a("v_lshl_add_u32 v6, v7, 8, v6")
        a("v_and_b32 v7, 48, v4")
        a("v_lshl_add_u32 v6, v6, 6, v7")
        a("v_and_b32 v7, 64, v4")
        a("v_lshl_add_u32 v6, v7, 10, v6")
        a("v_add_u32 %s, %s, v6" % (v(GVD + i), s(T2)))
    a("s_and_b32 %s, %s, 7" % (s(T3), s(T1)))
    a("s_lshl_b32 %s, %s, 9" % (s(T3), s(T3)))
    a("s_add_u32 %s, %s, %s" % (s(T3), s(T3), hx(ZF_OFF - SF_OFF)))
    a("v_add_u32 %s, %s, v31" % (v(GZA), s(T3)))
    a("s_andn2_b32 %s, %s, 127" % (s(T2), s(sHF)))
    a("v_and_b32 v6, 31, v3")
    a("v_lshlrev_b32 v6, 2, v6")
    a("v_add_u32 %s, %s, v6" % (v(GHA), s(T2)))
    a("s_and_b32 %s, %s, %d" % (s(T2), s(sCB8), 0 if OPT.get("same") == "1" else 4))
    a("s_lshl_b32 %s, %s, 2" % (s(T2), s(T2)))
    a("s_lshl_b32 %s, 0xffff, %s" % (s(sMK), s(T2)))
    a("s_not_b32 %s, %s" % (s(sMK + 2), s(sMK)))
    a("s_mov_b32 %s, 0" % s(sMK + 1))
    a("s_mov_b32 %s, 0" % s(sMK + 3))


def loader_g2(a):
    a("s_add_u32 %s, %s, %d" % (s(sWRAP), s(sSL0), G2SLOT * 5))
    NT = NJ + NSOLO
    q = []

    def slot_of(st):
        a("s_add_u32 %s, %s, %d" % (s(sSLOT), s(sSL0), ((st + 4) % 5) * G2SLOT))

    def issue(st, want_a=True, want_b=True):
        slot_of(st)
        if st < NREG:
            breg = want_b and st < NRB()
            want_b = want_b and not breg
            if want_a or want_b:
                g2_koff(a, st, want_a, want_b)
            if want_a:
                for i in range(4):
                    dma(a, i * 4096, GVA + i, WS, sKA, coh=True)
            if want_b:
                for i in range(4):
                    dma(a, 16384 + i * 4096, GVB + i, W2, sKB)
            if breg:
                a("v_add_u32 v6, %s, %s" % (hx(((st + 4) % 5) * G2SLOT + 16384), v(GWA)))
                for i in range(4):
                    a("ds_write_b128 v6, %s offset:%d" % (v(RBB + 16 * st + 4 * i, 4), i * 4096))
            q.extend([st] * (4 * want_a + 4 * want_b))
        elif st < NJ:
            lam = st - NREG
            a("s_mov_b32 %s, %d" % (s(sKA), lam * 16384))
            a("s_mov_b32 %s, %d" % (s(sKB), (448 * lam + 192) * 2048))
            for i in range(4):
                dma(a, i * 4096, GVA2 + i, WS, sKA, coh=True)
            for i in range(2):
                dma(a, 16384 + i * 4096, GVB + i, W2, sKB)
            for i in range(2):
                dma(a, 16384 + (i + 2) * 4096, GVB2 + i, W2, sKB)
            q.extend([st] * 8)
        else:
            k = st - NJ
            a("s_add_u32 %s, %s, %d" % (s(sSLOT), s(sSL0), SOLOB + k * 24576))
            a("s_mov_b32 %s, %d" % (s(sKA), (k & 1) * 128 + (k >> 1) * 32768))
            a("s_mov_b32 %s, %d" % (s(sKB), (k & 1) * 131072 + (k >> 1) * 262144))
            for i in range(4):
                dma(a, i * 4096, GVC + i, WS, sKA, coh=True)
            for i in range(2):
                dma(a, 16384 + i * 4096, GVD + i, WS, sKB, coh=True)
            q.extend([st] * 6)

    def wait(*tags):
        idx = max(i for i, x in enumerate(q) if x in tags)
        a("s_waitcnt vmcnt(%d)" % (len(q) - idx - 1))
        del q[:idx + 1]

    assert NRB() == 0
    top = a.newlabel("pre"); got = a.newlabel("got"); nogot = a.newlabel("nogot"); slow = a.newlabel("slow"); got2 = a.newlabel("got2")
    a("s_mov_b32 %s, 0" % s(T6))
    a("s_mov_b32 %s, 0" % s(T7))
    if OPT.get("e0", "0") == "1":
        poll_issue(a, 29, GHA)
        issue(0, want_a=False)
        a("s_waitcnt vmcnt(4)")
        poll_test(a, 29, s(sMK, 2))
        a("s_cbranch_scc1 %s" % slow)
        mark(a, 9)
        issue(0, want_b=False)
        a("s_barrier")
        issue(1, want_a=False)
        issue(2, want_a=False)
        a("s_branch %s" % got2)
        a.label(slow)
    else:
        if OPT.get("e0") == "2" and OPT.get("e0p", "a") == "a":
            poll_issue(a, 29, GHA)
        issue(0, want_a=False)
    a("s_barrier")
    if OPT.get("e0") == "2" and OPT.get("e0p", "a") == "b":
        poll_issue(a, 29, GHA)
    issue(1, want_a=False)
    issue(2, want_a=False)
    if OPT.get("e0") == "2":
        a("s_waitcnt vmcnt(%d)" % (12 if OPT.get("e0p", "a") == "a" else 8))
        poll_test(a, 29, s(sMK, 2))
        a("s_cbranch_scc0 %s" % got)
    a.label(top)
    poll_issue(a, 29, GHA)
    a("s_waitcnt vmcnt(0)")
    a("s_add_u32 %s, %s, 1" % (s(T7), s(T7)))
    poll_test(a, 29, s(sMK, 2))
    a("s_cbranch_scc0 %s" % got)
    a("s_sleep 2")
    a("s_cmp_lt_u32 %s, %s" % (s(T7), OPT.get("np", "2")))
    a("s_cbranch_scc1 %s" % top)
    a("s_branch %s" % nogot)
    a.label(got)
    mark(a, 9)
    issue(0, want_b=False)
    a.label(got2)
    for st in range(1, 3):
        issue(st, want_b=False)
    poll_issue(a, 30, GHA, off=128)
    a("s_mov_b32 %s, 1" % s(T6))
    a.label(nogot)
    a("s_barrier")
    late = a.newlabel("late"); go = a.newlabel("go")
    a("s_cmp_eq_u32 %s, 0" % s(T6))
    a("s_cbranch_scc1 %s" % late)
    issue(3)
    a("s_waitcnt vmcnt(17)")
    a("s_barrier")
    a("s_waitcnt vmcnt(8)")
    poll_check(a, 30, GHA, s(sMK, 2), True, off=128)
    issue(4)
    a("s_branch %s" % go)
    a.label(late)
    for st in range(3, 5):
        issue(st, want_a=False)
    poll_check(a, 29, GHA, s(sMK, 2), False, n=2, stride=128)
    mark(a, 8)
    issue(0, want_b=False)
    issue(1, want_b=False)
    a("s_waitcnt vmcnt(4)")
    a("s_barrier")
    for st in range(2, 5):
        issue(st, want_b=False)
    a("s_waitcnt vmcnt(12)")
    a.label(go)
    del q[:]
    q.extend([1] + [2] * 4 + [3] * 4 + [4] * 4)
    poll_issue(a, 29, GHA, off=256); q.append("p1")
    nxt = 5
    a.skipdma = True
    for k in range(0, NJ):
        last_issue = min(k + 5, NT - 1) if k < NJ - 3 else NT - 1
        tags = [k + 1] if k < NJ - 1 else [NJ + 1]
        chk = None
        if nxt <= 8 <= last_issue:
            tags.append("p1"); chk = "h1"
        if nxt <= 12 <= last_issue:
            tags.append("p2"); chk = "h2"
        if nxt <= NJ <= last_issue:
            tags.append("p3"); chk = "z"
        fine(a)
        if k > 0:
            wait(*tags)
        else:
            q.remove(1)
        if chk == "h1":
            poll_check(a, 29, GHA, s(sMK, 2), True, off=256)
        elif chk == "h2":
            poll_check(a, 29, GHA, s(sMK + 2, 2), True, off=256)
        elif chk is not None:
            a("s_mov_b32 %s, -1" % s(sMK))
            poll_check(a, 29, GZA, s(sMK, 2), True)
        fine(a)
        a("s_barrier")
        while nxt <= last_issue:
            issue(nxt); nxt += 1
        PD = int(OPT.get("pd", "9"))
        if PD and k + 5 + PD < NJ:
            w2_prefetch(a, [2 * (k + 5 + PD), 2 * (k + 5 + PD) + 1])
        if k == int(OPT.get("zk", "6")):
            flag_store(a, "z")
        if k in (int(OPT.get("cr2", "9")), int(OPT.get("cr3", "17"))):
            code_refresh(a, q)
        if str(k) in OPT.get("pt", "").split(","):
            page_touch(a, q)
        if k == 3:
            poll_issue(a, 29, GHA, off=256); q.append("p2")
        if k == NJ - 9:
            poll_issue(a, 29, GZA); q.append("p3")
    assert (NJ - 1 + 4) % 5 * G2SLOT == RXL
    RX = 64
    a("s_lshl_b32 %s, s2, 15" % s(T0))
    a("s_lshl_b32 %s, %s, 13" % (s(T1), s(sL)))
    a("s_add_u32 %s, %s, %s" % (s(T0), s(T0), s(T1)))
    a("s_add_u32 %s, %s, %s" % (s(T0), s(T0), hx(EX_OFF)))
    a("v_lshlrev_b32 v6, 4, v3")
    a("v_add_u32 v24, %s, v6" % s(T0))
    a("v_add_u32 v25, 4096, v24")
    a("s_add_u32 %s, %s, %d" % (s(T1), s(T1), RXL))
    a("v_add_u32 v6, %s, v6" % s(T1))
    a("v_mov_b32 v28, 0xff")
    a("v_mov_b32 v31, %s" % s(sTAG))
    wait(NT - 1)
    a("s_barrier")
    a("s_barrier")
    top = a.newlabel("rx"); ok = a.newlabel("rxok")
    a("s_mov_b32 %s, 0" % s(T7))
    a.label(top)
    for i in range(8):
        a("buffer_load_dwordx4 %s, %s, %s, 0 offen offset:%d sc1" % (v(RX + 4 * i, 4), "v25" if i >= 4 else "v24", s(WS, 4), (i & 3) * 1024))
    a("s_waitcnt vmcnt(0)")
    a("v_or3_b32 v26, %s, %s, %s" % (v(RX), v(RX + 1), v(RX + 2)))
    a("v_bitop3_b32 v27, %s, %s, %s bitop3:0x80" % (v(RX), v(RX + 1), v(RX + 2)))
    for i in range(3, 31, 2):
        a("v_or3_b32 v26, v26, %s, %s" % (v(RX + i), v(RX + i + 1)))
        a("v_bitop3_b32 v27, v27, %s, %s bitop3:0x80" % (v(RX + i), v(RX + i + 1)))
    a("v_or_b32 v26, v26, %s" % v(RX + 31))
    a("v_and_b32 v27, v27, %s" % v(RX + 31))
    a("v_xor_b32 v26, v26, v31")
    a("v_xor_b32 v27, v27, v31")
    a("v_or_b32 v26, v26, v27")
    a("v_and_b32 v26, v26, v28")
    a("v_cmp_ne_u32 vcc, 0, v26")
    a("s_add_u32 %s, %s, 1" % (s(T7), s(T7)))
    a("s_nop 3")
    a("s_cbranch_vccz %s" % ok)
    a("s_sleep 2")
    a("s_cmp_lt_u32 %s, %d" % (s(T7), SPIN_MAX))
    a("s_cbranch_scc1 %s" % top)
    a.label(ok)
    for i in range(8):
        for j in range(4):
            a("v_bfi_b32 %s, v28, 0, %s" % (v(RX + 4 * i + j), v(RX + 4 * i + j)))
        a("ds_write_b128 v6, %s offset:%d" % (v(RX + 4 * i, 4), i * 1024))
    mark(a, 11, T7)
    fine_dump(a, 1)
    a("s_waitcnt lgkmcnt(0)")
    a("s_barrier")
    a("s_endpgm")


HEADER = """; Kernarg layout (88 bytes, ptrs only, base s[0:1]): 0 A_x, 8 dft_seq_re, 16 dft_seq_im, 24 dft_hid_re,
"""


def main():
    global STAMP
    args = sys.argv[1:]
    global FINE, NSGPR
    if "--fine" in args:
        FINE = True; NSGPR = 102; args.remove("--fine")
    if "--stamp" in args:
        STAMP = True; args.remove("--stamp")
    for x in list(args):
        if x.startswith("--") and "=" in x:
            k, val = x[2:].split("="); OPT[k] = val; args.remove(x)
    a = Asm()
    a.raw(HEADER.rstrip("\n"))
    nv = 256
    a.raw("; @launch grid=(256,1,1) block=(512,1,1) lds=163840")
    a.raw('.amdgcn_target "amdgcn-amd-amdhsa--gfx950"')
    a.raw(".text")
    name = NAME + "_kernel"
    kernel_header(a, name)
    prologue(a, "L_end")
    if FINE:
        a("s_mov_b32 s100, 0")
        a("v_mov_b32 v250, 0")
    mark(a, 0)
    a("s_cmp_ge_u32 %s, 4" % s(sWAVE))
    a("s_cbranch_scc1 L_loader")
    compute_setup(a)
    a("s_barrier")
    prep_ln(a)
    a("s_waitcnt lgkmcnt(0)")
    tag_ready(a)
    a("v_mov_b32 v29, %d" % SYNC)
    a("v_mov_b32 v30, 1")
    a("s_mov_b64 exec, 1")
    a("ds_add_u32 v29, v30")
    a("s_mov_b64 exec, -1")
    a("s_mov_b32 %s, 0" % s(T7))
    a.label("L_sync")
    a("ds_read_b32 v30, v29")
    a("s_add_u32 %s, %s, 1" % (s(T7), s(T7)))
    a("s_waitcnt lgkmcnt(0)")
    a("v_readfirstlane_b32 %s, v30" % s(T6))
    a("s_cmp_ge_u32 %s, %d" % (s(T7), SPIN_MAX))
    a("s_cbranch_scc1 L_synced")
    a("s_cmp_lt_u32 %s, 4" % s(T6))
    a("s_cbranch_scc1 L_sync")
    a.label("L_synced")
    if OPT.get("sst") == "1":
        mark(a, 30)
    dft = prep_dft(a)
    dft(0)
    a("s_waitcnt lgkmcnt(0)")
    dft(1)
    if OPT.get("sst") == "1":
        mark(a, 31)
    dft(3)
    compute_g1_s1(a)
    compute_g2(a)
    a.label("L_loader")
    if OPT.get("lprio", "0") != "0":
        a("s_setprio %s" % OPT.get("lprio", "0"))
    loader_setup(a)
    loader_g1_s1(a)
    loader_g2(a)
    a.label("L_end")
    a("s_endpgm")
    a.raw('.section .rodata,"a"')
    a.raw(kernel_desc(name, nv, NSGPR).rstrip("\n"))
    out = args[0] if args else "cdna_kernels/%s.s" % NAME
    open(out, "w").write(a.text())


if __name__ == "__main__":
    main()
```
